```python
import torch

def _softmax(x, axis=-1):
    return torch.softmax(x, dim=axis)

def _gelu(x):
    return torch.nn.functional.gelu(x, approximate='tanh')

def _silu(x):
    return torch.nn.functional.silu(x)

def _sigmoid(x):
    return torch.sigmoid(x)

def _layernorm(x, axis=-1, eps=1e-05):
    m = x.mean(dim=axis, keepdim=True)
    v = x.var(dim=axis, keepdim=True, unbiased=False)
    return (x - m) / torch.sqrt(v + eps)

def _scatter_add(tgt, idx, src, axis=0):
    return tgt.clone().index_add_(axis, idx, src)

def _segment_sum(src, seg, n):
    out = torch.zeros((n,) + src.shape[1:], dtype=src.dtype)
    return out.index_add_(0, seg, src)

def _pad(x, pw):
    flat = tuple((v for pair in reversed(pw) for v in pair))
    return torch.nn.functional.pad(x, flat)
kernel_name = 'interleave_layers__memory_aug_recurrent_mem_tr__dense_activation_relu__prompt'

def setup_inputs():

    _w = lambda a: (lambda t: t.to(torch.bfloat16) if t.is_floating_point() else t)(torch.as_tensor(a))

    def _A_setup():
        B, S, Dm = (1, 2048, 640)
        H, Dh = (32, 128)
        M, seg = (8, 32)
        seg = min(seg, S)
        S = S // seg * seg
        return {'x': _w((lambda *s: torch.randn(*s, dtype=torch.bfloat16) * 0.05)(B, S, Dm)), 'mem0': _w((lambda *s: torch.randn(*s, dtype=torch.bfloat16) * 0.8)(B, M, Dm)), 'Wq': _w((lambda *s: torch.randn(*s, dtype=torch.bfloat16) * 0.8)(Dm, H, Dh) * Dm ** (-0.5)), 'Wk': _w((lambda *s: torch.randn(*s, dtype=torch.bfloat16) * 0.8)(Dm, H, Dh) * Dm ** (-0.5)), 'Wv': _w((lambda *s: torch.randn(*s, dtype=torch.bfloat16) * 0.8)(Dm, H, Dh) * Dm ** (-0.5)), 'Wo': _w((lambda *s: torch.randn(*s, dtype=torch.bfloat16) * 0.8)(H, Dh, Dm) * (H * Dh) ** (-0.5)), 'seg_len': seg}
    _A_in = _A_setup()

    def _B_setup():
        B, S, D, Dff = (1, 2048, 640, 1728)
        return {'x': _w((lambda *s: torch.randn(*s, dtype=torch.bfloat16) * 0.05)(B, S, D)), 'w1': _w((lambda *s: torch.randn(*s, dtype=torch.bfloat16) * 0.05)(D, Dff)), 'w2': _w((lambda *s: torch.randn(*s, dtype=torch.bfloat16) * 0.05)(Dff, D))}
    _B_in = _B_setup()
    return {'A_x': _A_in['x'], 'A_mem0': _A_in['mem0'], 'A_Wq': _A_in['Wq'], 'A_Wk': _A_in['Wk'], 'A_Wv': _A_in['Wv'], 'A_Wo': _A_in['Wo'], 'A_seg_len': _A_in['seg_len'], 'B_x': _B_in['x'], 'B_w1': _B_in['w1'], 'B_w2': _B_in['w2']}

def reference(A_x, A_mem0, A_Wq, A_Wk, A_Wv, A_Wo, A_seg_len, B_x, B_w1, B_w2):

    def _A_ref(x, mem0, Wq, Wk, Wv, Wo, seg_len):
        B, S, Dm = x.shape
        H, Dh = (Wq.shape[1], Wq.shape[2])
        M = mem0.shape[1]
        scale = Dh ** (-0.5)
        n_seg = S // seg_len
        L = M + seg_len
        idx = torch.arange(L)
        mask = (idx[:, None] < M) | (idx[:, None] >= idx[None, :])
        mem = mem0
        outs = []
        for s in range(n_seg):
            xs = x[:, s * seg_len:(s + 1) * seg_len, :].clone()
            h = torch.concatenate([mem, xs], axis=1)
            q = torch.einsum('btd,dhe->bhte', h, Wq)
            k = torch.einsum('btd,dhe->bhte', h, Wk)
            v = torch.einsum('btd,dhe->bhte', h, Wv)
            scores = torch.einsum('bhqe,bhke->bhqk', q, k) * scale
            scores = torch.where(mask[None, None], scores, -1000000000.0)
            p = _softmax(scores, axis=-1)
            o = torch.einsum('bhqk,bhke->bhqe', p, v)
            o = torch.einsum('bhte,hed->btd', o, Wo)
            mem = o[:, :M, :].clone()
            outs.append(o[:, M:, :])
        return torch.concatenate(outs, axis=1)

    def _B_ref(x, w1, w2):
        h = torch.einsum('bsd,df->bsf', x, w1)
        zero = torch.zeros_like(h)
        h = torch.maximum(h, zero)
        return torch.einsum('bsf,fd->bsd', h, w2)
    x = A_x
    x = x + _A_ref(_layernorm(x, axis=-1), A_mem0, A_Wq, A_Wk, A_Wv, A_Wo, A_seg_len)
    x = x + _B_ref(_layernorm(x, axis=-1), B_w1, B_w2)
    x = x + _A_ref(_layernorm(x, axis=-1), A_mem0, A_Wq, A_Wk, A_Wv, A_Wo, A_seg_len)
    x = x + _B_ref(_layernorm(x, axis=-1), B_w1, B_w2)
    return x
```

```python
import re

REG_RE = re.compile(r'^(-|abs\()?([vas])(\d+|\[(\d+):(\d+)\])\)?$')

def parse_regs(op):
    op = op.strip()
    if op in ('vcc',):
        return [('s', 'vcc_lo'), ('s', 'vcc_hi')]
    if op in ('vcc_lo', 'vcc_hi'):
        return [('s', op)]
    if op == 'exec':
        return [('s', 'exec')]
    if op == 'm0':
        return [('s', 'm0')]
    m = REG_RE.match(op)
    if not m:
        return []
    cls = m.group(2)
    if m.group(4) is not None:
        return [(cls, i) for i in range(int(m.group(4)), int(m.group(5)) + 1)]
    return [(cls, int(m.group(3)))]

def v(i, n=1):
    return f'v{i}' if n == 1 else f'v[{i}:{i+n-1}]'
def a(i, n=1):
    return f'a{i}' if n == 1 else f'a[{i}:{i+n-1}]'
def s(i, n=1):
    return f's{i}' if n == 1 else f's[{i}:{i+n-1}]'
def R(i, n=1):
    if i < 256:
        assert i + n <= 256
        return v(i, n)
    return a(i - 256, n)

TRANS = ('v_exp_f32', 'v_log_f32', 'v_rcp_f32', 'v_rsq_f32', 'v_sqrt_f32', 'v_sin_f32', 'v_cos_f32', 'v_rcp_iflag_f32')

def mfma_passes(op):
    if '32x32x16' in op or '32x32x8' in op or 'smfmac_f32_32x32x32' in op:
        return 8
    if '16x16x32' in op or '16x16x16' in op or '16x16x64' in op:
        return 4
    raise ValueError(op)

class Ins:
    __slots__ = ('op', 'ops', 'mods', 'text', 'kind', 'rd', 'wr', 'label', 'target', 'srcA', 'srcB', 'srcC', 'nops', 'cmt', 'storedata')
    def __init__(self):
        self.label = None; self.target = None; self.rd = []; self.wr = []
        self.srcA = []; self.srcB = []; self.srcC = []; self.kind = None; self.nops = 0; self.cmt = ''
        self.storedata = []

class Asm:
    def __init__(self):
        self.ins = []
        self.vm = []
        self.lg = []
        self.uid = 0
    def newlabel(self, base='L'):
        self.uid += 1
        return f'{base}_{self.uid}'
    def label(self, name):
        i = Ins(); i.label = name; i.kind = 'label'; i.text = f'{name}:'; i.op = ''
        self.ins.append(i)
    def raw(self, text):
        i = Ins(); i.kind = 'raw'; i.text = text; i.op = ''
        self.ins.append(i)
    def comment(self, text):
        self.raw('; ' + text)
    def __call__(self, op, *ops, mods='', tag=None, cmt=''):
        i = Ins(); i.op = op; i.ops = [str(o) for o in ops]; i.mods = mods; i.cmt = cmt
        ops = i.ops
        i.text = op + (' ' + ', '.join(ops) if ops else '') + (' ' + mods if mods else '')
        P = parse_regs
        if op.startswith('v_mfma'):
            i.kind = 'mfma'; i.wr = P(ops[0]); i.srcA = P(ops[1]); i.srcB = P(ops[2]); i.srcC = P(ops[3])
            i.rd = i.srcA + i.srcB + i.srcC
        elif op.startswith('v_smfmac'):
            i.kind = 'mfma'; i.wr = P(ops[0]); i.srcA = P(ops[1]); i.srcB = P(ops[2]) + P(ops[3]); i.srcC = P(ops[0])
            i.rd = i.srcA + i.srcB + i.srcC
        elif op.startswith('v_'):
            i.kind = 'valu'
            if op.startswith('v_permlane') and 'swap' in op:
                i.wr = P(ops[0]) + P(ops[1]); i.rd = list(i.wr)
            elif op.startswith('v_cmp'):
                i.wr = P(ops[0]); i.rd = sum([P(o) for o in ops[1:]], [])
                assert not op.startswith('v_cmpx')
            elif op in ('v_add_co_u32', 'v_addc_co_u32', 'v_sub_co_u32', 'v_mad_u64_u32'):
                i.wr = P(ops[0]) + P(ops[1]); i.rd = sum([P(o) for o in ops[2:]], [])
            else:
                i.wr = P(ops[0]) if ops else []
                i.rd = sum([P(o) for o in ops[1:]], [])
                if op.startswith(('v_fmac', 'v_dot2c', 'v_pk_fmac', 'v_writelane')) or 'dpp' in op or 'row_' in mods or 'quad_perm' in mods:
                    i.rd += P(ops[0])
                if op == 'v_cndmask_b32' and len(ops) == 3:
                    i.rd += P('vcc')
        elif op.startswith('buffer_load') or op.startswith('global_load'):
            i.kind = 'vmem'
            if ' lds' in (' ' + mods) or '_lds_' in op:
                i.rd = sum([P(o) for o in ops], []) + P('m0'); i.kind = 'vmem_lds'
            else:
                i.wr = P(ops[0]); i.rd = sum([P(o) for o in ops[1:]], [])
            self.vm.append(tag)
        elif op.startswith('buffer_store') or op.startswith('global_store'):
            i.kind = 'vmem'; i.rd = sum([P(o) for o in ops], [])
            if op.endswith('x4') or op.endswith('x3'):
                i.storedata = P(ops[0]) if op.startswith('buffer') else P(ops[1])
            self.vm.append(tag)
        elif op.startswith('buffer_atomic') or op.startswith('global_atomic'):
            i.kind = 'vmem'; i.rd = sum([P(o) for o in ops], [])
            if 'sc0' in mods: i.wr = P(ops[0])
            self.vm.append(tag)
        elif op in ('buffer_wbl2', 'buffer_inv'):
            i.kind = 'vmem'; self.vm.append(tag)
        elif op.startswith('ds_'):
            i.kind = 'ds'
            if op.startswith('ds_read') or op.startswith('ds_bpermute') or op.startswith('ds_permute') or op.startswith('ds_swizzle') or '_rtn' in op:
                i.wr = P(ops[0]); i.rd = sum([P(o) for o in ops[1:]], [])
            else:
                i.rd = sum([P(o) for o in ops], [])
            self.lg.append(tag)
        elif op.startswith('s_'):
            i.kind = 'salu'
            if op in ('s_branch',) or op.startswith('s_cbranch'):
                i.kind = 'branch'; i.target = ops[0]
            elif op == 's_endpgm':
                i.kind = 'end'
            elif op == 's_nop':
                i.nops = int(ops[0]) + 1
            elif op.startswith('s_cmp') or op in ('s_waitcnt', 's_barrier', 's_sleep', 's_setprio', 's_bitcmp0_b32', 's_bitcmp1_b32'):
                i.rd = sum([P(o) for o in ops], [])
            elif op.startswith('s_load') or op.startswith('s_memtime') or op.startswith('s_memrealtime'):
                i.kind = 'smem'; i.wr = P(ops[0]); i.rd = sum([P(o) for o in ops[1:]], [])
            else:
                i.wr = P(ops[0]); i.rd = sum([P(o) for o in ops[1:]], [])
                if 'saveexec' in op: i.wr = i.wr + P('exec')
        else:
            raise ValueError('unknown op ' + op)
        self.ins.append(i)
        return i
    def _cnt(self, lst, tags):
        idx = -1
        for t in tags:
            found = [k for k, x in enumerate(lst) if x == t]
            if found:
                idx = max(idx, found[-1])
        if idx < 0:
            return None
        n = len(lst) - 1 - idx
        del lst[:idx + 1]
        return n
    def wait(self, vm=None, lg=None):
        parts = []
        if vm is not None:
            if vm == 0:
                parts.append('vmcnt(0)'); self.vm.clear()
            else:
                n = self._cnt(self.vm, vm if isinstance(vm, (list, tuple)) else [vm])
                if n is not None: parts.append(f'vmcnt({min(n,63)})')
        if lg is not None:
            if lg == 0:
                parts.append('lgkmcnt(0)'); self.lg.clear()
            else:
                n = self._cnt(self.lg, lg if isinstance(lg, (list, tuple)) else [lg])
                if n is not None: parts.append(f'lgkmcnt({min(n,15)})')
        if parts:
            self('s_waitcnt', ' '.join(parts))
    def reset_counts(self):
        self.vm.clear(); self.lg.clear()

    @staticmethod
    def _need(p, c):
        n = 0
        pw = set(p.wr)
        vec = lambda regs: set(r for r in regs if r[0] in 'va')
        sg = lambda regs: set(r for r in regs if r[0] == 's')
        if p.kind == 'valu':
            pv = vec(p.wr); ps = sg(p.wr)
            if c.kind == 'mfma' and pv & set(c.rd): n = max(n, 2)
            if c.kind == 'valu':
                if pv & set(c.rd):
                    if c.op.startswith('v_permlane') or 'dpp' in c.op or 'row_' in c.mods or 'quad_perm' in c.mods: n = max(n, 2)
                    if c.op.startswith(('v_readfirstlane', 'v_readlane')): n = max(n, 1)
                    if p.op in TRANS and c.op not in TRANS: n = max(n, 1)
                    if 'op_sel' in p.mods or 'sdwa' in p.op or 'dst_sel' in p.mods: n = max(n, 1)
                    if p.op.startswith('v_dot'): n = max(n, 3)
                if p.op.startswith('v_dot') and pv & set(c.wr) and c.op != p.op: n = max(n, 3)
                if ps & set(c.rd):
                    n = max(n, 4 if c.op.startswith(('v_readlane', 'v_writelane')) else 2)
            if c.kind in ('vmem', 'vmem_lds') and ps & set(c.rd): n = max(n, 5)
            if c.kind in ('salu', 'branch', 'smem') and ps & set(c.rd): n = max(n, 1)
            if c.kind == 'branch' and 'vcc' in c.op and ps & {('s', 'vcc_lo'), ('s', 'vcc_hi')}: n = max(n, 1)
            if p.op.startswith('v_dot') and c.kind in ('vmem', 'ds', 'mfma') and pv & set(c.rd): n = max(n, 3)
        if p.kind == 'mfma':
            ps_ = mfma_passes(p.op)
            big = {4: 8, 8: 12}[ps_]
            if c.kind == 'mfma':
                if pw & set(c.srcA + c.srcB): n = max(n, big)
                if pw & set(c.srcC):
                    same = (list(p.wr) == list(c.srcC)) and c.op == p.op
                    if not same: n = max(n, {4: 6, 8: 10}[ps_])
                elif pw & set(c.wr):
                    n = max(n, {4: 6, 8: 10}[ps_])
            elif c.kind in ('valu', 'vmem', 'vmem_lds', 'ds'):
                if pw & (set(c.rd) | set(c.wr)): n = max(n, big)
                if c.kind == 'valu' and set(p.srcC) & set(c.wr): n = max(n, {4: 3, 8: 7}[ps_])
        if p.kind == 'vmem' and p.storedata:
            if set(p.storedata) & set(c.wr): n = max(n, 2)
        if p.kind == 'salu' and ('s', 'm0') in pw and c.kind == 'vmem_lds': n = max(n, 1)
        return n

    def finalize(self):
        ins = self.ins
        changed = True
        while changed:
            changed = False
            labels = {i.label: k for k, i in enumerate(ins) if i.label}
            preds_jump = {}
            for k, i in enumerate(ins):
                if i.kind == 'branch' and i.target in labels:
                    preds_jump.setdefault(labels[i.target], []).append(k)
            for k, c in enumerate(ins):
                if c.kind in ('label', 'raw', 'end') or c.op == 's_nop':
                    continue
                worst = 0
                stack = [(k - 1, 0)]
                seen = set()
                while stack:
                    j, d = stack.pop()
                    while j >= 0 and d < 13:
                        if (j, d) in seen: break
                        seen.add((j, d))
                        p = ins[j]
                        if p.kind == 'label':
                            for b in preds_jump.get(j, []):
                                stack.append((b, d))
                            j -= 1; continue
                        if p.kind == 'raw':
                            j -= 1; continue
                        if p.kind == 'end' or (p.op == 's_branch' and (j, d) != stack_marker(j, d, k, ins, labels)):
                            break
                        need = self._need(p, c)
                        if need > d: worst = max(worst, need - d)
                        d += p.nops if p.op == 's_nop' else 1
                        j -= 1
                if worst > 0:
                    n = Ins(); n.op = 's_nop'; n.ops = [str(worst - 1)]; n.mods = ''; n.kind = 'salu'; n.nops = worst
                    n.text = f's_nop {worst-1}'; n.cmt = 'auto'
                    ins.insert(k, n)
                    changed = True
                    break_all = True
                    return self._finalize_fast()
        return self.text()

    def _finalize_fast(self):
        while True:
            ins = self.ins
            labels = {i.label: k for k, i in enumerate(ins) if i.label}
            preds_jump = {}
            for k, i in enumerate(ins):
                if i.kind == 'branch' and i.target in labels:
                    preds_jump.setdefault(id(ins[labels[i.target]]), []).append(i)
            out = []
            pos = {}
            oldpos = {id(i): k for k, i in enumerate(ins)}
            inserted = 0
            def back(lst, j, d, c, arrived_by_jump, seen):
                worst = 0
                first = arrived_by_jump
                while j >= 0 and d < 13:
                    p = lst[j]
                    if p.kind == 'label':
                        for b in preds_jump.get(id(p), []):
                            key = (id(b), d)
                            if key in seen: continue
                            seen.add(key)
                            if id(b) in pos:
                                worst = max(worst, back(out, pos[id(b)], d, c, True, seen))
                            else:
                                worst = max(worst, back(ins, oldpos[id(b)], d, c, True, seen))
                        j -= 1; continue
                    if p.kind == 'raw':
                        j -= 1; continue
                    if p.kind == 'end' or (p.op == 's_branch' and not first):
                        break
                    first = False
                    need = self._need(p, c)
                    if need > d: worst = max(worst, need - d)
                    d += p.nops if p.op == 's_nop' else 1
                    j -= 1
                return worst
            for c in ins:
                if not (c.kind in ('label', 'raw', 'end') or c.op == 's_nop'):
                    w = back(out, len(out) - 1, 0, c, False, set())
                    if w > 0:
                        n = Ins(); n.op = 's_nop'; n.ops = [str(w - 1)]; n.mods = ''; n.kind = 'salu'; n.nops = w
                        n.text = f's_nop {w-1}'; n.cmt = 'auto'
                        out.append(n); inserted += 1
                pos[id(c)] = len(out)
                out.append(c)
            self.ins = out
            if inserted == 0:
                break
        return self.text()

    def text(self):
        lines = []
        for i in self.ins:
            if i.kind in ('label', 'raw'):
                lines.append(i.text)
            else:
                lines.append('    ' + i.text + (f'  ; {i.cmt}' if i.cmt else ''))
        return '\n'.join(lines) + '\n'

Asm.finalize = Asm._finalize_fast
```

```python
from asmgen import *
from layout import *
from chain import WS, SQ, SK, SV, SO, SX, SM0, SW1, SW2, SOUT, SDBG, f32bits, SPIN_MAX
sW, sI, sL, sU = 's52', 's53', 's54', 's55'
sIN, sOUT_, sFI, sFO, sPROG, sPEND, sLB, sNX, sA, sB, sC_, sD = ['s%d' % i for i in range(56, 68)]
sSPIN, sDEAD = 's68', 's69'
sT0, sT1, sT2, sT3 = 's70', 's71', 's72', 's73'
NU = 64
LN_, L16, FOFF = 0, 1, 2
FV = 4
TM = 8

def common_setup(A, nlines):
    A('v_and_b32', v(LN_), 63, 'v0'); A('v_lshlrev_b32', v(L16), 4, v(LN_))
    A('v_min_u32', v(FOFF), nlines - 1, v(LN_)); A('v_lshlrev_b32', v(FOFF), 7, v(FOFF))
    A('s_mov_b32', sU, 0); A('s_mov_b32', sPROG, 0); A('s_mov_b32', sPEND, 0); A('s_mov_b32', sDEAD, 0)

def flag_load(A, soff=sFI, reg=FV, voff=FOFF, n=4):
    op = {1: 'buffer_load_dword', 2: 'buffer_load_dwordx2', 4: 'buffer_load_dwordx4'}[n]
    A(op, v(reg, n), v(voff), WS, soff, mods='offen sc1', tag='fl')

def flag_min(A, dst, reg=FV, n=4, lanes=64):
    if n == 4:
        A('v_min3_u32', v(reg), v(reg), v(reg + 1), v(reg + 2)); A('v_min_u32', v(reg), v(reg), v(reg + 3))
    elif n == 2:
        A('v_min_u32', v(reg), v(reg), v(reg + 1))
    if lanes > 1:
        for sh in (1, 2, 4, 8): A('v_min_u32_dpp', v(reg), v(reg), v(reg), mods=f'row_ror:{sh} row_mask:0xf bank_mask:0xf')
    A('v_readlane_b32', sT0, v(reg), 0)
    if lanes > 16:
        assert lanes <= 32
        A('v_readlane_b32', sT1, v(reg), 16); A('s_min_u32', sT0, sT0, sT1)
    A('s_max_u32', dst, dst, sT0)

def poll(A, pre, need, prog=sPROG, soff=sFI, reg=FV, voff=FOFF, n=4, lanes=64):
    ok = A.newlabel(pre + '_ok'); lp = A.newlabel(pre + '_lp')
    A('s_cmp_gt_u32', prog, need); A('s_cbranch_scc1', ok)
    A('s_mov_b32', sSPIN, 0)
    A.label(lp)
    flag_load(A, soff, reg, voff, n); A.vm.pop()
    A('s_waitcnt', 'vmcnt(0)')
    flag_min(A, prog, reg, n, lanes)
    A('s_cmp_gt_u32', prog, need); A('s_cbranch_scc1', ok)
    A('s_cmp_lg_u32', sDEAD, 0); A('s_cbranch_scc1', ok)
    A('s_sleep', 4)
    A('s_add_u32', sSPIN, sSPIN, 1); A('s_cmp_lt_u32', sSPIN, SPIN_MAX); A('s_cbranch_scc1', lp)
    A('s_mov_b32', sDEAD, 1)
    A.label(ok)

def publish(A, val, tmp=3):
    A('v_mov_b32', v(tmp), val)
    A('s_mov_b64', 'exec', 1)
    A('buffer_store_dword', v(tmp), 'off', WS, sFO, mods='sc1'); A.vm.pop()
    A('s_mov_b64', 'exec', -1)

def flag_out_addr(A, kind):
    A('s_mul_i32', sFO, sL, FL_LAYER); A('s_lshl_b32', sT0, sI, 7); A('s_add_u32', sFO, sFO, sT0)
    A('s_lshl_b32', sT0, sW, 2); A('s_add_u32', sFO, sFO, sT0); A('s_add_u32', sFO, sFO, kind)

def load_weights(A, srd, stride, rowpart, sbase, soffs, dst, perm):
    SRC, TR0, TR1 = TM, TM + 1, TM + 2
    t = [TM + 3 + i for i in range(6)]
    A('v_lshrrev_b32', v(t[0]), 5, v(LN_)); A('v_mul_u32_u24', v(t[0]), rowpart, v(t[0]))
    A('v_bfe_u32', v(t[1]), v(LN_), 3, 2); A('v_add_u32', v(t[0]), v(t[0]), v(t[1]))
    A('s_mov_b32', sT0, stride); A('v_mul_lo_u32', v(t[0]), v(t[0]), sT0)
    A('v_bfe_u32', v(t[1]), v(LN_), 4, 1); A('v_lshlrev_b32', v(t[1]), 2, v(t[1])); A('v_and_b32', v(t[2]), 7, v(LN_)); A('v_xor_b32', v(t[1]), v(t[1]), v(t[2]))
    A('v_lshl_add_u32', v(t[0]), v(t[1]), 4, v(t[0])); A('v_add_u32', v(SRC), sbase, v(t[0]))
    A('s_mul_i32', sLB, sW, 40960)
    A('v_lshrrev_b32', v(t[0]), 5, v(LN_)); A('v_lshlrev_b32', v(t[0]), 10, v(t[0]))
    A('v_bfe_u32', v(t[1]), v(LN_), 2, 2); A('v_lshl_add_u32', v(t[0]), v(t[1]), 7, v(t[0]))
    A('v_bfe_u32', v(t[1]), v(LN_), 3, 1); A('v_lshl_add_u32', v(t[0]), v(t[1]), 6, v(t[0]))
    A('v_bfe_u32', v(t[1]), v(LN_), 4, 1); A('v_lshl_add_u32', v(t[0]), v(t[1]), 5, v(t[0]))
    if perm:
        A('v_and_b32', v(t[1]), 1, v(LN_)); A('v_lshl_add_u32', v(t[0]), v(t[1]), 4, v(t[0]))
        A('v_bfe_u32', v(t[1]), v(LN_), 1, 1); A('v_lshl_add_u32', v(t[0]), v(t[1]), 3, v(t[0]))
    else:
        A('v_and_b32', v(t[1]), 3, v(LN_)); A('v_lshl_add_u32', v(t[0]), v(t[1]), 3, v(t[0]))
    A('v_add_u32', v(TR0), sLB, v(t[0])); A('v_xor_b32', v(TR1), 64, v(TR0))
    n_st = len(soffs); depth = 20
    def dma(n):
        for b in range(2):
            A('s_add_u32', 'm0', sLB, (n % depth) * 2048 + b * 1024)
            A('s_mov_b32', sT0, soffs[n][b])
            A('buffer_load_dwordx4', v(SRC), srd, sT0, mods='offen lds', tag=('W', n))
    for n in range(min(depth, n_st)): dma(n)
    for n in range(n_st):
        A.wait(vm=[('W', n)])
        for T in range(2):
            for hq in range(2):
                A('ds_read_b64_tr_b16', R(dst(n, T) + 2 * hq, 2), v(TR0 if T == 0 else TR1), mods=f'offset:{(n % depth)*2048 + 512*hq}', tag=('T', n))
        if n >= 1 and n - 1 + depth < n_st:
            A.wait(lg=[('T', n - 1)]); dma(n - 1 + depth)
    A.wait(vm=0, lg=0)

def emit_gemm1(A, kind, ready):
    P = f'G1{kind}_'
    A.label(P + 'entry'); A.reset_counts()
    RING, ACC, STG, WR = 64, 128, 160, 192
    AD, SA = 32, 33
    wreg = lambda n, T: WR + (2 * n + T) * 4
    common_setup(A, 1 if kind != 'f1' else 2)
    if kind == 'f1':
        A('s_lshl_b32', sT1, sI, 2); A('s_add_u32', sT1, sT1, sW)
        A('s_lshl_b32', sA, sT1, 7)
        A('s_cmp_lt_u32', sT1, 27); A('s_cselect_b32', sA, sA, '0x20000000')
        A('s_mul_i32', sOUT_, sL, LAYER_H); A('s_lshl_b32', sT1, sT1, 12); A('s_add_u32', sOUT_, sOUT_, sT1); A('s_add_u32', sOUT_, sOUT_, HF)
        load_weights(A, SW1, 3456, 4, sA, [(16 * n * 3456, (16 * n + 8) * 3456) for n in range(40)], wreg, False)
        A('s_mul_i32', sIN, sL, LAYER_X); A('s_add_u32', sIN, sIN, XN1)
        A('s_mul_i32', sFI, sL, FL_LAYER); A('s_add_u32', sFI, sFI, FL_LNA)
        flag_out_addr(A, FL_F1); nl = 2; ostep = UH
        A('v_mov_b32', v(SA), v(L16))
    else:
        A('s_mul_i32', sT1, sI, 43); A('s_lshr_b32', sB, sT1, 7)
        A('s_mul_i32', sT1, sB, 3); A('s_sub_u32', sC_, sI, sT1)
        A('s_lshl_b32', sA, sB, 9); A('s_lshl_b32', sT1, sW, 7); A('s_add_u32', sA, sA, sT1)
        soffs = [(16 * n * 8192, (16 * n + 8) * 8192) for n in range(40)]
        if kind == 'v':
            load_weights(A, SV, 8192, 4, sA, soffs, wreg, False)
        else:
            A('s_cmp_eq_u32', sC_, 0)
            A('s_cselect_b32', 's76', 's12', 's16'); A('s_cselect_b32', 's77', 's13', 's17'); A('s_mov_b32', 's78', hex(640 * 4096 * 2)); A('s_mov_b32', 's79', '0x20000')
            load_weights(A, 's[76:79]', 8192, 4, sA, soffs, wreg, False)
        A('s_mul_i32', sOUT_, sL, LAYER_F); A('s_lshl_b32', sT1, sB, 14); A('s_add_u32', sOUT_, sOUT_, sT1)
        A('s_lshr_b32', sT1, sW, 1); A('s_lshl_b32', sT1, sT1, 13); A('s_add_u32', sOUT_, sOUT_, sT1)
        A('s_and_b32', sT1, sW, 1)
        if kind == 'v':
            A('s_lshl_b32', sT1, sT1, 12); A('s_add_u32', sOUT_, sOUT_, sT1); A('s_add_u32', sOUT_, sOUT_, VT)
        else:
            A('s_lshl_b32', sT1, sT1, 11); A('s_add_u32', sOUT_, sOUT_, sT1)
            A('s_cmp_eq_u32', sC_, 0); A('s_cselect_b32', sT1, QF - KF, 0); A('s_add_u32', sOUT_, sOUT_, sT1); A('s_add_u32', sOUT_, sOUT_, KF)
        A('s_mul_i32', sIN, sL, LAYER_X); A('s_add_u32', sIN, sIN, XN)
        A('s_mul_i32', sFI, sL, FL_LAYER); A('s_add_u32', sFI, sFI, FL_XN)
        flag_out_addr(A, FL_QKV); nl = 1; ostep = 32 * 8192
        A('v_bfe_u32', v(TM), v(LN_), 4, 1); A('v_lshlrev_b32', v(TM), 10 if kind == 'v' else 12, v(TM))
        A('v_lshrrev_b32', v(TM + 1), 5, v(LN_)); A('v_lshl_add_u32', v(TM), v(TM + 1), 8, v(TM))
        A('v_and_b32', v(TM + 1), 15, v(LN_)); A('v_lshl_add_u32', v(SA), v(TM + 1), 4, v(TM))
    A('s_mul_i32', sT0, sW, 10240); A('s_add_u32', sIN, sIN, sT0); A('s_mov_b32', sLB, sT0)
    A('s_mov_b32', sD, 0)
    ready(A)
    A('s_barrier')
    def dma_in():
        for i in range(10):
            if i % 4 == 0:
                A('s_add_u32', 'm0', sLB, i * 1024); A('s_add_u32', sT0, sIN, i * 1024)
            A('buffer_load_dwordx4', v(L16), WS, sT0, mods=f'offen offset:{(i%4)*1024} sc1 lds'); A.vm.pop()
        A('s_add_u32', sIN, sIN, UX)
        A('s_add_u32', sT0, sLB, UX); A('s_sub_u32', sT1, sLB, UX); A('s_cmp_ge_u32', sLB, UX); A('s_cselect_b32', sLB, sT1, sT0)
    A.label(P + 'fetch')
    poll(A, P + 'p', sU, lanes=nl)
    dma_in()
    A('s_waitcnt', 'vmcnt(0)')
    A.label(P + 'top')
    A.reset_counts()
    NST = 4
    A('s_waitcnt', f'vmcnt({NST+1})')
    A('s_barrier')
    A('v_add_u32', v(AD), sD, v(L16))
    A('s_xor_b32', sD, sD, UX)
    D = 8
    def rd(k): A('ds_read_b128', v(RING + 4 * (k % D), 4), v(AD), mods=f'offset:{k*1024}', tag=('A', k))
    for k in range(D): rd(k)
    A('s_mov_b32', sNX, 0)
    for k in range(40):
        A.wait(lg=[('A', k)])
        x = v(RING + 4 * (k % D), 4)
        for T in range(2):
            wv = R(wreg(k, T), 4); acc = v(ACC + 16 * T, 16)
            a_, b_ = (x, wv) if kind == 'v' else (wv, x)
            A('v_mfma_f32_32x32x16_bf16', acc, a_, b_, '0' if k == 0 else acc)
        if k + D < 40: rd(k + D)
        if k == 12:
            sk = A.newlabel(P + 'nop')
            A('s_cmp_eq_u32', sPEND, 0); A('s_cbranch_scc1', sk)
            A('s_waitcnt', 'vmcnt(0)')
            publish(A, sU)
            flag_min(A, sPROG, lanes=nl)
            A('s_mov_b32', sPEND, 0)
            A.label(sk)
            sk = A.newlabel(P + 'nopf')
            A('s_add_u32', sT2, sU, 1); A('s_cmp_gt_u32', sPROG, sT2); A('s_cbranch_scc0', sk)
            dma_in()
            A('s_mov_b32', sNX, 1)
            A.label(sk)
    flag_load(A)
    for T in range(2):
        ac = ACC + 16 * T
        for i in range(2):
            st = STG + 8 * T + 4 * i
            if kind == 'qk':
                for c in range(4): A('v_cvt_pk_bf16_f32', v(st + c), v(ac + 4 * i + c), v(ac + 8 + 4 * i + c))
                off = T * 1024 + i * 512
            elif kind == 'v':
                for hh in range(2):
                    for c in range(2): A('v_cvt_pk_bf16_f32', v(st + 2 * hh + c), v(ac + 8 * hh + 4 * i + 2 * c), v(ac + 8 * hh + 4 * i + 2 * c + 1))
                off = T * 2048 + i * 512
            else:
                for c in range(4):
                    A('v_cvt_pk_bf16_f32', v(st + c), v(ac + 8 * i + 2 * c), v(ac + 8 * i + 2 * c + 1))
                    A('v_pk_max_i16', v(st + c), v(st + c), 0)
                off = T * 2048 + i * 1024
            A('buffer_store_dwordx4', v(st, 4), v(SA), WS, sOUT_, mods=f'offen offset:{off} sc1')
    A('s_add_u32', sOUT_, sOUT_, ostep)
    A('s_add_u32', sU, sU, 1); A('s_mov_b32', sPEND, 1)
    A('s_cmp_lg_u32', sNX, 0); A('s_cbranch_scc1', P + 'top')
    A('s_waitcnt', 'vmcnt(0)')
    publish(A, sU); flag_min(A, sPROG, lanes=nl); A('s_mov_b32', sPEND, 0)
    A('s_cmp_lt_u32', sU, NU); A('s_cbranch_scc1', P + 'fetch')
    A('s_endpgm')

def emit_gemm2(A, kind, ready):
    P = f'G2{kind}_'
    A.label(P + 'entry'); A.reset_counts()
    nk = 32 if kind == 'op' else 27
    RING, ACC, RT = 64, 192, 224
    LW, LR, RES, SA = 32, 33, 36, 34
    wreg = lambda n, T: 256 + (2 * n + T) * 4
    if kind == 'op':
        common_setup(A, 1); nl = 1
        A('s_cmp_ge_u32', sI, 10); A('s_cselect_b32', sB, 1, 0)
        A('s_mul_i32', sT1, sB, 10); A('s_sub_u32', sC_, sI, sT1)
        A('s_lshl_b32', sT1, sB, 2); A('s_add_u32', sT1, sT1, sW)
        A('s_mul_i32', sA, sT1, 4 * 163840); A('s_lshl_b32', sT2, sC_, 7); A('s_add_u32', sA, sA, sT2)
        A('s_mul_i32', sIN, sL, LAYER_F); A('s_lshl_b32', sT2, sT1, 15); A('s_add_u32', sIN, sIN, sT2); A('s_add_u32', sIN, sIN, OF)
        A('s_mul_i32', sFI, sL, FL_LAYER); A('s_lshl_b32', sT2, sT1, 7); A('s_add_u32', sFI, sFI, sT2); A('s_add_u32', sFI, sFI, FL_ATT)
        soffs = [[(128 * (n >> 3) + 32 * ((n & 7) >> 1) + 8 * (n & 1) + 4 * b) * 1280 for b in range(2)] for n in range(32)]
        load_weights(A, SO, 1280, 16, sA, [tuple(x) for x in soffs], wreg, True)
        istep = 32 * 8192
        A('s_mul_i32', sOUT_, sL, LAYER_OP); A('s_mul_i32', sT2, sB, UP); A('s_add_u32', sOUT_, sOUT_, sT2)
        A('s_lshl_b32', sT2, sC_, 13); A('s_add_u32', sOUT_, sOUT_, sT2); A('s_lshl_b32', sT2, sW, 11); A('s_add_u32', sOUT_, sOUT_, sT2)
        A('s_add_u32', sOUT_, sOUT_, OPART)
        A('v_and_b32', v(TM), 512, v(L16)); A('v_add_u32', v(SA), v(TM), v(L16))
        flag_out_addr(A, FL_OP); ostep = 2 * UP
    else:
        common_setup(A, 7); nl = 7
        A('s_mul_i32', sA, sW, 27 * 16 * 1280); A('s_lshl_b32', sT2, sI, 7); A('s_add_u32', sA, sA, sT2)
        A('s_mul_i32', sIN, sL, LAYER_H); A('s_mul_i32', sT2, sW, 27 * 1024); A('s_add_u32', sIN, sIN, sT2); A('s_add_u32', sIN, sIN, HF)
        A('s_mul_i32', sFI, sL, FL_LAYER); A('s_add_u32', sFI, sFI, FL_F1)
        load_weights(A, SW2, 1280, 8, sA, [((16 * n) * 1280, (16 * n + 4) * 1280) for n in range(27)], wreg, True)
        istep = UH
        A('s_lshl_b32', sT2, sI, 12); A('s_lshl_b32', sT3, sW, 10); A('s_add_u32', sT2, sT2, sT3)
        A('s_mul_i32', sB, sL, LAYER_X); A('s_add_u32', sB, sB, sT2); A('s_add_u32', sB, sB, X1)
        A('s_add_u32', sOUT_, sT2, XRES + LAYER_X)
        A('s_lshl_b32', sT2, sI, 7); A('s_lshl_b32', sT3, sW, 5); A('s_add_u32', sC_, sT2, sT3)
        A('v_and_b32', v(TM), 31, v(LN_)); A('v_mul_u32_u24', v(TM), 1280, v(TM)); A('v_lshrrev_b32', v(TM + 1), 5, v(LN_)); A('v_lshl_add_u32', v(SA), v(TM + 1), 4, v(TM))
        flag_out_addr(A, FL_F2); ostep = UX
    A('s_lshl_b32', sT2, sW, 11); A('v_add_u32', v(LW), sT2, v(L16))
    A('s_lshl_b32', sT2, sW, 13); A('v_add_u32', v(LR), sT2, v(L16))
    ready(A)
    A('s_barrier')
    def ld(k, base):
        if k % 4 == 0: A('s_add_u32', sT3, base, k * 1024)
        A('buffer_load_dwordx4', v(RING + 4 * k, 4), v(L16), WS, sT3, mods=f'offen offset:{(k%4)*1024} sc1'); A.vm.pop()
    A.label(P + 'fetch')
    poll(A, P + 'p', sU, lanes=nl)
    for k in range(nk): ld(k, sIN)
    A.label(P + 'top')
    A.reset_counts()
    K0 = 10
    issued = 0
    for k in range(nk):
        A('s_waitcnt', f'vmcnt({nk-1-k+issued})')
        x = v(RING + 4 * k, 4)
        for T in range(2):
            acc = v(ACC + 16 * T, 16)
            A('v_mfma_f32_32x32x16_bf16', acc, R(wreg(k, T), 4), x, '0' if k == 0 else acc)
        if k == K0:
            sk = A.newlabel(P + 'nop')
            A('s_cmp_eq_u32', sPEND, 0); A('s_cbranch_scc1', sk)
            A('s_waitcnt', 'vmcnt(0)')
            publish(A, sU)
            flag_min(A, sPROG, lanes=nl)
            A('s_mov_b32', sPEND, 0)
            A.label(sk)
            A('s_add_u32', sT2, sU, 1); A('s_cmp_gt_u32', sPROG, sT2); A('s_cselect_b32', sNX, 1, 0)
            A('s_add_u32', sT2, sIN, istep); A('s_cmp_lg_u32', sNX, 0); A('s_cselect_b32', sD, sT2, sIN)
            A('s_mov_b32', sIN, sT2)
            if kind == 'f2':
                A('buffer_load_dwordx4', v(RES, 4), v(L16), WS, sB, mods='offen sc1'); A.vm.pop(); issued += 1
                A('s_add_u32', sB, sB, UX)
            nl_issued = 0
        if k >= K0:
            for _ in range(2):
                if nl_issued <= k:
                    ld(nl_issued, sD); nl_issued += 1; issued += 1
    assert nl_issued == nk
    flag_load(A); A.vm.pop()
    for q in range(4):
        sk = A.newlabel(P + 'own')
        A('s_cmp_eq_u32', sW, q); A('s_cbranch_scc1', sk)
        A('ds_write_b128', v(LW), v(ACC + 8 * q, 4), mods=f'offset:{q*8192}'); A('ds_write_b128', v(LW), v(ACC + 8 * q + 4, 4), mods=f'offset:{q*8192+1024}')
        A('s_branch', sk + 'e')
        A.label(sk)
        for i in range(0, 8, 2): A('v_mov_b64', v(RT + 24 + i, 2), v(ACC + 8 * q + i, 2))
        A.label(sk + 'e')
    A('s_waitcnt', 'lgkmcnt(0)'); A('s_barrier')
    A('s_lshl_b32', sT2, sW, 11)
    for j in range(1, 4):
        A('s_xor_b32', sT3, sT2, j * 2048); A('v_add_u32', v(TM + j), sT3, v(LR))
        A('ds_read_b128', v(RT + 8 * (j - 1), 4), v(TM + j)); A('ds_read_b128', v(RT + 8 * (j - 1) + 4, 4), v(TM + j), mods='offset:1024')
    A('v_xor_b32', v(LW), 32768, v(LW)); A('v_xor_b32', v(LR), 32768, v(LR))
    A('s_waitcnt', 'lgkmcnt(0)')
    O = RT + 24
    for i in range(8):
        A('v_add_f32', v(RT + i), v(RT + i), v(RT + 8 + i)); A('v_add_f32', v(O + i), v(O + i), v(RT + 16 + i))
    for i in range(8): A('v_add_f32', v(O + i), v(O + i), v(RT + i))
    if kind == 'op':
        A('buffer_store_dwordx4', v(O, 4), v(SA), WS, sOUT_, mods='offen sc1'); A('buffer_store_dwordx4', v(O + 4, 4), v(SA), WS, sOUT_, mods='offen offset:512 sc1')
    else:
        A('s_waitcnt', f'vmcnt({nk+1})')
        for i in range(4):
            A('v_cvt_pk_bf16_f32', v(RT + i), v(O + 2 * i), v(O + 2 * i + 1))
            A('v_lshlrev_b32', v(O + 2 * i), 16, v(RT + i)); A('v_and_b32', v(O + 2 * i + 1), '0xffff0000', v(RT + i))
            A('v_lshlrev_b32', v(RT + 8), 16, v(RES + i)); A('v_and_b32', v(RT + 9), '0xffff0000', v(RES + i))
            A('v_add_f32', v(O + 2 * i), v(O + 2 * i), v(RT + 8)); A('v_add_f32', v(O + 2 * i + 1), v(O + 2 * i + 1), v(RT + 9))
            A('v_cvt_pk_bf16_f32', v(RT + 4 + i), v(O + 2 * i), v(O + 2 * i + 1))
        l1 = A.newlabel(P + 'l1')
        A('s_cmp_lg_u32', sL, 0); A('s_cbranch_scc1', l1)
        A('buffer_store_dwordx4', v(RT + 4, 4), v(L16), WS, sOUT_, mods='offen sc1')
        A('s_branch', l1 + 'e')
        A.label(l1)
        A('buffer_store_dwordx4', v(RT + 4, 4), v(SA), SOUT, sC_, mods='offen')
        A('s_add_u32', sC_, sC_, 32 * 1280)
        A.label(l1 + 'e')
    A('s_add_u32', sOUT_, sOUT_, ostep)
    A('s_add_u32', sU, sU, 1); A('s_mov_b32', sPEND, 1)
    A('s_cmp_lg_u32', sNX, 0); A('s_cbranch_scc1', P + 'top')
    A('s_waitcnt', 'vmcnt(0)')
    publish(A, sU); flag_min(A, sPROG, lanes=nl); A('s_mov_b32', sPEND, 0)
    A('s_cmp_lt_u32', sU, NU); A('s_cbranch_scc1', P + 'fetch')
    A('s_endpgm')

def xlane_sum(A, r, t, rors):
    for sh in rors: A('v_add_f32_dpp', v(r), v(r), v(r), mods=f'row_ror:{sh} row_mask:0xf bank_mask:0xf')
    A('v_mov_b32', v(t), v(r)); A('v_permlane16_swap_b32', v(t), v(r)); A('v_add_f32', v(r), v(r), v(t))
    A('v_mov_b32', v(t), v(r)); A('v_permlane32_swap_b32', v(t), v(r)); A('v_add_f32', v(r), v(r), v(t))

def ln_core(A, X, n, F, OUTR, rors):
    a0, a1, tt = TM, TM + 2, TM + 4
    for i in range(n):
        A('v_lshlrev_b32', v(F + 2 * i), 16, v(X + i)); A('v_and_b32', v(F + 2 * i + 1), '0xffff0000', v(X + i))
    A('v_pk_add_f32', v(a0, 2), v(F, 2), v(F + 2, 2)); A('v_pk_add_f32', v(a1, 2), v(F + 4, 2), v(F + 6, 2))
    for i in range(4, n):
        r = a0 if i % 2 == 0 else a1
        A('v_pk_add_f32', v(r, 2), v(r, 2), v(F + 2 * i, 2))
    A('v_pk_add_f32', v(a0, 2), v(a0, 2), v(a1, 2)); A('v_add_f32', v(a0), v(a0), v(a0 + 1))
    xlane_sum(A, a0, tt, rors)
    A('v_mul_f32', v(a0), hex(f32bits(-1.0 / 640)), v(a0)); A('v_mov_b32', v(a0 + 1), v(a0))
    for i in range(n): A('v_pk_add_f32', v(F + 2 * i, 2), v(F + 2 * i, 2), v(a0, 2))
    A('v_pk_mul_f32', v(a0, 2), v(F, 2), v(F, 2)); A('v_pk_mul_f32', v(a1, 2), v(F + 2, 2), v(F + 2, 2))
    for i in range(2, n):
        r = a0 if i % 2 == 0 else a1
        A('v_pk_fma_f32', v(r, 2), v(F + 2 * i, 2), v(F + 2 * i, 2), v(r, 2))
    A('v_pk_add_f32', v(a0, 2), v(a0, 2), v(a1, 2)); A('v_add_f32', v(a0), v(a0), v(a0 + 1))
    xlane_sum(A, a0, tt, rors)
    A('v_mov_b32', v(a1), hex(f32bits(1e-5))); A('v_fmac_f32', v(a1), hex(f32bits(1.0 / 640)), v(a0))
    A('v_rsq_f32', v(a0), v(a1)); A('v_mov_b32', v(a0 + 1), v(a0))
    for i in range(n):
        A('v_pk_mul_f32', v(F + 2 * i, 2), v(F + 2 * i, 2), v(a0, 2))
        A('v_cvt_pk_bf16_f32', v(OUTR + i), v(F + 2 * i), v(F + 2 * i + 1))

def emit_ln(A, ready):
    P = 'LN_'
    A.label(P + 'entry'); A.reset_counts()
    X, F, O = 64, 112, 192
    VF, VR = 32, 33
    common_setup(A, 10)
    A('v_lshrrev_b32', v(TM), 3, v(LN_)); A('v_and_b32', v(TM + 1), 7, v(LN_))
    A('v_lshlrev_b32', v(TM + 2), 9, v(TM)); A('v_lshl_add_u32', v(VF), v(TM + 1), 4, v(TM + 2))
    A('v_mul_u32_u24', v(TM + 2), 1280, v(TM + 1)); A('v_lshl_add_u32', v(VR), v(TM), 4, v(TM + 2))
    A('s_mul_i32', sT2, sL, LAYER_X); A('s_lshl_b32', sT3, sW, 7); A('s_add_u32', sT2, sT2, sT3)
    A('s_add_u32', sIN, sT2, XRES); A('s_add_u32', sOUT_, sT2, XN)
    A('s_mul_i32', sA, sW, 8 * 1280)
    A('s_mov_b32', sFI, FL_F2)
    flag_out_addr(A, FL_XN)
    ready(A)
    A.label(P + 'top')
    A('s_cmp_lg_u32', sL, 0); A('s_cbranch_scc1', P + 'l1')
    for i in range(10): A('buffer_load_dwordx4', v(X + 4 * i, 4), v(VR), SX, sA, mods=f'offen offset:{128*i}')
    A('s_add_u32', sA, sA, 32 * 1280)
    A('s_waitcnt', 'vmcnt(0)')
    for i in range(10):
        A('s_add_u32', sT3, sIN, i * 4096)
        A('buffer_store_dwordx4', v(X + 4 * i, 4), v(VF), WS, sT3, mods='offen sc1')
    A('s_branch', P + 'go')
    A.label(P + 'l1')
    poll(A, P + 'p', sU, lanes=10)
    for i in range(10):
        A('s_add_u32', sT3, sIN, i * 4096)
        A('buffer_load_dwordx4', v(X + 4 * i, 4), v(VF), WS, sT3, mods='offen sc1')
    A('s_waitcnt', 'vmcnt(0)')
    A.label(P + 'go')
    ln_core(A, X, 40, F, O, [8])
    for i in range(10):
        A('s_add_u32', sT3, sOUT_, i * 4096)
        A('buffer_store_dwordx4', v(O + 4 * i, 4), v(VF), WS, sT3, mods='offen sc1')
    A('s_add_u32', sIN, sIN, UX); A('s_add_u32', sOUT_, sOUT_, UX); A('s_add_u32', sU, sU, 1)
    A('s_waitcnt', 'vmcnt(0)')
    publish(A, sU)
    A('s_cmp_lt_u32', sU, NU); A('s_cbranch_scc1', P + 'top')
    A('s_endpgm')

def emit_lna(A, ready):
    P = 'LNA_'
    A.label(P + 'entry'); A.reset_counts()
    X, P0, P1, O = 64, 96, 144, 192
    VF, VP = 32, 33
    common_setup(A, 20)
    A('v_lshrrev_b32', v(TM), 2, v(LN_)); A('v_and_b32', v(TM + 1), 3, v(LN_))
    A('v_lshlrev_b32', v(TM + 2), 9, v(TM)); A('v_lshl_add_u32', v(VF), v(TM + 1), 4, v(TM + 2))
    A('v_lshlrev_b32', v(TM + 2), 10, v(TM)); A('v_lshl_add_u32', v(VP), v(TM + 1), 4, v(TM + 2))
    A('s_lshl_b32', sT3, sI, 2); A('s_add_u32', sT3, sT3, sW); A('s_lshl_b32', sT3, sT3, 6)
    A('s_mul_i32', sT2, sL, LAYER_X); A('s_add_u32', sT2, sT2, sT3)
    A('s_add_u32', sIN, sT2, XRES); A('s_add_u32', sOUT_, sT2, XN1); A('s_add_u32', sB, sT2, X1)
    A('s_mul_i32', sA, sL, LAYER_OP); A('s_add_u32', sA, sA, sT3); A('s_add_u32', sA, sA, OPART)
    A('s_mul_i32', sFI, sL, FL_LAYER); A('s_add_u32', sFI, sFI, FL_OP)
    flag_out_addr(A, FL_LNA)
    ready(A)
    A.label(P + 'top')
    poll(A, P + 'p', sU, lanes=20)
    A.reset_counts()
    for i in range(5):
        A('s_add_u32', sT3, sA, i * 16384); A('s_add_u32', sT2, sA, i * 16384 + UP)
        for hf in range(2):
            A('buffer_load_dwordx4', v(P0 + 8 * i + 4 * hf, 4), v(VP), WS, sT3, mods=f'offen offset:{512*hf} sc1', tag=i)
            A('buffer_load_dwordx4', v(P1 + 8 * i + 4 * hf, 4), v(VP), WS, sT2, mods=f'offen offset:{512*hf} sc1', tag=i)
        A('s_add_u32', sT3, sIN, i * 8192)
        A('buffer_load_dwordx4', v(X + 4 * i, 4), v(VF), WS, sT3, mods='offen sc1', tag=i)
    for i in range(5):
        A.wait(vm=[i])
        for c in range(4):
            r = P0 + 8 * i + 2 * c; x = X + 4 * i + c
            A('v_pk_add_f32', v(r, 2), v(r, 2), v(P1 + 8 * i + 2 * c, 2))
            A('v_cvt_pk_bf16_f32', v(TM), v(r), v(r + 1))
            A('v_lshlrev_b32', v(r), 16, v(TM)); A('v_and_b32', v(r + 1), '0xffff0000', v(TM))
            A('v_lshlrev_b32', v(TM + 2), 16, v(x)); A('v_and_b32', v(TM + 3), '0xffff0000', v(x))
            A('v_pk_add_f32', v(r, 2), v(r, 2), v(TM + 2, 2))
            A('v_cvt_pk_bf16_f32', v(x), v(r), v(r + 1))
        A('s_add_u32', sT3, sB, i * 8192)
        A('buffer_store_dwordx4', v(X + 4 * i, 4), v(VF), WS, sT3, mods='offen sc1')
    ln_core(A, X, 20, P0, O, [4, 8])
    for i in range(5):
        A('s_add_u32', sT3, sOUT_, i * 8192)
        A('buffer_store_dwordx4', v(O + 4 * i, 4), v(VF), WS, sT3, mods='offen sc1')
    A('s_add_u32', sIN, sIN, UX); A('s_add_u32', sOUT_, sOUT_, UX); A('s_add_u32', sB, sB, UX); A('s_add_u32', sA, sA, 2 * UP)
    A('s_add_u32', sU, sU, 1)
    A('s_waitcnt', 'vmcnt(0)')
    publish(A, sU)
    A('s_cmp_lt_u32', sU, NU); A('s_cbranch_scc1', P + 'top')
    A('s_endpgm')

def emit_att(A, ready):
    P = 'ATT_'
    A.label(P + 'entry'); A.reset_counts()
    Q, K, V, KMR, VMR, S, PB, O = 64, 96, 128, 160, 176, 184, 208, 224
    FRK, L8, SA, NEG, ZR = 32, 33, 34, 35, 36
    sCH, sFC, sKMo, sSC = 's74', 's75', 's76', 's77'
    msk = ['s[80:81]', 's[82:83]', 's[84:85]', 's[86:87]']
    common_setup(A, 3)
    g, n = TM, TM + 1
    A('v_lshrrev_b32', v(g), 4, v(LN_)); A('v_and_b32', v(n), 15, v(LN_))
    A('v_and_b32', v(TM + 2), 13, v(n)); A('v_and_b32', v(TM + 3), 1, v(g)); A('v_lshl_or_b32', v(TM + 2), v(TM + 3), 1, v(TM + 2))
    A('v_lshlrev_b32', v(TM + 2), 4, v(TM + 2)); A('v_lshrrev_b32', v(TM + 3), 1, v(g)); A('v_lshl_add_u32', v(FRK), v(TM + 3), 8, v(TM + 2))
    A('v_lshlrev_b32', v(L8), 3, v(LN_))
    A('v_lshlrev_b32', v(TM + 2), 9, v(g)); A('v_lshl_add_u32', v(SA), v(n), 4, v(TM + 2))
    for r in range(4):
        A('v_lshl_add_u32', v(TM + 2), v(g), 2, r); A('v_cmp_le_u32', msk[r], v(TM + 2), v(n))
    A('v_mov_b32', v(NEG), hex(f32bits(-1e9 * 128 ** 0.5))); A('v_mov_b32', v(ZR), 0)
    A('s_lshl_b32', sT2, sI, 2); A('s_add_u32', sT2, sT2, sW)
    A('s_mul_i32', sT3, sL, LAYER_F); A('s_lshl_b32', sT1, sT2, 13); A('s_add_u32', sT3, sT3, sT1)
    A('s_add_u32', sIN, sT3, KF); A('s_add_u32', sOUT_, sT3, OF)
    A('s_mul_i32', sKMo, sL, LAYER_KM); A('s_lshl_b32', sT1, sT2, 12); A('s_add_u32', sKMo, sKMo, sT1); A('s_add_u32', sKMo, sKMo, KM)
    A('s_mul_i32', sT3, sL, FL_LAYER)
    A('s_lshr_b32', sT1, sT2, 1); A('s_mul_i32', sT1, sT1, 384); A('s_add_u32', sFI, sT3, sT1); A('s_and_b32', sT1, sT2, 1); A('s_lshl_b32', sT1, sT1, 3)
    A('s_add_u32', sFI, sFI, sT1); A('s_add_u32', sFI, sFI, FL_QKV)
    A('s_lshl_b32', sT1, sT2, 7); A('s_add_u32', sFC, sT3, sT1); A('s_add_u32', sFC, sFC, FL_CH)
    A('s_mov_b32', sCH, 0); A('s_mov_b32', sSC, hex(f32bits(128 ** -0.5 * 1.4426950408889634)))
    flag_out_addr(A, FL_ATT)
    ready(A)
    def ld8(reg, base, delta):
        for i in range(8):
            if i % 4 == 0: A('s_add_u32', sT3, base, delta + i * 1024)
            A('buffer_load_dwordx4', v(reg + 4 * i, 4), v(L16), WS, sT3, mods=f'offen offset:{(i%4)*1024} sc1')
    A.label(P + 'fetch')
    poll(A, P + 'p', sU, n=2, lanes=3)
    ld8(Q, sIN, QF - KF); ld8(K, sIN, 0); ld8(V, sIN, VT - KF)
    A.label(P + 'top')
    A('s_waitcnt', 'vmcnt(8)')
    A.reset_counts()
    sreg = {(0, 'm'): S, (0, 0): S + 4, (1, 'm'): S + 8, (1, 0): S + 12, (1, 1): S + 16}
    for kp in range(4):
        for qt, kt in ((0, 0), (1, 0), (1, 1)):
            r = v(sreg[(qt, kt)], 4)
            A('v_mfma_f32_16x16x32_bf16', r, v(K + 16 * kt + 4 * kp, 4), v(Q + 16 * qt + 4 * kp, 4), '0' if kp == 0 else r)
    poll(A, P + 'c', sU, prog=sCH, soff=sFC, voff=ZR, n=1, lanes=1)
    for kp in range(4): A('buffer_load_dwordx4', v(KMR + 4 * kp, 4), v(FRK), WS, sKMo, mods=f'offen offset:{1024*kp} sc1', tag=('km', kp))
    for w_ in range(4): A('buffer_load_dwordx2', v(VMR + 2 * w_, 2), v(L8), WS, sKMo, mods=f'offen offset:{1024*w_+512} sc1', tag='vm')
    flag_load(A, n=2)
    A('s_add_u32', sKMo, sKMo, 32 * 4096)
    for base in (sreg[(0, 0)], sreg[(1, 1)]):
        for r in range(4): A('v_cndmask_b32', v(base + r), v(NEG), v(base + r), msk[r])
    for kp in range(4):
        A.wait(vm=[('km', kp)])
        for qt in range(2):
            r = v(sreg[(qt, 'm')], 4)
            A('v_mfma_f32_16x16x32_bf16', r, v(KMR + 4 * kp, 4), v(Q + 16 * qt + 4 * kp, 4), '0' if kp == 0 else r)
    A.wait(vm=0)
    flag_min(A, sPROG, n=2, lanes=3)
    A('s_add_u32', sT2, sU, 1); A('s_cmp_gt_u32', sPROG, sT2); A('s_cselect_b32', sNX, 1, 0)
    A('s_add_u32', sT2, sIN, 32 * 8192); A('s_cmp_lg_u32', sNX, 0); A('s_cselect_b32', sD, sT2, sIN); A('s_mov_b32', sIN, sT2)
    ld8(Q, sD, QF - KF); ld8(K, sD, 0)
    for qt in range(2):
        m_ = sreg[(qt, 'm')]
        vals = [m_, m_ + 1] + [sreg[(qt, 0)] + i for i in range(4 + 4 * qt)]
        mx, tm, sm = TM, TM + 1, TM + 2 + qt
        A('v_max3_f32', v(mx), v(vals[0]), v(vals[1]), v(vals[2])); A('v_max3_f32', v(tm), v(vals[3]), v(vals[4]), v(vals[5]))
        if qt:
            A('v_max3_f32', v(mx), v(mx), v(vals[6]), v(vals[7])); A('v_max3_f32', v(tm), v(tm), v(vals[8]), v(vals[9]))
        A('v_max_f32', v(mx), v(mx), v(tm)); A('v_mov_b32', v(tm), v(mx))
        A('v_permlane32_swap_b32', v(tm), v(mx)); A('v_max_f32', v(mx), v(mx), v(tm)); A('v_mov_b32', v(tm), v(mx))
        A('v_permlane16_swap_b32', v(tm), v(mx)); A('v_max_f32', v(mx), v(mx), v(tm))
        A('v_mul_f32', v(mx), sSC, v(mx))
        for r in vals: A('v_fma_f32', v(r), v(r), sSC, '-' + v(mx))
        for r in vals: A('v_exp_f32', v(r), v(r))
        pb = PB + 8 * qt
        for i in range(2 + 2 * qt): A('v_cvt_pk_bf16_f32', v(pb + i), v(vals[2 + 2 * i]), v(vals[3 + 2 * i]))
        if qt == 0: A('v_mov_b64', v(pb + 2, 2), 0)
        A('v_cvt_pk_bf16_f32', v(pb + 4), v(m_), v(m_ + 1)); A('v_mov_b32', v(pb + 5), 0); A('v_mov_b32', v(pb + 6), 0); A('v_mov_b32', v(pb + 7), v(pb + 4))
        A('v_add_f32', v(sm), v(vals[0]), v(vals[1]))
        for r in vals[2:]: A('v_add_f32', v(sm), v(sm), v(r))
        xlane_sum(A, sm, tm, [])
        A('v_rcp_f32', v(sm), v(sm))
    for qt in range(2):
        pb = PB + 8 * qt; sm = TM + 2 + qt
        for et in range(8):
            A('v_mfma_f32_16x16x32_bf16', v(O + 4 * et, 4), v(V + 4 * et, 4), v(pb, 4), '0')
        for et in range(8):
            A('v_mfma_f32_16x16x16_bf16', v(O + 4 * et, 4), v(VMR + 2 * (et >> 1), 2), v(pb + 4 + 2 * (et & 1), 2), v(O + 4 * et, 4))
        for p in range(4):
            st = S + 4 * (p & 1) + 8 * qt if False else KMR + 4 * p
            for i in range(8): A('v_mul_f32', v(O + 8 * p + i), v(O + 8 * p + i), v(sm))
            for i in range(4): A('v_cvt_pk_bf16_f32', v(st + i), v(O + 8 * p + 2 * i), v(O + 8 * p + 2 * i + 1))
            if p % 2 == 0: A('s_add_u32', sT3, sOUT_, p * 2048)
            A('buffer_store_dwordx4', v(st, 4), v(SA), WS, sT3, mods=f'offen offset:{(p%2)*2048 + qt*256} sc1')
    ld8(V, sD, VT - KF)
    A('s_add_u32', sOUT_, sOUT_, 32 * 8192); A('s_add_u32', sU, sU, 1)
    A('s_waitcnt', 'vmcnt(8)')
    publish(A, sU)
    A('s_cmp_lg_u32', sNX, 0); A('s_cbranch_scc1', P + 'top')
    A('s_waitcnt', 'vmcnt(0)')
    A('s_cmp_lt_u32', sU, NU); A('s_cbranch_scc1', P + 'fetch')
    A('s_endpgm')
```

```python
from asmgen import *
from layout import *
import os, struct
def env(n, d=0): return int(os.environ.get(n, d))
X_NOADV, X_NOFLAG, X_NOPUB, X_NOPF = env('X_NOADV'), env('X_NOFLAG'), env('X_NOPUB'), env('X_NOPF')
RDELAY, GDELAY = env('RDELAY', 12), env('GDELAY', 0)
PUBAT = env('PUBAT', 14)
KVMOD = os.environ.get('KVMOD', 'sc1')

WS = 's[8:11]'; SQ = 's[12:15]'; SK = 's[16:19]'; SV = 's[20:23]'; SO = 's[24:27]'; SX = 's[28:31]'; SM0 = 's[32:35]'
SW1 = 's[36:39]'; SW2 = 's[40:43]'; SOUT = 's[44:47]'; SDBG = 's[48:51]'
sW, sH, sC, sS = 's52', 's53', 's54', 's55'
sMEMc, sMEMo, sPST, sPLD, sPLD1, sSTR, sVT, sKF, sKM, sTAG, sFLO, sPROG, sSPIN, sDEAD = ['s%d' % i for i in range(56, 70)]
sT0, sT1, sT2, sT3 = 's70', 's71', 's72', 's73'
sDMEM, sPST1, sPST2, sXX, sFIN, sSCALE = 's74', 's75', 's76', 's77', 's78', 's79'

L_MEM = 0; L_O = 10240; L_QB = 10240; L_KB = 12288; L_VM = 14336; L_KX = 16384; L_W = 24576
UNITS = [8, 8, 9, 9]
L_WBASE = [L_W + 4096 * sum(UNITS[:w]) for w in range(4)]
NSTR = [10, 10, 8, 9]
LANE16, IDX, RDEST, PST4, PST2, QKW, FR, LDSW = range(8)
AQK = 8; AV = 24; AW = 32; SL = [40, 48, 56, 64, 72]; RES0 = 80
SPIN_MAX = 1 << 16
STAMPS = ['top', 'b1', 0, 'b2', 'sc', 2, 3, 4, 'r1', 5, 'start']

def f32bits(x):
    return struct.unpack('<I', struct.pack('<f', x))[0]

def korder(w):
    o = []
    for j in range(4):
        p = w ^ j
        o += [2 * p, 2 * p + 1]
    return o + [8, 9]

sMODE = 's96'
def emit_chain_wave(A, w, ready, modes=('', 'sc1'), dbg=False, nsteps=64):
    L = lambda nm: f'CH{w}_{nm}'
    KO = korder(w)
    qk = []
    for j in range(10):
        fr = [('q', j, 0), ('q', j, 1), ('k', j, 0), ('k', j, 1)]
        if j == 3: fr = [('k', 3, 0), ('q', 3, 0), ('q', 3, 1), ('k', 3, 1)]
        qk += fr
    qslot = {0: 0, 1: 1, 2: 2, 3: 3, 4: 4, 13: 2, 14: 3, 22: 4, 23: 2, 30: 3, 31: 4, 32: 0, 33: 1, 38: 2, 39: 3}
    qfill = [(3, 1, 2, 13), (5, 1, 3, 14), (8, 1, 4, 22), (13, 1, 2, 23), (15, 1, 3, 30), (22, 1, 4, 31), (24, 1, 2, 38), (30, 1, 3, 39)]
    oo = []
    for p in range(5):
        oo += [('o', 0, 2 * p), ('o', 0, 2 * p + 1), ('o', 1, 2 * p), ('o', 1, 2 * p + 1)]
    oslot = {0: 2, 1: 3, 2: 4, 3: 0, 9: 1, 6: 2, 7: 3, 12: 2, 13: 3, 18: 2, 19: 3}
    streams = [qk[0], qk[1], qk[4], oo[2], oo[3], oo[9]]
    ldsf = [qk[2], qk[3], qk[13], qk[14], qk[22], qk[23], qk[30], qk[31], qk[38], qk[39], oo[6], oo[7], oo[12], oo[13], oo[18], oo[19]]
    if w < 3:
        streams += [qk[32], qk[33]]; qfill += [(4, 2, 0, 32), (7, 2, 1, 33)]
    else:
        ldsf += [qk[32], qk[33]]; streams += [qk[24]]; qslot[24] = 0
        qfill += [(4, 2, 0, 24), (25, 1, 0, 32), (18, 1, 1, 33)]
    if w == 2: ldsf += [oo[0], oo[1]]
    else: streams += [oo[0], oo[1]]
    assert len(streams) == NSTR[w] and len(ldsf) == 2 * UNITS[w]
    allf = qk + [('v', j, t) for j in range(10) for t in range(2)] + oo
    res = [f for f in allf if f not in streams and f not in ldsf]
    assert len(res) == (54 if w < 3 else 53), len(res)
    resreg = {f: (RES0 if w < 3 else RES0 + 8) + 8 * i for i, f in enumerate(res)}
    XR = RES0
    strm_idx = {f: i for i, f in enumerate(streams)}
    unit_of = lambda f: (f[0], f[1], f[2] >> 1)
    for i in range(0, len(ldsf), 2):
        assert unit_of(ldsf[i]) == unit_of(ldsf[i + 1]), (ldsf[i], ldsf[i + 1])
    lds_units = [unit_of(ldsf[i]) for i in range(0, len(ldsf), 2)]
    lds_off = {}
    for i, u in enumerate(lds_units):
        for t in range(2):
            lds_off[(u[0], u[1], 2 * u[2] + t)] = i * 4096 + t * 2048
    groups = [[0, 1], [2], [3], [4]][w]
    ng = len(groups)

    def half_fill(slot, f, hf):
        r = SL[slot] + 4 * hf
        tag = ('F', f)
        if f in lds_off:
            A('ds_read_b128', v(r, 4), v(LDSW), mods=f'offset:{lds_off[f] + 1024*hf}', tag=tag)
        else:
            i = strm_idx[f]
            if i >> 1:
                A('s_add_u32', sT3, sSTR, (i >> 1) * 4096); so = sT3
            else:
                so = sSTR
            A('buffer_load_dwordx4', v(r, 4), v(LANE16), WS, so, mods=f'offen offset:{(i&1)*2048 + 1024*hf}', tag=tag)
    def fill(slot, f):
        half_fill(slot, f, 0); half_fill(slot, f, 1)
    def smf(acc, areg, f, slot):
        if slot is None:
            b = R(resreg[f], 8)
        else:
            if f in lds_off: A.wait(lg=[('F', f)])
            else: A.wait(vm=[('F', f)])
            b = v(SL[slot], 8)
        A('v_smfmac_f32_16x16x64_bf16', v(acc, 4), v(areg, 4), b, v(IDX))
    def add2(d, a_, b_):
        A('v_add_f32', v(d), v(a_), v(b_)); A('v_add_f32', v(d + 1), v(a_ + 1), v(b_ + 1))

    A.label(L('entry'))
    A.reset_counts()
    T = [SL[0] + i for i in range(40)]
    ln = T[0]; g = T[1]; c = T[2]
    A('v_and_b32', v(ln), 63, 'v0')
    A('v_lshlrev_b32', v(LANE16), 4, v(ln))
    A('v_lshrrev_b32', v(g), 4, v(ln)); A('v_and_b32', v(c), 15, v(ln))
    A('v_and_b32', v(T[3]), 2, v(ln)); A('v_cmp_ne_u32', 'vcc', 0, v(T[3]))
    A('v_mov_b32', v(T[4]), '0x4444'); A('v_mov_b32', v(T[5]), '0xeeee'); A('v_cndmask_b32', v(IDX), v(T[4]), v(T[5]), 'vcc')
    A('v_and_b32', v(T[3]), 13, v(c)); A('v_and_b32', v(T[4]), 1, v(g)); A('v_lshl_or_b32', v(T[3]), v(T[4]), 1, v(T[3]))
    A('v_lshlrev_b32', v(T[3]), 4, v(T[3])); A('v_lshrrev_b32', v(T[4]), 1, v(g)); A('v_lshl_add_u32', v(FR), v(T[4]), 8, v(T[3]))
    A('v_lshrrev_b32', v(T[3]), 3, v(c)); A('v_lshlrev_b32', v(T[3]), 8, v(T[3]))
    A('v_lshl_add_u32', v(T[3]), v(g), 6, v(T[3]))
    A('v_bfe_u32', v(T[4]), v(c), 2, 1); A('v_lshl_add_u32', v(T[3]), v(T[4]), 5, v(T[3]))
    A('v_and_b32', v(T[4]), 3, v(c)); A('v_lshl_add_u32', v(T[3]), v(T[4]), 2, v(T[3]))
    A('v_add_u32', v(QKW), L_QB + w * 512, v(T[3]))
    A('v_add_u32', v(LDSW), L_WBASE[w], v(LANE16))
    A('s_mov_b32', sT0, PIECE)
    A('v_lshrrev_b32', v(T[3]), 2, v(c)); A('v_lshl_add_u32', v(T[3]), v(T[3]), 2, v(g)); A('v_mul_lo_u32', v(T[3]), v(T[3]), sT0)
    A('v_and_b32', v(T[4]), 3, v(c)); A('v_lshl_add_u32', v(PST4), v(T[4]), 4, v(T[3]))
    A('v_lshrrev_b32', v(T[3]), 3, v(c)); A('v_lshl_add_u32', v(T[3]), v(T[3]), 2, v(g)); A('v_mul_lo_u32', v(T[3]), v(T[3]), sT0)
    A('v_and_b32', v(T[4]), 7, v(c)); A('v_lshl_add_u32', v(PST2), v(T[4]), 3, v(T[3]))
    A('s_mul_i32', sT0, sH, 5); A('s_add_u32', sT0, sT0, groups[0])
    A('v_lshrrev_b32', v(T[3]), 3, v(c)); A('v_add_u32', v(T[3]), sT0, v(T[3]))
    A('v_lshrrev_b32', v(T[4]), 2, v(T[3]))
    A('v_mul_u32_u24', v(T[5]), 205, v(T[4])); A('v_lshrrev_b32', v(T[5]), 11, v(T[5]))
    A('v_mul_u32_u24', v(T[5]), 10, v(T[5])); A('v_sub_u32', v(T[5]), v(T[4]), v(T[5]))
    A('v_bfe_u32', v(T[6]), v(c), 2, 1); A('v_lshlrev_b32', v(T[6]), 5, v(T[6]))
    A('v_and_b32', v(T[7]), 1, v(c)); A('v_lshl_add_u32', v(T[6]), v(T[7]), 4, v(T[6]))
    A('v_bfe_u32', v(T[8]), v(c), 1, 1); A('v_lshl_add_u32', v(T[6]), v(T[8]), 3, v(T[6]))
    A('v_lshl_add_u32', v(T[6]), v(g), 1, v(T[6]))
    A('v_and_b32', v(T[9]), 3, v(c)); A('v_lshlrev_b32', v(T[9]), 4, v(T[9]))
    A('v_lshl_add_u32', v(T[9]), v(g), 2, v(T[9]))
    A('v_bfe_u32', v(T[8]), v(c), 2, 1); A('v_lshl_add_u32', v(T[9]), v(T[8]), 1, v(T[9]))
    A('v_cmp_lt_u32', 'vcc', 7, v(T[5])); A('v_cndmask_b32', v(T[6]), v(T[6]), v(T[9]), 'vcc')
    A('v_lshl_add_u32', v(RDEST), v(T[3]), 6, v(T[6]))
    if ng == 1:
        A('v_mov_b32', v(T[6]), '0x40000000'); A('v_cmp_lt_u32', 'vcc', 7, v(c)); A('v_cndmask_b32', v(RDEST), v(RDEST), v(T[6]), 'vcc')
    if w == 3:
        A('v_lshlrev_b32', v(XR + 3), 7, v(ln))
        A('v_mov_b64', v(XR + 6, 2), 0)
    A('s_mul_i32', sT0, sC, 2 * MEMB_SZ); A('s_add_u32', sMEMc, sT0, MEMB); A('s_add_u32', sMEMo, sMEMc, MEMB_SZ)
    A('s_xor_b32', sDMEM, sMEMc, sMEMo)
    A('s_mul_i32', sT0, sC, PART_SZ); A('s_add_u32', sT0, sT0, PART)
    A('s_lshl_b32', sT1, sH, 6); A('s_add_u32', sPST, sT0, sT1); A('s_add_u32', sPST, sPST, 40 * w * PIECE)
    A('s_add_u32', sPST1, sPST, 16 * PIECE); A('s_add_u32', sPST2, sPST, 32 * PIECE)
    A('s_mul_i32', sT1, sH, 5 * PIECE); A('s_add_u32', sPLD, sT1, sT0); A('s_add_u32', sPLD, sPLD, groups[0] * PIECE)
    A('s_add_u32', sPLD1, sPLD, PIECE)
    A('s_mov_b32', sTAG, 0)
    A('s_lshl_b32', sT0, sC, 5); A('s_add_u32', sT0, sT0, sH)
    A('s_mul_i32', sSTR, sT0, STRM_H); A('s_add_u32', sSTR, sSTR, STRM + 2048 * sum(NSTR[:w]))
    A('s_mul_i32', sT0, sC, LAYER_F); A('s_lshl_b32', sT1, sH, 13); A('s_add_u32', sT0, sT0, sT1)
    A('s_add_u32', sVT, sT0, VT + w * 2048); A('s_add_u32', sKF, sT0, KF + w * 2048)
    A('s_mul_i32', sT0, sC, LAYER_KM); A('s_lshl_b32', sT1, sH, 12); A('s_add_u32', sT0, sT0, sT1); A('s_add_u32', sKM, sT0, KM + 1024 * w - 32 * 4096)
    A('s_mul_i32', sT0, sC, FL_LAYER); A('s_lshr_b32', sT1, sH, 1); A('s_mul_i32', sT1, sT1, 3 * 128); A('s_add_u32', sFIN, sT0, sT1); A('s_add_u32', sFIN, sFIN, FL_QKV + 128)
    A('s_and_b32', sT1, sH, 1); A('s_lshl_b32', sT1, sT1, 3); A('s_add_u32', sFIN, sFIN, sT1)
    A('s_lshl_b32', sT1, sH, 7); A('s_add_u32', sFLO, sT0, sT1); A('s_add_u32', sFLO, sFLO, FL_CH)
    A('s_mov_b32', sS, 0); A('s_mov_b32', sPROG, 0); A('s_mov_b32', sDEAD, 0)
    A('s_mov_b32', sSCALE, hex(f32bits(128 ** -0.5 * 1.4426950408889634)))

    SRCQ, SRCO1, SRCO2, TRN, TRO1, TRO2 = AW, AW + 1, AW + 2, AW + 3, AW + 4, AW + 5
    r16 = T[3]; ch = T[4]
    A('v_lshrrev_b32', v(r16), 2, v(ln)); A('v_and_b32', v(ch), 3, v(ln))
    A('v_bfe_u32', v(T[5]), v(r16), 1, 1); A('v_lshlrev_b32', v(T[5]), 3, v(T[5]))
    A('v_bfe_u32', v(T[6]), v(r16), 2, 2); A('v_lshl_add_u32', v(T[5]), v(T[6]), 1, v(T[5]))
    A('v_and_b32', v(T[6]), 1, v(r16)); A('v_add_u32', v(T[5]), v(T[5]), v(T[6]))
    A('v_lshlrev_b32', v(T[5]), 13, v(T[5]))
    A('v_bfe_u32', v(T[6]), v(r16), 3, 1); A('v_lshlrev_b32', v(T[6]), 1, v(T[6])); A('v_xor_b32', v(T[6]), v(ch), v(T[6]))
    A('v_lshl_add_u32', v(T[5]), v(T[6]), 4, v(T[5]))
    A('s_lshl_b32', sT0, sH, 8); A('s_add_u32', sT0, sT0, w * 64); A('v_add_u32', v(SRCQ), sT0, v(T[5]))
    A('v_bfe_u32', v(T[5]), v(r16), 3, 1); A('v_lshlrev_b32', v(T[5]), 4, v(T[5]))
    A('v_bfe_u32', v(T[6]), v(r16), 1, 1); A('v_lshl_add_u32', v(T[5]), v(T[6]), 2, v(T[5]))
    A('v_bfe_u32', v(T[6]), v(r16), 2, 1); A('v_lshl_add_u32', v(T[5]), v(T[6]), 1, v(T[5]))
    A('v_and_b32', v(T[6]), 1, v(r16)); A('v_add_u32', v(T[5]), v(T[5]), v(T[6]))
    A('v_mul_u32_u24', v(T[5]), 1280, v(T[5]))
    A('s_mul_i32', sT0, sH, 163840); A('s_add_u32', sT0, sT0, w * 320); A('v_add_u32', v(T[5]), sT0, v(T[5]))
    A('v_lshl_add_u32', v(SRCO1), v(ch), 5, v(T[5]))
    A('v_lshl_add_u32', v(SRCO2), v(ch), 4, v(T[5]))
    A('v_bfe_u32', v(T[5]), v(ln), 2, 2); A('v_lshl_add_u32', v(T[5]), v(g), 3, v(T[5])); A('v_lshlrev_b32', v(T[5]), 6, v(T[5]))
    A('v_add_u32', v(T[5]), L_WBASE[w], v(T[5]))
    A('v_and_b32', v(T[6]), 1, v(g)); A('v_lshl_add_u32', v(T[6]), v(T[6]), 5, v(T[5])); A('v_lshl_add_u32', v(TRN), v(ch), 3, v(T[6]))
    A('v_xor_b32', v(TRN + 3), 32, v(TRN))
    A('v_lshl_add_u32', v(TRO1), v(ch), 4, v(T[5]))
    A('v_lshrrev_b32', v(T[6]), 1, v(ch)); A('v_lshl_add_u32', v(T[6]), v(T[6]), 5, v(T[5]))
    A('v_and_b32', v(T[7]), 1, v(ch)); A('v_lshl_add_u32', v(TRO2), v(T[7]), 3, v(T[6]))
    units = []
    for X in 'qkv':
        for j in range(10): units.append((X, j, 0))
    for kp in range(2):
        for p in range(5): units.append(('o', kp, p))
    first = [u for u in units if u not in lds_units]
    order = first + lds_units
    npos = len(lds_units)
    pos = {}
    for i, u in enumerate(first): pos[u] = (i - len(first)) % npos
    for i, u in enumerate(lds_units): pos[u] = i
    def dma(u):
        X, j, p = u
        for i in range(4):
            A('s_mov_b32', 'm0', L_WBASE[w] + pos[u] * 4096 + i * 1024)
            if X == 'o':
                off = (64 * j + 32 * (i >> 1) + 8 * (i & 1)) * 1280 + ((128 * (p >> 1) + 16 * (p & 1)) if p < 4 else 256)
                A('s_mov_b32', sT0, off)
                A('buffer_load_dwordx4', v(SRCO1 if p < 4 else SRCO2), SO, sT0, mods='offen lds', tag=('U', u))
            else:
                A('s_mov_b32', sT0, (64 * KO[j] + 16 * i) * 8192)
                A('buffer_load_dwordx4', v(SRCQ), {'q': SQ, 'k': SK, 'v': SV}[X], sT0, mods='offen lds', tag=('U', u))
    def consume(u, n):
        X, j, p = u
        A.wait(vm=[('U', u)])
        dst = []
        for t in range(2):
            f = (X, j, 2 * p + t)
            d = resreg[f] if f in resreg else SL[(n & 1) * 2 + t]
            dst.append((f, d))
            if X != 'o': ad, o = (TRN if t == 0 else TRN + 3), 0
            elif p < 4: ad, o = TRO1, 8 * t
            else: ad, o = TRO2, 16 * t
            for q4, ro in enumerate((0, 256, 2048, 2304)):
                A('ds_read_b64_tr_b16', R(d + 2 * q4, 2), v(ad), mods=f'offset:{pos[u]*4096 + ro + o}', tag=('T', u))
        A.wait(lg=0)
        for f, d in dst:
            if f in lds_off:
                A('ds_write_b128', v(LDSW), v(d, 4), mods=f'offset:{lds_off[f]}')
                A('ds_write_b128', v(LDSW), v(d + 4, 4), mods=f'offset:{lds_off[f]+1024}')
            elif f in strm_idx:
                i = strm_idx[f]
                A('s_add_u32', sT1, sSTR, (i >> 1) * 4096)
                A('buffer_store_dwordx4', v(d, 4), v(LANE16), WS, sT1, mods=f'offen offset:{(i&1)*2048}', tag='ST')
                A('buffer_store_dwordx4', v(d + 4, 4), v(LANE16), WS, sT1, mods=f'offen offset:{(i&1)*2048+1024}', tag='ST')
    depth = npos
    for u in order[:depth]: dma(u)
    for n, u in enumerate(order):
        consume(u, n)
        if n + depth < len(order): dma(order[n + depth])
    A.wait(vm=0, lg=0)
    ready(A)
    if len(modes) > 1:
        A('s_cmp_lg_u32', sMODE, 0); A('s_cbranch_scc1', f'CHS{w}_start')
    for sc in modes:
        L = lambda nm: f'CH{"S" if sc else "F"}{w}_{nm}'
        A.label(L('start')); A.reset_counts()

        for n in range(5): fill(qslot[n], qk[n])
        def mem0_addr(dst, lanereg, t1, t2):
            A('v_bfe_u32', v(t1), v(lanereg), 2, 2); A('v_lshlrev_b32', v(t1), 1, v(t1))
            A('v_and_b32', v(t2), 1, v(lanereg)); A('v_add_u32', v(t1), v(t1), v(t2)); A('v_mul_u32_u24', v(t1), 1280, v(t1))
            A('v_lshrrev_b32', v(t2), 4, v(lanereg)); A('v_lshl_add_u32', v(t1), v(t2), 5, v(t1))
            A('v_bfe_u32', v(t2), v(lanereg), 1, 1); A('v_lshl_add_u32', v(dst), v(t2), 4, v(t1))
        A('v_lshrrev_b32', v(AQK), 4, v(LANE16))
        mem0_addr(AQK + 1, AQK, AQK + 2, AQK + 3)
        A('buffer_load_dwordx4', v(AW, 4), v(AQK + 1), SM0, 0, mods=f'offen offset:{128*KO[0]}')
        A('buffer_load_dwordx4', v(AW + 4, 4), v(AQK + 1), SM0, 0, mods=f'offen offset:{128*KO[1]}')
        A('v_lshrrev_b32', v(AQK + 4), 1, v(AQK)); A('v_add_u32', v(AQK + 4), 32 * (w & 1), v(AQK + 4))
        mem0_addr(AQK + 1, AQK + 4, AQK + 2, AQK + 3)
        A('v_and_b32', v(AQK + 2), 1, v(AQK)); A('v_lshl_add_u32', v(AQK + 1), v(AQK + 2), 3, v(AQK + 1))
        A('buffer_load_dwordx2', v(AV + 4, 2), v(AQK + 1), SM0, 0, mods=f'offen offset:{128*(8+(w>>1))}')
        A('v_lshrrev_b32', v(AV + 6), 1, v(LANE16))
        A.wait(vm=0, lg=0)
        for i in range(0, 16, 2): A('v_mov_b64', v(AQK + i, 2), 0)
        def stamp(i):
            if not dbg or i not in STAMPS: return
            A('s_memtime', s(80 + 2 * STAMPS.index(i), 2))
        def pub_read(reg, tmp):
            A('v_and_b32', v(tmp), 512, v(LANE16)); A('v_mul_u32_u24', v(tmp), (L_VM - L_KB - 512) // 512, v(tmp)); A('v_add_u32', v(tmp), v(tmp), v(LANE16))
            A('ds_read_b128', v(reg, 4), v(tmp), mods=f'offset:{L_KB + 512*w}', tag='pk')
        def w3in():
            A('v_min_u32', v(XR + 2), v(XR + 6), v(XR + 7)); A('v_readlane_b32', sT0, v(XR + 2), 0); A('v_readlane_b32', sT3, v(XR + 2), 1)
            A('s_min_u32', sT0, sT0, sT3); A('s_max_u32', sPROG, sPROG, sT0)
            ok = A.newlabel(L('inok')); lp = A.newlabel(L('inlp'))
            A('s_cmp_gt_u32', sPROG, sS); A('s_cbranch_scc1', ok)
            A('s_mov_b32', sSPIN, 0)
            A.label(lp)
            A('s_mov_b64', 'exec', 3)
            A('buffer_load_dwordx2', v(XR + 6, 2), v(XR + 3), WS, sFIN, mods='offen sc1'); A.vm.pop()
            A('s_mov_b64', 'exec', -1)
            A('s_waitcnt', 'vmcnt(0)')
            A('v_min_u32', v(XR + 2), v(XR + 6), v(XR + 7)); A('v_readlane_b32', sT0, v(XR + 2), 0); A('v_readlane_b32', sT3, v(XR + 2), 1)
            A('s_min_u32', sPROG, sT0, sT3)
            A('s_cmp_gt_u32', sPROG, sS); A('s_cbranch_scc1', ok)
            A('s_cmp_lg_u32', sDEAD, 0); A('s_cbranch_scc1', ok)
            A('s_sleep', 2)
            A('s_add_u32', sSPIN, sSPIN, 1); A('s_cmp_lt_u32', sSPIN, SPIN_MAX); A('s_cbranch_scc1', lp)
            A('s_mov_b32', sDEAD, 1)
            A.label(ok)
        if w == 3: w3in()
        A('s_mov_b32', sSPIN, 32); A('s_mov_b32', sDEAD, 1)
        A('s_branch', L('loop'))
        A.label(L('gload'))
        A('buffer_load_dwordx4', v(AW, 4), v(LANE16), WS, sT2, mods='offen sc1')
        A('buffer_load_dwordx4', v(AW + 4, 4), v(LANE16), WS, sT2, mods='offen offset:1024 sc1')
        A('buffer_load_dwordx2', v(AV + 4, 2), v(AV + 6), WS, sT1, mods='offen sc1')
        A('s_waitcnt', 'vmcnt(0) lgkmcnt(0)')
        A.label(L('loop'))
        A.reset_counts()
        stamp('top')
        accq = {('q', 0): AQK, ('q', 1): AQK + 4, ('k', 0): AQK + 8, ('k', 1): AQK + 12}
        awin = [AW, AW + 4, AV + 4, AW, AW + 4, AV, AV + 4, AV, AW, AW + 4]
        aat = {3: 3, 4: 7, 5: PUBAT + 1, 6: 11, 7: 23, 8: 15, 9: 19}
        def aread(j, reg, tag):
            A('ds_read_b128', v(reg, 4), v(LANE16), mods=f'offset:{L_MEM + 1024*KO[j]}', tag=tag)
        kfr = {}
        def kread(tk, reg):
            t, kp = tk
            kfr[tk] = reg
            if t == 0: A('ds_read_b128', v(reg, 4), v(FR), mods=f'offset:{L_KB + 512*kp}', tag=('K', tk))
            else: A('ds_read_b128', v(reg, 4), v(LANE16), mods=f'offset:{L_KX + ((t-1)*4+kp)*1024}', tag=('K', tk))
        gregs = [AW + i for i in range(8)] + [AV + 4, AV + 5]
        A('ds_write_b128', v(LANE16), v(AW, 4), mods=f'offset:{L_MEM + 1024*KO[0]}', tag='mw')
        A('ds_write_b128', v(LANE16), v(AW + 4, 4), mods=f'offset:{L_MEM + 1024*KO[1]}', tag='mw')
        A('ds_write_b64', v(AV + 6), v(AV + 4, 2), mods=f'offset:{L_MEM + 8192 + 512*w}', tag='mw')
        A('v_pk_max_u16', v(AV + 7), v(gregs[0]), v(gregs[1]))
        for i in range(2, 10): A('v_pk_max_u16', v(AV + 7), v(AV + 7), v(gregs[i]))
        emit_check(A, AV + 7, AQK + 12, gregs, L('gload'), L('gok'))
        NPRE = env('NPRE', 2)
        for n in range(NPRE):
            smf(accq[(qk[n][0], qk[n][2])], awin[0], qk[n], qslot.get(n))
        side = {}
        def at(n, fn): side.setdefault(n, []).append(fn)
        for n0, st, s2, fi in qfill:
            at(n0, lambda s2=s2, fi=fi: half_fill(s2, qk[fi], 0)); at(n0 + st, lambda s2=s2, fi=fi: half_fill(s2, qk[fi], 1))
        at(5, lambda: (A('s_cmp_eq_u32', sS, 0), A('s_cselect_b32', sDEAD, 0, sDEAD)))
        if dbg:
            def st8():
                sk = A.newlabel(L('st8'))
                A('s_cmp_lg_u32', sS, 8); A('s_cbranch_scc1', sk); A('s_mov_b32', 's100', 's80'); A.label(sk)
            at(20, st8)
        for i, (tk, reg) in enumerate([((1, 0), SL[4]), ((2, 0), SL[4] + 4), ((1, 1), SL[0]), ((2, 1), SL[0] + 4), ((1, 2), SL[1]), ((2, 2), SL[1] + 4)]):
            at(32 + i, lambda tk=tk, reg=reg: kread(tk, reg))
        def kdma(i):
            if i == 0: A('s_mov_b32', 'm0', L_KX + w * 2048)
            A('buffer_load_dwordx4', v(LANE16), WS, sKF, mods=f'offen offset:{i*1024} {KVMOD} lds', tag='kx')
            if i == 1 and not X_NOADV: A('s_add_u32', sKF, sKF, 32 * 8192)
        at(NPRE, lambda: kdma(0)); at(NPRE + 1, lambda: kdma(1))
        if w == 3:
            def slow():
                A('s_add_u32', sT0, sS, 1); A('s_cmp_gt_u32', sPROG, sT0)
                A('s_cselect_b32', sT0, 0, (0 if X_NOADV else 32 * 8192)); A('s_sub_u32', sT0, sKF, sT0); A('s_sub_u32', sT0, sT0, 3 * 2048)
                if not X_NOPF:
                    A('buffer_load_dword', v(XR), v(XR + 3), WS, sT0, mods='offen sc1')
                    A('s_add_u32', sT0, sT0, VT - KF)
                    A('buffer_load_dword', v(XR + 1), v(XR + 3), WS, sT0, mods='offen sc1')
            def flagout():
                A('s_max_u32', sT0, sS, 1); A('s_sub_u32', sT0, sT0, 1); A('v_mov_b32', v(XR + 4), sT0)
                A('s_mov_b64', 'exec', 3)
                if not X_NOFLAG: A('buffer_load_dwordx2', v(XR + 6, 2), v(XR + 3), WS, sFIN, mods='offen sc1')
                if not X_NOPUB and not env('X_NOFO'):
                    A('buffer_store_dword', v(XR + 4), 'off', WS, sFLO, mods='sc1')
                A('s_mov_b64', 'exec', -1)
            at(PUBAT + 1, slow); at(PUBAT + 2, flagout)
        at(28, lambda: A.wait(vm=['kx']))
        at(29, lambda: A('s_barrier'))
        def pub2():
            if not X_NOPUB and not env('X_NOKM'): A('buffer_store_dwordx4', v(AV, 4), v(LANE16), WS, sKM, mods='offen ' + os.environ.get('PUBMOD', 'sc1'))
            if not env('X_KMSAME'): A('s_add_u32', sKM, sKM, 32 * 4096)
        at(PUBAT, pub2)
        at(28, lambda: A('v_mov_b64', v(AV + 4, 2), 0)); at(29, lambda: A('v_mov_b64', v(AV + 6, 2), 0))
        at(35, lambda: A('v_mov_b64', v(AV, 2), 0)); at(36, lambda: A('v_mov_b64', v(AV + 2, 2), 0))
        A.wait(lg=['mw']); A('s_barrier'); stamp('b1')
        aread(2, awin[2], ('A', 2))
        for n in range(NPRE, 40):
            f = qk[n]; j = n >> 2
            if (n & 3) == 0 and j >= 2: A.wait(lg=[('A', j)])
            smf(accq[(f[0], f[2])], awin[j], f, qslot.get(n))
            for j2, n2 in aat.items():
                if n2 == n: aread(j2, awin[j2], ('A', j2))
            for fn in side.get(n, []): fn()
        vj = [9, 8, 0, 1, 2, 3, 4, 5, 6, 7]
        vq = []
        for idx, j in enumerate(vj):
            reg = AW + 4 if idx % 2 == 0 else AW
            vq.append((j, 0, reg, idx)); vq.append((j, 1, reg, idx))
        vstate = {'i': 0, 'p': 0}
        def vpass(cnt):
            for _ in range(cnt):
                if vstate['i'] >= 20: return
                j, t, reg, idx = vq[vstate['i']]; vstate['i'] += 1
                if t == 0 and idx >= 2: A.wait(lg=[('B', idx)])
                smf(AV + 4 * t, reg, ('v', j, t), None)
                if t == 1 and idx + 2 < 10: aread(vj[idx + 2], reg, ('B', idx + 2))
        stamp(0)
        vpass(1)
        A('v_add_u32', v(SL[2]), L_KB - L_QB, v(QKW))
        vpass(1)
        add2(AQK, AQK, AQK + 2); add2(AQK + 4, AQK + 4, AQK + 6)
        A('v_cvt_pk_bf16_f32', v(AQK + 2), v(AQK), v(AQK + 4)); A('v_cvt_pk_bf16_f32', v(AQK + 3), v(AQK + 1), v(AQK + 5))
        A('ds_write2_b32', v(QKW), v(AQK + 2), v(AQK + 3), mods='offset0:0 offset1:4', tag='qw')
        add2(AQK + 8, AQK + 8, AQK + 10); add2(AQK + 12, AQK + 12, AQK + 14)
        A('v_cvt_pk_bf16_f32', v(AQK + 10), v(AQK + 8), v(AQK + 12)); A('v_cvt_pk_bf16_f32', v(AQK + 11), v(AQK + 9), v(AQK + 13))
        A('ds_write2_b32', v(SL[2]), v(AQK + 10), v(AQK + 11), mods='offset0:0 offset1:4', tag='qw')
        vpass(4)
        A.wait(lg=['qw']); A('s_barrier'); stamp('b2')
        qreg = [SL[2], SL[2] + 4, SL[3], SL[3] + 4]
        A('ds_read_b128', v(qreg[0], 4), v(FR), mods=f'offset:{L_QB}', tag=('Q', 0))
        kread((0, 0), AQK + 12)
        for kp in range(1, 4): A('ds_read_b128', v(qreg[kp], 4), v(FR), mods=f'offset:{L_QB + 512*kp}', tag=('Q', kp))
        vpass(4)
        sacc = {0: AQK, 1: AQK + 4, 2: AQK + 8}
        sc_order = [(1, 0), (2, 0), (0, 0), (1, 1), (2, 1), (1, 2), (2, 2), (0, 1), (0, 2), (0, 3), (1, 3), (2, 3)]
        pending = [(0, 1), (0, 2), (0, 3), (1, 3), (2, 3)]
        def vxload(hf):
            A('buffer_load_dwordx4', v(SL[1] + 4 * hf, 4), v(LANE16), WS, sVT, mods=f'offen offset:{1024*hf} {KVMOD}', tag='vx')
        pf = []
        for n in (0, 2, 1, 3):
            pf.append((oslot[n], oo[n], 0)); pf.append((oslot[n], oo[n], 1))
        def pfill(cnt=1):
            for _ in range(cnt):
                if pf: half_fill(*pf.pop(0))
        for tk in sc_order:
            t, kp = tk
            A.wait(lg=[('K', tk), ('Q', kp)])
            A('v_mfma_f32_16x16x32_bf16', v(sacc[t], 4), v(kfr[tk], 4), v(qreg[kp], 4), '0' if kp == 0 else v(sacc[t], 4))
            if pending and tk in ((1, 0), (2, 0), (0, 0), (1, 1), (2, 1)):
                kread(pending.pop(0), kfr[tk])
            if tk == (1, 2): vxload(0)
            if tk == (0, 2): vxload(1)
        stamp('sc')
        vpass(1); pfill(); vpass(1)
        vals = [AQK, AQK + 1] + [AQK + 4 + i for i in range(8)]
        mx = AQK + 2; tm = AQK + 3
        A('v_max3_f32', v(mx), v(vals[0]), v(vals[1]), v(vals[2])); A('v_max3_f32', v(tm), v(vals[3]), v(vals[4]), v(vals[5]))
        A('v_max3_f32', v(mx), v(mx), v(vals[6]), v(vals[7])); A('v_max3_f32', v(tm), v(tm), v(vals[8]), v(vals[9]))
        A('v_max_f32', v(mx), v(mx), v(tm)); A('v_max_f32', v(tm), v(mx), v(tm))
        vpass(1)
        A('v_permlane32_swap_b32', v(tm), v(mx)); A('v_max_f32', v(mx), v(mx), v(tm)); A('v_max_f32', v(tm), v(mx), v(tm))
        vpass(1); pfill()
        A('v_permlane16_swap_b32', v(tm), v(mx)); A('v_max_f32', v(mx), v(mx), v(tm))
        A('v_mul_f32', v(mx), sSCALE, v(mx))
        order = vals[2:] + vals[:2]
        for i, r_ in enumerate(order):
            A('v_fma_f32', v(r_), v(r_), sSCALE, '-' + v(mx))
            if i >= 1: A('v_exp_f32', v(order[i - 1]), v(order[i - 1]))
            if i % 2 == 1: vpass(1)
            if i % 3 == 2: pfill()
            if i in (3, 5, 7, 9): A('v_cvt_pk_bf16_f32', v(AQK + 12 + (i - 3) // 2), v(order[i - 3]), v(order[i - 2]))
        A('v_exp_f32', v(order[9]), v(order[9]))
        vpass(20)
        A('v_mov_b32', v(AQK + 3), 0)
        A.wait(lg=[('B', 9)]); A('s_barrier')
        stamp(2)
        A('v_cvt_pk_bf16_f32', v(AQK + 2), v(AQK), v(AQK + 1))
        A.wait(vm=['vx'])
        A('v_mfma_f32_16x16x32_bf16', v(AW, 4), v(SL[1], 4), v(AQK + 12, 4), '0')
        add2(AQK + 4, AQK + 4, AQK + 6)
        A('v_mfma_f32_16x16x32_bf16', v(AW + 4, 4), v(SL[1] + 4, 4), v(AQK + 12, 4), '0')
        pfill()
        add2(AV, AV, AV + 2); add2(AV + 4, AV + 4, AV + 6)
        A('v_cvt_pk_bf16_f32', v(AV + 2), v(AV), v(AV + 1)); A('v_cvt_pk_bf16_f32', v(AV + 3), v(AV + 4), v(AV + 5))
        A('v_cvt_pk_bf16_f32', v(AV + 4), v(AV + 4), v(AV + 5))
        add2(AQK + 8, AQK + 8, AQK + 10)
        A('v_mfma_f32_16x16x16_bf16', v(AW, 4), v(AV + 2, 2), v(AQK + 2, 2), v(AW, 4))
        A('v_mov_b32', v(AV + 5), 0)
        add2(AQK + 4, AQK + 4, AQK + 8)
        A('v_mfma_f32_16x16x16_bf16', v(AW + 4, 4), v(AV + 4, 2), v(AQK + 2, 2), v(AW + 4, 4))
        pfill()
        add2(AQK + 4, AQK + 4, AQK)
        sm = AQK + 6; t2 = AQK + 7
        A('v_add_f32', v(sm), v(AQK + 4), v(AQK + 5)); A('v_add_f32', v(t2), v(AQK + 4), v(AQK + 5))
        A('v_lshrrev_b32', v(AV + 6), 1, v(LANE16))
        A('ds_write_b64', v(AV + 6), v(AV + 2, 2), mods=f'offset:{L_VM + 512*w}', tag='ow')
        A('v_permlane32_swap_b32', v(t2), v(sm)); A('v_add_f32', v(AQK + 4), v(sm), v(t2)); A('v_add_f32', v(AQK + 5), v(sm), v(t2))
        pf.append((oslot[9], oo[9], 0)); pf.append((oslot[9], oo[9], 1))
        pfill()
        A('v_permlane16_swap_b32', v(AQK + 5), v(AQK + 4)); A('v_add_f32', v(sm), v(AQK + 4), v(AQK + 5))
        A('v_rcp_f32', v(sm), v(sm))
        for i in range(4):
            A('v_mul_f32', v(AW + 2 * i), v(AW + 2 * i), v(sm)); A('v_mul_f32', v(AW + 2 * i + 1), v(AW + 2 * i + 1), v(sm))
            A('v_cvt_pk_bf16_f32', v(AQK + 8 + i), v(AW + 2 * i), v(AW + 2 * i + 1))
        A('ds_write_b128', v(FR), v(AQK + 8, 4), mods=f'offset:{L_O + 512*w}', tag='ow')
        pfill()
        for i in (0, 2, 4, 6, 12, 14): A('v_mov_b64', v(AQK + i, 2), 0)
        for i in (0, 4): A('v_mov_b64', v(AV + i, 2), 0)
        A.wait(lg=['ow']); A('s_barrier')
        A('ds_read_b128', v(AW, 4), v(LANE16), mods=f'offset:{L_O}', tag='oa0')
        A('ds_read_b128', v(AW + 4, 4), v(LANE16), mods=f'offset:{L_O+1024}', tag='oa1')
        pfill()
        A('s_cmp_eq_u32', sS, nsteps - 1)
        A('s_cbranch_scc1', L('last'))
        for i in (8, 10): A('v_mov_b64', v(AQK + i, 2), 0)
        for i in (2, 6): A('v_mov_b64', v(AV + i, 2), 0)
        assert not pf
        stamp(3)
        accs = [AQK, AQK + 4, AQK + 8, AQK + 12, AV, AV + 4]
        tacc = {0: 0, 1: 1, 2: 2, 3: 3, 4: 4, 5: 5, 6: 1, 7: 2, 8: 3, 9: 5}
        def post_ops(t):
            r_ = accs[tacc[t]]
            st = accs[0] + t if t < 4 else (accs[4] + t - 4 if t < 8 else accs[3] + t - 8)
            ops = [lambda: A('v_add_f32', v(r_), v(r_), v(r_ + 2)), lambda: A('v_add_f32', v(r_ + 1), v(r_ + 1), v(r_ + 3)),
                   lambda: A('v_cvt_pk_bf16_f32', v(st), v(r_), v(r_ + 1))]
            if t % 2 == 0: ops.append(lambda: A('v_and_or_b32', v(st), v(st), -2, sTAG))
            if t == 3: ops.append(lambda: A('buffer_store_dwordx4', v(accs[0], 4), v(PST4), WS, sPST, mods=f'offen {sc}'.strip(), tag='ps'))
            if t == 7: ops.append(lambda: A('buffer_store_dwordx4', v(accs[4], 4), v(PST4), WS, sPST1, mods=f'offen {sc}'.strip(), tag='ps'))
            if t == 9: ops.append(lambda: A('buffer_store_dwordx2', v(accs[3], 2), v(PST2), WS, sPST2, mods=f'offen {sc}'.strip(), tag='ps'))
            if t in (1, 2, 3, 5):
                ops += [lambda: A('v_mov_b64', v(r_, 2), 0), lambda: A('v_mov_b64', v(r_ + 2, 2), 0)]
            return ops
        oside = {}
        def oat(n, fn): oside.setdefault(n, []).append(fn)
        for a_, b_ in ((0, 6), (1, 7), (6, 12), (7, 13), (12, 18), (13, 19)):
            oat(a_, lambda b_=b_: fill(oslot[b_], oo[b_]))
        for n0, qi in ((2, 4), (6, 0), (10, 1)):
            oat(n0, lambda qi=qi: half_fill(qslot[qi], qk[qi], 0)); oat(n0 + 2, lambda qi=qi: half_fill(qslot[qi], qk[qi], 1))
        vq_ = []
        for n, f in enumerate(oo):
            if n == 0: A.wait(lg=['oa0'])
            if n == 2: A.wait(lg=['oa1'])
            if f[1] == 0 and f[2] >= 6:
                need = {6: 1, 7: 2, 8: 3, 9: 5}[f[2]]
                while any(t == need for t, _ in vq_): vq_.pop(0)[1]()
            smf(accs[tacc[f[2]]], AW + 4 * f[1], f, oslot.get(n))
            for fn in oside.get(n, []): fn()
            for t in range(10):
                if 4 * (t >> 1) + 2 + (t & 1) + 3 == n: vq_ += [(t, o_) for o_ in post_ops(t)]
            for _ in range(3):
                if vq_: vq_.pop(0)[1]()
        while vq_: vq_.pop(0)[1]()
        for t in (8, 9):
            for o_ in post_ops(t): o_()
        stamp(4)
        ra = AV + 4
        fill(qslot[2], qk[2]); fill(qslot[3], qk[3])
        A('s_mov_b32', sSPIN, 0)
        A('v_bfe_u32', v(ra + 1), v(LANE16), 4, 1); A('v_lshlrev_b32', v(ra + 1), 4, v(ra + 1))
        A('v_mov_b32', v(ra + 2), '0x3f80'); A('v_lshlrev_b32', v(ra + 1), v(ra + 1), v(ra + 2))
        A('v_bfe_u32', v(ra + 2), v(LANE16), 5, 3)
        def rloads():
            for i in range(2 * ng):
                A('buffer_load_dwordx4', v(AQK + 4 * i, 4), v(LANE16), WS, sPLD if i < 2 else sPLD1, mods=f'offen offset:{(i&1)*1024} sc1', tag='rl')
        sel = lambda jj: (A('v_cmp_eq_u32', 'vcc', jj, v(ra + 2)), A('v_cndmask_b32', v(AW + jj), 0, v(ra + 1), 'vcc'))
        for jj in range(RDELAY): sel(jj % (4 * ng))
        rloads()
        for jj in range(min(RDELAY, 4 * ng), 4 * ng): sel(jj)
        A.wait(vm=['rl']); stamp('r1')
        A('s_branch', L('rchk'))
        A.label(L('rretry'))
        rloads(); A('s_waitcnt', 'vmcnt(0)')
        A.label(L('rchk'))
        for i in range(2 * ng):
            A('v_mfma_f32_16x16x32_bf16', v(AV, 4), v(AQK + 4 * i, 4), v(AW + 4 * (i >> 1), 4), '0' if i == 0 else v(AV, 4))
            b = AQK + 4 * i
            if i == 0:
                A('v_and_b32', v(ra + 1), v(b), v(b + 2)); A('v_or_b32', v(ra + 2), v(b), v(b + 2))
            else:
                A('v_bitop3_b32', v(ra + 1), v(ra + 1), v(b), v(b + 2), mods='bitop3:0x80'); A('v_or3_b32', v(ra + 2), v(ra + 2), v(b), v(b + 2))
        A('v_bitop3_b32', v(ra + 1), v(ra + 1), v(ra + 2), sTAG, mods='bitop3:0x4e')
        A('v_and_b32', v(ra + 1), 1, v(ra + 1))
        A('v_cmp_ne_u32', 'vcc', 0, v(ra + 1))
        A('s_cbranch_vccz', L('rok'))
        A('s_cmp_lg_u32', sDEAD, 0); A('s_cbranch_scc1', L('rok'))
        A('s_add_u32', sSPIN, sSPIN, 1)
        A('s_cmp_lt_u32', sSPIN, SPIN_MAX); A('s_cbranch_scc1', L('rretry'))
        A('s_mov_b32', sDEAD, 1)
        A.label(L('rok'))
        A('v_permlane32_swap_b32', v(AV), v(AV + 2)); A('v_permlane32_swap_b32', v(AV + 1), v(AV + 3))
        add2(AV, AV, AV + 2)
        A('v_permlane16_swap_b32', v(AV), v(AV + 1)); A('v_add_f32', v(AV), v(AV), v(AV + 1))
        A('v_cvt_pk_bf16_f32', v(AV), v(AV), v(AV))
        A('buffer_store_short', v(AV), v(RDEST), WS, sMEMc, mods=f'offen {sc}'.strip())
        stamp(5)
        A('v_mov_b32', v(AV + 1), hex(SENT))
        A('buffer_store_short', v(AV + 1), v(RDEST), WS, sMEMo, mods=f'offen {sc}'.strip())
        pub_read(AV, AV + 4)
        for i in range(0, 16, 2): A('v_mov_b64', v(AQK + i, 2), 0)
        A('v_lshrrev_b32', v(AV + 6), 1, v(LANE16))
        A('s_add_u32', sT2, sMEMc, 2048 * w); A('s_add_u32', sT1, sMEMc, 8192 + 512 * w)
        A('s_xor_b32', sTAG, sTAG, 1)
        A('s_xor_b32', sMEMc, sMEMc, sDMEM); A('s_xor_b32', sMEMo, sMEMo, sDMEM)
        if not X_NOADV: A('s_add_u32', sVT, sVT, 32 * 8192)
        A('s_add_u32', sS, sS, 1)
        if w == 3: w3in()
        A('s_mov_b32', sSPIN, 0)
        for i in range(GDELAY): A('v_mov_b64', v(AQK + 2 * (i % 8), 2), 0)
        A('s_branch', L('gload'))
        A.label(L('last'))
        A.reset_counts()
        pub_read(AV, AV + 4)
        A('s_waitcnt', 'lgkmcnt(0)')
        A('buffer_store_dwordx4', v(AV, 4), v(LANE16), WS, sKM, mods='offen sc1')
        A('s_waitcnt', 'vmcnt(0)')
        A('s_barrier')
        if w == 3:
            A('v_mov_b32', v(XR), nsteps)
            A('s_mov_b64', 'exec', 1)
            A('buffer_store_dword', v(XR), 'off', WS, sFLO, mods='sc1')
            A('s_mov_b64', 'exec', -1)
        if dbg:
            A('s_lshl_b32', sT0, sC, 5); A('s_add_u32', sT0, sT0, sH); A('s_lshl_b32', sT0, sT0, 2); A('s_add_u32', sT0, sT0, w)
            A('s_lshl_b32', sT0, sT0, 6); A('s_add_u32', sT0, sT0, DBGT)
            A('s_waitcnt', 'lgkmcnt(0)')
            for i, r_ in enumerate([s(80 + 2 * k) for k in range(11)] + [sDEAD]):
                A('v_mov_b32', v(AV), r_)
                A('buffer_store_dword', v(AV), 'off', WS, sT0, mods=f'offset:{4*i}')
        A('s_waitcnt', 'vmcnt(0) lgkmcnt(0)')
        A('s_endpgm')

def emit_check(A, m0, m1, regs, retry, ok):
    A('v_pk_max_u16', v(m0), v(m0), v(m0), mods='op_sel:[0,1] op_sel_hi:[1,0]')
    A('v_cmp_le_u32', 'vcc', '0xff810000', v(m0))
    A('s_cbranch_vccz', ok)
    A('s_add_u32', sSPIN, sSPIN, 1)
    A('s_cmp_lt_u32', sSPIN, 32); A('s_cbranch_scc1', retry)
    A('s_cmp_lg_u32', sDEAD, 0); A('s_cbranch_scc1', ok)
    A('v_mov_b32', v(m0), -1)
    for r_ in regs:
        A('v_xor_b32', v(m1), hex(SENT), v(r_)); A('v_pk_min_u16', v(m0), v(m0), v(m1))
    A('v_pk_min_u16', v(m0), v(m0), v(m0), mods='op_sel:[0,1] op_sel_hi:[1,0]')
    A('v_mov_b32', v(m1), 0)
    A('v_cmp_eq_u32', 'vcc', 0, v(m0))
    A('s_cbranch_vccz', ok)
    A('s_sleep', 1)
    A('s_cmp_lt_u32', sSPIN, SPIN_MAX); A('s_cbranch_scc1', retry)
    A('s_mov_b32', sDEAD, 1)
    A.label(ok)
```

```python
def kernel_header(name):
    return f'''.globl {name}
.p2align 8
.type {name},@function
{name}:
'''
def kernel_desc(name, vgpr=512, sgpr=102, accum=256):
    return f'''.section .rodata,"a"
.p2align 6
.amdhsa_kernel {name}
  .amdhsa_next_free_vgpr {vgpr}
  .amdhsa_next_free_sgpr {sgpr}
  .amdhsa_accum_offset {accum}
  .amdhsa_group_segment_fixed_size 0
  .amdhsa_kernarg_size 104
  .amdhsa_user_sgpr_count 2
  .amdhsa_user_sgpr_kernarg_segment_ptr 1
  .amdhsa_system_sgpr_workgroup_id_x 1
.end_amdhsa_kernel
'''
TARGET = '''.amdgcn_target "amdgcn-amd-amdhsa--gfx950"
.text
'''
```

```python
WS_BYTES = 268435456
FLAGS   = 0x0
FL_LAYER = 64 * 128
FL_KIND = 2 * FL_LAYER
FL_QKV  = FLAGS + 0 * FL_KIND
FL_CH   = FLAGS + 1 * FL_KIND
FL_XN   = FLAGS + 2 * FL_KIND
FL_ATT  = FLAGS + 3 * FL_KIND
FL_OP   = FLAGS + 4 * FL_KIND
FL_LNA  = FLAGS + 5 * FL_KIND
FL_F1   = FLAGS + 6 * FL_KIND
FL_F2   = FLAGS + 7 * FL_KIND
FLAGS_BYTES = 8 * FL_KIND
MEMB    = 0x20000
MEMB_SZ = 10240
PIECE   = 2176
PART_SZ = 160 * PIECE
PART    = 0x30000
POISON_LO = MEMB
POISON_HI = 0xE0000
STRM    = 0x100000
STRM_H  = 37 * 2048
DBGT    = 0x800000
KF      = 0x1000000
LAYER_F = 64 * 32 * 8192
VT      = KF + 2 * LAYER_F
QF      = VT + 2 * LAYER_F
OF      = QF + 2 * LAYER_F
KM      = OF + 2 * LAYER_F + 32 * 4096
LAYER_KM = 65 * 32 * 4096
UX      = 40960
LAYER_X = 64 * UX
XN      = KM + 2 * LAYER_KM
XRES    = XN + 2 * LAYER_X
X1      = XRES + 2 * LAYER_X
XN1     = X1 + 2 * LAYER_X
X2      = XN1 + 2 * LAYER_X
UH      = 112 * 1024
LAYER_H = 64 * UH
HF      = X2 + LAYER_X
UP      = UX
LAYER_OP = 64 * 2 * UP
OPART   = HF + 2 * LAYER_H
WS_END  = OPART + 2 * LAYER_OP
assert WS_END <= WS_BYTES
assert PART + 2 * PART_SZ <= POISON_HI <= STRM and STRM + 64 * STRM_H <= DBGT and (POISON_HI - POISON_LO) == 256 * 3072
SENT = 0xFF81FF81
if __name__ == '__main__':
    print(hex(WS_END), WS_END / 2**20)
```

```python
from asmgen import *
from layout import *
from chain import *

def emit_srds(A):
    A('s_load_dwordx16', 's[64:79]', 's[0:1]', 0)
    A('s_load_dwordx8', 's[80:87]', 's[0:1]', 64)
    A('s_load_dwordx2', 's[88:89]', 's[0:1]', 96)
    A('s_waitcnt', 'lgkmcnt(0)')
    def srd(base, src, n):
        A('s_mov_b32', s(base), s(src)); A('s_mov_b32', s(base + 1), s(src + 1))
        A('s_mov_b32', s(base + 2), hex(n)); A('s_mov_b32', s(base + 3), '0x20000')
    srd(8, 88, WS_BYTES)
    srd(12, 68, 640 * 4096 * 2); srd(16, 70, 640 * 4096 * 2); srd(20, 72, 640 * 4096 * 2); srd(24, 74, 640 * 4096 * 2)
    srd(28, 64, 2048 * 640 * 2); srd(32, 66, 8 * 640 * 2)
    srd(36, 80, 640 * 1728 * 2); srd(40, 82, 640 * 1728 * 2); srd(44, 84, 2048 * 640 * 2); srd(48, 86, 256)
```

```python
from asmgen import *
from common import *
from layout import *
import chain, bulk
from chain import SDBG, WS, sMODE
from prologue import emit_srds
import sys, os
NAME = 'interleave_layers__memory_aug_recurrent_mem_tr__dense_activation_relu__prompt'
ROLES = os.environ.get('ROLES', 'chain,qkv,att,op,lna,ln,f1,f2').split(',')
NOINIT = int(os.environ.get('NOINIT', 0))
FORCE_SLOW = int(os.environ.get('FORCE_SLOW', 0))
DBG = int(os.environ.get('DBG', 0))
sW, sI, sL = 's52', 's53', 's54'
sX, sR, sV = 's97', 's98', 's99'
T0, T1, T2 = 's70', 's71', 's72'

def build():
    A = Asm()
    A('s_cmp_ge_u32', 's2', 256); A('s_cbranch_scc1', 'L_end')
    emit_srds(A)
    A('s_getreg_b32', sX, 'hwreg(HW_REG_XCC_ID)'); A('s_and_b32', sX, sX, 15)
    A('v_lshrrev_b32', 'v1', 6, 'v0'); A('v_readfirstlane_b32', sW, 'v1')
    A('v_and_b32', 'v1', 63, 'v0'); A('v_lshlrev_b32', 'v2', 4, 'v1')
    A('s_cmp_lg_u32', sW, 0); A('s_cbranch_scc1', 'L_w123')
    A('s_mov_b64', 'exec', 1)
    A('v_mov_b32', 'v8', 1); A('s_lshl_b32', T0, sX, 2)
    A('buffer_atomic_add', 'v8', 'off', SDBG, T0, mods='sc0')
    A('s_mov_b64', 'exec', '0xffffffff')
    if not NOINIT:
        for i in range(4): A('v_mov_b32', v(4 + i), 0)
        A('s_lshl_b32', T0, 's2', 9)
        A('buffer_store_dwordx4', 'v[4:7]', 'v2', WS, T0, mods='offen sc1')
    A('s_mov_b64', 'exec', -1)
    A('s_branch', 'L_join')
    A.label('L_w123')
    if not NOINIT:
        for i in range(4): A('v_mov_b32', v(4 + i), hex(SENT))
        A('s_mul_i32', T0, 's2', 3072); A('s_lshl_b32', T1, sW, 10); A('s_add_u32', T0, T0, T1); A('s_add_u32', T0, T0, POISON_LO - 1024)
        A('buffer_store_dwordx4', 'v[4:7]', 'v2', WS, T0, mods='offen sc1')
    A.label('L_join')
    A('s_waitcnt', 'vmcnt(0)')
    A('s_barrier')
    A('s_cmp_lg_u32', sW, 0); A('s_cbranch_scc1', 'L_wait')
    A('v_readfirstlane_b32', sR, 'v8')
    A('s_mov_b64', 'exec', 1)
    A('v_mov_b32', 'v9', 1)
    A('buffer_atomic_add', 'v9', 'off', SDBG, 0, mods='offset:64')
    A('s_mov_b64', 'exec', -1)
    A('v_min_u32', 'v3', 16, 'v1'); A('v_lshlrev_b32', 'v3', 2, 'v3')
    A('s_mov_b32', 's68', 0)
    A.label('L_poll')
    A('buffer_load_dword', 'v9', 'v3', SDBG, 0, mods='offen sc1')
    A('s_waitcnt', 'vmcnt(0)')
    A('v_readlane_b32', T0, 'v9', 16)
    A('s_cmp_ge_u32', T0, 256); A('s_cbranch_scc1', 'L_all')
    A('s_sleep', 4)
    A('s_add_u32', 's68', 's68', 1); A('s_cmp_lt_u32', 's68', chain.SPIN_MAX); A('s_cbranch_scc1', 'L_poll')
    A.label('L_all')
    A('v_cmp_eq_u32', 'vcc', 32, 'v9'); A('s_and_b32', T0, 'vcc_lo', 0xff)
    A('s_lshl_b32', T1, sX, 5); A('s_add_u32', T1, T1, sR)
    A('s_add_u32', T2, 's2', 256)
    A('s_cmp_eq_u32', T0, 0xff if not FORCE_SLOW else 0x1ff); A('s_cselect_b32', T0, T1, T2)
    A('v_mov_b32', 'v9', T0); A('v_mov_b32', 'v3', 0)
    A('ds_write_b32', 'v3', 'v9'); A('s_waitcnt', 'lgkmcnt(0)')
    A.label('L_wait')
    A('s_barrier')
    A('v_mov_b32', 'v3', 0); A('ds_read_b32', 'v9', 'v3'); A('s_waitcnt', 'lgkmcnt(0)')
    A('v_readfirstlane_b32', sV, 'v9')
    A('s_barrier')
    A('s_lshr_b32', sMODE, sV, 8); A('s_and_b32', sV, sV, 255)
    A('s_lshr_b32', sX, sV, 5); A('s_and_b32', sR, sV, 31)
    def go(role, label):
        return label if role in ROLES else 'L_end'
    A('s_cmp_ge_u32', sX, 2); A('s_cbranch_scc1', 'L_bulk')
    A('s_mov_b32', sI, sR); A('s_mov_b32', sL, sX)
    for w in range(4):
        A('s_cmp_eq_u32', sW, w); A('s_cbranch_scc1', go('chain', f'CH{w}_entry'))
    A.label('L_bulk')
    A('s_cmp_ge_u32', sX, 5); A('s_cselect_b32', sL, 1, 0)
    A('s_mul_i32', T0, sL, 3); A('s_sub_u32', T0, sX, T0); A('s_sub_u32', T0, T0, 2)
    A('s_mov_b32', sI, sR)
    A('s_cmp_eq_u32', T0, 2); A('s_cbranch_scc1', 'L_qkv')
    A('s_cmp_eq_u32', T0, 1); A('s_cbranch_scc1', 'L_t1')
    A('s_cmp_lt_u32', sR, 20); A('s_cbranch_scc1', go('op', 'G2op_entry'))
    A('s_sub_u32', sI, sR, 20); A('s_cmp_lt_u32', sR, 28); A('s_cbranch_scc1', go('att', 'ATT_entry'))
    A('s_sub_u32', sI, sR, 28); A('s_cmp_lt_u32', sR, 30); A('s_cbranch_scc1', go('lna', 'LNA_entry'))
    A('s_mov_b32', sI, 0); A('s_cmp_eq_u32', sR, 30); A('s_cbranch_scc1', go('ln', 'LN_entry'))
    A('s_mov_b32', sI, 47); A('s_branch', 'L_qkv')
    A.label('L_t1')
    A('s_cmp_lt_u32', sR, 7); A('s_cbranch_scc1', go('f1', 'G1f1_entry'))
    A('s_sub_u32', sI, sR, 7); A('s_cmp_lt_u32', sR, 17); A('s_cbranch_scc1', go('f2', 'G2f2_entry'))
    A('s_add_u32', sI, sR, 15)
    A.label('L_qkv')
    A('s_mul_i32', T0, sI, 43); A('s_lshr_b32', T0, T0, 7); A('s_mul_i32', T0, T0, 3); A('s_sub_u32', T0, sI, T0)
    A('s_cmp_eq_u32', T0, 2); A('s_cbranch_scc1', go('qkv', 'G1v_entry'))
    A('s_branch', go('qkv', 'G1qk_entry'))
    A.label('L_end')
    A('s_endpgm')
    ready = lambda A: None
    if 'ln' in ROLES: bulk.emit_ln(A, ready)
    if 'lna' in ROLES: bulk.emit_lna(A, ready)
    if 'att' in ROLES: bulk.emit_att(A, ready)
    if 'qkv' in ROLES: bulk.emit_gemm1(A, 'qk', ready); bulk.emit_gemm1(A, 'v', ready)
    if 'f1' in ROLES: bulk.emit_gemm1(A, 'f1', ready)
    if 'op' in ROLES: bulk.emit_gemm2(A, 'op', ready)
    if 'f2' in ROLES: bulk.emit_gemm2(A, 'f2', ready)
    if 'chain' in ROLES:
        for w in range(4): chain.emit_chain_wave(A, w, ready, dbg=bool(DBG))
    return A.finalize()

if __name__ == '__main__':
    out = sys.argv[1]
    k = NAME + '_kernel'
    hdr = open('cdna_kernels/' + NAME + '.s.ref').read().split('; Override launch geometry')[0]
    txt = hdr + f'; @launch kernel={k} grid=(256,1,1) block=(256,1,1) lds=163840\n' + TARGET + kernel_header(k) + build() + kernel_desc(k)
    open(out, 'w').write(txt)
```

```python
from asmgen import *
from layout import *
from chain import tstamp, sMODE, WS, SQ, SK, SV, SO, SX, SM0, SW1, SW2, SOUT, SDBG, f32bits, SPIN_MAX
sW, sI, sL, sU = 's52', 's53', 's54', 's55'
sIN, sOUT_, sFI, sFO, sPROG, sPEND, sLB, sNX, sA, sB, sC_, sD = ['s%d' % i for i in range(56, 68)]
sSPIN, sDEAD = 's68', 's69'
sT0, sT1, sT2, sT3 = 's70', 's71', 's72', 's73'
NU = 64
CHK1 = [10, 20, 30]
import os
DBG = int(os.environ.get('DBG', 0))
LN_, L16, FOFF = 0, 1, 2
FV = 4
TM = 8

def common_setup(A, nlines):
    A('v_and_b32', v(LN_), 63, 'v0'); A('v_lshlrev_b32', v(L16), 4, v(LN_))
    A('v_min_u32', v(FOFF), nlines - 1, v(LN_)); A('v_lshlrev_b32', v(FOFF), 7, v(FOFF))
    A('s_mov_b32', sU, 0); A('s_mov_b32', sPROG, 0); A('s_mov_b32', sPEND, 0); A('s_mov_b32', sDEAD, 0)

def ph(A, i):
    if DBG: A('s_memtime', s(2 * i + (4 if i < 2 else 90 - 4), 2)) if False else None
PHR = [4, 6, 88, 94, 100]
def ph(A, i):
    if DBG: A('s_memtime', s(PHR[i], 2))
def ph_dump(A, tmp=3):
    if not DBG: return
    sk = A.newlabel('phd')
    A('s_cmp_lg_u32', sU, 40); A('s_cbranch_scc1', sk)
    A('s_lshr_b32', 's92', sFO, 7); A('s_lshl_b32', 's92', 's92', 2); A('s_bfe_u32', 's93', sFO, 0x20002); A('s_add_u32', 's92', 's92', 's93')
    A('s_lshl_b32', 's92', 's92', 6); A('s_add_u32', 's92', 's92', DBGT + (3 << 20))
    A('s_waitcnt', 'lgkmcnt(0)')
    for i, r in enumerate(PHR):
        A('v_mov_b32', v(tmp), s(r)); A('buffer_store_dword', v(tmp), 'off', WS, 's92', mods=f'offset:{4*i}'); A.vm.pop()
    A.label(sk)

def flag_load(A, soff=sFI, reg=FV, voff=FOFF, n=4):
    op = {1: 'buffer_load_dword', 2: 'buffer_load_dwordx2', 4: 'buffer_load_dwordx4'}[n]
    A(op, v(reg, n), v(voff), WS, soff, mods='offen sc1', tag='fl')

def flag_min(A, dst, reg=FV, n=4, lanes=64, floor=None):
    if n == 4:
        A('v_min3_u32', v(reg), v(reg), v(reg + 1), v(reg + 2)); A('v_min_u32', v(reg), v(reg), v(reg + 3))
    elif n == 2:
        A('v_min_u32', v(reg), v(reg), v(reg + 1))
    if floor is not None: A('v_max_u32', v(reg), v(reg), v(floor))
    if lanes > 1:
        for sh in (1, 2, 4, 8): A('v_min_u32_dpp', v(reg), v(reg), v(reg), mods=f'row_ror:{sh} row_mask:0xf bank_mask:0xf')
    A('v_readlane_b32', sT0, v(reg), 0)
    if lanes > 16:
        assert lanes <= 32
        A('v_readlane_b32', sT1, v(reg), 16); A('s_min_u32', sT0, sT0, sT1)
    A('s_max_u32', dst, dst, sT0)

def poll(A, pre, need, prog=sPROG, soff=sFI, reg=FV, voff=FOFF, n=4, lanes=64, floor=None):
    ok = A.newlabel(pre + '_ok'); lp = A.newlabel(pre + '_lp')
    A('s_cmp_gt_u32', prog, need); A('s_cbranch_scc1', ok)
    A('s_mov_b32', sSPIN, 0)
    A.label(lp)
    flag_load(A, soff, reg, voff, n); A.vm.pop()
    A('s_waitcnt', 'vmcnt(0)')
    flag_min(A, prog, reg, n, lanes, floor)
    A('s_cmp_gt_u32', prog, need); A('s_cbranch_scc1', ok)
    A('s_cmp_lg_u32', sDEAD, 0); A('s_cbranch_scc1', ok)
    A('s_sleep', 2)
    A('s_add_u32', sSPIN, sSPIN, 1); A('s_cmp_lt_u32', sSPIN, SPIN_MAX); A('s_cbranch_scc1', lp)
    A('s_mov_b32', sDEAD, 1)
    A.label(ok)

def publish(A, val, tmp=3, loc=False):
    A('v_mov_b32', v(tmp), val)
    A('s_mov_b64', 'exec', 1)
    if loc: local_flag(A, lambda md: A('buffer_store_dword', v(tmp), 'off', WS, sFO, mods=md))
    else: A('buffer_store_dword', v(tmp), 'off', WS, sFO, mods='sc1')
    A.vm.pop()
    if DBG: tstamp(A, sFO, val, tmp)
    A('s_mov_b64', 'exec', -1)

def local(A, fn):
    fn('sc1')

def local_flag(A, fn):
    sl = A.newlabel('loc_s'); e = A.newlabel('loc_e')
    A('s_cmp_lg_u32', sMODE, 0); A('s_cbranch_scc1', sl)
    n0 = len(A.vm); fn(''); del A.vm[n0:]
    A('s_branch', e)
    A.label(sl)
    fn('sc1')
    A.label(e)

def flag_out_addr(A, kind):
    A('s_mul_i32', sFO, sL, FL_LAYER); A('s_lshl_b32', sT0, sI, 7); A('s_add_u32', sFO, sFO, sT0)
    A('s_lshl_b32', sT0, sW, 2); A('s_add_u32', sFO, sFO, sT0); A('s_add_u32', sFO, sFO, kind)

def load_weights(A, srd, stride, rowpart, sbase, soffs, dst, perm):
    SRC, TR0, TR1 = TM, TM + 1, TM + 2
    t = [TM + 3 + i for i in range(6)]
    A('v_lshrrev_b32', v(t[0]), 5, v(LN_)); A('v_mul_u32_u24', v(t[0]), rowpart, v(t[0]))
    A('v_bfe_u32', v(t[1]), v(LN_), 3, 2); A('v_add_u32', v(t[0]), v(t[0]), v(t[1]))
    A('s_mov_b32', sT0, stride); A('v_mul_lo_u32', v(t[0]), v(t[0]), sT0)
    A('v_bfe_u32', v(t[1]), v(LN_), 4, 1); A('v_lshlrev_b32', v(t[1]), 2, v(t[1])); A('v_and_b32', v(t[2]), 7, v(LN_)); A('v_xor_b32', v(t[1]), v(t[1]), v(t[2]))
    A('v_lshl_add_u32', v(t[0]), v(t[1]), 4, v(t[0])); A('v_add_u32', v(SRC), sbase, v(t[0]))
    A('s_mul_i32', sLB, sW, 40960)
    A('v_lshrrev_b32', v(t[0]), 5, v(LN_)); A('v_lshlrev_b32', v(t[0]), 10, v(t[0]))
    A('v_bfe_u32', v(t[1]), v(LN_), 2, 2); A('v_lshl_add_u32', v(t[0]), v(t[1]), 7, v(t[0]))
    A('v_bfe_u32', v(t[1]), v(LN_), 3, 1); A('v_lshl_add_u32', v(t[0]), v(t[1]), 6, v(t[0]))
    A('v_bfe_u32', v(t[1]), v(LN_), 4, 1); A('v_lshl_add_u32', v(t[0]), v(t[1]), 5, v(t[0]))
    if perm:
        A('v_and_b32', v(t[1]), 1, v(LN_)); A('v_lshl_add_u32', v(t[0]), v(t[1]), 4, v(t[0]))
        A('v_bfe_u32', v(t[1]), v(LN_), 1, 1); A('v_lshl_add_u32', v(t[0]), v(t[1]), 3, v(t[0]))
    else:
        A('v_and_b32', v(t[1]), 3, v(LN_)); A('v_lshl_add_u32', v(t[0]), v(t[1]), 3, v(t[0]))
    A('v_add_u32', v(TR0), sLB, v(t[0])); A('v_xor_b32', v(TR1), 64, v(TR0))
    n_st = len(soffs); depth = 20
    def dma(n):
        for b in range(2):
            A('s_add_u32', 'm0', sLB, (n % depth) * 2048 + b * 1024)
            A('s_mov_b32', sT0, soffs[n][b])
            A('buffer_load_dwordx4', v(SRC), srd, sT0, mods='offen lds', tag=('W', n))
    for n in range(min(depth, n_st)): dma(n)
    for n in range(n_st):
        A.wait(vm=[('W', n)])
        for T in range(2):
            for hq in range(2):
                A('ds_read_b64_tr_b16', R(dst(n, T) + 2 * hq, 2), v(TR0 if T == 0 else TR1), mods=f'offset:{(n % depth)*2048 + 512*hq}', tag=('T', n))
        if n >= 1 and n - 1 + depth < n_st:
            A.wait(lg=[('T', n - 1)]); dma(n - 1 + depth)
    A.wait(vm=0, lg=0)

def emit_gemm1(A, kind, ready):
    P = f'G1{kind}_'
    A.label(P + 'entry'); A.reset_counts()
    RING, ACC, STG, WR = 64, 128, 160, 192
    AD, SA = 32, 33
    wreg = lambda n, T: WR + (2 * n + T) * 4
    common_setup(A, 2)
    FLR = 34
    A('v_mov_b32', v(FLR), 0)
    if kind != 'f1':
        A('s_cmp_eq_u32', sL, 0); A('s_cselect_b32', sT0, 15, 1); A('v_min_u32', v(FOFF), sT0, v(LN_))
        A('v_lshrrev_b32', v(FLR), 1, v(FOFF)); A('v_lshlrev_b32', v(FOFF), 7, v(FOFF))
    if kind == 'f1':
        A('s_lshl_b32', sT1, sI, 2); A('s_add_u32', sT1, sT1, sW)
        A('s_lshl_b32', sA, sT1, 7)
        A('s_cmp_lt_u32', sT1, 27); A('s_cselect_b32', sA, sA, '0x20000000')
        A('s_mul_i32', sOUT_, sL, LAYER_H); A('s_lshl_b32', sT1, sT1, 12); A('s_add_u32', sOUT_, sOUT_, sT1); A('s_add_u32', sOUT_, sOUT_, HF)
        load_weights(A, SW1, 3456, 4, sA, [(16 * n * 3456, (16 * n + 8) * 3456) for n in range(40)], wreg, False)
        A('s_mul_i32', sIN, sL, LAYER_X); A('s_add_u32', sIN, sIN, XN1)
        A('s_mul_i32', sFI, sL, FL_LAYER); A('s_add_u32', sFI, sFI, FL_LNA)
        flag_out_addr(A, FL_F1); nl = 2; ostep = UH
        A('v_mov_b32', v(SA), v(L16))
    else:
        A('s_mul_i32', sT1, sI, 43); A('s_lshr_b32', sB, sT1, 7)
        A('s_mul_i32', sT1, sB, 3); A('s_sub_u32', sC_, sI, sT1)
        A('s_lshl_b32', sA, sB, 9); A('s_lshl_b32', sT1, sW, 7); A('s_add_u32', sA, sA, sT1)
        soffs = [(16 * n * 8192, (16 * n + 8) * 8192) for n in range(40)]
        if kind == 'v':
            load_weights(A, SV, 8192, 4, sA, soffs, wreg, False)
        else:
            A('s_cmp_eq_u32', sC_, 0)
            A('s_cselect_b32', 's76', 's12', 's16'); A('s_cselect_b32', 's77', 's13', 's17'); A('s_mov_b32', 's78', hex(640 * 4096 * 2)); A('s_mov_b32', 's79', '0x20000')
            load_weights(A, 's[76:79]', 8192, 4, sA, soffs, wreg, False)
        A('s_mul_i32', sOUT_, sL, LAYER_F); A('s_lshl_b32', sT1, sB, 14); A('s_add_u32', sOUT_, sOUT_, sT1)
        A('s_lshr_b32', sT1, sW, 1); A('s_lshl_b32', sT1, sT1, 13); A('s_add_u32', sOUT_, sOUT_, sT1)
        A('s_and_b32', sT1, sW, 1)
        if kind == 'v':
            A('s_lshl_b32', sT1, sT1, 12); A('s_add_u32', sOUT_, sOUT_, sT1); A('s_add_u32', sOUT_, sOUT_, VT)
            A('s_mul_i32', 's74', sL, LAYER_KM); A('s_lshl_b32', sT1, sB, 13); A('s_add_u32', 's74', 's74', sT1)
            A('s_lshl_b32', sT1, sW, 11); A('s_add_u32', 's74', 's74', sT1); A('s_add_u32', 's74', 's74', KM)
            for i in range(4): A('v_mov_b32', v(36 + i), hex(SENT))
        else:
            A('s_lshl_b32', sT1, sT1, 11); A('s_add_u32', sOUT_, sOUT_, sT1)
            A('s_cmp_eq_u32', sC_, 0); A('s_cselect_b32', sT1, QF - KF, 0); A('s_add_u32', sOUT_, sOUT_, sT1); A('s_add_u32', sOUT_, sOUT_, KF)
        A('s_mul_i32', sIN, sL, LAYER_X); A('s_add_u32', sIN, sIN, XN)
        A('s_mul_i32', sFI, sL, FL_LAYER); A('s_add_u32', sFI, sFI, FL_XN)
        flag_out_addr(A, FL_QKV); nl = 16; ostep = 32 * 8192
        A('v_bfe_u32', v(TM), v(LN_), 4, 1); A('v_lshlrev_b32', v(TM), 10 if kind == 'v' else 12, v(TM))
        A('v_lshrrev_b32', v(TM + 1), 5, v(LN_)); A('v_lshl_add_u32', v(TM), v(TM + 1), 8, v(TM))
        A('v_and_b32', v(TM + 1), 15, v(LN_)); A('v_lshl_add_u32', v(SA), v(TM + 1), 4, v(TM))
    A('s_mul_i32', sT0, sW, 10240); A('s_add_u32', sIN, sIN, sT0); A('s_mov_b32', sLB, sT0)
    A('s_mov_b32', sD, 0)
    ready(A)
    A('s_barrier')
    def dma_in():
        for i in range(10):
            if i % 4 == 0:
                A('s_add_u32', 'm0', sLB, i * 1024); A('s_add_u32', sT0, sIN, i * 1024)
            A('buffer_load_dwordx4', v(L16), WS, sT0, mods=f'offen offset:{(i%4)*1024} sc1 lds'); A.vm.pop()
        A('s_add_u32', sIN, sIN, UX)
        A('s_add_u32', sT0, sLB, UX); A('s_sub_u32', sT1, sLB, UX); A('s_cmp_ge_u32', sLB, UX); A('s_cselect_b32', sLB, sT1, sT0)
    A.label(P + 'fetch')
    poll(A, P + 'p', sU, lanes=nl, floor=FLR)
    dma_in()
    A('s_waitcnt', 'vmcnt(0)')
    flag_load(A)
    A.label(P + 'top')
    A.reset_counts()
    NST = 4 if kind != 'v' else 6
    ph_dump(A); ph(A, 0)
    A('s_waitcnt', f'vmcnt({NST+1})')
    A('s_barrier')
    ph(A, 1)
    A('v_add_u32', v(AD), sD, v(L16))
    A('s_xor_b32', sD, sD, UX)
    D = 8
    def rd(k): A('ds_read_b128', v(RING + 4 * (k % D), 4), v(AD), mods=f'offset:{k*1024}', tag=('A', k))
    for k in range(D): rd(k)
    A('s_mov_b32', sNX, 0)
    for k in range(40):
        A.wait(lg=[('A', k)])
        x = v(RING + 4 * (k % D), 4)
        for T in range(2):
            wv = R(wreg(k, T), 4); acc = v(ACC + 16 * T, 16)
            a_, b_ = (x, wv) if kind == 'v' else (wv, x)
            A('v_mfma_f32_32x32x16_bf16', acc, a_, b_, '0' if k == 0 else acc)
        if k + D < 40: rd(k + D)
        if k in CHK1:
            sk = A.newlabel(P + 'chk')
            A('s_cmp_lg_u32', sNX, 0); A('s_cbranch_scc1', sk)
            A('s_waitcnt', 'vmcnt(0)')
            if k == CHK1[0]:
                s2 = A.newlabel(P + 'nop')
                A('s_cmp_eq_u32', sPEND, 0); A('s_cbranch_scc1', s2)
                publish(A, sU, loc=(kind == 'f1')); A('s_mov_b32', sPEND, 0)
                A.label(s2)
            flag_min(A, sPROG, lanes=nl, floor=FLR)
            s3 = A.newlabel(P + 'nopf')
            A('s_add_u32', sT2, sU, 1); A('s_min_u32', sPROG, sPROG, NU); A('s_cmp_gt_u32', sPROG, sT2); A('s_cbranch_scc0', s3)
            dma_in()
            A('s_mov_b32', sNX, 1)
            A('s_branch', sk)
            A.label(s3)
            if k != CHK1[-1]: flag_load(A); A.vm.pop()
            A.label(sk)
    ph(A, 4)
    flag_load(A)
    if kind == 'v':
        for i in range(2): A('buffer_store_dwordx4', v(36, 4), v(L16), WS, 's74', mods=f'offen offset:{1024*i} sc1')
        A('s_add_u32', 's74', 's74', 32 * 4096)
    for T in range(2):
        ac = ACC + 16 * T
        for i in range(2):
            st = STG + 8 * T + 4 * i
            if kind == 'qk':
                for c in range(4): A('v_cvt_pk_bf16_f32', v(st + c), v(ac + 4 * i + c), v(ac + 8 + 4 * i + c))
                off = T * 1024 + i * 512
            elif kind == 'v':
                for hh in range(2):
                    for c in range(2): A('v_cvt_pk_bf16_f32', v(st + 2 * hh + c), v(ac + 8 * hh + 4 * i + 2 * c), v(ac + 8 * hh + 4 * i + 2 * c + 1))
                off = T * 2048 + i * 512
            else:
                for c in range(4):
                    A('v_cvt_pk_bf16_f32', v(st + c), v(ac + 8 * i + 2 * c), v(ac + 8 * i + 2 * c + 1))
                    A('v_pk_max_i16', v(st + c), v(st + c), 0)
                off = T * 2048 + i * 1024
            if kind == 'f1': local(A, lambda md: A('buffer_store_dwordx4', v(st, 4), v(SA), WS, sOUT_, mods=f'offen offset:{off} {md}'))
            else: A('buffer_store_dwordx4', v(st, 4), v(SA), WS, sOUT_, mods=f'offen offset:{off} sc1')
    A('s_add_u32', sOUT_, sOUT_, ostep)
    A('s_add_u32', sU, sU, 1); A('s_mov_b32', sPEND, 1)
    A('s_cmp_lg_u32', sNX, 0); A('s_cbranch_scc1', P + 'top')
    A('s_waitcnt', 'vmcnt(0)')
    publish(A, sU, loc=(kind == 'f1')); flag_min(A, sPROG, lanes=nl, floor=FLR); A('s_mov_b32', sPEND, 0)
    A('s_cmp_lt_u32', sU, NU); A('s_cbranch_scc1', P + 'fetch')
    A('s_endpgm')

def emit_gemm2(A, kind, ready):
    P = f'G2{kind}_'
    A.label(P + 'entry'); A.reset_counts()
    nk = 32 if kind == 'op' else 27
    RING, ACC, RT = 64, 192, 224
    LW, LR, RES, SA = 32, 33, 36, 34
    wreg = lambda n, T: 256 + (2 * n + T) * 4
    if kind == 'op':
        common_setup(A, 1); nl = 1
        A('s_cmp_ge_u32', sI, 10); A('s_cselect_b32', sB, 1, 0)
        A('s_mul_i32', sT1, sB, 10); A('s_sub_u32', sC_, sI, sT1)
        A('s_lshl_b32', sT1, sB, 2); A('s_add_u32', sT1, sT1, sW)
        A('s_mul_i32', sA, sT1, 4 * 163840); A('s_lshl_b32', sT2, sC_, 7); A('s_add_u32', sA, sA, sT2)
        A('s_mul_i32', sIN, sL, LAYER_F); A('s_lshl_b32', sT2, sT1, 15); A('s_add_u32', sIN, sIN, sT2); A('s_add_u32', sIN, sIN, OF)
        A('s_mul_i32', sFI, sL, FL_LAYER); A('s_lshl_b32', sT2, sT1, 7); A('s_add_u32', sFI, sFI, sT2); A('s_add_u32', sFI, sFI, FL_ATT)
        soffs = [[(128 * (n >> 3) + 32 * ((n & 7) >> 1) + 8 * (n & 1) + 4 * b) * 1280 for b in range(2)] for n in range(32)]
        load_weights(A, SO, 1280, 16, sA, [tuple(x) for x in soffs], wreg, True)
        istep = 32 * 8192
        A('s_mul_i32', sOUT_, sL, LAYER_OP); A('s_mul_i32', sT2, sB, UP); A('s_add_u32', sOUT_, sOUT_, sT2)
        A('s_lshl_b32', sT2, sC_, 12); A('s_add_u32', sOUT_, sOUT_, sT2); A('s_lshl_b32', sT2, sW, 10); A('s_add_u32', sOUT_, sOUT_, sT2)
        A('s_add_u32', sOUT_, sOUT_, OPART)
        flag_out_addr(A, FL_OP); ostep = 2 * UP
    else:
        common_setup(A, 7); nl = 7
        A('s_mul_i32', sA, sW, 27 * 16 * 1280); A('s_lshl_b32', sT2, sI, 7); A('s_add_u32', sA, sA, sT2)
        A('s_mul_i32', sIN, sL, LAYER_H); A('s_mul_i32', sT2, sW, 27 * 1024); A('s_add_u32', sIN, sIN, sT2); A('s_add_u32', sIN, sIN, HF)
        A('s_mul_i32', sFI, sL, FL_LAYER); A('s_add_u32', sFI, sFI, FL_F1)
        load_weights(A, SW2, 1280, 8, sA, [((16 * n) * 1280, (16 * n + 4) * 1280) for n in range(27)], wreg, True)
        istep = UH
        A('s_lshl_b32', sT2, sI, 12); A('s_lshl_b32', sT3, sW, 10); A('s_add_u32', sT2, sT2, sT3)
        A('s_mul_i32', sB, sL, LAYER_X); A('s_add_u32', sB, sB, sT2); A('s_add_u32', sB, sB, X1)
        A('s_add_u32', sOUT_, sT2, XRES + LAYER_X)
        A('s_lshl_b32', sT2, sI, 7); A('s_lshl_b32', sT3, sW, 5); A('s_add_u32', sC_, sT2, sT3)
        A('v_and_b32', v(TM), 31, v(LN_)); A('v_mul_u32_u24', v(TM), 1280, v(TM)); A('v_lshrrev_b32', v(TM + 1), 5, v(LN_)); A('v_lshl_add_u32', v(SA), v(TM + 1), 4, v(TM))
        flag_out_addr(A, FL_F2); ostep = UX
    A('s_lshl_b32', sT2, sW, 11); A('v_add_u32', v(LW), sT2, v(L16))
    A('s_lshl_b32', sT2, sW, 13); A('v_add_u32', v(LR), sT2, v(L16))
    ready(A)
    A('s_barrier')
    def ld(k, base):
        if k % 4 == 0: A('s_add_u32', sT3, base, k * 1024)
        A('buffer_load_dwordx4', v(RING + 4 * k, 4), v(L16), WS, sT3, mods=f'offen offset:{(k%4)*1024} sc1'); A.vm.pop()
    A.label(P + 'fetch')
    poll(A, P + 'p', sU, lanes=nl)
    for k in range(nk): ld(k, sIN)
    A.label(P + 'top')
    A.reset_counts()
    ph_dump(A); ph(A, 0)
    K0 = 10
    def mm(k, cnt):
        A('s_waitcnt', f'vmcnt({cnt})')
        x = v(RING + 4 * k, 4)
        for T in range(2):
            acc = v(ACC + 16 * T, 16)
            A('v_mfma_f32_32x32x16_bf16', acc, R(wreg(k, T), 4), x, '0' if k == 0 else acc)
    for k in range(K0 + 1): mm(k, nk - 1 - k)
    ph(A, 1)
    sk = A.newlabel(P + 'nop')
    A('s_cmp_eq_u32', sPEND, 0); A('s_cbranch_scc1', sk)
    A('s_waitcnt', 'vmcnt(0)')
    publish(A, sU, loc=(kind == 'op'))
    flag_min(A, sPROG, lanes=nl)
    A('s_mov_b32', sPEND, 0)
    A.label(sk)
    ph(A, 2)
    base_iss = 0
    if kind == 'f2':
        A('buffer_load_dwordx4', v(RES, 4), v(L16), WS, sB, mods='offen sc1'); A.vm.pop(); base_iss = 1
        A('s_add_u32', sB, sB, UX)
    A('s_add_u32', sIN, sIN, istep)
    def pfpath(k0, per):
        issued = base_iss; nl_issued = 0
        for k in range(k0, nk):
            if k > k0: mm(k, nk - 1 - k + issued)
            for _ in range(per):
                if nl_issued <= k:
                    ld(nl_issued, sIN); nl_issued += 1; issued += 1
        while nl_issued < nk:
            ld(nl_issued, sIN); nl_issued += 1
    A('s_add_u32', sT2, sU, 1); A('s_cmp_gt_u32', sPROG, sT2); A('s_cselect_b32', sNX, 1, 0)
    A('s_cbranch_scc1', P + 'pf')
    flag_load(A); A.vm.pop()
    K1 = nk - 8
    for k in range(K0 + 1, K1 + 1): mm(k, nk - 1 - k + base_iss + 1)
    A('s_waitcnt', 'vmcnt(0)')
    flag_min(A, sPROG, lanes=nl)
    A('s_add_u32', sT2, sU, 1); A('s_cmp_gt_u32', sPROG, sT2); A('s_cselect_b32', sNX, 1, 0)
    A('s_cbranch_scc1', P + 'pf2')
    for k in range(K1 + 1, nk): mm(k, 0)
    A('s_branch', P + 'red')
    A.label(P + 'pf2')
    pfpath(K1, 2)
    A('s_branch', P + 'red')
    A.label(P + 'pf')
    pfpath(K0, 2)
    A.label(P + 'red')
    ph(A, 3)
    flag_load(A); A.vm.pop()
    for q in range(4):
        sk = A.newlabel(P + 'own')
        A('s_cmp_eq_u32', sW, q); A('s_cbranch_scc1', sk)
        A('ds_write_b128', v(LW), v(ACC + 8 * q, 4), mods=f'offset:{q*8192}'); A('ds_write_b128', v(LW), v(ACC + 8 * q + 4, 4), mods=f'offset:{q*8192+1024}')
        A('s_branch', sk + 'e')
        A.label(sk)
        for i in range(0, 8, 2): A('v_mov_b64', v(RT + 24 + i, 2), v(ACC + 8 * q + i, 2))
        A.label(sk + 'e')
    A('s_waitcnt', 'lgkmcnt(0)'); A('s_barrier')
    A('s_lshl_b32', sT2, sW, 11)
    for j in range(1, 4):
        A('s_xor_b32', sT3, sT2, j * 2048); A('v_add_u32', v(TM + j), sT3, v(LR))
        A('ds_read_b128', v(RT + 8 * (j - 1), 4), v(TM + j)); A('ds_read_b128', v(RT + 8 * (j - 1) + 4, 4), v(TM + j), mods='offset:1024')
    A('v_xor_b32', v(LW), 32768, v(LW)); A('v_xor_b32', v(LR), 32768, v(LR))
    A('s_waitcnt', 'lgkmcnt(0)')
    O = RT + 24
    for i in range(8):
        A('v_add_f32', v(RT + i), v(RT + i), v(RT + 8 + i)); A('v_add_f32', v(O + i), v(O + i), v(RT + 16 + i))
    for i in range(8): A('v_add_f32', v(O + i), v(O + i), v(RT + i))
    if kind == 'op':
        for i in range(4): A('v_cvt_pk_bf16_f32', v(RT + i), v(O + 2 * i), v(O + 2 * i + 1))
        A('buffer_store_dwordx4', v(RT, 4), v(L16), WS, sOUT_, mods='offen sc1')
    else:
        A('s_waitcnt', f'vmcnt({nk+1})')
        for i in range(4):
            A('v_cvt_pk_bf16_f32', v(RT + i), v(O + 2 * i), v(O + 2 * i + 1))
            A('v_lshlrev_b32', v(O + 2 * i), 16, v(RT + i)); A('v_and_b32', v(O + 2 * i + 1), '0xffff0000', v(RT + i))
            A('v_lshlrev_b32', v(RT + 8), 16, v(RES + i)); A('v_and_b32', v(RT + 9), '0xffff0000', v(RES + i))
            A('v_add_f32', v(O + 2 * i), v(O + 2 * i), v(RT + 8)); A('v_add_f32', v(O + 2 * i + 1), v(O + 2 * i + 1), v(RT + 9))
            A('v_cvt_pk_bf16_f32', v(RT + 4 + i), v(O + 2 * i), v(O + 2 * i + 1))
        l1 = A.newlabel(P + 'l1')
        A('s_cmp_lg_u32', sL, 0); A('s_cbranch_scc1', l1)
        local(A, lambda md: A('buffer_store_dwordx4', v(RT + 4, 4), v(L16), WS, sOUT_, mods=f'offen {md}'))
        A('s_branch', l1 + 'e')
        A.label(l1)
        A('buffer_store_dwordx4', v(RT + 4, 4), v(SA), SOUT, sC_, mods='offen')
        A('s_add_u32', sC_, sC_, 32 * 1280)
        A.label(l1 + 'e')
    ph(A, 4)
    A('s_add_u32', sOUT_, sOUT_, ostep)
    A('s_add_u32', sU, sU, 1); A('s_mov_b32', sPEND, 1)
    A('s_cmp_lg_u32', sNX, 0); A('s_cbranch_scc1', P + 'top')
    A('s_waitcnt', 'vmcnt(0)')
    publish(A, sU, loc=(kind == 'op')); flag_min(A, sPROG, lanes=nl); A('s_mov_b32', sPEND, 0)
    A('s_cmp_lt_u32', sU, NU); A('s_cbranch_scc1', P + 'fetch')
    A('s_endpgm')

def xlane_sum(A, r, t, rors):
    for sh in rors: A('v_add_f32_dpp', v(r), v(r), v(r), mods=f'row_ror:{sh} row_mask:0xf bank_mask:0xf')
    A('v_mov_b32', v(t), v(r)); A('v_permlane16_swap_b32', v(t), v(r)); A('v_add_f32', v(r), v(r), v(t))
    A('v_mov_b32', v(t), v(r)); A('v_permlane32_swap_b32', v(t), v(r)); A('v_add_f32', v(r), v(r), v(t))

def emit_ln(A, mode, ready, after=None):
    P = mode.upper() + '_'
    A.label(P + 'entry'); A.reset_counts()
    X, P0, P1, X1R, F, O = 44, 64, 104, 144, 164, 204
    VF, VP, LW = 32, 33, 34
    nl = {'ln0': 1, 'ln1': 10, 'lna': 20}[mode]
    step = 8 if mode == 'ln0' else 1
    common_setup(A, nl)
    A('v_lshrrev_b32', v(TM), 4, v(LN_)); A('v_and_b32', v(TM + 1), 15, v(LN_))
    A('v_lshlrev_b32', v(TM + 2), 9, v(TM)); A('v_lshl_add_u32', v(VF), v(TM + 1), 4, v(TM + 2))
    A('s_lshl_b32', sT0, sW, 2); A('v_add_u32', v(LW), sT0, v(L16))
    A('s_and_b32', sT3, sI, 1); A('s_lshl_b32', sT3, sT3, 8)
    A('s_mul_i32', sT2, sW, 20 * 512); A('s_add_u32', sT2, sT2, sT3)
    if mode == 'ln0':
        A('v_mul_u32_u24', v(TM + 2), 1280, v(TM + 1)); A('v_lshl_add_u32', v(VP), v(TM), 4, v(TM + 2))
        A('s_lshr_b32', sU, sI, 1); A('s_mul_i32', sT1, sU, UX); A('s_add_u32', sT2, sT2, sT1)
        A('s_add_u32', sB, sT2, XRES); A('s_add_u32', sOUT_, sT2, XN)
        A('s_mul_i32', sA, sT3, 80); A('s_add_u32', sA, sA, sT1); A('s_mul_i32', sT1, sW, 320); A('s_add_u32', sA, sA, sT1)
        A('s_mov_b32', sPROG, NU); A('s_mov_b32', 's78', sL); A('s_mov_b32', sL, 0)
        flag_out_addr(A, FL_XN); A('s_mov_b32', sL, 's78')
    elif mode == 'ln1':
        A('s_add_u32', sIN, sT2, XRES + LAYER_X); A('s_add_u32', sOUT_, sT2, XN + LAYER_X)
        A('s_mov_b32', sFI, FL_F2); A('s_mov_b32', sL, 1)
        flag_out_addr(A, FL_XN)
    else:
        A('s_mul_i32', sA, sL, LAYER_OP); A('s_add_u32', sA, sA, sT2); A('s_add_u32', sA, sA, OPART)
        A('s_mul_i32', sT1, sL, LAYER_X); A('s_add_u32', sT2, sT2, sT1)
        A('s_add_u32', sIN, sT2, XRES); A('s_add_u32', sOUT_, sT2, XN1); A('s_add_u32', sB, sT2, X1)
        A('s_mul_i32', sFI, sL, FL_LAYER); A('s_add_u32', sFI, sFI, FL_OP)
        flag_out_addr(A, FL_LNA)
    def f5(op, reg, base):
        for i in range(5):
            if i % 2 == 0: A('s_add_u32', sT3, base, i * 2048)
            A(op, v(reg + 4 * i, 4), v(VF), WS, sT3, mods=f'offen offset:{(i%2)*2048} sc1')
    nld = {'ln0': 5, 'ln1': 6, 'lna': 16}[mode]
    def loads():
        if mode == 'ln0':
            for i in range(5): A('buffer_load_dwordx4', v(X + 4 * i, 4), v(VP), SX, sA, mods=f'offen offset:{64*i}')
            A('s_add_u32', sA, sA, 8 * UX)
            return
        f5('buffer_load_dwordx4', X, sIN)
        if mode == 'lna':
            f5('buffer_load_dwordx4', P0, sA); A('s_add_u32', sA, sA, UP)
            f5('buffer_load_dwordx4', P1, sA); A('s_add_u32', sA, sA, UP)
        flag_load(A)
        A('s_add_u32', sIN, sIN, UX)
    a0, a1, tt = TM, TM + 2, TM + 4
    def xsum(region, mid=None):
        xlane_sum(A, a0, tt, [])
        A('ds_write_b32', v(LW), v(a0), mods=f'offset:{region}')
        if mid: mid()
        A('s_waitcnt', 'lgkmcnt(0)'); A('s_barrier')
        A('ds_read_b128', v(a0, 4), v(L16), mods=f'offset:{region}')
        A('s_waitcnt', 'lgkmcnt(0)')
        A('v_pk_add_f32', v(a0, 2), v(a0, 2), v(a0 + 2, 2)); A('v_add_f32', v(a0), v(a0), v(a0 + 1))
    ready(A)
    A.label(P + 'fetch')
    if mode != 'ln0': poll(A, P + 'p', sU, lanes=nl)
    loads()
    A.label(P + 'top')
    ph_dump(A); ph(A, 0)
    n = 20
    def unp(d, x):
        A('v_lshlrev_b32', v(d), 16, v(x)); A('v_and_b32', v(d + 1), '0xffff0000', v(x))
    fl = 0 if mode == 'ln0' else 1
    if mode == 'lna':
        A('s_waitcnt', 'vmcnt(6)')
        for i in range(n):
            unp(F + 2 * i, X + i); unp(TM + 6, P0 + i)
            A('v_pk_add_f32', v(F + 2 * i, 2), v(F + 2 * i, 2), v(TM + 6, 2))
    for i in range(n):
        if i % 4 == 0: A('s_waitcnt', f'vmcnt({4 - i//4 + fl})')
        if mode == 'lna':
            unp(TM + 6, P1 + i)
            A('v_pk_add_f32', v(F + 2 * i, 2), v(F + 2 * i, 2), v(TM + 6, 2))
            A('v_cvt_pk_bf16_f32', v(X1R + i), v(F + 2 * i), v(F + 2 * i + 1))
            unp(F + 2 * i, X1R + i)
        else:
            unp(F + 2 * i, X + i)
            if mode == 'ln0': A('v_mov_b32', v(X1R + i), v(X + i))
        if i == 1: A('v_pk_add_f32', v(a0, 2), v(F, 2), v(F + 2, 2))
        elif i > 1: A('v_pk_add_f32', v(a0, 2), v(a0, 2), v(F + 2 * i, 2))
    ph(A, 1)
    A('v_add_f32', v(a0), v(a0), v(a0 + 1))
    def pf():
        A('s_add_u32', sU, sU, step); A('s_mov_b32', sNX, 1)
        if mode != 'ln0':
            A('s_waitcnt', 'vmcnt(0)'); flag_min(A, sPROG, lanes=nl)
        A('s_cmp_gt_u32', sPROG, sU); A('s_cbranch_scc0', P + 'np')
        loads()
        A('s_branch', P + 'pe')
        A.label(P + 'np')
        A('s_mov_b32', sNX, 0)
        A.label(P + 'pe')
    xsum(0, pf)
    A('v_mul_f32', v(a0), hex(f32bits(-1.0 / 640)), v(a0)); A('v_mov_b32', v(a0 + 1), v(a0))
    for i in range(n):
        A('v_pk_add_f32', v(F + 2 * i, 2), v(F + 2 * i, 2), v(a0, 2))
        if i == 0: A('v_pk_mul_f32', v(a1, 2), v(F, 2), v(F, 2))
        else: A('v_pk_fma_f32', v(a1, 2), v(F + 2 * i, 2), v(F + 2 * i, 2), v(a1, 2))
    A('v_add_f32', v(a0), v(a1), v(a1 + 1))
    def st1():
        if mode != 'ln1':
            f5('buffer_store_dwordx4', X1R, sB); A('s_add_u32', sB, sB, step * UX)
    xsum(1024, st1)
    A('v_mov_b32', v(a1), hex(f32bits(1e-5))); A('v_fmac_f32', v(a1), hex(f32bits(1.0 / 640)), v(a0))
    A('v_rsq_f32', v(a0), v(a1)); A('v_mov_b32', v(a0 + 1), v(a0))
    for i in range(n):
        A('v_pk_mul_f32', v(F + 2 * i, 2), v(F + 2 * i, 2), v(a0, 2))
        A('v_cvt_pk_bf16_f32', v(O + i), v(F + 2 * i), v(F + 2 * i + 1))
        if i % 4 == 3:
            k = i // 4
            if k % 2 == 0: A('s_add_u32', sT3, sOUT_, k * 2048)
            A('buffer_store_dwordx4', v(O + 4 * k, 4), v(VF), WS, sT3, mods=f'offen offset:{(k%2)*2048} sc1')
    ph(A, 2)
    A('s_add_u32', sOUT_, sOUT_, step * UX)
    A('s_cmp_lg_u32', sNX, 0); A('s_cbranch_scc1', P + 'pub')
    if mode != 'ln0': flag_load(A)
    A('s_waitcnt', 'vmcnt(0)')
    publish(A, sU)
    if mode != 'ln0': flag_min(A, sPROG, lanes=nl)
    A('s_cmp_lt_u32', sU, NU); A('s_cbranch_scc1', P + 'fetch')
    A('s_branch', P + 'end')
    A.label(P + 'pub')
    A('s_waitcnt', 'vmcnt(0)')
    ph(A, 3)
    publish(A, sU)
    A('s_branch', P + 'top')
    A.label(P + 'end')
    if after: after()
    else: A('s_endpgm')

def emit_att(A, ready):
    P = 'ATT_'
    A.label(P + 'entry'); A.reset_counts()
    Q, K, V, KMR, VMR, S, PB, O = 64, 96, 128, 160, 176, 184, 208, 224
    FRK, L8, SA, NEG, ZR = 32, 33, 34, 35, 36
    sCH, sFC, sKMo, sSC = 's74', 's75', 's76', 's77'
    msk = ['s[80:81]', 's[82:83]', 's[84:85]', 's[86:87]']
    common_setup(A, 3)
    g, n = TM, TM + 1
    A('v_lshrrev_b32', v(g), 4, v(LN_)); A('v_and_b32', v(n), 15, v(LN_))
    A('v_and_b32', v(TM + 2), 13, v(n)); A('v_and_b32', v(TM + 3), 1, v(g)); A('v_lshl_or_b32', v(TM + 2), v(TM + 3), 1, v(TM + 2))
    A('v_lshlrev_b32', v(TM + 2), 4, v(TM + 2)); A('v_lshrrev_b32', v(TM + 3), 1, v(g)); A('v_lshl_add_u32', v(FRK), v(TM + 3), 8, v(TM + 2))
    A('v_lshlrev_b32', v(L8), 3, v(LN_))
    A('v_lshlrev_b32', v(TM + 2), 9, v(g)); A('v_lshl_add_u32', v(SA), v(n), 4, v(TM + 2))
    for r in range(4):
        A('v_lshl_add_u32', v(TM + 2), v(g), 2, r); A('v_cmp_le_u32', msk[r], v(TM + 2), v(n))
    A('v_mov_b32', v(NEG), hex(f32bits(-1e9 * 128 ** 0.5))); A('v_mov_b32', v(ZR), 0)
    A('s_lshl_b32', sT2, sI, 2); A('s_add_u32', sT2, sT2, sW)
    A('s_mul_i32', sT3, sL, LAYER_F); A('s_lshl_b32', sT1, sT2, 13); A('s_add_u32', sT3, sT3, sT1)
    A('s_add_u32', sIN, sT3, KF); A('s_add_u32', sOUT_, sT3, OF)
    A('s_mul_i32', sKMo, sL, LAYER_KM); A('s_lshl_b32', sT1, sT2, 12); A('s_add_u32', sKMo, sKMo, sT1); A('s_add_u32', sKMo, sKMo, KM)
    A('s_mul_i32', sT3, sL, FL_LAYER)
    A('s_lshr_b32', sT1, sT2, 1); A('s_mul_i32', sT1, sT1, 384); A('s_add_u32', sFI, sT3, sT1); A('s_and_b32', sT1, sT2, 1); A('s_lshl_b32', sT1, sT1, 3)
    A('s_add_u32', sFI, sFI, sT1); A('s_add_u32', sFI, sFI, FL_QKV)
    A('s_lshl_b32', sT1, sT2, 7); A('s_add_u32', sFC, sT3, sT1); A('s_add_u32', sFC, sFC, FL_CH)
    A('s_mov_b32', sCH, 0); A('s_mov_b32', sSC, hex(f32bits(128 ** -0.5 * 1.4426950408889634)))
    flag_out_addr(A, FL_ATT)
    ready(A)
    def ld8(reg, base, delta):
        for i in range(8):
            if i % 4 == 0: A('s_add_u32', sT3, base, delta + i * 1024)
            A('buffer_load_dwordx4', v(reg + 4 * i, 4), v(L16), WS, sT3, mods=f'offen offset:{(i%4)*1024} sc1')
    A.label(P + 'fetch')
    poll(A, P + 'p', sU, n=2, lanes=3)
    ld8(Q, sIN, QF - KF); ld8(K, sIN, 0); ld8(V, sIN, VT - KF)
    A.label(P + 'top')
    A('s_waitcnt', 'vmcnt(8)')
    A.reset_counts()
    sreg = {(0, 'm'): S, (0, 0): S + 4, (1, 'm'): S + 8, (1, 0): S + 12, (1, 1): S + 16}
    for kp in range(4):
        for qt, kt in ((0, 0), (1, 0), (1, 1)):
            r = v(sreg[(qt, kt)], 4)
            A('v_mfma_f32_16x16x32_bf16', r, v(K + 16 * kt + 4 * kp, 4), v(Q + 16 * qt + 4 * kp, 4), '0' if kp == 0 else r)
    for base in (sreg[(0, 0)], sreg[(1, 1)]):
        for r in range(4): A('v_cndmask_b32', v(base + r), v(NEG), v(base + r), msk[r])
    A('s_mov_b32', sSPIN, 0)
    A.label(P + 'km')
    for kp in range(4): A('buffer_load_dwordx4', v(KMR + 4 * kp, 4), v(FRK), WS, sKMo, mods=f'offen offset:{1024*kp} sc1', tag=('km', kp))
    for w_ in range(4): A('buffer_load_dwordx2', v(VMR + 2 * w_, 2), v(L8), WS, sKMo, mods=f'offen offset:{1024*w_+512} sc1', tag='vm')
    flag_load(A, n=2)
    regs = [KMR + i for i in range(24)]
    for kp in range(4):
        A.wait(vm=[('km', kp)])
        for qt in range(2):
            r = v(sreg[(qt, 'm')], 4)
            A('v_mfma_f32_16x16x32_bf16', r, v(KMR + 4 * kp, 4), v(Q + 16 * qt + 4 * kp, 4), '0' if kp == 0 else r)
            for i in range(2):
                x = KMR + 4 * kp + 2 * qt + i
                A('v_pk_max_u16', v(TM + 8), v(x), v(x) if x == KMR else v(TM + 8))
    A.wait(vm=0)
    for i in range(8): A('v_pk_max_u16', v(TM + 8), v(VMR + i), v(TM + 8))
    A('v_pk_max_u16', v(TM + 8), v(TM + 8), v(TM + 8), mods='op_sel:[0,1] op_sel_hi:[1,0]')
    A('v_cmp_le_u32', 'vcc', '0xff810000', v(TM + 8))
    A('s_cbranch_vccz', P + 'kmok')
    A('s_cmp_lg_u32', sDEAD, 0); A('s_cbranch_scc1', P + 'kmok')
    A('v_mov_b32', v(TM + 8), -1)
    for r_ in regs:
        A('v_xor_b32', v(TM + 9), hex(SENT), v(r_)); A('v_pk_min_u16', v(TM + 8), v(TM + 8), v(TM + 9))
    A('v_pk_min_u16', v(TM + 8), v(TM + 8), v(TM + 8), mods='op_sel:[0,1] op_sel_hi:[1,0]')
    A('v_cmp_eq_u32', 'vcc', 0, v(TM + 8))
    A('s_cbranch_vccz', P + 'kmok')
    A('s_add_u32', sSPIN, sSPIN, 1); A('s_cmp_lt_u32', sSPIN, 4 * SPIN_MAX); A('s_cbranch_scc1', P + 'km')
    A('s_mov_b32', sDEAD, 1)
    A.label(P + 'kmok')
    A('s_add_u32', sKMo, sKMo, 32 * 4096)
    flag_min(A, sPROG, n=2, lanes=3)
    A('s_add_u32', sT2, sU, 1); A('s_cmp_gt_u32', sPROG, sT2); A('s_cselect_b32', sNX, 1, 0)
    A('s_add_u32', sIN, sIN, 32 * 8192); A('s_cmp_eq_u32', sNX, 0); A('s_cbranch_scc1', P + 'nq')
    ld8(Q, sIN, QF - KF); ld8(K, sIN, 0)
    A.label(P + 'nq')
    for qt in range(2):
        m_ = sreg[(qt, 'm')]
        vals = [m_, m_ + 1] + [sreg[(qt, 0)] + i for i in range(4 + 4 * qt)]
        mx, tm, sm = TM, TM + 1, TM + 2 + qt
        A('v_max3_f32', v(mx), v(vals[0]), v(vals[1]), v(vals[2])); A('v_max3_f32', v(tm), v(vals[3]), v(vals[4]), v(vals[5]))
        if qt:
            A('v_max3_f32', v(mx), v(mx), v(vals[6]), v(vals[7])); A('v_max3_f32', v(tm), v(tm), v(vals[8]), v(vals[9]))
        A('v_max_f32', v(mx), v(mx), v(tm)); A('v_mov_b32', v(tm), v(mx))
        A('v_permlane32_swap_b32', v(tm), v(mx)); A('v_max_f32', v(mx), v(mx), v(tm)); A('v_mov_b32', v(tm), v(mx))
        A('v_permlane16_swap_b32', v(tm), v(mx)); A('v_max_f32', v(mx), v(mx), v(tm))
        A('v_mul_f32', v(mx), sSC, v(mx))
        for r in vals: A('v_fma_f32', v(r), v(r), sSC, '-' + v(mx))
        for r in vals: A('v_exp_f32', v(r), v(r))
        pb = PB + 8 * qt
        for i in range(2 + 2 * qt): A('v_cvt_pk_bf16_f32', v(pb + i), v(vals[2 + 2 * i]), v(vals[3 + 2 * i]))
        if qt == 0: A('v_mov_b64', v(pb + 2, 2), 0)
        A('v_cvt_pk_bf16_f32', v(pb + 4), v(m_), v(m_ + 1)); A('v_mov_b32', v(pb + 5), 0); A('v_mov_b32', v(pb + 6), 0); A('v_mov_b32', v(pb + 7), v(pb + 4))
        A('v_add_f32', v(sm), v(vals[0]), v(vals[1]))
        for r in vals[2:]: A('v_add_f32', v(sm), v(sm), v(r))
        xlane_sum(A, sm, tm, [])
        A('v_rcp_f32', v(sm), v(sm))
    for qt in range(2):
        pb = PB + 8 * qt; sm = TM + 2 + qt
        for et in range(8):
            A('v_mfma_f32_16x16x32_bf16', v(O + 4 * et, 4), v(V + 4 * et, 4), v(pb, 4), '0')
        for et in range(8):
            A('v_mfma_f32_16x16x16_bf16', v(O + 4 * et, 4), v(VMR + 2 * (et >> 1), 2), v(pb + 4 + 2 * (et & 1), 2), v(O + 4 * et, 4))
        for p in range(4):
            st = S + 4 * (p & 1) + 8 * qt if False else KMR + 4 * p
            for i in range(8): A('v_mul_f32', v(O + 8 * p + i), v(O + 8 * p + i), v(sm))
            for i in range(4): A('v_cvt_pk_bf16_f32', v(st + i), v(O + 8 * p + 2 * i), v(O + 8 * p + 2 * i + 1))
            if p % 2 == 0: A('s_add_u32', sT3, sOUT_, p * 2048)
            local(A, lambda md: A('buffer_store_dwordx4', v(st, 4), v(SA), WS, sT3, mods=f'offen offset:{(p%2)*2048 + qt*256} {md}'))
    A('s_add_u32', sOUT_, sOUT_, 32 * 8192); A('s_add_u32', sU, sU, 1)
    A('s_cmp_eq_u32', sNX, 0); A('s_cbranch_scc1', P + 'nv')
    ld8(V, sIN, VT - KF)
    A('s_waitcnt', 'vmcnt(8)')
    publish(A, sU, loc=True)
    A('s_branch', P + 'top')
    A.label(P + 'nv')
    A('s_waitcnt', 'vmcnt(0)')
    publish(A, sU, loc=True)
    A('s_cmp_lt_u32', sU, NU); A('s_cbranch_scc1', P + 'fetch')
    A('s_endpgm')
```

```python
from asmgen import *
from layout import *
import os, struct
def env(n, d=0): return int(os.environ.get(n, d))
X_NOADV, X_NOFLAG, X_NOPUB, X_NOPF = env('X_NOADV'), env('X_NOFLAG'), env('X_NOPUB'), env('X_NOPF')
RDELAY, GDELAY = env('RDELAY', 9), env('GDELAY', 30)
PUBAT = env('PUBAT', 8)
RGAP = env('RGAP', 6)
KVMOD = os.environ.get('KVMOD', 'sc1')

WS = 's[8:11]'; SQ = 's[12:15]'; SK = 's[16:19]'; SV = 's[20:23]'; SO = 's[24:27]'; SX = 's[28:31]'; SM0 = 's[32:35]'
SW1 = 's[36:39]'; SW2 = 's[40:43]'; SOUT = 's[44:47]'; SDBG = 's[48:51]'
sW, sH, sC, sS = 's52', 's53', 's54', 's55'
sMEMc, sMEMo, sPST, sPLD, sPLD1, sSTR, sVT, sKF, sKM, sTAG, sFLO, sPROG, sSPIN, sDEAD = ['s%d' % i for i in range(56, 70)]
sT0, sT1, sT2, sT3 = 's70', 's71', 's72', 's73'
sDMEM, sPST1, sPST2, sXX, sFIN, sSCALE = 's74', 's75', 's76', 's77', 's78', 's79'

sPSTS = [sPST, sPST1, sPST2, sXX, 's4']
sSTRS = [sSTR, 's3', 's5', 's6', 's7']
sPFK, sPFV, sFOV = 's36', 's37', 's38'
L_MEM = 0; L_QB = 10240; L_KB = 12288; L_VM = 14336; L_KX = 16384; L_O = L_KX; L_W = 24576
UNITS = [9, 8, 8, 9]
L_WBASE = [L_W + 4096 * sum(UNITS[:w]) for w in range(4)]
NSTR = [8, 10, 10, 9]
LANE16, IDX, RDEST, KW, PST2, QKW, FR, LDSW = range(8)
AQK = 8; AV = 24; AW = 32; SL = [40, 48, 56, 64, 72]; RES0 = 80
SPIN_MAX = 1 << 16
STAMPS = ['top', 'b1', 0, 'b2', 'sc', 2, 3, 4, 'r1', 5, 'start']
if env('ACKT'): STAMPS = ['top', 'b1', 0, 'b2', 'sc', 2, 3, 4, 'ack', 5, 'start']
if env('STAMPSET') == 1: STAMPS = ['top', 2, 'p1', 'p2', 'p3', 'p4', 3, 'o4', 'o10', 'o16', 'start']
if env('STAMPSET') == 2: STAMPS = ['top', 'q8', 'q16', 'q24', 'q32', 0, 'sc', 's1', 's2', 2, 'start']

def f32bits(x):
    return struct.unpack('<I', struct.pack('<f', x))[0]

def tstamp(A, sfo, val, tmp):
    A('s_memrealtime', 's[90:91]')
    if env('CLK'): A('s_memtime', 's[86:87]')
    A('s_lshr_b32', 's92', sfo, 7); A('s_lshl_b32', 's92', 's92', 2); A('s_bfe_u32', 's93', sfo, 0x20002); A('s_add_u32', 's92', 's92', 's93')
    A('s_lshl_b32', 's92', 's92', 9); A('s_lshl_b32', 's93', val, 2); A('s_add_u32', 's92', 's92', 's93'); A('s_add_u32', 's92', 's92', DBGT + (1 << 20))
    A('s_waitcnt', 'lgkmcnt(0)')
    A('v_mov_b32', v(tmp), 's90')
    if env('CLK'):
        A('s_bitcmp1_b32', val, 0); A('s_cselect_b32', 's90', 's86', 's90'); A('v_mov_b32', v(tmp), 's90')
    A('buffer_store_dword', v(tmp), 'off', WS, 's92'); A.vm.pop()

KOWN = [0, 3, 6, 8]; NOWN = [3, 3, 2, 2]
def korder(w):
    return [(KOWN[w] + j) % 10 for j in range(10)]

def frag_plan(w):
    qk = []
    for j in range(10):
        qk += [('q', j, 0), ('q', j, 1), ('k', j, 0), ('k', j, 1)]
    qslot = {0: 0, 1: 1, 2: 2, 3: 3, 4: 4, 10: 2, 11: 3, 16: 4, 17: 2, 22: 3, 23: 4, 28: 2, 29: 3, 34: 4, 35: 2}
    qfill = [(2, 1, 2, 10), (4, 1, 3, 11), (6, 2, 4, 16), (10, 0, 2, 17), (12, 1, 3, 22), (16, 0, 4, 23), (18, 2, 2, 28), (22, 0, 3, 29), (24, 1, 4, 34), (28, 0, 2, 35)]
    oo = []
    for p in range(5):
        oo += [('o', 0, 2 * p), ('o', 0, 2 * p + 1), ('o', 1, 2 * p), ('o', 1, 2 * p + 1)]
    OV = env('OVAR', 3)
    ab, cd, e_ = [([0, 6, 12, 18], 2, 9), ([4, 10, 14, 18], 6, 9), ([6, 10, 14, 18], 8, 13), ([4, 10, 14, 18], 2, 9), ([2, 8, 14, 18], 4, 7)][OV]
    oslot = {cd: 4, cd + 1: 0, e_: 1}
    for x in ab: oslot[x] = 2; oslot[x + 1] = 3
    opre = sorted([ab[0], ab[0] + 1, cd, cd + 1])
    streams = [qk[0], qk[1], qk[4]] + [oo[i] for i in opre] + [oo[e_]]
    ldsf = [qk[i] for i in (10, 11, 16, 17, 22, 23, 28, 29, 34, 35)] + [oo[x + i] for x in ab[1:] for i in range(2)]
    if w in (1, 2): streams += [qk[2], qk[3]]
    else: ldsf += [qk[2], qk[3]]
    if w == 3:
        streams += [qk[25]]; qslot[25] = 0; qfill += [(0, 1, 0, 25)]
    assert len(streams) == NSTR[w] and len(ldsf) == 2 * UNITS[w]
    return qk, qslot, qfill, oo, oslot, ab, cd, e_, opre, streams, ldsf

sMODE = 's96'
def emit_chain_wave(A, w, ready, modes=('', 'sc1'), dbg=False, nsteps=64):
    L = lambda nm: f'CH{w}_{nm}'
    KO = korder(w)
    qk, qslot, qfill, oo, oslot, ab, cd, e_, opre, streams, ldsf = frag_plan(w)
    allf = qk + [('v', j, t) for j in range(10) for t in range(2)] + oo
    res = [f for f in allf if f not in streams and f not in ldsf]
    assert len(res) == (54 if w < 3 else 53), len(res)
    resreg = {f: (RES0 if w < 3 else RES0 + 8) + 8 * i for i, f in enumerate(res)}
    XR = RES0
    strm_idx = {f: i for i, f in enumerate(streams)}
    unit_of = lambda f: (f[0], f[1], f[2] >> 1)
    for i in range(0, len(ldsf), 2):
        assert unit_of(ldsf[i]) == unit_of(ldsf[i + 1]), (ldsf[i], ldsf[i + 1])
    lds_units = [unit_of(ldsf[i]) for i in range(0, len(ldsf), 2)]
    lds_off = {}
    for i, u in enumerate(lds_units):
        for t in range(2):
            lds_off[(u[0], u[1], 2 * u[2] + t)] = i * 4096 + t * 2048
    groups = [[0, 1], [2], [3], [4]][w]
    ng = len(groups)

    def half_fill(slot, f, hf):
        r = SL[slot] + 4 * hf
        tag = ('F', f)
        if f in lds_off:
            A('ds_read_b128', v(r, 4), v(LDSW), mods=f'offset:{lds_off[f] + 1024*hf}', tag=tag)
        else:
            i = strm_idx[f]
            so = sSTRS[i >> 1]
            A('buffer_load_dwordx4', v(r, 4), v(LANE16), WS, so, mods=f'offen offset:{(i&1)*2048 + 1024*hf}', tag=tag)
    def fill(slot, f):
        half_fill(slot, f, 0); half_fill(slot, f, 1)
    def smf(acc, areg, f, slot):
        if slot is None:
            b = R(resreg[f], 8)
        else:
            if f in lds_off: A.wait(lg=[('F', f)])
            else: A.wait(vm=[('F', f)])
            b = v(SL[slot], 8)
        A('v_smfmac_f32_16x16x64_bf16', v(acc, 4), v(areg, 4), b, v(IDX))
    def add2(d, a_, b_):
        A('v_add_f32', v(d), v(a_), v(b_)); A('v_add_f32', v(d + 1), v(a_ + 1), v(b_ + 1))

    A.label(L('entry'))
    A.reset_counts()
    T = [SL[0] + i for i in range(40)]
    ln = T[0]; g = T[1]; c = T[2]
    A('v_and_b32', v(ln), 63, 'v0')
    A('v_lshlrev_b32', v(LANE16), 4, v(ln))
    A('v_lshrrev_b32', v(g), 4, v(ln)); A('v_and_b32', v(c), 15, v(ln))
    A('v_and_b32', v(T[3]), 2, v(ln)); A('v_cmp_ne_u32', 'vcc', 0, v(T[3]))
    A('v_mov_b32', v(T[4]), '0x4444'); A('v_mov_b32', v(T[5]), '0xeeee'); A('v_cndmask_b32', v(IDX), v(T[4]), v(T[5]), 'vcc')
    A('v_and_b32', v(T[3]), 13, v(c)); A('v_and_b32', v(T[4]), 1, v(g)); A('v_lshl_or_b32', v(T[3]), v(T[4]), 1, v(T[3]))
    A('v_lshlrev_b32', v(T[3]), 4, v(T[3])); A('v_lshrrev_b32', v(T[4]), 1, v(g)); A('v_lshl_add_u32', v(FR), v(T[4]), 8, v(T[3]))
    A('v_lshrrev_b32', v(T[3]), 3, v(c)); A('v_lshlrev_b32', v(T[3]), 8, v(T[3]))
    A('v_lshl_add_u32', v(T[3]), v(g), 6, v(T[3]))
    A('v_bfe_u32', v(T[4]), v(c), 2, 1); A('v_lshl_add_u32', v(T[3]), v(T[4]), 5, v(T[3]))
    A('v_and_b32', v(T[4]), 3, v(c)); A('v_lshl_add_u32', v(T[3]), v(T[4]), 2, v(T[3]))
    A('v_add_u32', v(QKW), L_QB + w * 512, v(T[3]))
    A('v_add_u32', v(LDSW), L_WBASE[w], v(LANE16))
    A('v_add_u32', v(KW), L_KB - L_QB, v(QKW))
    A('s_mov_b32', sT0, PIECE)
    A('v_lshrrev_b32', v(T[3]), 3, v(c)); A('v_lshl_add_u32', v(T[3]), v(T[3]), 2, v(g)); A('v_mul_lo_u32', v(T[3]), v(T[3]), sT0)
    A('v_and_b32', v(T[4]), 7, v(c)); A('v_lshl_add_u32', v(PST2), v(T[4]), 3, v(T[3]))
    A('s_mul_i32', sT0, sH, 5); A('s_add_u32', sT0, sT0, groups[0])
    A('v_lshrrev_b32', v(T[3]), 3, v(c)); A('v_add_u32', v(T[3]), sT0, v(T[3]))
    A('v_and_b32', v(T[9]), 3, v(c)); A('v_lshlrev_b32', v(T[9]), 4, v(T[9]))
    A('v_lshl_add_u32', v(T[9]), v(g), 2, v(T[9]))
    A('v_bfe_u32', v(T[8]), v(c), 2, 1); A('v_lshl_add_u32', v(T[9]), v(T[8]), 1, v(T[9]))
    A('v_lshl_add_u32', v(RDEST), v(T[3]), 6, v(T[9]))
    if ng == 1:
        A('v_mov_b32', v(T[6]), '0x40000000'); A('v_cmp_lt_u32', 'vcc', 7, v(c)); A('v_cndmask_b32', v(RDEST), v(RDEST), v(T[6]), 'vcc')
    if w == 3:
        A('v_lshlrev_b32', v(XR + 3), 7, v(ln))
        A('v_mov_b64', v(XR + 6, 2), 0)
        A('v_mov_b32', v(T[6]), '0x40000000'); A('v_cmp_gt_u32', 'vcc', 2, v(ln)); A('v_cndmask_b32', v(XR + 5), v(T[6]), v(XR + 3), 'vcc')
        A('v_cmp_gt_u32', 'vcc', 1, v(ln)); A('v_cndmask_b32', v(XR + 2), v(T[6]), v(XR + 3), 'vcc')
    A('s_mul_i32', sT0, sC, 2 * MEMB_SZ); A('s_add_u32', sMEMc, sT0, MEMB); A('s_add_u32', sMEMo, sMEMc, MEMB_SZ)
    A('s_xor_b32', sDMEM, sMEMc, sMEMo)
    A('s_mul_i32', sT0, sC, PART_SZ); A('s_add_u32', sT0, sT0, PART)
    A('s_lshl_b32', sT1, sH, 6); A('s_add_u32', sPST, sT0, sT1); A('s_add_u32', sPST, sPST, 8 * w * PIECE)
    for p in range(1, 5): A('s_add_u32', sPSTS[p], sPST, 32 * p * PIECE)
    A('s_mul_i32', sT1, sH, 5 * PIECE); A('s_add_u32', sPLD, sT1, sT0); A('s_add_u32', sPLD, sPLD, groups[0] * PIECE)
    A('s_add_u32', sPLD1, sPLD, PIECE)
    A('s_mov_b32', sTAG, 0)
    A('s_lshl_b32', sT0, sC, 5); A('s_add_u32', sT0, sT0, sH)
    A('s_mul_i32', sSTR, sT0, STRM_H); A('s_add_u32', sSTR, sSTR, STRM + 2048 * sum(NSTR[:w]))
    for i in range(1, 5): A('s_add_u32', sSTRS[i], sSTR, 4096 * i)
    A('s_mul_i32', sT0, sC, LAYER_F); A('s_lshl_b32', sT1, sH, 13); A('s_add_u32', sT0, sT0, sT1)
    A('s_add_u32', sVT, sT0, VT + w * 2048); A('s_add_u32', sKF, sT0, KF + w * 2048)
    A('s_mul_i32', sT0, sC, LAYER_KM); A('s_lshl_b32', sT1, sH, 12); A('s_add_u32', sT0, sT0, sT1); A('s_add_u32', sKM, sT0, KM + 1024 * w - 32 * 4096)
    A('s_mul_i32', sT0, sC, FL_LAYER); A('s_lshr_b32', sT1, sH, 1); A('s_mul_i32', sT1, sT1, 3 * 128); A('s_add_u32', sFIN, sT0, sT1); A('s_add_u32', sFIN, sFIN, FL_QKV + 128)
    A('s_and_b32', sT1, sH, 1); A('s_lshl_b32', sT1, sT1, 3); A('s_add_u32', sFIN, sFIN, sT1)
    A('s_lshl_b32', sT1, sH, 7); A('s_add_u32', sFLO, sT0, sT1); A('s_add_u32', sFLO, sFLO, FL_CH)
    A('s_mov_b32', sS, 0); A('s_mov_b32', sPROG, 0); A('s_mov_b32', sDEAD, 0)
    A('s_mov_b32', sSCALE, hex(f32bits(128 ** -0.5 * 1.4426950408889634)))

    SRCQ, SRCO1, SRCO2, TRN, TRO1, TRO2 = AW, AW + 1, AW + 2, AW + 3, AW + 4, AW + 5
    r16 = T[3]; ch = T[4]
    A('v_lshrrev_b32', v(r16), 2, v(ln)); A('v_and_b32', v(ch), 3, v(ln))
    A('v_bfe_u32', v(T[5]), v(r16), 1, 1); A('v_lshlrev_b32', v(T[5]), 3, v(T[5]))
    A('v_bfe_u32', v(T[6]), v(r16), 2, 2); A('v_lshl_add_u32', v(T[5]), v(T[6]), 1, v(T[5]))
    A('v_and_b32', v(T[6]), 1, v(r16)); A('v_add_u32', v(T[5]), v(T[5]), v(T[6]))
    A('v_lshlrev_b32', v(T[5]), 13, v(T[5]))
    A('v_bfe_u32', v(T[6]), v(r16), 3, 1); A('v_lshlrev_b32', v(T[6]), 1, v(T[6])); A('v_xor_b32', v(T[6]), v(ch), v(T[6]))
    A('v_lshl_add_u32', v(T[5]), v(T[6]), 4, v(T[5]))
    A('s_lshl_b32', sT0, sH, 8); A('s_add_u32', sT0, sT0, w * 64); A('v_add_u32', v(SRCQ), sT0, v(T[5]))
    A('v_bfe_u32', v(T[5]), v(r16), 3, 1); A('v_lshlrev_b32', v(T[5]), 4, v(T[5]))
    A('v_bfe_u32', v(T[6]), v(r16), 1, 1); A('v_lshl_add_u32', v(T[5]), v(T[6]), 2, v(T[5]))
    A('v_bfe_u32', v(T[6]), v(r16), 2, 1); A('v_lshl_add_u32', v(T[5]), v(T[6]), 1, v(T[5]))
    A('v_and_b32', v(T[6]), 1, v(r16)); A('v_add_u32', v(T[5]), v(T[5]), v(T[6]))
    A('v_mul_u32_u24', v(T[5]), 1280, v(T[5]))
    A('s_mul_i32', sT0, sH, 163840); A('s_add_u32', sT0, sT0, w * 64); A('v_add_u32', v(T[5]), sT0, v(T[5]))
    A('v_lshl_add_u32', v(SRCO1), v(ch), 5, v(T[5]))
    A('v_lshl_add_u32', v(SRCO2), v(ch), 4, v(T[5]))
    A('v_bfe_u32', v(T[5]), v(ln), 2, 2); A('v_lshl_add_u32', v(T[5]), v(g), 3, v(T[5])); A('v_lshlrev_b32', v(T[5]), 6, v(T[5]))
    A('v_add_u32', v(T[5]), L_WBASE[w], v(T[5]))
    A('v_and_b32', v(T[6]), 1, v(g)); A('v_lshl_add_u32', v(T[6]), v(T[6]), 5, v(T[5])); A('v_lshl_add_u32', v(TRN), v(ch), 3, v(T[6]))
    A('v_xor_b32', v(TRN + 3), 32, v(TRN))
    A('v_lshl_add_u32', v(TRO1), v(ch), 4, v(T[5]))
    A('v_lshrrev_b32', v(T[6]), 1, v(ch)); A('v_lshl_add_u32', v(T[6]), v(T[6]), 5, v(T[5]))
    A('v_and_b32', v(T[7]), 1, v(ch)); A('v_lshl_add_u32', v(TRO2), v(T[7]), 3, v(T[6]))
    CS, CO, CT = AQK, AQK + 1, AQK + 2
    rr = T[5]; ck = T[6]
    A('v_lshlrev_b32', v(ck), 1, v(g)); A('v_xor_b32', v(ck), v(ck), v(c)); A('v_lshlrev_b32', v(ck), 4, v(ck))
    A('v_lshrrev_b32', v(rr), 1, v(g)); A('v_lshlrev_b32', v(rr), 3, v(rr)); A('v_and_b32', v(T[7]), 1, v(g)); A('v_add_u32', v(rr), v(rr), v(T[7]))
    A('v_lshlrev_b32', v(rr), 13, v(rr)); A('s_lshl_b32', sT0, sH, 8); A('v_add3_u32', v(CS), v(rr), v(ck), sT0); A('v_xor_b32', v(CS + 6), 128, v(CS))
    A('v_lshrrev_b32', v(rr), 1, v(g)); A('v_lshlrev_b32', v(rr), 2, v(rr)); A('v_add_u32', v(rr), v(rr), v(T[7]))
    A('v_mul_u32_u24', v(rr), 1280, v(rr)); A('s_mul_i32', sT0, sH, 163840); A('v_add3_u32', v(CO), v(rr), v(ck), sT0); A('v_xor_b32', v(CO + 6), 128, v(CO))
    A('v_bfe_u32', v(rr), v(ln), 2, 2); A('v_lshl_add_u32', v(T[8]), v(T[7]), 2, v(rr)); A('v_lshlrev_b32', v(T[8]), 5, v(T[8]))
    A('v_lshl_add_u32', v(rr), v(g), 3, v(rr)); A('v_lshlrev_b32', v(rr), 8, v(rr)); A('v_add_u32', v(rr), L_W, v(rr))
    for t in range(2):
        A('v_lshl_add_u32', v(T[9]), v(ch), 3, 64 * w + 32 * t) if 64 * w + 32 * t <= 64 else (A('v_lshlrev_b32', v(T[9]), 3, v(ch)), A('v_add_u32', v(T[9]), 64 * w + 32 * t, v(T[9])))
        A('v_xor_b32', v(T[9]), v(T[9]), v(T[8])); A('v_add_u32', v(CT + t), v(T[9]), v(rr))
        A('v_lshrrev_b32', v(T[9]), 1, v(ch)); A('v_lshlrev_b32', v(T[9]), 5, v(T[9])); A('v_and_b32', v(T[10]), 1, v(ch)); A('v_lshl_add_u32', v(T[9]), v(T[10]), 3, v(T[9]))
        A('v_add_u32', v(T[9]), 64 * w + 16 * t, v(T[9]))
        A('v_xor_b32', v(T[9]), v(T[9]), v(T[8])); A('v_add_u32', v(CT + 2 + t), v(T[9]), v(rr))
    for t in range(4): A('v_add_u32', v(CT + 6 + t), 65536, v(CT + t))
    stages = [(X, k, 0) for X in 'qkv' for k in range(10)] + [('o', kp, p) for kp in range(2) for p in range(5)]
    def mine(st, ww):
        X, k, p = st
        return (X, korder(ww).index(k), 0) if X != 'o' else st
    nl_ = {st: sum(1 for ww in range(4) if any(unit_of(f) == mine(st, ww) for f in frag_plan(ww)[10])) for st in stages}
    stages = sorted([st for st in stages if nl_[st] < 4], key=lambda st: nl_[st])
    def cdma(n):
        X, k, p = stages[n]
        for ii in range(4):
            A('s_mov_b32', 'm0', L_W + (n % 8) * 16384 + w * 4096 + ii * 1024)
            if X == 'o':
                A('s_mov_b32', sT0, (64 * k + 32 * (w >> 1) + 8 * (w & 1) + 16 * (ii >> 1) + 2 * (ii & 1)) * 1280 + 256 * p)
                A('buffer_load_dwordx4', v(CO + 6 * (ii >> 1)), SO, sT0, mods='offen lds', tag=('C', n))
            else:
                A('s_mov_b32', sT0, (64 * k + 16 * w + 2 * ii) * 8192)
                A('buffer_load_dwordx4', v(CS + 6 * (ii >> 1)), {'q': SQ, 'k': SK, 'v': SV}[X], sT0, mods='offen lds', tag=('C', n))
    for n in range(8): cdma(n)
    pend = []
    def flush():
        for f, d in pend:
            i = strm_idx[f]
            A('buffer_store_dwordx4', v(d, 4), v(LANE16), WS, sSTRS[i >> 1], mods=f'offen offset:{(i&1)*2048} sc1', tag='ST')
            A('buffer_store_dwordx4', v(d + 4, 4), v(LANE16), WS, sSTRS[i >> 1], mods=f'offen offset:{(i&1)*2048+1024} sc1', tag='ST')
        pend.clear()
    for n, st in enumerate(stages):
        A.wait(vm=[('C', n)], lg=0)
        A('s_barrier')
        flush()
        if n >= 1 and n + 7 < len(stages): cdma(n + 7)
        u = mine(st, w)
        if u in lds_units: continue
        for t in range(2):
            f = (u[0], u[1], 2 * u[2] + t)
            d = resreg[f] if f in resreg else SL[(n & 1) * 2 + t]
            if f in strm_idx: pend.append((f, d))
            ad = CT + t + (2 if u[0] == 'o' else 0) + (6 if (n % 8) >= 4 else 0)
            for q4, ro in enumerate((0, 1024, 8192, 9216)):
                A('ds_read_b64_tr_b16', R(d + 2 * q4, 2), v(ad), mods=f'offset:{(n % 4)*16384 + ro}')
    A.wait(lg=0); A('s_barrier'); flush()
    order = list(lds_units)
    npos = len(lds_units)
    pos = {u: i for i, u in enumerate(lds_units)}
    def dma(u):
        X, j, p = u
        for i in range(4):
            A('s_mov_b32', 'm0', L_WBASE[w] + pos[u] * 4096 + i * 1024)
            if X == 'o':
                off = (64 * j + 32 * (i >> 1) + 8 * (i & 1)) * 1280 + 256 * p
                A('s_mov_b32', sT0, off)
                A('buffer_load_dwordx4', v(SRCO2), SO, sT0, mods='offen lds', tag=('U', u))
            else:
                A('s_mov_b32', sT0, (64 * KO[j] + 16 * i) * 8192)
                A('buffer_load_dwordx4', v(SRCQ), {'q': SQ, 'k': SK, 'v': SV}[X], sT0, mods='offen lds', tag=('U', u))
    def consume(u, n):
        X, j, p = u
        A.wait(vm=[('U', u)])
        dst = []
        for t in range(2):
            f = (X, j, 2 * p + t)
            d = resreg[f] if f in resreg else SL[(n & 1) * 2 + t]
            dst.append((f, d))
            if X != 'o': ad, o = (TRN if t == 0 else TRN + 3), 0
            else: ad, o = TRO2, 16 * t
            for q4, ro in enumerate((0, 256, 2048, 2304)):
                A('ds_read_b64_tr_b16', R(d + 2 * q4, 2), v(ad), mods=f'offset:{pos[u]*4096 + ro + o}', tag=('T', u))
        A.wait(lg=0)
        for f, d in dst:
            if f in lds_off:
                A('ds_write_b128', v(LDSW), v(d, 4), mods=f'offset:{lds_off[f]}')
                A('ds_write_b128', v(LDSW), v(d + 4, 4), mods=f'offset:{lds_off[f]+1024}')
            elif f in strm_idx:
                i = strm_idx[f]
                A('s_add_u32', sT1, sSTR, (i >> 1) * 4096)
                A('buffer_store_dwordx4', v(d, 4), v(LANE16), WS, sT1, mods=f'offen offset:{(i&1)*2048}', tag='ST')
                A('buffer_store_dwordx4', v(d + 4, 4), v(LANE16), WS, sT1, mods=f'offen offset:{(i&1)*2048+1024}', tag='ST')
    depth = npos
    for u in order[:depth]: dma(u)
    for n, u in enumerate(order):
        consume(u, n)
        if n + depth < len(order): dma(order[n + depth])
    A.wait(vm=0, lg=0)
    ready(A)
    A('v_lshlrev_b32', v(AQK), 3, v(LANE16))
    for i in range(3): A('buffer_load_dword', v(AQK + 1 + i), v(AQK), WS, sSTRS[2 * i], mods='offen sc1')
    for i in range(2 * ng): A('buffer_load_dwordx4', v(AV, 4), v(LANE16), WS, sPLD if i < 2 else sPLD1, mods=f'offen offset:{(i&1)*1024} sc1')
    A('s_add_u32', sT0, sMEMc, 5120 * w)
    A('buffer_load_dword', v(AQK + 4), v(AQK), WS, sT0, mods='offen sc1')
    A.wait(vm=0)
    if len(modes) > 1:
        A('s_cmp_lg_u32', sMODE, 0); A('s_cbranch_scc1', f'CHS{w}_start')
    for sc in modes:
        L = lambda nm: f'CH{"S" if sc else "F"}{w}_{nm}'
        A.label(L('start')); A.reset_counts()

        for n in range(5): fill(qslot[n], qk[n])
        def mem0_addr(dst, lanereg, t1, t2):
            A('v_bfe_u32', v(t1), v(lanereg), 2, 2); A('v_lshlrev_b32', v(t1), 1, v(t1))
            A('v_and_b32', v(t2), 1, v(lanereg)); A('v_add_u32', v(t1), v(t1), v(t2)); A('v_mul_u32_u24', v(t1), 1280, v(t1))
            A('v_lshrrev_b32', v(t2), 4, v(lanereg)); A('v_lshl_add_u32', v(t1), v(t2), 5, v(t1))
            A('v_bfe_u32', v(t2), v(lanereg), 1, 1); A('v_lshl_add_u32', v(dst), v(t2), 4, v(t1))
        nd = NOWN[w]
        ownreg = [AW, AW + 4, AV + 4][:nd]
        A('v_lshrrev_b32', v(AQK), 4, v(LANE16))
        mem0_addr(AQK + 1, AQK, AQK + 2, AQK + 3)
        for j in range(nd): A('buffer_load_dwordx4', v(ownreg[j], 4), v(AQK + 1), SM0, 0, mods=f'offen offset:{128*KO[j]}')
        A.wait(vm=0, lg=0)
        for j in range(nd): A('ds_write_b128', v(LANE16), v(ownreg[j], 4), mods=f'offset:{L_MEM + 1024*KO[j]}')
        for i in range(0, 16, 2): A('v_mov_b64', v(AQK + i, 2), 0)
        def stamp(i):
            if not dbg or i not in STAMPS: return
            A('s_memtime', s(80 + 2 * STAMPS.index(i), 2))
        def dump():
            A('s_lshl_b32', sT0, sC, 5); A('s_add_u32', sT0, sT0, sH); A('s_lshl_b32', sT0, sT0, 2); A('s_add_u32', sT0, sT0, w)
            A('s_lshl_b32', sT0, sT0, 6); A('s_add_u32', sT0, sT0, DBGT)
            A('s_waitcnt', 'lgkmcnt(0)')
            for i, r_ in enumerate([s(80 + 2 * k) for k in range(11)] + [sDEAD]):
                A('v_mov_b32', v(AV), r_)
                A('buffer_store_dword', v(AV), 'off', WS, sT0, mods=f'offset:{4*i}'); A.vm.pop()
            A('s_waitcnt', 'vmcnt(0)')
        def pub_read(reg, tmp):
            A('v_and_b32', v(tmp), 512, v(LANE16)); A('v_mul_u32_u24', v(tmp), (L_VM - L_KB - 512) // 512, v(tmp)); A('v_add_u32', v(tmp), v(tmp), v(LANE16))
            A('ds_read_b128', v(reg, 4), v(tmp), mods=f'offset:{L_KB + 512*w}', tag='pk')
        def w3upd():
            A('v_min_u32', v(XR), v(XR + 6), v(XR + 7)); A('v_readlane_b32', sT0, v(XR), 0); A('v_readlane_b32', sT3, v(XR), 1)
            A('s_min_u32', sT0, sT0, sT3); A('s_max_u32', sPROG, sPROG, sT0)
        def w3in(need):
            ok = A.newlabel(L('inok')); lp = A.newlabel(L('inlp'))
            A('s_cmp_gt_u32', sPROG, need); A('s_cbranch_scc1', ok)
            A('s_mov_b32', sSPIN, 0)
            A.label(lp)
            A('buffer_load_dwordx2', v(XR + 6, 2), v(XR + 5), WS, sFIN, mods='offen sc1'); A.vm.pop()
            A('s_waitcnt', 'vmcnt(0)')
            w3upd()
            A('s_cmp_gt_u32', sPROG, need); A('s_cbranch_scc1', ok)
            A('s_cmp_lg_u32', sDEAD, 0); A('s_cbranch_scc1', ok)
            A('s_sleep', 2)
            A('s_add_u32', sSPIN, sSPIN, 1); A('s_cmp_lt_u32', sSPIN, SPIN_MAX); A('s_cbranch_scc1', lp)
            A('s_mov_b32', sDEAD, 1)
            A.label(ok)
        def w3prep():
            A('s_add_u32', sFOV, sS, 1)
            if env('SPECPF', 1): A('s_cmp_lt_u32', sFOV, nsteps)
            else: A('s_cmp_gt_u32', sPROG, sFOV)
            A('s_cselect_b32', sT0, 0, (0 if X_NOADV else 32 * 8192)); A('s_sub_u32', sPFK, sKF, sT0); A('s_sub_u32', sPFK, sPFK, 3 * 2048)
            A('s_add_u32', sPFV, sPFK, VT - KF)
            A('s_max_u32', sT0, sS, 1); A('s_sub_u32', sT0, sT0, 1); A('v_mov_b32', v(XR + 4), sT0)
        def kdma():
            A('s_mov_b32', 'm0', L_KX + w * 2048)
            for i in range(2): A('buffer_load_dwordx4', v(LANE16), WS, sKF, mods=f'offen offset:{i*1024} {KVMOD} lds')
            if not X_NOADV: A('s_add_u32', sKF, sKF, 32 * 8192)
        if w == 3: w3in(sS)
        A('s_barrier')
        kdma()
        if w == 3: w3prep()
        A('s_waitcnt', 'vmcnt(0) lgkmcnt(0)')
        A.label(L('loop'))
        A.reset_counts()
        stamp('top')
        accq = {('q', 0): AQK, ('q', 1): AQK + 4, ('k', 0): AQK + 8, ('k', 1): AQK + 12}
        awin = [AW, AW + 4, AV + 4, AW, AW + 4, AV, AV + 4, AV, AW, AW + 4]
        aat = {3: 3, 4: 7, 5: PUBAT + 1, 6: 11, 7: 23, 8: 15, 9: 19}
        def aread(j, reg, tag):
            A('ds_read_b128', v(reg, 4), v(LANE16), mods=f'offset:{L_MEM + 1024*KO[j]}', tag=tag)
        kfr = {}
        def kread(tk, reg):
            t, kp = tk
            kfr[tk] = reg
            if t == 0: A('ds_read_b128', v(reg, 4), v(FR), mods=f'offset:{L_KB + 512*kp}', tag=('K', tk))
            else: A('ds_read_b128', v(reg, 4), v(LANE16), mods=f'offset:{L_KX + ((t-1)*4+kp)*1024}', tag=('K', tk))
        NPRE = 0
        side = {}
        def at(n, fn): side.setdefault(n, []).append(fn)
        for n0, st, s2, fi in qfill:
            at(n0, lambda s2=s2, fi=fi: half_fill(s2, qk[fi], 0)); at(n0 + st, lambda s2=s2, fi=fi: half_fill(s2, qk[fi], 1))
        if dbg:
            def st8():
                sk = A.newlabel(L('st8'))
                A('s_cmp_lg_u32', sS, 8); A('s_cbranch_scc1', sk); A('s_mov_b32', 's100', 's80'); A.label(sk)
            at(20, st8)
        for n0, tk, reg in [(26, (1, 0), SL[0]), (27, (2, 0), SL[0] + 4), (30, (1, 1), SL[3]), (31, (2, 1), SL[3] + 4)]:
            at(n0, lambda tk=tk, reg=reg: kread(tk, reg))
        def vxload(hf):
            A('buffer_load_dwordx4', v(SL[1] + 4 * hf, 4), v(LANE16), WS, sVT, mods=f'offen offset:{1024*hf} {KVMOD}', tag='vx')
        at(1, lambda: vxload(0)); at(3, lambda: vxload(1))
        if w == 3:
            if not X_NOPF:
                at(PUBAT + 1, lambda: A('buffer_load_dword', v(XR), v(XR + 3), WS, sPFK, mods='offen sc1'))
                at(PUBAT + 3, lambda: A('buffer_load_dword', v(XR + 1), v(XR + 3), WS, sPFV, mods='offen sc1'))
            if not X_NOFLAG: at(PUBAT + 5, lambda: A('buffer_load_dwordx2', v(XR + 6, 2), v(XR + 5), WS, sFIN, mods='offen sc1'))
            if not X_NOPUB:
                if env('CHFLAG'): at(PUBAT + 6, lambda: A('buffer_store_dword', v(XR + 4), v(XR + 2), WS, sFLO, mods='offen sc1'))
                if env('DBG') == 2: at(PUBAT + 7, lambda: (tstamp(A, sFLO, sS, XR + 4), A.vm.append(None)))
        def pub2():
            if not X_NOPUB and not env('X_NOKM'): A('buffer_store_dwordx4', v(AV, 4), v(LANE16), WS, sKM, mods='offen ' + os.environ.get('PUBMOD', 'sc1'))
        at(PUBAT, pub2)
        at(28, lambda: A('v_mov_b64', v(AV + 4, 2), 0)); at(29, lambda: A('v_mov_b64', v(AV + 6, 2), 0))
        at(35, lambda: A('v_mov_b64', v(AV, 2), 0)); at(36, lambda: A('v_mov_b64', v(AV + 2, 2), 0))
        A('s_barrier'); stamp('b1')
        if nd == 2: aread(2, awin[2], ('A', 2))
        A('v_mov_b32', v(AQK + 15), 0)
        for n in range(NPRE, 40):
            f = qk[n]; j = n >> 2
            if (n & 1) == 0: A.wait(lg=[('A', j)] + [('F', qk[m]) for m in (n, n + 1) if qk[m] in lds_off])
            stamp(f'q{n}')
            smf(accq[(f[0], f[2])], awin[j], f, qslot.get(n))
            for j2, n2 in aat.items():
                if n2 == n: aread(j2, awin[j2], ('A', j2))
            for fn in side.get(n, []): fn()
        vj = [9, 8, 0, 1, 2, 3, 4, 5, 6, 7]
        vq = []
        for idx, j in enumerate(vj):
            reg = AW + 4 if idx % 2 == 0 else AW
            vq.append((j, 0, reg, idx)); vq.append((j, 1, reg, idx))
        vstate = {'i': 0, 'p': 0}
        def vpass(cnt):
            for _ in range(cnt):
                if vstate['i'] >= 20: return
                j, t, reg, idx = vq[vstate['i']]; vstate['i'] += 1
                if t == 0 and idx >= 2: A.wait(lg=[('B', idx)])
                smf(AV + 4 * t, reg, ('v', j, t), None)
                if t == 1 and idx + 2 < 10: aread(vj[idx + 2], reg, ('B', idx + 2))
        stamp(0)
        vpass(1)
        vpass(1)
        add2(AQK, AQK, AQK + 2); add2(AQK + 4, AQK + 4, AQK + 6)
        A('v_cvt_pk_bf16_f32', v(AQK + 2), v(AQK), v(AQK + 4)); A('v_cvt_pk_bf16_f32', v(AQK + 3), v(AQK + 1), v(AQK + 5))
        A('ds_write2_b32', v(QKW), v(AQK + 2), v(AQK + 3), mods='offset0:0 offset1:4', tag='qw')
        add2(AQK + 8, AQK + 8, AQK + 10); add2(AQK + 12, AQK + 12, AQK + 14)
        A('v_cvt_pk_bf16_f32', v(AQK + 10), v(AQK + 8), v(AQK + 12)); A('v_cvt_pk_bf16_f32', v(AQK + 11), v(AQK + 9), v(AQK + 13))
        A('ds_write2_b32', v(KW), v(AQK + 10), v(AQK + 11), mods='offset0:0 offset1:4', tag='qw')
        vpass(4)
        A.wait(lg=['qw']); A('s_barrier'); stamp('b2')
        qreg = [SL[2], SL[2] + 4, SL[4], SL[4] + 4]
        A('ds_read_b128', v(qreg[0], 4), v(FR), mods=f'offset:{L_QB}', tag=('Q', 0))
        A('ds_read_b128', v(qreg[1], 4), v(FR), mods=f'offset:{L_QB + 512}', tag=('Q', 1))
        kread((0, 0), AQK + 12)
        for kp in range(2, 4): A('ds_read_b128', v(qreg[kp], 4), v(FR), mods=f'offset:{L_QB + 512*kp}', tag=('Q', kp))
        vpass(4)
        sacc = {0: AQK, 1: AQK + 4, 2: AQK + 8}
        sc_order = [(1, 0), (2, 0), (1, 1), (2, 1), (0, 0), (0, 1), (1, 2), (2, 2), (0, 2), (0, 3), (1, 3), (2, 3)]
        pending = sc_order[5:]
        pf = []
        for n in opre:
            pf.append((oslot[n], oo[n], 0)); pf.append((oslot[n], oo[n], 1))
        def pfill(cnt=1):
            for _ in range(cnt):
                if pf: half_fill(*pf.pop(0))
        for tk in sc_order:
            t, kp = tk
            A.wait(lg=[('K', tk), ('Q', kp)])
            A('v_mfma_f32_16x16x32_bf16', v(sacc[t], 4), v(kfr[tk], 4), v(qreg[kp], 4), '0' if kp == 0 else v(sacc[t], 4))
            if pending: kread(pending.pop(0), kfr[tk])
        stamp('sc')
        vpass(1); pfill(); vpass(1)
        vals = [AQK, AQK + 1] + [AQK + 4 + i for i in range(8)]
        mx = AQK + 2; tm = AQK + 3
        A('v_max3_f32', v(mx), v(vals[0]), v(vals[1]), v(vals[2])); A('v_max3_f32', v(tm), v(vals[3]), v(vals[4]), v(vals[5]))
        A('v_max3_f32', v(mx), v(mx), v(vals[6]), v(vals[7])); A('v_max3_f32', v(tm), v(tm), v(vals[8]), v(vals[9]))
        A('v_max_f32', v(mx), v(mx), v(tm)); A('v_max_f32', v(tm), v(mx), v(tm))
        vpass(1)
        A('v_permlane32_swap_b32', v(tm), v(mx)); A('v_max_f32', v(mx), v(mx), v(tm)); A('v_max_f32', v(tm), v(mx), v(tm))
        vpass(1); pfill()
        A('v_permlane16_swap_b32', v(tm), v(mx)); A('v_max_f32', v(mx), v(mx), v(tm))
        A('v_mul_f32', v(mx), sSCALE, v(mx))
        stamp('s1')
        order = vals[2:] + vals[:2]
        for i, r_ in enumerate(order):
            A('v_fma_f32', v(r_), v(r_), sSCALE, '-' + v(mx))
            if i >= 1: A('v_exp_f32', v(order[i - 1]), v(order[i - 1]))
            if i % 2 == 1: vpass(1)
            if i % 3 == 2: pfill()
            if i in (3, 5, 7, 9): A('v_cvt_pk_bf16_f32', v(AQK + 12 + (i - 3) // 2), v(order[i - 3]), v(order[i - 2]))
        A('v_exp_f32', v(order[9]), v(order[9]))
        stamp('s2')
        vpass(20)
        A('v_mov_b32', v(AQK + 3), 0)
        stamp(2)
        A('v_cvt_pk_bf16_f32', v(AQK + 2), v(AQK), v(AQK + 1))
        A.wait(vm=['vx'])
        A('v_mfma_f32_16x16x32_bf16', v(AW, 4), v(SL[1], 4), v(AQK + 12, 4), '0')
        add2(AQK + 4, AQK + 4, AQK + 6)
        A('v_mfma_f32_16x16x32_bf16', v(AW + 4, 4), v(SL[1] + 4, 4), v(AQK + 12, 4), '0')
        pfill()
        add2(AV, AV, AV + 2); add2(AV + 4, AV + 4, AV + 6)
        A('v_cvt_pk_bf16_f32', v(AV + 2), v(AV), v(AV + 1)); A('v_cvt_pk_bf16_f32', v(AV + 3), v(AV + 4), v(AV + 5))
        A('v_cvt_pk_bf16_f32', v(AV + 4), v(AV + 4), v(AV + 5))
        add2(AQK + 8, AQK + 8, AQK + 10)
        stamp('p1')
        A('v_mfma_f32_16x16x16_bf16', v(AW, 4), v(AV + 2, 2), v(AQK + 2, 2), v(AW, 4))
        A('v_mov_b32', v(AV + 5), 0)
        add2(AQK + 4, AQK + 4, AQK + 8)
        A('v_mfma_f32_16x16x16_bf16', v(AW + 4, 4), v(AV + 4, 2), v(AQK + 2, 2), v(AW + 4, 4))
        pfill()
        add2(AQK + 4, AQK + 4, AQK)
        sm = AQK + 6; t2 = AQK + 7
        A('v_add_f32', v(sm), v(AQK + 4), v(AQK + 5)); A('v_add_f32', v(t2), v(AQK + 4), v(AQK + 5))
        A('v_lshrrev_b32', v(AV + 6), 1, v(LANE16))
        A('ds_write_b64', v(AV + 6), v(AV + 2, 2), mods=f'offset:{L_VM + 512*w}', tag='ow')
        A('v_permlane32_swap_b32', v(t2), v(sm)); A('v_add_f32', v(AQK + 4), v(sm), v(t2)); A('v_add_f32', v(AQK + 5), v(sm), v(t2))
        pf.append((oslot[e_], oo[e_], 0)); pf.append((oslot[e_], oo[e_], 1))
        pfill()
        A('v_permlane16_swap_b32', v(AQK + 5), v(AQK + 4)); A('v_add_f32', v(sm), v(AQK + 4), v(AQK + 5))
        A('v_rcp_f32', v(sm), v(sm))
        stamp('p2')
        for i in range(4):
            A('v_mul_f32', v(AW + 2 * i), v(AW + 2 * i), v(sm)); A('v_mul_f32', v(AW + 2 * i + 1), v(AW + 2 * i + 1), v(sm))
            A('v_cvt_pk_bf16_f32', v(AQK + 8 + i), v(AW + 2 * i), v(AW + 2 * i + 1))
        A('ds_write_b128', v(FR), v(AQK + 8, 4), mods=f'offset:{L_O + 512*w}', tag='ow')
        stamp('p3')
        pfill()
        for i in (0, 2, 4, 6, 12, 14): A('v_mov_b64', v(AQK + i, 2), 0)
        for i in (0, 4): A('v_mov_b64', v(AV + i, 2), 0)
        stamp('p4')
        A.wait(lg=['ow']); A('s_barrier')
        A('ds_read_b128', v(AW, 4), v(LANE16), mods=f'offset:{L_O}', tag='oa0')
        A('ds_read_b128', v(AW + 4, 4), v(LANE16), mods=f'offset:{L_O+1024}', tag='oa1')
        pfill()
        A('s_cmp_eq_u32', sS, nsteps - 1)
        A('s_cbranch_scc1', L('last'))
        if dbg and env('FRZ'):
            A('s_cmp_lg_u32', sS, env('FRZ')); A('s_cbranch_scc1', L('nofrz'))
            A('s_memtime', 's[100:101]'); dump(); A('v_mov_b32', v(AV), 0)
            A.label(L('nofrz'))
        for i in (8, 10): A('v_mov_b64', v(AQK + i, 2), 0)
        for i in (2, 6): A('v_mov_b64', v(AV + i, 2), 0)
        assert not pf
        stamp(3)
        accs = [AQK, AQK + 4, AQK + 8, AQK + 12, AV, AV + 4]
        tacc = {t: t % 6 for t in range(10)}
        def post_ops(t):
            r_ = accs[tacc[t]]; st = accs[tacc[t & ~1]] + (t & 1)
            ops = [lambda: A('v_add_f32', v(r_), v(r_), v(r_ + 2)), lambda: A('v_add_f32', v(r_ + 1), v(r_ + 1), v(r_ + 3)),
                   lambda: A('v_cvt_pk_bf16_f32', v(st), v(r_), v(r_ + 1))]
            if t % 2 == 0: ops.append(lambda: A('v_and_or_b32', v(st), v(st), -2, sTAG))
            else:
                ops.append(lambda: A('buffer_store_dwordx2', v(st - 1, 2), v(PST2), WS, sPSTS[t >> 1], mods=f'offen {sc}'.strip(), tag='ps'))
                if t < 4:
                    for rr in (r_, r_ + 2, st + 1, st - 1): ops.append(lambda rr=rr: A('v_mov_b64', v(rr, 2), 0))
            return ops
        oside = {}
        def oat(n, fn): oside.setdefault(n, []).append(fn)
        for a_, b_ in [(ab[i] + k, ab[i + 1] + k) for i in range(3) for k in range(2)]:
            oat(a_, lambda b_=b_: fill(oslot[b_], oo[b_]))
        for n0, qi in (((cd, 4), (cd + 3, 0), (max(e_, cd + 6), 1)) if not env('NOHELD') else ()):
            oat(n0, lambda qi=qi: half_fill(qslot[qi], qk[qi], 0)); oat(n0 + 2, lambda qi=qi: half_fill(qslot[qi], qk[qi], 1))
        vq_ = []
        for n, f in enumerate(oo):
            if n % 2 == 0:
                pr = [oo[n], oo[n + 1]]
                A.wait(lg=(['oa0'] if n == 0 else ['oa1'] if n == 2 else []) + [('F', x) for x in pr if x in lds_off], vm=[('F', x) for x in pr if x in strm_idx])
            if f[1] == 0 and f[2] >= 6:
                need = {6: 1, 7: 1, 8: 3, 9: 3}[f[2]]
                while any(t == need for t, _ in vq_): vq_.pop(0)[1]()
            stamp(f'o{n}')
            smf(accs[tacc[f[2]]], AW + 4 * f[1], f, oslot.get(n))
            for fn in oside.get(n, []): fn()
            for t in range(10):
                if 4 * (t >> 1) + 2 + (t & 1) + 3 == n: vq_ += [(t, o_) for o_ in post_ops(t)]
            for _ in range(3):
                if vq_: vq_.pop(0)[1]()
        while vq_: vq_.pop(0)[1]()
        for t in (8, 9):
            for o_ in post_ops(t): o_()
        stamp(4)
        if env('ACKT'): A('s_waitcnt', 'vmcnt(0)'); stamp('ack')
        if w in (1, 2) and env('P1POS', 0) == 0: fill(qslot[2], qk[2]); fill(qslot[3], qk[3])
        if w == 3: w3upd(); w3in(sFOV)
        A('s_barrier')
        ra = AV + 4
        setreg = [AQK, AQK + 8 if ng == 1 else SL[2]]
        A('s_mov_b32', sSPIN, 0)
        A('v_bfe_u32', v(ra + 1), v(LANE16), 4, 1); A('v_lshlrev_b32', v(ra + 1), 4, v(ra + 1))
        A('v_mov_b32', v(ra + 2), '0x3f80'); A('v_lshlrev_b32', v(ra + 1), v(ra + 1), v(ra + 2))
        A('v_bfe_u32', v(ra + 2), v(LANE16), 5, 3)
        def rloads(st):
            for i in range(2 * ng):
                A('buffer_load_dwordx4', v(setreg[st] + 4 * i, 4), v(LANE16), WS, sPLD if i < 2 else sPLD1, mods=f'offen offset:{(i&1)*1024} sc1')
        sel = lambda jj: (A('v_cmp_eq_u32', 'vcc', jj, v(ra + 2)), A('v_cndmask_b32', v(AW + jj), 0, v(ra + 1), 'vcc'))
        for jj in range(RDELAY): sel(jj % (4 * ng))
        rloads(0)
        for jj in range(max(RGAP, 4 * ng - RDELAY)): sel((RDELAY + jj) % (4 * ng))
        rloads(1)
        for jj in range(env('RFILL', 0)): sel(jj % (4 * ng))
        A.label(L('rloop'))
        for st in range(2):
            A('s_waitcnt', f'vmcnt({2*ng})')
            stamp('r1')
            for i in range(2 * ng):
                b = setreg[st] + 4 * i
                A('v_mfma_f32_16x16x32_bf16', v(AV, 4), v(b, 4), v(AW + 4 * (i >> 1), 4), '0' if i == 0 else v(AV, 4))
                if i == 0:
                    A('v_and_b32', v(ra + 1), v(b), v(b + 2)); A('v_or_b32', v(ra + 2), v(b), v(b + 2))
                else:
                    A('v_bitop3_b32', v(ra + 1), v(ra + 1), v(b), v(b + 2), mods='bitop3:0x80'); A('v_or3_b32', v(ra + 2), v(ra + 2), v(b), v(b + 2))
            A('v_bitop3_b32', v(ra + 1), v(ra + 1), v(ra + 2), sTAG, mods='bitop3:0x4e')
            A('v_and_b32', v(ra + 1), 1, v(ra + 1))
            A('v_cmp_ne_u32', 'vcc', 0, v(ra + 1))
            A('s_cbranch_vccz', L('rok'))
            rloads(st)
        A('s_cmp_lg_u32', sDEAD, 0); A('s_cbranch_scc1', L('rok'))
        A('s_add_u32', sSPIN, sSPIN, 1)
        A('s_cmp_lt_u32', sSPIN, SPIN_MAX); A('s_cbranch_scc1', L('rloop'))
        A('s_mov_b32', sDEAD, 1)
        A.label(L('rok'))
        A('v_permlane32_swap_b32', v(AV), v(AV + 2)); A('v_permlane32_swap_b32', v(AV + 1), v(AV + 3))
        add2(AV, AV, AV + 2)
        A('v_permlane16_swap_b32', v(AV), v(AV + 1)); A('v_add_f32', v(AV), v(AV), v(AV + 1))
        A('v_cvt_pk_bf16_f32', v(AV), v(AV), v(AV))
        A('buffer_store_short', v(AV), v(RDEST), WS, sMEMc, mods=f'offen {sc}'.strip())
        stamp(5)
        A('v_mov_b32', v(AV + 1), hex(SENT))
        A('buffer_store_short', v(AV + 1), v(RDEST), WS, sMEMo, mods=f'offen {sc}'.strip())
        A.reset_counts()
        xl = 0
        if w in (1, 2) and env('P1POS', 0) == 1: fill(qslot[2], qk[2]); fill(qslot[3], qk[3]); xl = 4
        kdma()
        pub_read(AV, AV + 4)
        A('s_add_u32', sT2, sMEMc, 1024 * KOWN[w])
        A('s_xor_b32', sTAG, sTAG, 1); A('s_add_u32', sKM, sKM, 32 * 4096)
        A('s_xor_b32', sMEMc, sMEMc, sDMEM); A('s_xor_b32', sMEMo, sMEMo, sDMEM)
        if not X_NOADV: A('s_add_u32', sVT, sVT, 32 * 8192)
        A('s_add_u32', sS, sS, 1)
        A('s_mov_b32', sSPIN, 0)
        A('s_mov_b32', 'm0', L_MEM + 1024 * KOWN[w])
        def gdma():
            for j in range(nd): A('buffer_load_dwordx4', v(LANE16), WS, sT2, mods=f'offen offset:{1024*j} sc1 lds')
        if w == 3: w3prep()
        for i in range(GDELAY - (8 if w == 3 else 0)): A('v_mov_b32', v(AW + (i % 8)), 0)
        gdma()
        A('s_waitcnt', f'vmcnt({4 + nd + xl})')
        if w in (0, 3): fill(qslot[2], qk[2]); fill(qslot[3], qk[3])
        for i in range(0, 16, 2): A('v_mov_b64', v(AQK + i, 2), 0)
        for i in range(env('GGAP', 12)): A('v_mov_b32', v(AW + (i % 8)), 0)
        gdma()
        A.label(L('gloop'))
        A('s_waitcnt', f'vmcnt({nd})')
        for j in range(nd): A('ds_read_b128', v(ownreg[j], 4), v(LANE16), mods=f'offset:{L_MEM + 1024*KO[j]}')
        gdma()
        gregs = [r_ + i for r_ in ownreg for i in range(4)]
        A('s_waitcnt', f'lgkmcnt({nd-1})')
        m0_ = AQK + 15
        A('v_pk_max_u16', v(m0_), v(gregs[0]), v(gregs[1]))
        for i in range(2, len(gregs)):
            if i % 4 == 0: A('s_waitcnt', f'lgkmcnt({nd-1-i//4})')
            A('v_pk_max_u16', v(m0_), v(m0_), v(gregs[i]))
        emit_check(A, m0_, AQK + 14, gregs, L('gloop'), L('loop'), define=False)
        A('s_branch', L('loop'))
        A.label(L('last'))
        A.reset_counts()
        pub_read(AV, AV + 4); A('s_add_u32', sKM, sKM, 32 * 4096)
        A('s_waitcnt', 'lgkmcnt(0)')
        A('buffer_store_dwordx4', v(AV, 4), v(LANE16), WS, sKM, mods='offen sc1')
        A('s_waitcnt', 'vmcnt(0)')
        A('s_barrier')
        if w == 3:
            A('v_mov_b32', v(XR), nsteps)
            A('s_mov_b64', 'exec', 1)
            A('buffer_store_dword', v(XR), 'off', WS, sFLO, mods='sc1')
            A('s_mov_b64', 'exec', -1)
        if dbg and not env('FRZ'): dump()
        A('s_waitcnt', 'vmcnt(0) lgkmcnt(0)')
        A('s_endpgm')

def emit_check(A, m0, m1, regs, retry, ok, define=True):
    A('v_pk_max_u16', v(m0), v(m0), v(m0), mods='op_sel:[0,1] op_sel_hi:[1,0]')
    A('v_cmp_le_u32', 'vcc', '0xff810000', v(m0))
    A('s_cbranch_vccz', ok)
    A('s_add_u32', sSPIN, sSPIN, 1)
    A('s_cmp_lt_u32', sSPIN, 64); A('s_cbranch_scc1', retry)
    A('s_cmp_lg_u32', sDEAD, 0); A('s_cbranch_scc1', ok)
    A('v_mov_b32', v(m0), -1)
    for r_ in regs:
        A('v_xor_b32', v(m1), hex(SENT), v(r_)); A('v_pk_min_u16', v(m0), v(m0), v(m1))
    A('v_pk_min_u16', v(m0), v(m0), v(m0), mods='op_sel:[0,1] op_sel_hi:[1,0]')
    A('v_mov_b32', v(m1), 0)
    A('v_cmp_eq_u32', 'vcc', 0, v(m0))
    A('s_cbranch_vccz', ok)
    A('s_sleep', 1)
    A('s_cmp_lt_u32', sSPIN, SPIN_MAX); A('s_cbranch_scc1', retry)
    A('s_mov_b32', sDEAD, 1)
    if define: A.label(ok)
```

```python
from asmgen import *
from common import *
from layout import *
import chain, bulk
from chain import SDBG, WS, sMODE
from prologue import emit_srds
import sys, os
NAME = 'interleave_layers__memory_aug_recurrent_mem_tr__dense_activation_relu__prompt'
ROLES = os.environ.get('ROLES', 'chain,qkv,att,op,lna,ln,f1,f2').split(',')
NOINIT = int(os.environ.get('NOINIT', 0))
FORCE_SLOW = int(os.environ.get('FORCE_SLOW', 0))
DBG = int(os.environ.get('DBG', 0))
sW, sI, sL = 's52', 's53', 's54'
sX, sR, sV = 's97', 's98', 's99'
CHDBG = int(os.environ.get('CHDBG', 0))
T0, T1, T2 = 's70', 's71', 's72'

def build():
    A = Asm()
    A('s_cmp_ge_u32', 's2', 256); A('s_cbranch_scc1', 'L_end')
    emit_srds(A)
    if DBG:
        A('s_memrealtime', 's[90:91]'); A('s_waitcnt', 'lgkmcnt(0)'); A('v_mov_b32', 'v1', 's90'); A('s_lshl_b32', T0, 's2', 2); A('s_add_u32', T0, T0, DBGT + (1 << 19))
        A('buffer_store_dword', 'v1', 'off', WS, T0)
    A('s_getreg_b32', sX, 'hwreg(HW_REG_XCC_ID)'); A('s_and_b32', sX, sX, 15)
    A('v_lshrrev_b32', 'v1', 6, 'v0'); A('v_readfirstlane_b32', sW, 'v1')
    A('s_mov_b32', sMODE, 0)
    def init_and_arrive(first):
        t = 'a' if first else 'b'
        A('v_mbcnt_lo_u32_b32', 'v1', -1, 0); A('v_mbcnt_hi_u32_b32', 'v1', -1, 'v1'); A('v_lshlrev_b32', 'v2', 4, 'v1')
        A('s_cmp_lg_u32', sW, 0); A('s_cbranch_scc1', 'L_w123' + t)
        if first:
            A('s_mov_b64', 'exec', 1)
            A('v_mov_b32', 'v8', 1); A('s_lshl_b32', T0, sX, 2)
            A('buffer_atomic_add', 'v8', 'off', SDBG, T0, mods='sc0')
            A('s_waitcnt', 'vmcnt(0)')
            A('v_mov_b32', 'v3', 0); A('ds_write_b32', 'v3', 'v8')
        A('s_mov_b64', 'exec', '0xffffffff')
        for i in range(4): A('v_mov_b32', v(4 + i), 0)
        A('s_lshl_b32', T0, 's2', 9)
        if first:
            A('s_sub_u32', T1, T0, FL_XN); A('s_cmp_lt_u32', T1, 2048); A('s_cselect_b32', T0, '0x20000000', T0)
        A('buffer_store_dwordx4', 'v[4:7]', 'v2', WS, T0, mods='offen sc1')
        A('s_mov_b64', 'exec', -1)
        A('s_branch', 'L_join' + t)
        A.label('L_w123' + t)
        for i in range(4): A('v_mov_b32', v(4 + i), hex(SENT))
        A('s_mul_i32', T0, 's2', 3072); A('s_lshl_b32', T1, sW, 10); A('s_add_u32', T0, T0, T1); A('s_add_u32', T0, T0, POISON_LO - 1024)
        A('buffer_store_dwordx4', 'v[4:7]', 'v2', WS, T0, mods='offen sc1')
        A.label('L_join' + t)
    init_and_arrive(True)
    A('s_waitcnt', 'lgkmcnt(0)'); A('s_barrier')
    A('v_mov_b32', 'v3', 0); A('ds_read_b32', 'v9', 'v3'); A('s_waitcnt', 'lgkmcnt(0)')
    A('v_readfirstlane_b32', sR, 'v9')
    xm = [int(c) for c in os.environ.get('XMAP', '01234567')]
    A('s_min_u32', T0, sX, 8); A('s_cmp_ge_u32', sX, 8); A('s_cbranch_scc1', 'L_nomap')
    A('s_lshl_b32', T0, sX, 2); A('s_lshr_b32', sX, hex(sum(x << (4 * i) for i, x in enumerate(xm))), T0); A('s_and_b32', sX, sX, 15)
    A.label('L_nomap')
    A('s_lshl_b32', sV, sX, 5); A('s_add_u32', sV, sV, sR)
    A('s_sub_u32', T0, sR, 20); A('s_cmp_lt_u32', T0, 8); A('s_cbranch_scc0', 'L_noown')
    A('s_lshl_b32', T0, T0, 8); A('s_lshl_b32', T1, sW, 2); A('s_add_u32', T0, T0, T1); A('s_add_u32', T0, T0, FL_XN)
    A('s_cmp_eq_u32', sX, 2); A('s_cbranch_scc1', 'L_own')
    A('s_add_u32', T0, T0, 128); A('s_cmp_eq_u32', sX, 5); A('s_cbranch_scc0', 'L_noown')
    A.label('L_own')
    A('buffer_store_dword', 'v3', 'off', WS, T0, mods='sc1')
    A.label('L_noown')
    A('s_waitcnt', 'vmcnt(0)'); A('s_barrier')
    A('s_cmp_lg_u32', sW, 0); A('s_cbranch_scc1', 'L_arr')
    A('s_mov_b64', 'exec', 1); A('v_mov_b32', 'v9', 1)
    A('buffer_atomic_add', 'v9', 'off', SDBG, 0, mods='offset:128')
    A('s_mov_b64', 'exec', -1)
    A.label('L_arr')
    A('s_cmp_ge_u32', sR, 32); A('s_cbranch_scc1', 'L_slow')
    A('s_cmp_ge_u32', sX, 8); A('s_cbranch_scc0', 'L_dispatch')
    A.label('L_slow')
    A('s_waitcnt', 'vmcnt(0) lgkmcnt(0)'); A('s_barrier')
    init_and_arrive(False)
    A('s_waitcnt', 'vmcnt(0)'); A('s_barrier')
    A('s_cmp_lg_u32', sW, 0); A('s_cbranch_scc1', 'L_arr2')
    A('s_mov_b64', 'exec', 1); A('v_mov_b32', 'v9', 1)
    A('buffer_atomic_add', 'v9', 'off', SDBG, 0, mods='offset:132')
    A('s_mov_b64', 'exec', -1)
    A('s_mov_b32', 's68', 0)
    A.label('L_poll2')
    A('buffer_load_dword', 'v9', 'off', SDBG, 0, mods='offset:132 sc1'); A('s_waitcnt', 'vmcnt(0)')
    A('v_readfirstlane_b32', T0, 'v9'); A('s_cmp_ge_u32', T0, 256); A('s_cbranch_scc1', 'L_arr2')
    A('s_sleep', 8)
    A('s_add_u32', 's68', 's68', 1); A('s_cmp_lt_u32', 's68', chain.SPIN_MAX); A('s_cbranch_scc1', 'L_poll2')
    A.label('L_arr2')
    A('s_barrier')
    A('s_mov_b32', sMODE, 1); A('s_mov_b32', sV, 's2')
    A('v_mov_b32', 'v0', 'v1')
    A.label('L_dispatch')
    A('s_lshr_b32', sX, sV, 5); A('s_and_b32', sR, sV, 31)
    if DBG:
        A('s_memrealtime', 's[90:91]'); A('s_waitcnt', 'lgkmcnt(0)'); A('v_mov_b32', 'v1', 's90'); A('s_lshl_b32', T0, sV, 2); A('s_add_u32', T0, T0, DBGT + (1 << 19) + 4096)
        A('buffer_store_dword', 'v1', 'off', WS, T0)
    LATE = os.environ.get('LATE', '')
    if LATE:
        mask = sum(1 << int(c) for c in LATE)
        A('s_lshr_b32', T0, hex(mask), sX); A('s_and_b32', T0, T0, 1); A('s_cmp_eq_u32', T0, 0); A('s_cbranch_scc1', 'L_nolate')
        A('s_sub_u32', T0, sR, 20); A('s_cmp_lt_u32', T0, 8); A('s_cselect_b32', T0, 1, 0); A('s_cmp_eq_u32', sX, 5); A('s_cselect_b32', T0, T0, 0)
        A('s_cmp_lg_u32', T0, 0); A('s_cbranch_scc1', 'L_nolate')
        A('s_mov_b32', 's68', 0)
        A.label('L_latep')
        A('buffer_load_dword', 'v9', 'off', SDBG, 0, mods='offset:136 sc1'); A('s_waitcnt', 'vmcnt(0)')
        A('v_readfirstlane_b32', T0, 'v9'); A('s_cmp_ge_u32', T0, 128); A('s_cbranch_scc1', 'L_nolate')
        A('s_sleep', 32)
        A('s_add_u32', 's68', 's68', 1); A('s_cmp_lt_u32', 's68', 64); A('s_cbranch_scc1', 'L_latep')
        A.label('L_nolate')
    def go(role, label):
        return label if role in ROLES else 'L_end'
    A('s_cmp_ge_u32', sX, 2); A('s_cbranch_scc1', 'L_bulk')
    A('s_mov_b32', sI, sR); A('s_mov_b32', sL, sX)
    for w in range(4):
        A('s_cmp_eq_u32', sW, w); A('s_cbranch_scc1', go('chain', f'CH{w}_entry'))
    A.label('L_bulk')
    A('s_cmp_ge_u32', sX, 5); A('s_cselect_b32', sL, 1, 0)
    A('s_mul_i32', T0, sL, 3); A('s_sub_u32', T0, sX, T0); A('s_sub_u32', T0, T0, 2)
    A('s_mov_b32', sI, sR)
    A('s_cmp_eq_u32', T0, 2); A('s_cbranch_scc1', 'L_qkv')
    A('s_cmp_eq_u32', T0, 1); A('s_cbranch_scc1', 'L_t1')
    A('s_cmp_lt_u32', sR, 20); A('s_cbranch_scc1', go('op', 'G2op_entry'))
    A('s_sub_u32', sI, sR, 20); A('s_lshl_b32', sI, sI, 1); A('s_add_u32', sI, sI, sL); A('s_cmp_lt_u32', sR, 28); A('s_cbranch_scc1', 'LN0_entry')
    A('s_sub_u32', sI, sR, 28); A('s_cmp_lt_u32', sR, 30); A('s_cbranch_scc1', go('lna', 'LNA_entry'))
    A('s_add_u32', sI, sR, 16); A('s_branch', 'L_qkv')
    A.label('L_t1')
    A('s_cmp_lt_u32', sR, 7); A('s_cbranch_scc1', go('f1', 'G1f1_entry'))
    A('s_sub_u32', sI, sR, 7); A('s_cmp_lt_u32', sR, 17); A('s_cbranch_scc1', go('f2', 'G2f2_entry'))
    A('s_add_u32', sI, sR, 14); A('s_cmp_gt_u32', sR, 17); A('s_cbranch_scc1', 'L_qkv')
    A('s_mov_b32', sI, sL); A('s_branch', 'LN1_entry')
    A.label('L_qkv')
    A('s_mul_i32', T0, sI, 43); A('s_lshr_b32', T0, T0, 7); A('s_mul_i32', T0, T0, 3); A('s_sub_u32', T0, sI, T0)
    A('s_cmp_eq_u32', T0, 2); A('s_cbranch_scc1', go('qkv', 'G1v_entry'))
    A('s_branch', go('qkv', 'G1qk_entry'))
    A.label('L_end')
    A('s_endpgm')
    def ready(A):
        ok = A.newlabel('RDY_ok'); lp = A.newlabel('RDY_lp'); al = A.newlabel('RDY_all')
        if LATE:
            sk = A.newlabel('RDY_sk')
            A('s_cmp_lg_u32', sX, 0); A('s_cbranch_scc1', sk)
            A('s_mov_b64', 'exec', 1); A('v_mov_b32', 'v40', 1); A('buffer_atomic_add', 'v40', 'off', SDBG, 0, mods='offset:136'); A('s_mov_b64', 'exec', -1)
            A.label(sk)
        A('s_cmp_lg_u32', sMODE, 0); A('s_cbranch_scc1', ok)
        A('s_mov_b32', 's68', 0)
        A.label(lp)
        A('buffer_load_dword', 'v40', 'off', SDBG, 0, mods='offset:128 sc1'); A('s_waitcnt', 'vmcnt(0)')
        A('v_readfirstlane_b32', T0, 'v40'); A('s_cmp_ge_u32', T0, 256); A('s_cbranch_scc1', al)
        A('s_sleep', 8)
        A('s_add_u32', 's68', 's68', 1); A('s_cmp_lt_u32', 's68', chain.SPIN_MAX); A('s_cbranch_scc1', lp)
        A('s_branch', ok)
        A.label(al)
        A('v_mbcnt_lo_u32_b32', 'v41', -1, 0); A('v_and_b32', 'v41', 7, 'v41'); A('v_lshlrev_b32', 'v41', 2, 'v41')
        A('buffer_load_dword', 'v40', 'v41', SDBG, 0, mods='offen sc1'); A('s_waitcnt', 'vmcnt(0)')
        A('v_cmp_ne_u32', 'vcc', 32 if not FORCE_SLOW else 33, 'v40')
        A('s_cbranch_vccnz', 'L_slow')
        A.label(ok)
        A.vm.clear()
        if DBG:
            A('s_memrealtime', 's[90:91]'); A('s_waitcnt', 'lgkmcnt(0)'); A('v_mov_b32', 'v40', 's90'); A('s_lshl_b32', T0, sV, 2); A('s_add_u32', T0, T0, sW); A('s_lshl_b32', T0, T0, 2)
            A('s_add_u32', T0, T0, DBGT + (1 << 19) + 8192); A('buffer_store_dword', 'v40', 'off', WS, T0); A('s_waitcnt', 'vmcnt(0)'); A.vm.clear()
    bulk.emit_ln(A, 'ln1', ready); bulk.emit_ln(A, 'lna', ready)
    bulk.emit_ln(A, 'ln0', lambda A: None, after=lambda: A('s_lshr_b32', sI, sI, 1))
    bulk.emit_att(A, ready)
    if 'qkv' in ROLES: bulk.emit_gemm1(A, 'qk', ready); bulk.emit_gemm1(A, 'v', ready)
    if 'f1' in ROLES: bulk.emit_gemm1(A, 'f1', ready)
    if 'op' in ROLES: bulk.emit_gemm2(A, 'op', ready)
    if 'f2' in ROLES: bulk.emit_gemm2(A, 'f2', ready)
    if 'chain' in ROLES:
        for w in range(4): chain.emit_chain_wave(A, w, ready, dbg=bool(CHDBG))
    return A.finalize()

if __name__ == '__main__':
    out = sys.argv[1]
    k = NAME + '_kernel'
    hdr = open('cdna_kernels/' + NAME + '.s.ref').read().split('; Override launch geometry')[0]
    txt = hdr + f'; @launch kernel={k} grid=(256,1,1) block=(256,1,1) lds=163840\n' + TARGET + kernel_header(k) + build() + kernel_desc(k)
    open(out, 'w').write(txt)
```

```python
from asmgen import *
from layout import *
from chain import tstamp, sMODE, WS, SQ, SK, SV, SO, SX, SM0, SW1, SW2, SOUT, SDBG, f32bits, SPIN_MAX
sW, sI, sL, sU = 's52', 's53', 's54', 's55'
sIN, sOUT_, sFI, sFO, sPROG, sPEND, sLB, sNX, sA, sB, sC_, sD = ['s%d' % i for i in range(56, 68)]
sSPIN, sDEAD = 's68', 's69'
sT0, sT1, sT2, sT3 = 's70', 's71', 's72', 's73'
NU = 64
CHK1 = [10, 20, 30]
import os
DBG = int(os.environ.get('DBG', 0))
LN_, L16, FOFF = 0, 1, 2
FV = 4
TM = 8

def common_setup(A, nlines):
    A('v_and_b32', v(LN_), 63, 'v0'); A('v_lshlrev_b32', v(L16), 4, v(LN_))
    A('v_min_u32', v(FOFF), nlines - 1, v(LN_)); A('v_lshlrev_b32', v(FOFF), 7, v(FOFF))
    A('s_mov_b32', sU, 0); A('s_mov_b32', sPROG, 0); A('s_mov_b32', sPEND, 0); A('s_mov_b32', sDEAD, 0)

def ph(A, i):
    if DBG: A('s_memtime', s(2 * i + (4 if i < 2 else 90 - 4), 2)) if False else None
PHR = [4, 6, 88, 94, 100]
def ph(A, i):
    if DBG: A('s_memtime', s(PHR[i], 2))
def ph_dump(A, tmp=3):
    if not DBG: return
    sk = A.newlabel('phd')
    A('s_cmp_lg_u32', sU, 40); A('s_cbranch_scc1', sk)
    A('s_lshr_b32', 's92', sFO, 7); A('s_lshl_b32', 's92', 's92', 2); A('s_bfe_u32', 's93', sFO, 0x20002); A('s_add_u32', 's92', 's92', 's93')
    A('s_lshl_b32', 's92', 's92', 6); A('s_add_u32', 's92', 's92', DBGT + (3 << 20))
    A('s_waitcnt', 'lgkmcnt(0)')
    for i, r in enumerate(PHR):
        A('v_mov_b32', v(tmp), s(r)); A('buffer_store_dword', v(tmp), 'off', WS, 's92', mods=f'offset:{4*i}'); A.vm.pop()
    A.label(sk)

def flag_load(A, soff=sFI, reg=FV, voff=FOFF, n=4):
    op = {1: 'buffer_load_dword', 2: 'buffer_load_dwordx2', 4: 'buffer_load_dwordx4'}[n]
    A(op, v(reg, n), v(voff), WS, soff, mods='offen sc1', tag='fl')

def flag_min(A, dst, reg=FV, n=4, lanes=64, floor=None):
    if n == 4:
        A('v_min3_u32', v(reg), v(reg), v(reg + 1), v(reg + 2)); A('v_min_u32', v(reg), v(reg), v(reg + 3))
    elif n == 2:
        A('v_min_u32', v(reg), v(reg), v(reg + 1))
    if floor is not None: A('v_max_u32', v(reg), v(reg), v(floor))
    if lanes > 1:
        for sh in (1, 2, 4, 8): A('v_min_u32_dpp', v(reg), v(reg), v(reg), mods=f'row_ror:{sh} row_mask:0xf bank_mask:0xf')
    A('v_readlane_b32', sT0, v(reg), 0)
    if lanes > 16:
        assert lanes <= 32
        A('v_readlane_b32', sT1, v(reg), 16); A('s_min_u32', sT0, sT0, sT1)
    A('s_max_u32', dst, dst, sT0)

def poll(A, pre, need, prog=sPROG, soff=sFI, reg=FV, voff=FOFF, n=4, lanes=64, floor=None):
    ok = A.newlabel(pre + '_ok'); lp = A.newlabel(pre + '_lp')
    A('s_cmp_gt_u32', prog, need); A('s_cbranch_scc1', ok)
    A('s_mov_b32', sSPIN, 0)
    A.label(lp)
    flag_load(A, soff, reg, voff, n); A.vm.pop()
    A('s_waitcnt', 'vmcnt(0)')
    flag_min(A, prog, reg, n, lanes, floor)
    A('s_cmp_gt_u32', prog, need); A('s_cbranch_scc1', ok)
    A('s_cmp_lg_u32', sDEAD, 0); A('s_cbranch_scc1', ok)
    A('s_sleep', 2)
    A('s_add_u32', sSPIN, sSPIN, 1); A('s_cmp_lt_u32', sSPIN, SPIN_MAX); A('s_cbranch_scc1', lp)
    A('s_mov_b32', sDEAD, 1)
    A.label(ok)

def publish(A, val, tmp=3, loc=False):
    A('v_mov_b32', v(tmp), val)
    A('s_mov_b64', 'exec', 1)
    if loc: local_flag(A, lambda md: A('buffer_store_dword', v(tmp), 'off', WS, sFO, mods=md))
    else: A('buffer_store_dword', v(tmp), 'off', WS, sFO, mods='sc1')
    A.vm.pop()
    if DBG: tstamp(A, sFO, val, tmp)
    A('s_mov_b64', 'exec', -1)

def local(A, fn):
    fn('sc1')

def local_flag(A, fn):
    sl = A.newlabel('loc_s'); e = A.newlabel('loc_e')
    A('s_cmp_lg_u32', sMODE, 0); A('s_cbranch_scc1', sl)
    n0 = len(A.vm); fn(''); del A.vm[n0:]
    A('s_branch', e)
    A.label(sl)
    fn('sc1')
    A.label(e)

def flag_out_addr(A, kind):
    A('s_mul_i32', sFO, sL, FL_LAYER); A('s_lshl_b32', sT0, sI, 7); A('s_add_u32', sFO, sFO, sT0)
    A('s_lshl_b32', sT0, sW, 2); A('s_add_u32', sFO, sFO, sT0); A('s_add_u32', sFO, sFO, kind)

def load_weights(A, srd, stride, rowpart, sbase, soffs, dst, perm):
    SRC, TR0, TR1 = TM, TM + 1, TM + 2
    t = [TM + 3 + i for i in range(6)]
    A('v_lshrrev_b32', v(t[0]), 5, v(LN_)); A('v_mul_u32_u24', v(t[0]), rowpart, v(t[0]))
    A('v_bfe_u32', v(t[1]), v(LN_), 3, 2); A('v_add_u32', v(t[0]), v(t[0]), v(t[1]))
    A('s_mov_b32', sT0, stride); A('v_mul_lo_u32', v(t[0]), v(t[0]), sT0)
    A('v_bfe_u32', v(t[1]), v(LN_), 4, 1); A('v_lshlrev_b32', v(t[1]), 2, v(t[1])); A('v_and_b32', v(t[2]), 7, v(LN_)); A('v_xor_b32', v(t[1]), v(t[1]), v(t[2]))
    A('v_lshl_add_u32', v(t[0]), v(t[1]), 4, v(t[0])); A('v_add_u32', v(SRC), sbase, v(t[0]))
    A('s_mul_i32', sLB, sW, 40960)
    A('v_lshrrev_b32', v(t[0]), 5, v(LN_)); A('v_lshlrev_b32', v(t[0]), 10, v(t[0]))
    A('v_bfe_u32', v(t[1]), v(LN_), 2, 2); A('v_lshl_add_u32', v(t[0]), v(t[1]), 7, v(t[0]))
    A('v_bfe_u32', v(t[1]), v(LN_), 3, 1); A('v_lshl_add_u32', v(t[0]), v(t[1]), 6, v(t[0]))
    A('v_bfe_u32', v(t[1]), v(LN_), 4, 1); A('v_lshl_add_u32', v(t[0]), v(t[1]), 5, v(t[0]))
    if perm:
        A('v_and_b32', v(t[1]), 1, v(LN_)); A('v_lshl_add_u32', v(t[0]), v(t[1]), 4, v(t[0]))
        A('v_bfe_u32', v(t[1]), v(LN_), 1, 1); A('v_lshl_add_u32', v(t[0]), v(t[1]), 3, v(t[0]))
    else:
        A('v_and_b32', v(t[1]), 3, v(LN_)); A('v_lshl_add_u32', v(t[0]), v(t[1]), 3, v(t[0]))
    A('v_add_u32', v(TR0), sLB, v(t[0])); A('v_xor_b32', v(TR1), 64, v(TR0))
    n_st = len(soffs); depth = 20
    def dma(n):
        for b in range(2):
            A('s_add_u32', 'm0', sLB, (n % depth) * 2048 + b * 1024)
            A('s_mov_b32', sT0, soffs[n][b])
            A('buffer_load_dwordx4', v(SRC), srd, sT0, mods='offen lds', tag=('W', n))
    for n in range(min(depth, n_st)): dma(n)
    for n in range(n_st):
        A.wait(vm=[('W', n)])
        for T in range(2):
            for hq in range(2):
                A('ds_read_b64_tr_b16', R(dst(n, T) + 2 * hq, 2), v(TR0 if T == 0 else TR1), mods=f'offset:{(n % depth)*2048 + 512*hq}', tag=('T', n))
        if n >= 1 and n - 1 + depth < n_st:
            A.wait(lg=[('T', n - 1)]); dma(n - 1 + depth)
    A.wait(vm=0, lg=0)

def emit_gemm1(A, kind, ready):
    P = f'G1{kind}_'
    A.label(P + 'entry'); A.reset_counts()
    RING, ACC, STG, WR = 64, 128, 160, 192
    AD, SA = 32, 33
    wreg = lambda n, T: WR + (2 * n + T) * 4
    common_setup(A, 2)
    FLR = 34
    A('v_mov_b32', v(FLR), 0)
    if kind != 'f1':
        A('s_cmp_eq_u32', sL, 0); A('s_cselect_b32', sT0, 15, 1); A('v_min_u32', v(FOFF), sT0, v(LN_))
        A('v_lshrrev_b32', v(FLR), 1, v(FOFF)); A('v_lshlrev_b32', v(FOFF), 7, v(FOFF))
    if kind == 'f1':
        A('s_lshl_b32', sT1, sI, 2); A('s_add_u32', sT1, sT1, sW)
        A('s_lshl_b32', sA, sT1, 7)
        A('s_cmp_lt_u32', sT1, 27); A('s_cselect_b32', sA, sA, '0x20000000')
        A('s_mul_i32', sOUT_, sL, LAYER_H); A('s_lshl_b32', sT1, sT1, 12); A('s_add_u32', sOUT_, sOUT_, sT1); A('s_add_u32', sOUT_, sOUT_, HF)
        load_weights(A, SW1, 3456, 4, sA, [(16 * n * 3456, (16 * n + 8) * 3456) for n in range(40)], wreg, False)
        A('s_mul_i32', sIN, sL, LAYER_X); A('s_add_u32', sIN, sIN, XN1)
        A('s_mul_i32', sFI, sL, FL_LAYER); A('s_add_u32', sFI, sFI, FL_LNA)
        flag_out_addr(A, FL_F1); nl = 2; ostep = UH
        A('v_mov_b32', v(SA), v(L16))
    else:
        A('s_mul_i32', sT1, sI, 43); A('s_lshr_b32', sB, sT1, 7)
        A('s_mul_i32', sT1, sB, 3); A('s_sub_u32', sC_, sI, sT1)
        A('s_lshl_b32', sA, sB, 9); A('s_lshl_b32', sT1, sW, 7); A('s_add_u32', sA, sA, sT1)
        soffs = [(16 * n * 8192, (16 * n + 8) * 8192) for n in range(40)]
        if kind == 'v':
            load_weights(A, SV, 8192, 4, sA, soffs, wreg, False)
        else:
            A('s_cmp_eq_u32', sC_, 0)
            A('s_cselect_b32', 's76', 's12', 's16'); A('s_cselect_b32', 's77', 's13', 's17'); A('s_mov_b32', 's78', hex(640 * 4096 * 2)); A('s_mov_b32', 's79', '0x20000')
            load_weights(A, 's[76:79]', 8192, 4, sA, soffs, wreg, False)
        A('s_mul_i32', sOUT_, sL, LAYER_F); A('s_lshl_b32', sT1, sB, 14); A('s_add_u32', sOUT_, sOUT_, sT1)
        A('s_lshr_b32', sT1, sW, 1); A('s_lshl_b32', sT1, sT1, 13); A('s_add_u32', sOUT_, sOUT_, sT1)
        A('s_and_b32', sT1, sW, 1)
        if kind == 'v':
            A('s_lshl_b32', sT1, sT1, 12); A('s_add_u32', sOUT_, sOUT_, sT1); A('s_add_u32', sOUT_, sOUT_, VT)
            A('s_mul_i32', 's74', sL, LAYER_KM); A('s_lshl_b32', sT1, sB, 13); A('s_add_u32', 's74', 's74', sT1)
            A('s_lshl_b32', sT1, sW, 11); A('s_add_u32', 's74', 's74', sT1); A('s_add_u32', 's74', 's74', KM)
            for i in range(4): A('v_mov_b32', v(36 + i), hex(SENT))
        else:
            A('s_lshl_b32', sT1, sT1, 11); A('s_add_u32', sOUT_, sOUT_, sT1)
            A('s_cmp_eq_u32', sC_, 0); A('s_cselect_b32', sT1, QF - KF, 0); A('s_add_u32', sOUT_, sOUT_, sT1); A('s_add_u32', sOUT_, sOUT_, KF)
        A('s_mul_i32', sIN, sL, LAYER_X); A('s_add_u32', sIN, sIN, XN)
        A('s_mul_i32', sFI, sL, FL_LAYER); A('s_add_u32', sFI, sFI, FL_XN)
        flag_out_addr(A, FL_QKV); nl = 16; ostep = 32 * 8192
        A('v_bfe_u32', v(TM), v(LN_), 4, 1); A('v_lshlrev_b32', v(TM), 10 if kind == 'v' else 12, v(TM))
        A('v_lshrrev_b32', v(TM + 1), 5, v(LN_)); A('v_lshl_add_u32', v(TM), v(TM + 1), 8, v(TM))
        A('v_and_b32', v(TM + 1), 15, v(LN_)); A('v_lshl_add_u32', v(SA), v(TM + 1), 4, v(TM))
    A('s_mul_i32', sT0, sW, 10240); A('s_add_u32', sIN, sIN, sT0); A('s_mov_b32', sLB, sT0)
    A('s_mov_b32', sD, 0)
    ready(A)
    A('s_barrier')
    def dma_in():
        for i in range(10):
            if i % 4 == 0:
                A('s_add_u32', 'm0', sLB, i * 1024); A('s_add_u32', sT0, sIN, i * 1024)
            A('buffer_load_dwordx4', v(L16), WS, sT0, mods=f'offen offset:{(i%4)*1024} sc1 lds'); A.vm.pop()
        A('s_add_u32', sIN, sIN, UX)
        A('s_add_u32', sT0, sLB, UX); A('s_sub_u32', sT1, sLB, UX); A('s_cmp_ge_u32', sLB, UX); A('s_cselect_b32', sLB, sT1, sT0)
    A.label(P + 'fetch')
    poll(A, P + 'p', sU, lanes=nl, floor=FLR)
    dma_in()
    A('s_waitcnt', 'vmcnt(0)')
    flag_load(A)
    A.label(P + 'top')
    A.reset_counts()
    NST = 4 if kind != 'v' else 6
    ph_dump(A); ph(A, 0)
    A('s_waitcnt', f'vmcnt({NST+1})')
    A('s_barrier')
    ph(A, 1)
    A('v_add_u32', v(AD), sD, v(L16))
    A('s_xor_b32', sD, sD, UX)
    D = 8
    def rd(k): A('ds_read_b128', v(RING + 4 * (k % D), 4), v(AD), mods=f'offset:{k*1024}', tag=('A', k))
    for k in range(D): rd(k)
    A('s_mov_b32', sNX, 0)
    for k in range(40):
        A.wait(lg=[('A', k)])
        x = v(RING + 4 * (k % D), 4)
        for T in range(2):
            wv = R(wreg(k, T), 4); acc = v(ACC + 16 * T, 16)
            a_, b_ = (x, wv) if kind == 'v' else (wv, x)
            A('v_mfma_f32_32x32x16_bf16', acc, a_, b_, '0' if k == 0 else acc)
        if k + D < 40: rd(k + D)
        if k in CHK1:
            sk = A.newlabel(P + 'chk')
            A('s_cmp_lg_u32', sNX, 0); A('s_cbranch_scc1', sk)
            A('s_waitcnt', 'vmcnt(0)')
            if k == CHK1[0]:
                s2 = A.newlabel(P + 'nop')
                A('s_cmp_eq_u32', sPEND, 0); A('s_cbranch_scc1', s2)
                publish(A, sU, loc=(kind == 'f1')); A('s_mov_b32', sPEND, 0)
                A.label(s2)
            flag_min(A, sPROG, lanes=nl, floor=FLR)
            s3 = A.newlabel(P + 'nopf')
            A('s_add_u32', sT2, sU, 1); A('s_min_u32', sPROG, sPROG, NU); A('s_cmp_gt_u32', sPROG, sT2); A('s_cbranch_scc0', s3)
            dma_in()
            A('s_mov_b32', sNX, 1)
            A('s_branch', sk)
            A.label(s3)
            if k != CHK1[-1]: flag_load(A); A.vm.pop()
            A.label(sk)
    ph(A, 4)
    flag_load(A)
    if kind == 'v':
        for i in range(2): A('buffer_store_dwordx4', v(36, 4), v(L16), WS, 's74', mods=f'offen offset:{1024*i} sc1')
        A('s_add_u32', 's74', 's74', 32 * 4096)
    for T in range(2):
        ac = ACC + 16 * T
        for i in range(2):
            st = STG + 8 * T + 4 * i
            if kind == 'qk':
                for c in range(4): A('v_cvt_pk_bf16_f32', v(st + c), v(ac + 4 * i + c), v(ac + 8 + 4 * i + c))
                off = T * 1024 + i * 512
            elif kind == 'v':
                for hh in range(2):
                    for c in range(2): A('v_cvt_pk_bf16_f32', v(st + 2 * hh + c), v(ac + 8 * hh + 4 * i + 2 * c), v(ac + 8 * hh + 4 * i + 2 * c + 1))
                off = T * 2048 + i * 512
            else:
                for c in range(4):
                    A('v_cvt_pk_bf16_f32', v(st + c), v(ac + 8 * i + 2 * c), v(ac + 8 * i + 2 * c + 1))
                    A('v_pk_max_i16', v(st + c), v(st + c), 0)
                off = T * 2048 + i * 1024
            if kind == 'f1': local(A, lambda md: A('buffer_store_dwordx4', v(st, 4), v(SA), WS, sOUT_, mods=f'offen offset:{off} {md}'))
            else: A('buffer_store_dwordx4', v(st, 4), v(SA), WS, sOUT_, mods=f'offen offset:{off} sc1')
    A('s_add_u32', sOUT_, sOUT_, ostep)
    A('s_add_u32', sU, sU, 1); A('s_mov_b32', sPEND, 1)
    A('s_cmp_lg_u32', sNX, 0); A('s_cbranch_scc1', P + 'top')
    A('s_waitcnt', 'vmcnt(0)')
    publish(A, sU, loc=(kind == 'f1')); flag_min(A, sPROG, lanes=nl, floor=FLR); A('s_mov_b32', sPEND, 0)
    A('s_cmp_lt_u32', sU, NU); A('s_cbranch_scc1', P + 'fetch')
    A('s_endpgm')

def emit_gemm2(A, kind, ready):
    P = f'G2{kind}_'
    A.label(P + 'entry'); A.reset_counts()
    nk = 32 if kind == 'op' else 27
    RING, ACC, RT = 64, 192, 224
    LW, LR, RES, SA = 32, 33, 36, 34
    wreg = lambda n, T: 256 + (2 * n + T) * 4
    if kind == 'op':
        common_setup(A, 1); nl = 1
        A('s_cmp_ge_u32', sI, 10); A('s_cselect_b32', sB, 1, 0)
        A('s_mul_i32', sT1, sB, 10); A('s_sub_u32', sC_, sI, sT1)
        A('s_lshl_b32', sT1, sB, 2); A('s_add_u32', sT1, sT1, sW)
        A('s_mul_i32', sA, sT1, 4 * 163840); A('s_lshl_b32', sT2, sC_, 7); A('s_add_u32', sA, sA, sT2)
        A('s_mul_i32', sIN, sL, LAYER_F); A('s_lshl_b32', sT2, sT1, 15); A('s_add_u32', sIN, sIN, sT2); A('s_add_u32', sIN, sIN, OF)
        A('s_mul_i32', sFI, sL, FL_LAYER); A('s_lshl_b32', sT2, sT1, 7); A('s_add_u32', sFI, sFI, sT2); A('s_add_u32', sFI, sFI, FL_ATT)
        soffs = [[(128 * (n >> 3) + 32 * ((n & 7) >> 1) + 8 * (n & 1) + 4 * b) * 1280 for b in range(2)] for n in range(32)]
        load_weights(A, SO, 1280, 16, sA, [tuple(x) for x in soffs], wreg, True)
        istep = 32 * 8192
        A('s_mul_i32', sOUT_, sL, LAYER_OP); A('s_mul_i32', sT2, sB, UP); A('s_add_u32', sOUT_, sOUT_, sT2)
        A('s_lshl_b32', sT2, sC_, 12); A('s_add_u32', sOUT_, sOUT_, sT2); A('s_lshl_b32', sT2, sW, 10); A('s_add_u32', sOUT_, sOUT_, sT2)
        A('s_add_u32', sOUT_, sOUT_, OPART)
        flag_out_addr(A, FL_OP); ostep = 2 * UP
    else:
        common_setup(A, 7); nl = 7
        A('s_mul_i32', sA, sW, 27 * 16 * 1280); A('s_lshl_b32', sT2, sI, 7); A('s_add_u32', sA, sA, sT2)
        A('s_mul_i32', sIN, sL, LAYER_H); A('s_mul_i32', sT2, sW, 27 * 1024); A('s_add_u32', sIN, sIN, sT2); A('s_add_u32', sIN, sIN, HF)
        A('s_mul_i32', sFI, sL, FL_LAYER); A('s_add_u32', sFI, sFI, FL_F1)
        load_weights(A, SW2, 1280, 8, sA, [((16 * n) * 1280, (16 * n + 4) * 1280) for n in range(27)], wreg, True)
        istep = UH
        A('s_lshl_b32', sT2, sI, 12); A('s_lshl_b32', sT3, sW, 10); A('s_add_u32', sT2, sT2, sT3)
        A('s_mul_i32', sB, sL, LAYER_X); A('s_add_u32', sB, sB, sT2); A('s_add_u32', sB, sB, X1)
        A('s_add_u32', sOUT_, sT2, XRES + LAYER_X)
        A('s_lshl_b32', sT2, sI, 7); A('s_lshl_b32', sT3, sW, 5); A('s_add_u32', sC_, sT2, sT3)
        A('v_and_b32', v(TM), 31, v(LN_)); A('v_mul_u32_u24', v(TM), 1280, v(TM)); A('v_lshrrev_b32', v(TM + 1), 5, v(LN_)); A('v_lshl_add_u32', v(SA), v(TM + 1), 4, v(TM))
        flag_out_addr(A, FL_F2); ostep = UX
    A('s_lshl_b32', sT2, sW, 11); A('v_add_u32', v(LW), sT2, v(L16))
    A('s_lshl_b32', sT2, sW, 13); A('v_add_u32', v(LR), sT2, v(L16))
    ready(A)
    A('s_barrier')
    def ld(k, base):
        if k % 4 == 0: A('s_add_u32', sT3, base, k * 1024)
        A('buffer_load_dwordx4', v(RING + 4 * k, 4), v(L16), WS, sT3, mods=f'offen offset:{(k%4)*1024} sc1'); A.vm.pop()
    A.label(P + 'fetch')
    poll(A, P + 'p', sU, lanes=nl)
    for k in range(nk): ld(k, sIN)
    A.label(P + 'top')
    A.reset_counts()
    ph_dump(A); ph(A, 0)
    K0 = 10
    def mm(k, cnt):
        A('s_waitcnt', f'vmcnt({cnt})')
        x = v(RING + 4 * k, 4)
        for T in range(2):
            acc = v(ACC + 16 * T, 16)
            A('v_mfma_f32_32x32x16_bf16', acc, R(wreg(k, T), 4), x, '0' if k == 0 else acc)
    for k in range(K0 + 1): mm(k, nk - 1 - k)
    ph(A, 1)
    sk = A.newlabel(P + 'nop')
    A('s_cmp_eq_u32', sPEND, 0); A('s_cbranch_scc1', sk)
    A('s_waitcnt', 'vmcnt(0)')
    publish(A, sU, loc=(kind == 'op'))
    flag_min(A, sPROG, lanes=nl)
    A('s_mov_b32', sPEND, 0)
    A.label(sk)
    ph(A, 2)
    base_iss = 0
    if kind == 'f2':
        A('buffer_load_dwordx4', v(RES, 4), v(L16), WS, sB, mods='offen sc1'); A.vm.pop(); base_iss = 1
        A('s_add_u32', sB, sB, UX)
    A('s_add_u32', sIN, sIN, istep)
    def pfpath(k0, per):
        issued = base_iss; nl_issued = 0
        for k in range(k0, nk):
            if k > k0: mm(k, nk - 1 - k + issued)
            for _ in range(per):
                if nl_issued <= k:
                    ld(nl_issued, sIN); nl_issued += 1; issued += 1
        while nl_issued < nk:
            ld(nl_issued, sIN); nl_issued += 1
    A('s_add_u32', sT2, sU, 1); A('s_cmp_gt_u32', sPROG, sT2); A('s_cselect_b32', sNX, 1, 0)
    A('s_cbranch_scc1', P + 'pf')
    flag_load(A); A.vm.pop()
    K1 = nk - 8
    for k in range(K0 + 1, K1 + 1): mm(k, nk - 1 - k + base_iss + 1)
    A('s_waitcnt', 'vmcnt(0)')
    flag_min(A, sPROG, lanes=nl)
    A('s_add_u32', sT2, sU, 1); A('s_cmp_gt_u32', sPROG, sT2); A('s_cselect_b32', sNX, 1, 0)
    A('s_cbranch_scc1', P + 'pf2')
    for k in range(K1 + 1, nk): mm(k, 0)
    A('s_branch', P + 'red')
    A.label(P + 'pf2')
    pfpath(K1, 2)
    A('s_branch', P + 'red')
    A.label(P + 'pf')
    pfpath(K0, 2)
    A.label(P + 'red')
    ph(A, 3)
    flag_load(A); A.vm.pop()
    for q in range(4):
        sk = A.newlabel(P + 'own')
        A('s_cmp_eq_u32', sW, q); A('s_cbranch_scc1', sk)
        A('ds_write_b128', v(LW), v(ACC + 8 * q, 4), mods=f'offset:{q*8192}'); A('ds_write_b128', v(LW), v(ACC + 8 * q + 4, 4), mods=f'offset:{q*8192+1024}')
        A('s_branch', sk + 'e')
        A.label(sk)
        for i in range(0, 8, 2): A('v_mov_b64', v(RT + 24 + i, 2), v(ACC + 8 * q + i, 2))
        A.label(sk + 'e')
    A('s_waitcnt', 'lgkmcnt(0)'); A('s_barrier')
    A('s_lshl_b32', sT2, sW, 11)
    for j in range(1, 4):
        A('s_xor_b32', sT3, sT2, j * 2048); A('v_add_u32', v(TM + j), sT3, v(LR))
        A('ds_read_b128', v(RT + 8 * (j - 1), 4), v(TM + j)); A('ds_read_b128', v(RT + 8 * (j - 1) + 4, 4), v(TM + j), mods='offset:1024')
    A('v_xor_b32', v(LW), 32768, v(LW)); A('v_xor_b32', v(LR), 32768, v(LR))
    A('s_waitcnt', 'lgkmcnt(0)')
    O = RT + 24
    for i in range(8):
        A('v_add_f32', v(RT + i), v(RT + i), v(RT + 8 + i)); A('v_add_f32', v(O + i), v(O + i), v(RT + 16 + i))
    for i in range(8): A('v_add_f32', v(O + i), v(O + i), v(RT + i))
    if kind == 'op':
        for i in range(4): A('v_cvt_pk_bf16_f32', v(RT + i), v(O + 2 * i), v(O + 2 * i + 1))
        A('buffer_store_dwordx4', v(RT, 4), v(L16), WS, sOUT_, mods='offen sc1')
    else:
        A('s_waitcnt', f'vmcnt({nk+1})')
        for i in range(4):
            A('v_cvt_pk_bf16_f32', v(RT + i), v(O + 2 * i), v(O + 2 * i + 1))
            A('v_lshlrev_b32', v(O + 2 * i), 16, v(RT + i)); A('v_and_b32', v(O + 2 * i + 1), '0xffff0000', v(RT + i))
            A('v_lshlrev_b32', v(RT + 8), 16, v(RES + i)); A('v_and_b32', v(RT + 9), '0xffff0000', v(RES + i))
            A('v_add_f32', v(O + 2 * i), v(O + 2 * i), v(RT + 8)); A('v_add_f32', v(O + 2 * i + 1), v(O + 2 * i + 1), v(RT + 9))
            A('v_cvt_pk_bf16_f32', v(RT + 4 + i), v(O + 2 * i), v(O + 2 * i + 1))
        l1 = A.newlabel(P + 'l1')
        A('s_cmp_lg_u32', sL, 0); A('s_cbranch_scc1', l1)
        local(A, lambda md: A('buffer_store_dwordx4', v(RT + 4, 4), v(L16), WS, sOUT_, mods=f'offen {md}'))
        A('s_branch', l1 + 'e')
        A.label(l1)
        A('buffer_store_dwordx4', v(RT + 4, 4), v(SA), SOUT, sC_, mods='offen')
        A('s_add_u32', sC_, sC_, 32 * 1280)
        A.label(l1 + 'e')
    ph(A, 4)
    A('s_add_u32', sOUT_, sOUT_, ostep)
    A('s_add_u32', sU, sU, 1); A('s_mov_b32', sPEND, 1)
    A('s_cmp_lg_u32', sNX, 0); A('s_cbranch_scc1', P + 'top')
    A('s_waitcnt', 'vmcnt(0)')
    publish(A, sU, loc=(kind == 'op')); flag_min(A, sPROG, lanes=nl); A('s_mov_b32', sPEND, 0)
    A('s_cmp_lt_u32', sU, NU); A('s_cbranch_scc1', P + 'fetch')
    A('s_endpgm')

def xlane_sum(A, r, t, rors):
    for sh in rors: A('v_add_f32_dpp', v(r), v(r), v(r), mods=f'row_ror:{sh} row_mask:0xf bank_mask:0xf')
    A('v_mov_b32', v(t), v(r)); A('v_permlane16_swap_b32', v(t), v(r)); A('v_add_f32', v(r), v(r), v(t))
    A('v_mov_b32', v(t), v(r)); A('v_permlane32_swap_b32', v(t), v(r)); A('v_add_f32', v(r), v(r), v(t))

def emit_ln(A, mode, ready, after=None):
    P = mode.upper() + '_'
    A.label(P + 'entry'); A.reset_counts()
    X, P0, P1, X1R, F, O = 44, 64, 104, 144, 164, 204
    VF, VP, LW = 32, 33, 34
    nl = {'ln0': 1, 'ln1': 10, 'lna': 20}[mode]
    step = 8 if mode == 'ln0' else 1
    common_setup(A, nl)
    A('v_lshrrev_b32', v(TM), 4, v(LN_)); A('v_and_b32', v(TM + 1), 15, v(LN_))
    A('v_lshlrev_b32', v(TM + 2), 9, v(TM)); A('v_lshl_add_u32', v(VF), v(TM + 1), 4, v(TM + 2))
    A('s_lshl_b32', sT0, sW, 2); A('v_add_u32', v(LW), sT0, v(L16))
    A('s_and_b32', sT3, sI, 1); A('s_lshl_b32', sT3, sT3, 8)
    A('s_mul_i32', sT2, sW, 20 * 512); A('s_add_u32', sT2, sT2, sT3)
    if mode == 'ln0':
        A('v_mul_u32_u24', v(TM + 2), 1280, v(TM + 1)); A('v_lshl_add_u32', v(VP), v(TM), 4, v(TM + 2))
        A('s_lshr_b32', sU, sI, 1); A('s_mul_i32', sT1, sU, UX); A('s_add_u32', sT2, sT2, sT1)
        A('s_add_u32', sB, sT2, XRES); A('s_add_u32', sOUT_, sT2, XN)
        A('s_mul_i32', sA, sT3, 80); A('s_add_u32', sA, sA, sT1); A('s_mul_i32', sT1, sW, 320); A('s_add_u32', sA, sA, sT1)
        A('s_mov_b32', sPROG, NU); A('s_mov_b32', 's78', sL); A('s_mov_b32', sL, 0)
        flag_out_addr(A, FL_XN); A('s_mov_b32', sL, 's78')
    elif mode == 'ln1':
        A('s_add_u32', sIN, sT2, XRES + LAYER_X); A('s_add_u32', sOUT_, sT2, XN + LAYER_X)
        A('s_mov_b32', sFI, FL_F2); A('s_mov_b32', sL, 1)
        flag_out_addr(A, FL_XN)
    else:
        A('s_mul_i32', sA, sL, LAYER_OP); A('s_add_u32', sA, sA, sT2); A('s_add_u32', sA, sA, OPART)
        A('s_mul_i32', sT1, sL, LAYER_X); A('s_add_u32', sT2, sT2, sT1)
        A('s_add_u32', sIN, sT2, XRES); A('s_add_u32', sOUT_, sT2, XN1); A('s_add_u32', sB, sT2, X1)
        A('s_mul_i32', sFI, sL, FL_LAYER); A('s_add_u32', sFI, sFI, FL_OP)
        flag_out_addr(A, FL_LNA)
    def f5(op, reg, base):
        for i in range(5):
            if i % 2 == 0: A('s_add_u32', sT3, base, i * 2048)
            A(op, v(reg + 4 * i, 4), v(VF), WS, sT3, mods=f'offen offset:{(i%2)*2048} sc1')
    nld = {'ln0': 5, 'ln1': 6, 'lna': 16}[mode]
    def loads():
        if mode == 'ln0':
            for i in range(5): A('buffer_load_dwordx4', v(X + 4 * i, 4), v(VP), SX, sA, mods=f'offen offset:{64*i}')
            A('s_add_u32', sA, sA, 8 * UX)
            return
        f5('buffer_load_dwordx4', X, sIN)
        if mode == 'lna':
            f5('buffer_load_dwordx4', P0, sA); A('s_add_u32', sA, sA, UP)
            f5('buffer_load_dwordx4', P1, sA); A('s_add_u32', sA, sA, UP)
        flag_load(A)
        A('s_add_u32', sIN, sIN, UX)
    a0, a1, tt = TM, TM + 2, TM + 4
    def xsum(region, mid=None):
        xlane_sum(A, a0, tt, [])
        A('ds_write_b32', v(LW), v(a0), mods=f'offset:{region}')
        if mid: mid()
        A('s_waitcnt', 'lgkmcnt(0)'); A('s_barrier')
        A('ds_read_b128', v(a0, 4), v(L16), mods=f'offset:{region}')
        A('s_waitcnt', 'lgkmcnt(0)')
        A('v_pk_add_f32', v(a0, 2), v(a0, 2), v(a0 + 2, 2)); A('v_add_f32', v(a0), v(a0), v(a0 + 1))
    ready(A)
    A.label(P + 'fetch')
    if mode != 'ln0': poll(A, P + 'p', sU, lanes=nl)
    loads()
    A.label(P + 'top')
    ph_dump(A); ph(A, 0)
    n = 20
    def unp(d, x):
        A('v_lshlrev_b32', v(d), 16, v(x)); A('v_and_b32', v(d + 1), '0xffff0000', v(x))
    fl = 0 if mode == 'ln0' else 1
    if mode == 'lna':
        A('s_waitcnt', 'vmcnt(6)')
        for i in range(n):
            unp(F + 2 * i, X + i); unp(TM + 6, P0 + i)
            A('v_pk_add_f32', v(F + 2 * i, 2), v(F + 2 * i, 2), v(TM + 6, 2))
    for i in range(n):
        if i % 4 == 0: A('s_waitcnt', f'vmcnt({4 - i//4 + fl})')
        if mode == 'lna':
            unp(TM + 6, P1 + i)
            A('v_pk_add_f32', v(F + 2 * i, 2), v(F + 2 * i, 2), v(TM + 6, 2))
            A('v_cvt_pk_bf16_f32', v(X1R + i), v(F + 2 * i), v(F + 2 * i + 1))
            unp(F + 2 * i, X1R + i)
        else:
            unp(F + 2 * i, X + i)
            if mode == 'ln0': A('v_mov_b32', v(X1R + i), v(X + i))
        if i == 1: A('v_pk_add_f32', v(a0, 2), v(F, 2), v(F + 2, 2))
        elif i > 1: A('v_pk_add_f32', v(a0, 2), v(a0, 2), v(F + 2 * i, 2))
    ph(A, 1)
    A('v_add_f32', v(a0), v(a0), v(a0 + 1))
    def pf():
        A('s_add_u32', sU, sU, step); A('s_mov_b32', sNX, 1)
        if mode != 'ln0':
            A('s_waitcnt', 'vmcnt(0)'); flag_min(A, sPROG, lanes=nl)
        A('s_cmp_gt_u32', sPROG, sU); A('s_cbranch_scc0', P + 'np')
        loads()
        A('s_branch', P + 'pe')
        A.label(P + 'np')
        A('s_mov_b32', sNX, 0)
        A.label(P + 'pe')
    xsum(0, pf)
    A('v_mul_f32', v(a0), hex(f32bits(-1.0 / 640)), v(a0)); A('v_mov_b32', v(a0 + 1), v(a0))
    def rnd(r):
        A('v_cvt_pk_bf16_f32', v(r), v(r), v(r)); A('v_lshlrev_b32', v(r), 16, v(r))
    dm = TM + 10
    A('v_mov_b32', v(dm), v(a0)); rnd(dm); A('v_sub_f32', v(dm), v(dm), v(a0))
    for i in range(n):
        A('v_pk_add_f32', v(F + 2 * i, 2), v(F + 2 * i, 2), v(a0, 2))
        if i == 0: A('v_pk_mul_f32', v(a1, 2), v(F, 2), v(F, 2))
        else: A('v_pk_fma_f32', v(a1, 2), v(F + 2 * i, 2), v(F + 2 * i, 2), v(a1, 2))
    A('v_add_f32', v(a0), v(a1), v(a1 + 1))
    def st1():
        if mode != 'ln1':
            f5('buffer_store_dwordx4', X1R, sB); A('s_add_u32', sB, sB, step * UX)
    xsum(1024, st1)
    A('v_mul_f32', v(a1), hex(f32bits(1.0 / 640)), v(a0)); rnd(a1)
    A('v_add_f32', v(a1), hex(f32bits(1e-5)), v(a1)); rnd(a1)
    A('v_sqrt_f32', v(a1), v(a1)); rnd(a1)
    A('v_rcp_f32', v(a0), v(a1)); A('v_mov_b32', v(a0 + 1), v(a0))
    A('v_mul_f32', v(dm), v(dm), v(a0)); A('v_mov_b32', v(dm + 1), v(dm))
    for i in range(n):
        A('v_pk_fma_f32', v(F + 2 * i, 2), v(F + 2 * i, 2), v(a0, 2), v(dm, 2))
        A('v_cvt_pk_bf16_f32', v(O + i), v(F + 2 * i), v(F + 2 * i + 1))
        if i % 4 == 3:
            k = i // 4
            if k % 2 == 0: A('s_add_u32', sT3, sOUT_, k * 2048)
            A('buffer_store_dwordx4', v(O + 4 * k, 4), v(VF), WS, sT3, mods=f'offen offset:{(k%2)*2048} sc1')
    ph(A, 2)
    A('s_add_u32', sOUT_, sOUT_, step * UX)
    A('s_cmp_lg_u32', sNX, 0); A('s_cbranch_scc1', P + 'pub')
    if mode != 'ln0': flag_load(A)
    A('s_waitcnt', 'vmcnt(0)')
    publish(A, sU)
    if mode != 'ln0': flag_min(A, sPROG, lanes=nl)
    A('s_cmp_lt_u32', sU, NU); A('s_cbranch_scc1', P + 'fetch')
    A('s_branch', P + 'end')
    A.label(P + 'pub')
    A('s_waitcnt', 'vmcnt(0)')
    ph(A, 3)
    publish(A, sU)
    A('s_branch', P + 'top')
    A.label(P + 'end')
    if after: after()
    else: A('s_endpgm')

def emit_att(A, ready):
    P = 'ATT_'
    A.label(P + 'entry'); A.reset_counts()
    Q, K, V, KMR, VMR, S, PB, O = 64, 96, 128, 160, 176, 184, 208, 224
    FRK, L8, SA, NEG, ZR = 32, 33, 34, 35, 36
    sCH, sFC, sKMo, sSC = 's74', 's75', 's76', 's77'
    msk = ['s[80:81]', 's[82:83]', 's[84:85]', 's[86:87]']
    common_setup(A, 3)
    g, n = TM, TM + 1
    A('v_lshrrev_b32', v(g), 4, v(LN_)); A('v_and_b32', v(n), 15, v(LN_))
    A('v_and_b32', v(TM + 2), 13, v(n)); A('v_and_b32', v(TM + 3), 1, v(g)); A('v_lshl_or_b32', v(TM + 2), v(TM + 3), 1, v(TM + 2))
    A('v_lshlrev_b32', v(TM + 2), 4, v(TM + 2)); A('v_lshrrev_b32', v(TM + 3), 1, v(g)); A('v_lshl_add_u32', v(FRK), v(TM + 3), 8, v(TM + 2))
    A('v_lshlrev_b32', v(L8), 3, v(LN_))
    A('v_lshlrev_b32', v(TM + 2), 9, v(g)); A('v_lshl_add_u32', v(SA), v(n), 4, v(TM + 2))
    for r in range(4):
        A('v_lshl_add_u32', v(TM + 2), v(g), 2, r); A('v_cmp_le_u32', msk[r], v(TM + 2), v(n))
    A('v_mov_b32', v(NEG), hex(f32bits(-1e9 * 128 ** 0.5))); A('v_mov_b32', v(ZR), 0)
    A('s_lshl_b32', sT2, sI, 2); A('s_add_u32', sT2, sT2, sW)
    A('s_mul_i32', sT3, sL, LAYER_F); A('s_lshl_b32', sT1, sT2, 13); A('s_add_u32', sT3, sT3, sT1)
    A('s_add_u32', sIN, sT3, KF); A('s_add_u32', sOUT_, sT3, OF)
    A('s_mul_i32', sKMo, sL, LAYER_KM); A('s_lshl_b32', sT1, sT2, 12); A('s_add_u32', sKMo, sKMo, sT1); A('s_add_u32', sKMo, sKMo, KM)
    A('s_mul_i32', sT3, sL, FL_LAYER)
    A('s_lshr_b32', sT1, sT2, 1); A('s_mul_i32', sT1, sT1, 384); A('s_add_u32', sFI, sT3, sT1); A('s_and_b32', sT1, sT2, 1); A('s_lshl_b32', sT1, sT1, 3)
    A('s_add_u32', sFI, sFI, sT1); A('s_add_u32', sFI, sFI, FL_QKV)
    A('s_lshl_b32', sT1, sT2, 7); A('s_add_u32', sFC, sT3, sT1); A('s_add_u32', sFC, sFC, FL_CH)
    A('s_mov_b32', sCH, 0); A('s_mov_b32', sSC, hex(f32bits(128 ** -0.5 * 1.4426950408889634)))
    flag_out_addr(A, FL_ATT)
    ready(A)
    def ld8(reg, base, delta):
        for i in range(8):
            if i % 4 == 0: A('s_add_u32', sT3, base, delta + i * 1024)
            A('buffer_load_dwordx4', v(reg + 4 * i, 4), v(L16), WS, sT3, mods=f'offen offset:{(i%4)*1024} sc1')
    A.label(P + 'fetch')
    poll(A, P + 'p', sU, n=2, lanes=3)
    ld8(Q, sIN, QF - KF); ld8(K, sIN, 0); ld8(V, sIN, VT - KF)
    A.label(P + 'top')
    A('s_waitcnt', 'vmcnt(8)')
    A.reset_counts()
    sreg = {(0, 'm'): S, (0, 0): S + 4, (1, 'm'): S + 8, (1, 0): S + 12, (1, 1): S + 16}
    for kp in range(4):
        for qt, kt in ((0, 0), (1, 0), (1, 1)):
            r = v(sreg[(qt, kt)], 4)
            A('v_mfma_f32_16x16x32_bf16', r, v(K + 16 * kt + 4 * kp, 4), v(Q + 16 * qt + 4 * kp, 4), '0' if kp == 0 else r)
    for base in (sreg[(0, 0)], sreg[(1, 1)]):
        for r in range(4): A('v_cndmask_b32', v(base + r), v(NEG), v(base + r), msk[r])
    A('s_mov_b32', sSPIN, 0)
    A.label(P + 'km')
    for kp in range(4): A('buffer_load_dwordx4', v(KMR + 4 * kp, 4), v(FRK), WS, sKMo, mods=f'offen offset:{1024*kp} sc1', tag=('km', kp))
    for w_ in range(4): A('buffer_load_dwordx2', v(VMR + 2 * w_, 2), v(L8), WS, sKMo, mods=f'offen offset:{1024*w_+512} sc1', tag='vm')
    flag_load(A, n=2)
    regs = [KMR + i for i in range(24)]
    for kp in range(4):
        A.wait(vm=[('km', kp)])
        for qt in range(2):
            r = v(sreg[(qt, 'm')], 4)
            A('v_mfma_f32_16x16x32_bf16', r, v(KMR + 4 * kp, 4), v(Q + 16 * qt + 4 * kp, 4), '0' if kp == 0 else r)
            for i in range(2):
                x = KMR + 4 * kp + 2 * qt + i
                A('v_pk_max_u16', v(TM + 8), v(x), v(x) if x == KMR else v(TM + 8))
    A.wait(vm=0)
    for i in range(8): A('v_pk_max_u16', v(TM + 8), v(VMR + i), v(TM + 8))
    A('v_pk_max_u16', v(TM + 8), v(TM + 8), v(TM + 8), mods='op_sel:[0,1] op_sel_hi:[1,0]')
    A('v_cmp_le_u32', 'vcc', '0xff810000', v(TM + 8))
    A('s_cbranch_vccz', P + 'kmok')
    A('s_cmp_lg_u32', sDEAD, 0); A('s_cbranch_scc1', P + 'kmok')
    A('v_mov_b32', v(TM + 8), -1)
    for r_ in regs:
        A('v_xor_b32', v(TM + 9), hex(SENT), v(r_)); A('v_pk_min_u16', v(TM + 8), v(TM + 8), v(TM + 9))
    A('v_pk_min_u16', v(TM + 8), v(TM + 8), v(TM + 8), mods='op_sel:[0,1] op_sel_hi:[1,0]')
    A('v_cmp_eq_u32', 'vcc', 0, v(TM + 8))
    A('s_cbranch_vccz', P + 'kmok')
    A('s_add_u32', sSPIN, sSPIN, 1); A('s_cmp_lt_u32', sSPIN, 4 * SPIN_MAX); A('s_cbranch_scc1', P + 'km')
    A('s_mov_b32', sDEAD, 1)
    A.label(P + 'kmok')
    A('s_add_u32', sKMo, sKMo, 32 * 4096)
    flag_min(A, sPROG, n=2, lanes=3)
    A('s_add_u32', sT2, sU, 1); A('s_cmp_gt_u32', sPROG, sT2); A('s_cselect_b32', sNX, 1, 0)
    A('s_add_u32', sIN, sIN, 32 * 8192); A('s_cmp_eq_u32', sNX, 0); A('s_cbranch_scc1', P + 'nq')
    ld8(Q, sIN, QF - KF); ld8(K, sIN, 0)
    A.label(P + 'nq')
    for qt in range(2):
        m_ = sreg[(qt, 'm')]
        vals = [m_, m_ + 1] + [sreg[(qt, 0)] + i for i in range(4 + 4 * qt)]
        mx, tm, sm = TM, TM + 1, TM + 2 + qt
        A('v_max3_f32', v(mx), v(vals[0]), v(vals[1]), v(vals[2])); A('v_max3_f32', v(tm), v(vals[3]), v(vals[4]), v(vals[5]))
        if qt:
            A('v_max3_f32', v(mx), v(mx), v(vals[6]), v(vals[7])); A('v_max3_f32', v(tm), v(tm), v(vals[8]), v(vals[9]))
        A('v_max_f32', v(mx), v(mx), v(tm)); A('v_mov_b32', v(tm), v(mx))
        A('v_permlane32_swap_b32', v(tm), v(mx)); A('v_max_f32', v(mx), v(mx), v(tm)); A('v_mov_b32', v(tm), v(mx))
        A('v_permlane16_swap_b32', v(tm), v(mx)); A('v_max_f32', v(mx), v(mx), v(tm))
        A('v_mul_f32', v(mx), sSC, v(mx))
        for r in vals: A('v_fma_f32', v(r), v(r), sSC, '-' + v(mx))
        for r in vals: A('v_exp_f32', v(r), v(r))
        pb = PB + 8 * qt
        for i in range(2 + 2 * qt): A('v_cvt_pk_bf16_f32', v(pb + i), v(vals[2 + 2 * i]), v(vals[3 + 2 * i]))
        if qt == 0: A('v_mov_b64', v(pb + 2, 2), 0)
        A('v_cvt_pk_bf16_f32', v(pb + 4), v(m_), v(m_ + 1)); A('v_mov_b32', v(pb + 5), 0); A('v_mov_b32', v(pb + 6), 0); A('v_mov_b32', v(pb + 7), v(pb + 4))
        A('v_add_f32', v(sm), v(vals[0]), v(vals[1]))
        for r in vals[2:]: A('v_add_f32', v(sm), v(sm), v(r))
        xlane_sum(A, sm, tm, [])
        A('v_rcp_f32', v(sm), v(sm))
    for qt in range(2):
        pb = PB + 8 * qt; sm = TM + 2 + qt
        for et in range(8):
            A('v_mfma_f32_16x16x32_bf16', v(O + 4 * et, 4), v(V + 4 * et, 4), v(pb, 4), '0')
        for et in range(8):
            A('v_mfma_f32_16x16x16_bf16', v(O + 4 * et, 4), v(VMR + 2 * (et >> 1), 2), v(pb + 4 + 2 * (et & 1), 2), v(O + 4 * et, 4))
        for p in range(4):
            st = S + 4 * (p & 1) + 8 * qt if False else KMR + 4 * p
            for i in range(8): A('v_mul_f32', v(O + 8 * p + i), v(O + 8 * p + i), v(sm))
            for i in range(4): A('v_cvt_pk_bf16_f32', v(st + i), v(O + 8 * p + 2 * i), v(O + 8 * p + 2 * i + 1))
            if p % 2 == 0: A('s_add_u32', sT3, sOUT_, p * 2048)
            local(A, lambda md: A('buffer_store_dwordx4', v(st, 4), v(SA), WS, sT3, mods=f'offen offset:{(p%2)*2048 + qt*256} {md}'))
    A('s_add_u32', sOUT_, sOUT_, 32 * 8192); A('s_add_u32', sU, sU, 1)
    A('s_cmp_eq_u32', sNX, 0); A('s_cbranch_scc1', P + 'nv')
    ld8(V, sIN, VT - KF)
    A('s_waitcnt', 'vmcnt(8)')
    publish(A, sU, loc=True)
    A('s_branch', P + 'top')
    A.label(P + 'nv')
    A('s_waitcnt', 'vmcnt(0)')
    publish(A, sU, loc=True)
    A('s_cmp_lt_u32', sU, NU); A('s_cbranch_scc1', P + 'fetch')
    A('s_endpgm')
```

```python
from asmgen import *
from layout import *
from chain import tstamp, sMODE, WS, SQ, SK, SV, SO, SX, SM0, SW1, SW2, SOUT, SDBG, f32bits, SPIN_MAX
sW, sI, sL, sU = 's52', 's53', 's54', 's55'
sIN, sOUT_, sFI, sFO, sPROG, sPEND, sLB, sNX, sA, sB, sC_, sD = ['s%d' % i for i in range(56, 68)]
sSPIN, sDEAD = 's68', 's69'
sT0, sT1, sT2, sT3 = 's70', 's71', 's72', 's73'
NU = 64
CHK1 = [10, 20, 30]
import os
DBG = int(os.environ.get('DBG', 0))
LN_, L16, FOFF = 0, 1, 2
FV = 4
TM = 8

def common_setup(A, nlines):
    A('v_and_b32', v(LN_), 63, 'v0'); A('v_lshlrev_b32', v(L16), 4, v(LN_))
    A('v_min_u32', v(FOFF), nlines - 1, v(LN_)); A('v_lshlrev_b32', v(FOFF), 7, v(FOFF))
    A('s_mov_b32', sU, 0); A('s_mov_b32', sPROG, 0); A('s_mov_b32', sPEND, 0); A('s_mov_b32', sDEAD, 0)

def ph(A, i):
    if DBG: A('s_memtime', s(2 * i + (4 if i < 2 else 90 - 4), 2)) if False else None
PHR = [4, 6, 88, 94, 100]
def ph(A, i):
    if DBG: A('s_memtime', s(PHR[i], 2))
def ph_dump(A, tmp=3):
    if not DBG: return
    sk = A.newlabel('phd')
    A('s_cmp_lg_u32', sU, 40); A('s_cbranch_scc1', sk)
    A('s_lshr_b32', 's92', sFO, 7); A('s_lshl_b32', 's92', 's92', 2); A('s_bfe_u32', 's93', sFO, 0x20002); A('s_add_u32', 's92', 's92', 's93')
    A('s_lshl_b32', 's92', 's92', 6); A('s_add_u32', 's92', 's92', DBGT + (3 << 20))
    A('s_waitcnt', 'lgkmcnt(0)')
    for i, r in enumerate(PHR):
        A('v_mov_b32', v(tmp), s(r)); A('buffer_store_dword', v(tmp), 'off', WS, 's92', mods=f'offset:{4*i}'); A.vm.pop()
    A.label(sk)

def flag_load(A, soff=sFI, reg=FV, voff=FOFF, n=4):
    op = {1: 'buffer_load_dword', 2: 'buffer_load_dwordx2', 4: 'buffer_load_dwordx4'}[n]
    A(op, v(reg, n), v(voff), WS, soff, mods='offen sc1', tag='fl')

def flag_min(A, dst, reg=FV, n=4, lanes=64, floor=None):
    if n == 4:
        A('v_min3_u32', v(reg), v(reg), v(reg + 1), v(reg + 2)); A('v_min_u32', v(reg), v(reg), v(reg + 3))
    elif n == 2:
        A('v_min_u32', v(reg), v(reg), v(reg + 1))
    if floor is not None: A('v_max_u32', v(reg), v(reg), v(floor))
    if lanes > 1:
        for sh in (1, 2, 4, 8): A('v_min_u32_dpp', v(reg), v(reg), v(reg), mods=f'row_ror:{sh} row_mask:0xf bank_mask:0xf')
    A('v_readlane_b32', sT0, v(reg), 0)
    if lanes > 16:
        assert lanes <= 32
        A('v_readlane_b32', sT1, v(reg), 16); A('s_min_u32', sT0, sT0, sT1)
    A('s_max_u32', dst, dst, sT0)

def poll(A, pre, need, prog=sPROG, soff=sFI, reg=FV, voff=FOFF, n=4, lanes=64, floor=None):
    ok = A.newlabel(pre + '_ok'); lp = A.newlabel(pre + '_lp')
    A('s_cmp_gt_u32', prog, need); A('s_cbranch_scc1', ok)
    A('s_mov_b32', sSPIN, 0)
    A.label(lp)
    flag_load(A, soff, reg, voff, n); A.vm.pop()
    A('s_waitcnt', 'vmcnt(0)')
    flag_min(A, prog, reg, n, lanes, floor)
    A('s_cmp_gt_u32', prog, need); A('s_cbranch_scc1', ok)
    A('s_cmp_lg_u32', sDEAD, 0); A('s_cbranch_scc1', ok)
    A('s_sleep', 2)
    A('s_add_u32', sSPIN, sSPIN, 1); A('s_cmp_lt_u32', sSPIN, SPIN_MAX); A('s_cbranch_scc1', lp)
    A('s_mov_b32', sDEAD, 1)
    A.label(ok)

def publish(A, val, tmp=3, loc=False):
    A('v_mov_b32', v(tmp), val)
    A('s_mov_b64', 'exec', 1)
    if loc: local_flag(A, lambda md: A('buffer_store_dword', v(tmp), 'off', WS, sFO, mods=md))
    else: A('buffer_store_dword', v(tmp), 'off', WS, sFO, mods='sc1')
    A.vm.pop()
    if DBG: tstamp(A, sFO, val, tmp)
    A('s_mov_b64', 'exec', -1)

def local(A, fn):
    fn('sc1')

def local_flag(A, fn):
    sl = A.newlabel('loc_s'); e = A.newlabel('loc_e')
    A('s_cmp_lg_u32', sMODE, 0); A('s_cbranch_scc1', sl)
    n0 = len(A.vm); fn(''); del A.vm[n0:]
    A('s_branch', e)
    A.label(sl)
    fn('sc1')
    A.label(e)

def flag_out_addr(A, kind):
    A('s_mul_i32', sFO, sL, FL_LAYER); A('s_lshl_b32', sT0, sI, 7); A('s_add_u32', sFO, sFO, sT0)
    A('s_lshl_b32', sT0, sW, 2); A('s_add_u32', sFO, sFO, sT0); A('s_add_u32', sFO, sFO, kind)

def load_weights(A, srd, stride, rowpart, sbase, soffs, dst, perm):
    SRC, TR0, TR1 = TM, TM + 1, TM + 2
    t = [TM + 3 + i for i in range(6)]
    A('v_lshrrev_b32', v(t[0]), 5, v(LN_)); A('v_mul_u32_u24', v(t[0]), rowpart, v(t[0]))
    A('v_bfe_u32', v(t[1]), v(LN_), 3, 2); A('v_add_u32', v(t[0]), v(t[0]), v(t[1]))
    A('s_mov_b32', sT0, stride); A('v_mul_lo_u32', v(t[0]), v(t[0]), sT0)
    A('v_bfe_u32', v(t[1]), v(LN_), 4, 1); A('v_lshlrev_b32', v(t[1]), 2, v(t[1])); A('v_and_b32', v(t[2]), 7, v(LN_)); A('v_xor_b32', v(t[1]), v(t[1]), v(t[2]))
    A('v_lshl_add_u32', v(t[0]), v(t[1]), 4, v(t[0])); A('v_add_u32', v(SRC), sbase, v(t[0]))
    A('s_mul_i32', sLB, sW, 40960)
    A('v_lshrrev_b32', v(t[0]), 5, v(LN_)); A('v_lshlrev_b32', v(t[0]), 10, v(t[0]))
    A('v_bfe_u32', v(t[1]), v(LN_), 2, 2); A('v_lshl_add_u32', v(t[0]), v(t[1]), 7, v(t[0]))
    A('v_bfe_u32', v(t[1]), v(LN_), 3, 1); A('v_lshl_add_u32', v(t[0]), v(t[1]), 6, v(t[0]))
    A('v_bfe_u32', v(t[1]), v(LN_), 4, 1); A('v_lshl_add_u32', v(t[0]), v(t[1]), 5, v(t[0]))
    if perm:
        A('v_and_b32', v(t[1]), 1, v(LN_)); A('v_lshl_add_u32', v(t[0]), v(t[1]), 4, v(t[0]))
        A('v_bfe_u32', v(t[1]), v(LN_), 1, 1); A('v_lshl_add_u32', v(t[0]), v(t[1]), 3, v(t[0]))
    else:
        A('v_and_b32', v(t[1]), 3, v(LN_)); A('v_lshl_add_u32', v(t[0]), v(t[1]), 3, v(t[0]))
    A('v_add_u32', v(TR0), sLB, v(t[0])); A('v_xor_b32', v(TR1), 64, v(TR0))
    n_st = len(soffs); depth = 20
    def dma(n):
        for b in range(2):
            A('s_add_u32', 'm0', sLB, (n % depth) * 2048 + b * 1024)
            A('s_mov_b32', sT0, soffs[n][b])
            A('buffer_load_dwordx4', v(SRC), srd, sT0, mods='offen lds', tag=('W', n))
    for n in range(min(depth, n_st)): dma(n)
    for n in range(n_st):
        A.wait(vm=[('W', n)])
        for T in range(2):
            for hq in range(2):
                A('ds_read_b64_tr_b16', R(dst(n, T) + 2 * hq, 2), v(TR0 if T == 0 else TR1), mods=f'offset:{(n % depth)*2048 + 512*hq}', tag=('T', n))
        if n >= 1 and n - 1 + depth < n_st:
            A.wait(lg=[('T', n - 1)]); dma(n - 1 + depth)
    A.wait(vm=0, lg=0)

def emit_gemm1(A, kind, ready):
    P = f'G1{kind}_'
    A.label(P + 'entry'); A.reset_counts()
    RING, ACC, STG, WR = 64, 128, 160, 192
    AD, SA = 32, 33
    wreg = lambda n, T: WR + (2 * n + T) * 4
    common_setup(A, 2)
    FLR = 34
    A('v_mov_b32', v(FLR), 0)
    if kind != 'f1':
        A('s_cmp_eq_u32', sL, 0); A('s_cselect_b32', sT0, 15, 1); A('v_min_u32', v(FOFF), sT0, v(LN_))
        A('v_lshrrev_b32', v(FLR), 1, v(FOFF)); A('v_lshlrev_b32', v(FOFF), 7, v(FOFF))
    if kind == 'f1':
        A('s_lshl_b32', sT1, sI, 2); A('s_add_u32', sT1, sT1, sW)
        A('s_lshl_b32', sA, sT1, 7)
        A('s_cmp_lt_u32', sT1, 27); A('s_cselect_b32', sA, sA, '0x20000000')
        A('s_mul_i32', sOUT_, sL, LAYER_H); A('s_lshl_b32', sT1, sT1, 12); A('s_add_u32', sOUT_, sOUT_, sT1); A('s_add_u32', sOUT_, sOUT_, HF)
        load_weights(A, SW1, 3456, 4, sA, [(16 * n * 3456, (16 * n + 8) * 3456) for n in range(40)], wreg, False)
        A('s_mul_i32', sIN, sL, LAYER_X); A('s_add_u32', sIN, sIN, XN1)
        A('s_mul_i32', sFI, sL, FL_LAYER); A('s_add_u32', sFI, sFI, FL_LNA)
        flag_out_addr(A, FL_F1); nl = 2; ostep = UH
        A('v_mov_b32', v(SA), v(L16))
    else:
        A('s_mul_i32', sT1, sI, 43); A('s_lshr_b32', sB, sT1, 7)
        A('s_mul_i32', sT1, sB, 3); A('s_sub_u32', sC_, sI, sT1)
        A('s_lshl_b32', sA, sB, 9); A('s_lshl_b32', sT1, sW, 7); A('s_add_u32', sA, sA, sT1)
        soffs = [(16 * n * 8192, (16 * n + 8) * 8192) for n in range(40)]
        if kind == 'v':
            load_weights(A, SV, 8192, 4, sA, soffs, wreg, False)
        else:
            A('s_cmp_eq_u32', sC_, 0)
            A('s_cselect_b32', 's76', 's12', 's16'); A('s_cselect_b32', 's77', 's13', 's17'); A('s_mov_b32', 's78', hex(640 * 4096 * 2)); A('s_mov_b32', 's79', '0x20000')
            load_weights(A, 's[76:79]', 8192, 4, sA, soffs, wreg, False)
        A('s_mul_i32', sOUT_, sL, LAYER_F); A('s_lshl_b32', sT1, sB, 14); A('s_add_u32', sOUT_, sOUT_, sT1)
        A('s_lshr_b32', sT1, sW, 1); A('s_lshl_b32', sT1, sT1, 13); A('s_add_u32', sOUT_, sOUT_, sT1)
        A('s_and_b32', sT1, sW, 1)
        if kind == 'v':
            A('s_lshl_b32', sT1, sT1, 12); A('s_add_u32', sOUT_, sOUT_, sT1); A('s_add_u32', sOUT_, sOUT_, VT)
            A('s_mul_i32', 's74', sL, LAYER_KM); A('s_lshl_b32', sT1, sB, 13); A('s_add_u32', 's74', 's74', sT1)
            A('s_lshl_b32', sT1, sW, 11); A('s_add_u32', 's74', 's74', sT1); A('s_add_u32', 's74', 's74', KM)
            for i in range(4): A('v_mov_b32', v(36 + i), hex(SENT))
        else:
            A('s_lshl_b32', sT1, sT1, 11); A('s_add_u32', sOUT_, sOUT_, sT1)
            A('s_cmp_eq_u32', sC_, 0); A('s_cselect_b32', sT1, QF - KF, 0); A('s_add_u32', sOUT_, sOUT_, sT1); A('s_add_u32', sOUT_, sOUT_, KF)
        A('s_mul_i32', sIN, sL, LAYER_X); A('s_add_u32', sIN, sIN, XN)
        A('s_mul_i32', sFI, sL, FL_LAYER); A('s_add_u32', sFI, sFI, FL_XN)
        flag_out_addr(A, FL_QKV); nl = 16; ostep = 32 * 8192
        A('v_bfe_u32', v(TM), v(LN_), 4, 1); A('v_lshlrev_b32', v(TM), 10 if kind == 'v' else 12, v(TM))
        A('v_lshrrev_b32', v(TM + 1), 5, v(LN_)); A('v_lshl_add_u32', v(TM), v(TM + 1), 8, v(TM))
        A('v_and_b32', v(TM + 1), 15, v(LN_)); A('v_lshl_add_u32', v(SA), v(TM + 1), 4, v(TM))
    A('s_mul_i32', sT0, sW, 10240); A('s_add_u32', sIN, sIN, sT0); A('s_mov_b32', sLB, sT0)
    A('s_mov_b32', sD, 0)
    ready(A)
    A('s_barrier')
    def dma_in():
        for i in range(10):
            if i % 4 == 0:
                A('s_add_u32', 'm0', sLB, i * 1024); A('s_add_u32', sT0, sIN, i * 1024)
            A('buffer_load_dwordx4', v(L16), WS, sT0, mods=f'offen offset:{(i%4)*1024} sc1 lds'); A.vm.pop()
        A('s_add_u32', sIN, sIN, UX)
        A('s_add_u32', sT0, sLB, UX); A('s_sub_u32', sT1, sLB, UX); A('s_cmp_ge_u32', sLB, UX); A('s_cselect_b32', sLB, sT1, sT0)
    A.label(P + 'fetch')
    poll(A, P + 'p', sU, lanes=nl, floor=FLR)
    dma_in()
    A('s_waitcnt', 'vmcnt(0)')
    flag_load(A)
    A.label(P + 'top')
    A.reset_counts()
    NST = 4 if kind != 'v' else 6
    ph_dump(A); ph(A, 0)
    A('s_waitcnt', f'vmcnt({NST+1})')
    A('s_barrier')
    ph(A, 1)
    A('v_add_u32', v(AD), sD, v(L16))
    A('s_xor_b32', sD, sD, UX)
    D = 8
    def rd(k): A('ds_read_b128', v(RING + 4 * (k % D), 4), v(AD), mods=f'offset:{k*1024}', tag=('A', k))
    for k in range(D): rd(k)
    A('s_mov_b32', sNX, 0)
    for k in range(40):
        A.wait(lg=[('A', k)])
        x = v(RING + 4 * (k % D), 4)
        for T in range(2):
            wv = R(wreg(k, T), 4); acc = v(ACC + 16 * T, 16)
            a_, b_ = (x, wv) if kind == 'v' else (wv, x)
            A('v_mfma_f32_32x32x16_bf16', acc, a_, b_, '0' if k == 0 else acc)
        if k + D < 40: rd(k + D)
        if k in CHK1:
            sk = A.newlabel(P + 'chk')
            A('s_cmp_lg_u32', sNX, 0); A('s_cbranch_scc1', sk)
            A('s_waitcnt', 'vmcnt(0)')
            if k == CHK1[0]:
                s2 = A.newlabel(P + 'nop')
                A('s_cmp_eq_u32', sPEND, 0); A('s_cbranch_scc1', s2)
                publish(A, sU, loc=(kind == 'f1')); A('s_mov_b32', sPEND, 0)
                A.label(s2)
            flag_min(A, sPROG, lanes=nl, floor=FLR)
            s3 = A.newlabel(P + 'nopf')
            A('s_add_u32', sT2, sU, 1); A('s_min_u32', sPROG, sPROG, NU); A('s_cmp_gt_u32', sPROG, sT2); A('s_cbranch_scc0', s3)
            dma_in()
            A('s_mov_b32', sNX, 1)
            A('s_branch', sk)
            A.label(s3)
            if k != CHK1[-1]: flag_load(A); A.vm.pop()
            A.label(sk)
    ph(A, 4)
    flag_load(A)
    if kind == 'v':
        for i in range(2): A('buffer_store_dwordx4', v(36, 4), v(L16), WS, 's74', mods=f'offen offset:{1024*i} sc1')
        A('s_add_u32', 's74', 's74', 32 * 4096)
    for T in range(2):
        ac = ACC + 16 * T
        for i in range(2):
            st = STG + 8 * T + 4 * i
            if kind == 'qk':
                for c in range(4): A('v_cvt_pk_bf16_f32', v(st + c), v(ac + 4 * i + c), v(ac + 8 + 4 * i + c))
                off = T * 1024 + i * 512
            elif kind == 'v':
                for hh in range(2):
                    for c in range(2): A('v_cvt_pk_bf16_f32', v(st + 2 * hh + c), v(ac + 8 * hh + 4 * i + 2 * c), v(ac + 8 * hh + 4 * i + 2 * c + 1))
                off = T * 2048 + i * 512
            else:
                for c in range(4):
                    A('v_cvt_pk_bf16_f32', v(st + c), v(ac + 8 * i + 2 * c), v(ac + 8 * i + 2 * c + 1))
                    A('v_pk_max_i16', v(st + c), v(st + c), 0)
                off = T * 2048 + i * 1024
            if kind == 'f1': local(A, lambda md: A('buffer_store_dwordx4', v(st, 4), v(SA), WS, sOUT_, mods=f'offen offset:{off} {md}'))
            else: A('buffer_store_dwordx4', v(st, 4), v(SA), WS, sOUT_, mods=f'offen offset:{off} sc1')
    A('s_add_u32', sOUT_, sOUT_, ostep)
    A('s_add_u32', sU, sU, 1); A('s_mov_b32', sPEND, 1)
    A('s_cmp_lg_u32', sNX, 0); A('s_cbranch_scc1', P + 'top')
    A('s_waitcnt', 'vmcnt(0)')
    publish(A, sU, loc=(kind == 'f1')); flag_min(A, sPROG, lanes=nl, floor=FLR); A('s_mov_b32', sPEND, 0)
    A('s_cmp_lt_u32', sU, NU); A('s_cbranch_scc1', P + 'fetch')
    A('s_endpgm')

def emit_gemm2(A, kind, ready):
    P = f'G2{kind}_'
    A.label(P + 'entry'); A.reset_counts()
    nk = 32 if kind == 'op' else 27
    RING, ACC, RT = 64, 192, 224
    LW, LR, RES, SA = 32, 33, 36, 34
    wreg = lambda n, T: 256 + (2 * n + T) * 4
    if kind == 'op':
        common_setup(A, 1); nl = 1
        A('s_cmp_ge_u32', sI, 10); A('s_cselect_b32', sB, 1, 0)
        A('s_mul_i32', sT1, sB, 10); A('s_sub_u32', sC_, sI, sT1)
        A('s_lshl_b32', sT1, sB, 2); A('s_add_u32', sT1, sT1, sW)
        A('s_mul_i32', sA, sT1, 4 * 163840); A('s_lshl_b32', sT2, sC_, 7); A('s_add_u32', sA, sA, sT2)
        A('s_mul_i32', sIN, sL, LAYER_F); A('s_lshl_b32', sT2, sT1, 15); A('s_add_u32', sIN, sIN, sT2); A('s_add_u32', sIN, sIN, OF)
        A('s_mul_i32', sFI, sL, FL_LAYER); A('s_lshl_b32', sT2, sT1, 7); A('s_add_u32', sFI, sFI, sT2); A('s_add_u32', sFI, sFI, FL_ATT)
        soffs = [[(128 * (n >> 3) + 32 * ((n & 7) >> 1) + 8 * (n & 1) + 4 * b) * 1280 for b in range(2)] for n in range(32)]
        load_weights(A, SO, 1280, 16, sA, [tuple(x) for x in soffs], wreg, True)
        istep = 32 * 8192
        A('s_mul_i32', sOUT_, sL, LAYER_OP); A('s_mul_i32', sT2, sB, UP); A('s_add_u32', sOUT_, sOUT_, sT2)
        A('s_lshl_b32', sT2, sC_, 12); A('s_add_u32', sOUT_, sOUT_, sT2); A('s_lshl_b32', sT2, sW, 10); A('s_add_u32', sOUT_, sOUT_, sT2)
        A('s_add_u32', sOUT_, sOUT_, OPART)
        flag_out_addr(A, FL_OP); ostep = 2 * UP
    else:
        common_setup(A, 7); nl = 7
        A('s_mul_i32', sA, sW, 27 * 16 * 1280); A('s_lshl_b32', sT2, sI, 7); A('s_add_u32', sA, sA, sT2)
        A('s_mul_i32', sIN, sL, LAYER_H); A('s_mul_i32', sT2, sW, 27 * 1024); A('s_add_u32', sIN, sIN, sT2); A('s_add_u32', sIN, sIN, HF)
        A('s_mul_i32', sFI, sL, FL_LAYER); A('s_add_u32', sFI, sFI, FL_F1)
        load_weights(A, SW2, 1280, 8, sA, [((16 * n) * 1280, (16 * n + 4) * 1280) for n in range(27)], wreg, True)
        istep = UH
        A('s_lshl_b32', sT2, sI, 12); A('s_lshl_b32', sT3, sW, 10); A('s_add_u32', sT2, sT2, sT3)
        A('s_mul_i32', sB, sL, LAYER_X); A('s_add_u32', sB, sB, sT2); A('s_add_u32', sB, sB, X1)
        A('s_add_u32', sOUT_, sT2, XRES + LAYER_X)
        A('s_lshl_b32', sT2, sI, 7); A('s_lshl_b32', sT3, sW, 5); A('s_add_u32', sC_, sT2, sT3)
        A('v_and_b32', v(TM), 31, v(LN_)); A('v_mul_u32_u24', v(TM), 1280, v(TM)); A('v_lshrrev_b32', v(TM + 1), 5, v(LN_)); A('v_lshl_add_u32', v(SA), v(TM + 1), 4, v(TM))
        flag_out_addr(A, FL_F2); ostep = UX
    A('s_lshl_b32', sT2, sW, 11); A('v_add_u32', v(LW), sT2, v(L16))
    A('s_lshl_b32', sT2, sW, 13); A('v_add_u32', v(LR), sT2, v(L16))
    ready(A)
    A('s_barrier')
    def ld(k, base):
        if k % 4 == 0: A('s_add_u32', sT3, base, k * 1024)
        A('buffer_load_dwordx4', v(RING + 4 * k, 4), v(L16), WS, sT3, mods=f'offen offset:{(k%4)*1024} sc1'); A.vm.pop()
    A.label(P + 'fetch')
    poll(A, P + 'p', sU, lanes=nl)
    W = int(os.environ.get('G2W', 10))
    for k in range(W): ld(k, sIN)
    A.label(P + 'top')
    A.reset_counts()
    ph_dump(A); ph(A, 0)
    def mm(k, cnt):
        A('s_waitcnt', f'vmcnt({cnt})')
        x = v(RING + 4 * k, 4)
        for T in range(2):
            acc = v(ACC + 16 * T, 16)
            A('v_mfma_f32_32x32x16_bf16', acc, R(wreg(k, T), 4), x, '0' if k == 0 else acc)
    if W % 4: A('s_add_u32', sT3, sIN, (W // 4) * 4096)
    for k in range(nk - W):
        mm(k, W - 1)
        if k == W:
            sk = A.newlabel(P + 'nop')
            A('s_cmp_eq_u32', sPEND, 0); A('s_cbranch_scc1', sk)
            publish(A, sU, loc=(kind == 'op')); A('s_mov_b32', sPEND, 0)
            A.label(sk)
        if k == 0 and kind == 'f2':
            A('buffer_load_dwordx4', v(RES, 4), v(L16), WS, sB, mods='offen sc1'); A.vm.pop()
            A('s_add_u32', sB, sB, UX)
        if k == nk - 2 * W: flag_load(A); A.vm.pop()
        ld(k + W, sIN)
    assert nk - W > W
    ph(A, 1)
    mm(nk - W, W - 1)
    flag_min(A, sPROG, lanes=nl)
    A('s_add_u32', sIN, sIN, istep)
    A('s_add_u32', sT2, sU, 1); A('s_cmp_gt_u32', sPROG, sT2); A('s_cselect_b32', sNX, 1, 0)
    A('s_cbranch_scc1', P + 'pf')
    for k in range(nk - W + 1, nk): mm(k, nk - 1 - k)
    A('s_branch', P + 'red')
    A.label(P + 'pf')
    ld(0, sIN)
    for k in range(nk - W + 1, nk):
        mm(k, W - 1); ld(k - (nk - W), sIN)
    A.label(P + 'red')
    ph(A, 3)
    flag_load(A); A.vm.pop()
    for q in range(4):
        sk = A.newlabel(P + 'own')
        A('s_cmp_eq_u32', sW, q); A('s_cbranch_scc1', sk)
        A('ds_write_b128', v(LW), v(ACC + 8 * q, 4), mods=f'offset:{q*8192}'); A('ds_write_b128', v(LW), v(ACC + 8 * q + 4, 4), mods=f'offset:{q*8192+1024}')
        A('s_branch', sk + 'e')
        A.label(sk)
        for i in range(0, 8, 2): A('v_mov_b64', v(RT + 24 + i, 2), v(ACC + 8 * q + i, 2))
        A.label(sk + 'e')
    A('s_waitcnt', 'lgkmcnt(0)'); A('s_barrier')
    A('s_lshl_b32', sT2, sW, 11)
    for j in range(1, 4):
        A('s_xor_b32', sT3, sT2, j * 2048); A('v_add_u32', v(TM + j), sT3, v(LR))
        A('ds_read_b128', v(RT + 8 * (j - 1), 4), v(TM + j)); A('ds_read_b128', v(RT + 8 * (j - 1) + 4, 4), v(TM + j), mods='offset:1024')
    A('v_xor_b32', v(LW), 32768, v(LW)); A('v_xor_b32', v(LR), 32768, v(LR))
    A('s_waitcnt', 'lgkmcnt(0)')
    O = RT + 24
    for i in range(8):
        A('v_add_f32', v(RT + i), v(RT + i), v(RT + 8 + i)); A('v_add_f32', v(O + i), v(O + i), v(RT + 16 + i))
    for i in range(8): A('v_add_f32', v(O + i), v(O + i), v(RT + i))
    if kind == 'op':
        for i in range(4): A('v_cvt_pk_bf16_f32', v(RT + i), v(O + 2 * i), v(O + 2 * i + 1))
        A('buffer_store_dwordx4', v(RT, 4), v(L16), WS, sOUT_, mods='offen sc1')
    else:
        for i in range(4):
            A('v_cvt_pk_bf16_f32', v(RT + i), v(O + 2 * i), v(O + 2 * i + 1))
            A('v_lshlrev_b32', v(O + 2 * i), 16, v(RT + i)); A('v_and_b32', v(O + 2 * i + 1), '0xffff0000', v(RT + i))
            A('v_lshlrev_b32', v(RT + 8), 16, v(RES + i)); A('v_and_b32', v(RT + 9), '0xffff0000', v(RES + i))
            A('v_add_f32', v(O + 2 * i), v(O + 2 * i), v(RT + 8)); A('v_add_f32', v(O + 2 * i + 1), v(O + 2 * i + 1), v(RT + 9))
            A('v_cvt_pk_bf16_f32', v(RT + 4 + i), v(O + 2 * i), v(O + 2 * i + 1))
        l1 = A.newlabel(P + 'l1')
        A('s_cmp_lg_u32', sL, 0); A('s_cbranch_scc1', l1)
        local(A, lambda md: A('buffer_store_dwordx4', v(RT + 4, 4), v(L16), WS, sOUT_, mods=f'offen {md}'))
        A('s_branch', l1 + 'e')
        A.label(l1)
        A('buffer_store_dwordx4', v(RT + 4, 4), v(SA), SOUT, sC_, mods='offen')
        A('s_add_u32', sC_, sC_, 32 * 1280)
        A.label(l1 + 'e')
    ph(A, 4)
    A('s_add_u32', sOUT_, sOUT_, ostep)
    A('s_add_u32', sU, sU, 1); A('s_mov_b32', sPEND, 1)
    A('s_cmp_lg_u32', sNX, 0); A('s_cbranch_scc1', P + 'top')
    A('s_waitcnt', 'vmcnt(0)')
    publish(A, sU, loc=(kind == 'op')); flag_min(A, sPROG, lanes=nl); A('s_mov_b32', sPEND, 0)
    A('s_cmp_lt_u32', sU, NU); A('s_cbranch_scc1', P + 'fetch')
    A('s_endpgm')

def xlane_sum(A, r, t, rors):
    for sh in rors: A('v_add_f32_dpp', v(r), v(r), v(r), mods=f'row_ror:{sh} row_mask:0xf bank_mask:0xf')
    A('v_mov_b32', v(t), v(r)); A('v_permlane16_swap_b32', v(t), v(r)); A('v_add_f32', v(r), v(r), v(t))
    A('v_mov_b32', v(t), v(r)); A('v_permlane32_swap_b32', v(t), v(r)); A('v_add_f32', v(r), v(r), v(t))

def emit_ln(A, mode, ready, after=None):
    P = mode.upper() + '_'
    A.label(P + 'entry'); A.reset_counts()
    X, P0, P1, X1R, F, O = 44, 64, 104, 144, 164, 204
    VF, VP, LW = 32, 33, 34
    nl = {'ln0': 1, 'ln1': 10, 'lna': 20}[mode]
    step = 8 if mode == 'ln0' else 1
    common_setup(A, nl)
    A('v_lshrrev_b32', v(TM), 4, v(LN_)); A('v_and_b32', v(TM + 1), 15, v(LN_))
    A('v_lshlrev_b32', v(TM + 2), 9, v(TM)); A('v_lshl_add_u32', v(VF), v(TM + 1), 4, v(TM + 2))
    A('s_lshl_b32', sT0, sW, 2); A('v_add_u32', v(LW), sT0, v(L16))
    A('s_and_b32', sT3, sI, 1); A('s_lshl_b32', sT3, sT3, 8)
    A('s_mul_i32', sT2, sW, 20 * 512); A('s_add_u32', sT2, sT2, sT3)
    if mode == 'ln0':
        A('v_mul_u32_u24', v(TM + 2), 1280, v(TM + 1)); A('v_lshl_add_u32', v(VP), v(TM), 4, v(TM + 2))
        A('s_lshr_b32', sU, sI, 1); A('s_mul_i32', sT1, sU, UX); A('s_add_u32', sT2, sT2, sT1)
        A('s_add_u32', sB, sT2, XRES); A('s_add_u32', sOUT_, sT2, XN)
        A('s_mul_i32', sA, sT3, 80); A('s_add_u32', sA, sA, sT1); A('s_mul_i32', sT1, sW, 320); A('s_add_u32', sA, sA, sT1)
        A('s_mov_b32', sPROG, NU); A('s_mov_b32', 's78', sL); A('s_mov_b32', sL, 0)
        flag_out_addr(A, FL_XN); A('s_mov_b32', sL, 's78')
    elif mode == 'ln1':
        A('s_add_u32', sIN, sT2, XRES + LAYER_X); A('s_add_u32', sOUT_, sT2, XN + LAYER_X)
        A('s_mov_b32', sFI, FL_F2); A('s_mov_b32', sL, 1)
        flag_out_addr(A, FL_XN)
    else:
        A('s_mul_i32', sA, sL, LAYER_OP); A('s_add_u32', sA, sA, sT2); A('s_add_u32', sA, sA, OPART)
        A('s_mul_i32', sT1, sL, LAYER_X); A('s_add_u32', sT2, sT2, sT1)
        A('s_add_u32', sIN, sT2, XRES); A('s_add_u32', sOUT_, sT2, XN1); A('s_add_u32', sB, sT2, X1)
        A('s_mul_i32', sFI, sL, FL_LAYER); A('s_add_u32', sFI, sFI, FL_OP)
        flag_out_addr(A, FL_LNA)
    def f5(op, reg, base):
        for i in range(5):
            if i % 2 == 0: A('s_add_u32', sT3, base, i * 2048)
            A(op, v(reg + 4 * i, 4), v(VF), WS, sT3, mods=f'offen offset:{(i%2)*2048} sc1')
    nld = {'ln0': 5, 'ln1': 6, 'lna': 16}[mode]
    def loads():
        if mode == 'ln0':
            for i in range(5): A('buffer_load_dwordx4', v(X + 4 * i, 4), v(VP), SX, sA, mods=f'offen offset:{64*i}')
            A('s_add_u32', sA, sA, 8 * UX)
            return
        f5('buffer_load_dwordx4', X, sIN)
        if mode == 'lna':
            f5('buffer_load_dwordx4', P0, sA); A('s_add_u32', sA, sA, UP)
            f5('buffer_load_dwordx4', P1, sA); A('s_add_u32', sA, sA, UP)
        flag_load(A)
        A('s_add_u32', sIN, sIN, UX)
    a0, a1, tt = TM, TM + 2, TM + 4
    def xsum(region, mid=None):
        xlane_sum(A, a0, tt, [])
        A('ds_write_b32', v(LW), v(a0), mods=f'offset:{region}')
        if mid: mid()
        A('s_waitcnt', 'lgkmcnt(0)'); A('s_barrier')
        A('ds_read_b128', v(a0, 4), v(L16), mods=f'offset:{region}')
        A('s_waitcnt', 'lgkmcnt(0)')
        A('v_pk_add_f32', v(a0, 2), v(a0, 2), v(a0 + 2, 2)); A('v_add_f32', v(a0), v(a0), v(a0 + 1))
    ready(A)
    A.label(P + 'fetch')
    if mode != 'ln0': poll(A, P + 'p', sU, lanes=nl)
    loads()
    A.label(P + 'top')
    ph_dump(A); ph(A, 0)
    n = 20
    def unp(d, x):
        A('v_lshlrev_b32', v(d), 16, v(x)); A('v_and_b32', v(d + 1), '0xffff0000', v(x))
    fl = 0 if mode == 'ln0' else 1
    if mode == 'lna':
        A('s_waitcnt', 'vmcnt(6)')
        for i in range(n):
            unp(F + 2 * i, X + i); unp(TM + 6, P0 + i)
            A('v_pk_add_f32', v(F + 2 * i, 2), v(F + 2 * i, 2), v(TM + 6, 2))
    for i in range(n):
        if i % 4 == 0: A('s_waitcnt', f'vmcnt({4 - i//4 + fl})')
        if mode == 'lna':
            unp(TM + 6, P1 + i)
            A('v_pk_add_f32', v(F + 2 * i, 2), v(F + 2 * i, 2), v(TM + 6, 2))
            A('v_cvt_pk_bf16_f32', v(X1R + i), v(F + 2 * i), v(F + 2 * i + 1))
            unp(F + 2 * i, X1R + i)
        else:
            unp(F + 2 * i, X + i)
            if mode == 'ln0': A('v_mov_b32', v(X1R + i), v(X + i))
        if i == 1: A('v_pk_add_f32', v(a0, 2), v(F, 2), v(F + 2, 2))
        elif i > 1: A('v_pk_add_f32', v(a0, 2), v(a0, 2), v(F + 2 * i, 2))
    ph(A, 1)
    A('v_add_f32', v(a0), v(a0), v(a0 + 1))
    def pf():
        A('s_add_u32', sU, sU, step); A('s_mov_b32', sNX, 1)
        if mode != 'ln0':
            A('s_waitcnt', 'vmcnt(0)'); flag_min(A, sPROG, lanes=nl)
        A('s_cmp_gt_u32', sPROG, sU); A('s_cbranch_scc0', P + 'np')
        loads()
        A('s_branch', P + 'pe')
        A.label(P + 'np')
        A('s_mov_b32', sNX, 0)
        A.label(P + 'pe')
    xsum(0, pf)
    A('v_mul_f32', v(a0), hex(f32bits(-1.0 / 640)), v(a0)); A('v_mov_b32', v(a0 + 1), v(a0))
    def rnd(r):
        A('v_cvt_pk_bf16_f32', v(r), v(r), v(r)); A('v_lshlrev_b32', v(r), 16, v(r))
    dm = TM + 10
    A('v_mov_b32', v(dm), v(a0)); rnd(dm); A('v_sub_f32', v(dm), v(dm), v(a0))
    for i in range(n):
        A('v_pk_add_f32', v(F + 2 * i, 2), v(F + 2 * i, 2), v(a0, 2))
        if i == 0: A('v_pk_mul_f32', v(a1, 2), v(F, 2), v(F, 2))
        else: A('v_pk_fma_f32', v(a1, 2), v(F + 2 * i, 2), v(F + 2 * i, 2), v(a1, 2))
    A('v_add_f32', v(a0), v(a1), v(a1 + 1))
    def st1():
        if mode != 'ln1':
            f5('buffer_store_dwordx4', X1R, sB); A('s_add_u32', sB, sB, step * UX)
    xsum(1024, st1)
    A('v_mul_f32', v(a1), hex(f32bits(1.0 / 640)), v(a0)); rnd(a1)
    A('v_add_f32', v(a1), hex(f32bits(1e-5)), v(a1)); rnd(a1)
    A('v_sqrt_f32', v(a1), v(a1)); rnd(a1)
    A('v_rcp_f32', v(a0), v(a1)); A('v_mov_b32', v(a0 + 1), v(a0))
    A('v_mul_f32', v(dm), v(dm), v(a0)); A('v_mov_b32', v(dm + 1), v(dm))
    for i in range(n):
        A('v_pk_fma_f32', v(F + 2 * i, 2), v(F + 2 * i, 2), v(a0, 2), v(dm, 2))
        A('v_cvt_pk_bf16_f32', v(O + i), v(F + 2 * i), v(F + 2 * i + 1))
        if i % 4 == 3:
            k = i // 4
            if k % 2 == 0: A('s_add_u32', sT3, sOUT_, k * 2048)
            A('buffer_store_dwordx4', v(O + 4 * k, 4), v(VF), WS, sT3, mods=f'offen offset:{(k%2)*2048} sc1')
    ph(A, 2)
    A('s_add_u32', sOUT_, sOUT_, step * UX)
    A('s_cmp_lg_u32', sNX, 0); A('s_cbranch_scc1', P + 'pub')
    if mode != 'ln0': flag_load(A)
    A('s_waitcnt', 'vmcnt(0)')
    publish(A, sU)
    if mode != 'ln0': flag_min(A, sPROG, lanes=nl)
    A('s_cmp_lt_u32', sU, NU); A('s_cbranch_scc1', P + 'fetch')
    A('s_branch', P + 'end')
    A.label(P + 'pub')
    A('s_waitcnt', 'vmcnt(0)')
    ph(A, 3)
    publish(A, sU)
    A('s_branch', P + 'top')
    A.label(P + 'end')
    if after: after()
    else: A('s_endpgm')

def emit_att(A, ready):
    P = 'ATT_'
    A.label(P + 'entry'); A.reset_counts()
    Q, K, V, KMR, VMR, S, PB, O = 64, 96, 128, 160, 176, 184, 208, 224
    FRK, L8, SA, NEG, ZR = 32, 33, 34, 35, 36
    sCH, sFC, sKMo, sSC = 's74', 's75', 's76', 's77'
    msk = ['s[80:81]', 's[82:83]', 's[84:85]', 's[86:87]']
    common_setup(A, 3)
    g, n = TM, TM + 1
    A('v_lshrrev_b32', v(g), 4, v(LN_)); A('v_and_b32', v(n), 15, v(LN_))
    A('v_and_b32', v(TM + 2), 13, v(n)); A('v_and_b32', v(TM + 3), 1, v(g)); A('v_lshl_or_b32', v(TM + 2), v(TM + 3), 1, v(TM + 2))
    A('v_lshlrev_b32', v(TM + 2), 4, v(TM + 2)); A('v_lshrrev_b32', v(TM + 3), 1, v(g)); A('v_lshl_add_u32', v(FRK), v(TM + 3), 8, v(TM + 2))
    A('v_lshlrev_b32', v(L8), 3, v(LN_))
    A('v_lshlrev_b32', v(TM + 2), 9, v(g)); A('v_lshl_add_u32', v(SA), v(n), 4, v(TM + 2))
    for r in range(4):
        A('v_lshl_add_u32', v(TM + 2), v(g), 2, r); A('v_cmp_le_u32', msk[r], v(TM + 2), v(n))
    A('v_mov_b32', v(NEG), hex(f32bits(-1e9 * 128 ** 0.5))); A('v_mov_b32', v(ZR), 0)
    A('s_lshl_b32', sT2, sI, 2); A('s_add_u32', sT2, sT2, sW)
    A('s_mul_i32', sT3, sL, LAYER_F); A('s_lshl_b32', sT1, sT2, 13); A('s_add_u32', sT3, sT3, sT1)
    A('s_add_u32', sIN, sT3, KF); A('s_add_u32', sOUT_, sT3, OF)
    A('s_mul_i32', sKMo, sL, LAYER_KM); A('s_lshl_b32', sT1, sT2, 12); A('s_add_u32', sKMo, sKMo, sT1); A('s_add_u32', sKMo, sKMo, KM)
    A('s_mul_i32', sT3, sL, FL_LAYER)
    A('s_lshr_b32', sT1, sT2, 1); A('s_mul_i32', sT1, sT1, 384); A('s_add_u32', sFI, sT3, sT1); A('s_and_b32', sT1, sT2, 1); A('s_lshl_b32', sT1, sT1, 3)
    A('s_add_u32', sFI, sFI, sT1); A('s_add_u32', sFI, sFI, FL_QKV)
    A('s_lshl_b32', sT1, sT2, 7); A('s_add_u32', sFC, sT3, sT1); A('s_add_u32', sFC, sFC, FL_CH)
    A('s_mov_b32', sCH, 0); A('s_mov_b32', sSC, hex(f32bits(128 ** -0.5 * 1.4426950408889634)))
    flag_out_addr(A, FL_ATT)
    ready(A)
    def ld8(reg, base, delta):
        for i in range(8):
            if i % 4 == 0: A('s_add_u32', sT3, base, delta + i * 1024)
            A('buffer_load_dwordx4', v(reg + 4 * i, 4), v(L16), WS, sT3, mods=f'offen offset:{(i%4)*1024} sc1')
    A.label(P + 'fetch')
    poll(A, P + 'p', sU, n=2, lanes=3)
    ld8(Q, sIN, QF - KF); ld8(K, sIN, 0); ld8(V, sIN, VT - KF)
    A.label(P + 'top')
    A('s_waitcnt', 'vmcnt(8)')
    A.reset_counts()
    sreg = {(0, 'm'): S, (0, 0): S + 4, (1, 'm'): S + 8, (1, 0): S + 12, (1, 1): S + 16}
    for kp in range(4):
        for qt, kt in ((0, 0), (1, 0), (1, 1)):
            r = v(sreg[(qt, kt)], 4)
            A('v_mfma_f32_16x16x32_bf16', r, v(K + 16 * kt + 4 * kp, 4), v(Q + 16 * qt + 4 * kp, 4), '0' if kp == 0 else r)
    for base in (sreg[(0, 0)], sreg[(1, 1)]):
        for r in range(4): A('v_cndmask_b32', v(base + r), v(NEG), v(base + r), msk[r])
    A('s_mov_b32', sSPIN, 0)
    A.label(P + 'km')
    for kp in range(4): A('buffer_load_dwordx4', v(KMR + 4 * kp, 4), v(FRK), WS, sKMo, mods=f'offen offset:{1024*kp} sc1', tag=('km', kp))
    for w_ in range(4): A('buffer_load_dwordx2', v(VMR + 2 * w_, 2), v(L8), WS, sKMo, mods=f'offen offset:{1024*w_+512} sc1', tag='vm')
    flag_load(A, n=2)
    regs = [KMR + i for i in range(24)]
    for kp in range(4):
        A.wait(vm=[('km', kp)])
        for qt in range(2):
            r = v(sreg[(qt, 'm')], 4)
            A('v_mfma_f32_16x16x32_bf16', r, v(KMR + 4 * kp, 4), v(Q + 16 * qt + 4 * kp, 4), '0' if kp == 0 else r)
            for i in range(2):
                x = KMR + 4 * kp + 2 * qt + i
                A('v_pk_max_u16', v(TM + 8), v(x), v(x) if x == KMR else v(TM + 8))
    A.wait(vm=0)
    for i in range(8): A('v_pk_max_u16', v(TM + 8), v(VMR + i), v(TM + 8))
    A('v_pk_max_u16', v(TM + 8), v(TM + 8), v(TM + 8), mods='op_sel:[0,1] op_sel_hi:[1,0]')
    A('v_cmp_le_u32', 'vcc', '0xff810000', v(TM + 8))
    A('s_cbranch_vccz', P + 'kmok')
    A('s_cmp_lg_u32', sDEAD, 0); A('s_cbranch_scc1', P + 'kmok')
    A('v_mov_b32', v(TM + 8), -1)
    for r_ in regs:
        A('v_xor_b32', v(TM + 9), hex(SENT), v(r_)); A('v_pk_min_u16', v(TM + 8), v(TM + 8), v(TM + 9))
    A('v_pk_min_u16', v(TM + 8), v(TM + 8), v(TM + 8), mods='op_sel:[0,1] op_sel_hi:[1,0]')
    A('v_cmp_eq_u32', 'vcc', 0, v(TM + 8))
    A('s_cbranch_vccz', P + 'kmok')
    A('s_add_u32', sSPIN, sSPIN, 1); A('s_cmp_lt_u32', sSPIN, 4 * SPIN_MAX); A('s_cbranch_scc1', P + 'km')
    A('s_mov_b32', sDEAD, 1)
    A.label(P + 'kmok')
    A('s_add_u32', sKMo, sKMo, 32 * 4096)
    flag_min(A, sPROG, n=2, lanes=3)
    A('s_add_u32', sT2, sU, 1); A('s_cmp_gt_u32', sPROG, sT2); A('s_cselect_b32', sNX, 1, 0)
    A('s_add_u32', sIN, sIN, 32 * 8192); A('s_cmp_eq_u32', sNX, 0); A('s_cbranch_scc1', P + 'nq')
    ld8(Q, sIN, QF - KF); ld8(K, sIN, 0)
    A.label(P + 'nq')
    for qt in range(2):
        m_ = sreg[(qt, 'm')]
        vals = [m_, m_ + 1] + [sreg[(qt, 0)] + i for i in range(4 + 4 * qt)]
        mx, tm, sm = TM, TM + 1, TM + 2 + qt
        A('v_max3_f32', v(mx), v(vals[0]), v(vals[1]), v(vals[2])); A('v_max3_f32', v(tm), v(vals[3]), v(vals[4]), v(vals[5]))
        if qt:
            A('v_max3_f32', v(mx), v(mx), v(vals[6]), v(vals[7])); A('v_max3_f32', v(tm), v(tm), v(vals[8]), v(vals[9]))
        A('v_max_f32', v(mx), v(mx), v(tm)); A('v_mov_b32', v(tm), v(mx))
        A('v_permlane32_swap_b32', v(tm), v(mx)); A('v_max_f32', v(mx), v(mx), v(tm)); A('v_mov_b32', v(tm), v(mx))
        A('v_permlane16_swap_b32', v(tm), v(mx)); A('v_max_f32', v(mx), v(mx), v(tm))
        A('v_mul_f32', v(mx), sSC, v(mx))
        for r in vals: A('v_fma_f32', v(r), v(r), sSC, '-' + v(mx))
        for r in vals: A('v_exp_f32', v(r), v(r))
        pb = PB + 8 * qt
        for i in range(2 + 2 * qt): A('v_cvt_pk_bf16_f32', v(pb + i), v(vals[2 + 2 * i]), v(vals[3 + 2 * i]))
        if qt == 0: A('v_mov_b64', v(pb + 2, 2), 0)
        A('v_cvt_pk_bf16_f32', v(pb + 4), v(m_), v(m_ + 1)); A('v_mov_b32', v(pb + 5), 0); A('v_mov_b32', v(pb + 6), 0); A('v_mov_b32', v(pb + 7), v(pb + 4))
        A('v_add_f32', v(sm), v(vals[0]), v(vals[1]))
        for r in vals[2:]: A('v_add_f32', v(sm), v(sm), v(r))
        xlane_sum(A, sm, tm, [])
        A('v_rcp_f32', v(sm), v(sm))
    for qt in range(2):
        pb = PB + 8 * qt; sm = TM + 2 + qt
        for et in range(8):
            A('v_mfma_f32_16x16x32_bf16', v(O + 4 * et, 4), v(V + 4 * et, 4), v(pb, 4), '0')
        for et in range(8):
            A('v_mfma_f32_16x16x16_bf16', v(O + 4 * et, 4), v(VMR + 2 * (et >> 1), 2), v(pb + 4 + 2 * (et & 1), 2), v(O + 4 * et, 4))
        for p in range(4):
            st = S + 4 * (p & 1) + 8 * qt if False else KMR + 4 * p
            for i in range(8): A('v_mul_f32', v(O + 8 * p + i), v(O + 8 * p + i), v(sm))
            for i in range(4): A('v_cvt_pk_bf16_f32', v(st + i), v(O + 8 * p + 2 * i), v(O + 8 * p + 2 * i + 1))
            if p % 2 == 0: A('s_add_u32', sT3, sOUT_, p * 2048)
            local(A, lambda md: A('buffer_store_dwordx4', v(st, 4), v(SA), WS, sT3, mods=f'offen offset:{(p%2)*2048 + qt*256} {md}'))
    A('s_add_u32', sOUT_, sOUT_, 32 * 8192); A('s_add_u32', sU, sU, 1)
    A('s_cmp_eq_u32', sNX, 0); A('s_cbranch_scc1', P + 'nv')
    ld8(V, sIN, VT - KF)
    A('s_waitcnt', 'vmcnt(8)')
    publish(A, sU, loc=True)
    A('s_branch', P + 'top')
    A.label(P + 'nv')
    A('s_waitcnt', 'vmcnt(0)')
    publish(A, sU, loc=True)
    A('s_cmp_lt_u32', sU, NU); A('s_cbranch_scc1', P + 'fetch')
    A('s_endpgm')
```

```python
from asmgen import *
from layout import *
import os, struct
def env(n, d=0): return int(os.environ.get(n, d))
X_NOADV, X_NOFLAG, X_NOPUB, X_NOPF = env('X_NOADV'), env('X_NOFLAG'), env('X_NOPUB'), env('X_NOPF')
RDELAY, GDELAY = env('RDELAY', 9), env('GDELAY', 30)
PUBAT = env('PUBAT', 8)
RGAP = env('RGAP', 6)
KVMOD = os.environ.get('KVMOD', 'sc1')

WS = 's[8:11]'; SQ = 's[12:15]'; SK = 's[16:19]'; SV = 's[20:23]'; SO = 's[24:27]'; SX = 's[28:31]'; SM0 = 's[32:35]'
SW1 = 's[36:39]'; SW2 = 's[40:43]'; SOUT = 's[44:47]'; SDBG = 's[48:51]'
sW, sH, sC, sS = 's52', 's53', 's54', 's55'
sMEMc, sMEMo, sPST, sPLD, sPLD1, sSTR, sVT, sKF, sKM, sTAG, sFLO, sPROG, sSPIN, sDEAD = ['s%d' % i for i in range(56, 70)]
sT0, sT1, sT2, sT3 = 's70', 's71', 's72', 's73'
sDMEM, sPST1, sPST2, sXX, sFIN, sSCALE = 's74', 's75', 's76', 's77', 's78', 's79'

sPSTS = [sPST, sPST1, sPST2, sXX, 's4']
sSTRS = [sSTR, 's3', 's5', 's6', 's7']
sONES = 's[40:41]'
sPFK, sPFV, sFOV = 's36', 's37', 's38'
L_MEM = 0; L_QB = 10240; L_KB = 12288; L_VM = 14336; L_KX = 16384; L_O = L_KX; L_W = 24576
UNITS = [9, 8, 8, 9]
L_WBASE = [L_W + 4096 * sum(UNITS[:w]) for w in range(4)]
NSTR = [8, 10, 10, 9]
LANE16, IDX, RDEST, KW, PST2, QKW, FR, LDSW = range(8)
AQK = 8; AV = 24; AW = 32; SL = [40, 48, 56, 64, 72]; RES0 = 80
SPIN_MAX = 1 << 16
STAMPS = ['top', 'b1', 0, 'b2', 'sc', 2, 3, 4, 'r1', 5, 'start']
if env('ACKT'): STAMPS = ['top', 'b1', 0, 'b2', 'sc', 2, 3, 4, 'ack', 5, 'start']
if env('STAMPSET') == 1: STAMPS = ['top', 2, 'p1', 'p2', 'p3', 'p4', 3, 'o4', 'o10', 'o16', 'start']
if env('STAMPSET') == 2: STAMPS = ['top', 'q8', 'q16', 'q24', 'q32', 0, 'sc', 's1', 's2', 2, 'start']

def f32bits(x):
    return struct.unpack('<I', struct.pack('<f', x))[0]

def tstamp(A, sfo, val, tmp):
    A('s_memrealtime', 's[90:91]')
    if env('CLK'): A('s_memtime', 's[86:87]')
    A('s_lshr_b32', 's92', sfo, 7); A('s_lshl_b32', 's92', 's92', 2); A('s_bfe_u32', 's93', sfo, 0x20002); A('s_add_u32', 's92', 's92', 's93')
    A('s_lshl_b32', 's92', 's92', 9); A('s_lshl_b32', 's93', val, 2); A('s_add_u32', 's92', 's92', 's93'); A('s_add_u32', 's92', 's92', DBGT + (1 << 20))
    A('s_waitcnt', 'lgkmcnt(0)')
    A('v_mov_b32', v(tmp), 's90')
    if env('CLK'):
        A('s_bitcmp1_b32', val, 0); A('s_cselect_b32', 's90', 's86', 's90'); A('v_mov_b32', v(tmp), 's90')
    A('buffer_store_dword', v(tmp), 'off', WS, 's92'); A.vm.pop()

KOWN = [0, 3, 6, 8]; NOWN = [3, 3, 2, 2]
def korder(w):
    return [(KOWN[w] + j) % 10 for j in range(10)]

def frag_plan(w):
    qk = []
    for j in range(10):
        qk += [('q', j, 0), ('q', j, 1), ('k', j, 0), ('k', j, 1)]
    qk[34:38] = qk[36:38] + qk[34:36]
    qslot = {0: 0, 1: 1, 2: 2, 3: 3, 4: 4, 10: 2, 11: 3, 16: 4, 17: 2, 22: 3, 23: 4, 28: 2, 29: 3, 34: 4, 35: 2}
    qfill = [(2, 1, 2, 10), (4, 1, 3, 11), (6, 2, 4, 16), (10, 0, 2, 17), (12, 1, 3, 22), (16, 0, 4, 23), (18, 2, 2, 28), (22, 0, 3, 29), (24, 1, 4, 34), (28, 0, 2, 35)]
    oo = []
    for p in range(5):
        oo += [('o', 0, 2 * p), ('o', 0, 2 * p + 1), ('o', 1, 2 * p), ('o', 1, 2 * p + 1)]
    OV = env('OVAR', 3)
    ab, cd, e_ = [([0, 6, 12, 18], 2, 9), ([4, 10, 14, 18], 6, 9), ([6, 10, 14, 18], 8, 13), ([4, 10, 14, 18], 2, 9), ([2, 8, 14, 18], 4, 7)][OV]
    oslot = {cd: 4, cd + 1: 0, e_: 1}
    for x in ab: oslot[x] = 2; oslot[x + 1] = 3
    opre = sorted([ab[0], ab[0] + 1, cd, cd + 1])
    streams = [qk[0], qk[1], qk[4]] + [oo[i] for i in opre] + [oo[e_]]
    ldsf = [qk[i] for i in (10, 11, 16, 17, 22, 23, 28, 29, 34, 35)] + [oo[x + i] for x in ab[1:] for i in range(2)]
    if w in (1, 2): streams += [qk[2], qk[3]]
    else: ldsf += [qk[2], qk[3]]
    if w == 3:
        streams += [qk[25]]; qslot[25] = 0; qfill += [(0, 1, 0, 25)]
    assert len(streams) == NSTR[w] and len(ldsf) == 2 * UNITS[w]
    return qk, qslot, qfill, oo, oslot, ab, cd, e_, opre, streams, ldsf

sMODE = 's96'
def emit_chain_wave(A, w, ready, modes=('', 'sc1'), dbg=False, nsteps=64):
    L = lambda nm: f'CH{w}_{nm}'
    KO = korder(w)
    qk, qslot, qfill, oo, oslot, ab, cd, e_, opre, streams, ldsf = frag_plan(w)
    allf = qk + [('v', j, t) for j in range(10) for t in range(2)] + oo
    res = [f for f in allf if f not in streams and f not in ldsf]
    assert len(res) == (54 if w < 3 else 53), len(res)
    resreg = {f: (RES0 if w < 3 else RES0 + 8) + 8 * i for i, f in enumerate(res)}
    XR = RES0
    strm_idx = {f: i for i, f in enumerate(streams)}
    unit_of = lambda f: (f[0], f[1], f[2] >> 1)
    for i in range(0, len(ldsf), 2):
        assert unit_of(ldsf[i]) == unit_of(ldsf[i + 1]), (ldsf[i], ldsf[i + 1])
    lds_units = [unit_of(ldsf[i]) for i in range(0, len(ldsf), 2)]
    lds_off = {}
    for i, u in enumerate(lds_units):
        for t in range(2):
            lds_off[(u[0], u[1], 2 * u[2] + t)] = i * 4096 + t * 2048
    groups = [[0, 1], [2], [3], [4]][w]
    ng = len(groups)

    def half_fill(slot, f, hf):
        r = SL[slot] + 4 * hf
        tag = ('F', f)
        if f in lds_off:
            A('ds_read_b128', v(r, 4), v(LDSW), mods=f'offset:{lds_off[f] + 1024*hf}', tag=tag)
        else:
            i = strm_idx[f]
            so = sSTRS[i >> 1]
            A('buffer_load_dwordx4', v(r, 4), v(LANE16), WS, so, mods=f'offen offset:{(i&1)*2048 + 1024*hf}', tag=tag)
    def fill(slot, f):
        half_fill(slot, f, 0); half_fill(slot, f, 1)
    def smf(acc, areg, f, slot):
        if slot is None:
            b = R(resreg[f], 8)
        else:
            if f in lds_off: A.wait(lg=[('F', f)])
            else: A.wait(vm=[('F', f)])
            b = v(SL[slot], 8)
        A('v_smfmac_f32_16x16x64_bf16', v(acc, 4), v(areg, 4), b, v(IDX))
    def add2(d, a_, b_):
        A('v_add_f32', v(d), v(a_), v(b_)); A('v_add_f32', v(d + 1), v(a_ + 1), v(b_ + 1))

    A.label(L('entry'))
    A.reset_counts()
    T = [SL[0] + i for i in range(40)]
    ln = T[0]; g = T[1]; c = T[2]
    A('v_and_b32', v(ln), 63, 'v0')
    A('v_lshlrev_b32', v(LANE16), 4, v(ln))
    A('v_lshrrev_b32', v(g), 4, v(ln)); A('v_and_b32', v(c), 15, v(ln))
    A('v_and_b32', v(T[3]), 2, v(ln)); A('v_cmp_ne_u32', 'vcc', 0, v(T[3]))
    A('v_mov_b32', v(T[4]), '0x4444'); A('v_mov_b32', v(T[5]), '0xeeee'); A('v_cndmask_b32', v(IDX), v(T[4]), v(T[5]), 'vcc')
    A('v_and_b32', v(T[3]), 13, v(c)); A('v_and_b32', v(T[4]), 1, v(g)); A('v_lshl_or_b32', v(T[3]), v(T[4]), 1, v(T[3]))
    A('v_lshlrev_b32', v(T[3]), 4, v(T[3])); A('v_lshrrev_b32', v(T[4]), 1, v(g)); A('v_lshl_add_u32', v(FR), v(T[4]), 8, v(T[3]))
    A('v_lshrrev_b32', v(T[3]), 3, v(c)); A('v_lshlrev_b32', v(T[3]), 8, v(T[3]))
    A('v_lshl_add_u32', v(T[3]), v(g), 6, v(T[3]))
    A('v_bfe_u32', v(T[4]), v(c), 2, 1); A('v_lshl_add_u32', v(T[3]), v(T[4]), 5, v(T[3]))
    A('v_and_b32', v(T[4]), 3, v(c)); A('v_lshl_add_u32', v(T[3]), v(T[4]), 2, v(T[3]))
    A('v_add_u32', v(QKW), L_QB + w * 512, v(T[3]))
    A('v_add_u32', v(LDSW), L_WBASE[w], v(LANE16))
    A('v_add_u32', v(KW), L_KB - L_QB, v(QKW))
    A('s_mov_b32', sT0, PIECE)
    A('v_lshrrev_b32', v(T[3]), 3, v(c)); A('v_lshl_add_u32', v(T[3]), v(T[3]), 2, v(g)); A('v_mul_lo_u32', v(T[3]), v(T[3]), sT0)
    A('v_and_b32', v(T[4]), 7, v(c)); A('v_lshl_add_u32', v(PST2), v(T[4]), 3, v(T[3]))
    A('s_mul_i32', sT0, sH, 5); A('s_add_u32', sT0, sT0, groups[0])
    A('v_lshrrev_b32', v(T[3]), 3, v(c)); A('v_add_u32', v(T[3]), sT0, v(T[3]))
    A('v_and_b32', v(T[9]), 3, v(c)); A('v_lshlrev_b32', v(T[9]), 4, v(T[9]))
    A('v_lshl_add_u32', v(T[9]), v(g), 2, v(T[9]))
    A('v_bfe_u32', v(T[8]), v(c), 2, 1); A('v_lshl_add_u32', v(T[9]), v(T[8]), 1, v(T[9]))
    A('v_lshl_add_u32', v(RDEST), v(T[3]), 6, v(T[9]))
    if ng == 1:
        A('v_mov_b32', v(T[6]), '0x40000000'); A('v_cmp_lt_u32', 'vcc', 7, v(c)); A('v_cndmask_b32', v(RDEST), v(RDEST), v(T[6]), 'vcc')
    if w == 3:
        A('v_lshlrev_b32', v(XR + 3), 7, v(ln))
        A('v_mov_b64', v(XR + 6, 2), 0)
        A('v_mov_b32', v(T[6]), '0x40000000'); A('v_cmp_gt_u32', 'vcc', 2, v(ln)); A('v_cndmask_b32', v(XR + 5), v(T[6]), v(XR + 3), 'vcc')
        A('v_cmp_gt_u32', 'vcc', 1, v(ln)); A('v_cndmask_b32', v(XR + 2), v(T[6]), v(XR + 3), 'vcc')
    A('s_mul_i32', sT0, sC, 2 * MEMB_SZ); A('s_add_u32', sMEMc, sT0, MEMB); A('s_add_u32', sMEMo, sMEMc, MEMB_SZ)
    A('s_xor_b32', sDMEM, sMEMc, sMEMo)
    A('s_mul_i32', sT0, sC, PART_SZ); A('s_add_u32', sT0, sT0, PART)
    A('s_lshl_b32', sT1, sH, 6); A('s_add_u32', sPST, sT0, sT1); A('s_add_u32', sPST, sPST, 8 * w * PIECE)
    for p in range(1, 5): A('s_add_u32', sPSTS[p], sPST, 32 * p * PIECE)
    A('s_mul_i32', sT1, sH, 5 * PIECE); A('s_add_u32', sPLD, sT1, sT0); A('s_add_u32', sPLD, sPLD, groups[0] * PIECE)
    A('s_add_u32', sPLD1, sPLD, PIECE)
    A('s_mov_b32', sTAG, 0)
    A('s_lshl_b32', sT0, sC, 5); A('s_add_u32', sT0, sT0, sH)
    A('s_mul_i32', sSTR, sT0, STRM_H); A('s_add_u32', sSTR, sSTR, STRM + 2048 * sum(NSTR[:w]))
    for i in range(1, 5): A('s_add_u32', sSTRS[i], sSTR, 4096 * i)
    A('s_mul_i32', sT0, sC, LAYER_F); A('s_lshl_b32', sT1, sH, 13); A('s_add_u32', sT0, sT0, sT1)
    A('s_add_u32', sVT, sT0, VT + w * 2048); A('s_add_u32', sKF, sT0, KF + w * 2048)
    A('s_mul_i32', sT0, sC, LAYER_KM); A('s_lshl_b32', sT1, sH, 12); A('s_add_u32', sT0, sT0, sT1); A('s_add_u32', sKM, sT0, KM + 1024 * w - 32 * 4096)
    A('s_mul_i32', sT0, sC, FL_LAYER); A('s_lshr_b32', sT1, sH, 1); A('s_mul_i32', sT1, sT1, 3 * 128); A('s_add_u32', sFIN, sT0, sT1); A('s_add_u32', sFIN, sFIN, FL_QKV + 128)
    A('s_and_b32', sT1, sH, 1); A('s_lshl_b32', sT1, sT1, 3); A('s_add_u32', sFIN, sFIN, sT1)
    A('s_lshl_b32', sT1, sH, 7); A('s_add_u32', sFLO, sT0, sT1); A('s_add_u32', sFLO, sFLO, FL_CH)
    A('s_mov_b32', sS, 0); A('s_mov_b32', sPROG, 0); A('s_mov_b32', sDEAD, 0)
    A('s_mov_b32', sSCALE, hex(f32bits(128 ** -0.5 * 1.4426950408889634)))

    SRCQ, SRCO1, SRCO2, TRN, TRO1, TRO2 = AW, AW + 1, AW + 2, AW + 3, AW + 4, AW + 5
    r16 = T[3]; ch = T[4]
    A('v_lshrrev_b32', v(r16), 2, v(ln)); A('v_and_b32', v(ch), 3, v(ln))
    A('v_bfe_u32', v(T[5]), v(r16), 1, 1); A('v_lshlrev_b32', v(T[5]), 3, v(T[5]))
    A('v_bfe_u32', v(T[6]), v(r16), 2, 2); A('v_lshl_add_u32', v(T[5]), v(T[6]), 1, v(T[5]))
    A('v_and_b32', v(T[6]), 1, v(r16)); A('v_add_u32', v(T[5]), v(T[5]), v(T[6]))
    A('v_lshlrev_b32', v(T[5]), 13, v(T[5]))
    A('v_bfe_u32', v(T[6]), v(r16), 3, 1); A('v_lshlrev_b32', v(T[6]), 1, v(T[6])); A('v_xor_b32', v(T[6]), v(ch), v(T[6]))
    A('v_lshl_add_u32', v(T[5]), v(T[6]), 4, v(T[5]))
    A('s_lshl_b32', sT0, sH, 8); A('s_add_u32', sT0, sT0, w * 64); A('v_add_u32', v(SRCQ), sT0, v(T[5]))
    A('v_bfe_u32', v(T[5]), v(r16), 3, 1); A('v_lshlrev_b32', v(T[5]), 4, v(T[5]))
    A('v_bfe_u32', v(T[6]), v(r16), 1, 1); A('v_lshl_add_u32', v(T[5]), v(T[6]), 2, v(T[5]))
    A('v_bfe_u32', v(T[6]), v(r16), 2, 1); A('v_lshl_add_u32', v(T[5]), v(T[6]), 1, v(T[5]))
    A('v_and_b32', v(T[6]), 1, v(r16)); A('v_add_u32', v(T[5]), v(T[5]), v(T[6]))
    A('v_mul_u32_u24', v(T[5]), 1280, v(T[5]))
    A('s_mul_i32', sT0, sH, 163840); A('s_add_u32', sT0, sT0, w * 64); A('v_add_u32', v(T[5]), sT0, v(T[5]))
    A('v_lshl_add_u32', v(SRCO1), v(ch), 5, v(T[5]))
    A('v_lshl_add_u32', v(SRCO2), v(ch), 4, v(T[5]))
    A('v_bfe_u32', v(T[5]), v(ln), 2, 2); A('v_lshl_add_u32', v(T[5]), v(g), 3, v(T[5])); A('v_lshlrev_b32', v(T[5]), 6, v(T[5]))
    A('v_add_u32', v(T[5]), L_WBASE[w], v(T[5]))
    A('v_and_b32', v(T[6]), 1, v(g)); A('v_lshl_add_u32', v(T[6]), v(T[6]), 5, v(T[5])); A('v_lshl_add_u32', v(TRN), v(ch), 3, v(T[6]))
    A('v_xor_b32', v(TRN + 3), 32, v(TRN))
    A('v_lshl_add_u32', v(TRO1), v(ch), 4, v(T[5]))
    A('v_lshrrev_b32', v(T[6]), 1, v(ch)); A('v_lshl_add_u32', v(T[6]), v(T[6]), 5, v(T[5]))
    A('v_and_b32', v(T[7]), 1, v(ch)); A('v_lshl_add_u32', v(TRO2), v(T[7]), 3, v(T[6]))
    CS, CO, CT = AQK, AQK + 1, AQK + 2
    rr = T[5]; ck = T[6]
    A('v_lshlrev_b32', v(ck), 1, v(g)); A('v_xor_b32', v(ck), v(ck), v(c)); A('v_lshlrev_b32', v(ck), 4, v(ck))
    A('v_lshrrev_b32', v(rr), 1, v(g)); A('v_lshlrev_b32', v(rr), 3, v(rr)); A('v_and_b32', v(T[7]), 1, v(g)); A('v_add_u32', v(rr), v(rr), v(T[7]))
    A('v_lshlrev_b32', v(rr), 13, v(rr)); A('s_lshl_b32', sT0, sH, 8); A('v_add3_u32', v(CS), v(rr), v(ck), sT0); A('v_xor_b32', v(CS + 6), 128, v(CS))
    A('v_lshrrev_b32', v(rr), 1, v(g)); A('v_lshlrev_b32', v(rr), 2, v(rr)); A('v_add_u32', v(rr), v(rr), v(T[7]))
    A('v_mul_u32_u24', v(rr), 1280, v(rr)); A('s_mul_i32', sT0, sH, 163840); A('v_add3_u32', v(CO), v(rr), v(ck), sT0); A('v_xor_b32', v(CO + 6), 128, v(CO))
    A('v_bfe_u32', v(rr), v(ln), 2, 2); A('v_lshl_add_u32', v(T[8]), v(T[7]), 2, v(rr)); A('v_lshlrev_b32', v(T[8]), 5, v(T[8]))
    A('v_lshl_add_u32', v(rr), v(g), 3, v(rr)); A('v_lshlrev_b32', v(rr), 8, v(rr)); A('v_add_u32', v(rr), L_W, v(rr))
    for t in range(2):
        A('v_lshl_add_u32', v(T[9]), v(ch), 3, 64 * w + 32 * t) if 64 * w + 32 * t <= 64 else (A('v_lshlrev_b32', v(T[9]), 3, v(ch)), A('v_add_u32', v(T[9]), 64 * w + 32 * t, v(T[9])))
        A('v_xor_b32', v(T[9]), v(T[9]), v(T[8])); A('v_add_u32', v(CT + t), v(T[9]), v(rr))
        A('v_lshrrev_b32', v(T[9]), 1, v(ch)); A('v_lshlrev_b32', v(T[9]), 5, v(T[9])); A('v_and_b32', v(T[10]), 1, v(ch)); A('v_lshl_add_u32', v(T[9]), v(T[10]), 3, v(T[9]))
        A('v_add_u32', v(T[9]), 64 * w + 16 * t, v(T[9]))
        A('v_xor_b32', v(T[9]), v(T[9]), v(T[8])); A('v_add_u32', v(CT + 2 + t), v(T[9]), v(rr))
    for t in range(4): A('v_add_u32', v(CT + 6 + t), 65536, v(CT + t))
    stages = [(X, k, 0) for X in 'qkv' for k in range(10)] + [('o', kp, p) for kp in range(2) for p in range(5)]
    def mine(st, ww):
        X, k, p = st
        return (X, korder(ww).index(k), 0) if X != 'o' else st
    nl_ = {st: sum(1 for ww in range(4) if any(unit_of(f) == mine(st, ww) for f in frag_plan(ww)[10])) for st in stages}
    stages = sorted([st for st in stages if nl_[st] < 4], key=lambda st: nl_[st])
    def cdma(n):
        X, k, p = stages[n]
        for ii in range(4):
            A('s_mov_b32', 'm0', L_W + (n % 8) * 16384 + w * 4096 + ii * 1024)
            if X == 'o':
                A('s_mov_b32', sT0, (64 * k + 32 * (w >> 1) + 8 * (w & 1) + 16 * (ii >> 1) + 2 * (ii & 1)) * 1280 + 256 * p)
                A('buffer_load_dwordx4', v(CO + 6 * (ii >> 1)), SO, sT0, mods='offen lds', tag=('C', n))
            else:
                A('s_mov_b32', sT0, (64 * k + 16 * w + 2 * ii) * 8192)
                A('buffer_load_dwordx4', v(CS + 6 * (ii >> 1)), {'q': SQ, 'k': SK, 'v': SV}[X], sT0, mods='offen lds', tag=('C', n))
    for n in range(8): cdma(n)
    pend = []
    def flush():
        for f, d in pend:
            i = strm_idx[f]
            A('buffer_store_dwordx4', v(d, 4), v(LANE16), WS, sSTRS[i >> 1], mods=f'offen offset:{(i&1)*2048} sc1', tag='ST')
            A('buffer_store_dwordx4', v(d + 4, 4), v(LANE16), WS, sSTRS[i >> 1], mods=f'offen offset:{(i&1)*2048+1024} sc1', tag='ST')
        pend.clear()
    for n, st in enumerate(stages):
        A.wait(vm=[('C', n)], lg=0)
        A('s_barrier')
        flush()
        if n >= 1 and n + 7 < len(stages): cdma(n + 7)
        u = mine(st, w)
        if u in lds_units: continue
        for t in range(2):
            f = (u[0], u[1], 2 * u[2] + t)
            d = resreg[f] if f in resreg else SL[(n & 1) * 2 + t]
            if f in strm_idx: pend.append((f, d))
            ad = CT + t + (2 if u[0] == 'o' else 0) + (6 if (n % 8) >= 4 else 0)
            for q4, ro in enumerate((0, 1024, 8192, 9216)):
                A('ds_read_b64_tr_b16', R(d + 2 * q4, 2), v(ad), mods=f'offset:{(n % 4)*16384 + ro}')
    A.wait(lg=0); A('s_barrier'); flush()
    order = list(lds_units)
    npos = len(lds_units)
    pos = {u: i for i, u in enumerate(lds_units)}
    def dma(u):
        X, j, p = u
        for i in range(4):
            A('s_mov_b32', 'm0', L_WBASE[w] + pos[u] * 4096 + i * 1024)
            if X == 'o':
                off = (64 * j + 32 * (i >> 1) + 8 * (i & 1)) * 1280 + 256 * p
                A('s_mov_b32', sT0, off)
                A('buffer_load_dwordx4', v(SRCO2), SO, sT0, mods='offen lds', tag=('U', u))
            else:
                A('s_mov_b32', sT0, (64 * KO[j] + 16 * i) * 8192)
                A('buffer_load_dwordx4', v(SRCQ), {'q': SQ, 'k': SK, 'v': SV}[X], sT0, mods='offen lds', tag=('U', u))
    def consume(u, n):
        X, j, p = u
        A.wait(vm=[('U', u)])
        dst = []
        for t in range(2):
            f = (X, j, 2 * p + t)
            d = resreg[f] if f in resreg else SL[(n & 1) * 2 + t]
            dst.append((f, d))
            if X != 'o': ad, o = (TRN if t == 0 else TRN + 3), 0
            else: ad, o = TRO2, 16 * t
            for q4, ro in enumerate((0, 256, 2048, 2304)):
                A('ds_read_b64_tr_b16', R(d + 2 * q4, 2), v(ad), mods=f'offset:{pos[u]*4096 + ro + o}', tag=('T', u))
        A.wait(lg=0)
        for f, d in dst:
            if f in lds_off:
                A('ds_write_b128', v(LDSW), v(d, 4), mods=f'offset:{lds_off[f]}')
                A('ds_write_b128', v(LDSW), v(d + 4, 4), mods=f'offset:{lds_off[f]+1024}')
            elif f in strm_idx:
                i = strm_idx[f]
                A('s_add_u32', sT1, sSTR, (i >> 1) * 4096)
                A('buffer_store_dwordx4', v(d, 4), v(LANE16), WS, sT1, mods=f'offen offset:{(i&1)*2048}', tag='ST')
                A('buffer_store_dwordx4', v(d + 4, 4), v(LANE16), WS, sT1, mods=f'offen offset:{(i&1)*2048+1024}', tag='ST')
    for u in order: dma(u)
    nd = NOWN[w]
    ownreg = [AW, AW + 4, AV + 4][:nd]
    t0_, t1_, t2_ = AV, AV + 1, AV + 2
    A('v_lshrrev_b32', v(t0_), 4, v(LANE16))
    A('v_bfe_u32', v(t1_), v(t0_), 2, 2); A('v_lshlrev_b32', v(t1_), 1, v(t1_))
    A('v_and_b32', v(t2_), 1, v(t0_)); A('v_add_u32', v(t1_), v(t1_), v(t2_)); A('v_mul_u32_u24', v(t1_), 1280, v(t1_))
    A('v_lshrrev_b32', v(t2_), 4, v(t0_)); A('v_lshl_add_u32', v(t1_), v(t2_), 5, v(t1_))
    A('v_bfe_u32', v(t2_), v(t0_), 1, 1); A('v_lshl_add_u32', v(t1_), v(t2_), 4, v(t1_))
    for j in range(nd): A('buffer_load_dwordx4', v(AQK + 4 + 4 * j, 4), v(t1_), SM0, 0, mods=f'offen offset:{128*KO[j]}')
    A('v_and_b32', v(t2_), 7, v(t0_)); A('v_lshlrev_b32', v(t2_), 2, v(t2_))
    A('buffer_load_dword', v(AQK), 'off', SDBG, 0, mods='offset:128 sc1')
    A('buffer_load_dword', v(AQK + 1), v(t2_), SDBG, 0, mods='offen sc1')
    A('v_lshlrev_b32', v(t0_), 3, v(LANE16))
    for n, u in enumerate(order):
        consume(u, n)
        if n == 0:
            for i in range(3): A('buffer_load_dword', v(AQK + 2), v(t0_), WS, sSTRS[2 * i], mods='offen sc1')
            for i in range(2 * ng): A('buffer_load_dwordx4', v(AV + 4, 4), v(LANE16), WS, sPLD if i < 2 else sPLD1, mods=f'offen offset:{(i&1)*1024} sc1')
            A('s_add_u32', sT0, sMEMc, 5120 * w)
            A('buffer_load_dword', v(AQK + 2), v(t0_), WS, sT0, mods='offen sc1')
            if w == 3:
                A('s_sub_u32', sT0, sKF, 3 * 2048); A('buffer_load_dword', v(XR), v(t0_), WS, sT0, mods='offen sc1')
                A('s_add_u32', sT0, sT0, VT - KF); A('buffer_load_dword', v(XR + 1), v(t0_), WS, sT0, mods='offen sc1')
    A.wait(vm=0, lg=0)
    A('v_readfirstlane_b32', sT0, v(AQK)); A('v_cmp_ne_u32', 'vcc', 32 if not env('FORCE_SLOW') else 33, v(AQK + 1))
    A('s_cmp_ge_u32', sT0, 256); A('s_cselect_b32', sT0, 'vcc_lo', 1); A('s_cmp_eq_u32', sT0, 0)
    if not env('DBG'): A('s_cbranch_scc1', L('rdy'))
    ready(A)
    A.label(L('rdy'))
    A('s_mov_b32', 's40', '0x3f803f80'); A('s_mov_b32', 's41', '0x3f803f80')
    for j in range(nd):
        A('ds_write_b128', v(LANE16), v(AQK + 4 + 4 * j, 4), mods=f'offset:{L_MEM + 1024*KO[j]}')
        A('v_mov_b64', v(ownreg[j], 2), v(AQK + 4 + 4 * j, 2)); A('v_mov_b64', v(ownreg[j] + 2, 2), v(AQK + 6 + 4 * j, 2))
    for n in range(5): fill(qslot[n], qk[n])
    A('s_waitcnt', 'lgkmcnt(0)')
    for i in range(0, 16, 2): A('v_mov_b64', v(AQK + i, 2), 0)
    if len(modes) > 1:
        A('s_cmp_lg_u32', sMODE, 0); A('s_cbranch_scc1', f'CHS{w}_start')
    for sc in modes:
        L = lambda nm: f'CH{"S" if sc else "F"}{w}_{nm}'
        A.label(L('start')); A.reset_counts()
        def stamp(i):
            if not dbg or i not in STAMPS: return
            A('s_memtime', s(80 + 2 * STAMPS.index(i), 2))
        def dump():
            A('s_lshl_b32', sT0, sC, 5); A('s_add_u32', sT0, sT0, sH); A('s_lshl_b32', sT0, sT0, 2); A('s_add_u32', sT0, sT0, w)
            A('s_lshl_b32', sT0, sT0, 6); A('s_add_u32', sT0, sT0, DBGT)
            A('s_waitcnt', 'lgkmcnt(0)')
            for i, r_ in enumerate([s(80 + 2 * k) for k in range(11)] + [sDEAD]):
                A('v_mov_b32', v(AV), r_)
                A('buffer_store_dword', v(AV), 'off', WS, sT0, mods=f'offset:{4*i}'); A.vm.pop()
            A('s_waitcnt', 'vmcnt(0)')
        def pub_read(reg, tmp):
            A('v_and_b32', v(tmp), 512, v(LANE16)); A('v_mul_u32_u24', v(tmp), (L_VM - L_KB - 512) // 512, v(tmp)); A('v_add_u32', v(tmp), v(tmp), v(LANE16))
            A('ds_read_b128', v(reg, 4), v(tmp), mods=f'offset:{L_KB + 512*w}', tag='pk')
        def w3upd():
            A('v_min_u32', v(XR), v(XR + 6), v(XR + 7)); A('v_readlane_b32', sT0, v(XR), 0); A('v_readlane_b32', sT3, v(XR), 1)
            A('s_min_u32', sT0, sT0, sT3); A('s_max_u32', sPROG, sPROG, sT0)
        def w3in(need):
            ok = A.newlabel(L('inok')); lp = A.newlabel(L('inlp'))
            A('s_cmp_gt_u32', sPROG, need); A('s_cbranch_scc1', ok)
            A('s_mov_b32', sSPIN, 0)
            A.label(lp)
            A('buffer_load_dwordx2', v(XR + 6, 2), v(XR + 5), WS, sFIN, mods='offen sc1'); A.vm.pop()
            A('s_waitcnt', 'vmcnt(0)')
            w3upd()
            A('s_cmp_gt_u32', sPROG, need); A('s_cbranch_scc1', ok)
            A('s_cmp_lg_u32', sDEAD, 0); A('s_cbranch_scc1', ok)
            A('s_sleep', 2)
            A('s_add_u32', sSPIN, sSPIN, 1); A('s_cmp_lt_u32', sSPIN, SPIN_MAX); A('s_cbranch_scc1', lp)
            A('s_mov_b32', sDEAD, 1)
            A.label(ok)
        def w3prep():
            A('s_add_u32', sFOV, sS, 1)
            if env('SPECPF', 1): A('s_cmp_lt_u32', sFOV, nsteps)
            else: A('s_cmp_gt_u32', sPROG, sFOV)
            A('s_cselect_b32', sT0, 0, (0 if X_NOADV else 32 * 8192)); A('s_sub_u32', sPFK, sKF, sT0); A('s_sub_u32', sPFK, sPFK, 3 * 2048)
            A('s_add_u32', sPFV, sPFK, VT - KF)
            A('s_max_u32', sT0, sS, 1); A('s_sub_u32', sT0, sT0, 1); A('v_mov_b32', v(XR + 4), sT0)
        def kdma():
            A('s_mov_b32', 'm0', L_KX + w * 2048)
            for i in range(2): A('buffer_load_dwordx4', v(LANE16), WS, sKF, mods=f'offen offset:{i*1024} {KVMOD} lds')
            if not X_NOADV: A('s_add_u32', sKF, sKF, 32 * 8192)
        if w == 3: w3in(sS)
        A('s_barrier')
        kdma()
        if w == 3: w3prep()
        A('s_waitcnt', 'vmcnt(0) lgkmcnt(0)')
        A.label(L('loop'))
        A.reset_counts()
        stamp('top')
        accq = {('q', 0): AQK, ('q', 1): AQK + 4, ('k', 0): AQK + 8, ('k', 1): AQK + 12}
        awin = [AW, AW + 4, AV + 4, AW, AW + 4, AV, AV + 4, AV, AW, AW + 4]
        aat = {3: 3, 4: 7, 5: PUBAT + 1, 6: 11, 7: 23, 8: 15, 9: 19}
        def aread(j, reg, tag):
            A('ds_read_b128', v(reg, 4), v(LANE16), mods=f'offset:{L_MEM + 1024*KO[j]}', tag=tag)
        kfr = {}
        def kread(tk, reg):
            t, kp = tk
            kfr[tk] = reg
            if t == 0: A('ds_read_b128', v(reg, 4), v(FR), mods=f'offset:{L_KB + 512*kp}', tag=('K', tk))
            else: A('ds_read_b128', v(reg, 4), v(LANE16), mods=f'offset:{L_KX + ((t-1)*4+kp)*1024}', tag=('K', tk))
        NPRE = 0
        side = {}
        def at(n, fn): side.setdefault(n, []).append(fn)
        for n0, st, s2, fi in qfill:
            at(n0, lambda s2=s2, fi=fi: half_fill(s2, qk[fi], 0)); at(n0 + st, lambda s2=s2, fi=fi: half_fill(s2, qk[fi], 1))
        if dbg:
            def st8():
                sk = A.newlabel(L('st8'))
                A('s_cmp_lg_u32', sS, 8); A('s_cbranch_scc1', sk); A('s_mov_b32', 's100', 's80'); A.label(sk)
            at(20, st8)
        for n0, tk, reg in [(26, (1, 0), SL[0]), (27, (2, 0), SL[0] + 4), (30, (1, 1), SL[3]), (31, (2, 1), SL[3] + 4)]:
            at(n0, lambda tk=tk, reg=reg: kread(tk, reg))
        def vxload(hf):
            A('buffer_load_dwordx4', v(SL[1] + 4 * hf, 4), v(LANE16), WS, sVT, mods=f'offen offset:{1024*hf} {KVMOD}', tag='vx')
        at(1, lambda: vxload(0)); at(3, lambda: vxload(1))
        if w == 3:
            if not X_NOPF:
                at(PUBAT + 1, lambda: A('buffer_load_dword', v(XR), v(XR + 3), WS, sPFK, mods='offen sc1'))
                at(PUBAT + 3, lambda: A('buffer_load_dword', v(XR + 1), v(XR + 3), WS, sPFV, mods='offen sc1'))
            if not X_NOFLAG: at(PUBAT + 5, lambda: A('buffer_load_dwordx2', v(XR + 6, 2), v(XR + 5), WS, sFIN, mods='offen sc1'))
            if not X_NOPUB:
                if env('CHFLAG'): at(PUBAT + 6, lambda: A('buffer_store_dword', v(XR + 4), v(XR + 2), WS, sFLO, mods='offen sc1'))
                if env('DBG') == 2: at(PUBAT + 7, lambda: (tstamp(A, sFLO, sS, XR + 4), A.vm.append(None)))
        def pub2():
            if not X_NOPUB and not env('X_NOKM'): A('buffer_store_dwordx4', v(AV, 4), v(LANE16), WS, sKM, mods='offen ' + os.environ.get('PUBMOD', 'sc1'))
        at(PUBAT, pub2)
        at(28, lambda: A('v_mov_b64', v(AV + 4, 2), 0)); at(29, lambda: A('v_mov_b64', v(AV + 6, 2), 0))
        at(32, lambda: A('v_mov_b64', v(AV, 2), 0)); at(33, lambda: A('v_mov_b64', v(AV + 2, 2), 0))
        A('s_barrier'); stamp('b1')
        if nd == 2: aread(2, awin[2], ('A', 2))
        A('v_mov_b32', v(AQK + 15), 0)
        for n in range(NPRE, 40):
            f = qk[n]; j = f[1]
            if (n & 1) == 0: A.wait(lg=[('A', j)] + [('F', qk[m]) for m in (n, n + 1) if qk[m] in lds_off])
            stamp(f'q{n}')
            smf(accq[(f[0], f[2])], awin[j], f, qslot.get(n))
            for j2, n2 in aat.items():
                if n2 == n: aread(j2, awin[j2], ('A', j2))
            for fn in side.get(n, []): fn()
        vj = [9, 8, 0, 1, 2, 3, 4, 5, 6, 7]
        vq = []
        for idx, j in enumerate(vj):
            reg = AW + 4 if idx % 2 == 0 else AW
            vq.append((j, 0, reg, idx)); vq.append((j, 1, reg, idx))
        vstate = {'i': 0, 'p': 0}
        def vpass(cnt):
            for _ in range(cnt):
                if vstate['i'] >= 20: return
                j, t, reg, idx = vq[vstate['i']]; vstate['i'] += 1
                if t == 0 and idx >= 2: A.wait(lg=[('B', idx)])
                smf(AV + 4 * t, reg, ('v', j, t), None)
                if t == 1 and idx + 2 < 10: aread(vj[idx + 2], reg, ('B', idx + 2))
        stamp(0)
        add2(AQK, AQK, AQK + 2); add2(AQK + 4, AQK + 4, AQK + 6)
        A('v_cvt_pk_bf16_f32', v(AQK + 2), v(AQK), v(AQK + 4)); A('v_cvt_pk_bf16_f32', v(AQK + 3), v(AQK + 1), v(AQK + 5))
        A('ds_write2_b32', v(QKW), v(AQK + 2), v(AQK + 3), mods='offset0:0 offset1:4', tag='qw')
        add2(AQK + 8, AQK + 8, AQK + 10); add2(AQK + 12, AQK + 12, AQK + 14)
        A('v_cvt_pk_bf16_f32', v(AQK + 10), v(AQK + 8), v(AQK + 12)); A('v_cvt_pk_bf16_f32', v(AQK + 11), v(AQK + 9), v(AQK + 13))
        A('ds_write2_b32', v(KW), v(AQK + 10), v(AQK + 11), mods='offset0:0 offset1:4', tag='qw')
        vpass(env('VP1', 4))
        A.wait(lg=['qw']); A('s_barrier'); stamp('b2')
        qreg = [SL[2], SL[2] + 4, SL[4], SL[4] + 4]
        A('ds_read_b128', v(qreg[0], 4), v(FR), mods=f'offset:{L_QB}', tag=('Q', 0))
        A('ds_read_b128', v(qreg[1], 4), v(FR), mods=f'offset:{L_QB + 512}', tag=('Q', 1))
        kread((0, 0), AQK + 12)
        for kp in range(2, 4): A('ds_read_b128', v(qreg[kp], 4), v(FR), mods=f'offset:{L_QB + 512*kp}', tag=('Q', kp))
        vpass(env('VP2', 4))
        sacc = {0: AQK, 1: AQK + 4, 2: AQK + 8}
        sc_order = [(1, 0), (2, 0), (1, 1), (2, 1), (0, 0), (0, 1), (1, 2), (2, 2), (0, 2), (0, 3), (1, 3), (2, 3)]
        pending = sc_order[5:]
        pf = []
        for n in opre:
            pf.append((oslot[n], oo[n], 0)); pf.append((oslot[n], oo[n], 1))
        def pfill(cnt=1):
            for _ in range(cnt):
                if pf: half_fill(*pf.pop(0))
        for tk in sc_order:
            t, kp = tk
            A.wait(lg=[('K', tk), ('Q', kp)])
            A('v_mfma_f32_16x16x32_bf16', v(sacc[t], 4), v(kfr[tk], 4), v(qreg[kp], 4), '0' if kp == 0 else v(sacc[t], 4))
            if pending: kread(pending.pop(0), kfr[tk])
        stamp('sc')
        vpass(1); pfill(); vpass(1); pfill()
        vals = [AQK, AQK + 1] + [AQK + 4 + i for i in range(8)]
        mx = AQK + 2; tm = AQK + 3
        A('v_max3_f32', v(mx), v(vals[0]), v(vals[1]), v(vals[2])); A('v_max3_f32', v(tm), v(vals[3]), v(vals[4]), v(vals[5]))
        A('v_max3_f32', v(mx), v(mx), v(vals[6]), v(vals[7])); A('v_max3_f32', v(tm), v(tm), v(vals[8]), v(vals[9]))
        A('v_max_f32', v(mx), v(mx), v(tm)); A('v_max_f32', v(tm), v(mx), v(tm))
        vpass(1); pfill()
        A('v_permlane32_swap_b32', v(tm), v(mx)); A('v_max_f32', v(mx), v(mx), v(tm)); A('v_max_f32', v(tm), v(mx), v(tm))
        vpass(1)
        A('v_permlane16_swap_b32', v(tm), v(mx)); A('v_max_f32', v(mx), v(mx), v(tm))
        A('v_mul_f32', v(mx), sSCALE, v(mx))
        stamp('s1')
        order = vals[2:] + vals[:2]
        for i, r_ in enumerate(order):
            A('v_fma_f32', v(r_), v(r_), sSCALE, '-' + v(mx))
            if i >= 1: A('v_exp_f32', v(order[i - 1]), v(order[i - 1]))
            if i < 8: vpass(1)
            if i % 3 == 1: pfill()
            if i in (3, 5, 7, 9): A('v_cvt_pk_bf16_f32', v(AQK + 12 + (i - 3) // 2), v(order[i - 3]), v(order[i - 2]))
            if i == 6: A('v_mov_b64', v(AQK + 4, 2), sONES); A('v_mov_b64', v(AQK + 6, 2), sONES)
        A('v_exp_f32', v(order[9]), v(order[9]))
        stamp('s2')
        vpass(20)
        A('v_mov_b32', v(AQK + 3), 0)
        stamp(2)
        A('v_cvt_pk_bf16_f32', v(AQK + 2), v(AQK), v(AQK + 1))
        A.wait(vm=['vx'])
        A('v_mfma_f32_16x16x32_bf16', v(AQK + 8, 4), v(AQK + 4, 4), v(AQK + 12, 4), '0')
        add2(AV, AV, AV + 2)
        A('v_mfma_f32_16x16x32_bf16', v(AW, 4), v(SL[1], 4), v(AQK + 12, 4), '0')
        add2(AV + 4, AV + 4, AV + 6)
        A('v_mfma_f32_16x16x32_bf16', v(AW + 4, 4), v(SL[1] + 4, 4), v(AQK + 12, 4), '0')
        A('v_cvt_pk_bf16_f32', v(AV + 2), v(AV), v(AV + 1)); A('v_cvt_pk_bf16_f32', v(AV + 3), v(AV + 4), v(AV + 5))
        A('v_mfma_f32_16x16x16_bf16', v(AQK + 8, 4), v(AQK + 4, 2), v(AQK + 2, 2), v(AQK + 8, 4))
        A('v_cvt_pk_bf16_f32', v(AV + 4), v(AV + 4), v(AV + 5)); A('v_mov_b32', v(AV + 5), 0)
        stamp('p1')
        A('v_mfma_f32_16x16x16_bf16', v(AW, 4), v(AV + 2, 2), v(AQK + 2, 2), v(AW, 4))
        pfill(2)
        A('v_mfma_f32_16x16x16_bf16', v(AW + 4, 4), v(AV + 4, 2), v(AQK + 2, 2), v(AW + 4, 4))
        stamp('p2')
        pf.append((oslot[e_], oo[e_], 0)); pf.append((oslot[e_], oo[e_], 1))
        pfill(1)
        sm = AQK
        A('v_lshrrev_b32', v(AV + 6), 1, v(LANE16))
        A('ds_write_b64', v(AV + 6), v(AV + 2, 2), mods=f'offset:{L_VM + 512*w}', tag='ow')
        A('v_rcp_f32', v(sm), v(AQK + 8))
        for i in (4, 6): A('v_mov_b64', v(AQK + i, 2), 0)
        for i in range(4):
            A('v_mul_f32', v(AW + 2 * i), v(AW + 2 * i), v(sm)); A('v_mul_f32', v(AW + 2 * i + 1), v(AW + 2 * i + 1), v(sm))
            A('v_cvt_pk_bf16_f32', v(AQK + 8 + i), v(AW + 2 * i), v(AW + 2 * i + 1))
        A('ds_write_b128', v(FR), v(AQK + 8, 4), mods=f'offset:{L_O + 512*w}', tag='ow')
        stamp('p3')
        pfill(3)
        for i in (0, 2, 12, 14): A('v_mov_b64', v(AQK + i, 2), 0)
        for i in (0, 4): A('v_mov_b64', v(AV + i, 2), 0)
        stamp('p4')
        A.wait(lg=['ow']); A('s_barrier')
        A('ds_read_b128', v(AW, 4), v(LANE16), mods=f'offset:{L_O}', tag='oa0')
        A('ds_read_b128', v(AW + 4, 4), v(LANE16), mods=f'offset:{L_O+1024}', tag='oa1')
        pfill()
        A('s_cmp_eq_u32', sS, nsteps - 1)
        A('s_cbranch_scc1', L('last'))
        if dbg and env('FRZ'):
            A('s_cmp_lg_u32', sS, env('FRZ')); A('s_cbranch_scc1', L('nofrz'))
            A('s_memtime', 's[100:101]'); dump(); A('v_mov_b32', v(AV), 0)
            A.label(L('nofrz'))
        for i in (8, 10): A('v_mov_b64', v(AQK + i, 2), 0)
        for i in (2, 6): A('v_mov_b64', v(AV + i, 2), 0)
        assert not pf
        stamp(3)
        accs = [AQK, AQK + 4, AQK + 8, AQK + 12, AV, AV + 4]
        tacc = {t: t % 6 for t in range(10)}
        def post_ops(t):
            r_ = accs[tacc[t]]; st = accs[tacc[t & ~1]] + (t & 1)
            ops = [lambda: A('v_add_f32', v(r_), v(r_), v(r_ + 2)), lambda: A('v_add_f32', v(r_ + 1), v(r_ + 1), v(r_ + 3)),
                   lambda: A('v_cvt_pk_bf16_f32', v(st), v(r_), v(r_ + 1))]
            if t % 2 == 0: ops.append(lambda: A('v_and_or_b32', v(st), v(st), -2, sTAG))
            else:
                ops.append(lambda: A('buffer_store_dwordx2', v(st - 1, 2), v(PST2), WS, sPSTS[t >> 1], mods=f'offen {sc}'.strip(), tag='ps'))
                if t < 4:
                    for rr in (r_, r_ + 2, st + 1, st - 1): ops.append(lambda rr=rr: A('v_mov_b64', v(rr, 2), 0))
            return ops
        oside = {}
        def oat(n, fn): oside.setdefault(n, []).append(fn)
        for a_, b_ in [(ab[i] + k, ab[i + 1] + k) for i in range(3) for k in range(2)]:
            oat(a_, lambda b_=b_: fill(oslot[b_], oo[b_]))
        for n0, qi in (((cd, 4), (cd + 3, 0), (max(e_, cd + 6), 1)) if not env('NOHELD') else ()):
            oat(n0, lambda qi=qi: half_fill(qslot[qi], qk[qi], 0)); oat(n0 + 2, lambda qi=qi: half_fill(qslot[qi], qk[qi], 1))
        vq_ = []
        for n, f in enumerate(oo):
            if n % 2 == 0:
                pr = [oo[n], oo[n + 1]]
                A.wait(lg=(['oa0'] if n == 0 else ['oa1'] if n == 2 else []) + [('F', x) for x in pr if x in lds_off], vm=[('F', x) for x in pr if x in strm_idx])
            if f[1] == 0 and f[2] >= 6:
                need = {6: 1, 7: 1, 8: 3, 9: 3}[f[2]]
                while any(t == need for t, _ in vq_): vq_.pop(0)[1]()
            stamp(f'o{n}')
            smf(accs[tacc[f[2]]], AW + 4 * f[1], f, oslot.get(n))
            for fn in oside.get(n, []): fn()
            for t in range(10):
                if 4 * (t >> 1) + 2 + (t & 1) + 3 == n: vq_ += [(t, o_) for o_ in post_ops(t)]
            for _ in range(3):
                if vq_: vq_.pop(0)[1]()
        while vq_: vq_.pop(0)[1]()
        for t in (8, 9):
            for o_ in post_ops(t): o_()
        stamp(4)
        if env('ACKT'): A('s_waitcnt', 'vmcnt(0)'); stamp('ack')
        if w in (1, 2) and env('P1POS', 0) == 0: fill(qslot[2], qk[2]); fill(qslot[3], qk[3])
        if w == 3: w3upd(); w3in(sFOV)
        A('s_barrier')
        ra = AV + 4
        setreg = [AQK, AQK + 8 if ng == 1 else SL[2]]
        A('s_mov_b32', sSPIN, 0)
        A('v_bfe_u32', v(ra + 1), v(LANE16), 4, 1); A('v_lshlrev_b32', v(ra + 1), 4, v(ra + 1))
        A('v_mov_b32', v(ra + 2), '0x3f80'); A('v_lshlrev_b32', v(ra + 1), v(ra + 1), v(ra + 2))
        A('v_bfe_u32', v(ra + 2), v(LANE16), 5, 3)
        def rloads(st):
            for i in range(2 * ng):
                A('buffer_load_dwordx4', v(setreg[st] + 4 * i, 4), v(LANE16), WS, sPLD if i < 2 else sPLD1, mods=f'offen offset:{(i&1)*1024} sc1')
        sel = lambda jj: (A('v_cmp_eq_u32', 'vcc', jj, v(ra + 2)), A('v_cndmask_b32', v(AW + jj), 0, v(ra + 1), 'vcc'))
        for jj in range(RDELAY): sel(jj % (4 * ng))
        rloads(0)
        for jj in range(max(RGAP, 4 * ng - RDELAY)): sel((RDELAY + jj) % (4 * ng))
        rloads(1)
        for jj in range(env('RFILL', 0)): sel(jj % (4 * ng))
        A.label(L('rloop'))
        for st in range(2):
            A('s_waitcnt', f'vmcnt({2*ng})')
            stamp('r1')
            for i in range(2 * ng):
                b = setreg[st] + 4 * i
                A('v_mfma_f32_16x16x32_bf16', v(AV, 4), v(b, 4), v(AW + 4 * (i >> 1), 4), '0' if i == 0 else v(AV, 4))
                if i == 0:
                    A('v_and_b32', v(ra + 1), v(b), v(b + 2)); A('v_or_b32', v(ra + 2), v(b), v(b + 2))
                else:
                    A('v_bitop3_b32', v(ra + 1), v(ra + 1), v(b), v(b + 2), mods='bitop3:0x80'); A('v_or3_b32', v(ra + 2), v(ra + 2), v(b), v(b + 2))
            A('v_bitop3_b32', v(ra + 1), v(ra + 1), v(ra + 2), sTAG, mods='bitop3:0x4e')
            A('v_and_b32', v(ra + 1), 1, v(ra + 1))
            A('v_cmp_ne_u32', 'vcc', 0, v(ra + 1))
            A('s_cbranch_vccz', L('rok'))
            rloads(st)
        A('s_cmp_lg_u32', sDEAD, 0); A('s_cbranch_scc1', L('rok'))
        A('s_add_u32', sSPIN, sSPIN, 1)
        A('s_cmp_lt_u32', sSPIN, SPIN_MAX); A('s_cbranch_scc1', L('rloop'))
        A('s_mov_b32', sDEAD, 1)
        A.label(L('rok'))
        A('v_permlane32_swap_b32', v(AV), v(AV + 2)); A('v_permlane32_swap_b32', v(AV + 1), v(AV + 3))
        add2(AV, AV, AV + 2)
        A('v_permlane16_swap_b32', v(AV), v(AV + 1)); A('v_add_f32', v(AV), v(AV), v(AV + 1))
        A('v_cvt_pk_bf16_f32', v(AV), v(AV), v(AV))
        A('buffer_store_short', v(AV), v(RDEST), WS, sMEMc, mods=f'offen {sc}'.strip())
        stamp(5)
        A('v_mov_b32', v(AV + 1), hex(SENT))
        A('buffer_store_short', v(AV + 1), v(RDEST), WS, sMEMo, mods=f'offen {sc}'.strip())
        A.reset_counts()
        xl = 0
        if w in (1, 2) and env('P1POS', 0) == 1: fill(qslot[2], qk[2]); fill(qslot[3], qk[3]); xl = 4
        kdma()
        pub_read(AV, AV + 4)
        A('s_add_u32', sT2, sMEMc, 1024 * KOWN[w])
        A('s_xor_b32', sTAG, sTAG, 1); A('s_add_u32', sKM, sKM, 32 * 4096)
        A('s_xor_b32', sMEMc, sMEMc, sDMEM); A('s_xor_b32', sMEMo, sMEMo, sDMEM)
        if not X_NOADV: A('s_add_u32', sVT, sVT, 32 * 8192)
        A('s_add_u32', sS, sS, 1)
        A('s_mov_b32', sSPIN, 0)
        A('s_mov_b32', 'm0', L_MEM + 1024 * KOWN[w])
        def gdma():
            for j in range(nd): A('buffer_load_dwordx4', v(LANE16), WS, sT2, mods=f'offen offset:{1024*j} sc1 lds')
        if w == 3: w3prep()
        for i in range(GDELAY - (8 if w == 3 else 0)): A('v_mov_b32', v(AW + (i % 8)), 0)
        gdma()
        A('s_waitcnt', f'vmcnt({4 + nd + xl})')
        if w in (0, 3): fill(qslot[2], qk[2]); fill(qslot[3], qk[3])
        for i in range(0, 16, 2): A('v_mov_b64', v(AQK + i, 2), 0)
        for i in range(env('GGAP', 12)): A('v_mov_b32', v(AW + (i % 8)), 0)
        gdma()
        A.label(L('gloop'))
        A('s_waitcnt', f'vmcnt({nd})')
        for j in range(nd): A('ds_read_b128', v(ownreg[j], 4), v(LANE16), mods=f'offset:{L_MEM + 1024*KO[j]}')
        gdma()
        gregs = [r_ + i for r_ in ownreg for i in range(4)]
        A('s_waitcnt', f'lgkmcnt({nd-1})')
        m0_ = AQK + 15
        A('v_pk_max_u16', v(m0_), v(gregs[0]), v(gregs[1]))
        for i in range(2, len(gregs)):
            if i % 4 == 0: A('s_waitcnt', f'lgkmcnt({nd-1-i//4})')
            A('v_pk_max_u16', v(m0_), v(m0_), v(gregs[i]))
        emit_check(A, m0_, AQK + 14, gregs, L('gloop'), L('loop'), define=False)
        A('s_branch', L('loop'))
        A.label(L('last'))
        A.reset_counts()
        pub_read(AV, AV + 4); A('s_add_u32', sKM, sKM, 32 * 4096)
        A('s_waitcnt', 'lgkmcnt(0)')
        A('buffer_store_dwordx4', v(AV, 4), v(LANE16), WS, sKM, mods='offen sc1')
        A('s_waitcnt', 'vmcnt(0)')
        A('s_barrier')
        if w == 3:
            A('v_mov_b32', v(XR), nsteps)
            A('s_mov_b64', 'exec', 1)
            A('buffer_store_dword', v(XR), 'off', WS, sFLO, mods='sc1')
            A('s_mov_b64', 'exec', -1)
        if dbg and not env('FRZ'): dump()
        A('s_waitcnt', 'vmcnt(0) lgkmcnt(0)')
        A('s_endpgm')

def emit_check(A, m0, m1, regs, retry, ok, define=True):
    A('v_pk_max_u16', v(m0), v(m0), v(m0), mods='op_sel:[0,1] op_sel_hi:[1,0]')
    A('v_cmp_le_u32', 'vcc', '0xff810000', v(m0))
    A('s_cbranch_vccz', ok)
    A('s_add_u32', sSPIN, sSPIN, 1)
    A('s_cmp_lt_u32', sSPIN, 64); A('s_cbranch_scc1', retry)
    A('s_cmp_lg_u32', sDEAD, 0); A('s_cbranch_scc1', ok)
    A('v_mov_b32', v(m0), -1)
    for r_ in regs:
        A('v_xor_b32', v(m1), hex(SENT), v(r_)); A('v_pk_min_u16', v(m0), v(m0), v(m1))
    A('v_pk_min_u16', v(m0), v(m0), v(m0), mods='op_sel:[0,1] op_sel_hi:[1,0]')
    A('v_mov_b32', v(m1), 0)
    A('v_cmp_eq_u32', 'vcc', 0, v(m0))
    A('s_cbranch_vccz', ok)
    A('s_sleep', 1)
    A('s_cmp_lt_u32', sSPIN, SPIN_MAX); A('s_cbranch_scc1', retry)
    A('s_mov_b32', sDEAD, 1)
    if define: A.label(ok)
```

```python
from asmgen import *
from layout import *
from chain import tstamp, sMODE, WS, SQ, SK, SV, SO, SX, SM0, SW1, SW2, SOUT, SDBG, f32bits, SPIN_MAX
sW, sI, sL, sU = 's52', 's53', 's54', 's55'
sIN, sOUT_, sFI, sFO, sPROG, sPEND, sLB, sNX, sA, sB, sC_, sD = ['s%d' % i for i in range(56, 68)]
sSPIN, sDEAD = 's68', 's69'
sT0, sT1, sT2, sT3 = 's70', 's71', 's72', 's73'
NU = 64
CHK1 = [int(x) for x in __import__('os').environ.get('CHK1', '10,20,30').split(',')]
import os
DBG = int(os.environ.get('DBG', 0))
LN_, L16, FOFF = 0, 1, 2
FV = 4
TM = 8

def common_setup(A, nlines):
    A('v_and_b32', v(LN_), 63, 'v0'); A('v_lshlrev_b32', v(L16), 4, v(LN_))
    A('v_min_u32', v(FOFF), nlines - 1, v(LN_)); A('v_lshlrev_b32', v(FOFF), 7, v(FOFF))
    A('s_mov_b32', sU, 0); A('s_mov_b32', sPROG, 0); A('s_mov_b32', sPEND, 0); A('s_mov_b32', sDEAD, 0)

def ph(A, i):
    if DBG: A('s_memtime', s(2 * i + (4 if i < 2 else 90 - 4), 2)) if False else None
PHR = [4, 6, 88, 94, 100]
def ph(A, i):
    if DBG: A('s_memtime', s(PHR[i], 2))
def ph_dump(A, tmp=3):
    if not DBG: return
    sk = A.newlabel('phd')
    A('s_cmp_lg_u32', sU, 40); A('s_cbranch_scc1', sk)
    A('s_lshr_b32', 's92', sFO, 7); A('s_lshl_b32', 's92', 's92', 2); A('s_bfe_u32', 's93', sFO, 0x20002); A('s_add_u32', 's92', 's92', 's93')
    A('s_lshl_b32', 's92', 's92', 6); A('s_add_u32', 's92', 's92', DBGT + (3 << 20))
    A('s_waitcnt', 'lgkmcnt(0)')
    for i, r in enumerate(PHR):
        A('v_mov_b32', v(tmp), s(r)); A('buffer_store_dword', v(tmp), 'off', WS, 's92', mods=f'offset:{4*i}'); A.vm.pop()
    A.label(sk)

def flag_load(A, soff=sFI, reg=FV, voff=FOFF, n=4):
    op = {1: 'buffer_load_dword', 2: 'buffer_load_dwordx2', 4: 'buffer_load_dwordx4'}[n]
    A(op, v(reg, n), v(voff), WS, soff, mods='offen sc1', tag='fl')

def flag_min(A, dst, reg=FV, n=4, lanes=64, floor=None):
    if n == 4:
        A('v_min3_u32', v(reg), v(reg), v(reg + 1), v(reg + 2)); A('v_min_u32', v(reg), v(reg), v(reg + 3))
    elif n == 2:
        A('v_min_u32', v(reg), v(reg), v(reg + 1))
    if floor is not None: A('v_max_u32', v(reg), v(reg), v(floor))
    if lanes > 1:
        for sh in (1, 2, 4, 8): A('v_min_u32_dpp', v(reg), v(reg), v(reg), mods=f'row_ror:{sh} row_mask:0xf bank_mask:0xf')
    A('v_readlane_b32', sT0, v(reg), 0)
    if lanes > 16:
        assert lanes <= 32
        A('v_readlane_b32', sT1, v(reg), 16); A('s_min_u32', sT0, sT0, sT1)
    A('s_max_u32', dst, dst, sT0)

def poll(A, pre, need, prog=sPROG, soff=sFI, reg=FV, voff=FOFF, n=4, lanes=64, floor=None):
    ok = A.newlabel(pre + '_ok'); lp = A.newlabel(pre + '_lp')
    A('s_cmp_gt_u32', prog, need); A('s_cbranch_scc1', ok)
    A('s_mov_b32', sSPIN, 0)
    A.label(lp)
    flag_load(A, soff, reg, voff, n); A.vm.pop()
    A('s_waitcnt', 'vmcnt(0)')
    flag_min(A, prog, reg, n, lanes, floor)
    A('s_cmp_gt_u32', prog, need); A('s_cbranch_scc1', ok)
    A('s_cmp_lg_u32', sDEAD, 0); A('s_cbranch_scc1', ok)
    A('s_sleep', 2)
    A('s_add_u32', sSPIN, sSPIN, 1); A('s_cmp_lt_u32', sSPIN, SPIN_MAX); A('s_cbranch_scc1', lp)
    A('s_mov_b32', sDEAD, 1)
    A.label(ok)

def publish(A, val, tmp=3, loc=False):
    A('v_mov_b32', v(tmp), val)
    A('s_mov_b64', 'exec', 1)
    if loc: local_flag(A, lambda md: A('buffer_store_dword', v(tmp), 'off', WS, sFO, mods=md))
    else: A('buffer_store_dword', v(tmp), 'off', WS, sFO, mods='sc1')
    A.vm.pop()
    if DBG: tstamp(A, sFO, val, tmp)
    A('s_mov_b64', 'exec', -1)

def local(A, fn):
    fn('sc1')

def local_flag(A, fn):
    sl = A.newlabel('loc_s'); e = A.newlabel('loc_e')
    A('s_cmp_lg_u32', sMODE, 0); A('s_cbranch_scc1', sl)
    n0 = len(A.vm); fn(''); del A.vm[n0:]
    A('s_branch', e)
    A.label(sl)
    fn('sc1')
    A.label(e)

def flag_out_addr(A, kind):
    A('s_mul_i32', sFO, sL, FL_LAYER); A('s_lshl_b32', sT0, sI, 7); A('s_add_u32', sFO, sFO, sT0)
    A('s_lshl_b32', sT0, sW, 2); A('s_add_u32', sFO, sFO, sT0); A('s_add_u32', sFO, sFO, kind)

def load_weights(A, srd, stride, rowpart, sbase, soffs, dst, perm):
    SRC, TR0, TR1 = TM, TM + 1, TM + 2
    t = [TM + 3 + i for i in range(6)]
    A('v_lshrrev_b32', v(t[0]), 5, v(LN_)); A('v_mul_u32_u24', v(t[0]), rowpart, v(t[0]))
    A('v_bfe_u32', v(t[1]), v(LN_), 3, 2); A('v_add_u32', v(t[0]), v(t[0]), v(t[1]))
    A('s_mov_b32', sT0, stride); A('v_mul_lo_u32', v(t[0]), v(t[0]), sT0)
    A('v_bfe_u32', v(t[1]), v(LN_), 4, 1); A('v_lshlrev_b32', v(t[1]), 2, v(t[1])); A('v_and_b32', v(t[2]), 7, v(LN_)); A('v_xor_b32', v(t[1]), v(t[1]), v(t[2]))
    A('v_lshl_add_u32', v(t[0]), v(t[1]), 4, v(t[0])); A('v_add_u32', v(SRC), sbase, v(t[0]))
    A('s_mul_i32', sLB, sW, 40960)
    A('v_lshrrev_b32', v(t[0]), 5, v(LN_)); A('v_lshlrev_b32', v(t[0]), 10, v(t[0]))
    A('v_bfe_u32', v(t[1]), v(LN_), 2, 2); A('v_lshl_add_u32', v(t[0]), v(t[1]), 7, v(t[0]))
    A('v_bfe_u32', v(t[1]), v(LN_), 3, 1); A('v_lshl_add_u32', v(t[0]), v(t[1]), 6, v(t[0]))
    A('v_bfe_u32', v(t[1]), v(LN_), 4, 1); A('v_lshl_add_u32', v(t[0]), v(t[1]), 5, v(t[0]))
    if perm:
        A('v_and_b32', v(t[1]), 1, v(LN_)); A('v_lshl_add_u32', v(t[0]), v(t[1]), 4, v(t[0]))
        A('v_bfe_u32', v(t[1]), v(LN_), 1, 1); A('v_lshl_add_u32', v(t[0]), v(t[1]), 3, v(t[0]))
    else:
        A('v_and_b32', v(t[1]), 3, v(LN_)); A('v_lshl_add_u32', v(t[0]), v(t[1]), 3, v(t[0]))
    A('v_add_u32', v(TR0), sLB, v(t[0])); A('v_xor_b32', v(TR1), 64, v(TR0))
    n_st = len(soffs); depth = 20
    def dma(n):
        for b in range(2):
            A('s_add_u32', 'm0', sLB, (n % depth) * 2048 + b * 1024)
            A('s_mov_b32', sT0, soffs[n][b])
            A('buffer_load_dwordx4', v(SRC), srd, sT0, mods='offen lds', tag=('W', n))
    for n in range(min(depth, n_st)): dma(n)
    for n in range(n_st):
        A.wait(vm=[('W', n)])
        for T in range(2):
            for hq in range(2):
                A('ds_read_b64_tr_b16', R(dst(n, T) + 2 * hq, 2), v(TR0 if T == 0 else TR1), mods=f'offset:{(n % depth)*2048 + 512*hq}', tag=('T', n))
        if n >= 1 and n - 1 + depth < n_st:
            A.wait(lg=[('T', n - 1)]); dma(n - 1 + depth)
    A.wait(vm=0, lg=0)

def emit_gemm1(A, kind, ready):
    P = f'G1{kind}_'
    A.label(P + 'entry'); A.reset_counts()
    RING, ACC, STG, WR = 64, 128, 160, 192
    AD, SA = 32, 33
    wreg = lambda n, T: WR + (2 * n + T) * 4
    common_setup(A, 2)
    FLR = 34
    A('v_mov_b32', v(FLR), 0)
    if kind != 'f1':
        A('s_cmp_eq_u32', sL, 0); A('s_cselect_b32', sT0, 15, 1); A('v_min_u32', v(FOFF), sT0, v(LN_))
        A('v_lshrrev_b32', v(FLR), 1, v(FOFF)); A('v_lshlrev_b32', v(FOFF), 7, v(FOFF))
    if kind == 'f1':
        A('s_lshl_b32', sT1, sI, 2); A('s_add_u32', sT1, sT1, sW)
        A('s_lshl_b32', sA, sT1, 7)
        A('s_cmp_lt_u32', sT1, 27); A('s_cselect_b32', sA, sA, '0x20000000')
        A('s_mul_i32', sOUT_, sL, LAYER_H); A('s_lshl_b32', sT1, sT1, 12); A('s_add_u32', sOUT_, sOUT_, sT1); A('s_add_u32', sOUT_, sOUT_, HF)
        load_weights(A, SW1, 3456, 4, sA, [(16 * n * 3456, (16 * n + 8) * 3456) for n in range(40)], wreg, False)
        A('s_mul_i32', sIN, sL, LAYER_X); A('s_add_u32', sIN, sIN, XN1)
        A('s_mul_i32', sFI, sL, FL_LAYER); A('s_add_u32', sFI, sFI, FL_LNA)
        flag_out_addr(A, FL_F1); nl = 2; ostep = UH
        A('v_mov_b32', v(SA), v(L16))
    else:
        A('s_mul_i32', sT1, sI, 43); A('s_lshr_b32', sB, sT1, 7)
        A('s_mul_i32', sT1, sB, 3); A('s_sub_u32', sC_, sI, sT1)
        A('s_lshl_b32', sA, sB, 9); A('s_lshl_b32', sT1, sW, 7); A('s_add_u32', sA, sA, sT1)
        soffs = [(16 * n * 8192, (16 * n + 8) * 8192) for n in range(40)]
        if kind == 'v':
            load_weights(A, SV, 8192, 4, sA, soffs, wreg, False)
        else:
            A('s_cmp_eq_u32', sC_, 0)
            A('s_cselect_b32', 's76', 's12', 's16'); A('s_cselect_b32', 's77', 's13', 's17'); A('s_mov_b32', 's78', hex(640 * 4096 * 2)); A('s_mov_b32', 's79', '0x20000')
            load_weights(A, 's[76:79]', 8192, 4, sA, soffs, wreg, False)
        A('s_mul_i32', sOUT_, sL, LAYER_F); A('s_lshl_b32', sT1, sB, 14); A('s_add_u32', sOUT_, sOUT_, sT1)
        A('s_lshr_b32', sT1, sW, 1); A('s_lshl_b32', sT1, sT1, 13); A('s_add_u32', sOUT_, sOUT_, sT1)
        A('s_and_b32', sT1, sW, 1)
        if kind == 'v':
            A('s_lshl_b32', sT1, sT1, 12); A('s_add_u32', sOUT_, sOUT_, sT1); A('s_add_u32', sOUT_, sOUT_, VT)
            A('s_mul_i32', 's74', sL, LAYER_KM); A('s_lshl_b32', sT1, sB, 13); A('s_add_u32', 's74', 's74', sT1)
            A('s_lshl_b32', sT1, sW, 11); A('s_add_u32', 's74', 's74', sT1); A('s_add_u32', 's74', 's74', KM)
            for i in range(4): A('v_mov_b32', v(36 + i), hex(SENT))
        else:
            A('s_lshl_b32', sT1, sT1, 11); A('s_add_u32', sOUT_, sOUT_, sT1)
            A('s_cmp_eq_u32', sC_, 0); A('s_cselect_b32', sT1, QF - KF, 0); A('s_add_u32', sOUT_, sOUT_, sT1); A('s_add_u32', sOUT_, sOUT_, KF)
        A('s_mul_i32', sIN, sL, LAYER_X); A('s_add_u32', sIN, sIN, XN)
        A('s_mul_i32', sFI, sL, FL_LAYER); A('s_add_u32', sFI, sFI, FL_XN)
        flag_out_addr(A, FL_QKV); nl = 16; ostep = 32 * 8192
        A('v_bfe_u32', v(TM), v(LN_), 4, 1); A('v_lshlrev_b32', v(TM), 10 if kind == 'v' else 12, v(TM))
        A('v_lshrrev_b32', v(TM + 1), 5, v(LN_)); A('v_lshl_add_u32', v(TM), v(TM + 1), 8, v(TM))
        A('v_and_b32', v(TM + 1), 15, v(LN_)); A('v_lshl_add_u32', v(SA), v(TM + 1), 4, v(TM))
    A('s_mul_i32', sT0, sW, 10240); A('s_add_u32', sIN, sIN, sT0); A('s_mov_b32', sLB, sT0)
    A('s_mov_b32', sD, 0)
    ready(A)
    A('s_barrier')
    def dma_in():
        for i in range(10):
            if i % 4 == 0:
                A('s_add_u32', 'm0', sLB, i * 1024); A('s_add_u32', sT0, sIN, i * 1024)
            A('buffer_load_dwordx4', v(L16), WS, sT0, mods=f'offen offset:{(i%4)*1024} sc1 lds'); A.vm.pop()
        A('s_add_u32', sIN, sIN, UX)
        A('s_add_u32', sT0, sLB, UX); A('s_sub_u32', sT1, sLB, UX); A('s_cmp_ge_u32', sLB, UX); A('s_cselect_b32', sLB, sT1, sT0)
    A.label(P + 'fetch')
    poll(A, P + 'p', sU, lanes=nl, floor=FLR)
    dma_in()
    A('s_waitcnt', 'vmcnt(0)')
    flag_load(A)
    A.label(P + 'top')
    A.reset_counts()
    NST = 4 if kind != 'v' else 6
    ph_dump(A); ph(A, 0)
    A('s_waitcnt', f'vmcnt({NST+1})')
    A('s_barrier')
    ph(A, 1)
    A('v_add_u32', v(AD), sD, v(L16))
    A('s_xor_b32', sD, sD, UX)
    D = 8
    def rd(k): A('ds_read_b128', v(RING + 4 * (k % D), 4), v(AD), mods=f'offset:{k*1024}', tag=('A', k))
    for k in range(D): rd(k)
    A('s_mov_b32', sNX, 0)
    for k in range(40):
        A.wait(lg=[('A', k)])
        x = v(RING + 4 * (k % D), 4)
        for T in range(2):
            wv = R(wreg(k, T), 4); acc = v(ACC + 16 * T, 16)
            a_, b_ = (x, wv) if kind == 'v' else (wv, x)
            A('v_mfma_f32_32x32x16_bf16', acc, a_, b_, '0' if k == 0 else acc)
        if k + D < 40: rd(k + D)
        if k in CHK1:
            sk = A.newlabel(P + 'chk')
            A('s_cmp_lg_u32', sNX, 0); A('s_cbranch_scc1', sk)
            A('s_waitcnt', 'vmcnt(0)')
            if k == CHK1[0]:
                s2 = A.newlabel(P + 'nop')
                A('s_cmp_eq_u32', sPEND, 0); A('s_cbranch_scc1', s2)
                publish(A, sU, loc=(kind == 'f1')); A('s_mov_b32', sPEND, 0)
                A.label(s2)
            flag_min(A, sPROG, lanes=nl, floor=FLR)
            s3 = A.newlabel(P + 'nopf')
            A('s_add_u32', sT2, sU, 1); A('s_min_u32', sPROG, sPROG, NU); A('s_cmp_gt_u32', sPROG, sT2); A('s_cbranch_scc0', s3)
            dma_in()
            A('s_mov_b32', sNX, 1)
            A('s_branch', sk)
            A.label(s3)
            if k != CHK1[-1]: flag_load(A); A.vm.pop()
            A.label(sk)
    ph(A, 4)
    flag_load(A)
    if kind == 'v':
        for i in range(2): A('buffer_store_dwordx4', v(36, 4), v(L16), WS, 's74', mods=f'offen offset:{1024*i} sc1')
        A('s_add_u32', 's74', 's74', 32 * 4096)
    for T in range(2):
        ac = ACC + 16 * T
        for i in range(2):
            st = STG + 8 * T + 4 * i
            if kind == 'qk':
                for c in range(4): A('v_cvt_pk_bf16_f32', v(st + c), v(ac + 4 * i + c), v(ac + 8 + 4 * i + c))
                off = T * 1024 + i * 512
            elif kind == 'v':
                for hh in range(2):
                    for c in range(2): A('v_cvt_pk_bf16_f32', v(st + 2 * hh + c), v(ac + 8 * hh + 4 * i + 2 * c), v(ac + 8 * hh + 4 * i + 2 * c + 1))
                off = T * 2048 + i * 512
            else:
                for c in range(4):
                    A('v_cvt_pk_bf16_f32', v(st + c), v(ac + 8 * i + 2 * c), v(ac + 8 * i + 2 * c + 1))
                    A('v_pk_max_i16', v(st + c), v(st + c), 0)
                off = T * 2048 + i * 1024
            if kind == 'f1': local(A, lambda md: A('buffer_store_dwordx4', v(st, 4), v(SA), WS, sOUT_, mods=f'offen offset:{off} {md}'))
            else: A('buffer_store_dwordx4', v(st, 4), v(SA), WS, sOUT_, mods=f'offen offset:{off} sc1')
    A('s_add_u32', sOUT_, sOUT_, ostep)
    A('s_add_u32', sU, sU, 1); A('s_mov_b32', sPEND, 1)
    A('s_cmp_lg_u32', sNX, 0); A('s_cbranch_scc1', P + 'top')
    A('s_waitcnt', 'vmcnt(0)')
    publish(A, sU, loc=(kind == 'f1')); flag_min(A, sPROG, lanes=nl, floor=FLR); A('s_mov_b32', sPEND, 0)
    A('s_cmp_lt_u32', sU, NU); A('s_cbranch_scc1', P + 'fetch')
    A('s_endpgm')

def emit_gemm2(A, kind, ready):
    P = f'G2{kind}_'
    A.label(P + 'entry'); A.reset_counts()
    nk = 32 if kind == 'op' else 27
    RING, ACC, RT = 64, 192, 224
    LW, LR, RES, SA = 32, 33, 36, 34
    wreg = lambda n, T: 256 + (2 * n + T) * 4
    if kind == 'op':
        common_setup(A, 1); nl = 1
        A('s_cmp_ge_u32', sI, 10); A('s_cselect_b32', sB, 1, 0)
        A('s_mul_i32', sT1, sB, 10); A('s_sub_u32', sC_, sI, sT1)
        A('s_lshl_b32', sT1, sB, 2); A('s_add_u32', sT1, sT1, sW)
        A('s_mul_i32', sA, sT1, 4 * 163840); A('s_lshl_b32', sT2, sC_, 7); A('s_add_u32', sA, sA, sT2)
        A('s_mul_i32', sIN, sL, LAYER_F); A('s_lshl_b32', sT2, sT1, 15); A('s_add_u32', sIN, sIN, sT2); A('s_add_u32', sIN, sIN, OF)
        A('s_mul_i32', sFI, sL, FL_LAYER); A('s_lshl_b32', sT2, sT1, 7); A('s_add_u32', sFI, sFI, sT2); A('s_add_u32', sFI, sFI, FL_ATT)
        soffs = [[(128 * (n >> 3) + 32 * ((n & 7) >> 1) + 8 * (n & 1) + 4 * b) * 1280 for b in range(2)] for n in range(32)]
        load_weights(A, SO, 1280, 16, sA, [tuple(x) for x in soffs], wreg, True)
        istep = 32 * 8192
        A('s_mul_i32', sOUT_, sL, LAYER_OP); A('s_mul_i32', sT2, sB, UP); A('s_add_u32', sOUT_, sOUT_, sT2)
        A('s_lshl_b32', sT2, sC_, 12); A('s_add_u32', sOUT_, sOUT_, sT2); A('s_lshl_b32', sT2, sW, 10); A('s_add_u32', sOUT_, sOUT_, sT2)
        A('s_add_u32', sOUT_, sOUT_, OPART)
        flag_out_addr(A, FL_OP); ostep = 2 * UP
    else:
        common_setup(A, 7); nl = 7
        A('s_mul_i32', sA, sW, 27 * 16 * 1280); A('s_lshl_b32', sT2, sI, 7); A('s_add_u32', sA, sA, sT2)
        A('s_mul_i32', sIN, sL, LAYER_H); A('s_mul_i32', sT2, sW, 27 * 1024); A('s_add_u32', sIN, sIN, sT2); A('s_add_u32', sIN, sIN, HF)
        A('s_mul_i32', sFI, sL, FL_LAYER); A('s_add_u32', sFI, sFI, FL_F1)
        load_weights(A, SW2, 1280, 8, sA, [((16 * n) * 1280, (16 * n + 4) * 1280) for n in range(27)], wreg, True)
        istep = UH
        A('s_lshl_b32', sT2, sI, 12); A('s_lshl_b32', sT3, sW, 10); A('s_add_u32', sT2, sT2, sT3)
        A('s_mul_i32', sB, sL, LAYER_X); A('s_add_u32', sB, sB, sT2); A('s_add_u32', sB, sB, XRES)
        A('s_mul_i32', 's74', sL, LAYER_OP); A('s_add_u32', 's74', 's74', sT2); A('s_add_u32', 's74', 's74', OPART)
        A('s_add_u32', sOUT_, sT2, XRES + LAYER_X)
        A('s_lshl_b32', sT2, sI, 7); A('s_lshl_b32', sT3, sW, 5); A('s_add_u32', sC_, sT2, sT3)
        A('v_and_b32', v(TM), 31, v(LN_)); A('v_mul_u32_u24', v(TM), 1280, v(TM)); A('v_lshrrev_b32', v(TM + 1), 5, v(LN_)); A('v_lshl_add_u32', v(SA), v(TM + 1), 4, v(TM))
        flag_out_addr(A, FL_F2); ostep = UX
    A('s_lshl_b32', sT2, sW, 11); A('v_add_u32', v(LW), sT2, v(L16))
    A('s_lshl_b32', sT2, sW, 13); A('v_add_u32', v(LR), sT2, v(L16))
    ready(A)
    A('s_barrier')
    def ld(k, base):
        if k % 4 == 0: A('s_add_u32', sT3, base, k * 1024)
        A('buffer_load_dwordx4', v(RING + 4 * k, 4), v(L16), WS, sT3, mods=f'offen offset:{(k%4)*1024} sc1'); A.vm.pop()
    A.label(P + 'fetch')
    poll(A, P + 'p', sU, lanes=nl)
    W = int(os.environ.get('G2W', 10))
    for k in range(W): ld(k, sIN)
    A.label(P + 'top')
    A.reset_counts()
    ph_dump(A); ph(A, 0)
    def mm(k, cnt):
        A('s_waitcnt', f'vmcnt({cnt})')
        x = v(RING + 4 * k, 4)
        for T in range(2):
            acc = v(ACC + 16 * T, 16)
            A('v_mfma_f32_32x32x16_bf16', acc, R(wreg(k, T), 4), x, '0' if k == 0 else acc)
    if W % 4: A('s_add_u32', sT3, sIN, (W // 4) * 4096)
    for k in range(nk - W):
        mm(k, W - 1)
        if k == W:
            sk = A.newlabel(P + 'nop')
            A('s_cmp_eq_u32', sPEND, 0); A('s_cbranch_scc1', sk)
            publish(A, sU, loc=(kind == 'op')); A('s_mov_b32', sPEND, 0)
            A.label(sk)
        if k == 0 and kind == 'f2':
            A('buffer_load_dwordx4', v(RES, 4), v(L16), WS, sB, mods='offen sc1'); A.vm.pop()
            A('s_add_u32', sB, sB, UX)
        if k in (1, 2) and kind == 'f2':
            A('buffer_load_dwordx4', v(RES + 4 * k, 4), v(L16), WS, 's74', mods='offen sc1'); A.vm.pop()
            A('s_add_u32', 's74', 's74', UP)
        if k == 14 and kind == 'f2':
            for i in range(4):
                A('v_lshlrev_b32', v(TM), 16, v(RES + i)); A('v_and_b32', v(TM + 1), '0xffff0000', v(RES + i))
                for pp in (1, 2):
                    A('v_lshlrev_b32', v(TM + 2), 16, v(RES + 4 * pp + i)); A('v_and_b32', v(TM + 3), '0xffff0000', v(RES + 4 * pp + i))
                    A('v_add_f32', v(TM), v(TM), v(TM + 2)); A('v_add_f32', v(TM + 1), v(TM + 1), v(TM + 3))
                A('v_cvt_pk_bf16_f32', v(RES + i), v(TM), v(TM + 1))
        if k == nk - 2 * W: flag_load(A); A.vm.pop()
        ld(k + W, sIN)
    assert nk - W > W
    ph(A, 1)
    mm(nk - W, W - 1)
    flag_min(A, sPROG, lanes=nl)
    A('s_add_u32', sIN, sIN, istep)
    A('s_add_u32', sT2, sU, 1); A('s_cmp_gt_u32', sPROG, sT2); A('s_cselect_b32', sNX, 1, 0)
    A('s_cbranch_scc1', P + 'pf')
    for k in range(nk - W + 1, nk): mm(k, nk - 1 - k)
    A('s_branch', P + 'red')
    A.label(P + 'pf')
    ld(0, sIN)
    for k in range(nk - W + 1, nk):
        mm(k, W - 1); ld(k - (nk - W), sIN)
    A.label(P + 'red')
    ph(A, 3)
    flag_load(A); A.vm.pop()
    for q in range(4):
        sk = A.newlabel(P + 'own')
        A('s_cmp_eq_u32', sW, q); A('s_cbranch_scc1', sk)
        A('ds_write_b128', v(LW), v(ACC + 8 * q, 4), mods=f'offset:{q*8192}'); A('ds_write_b128', v(LW), v(ACC + 8 * q + 4, 4), mods=f'offset:{q*8192+1024}')
        A('s_branch', sk + 'e')
        A.label(sk)
        for i in range(0, 8, 2): A('v_mov_b64', v(RT + 24 + i, 2), v(ACC + 8 * q + i, 2))
        A.label(sk + 'e')
    A('s_waitcnt', 'lgkmcnt(0)'); A('s_barrier')
    A('s_lshl_b32', sT2, sW, 11)
    for j in range(1, 4):
        A('s_xor_b32', sT3, sT2, j * 2048); A('v_add_u32', v(TM + j), sT3, v(LR))
        A('ds_read_b128', v(RT + 8 * (j - 1), 4), v(TM + j)); A('ds_read_b128', v(RT + 8 * (j - 1) + 4, 4), v(TM + j), mods='offset:1024')
    A('v_xor_b32', v(LW), 32768, v(LW)); A('v_xor_b32', v(LR), 32768, v(LR))
    A('s_waitcnt', 'lgkmcnt(0)')
    O = RT + 24
    for i in range(8):
        A('v_add_f32', v(RT + i), v(RT + i), v(RT + 8 + i)); A('v_add_f32', v(O + i), v(O + i), v(RT + 16 + i))
    for i in range(8): A('v_add_f32', v(O + i), v(O + i), v(RT + i))
    if kind == 'op':
        for i in range(4): A('v_cvt_pk_bf16_f32', v(RT + i), v(O + 2 * i), v(O + 2 * i + 1))
        A('buffer_store_dwordx4', v(RT, 4), v(L16), WS, sOUT_, mods='offen sc1')
    else:
        for i in range(4):
            A('v_cvt_pk_bf16_f32', v(RT + i), v(O + 2 * i), v(O + 2 * i + 1))
            A('v_lshlrev_b32', v(O + 2 * i), 16, v(RT + i)); A('v_and_b32', v(O + 2 * i + 1), '0xffff0000', v(RT + i))
            A('v_lshlrev_b32', v(RT + 8), 16, v(RES + i)); A('v_and_b32', v(RT + 9), '0xffff0000', v(RES + i))
            A('v_add_f32', v(O + 2 * i), v(O + 2 * i), v(RT + 8)); A('v_add_f32', v(O + 2 * i + 1), v(O + 2 * i + 1), v(RT + 9))
            A('v_cvt_pk_bf16_f32', v(RT + 4 + i), v(O + 2 * i), v(O + 2 * i + 1))
        l1 = A.newlabel(P + 'l1')
        A('s_cmp_lg_u32', sL, 0); A('s_cbranch_scc1', l1)
        local(A, lambda md: A('buffer_store_dwordx4', v(RT + 4, 4), v(L16), WS, sOUT_, mods=f'offen {md}'))
        A('s_branch', l1 + 'e')
        A.label(l1)
        A('buffer_store_dwordx4', v(RT + 4, 4), v(SA), SOUT, sC_, mods='offen ' + os.environ.get('OUTMOD', ''))
        A('s_add_u32', sC_, sC_, 32 * 1280)
        A.label(l1 + 'e')
    ph(A, 4)
    A('s_add_u32', sOUT_, sOUT_, ostep)
    A('s_add_u32', sU, sU, 1); A('s_mov_b32', sPEND, 1)
    A('s_cmp_lg_u32', sNX, 0); A('s_cbranch_scc1', P + 'top')
    A('s_waitcnt', 'vmcnt(0)')
    publish(A, sU, loc=(kind == 'op')); flag_min(A, sPROG, lanes=nl); A('s_mov_b32', sPEND, 0)
    A('s_cmp_lt_u32', sU, NU); A('s_cbranch_scc1', P + 'fetch')
    A('s_endpgm')

def xlane_sum(A, r, t, rors):
    for sh in rors: A('v_add_f32_dpp', v(r), v(r), v(r), mods=f'row_ror:{sh} row_mask:0xf bank_mask:0xf')
    A('v_mov_b32', v(t), v(r)); A('v_permlane16_swap_b32', v(t), v(r)); A('v_add_f32', v(r), v(r), v(t))
    A('v_mov_b32', v(t), v(r)); A('v_permlane32_swap_b32', v(t), v(r)); A('v_add_f32', v(r), v(r), v(t))

def emit_ln(A, mode, ready, after=None):
    P = mode.upper() + '_'
    A.label(P + 'entry'); A.reset_counts()
    X, P0, P1, X1R, F, O = 44, 64, 104, 144, 164, 204
    VF, VP, LW = 32, 33, 34
    nl = {'ln0': 1, 'ln1': 10, 'lna': 20}[mode]
    step = 8 if mode == 'ln0' else 1
    common_setup(A, nl)
    A('v_lshrrev_b32', v(TM), 4, v(LN_)); A('v_and_b32', v(TM + 1), 15, v(LN_))
    A('v_lshlrev_b32', v(TM + 2), 9, v(TM)); A('v_lshl_add_u32', v(VF), v(TM + 1), 4, v(TM + 2))
    A('s_lshl_b32', sT0, sW, 2); A('v_add_u32', v(LW), sT0, v(L16))
    A('s_and_b32', sT3, sI, 1); A('s_lshl_b32', sT3, sT3, 8)
    A('s_mul_i32', sT2, sW, 20 * 512); A('s_add_u32', sT2, sT2, sT3)
    if mode == 'ln0':
        A('v_mul_u32_u24', v(TM + 2), 1280, v(TM + 1)); A('v_lshl_add_u32', v(VP), v(TM), 4, v(TM + 2))
        A('s_lshr_b32', sU, sI, 1); A('s_mul_i32', sT1, sU, UX); A('s_add_u32', sT2, sT2, sT1)
        A('s_add_u32', sB, sT2, XRES); A('s_add_u32', sOUT_, sT2, XN)
        A('s_mul_i32', sA, sT3, 80); A('s_add_u32', sA, sA, sT1); A('s_mul_i32', sT1, sW, 320); A('s_add_u32', sA, sA, sT1)
        A('s_mov_b32', sPROG, NU); A('s_mov_b32', 's78', sL); A('s_mov_b32', sL, 0)
        flag_out_addr(A, FL_XN); A('s_mov_b32', sL, 's78')
    elif mode == 'ln1':
        A('s_add_u32', sIN, sT2, XRES + LAYER_X); A('s_add_u32', sOUT_, sT2, XN + LAYER_X)
        A('s_mov_b32', sFI, FL_F2); A('s_mov_b32', sL, 1)
        flag_out_addr(A, FL_XN)
    else:
        A('s_mul_i32', sA, sL, LAYER_OP); A('s_add_u32', sA, sA, sT2); A('s_add_u32', sA, sA, OPART)
        A('s_mul_i32', sT1, sL, LAYER_X); A('s_add_u32', sT2, sT2, sT1)
        A('s_add_u32', sIN, sT2, XRES); A('s_add_u32', sOUT_, sT2, XN1); A('s_add_u32', sB, sT2, X1)
        A('s_mul_i32', sFI, sL, FL_LAYER); A('s_add_u32', sFI, sFI, FL_OP)
        flag_out_addr(A, FL_LNA)
    def f5(op, reg, base):
        for i in range(5):
            if i % 2 == 0: A('s_add_u32', sT3, base, i * 2048)
            A(op, v(reg + 4 * i, 4), v(VF), WS, sT3, mods=f'offen offset:{(i%2)*2048} sc1')
    nld = {'ln0': 5, 'ln1': 6, 'lna': 16}[mode]
    def loads():
        if mode == 'ln0':
            for i in range(5): A('buffer_load_dwordx4', v(X + 4 * i, 4), v(VP), SX, sA, mods=f'offen offset:{64*i}')
            A('s_add_u32', sA, sA, 8 * UX)
            return
        f5('buffer_load_dwordx4', X, sIN)
        if mode == 'lna':
            f5('buffer_load_dwordx4', P0, sA); A('s_add_u32', sA, sA, UP)
            f5('buffer_load_dwordx4', P1, sA); A('s_add_u32', sA, sA, UP)
        flag_load(A)
        A('s_add_u32', sIN, sIN, UX)
    a0, a1, tt = TM, TM + 2, TM + 4
    def xsum(region, mid=None):
        xlane_sum(A, a0, tt, [])
        A('ds_write_b32', v(LW), v(a0), mods=f'offset:{region}')
        if mid: mid()
        A('s_waitcnt', 'lgkmcnt(0)'); A('s_barrier')
        A('ds_read_b128', v(a0, 4), v(L16), mods=f'offset:{region}')
        A('s_waitcnt', 'lgkmcnt(0)')
        A('v_pk_add_f32', v(a0, 2), v(a0, 2), v(a0 + 2, 2)); A('v_add_f32', v(a0), v(a0), v(a0 + 1))
    ready(A)
    A.label(P + 'fetch')
    if mode != 'ln0': poll(A, P + 'p', sU, lanes=nl)
    loads()
    A.label(P + 'top')
    ph_dump(A); ph(A, 0)
    n = 20
    def unp(d, x):
        A('v_lshlrev_b32', v(d), 16, v(x)); A('v_and_b32', v(d + 1), '0xffff0000', v(x))
    fl = 0 if mode == 'ln0' else 1
    if mode == 'lna':
        A('s_waitcnt', 'vmcnt(6)')
        for i in range(n):
            unp(F + 2 * i, X + i); unp(TM + 6, P0 + i)
            A('v_pk_add_f32', v(F + 2 * i, 2), v(F + 2 * i, 2), v(TM + 6, 2))
    for i in range(n):
        if i % 4 == 0: A('s_waitcnt', f'vmcnt({4 - i//4 + fl})')
        if mode == 'lna':
            unp(TM + 6, P1 + i)
            A('v_pk_add_f32', v(F + 2 * i, 2), v(F + 2 * i, 2), v(TM + 6, 2))
            A('v_cvt_pk_bf16_f32', v(X1R + i), v(F + 2 * i), v(F + 2 * i + 1))
            unp(F + 2 * i, X1R + i)
        else:
            unp(F + 2 * i, X + i)
            if mode == 'ln0': A('v_mov_b32', v(X1R + i), v(X + i))
        if i == 1: A('v_pk_add_f32', v(a0, 2), v(F, 2), v(F + 2, 2))
        elif i > 1: A('v_pk_add_f32', v(a0, 2), v(a0, 2), v(F + 2 * i, 2))
    ph(A, 1)
    A('v_add_f32', v(a0), v(a0), v(a0 + 1))
    def pf():
        A('s_add_u32', sU, sU, step)
        if mode != 'ln0':
            A('s_waitcnt', 'vmcnt(0)'); flag_min(A, sPROG, lanes=nl)
        A('s_cmp_gt_u32', sPROG, sU); A('s_cselect_b32', sNX, 1, 0)
        A('s_cselect_b32', 's74', sIN, '0x20000000'); A('s_cselect_b32', 's75', sA, '0x20000000')
        A('s_cselect_b32', sT2, UX, 0); A('s_add_u32', sIN, sIN, sT2)
        A('s_mul_i32', sT2, sT2, 8 if mode == 'ln0' else 2); A('s_add_u32', sA, sA, sT2)
    pl = []
    for i in range(5):
        if mode == 'ln0': pl.append(lambda i=i: A('buffer_load_dwordx4', v(X + 4 * i, 4), v(VP), SX, 's75', mods=f'offen offset:{64*i}'))
        else: pl.append(lambda i=i: (A('s_add_u32', 's76', 's74', (i // 2) * 4096), A('buffer_load_dwordx4', v(X + 4 * i, 4), v(VF), WS, 's76', mods=f'offen offset:{(i%2)*2048} sc1')))
    if mode == 'lna':
        for pp, reg in ((0, P0), (1, P1)):
            for i in range(5):
                pl.append(lambda i=i, pp=pp, reg=reg: (A('s_add_u32', 's76', 's75', pp * UP + (i // 2) * 4096), A('buffer_load_dwordx4', v(reg + 4 * i, 4), v(VF), WS, 's76', mods=f'offen offset:{(i%2)*2048} sc1')))
    xsum(0, pf)
    A('v_mul_f32', v(a0), hex(f32bits(-1.0 / 640)), v(a0)); A('v_mov_b32', v(a0 + 1), v(a0))
    def rnd(r):
        A('v_cvt_pk_bf16_f32', v(r), v(r), v(r)); A('v_lshlrev_b32', v(r), 16, v(r))
    dm = TM + 10
    A('v_mov_b32', v(dm), v(a0)); rnd(dm); A('v_sub_f32', v(dm), v(dm), v(a0))
    for i in range(n):
        A('v_pk_add_f32', v(F + 2 * i, 2), v(F + 2 * i, 2), v(a0, 2))
        if i == 0: A('v_pk_mul_f32', v(a1, 2), v(F, 2), v(F, 2))
        else: A('v_pk_fma_f32', v(a1, 2), v(F + 2 * i, 2), v(F + 2 * i, 2), v(a1, 2))
        if i % 4 == 3 and pl: pl.pop(0)()
    A('v_add_f32', v(a0), v(a1), v(a1 + 1))
    def st1():
        if mode == 'ln0':
            f5('buffer_store_dwordx4', X1R, sB); A('s_add_u32', sB, sB, step * UX)
    xsum(1024, st1)
    A('v_mul_f32', v(a1), hex(f32bits(1.0 / 640)), v(a0)); rnd(a1)
    A('v_add_f32', v(a1), hex(f32bits(1e-5)), v(a1)); rnd(a1)
    A('v_sqrt_f32', v(a1), v(a1)); rnd(a1)
    A('v_rcp_f32', v(a0), v(a1)); A('v_mov_b32', v(a0 + 1), v(a0))
    A('v_mul_f32', v(dm), v(dm), v(a0)); A('v_mov_b32', v(dm + 1), v(dm))
    for i in range(n):
        A('v_pk_fma_f32', v(F + 2 * i, 2), v(F + 2 * i, 2), v(a0, 2), v(dm, 2))
        A('v_cvt_pk_bf16_f32', v(O + i), v(F + 2 * i), v(F + 2 * i + 1))
        if i % 4 == 3:
            k = i // 4
            if k % 2 == 0: A('s_add_u32', sT3, sOUT_, k * 2048)
            A('buffer_store_dwordx4', v(O + 4 * k, 4), v(VF), WS, sT3, mods=f'offen offset:{(k%2)*2048} sc1')
    ph(A, 2)
    A('s_add_u32', sOUT_, sOUT_, step * UX)
    A('s_cmp_lg_u32', sNX, 0); A('s_cbranch_scc1', P + 'pub')
    if mode != 'ln0': flag_load(A)
    A('s_waitcnt', 'vmcnt(0)')
    publish(A, sU)
    if mode != 'ln0': flag_min(A, sPROG, lanes=nl)
    A('s_cmp_lt_u32', sU, NU); A('s_cbranch_scc1', P + 'fetch')
    A('s_branch', P + 'end')
    A.label(P + 'pub')
    nrest = len(pl)
    while pl: pl.pop(0)()
    if mode != 'ln0': flag_load(A); nrest += 1
    A('s_waitcnt', f'vmcnt({nrest})')
    ph(A, 3)
    publish(A, sU)
    A('s_branch', P + 'top')
    A.label(P + 'end')
    if after: after()
    else: A('s_endpgm')

def emit_att(A, ready):
    P = 'ATT_'
    A.label(P + 'entry'); A.reset_counts()
    Q, K, V, KMR, VMR, S, PB, O = 64, 96, 128, 160, 176, 184, 208, 224
    FRK, L8, SA, NEG, ZR = 32, 33, 34, 35, 36
    sCH, sFC, sKMo, sSC = 's74', 's75', 's76', 's77'
    msk = ['s[80:81]', 's[82:83]', 's[84:85]', 's[86:87]']
    common_setup(A, 3)
    g, n = TM, TM + 1
    A('v_lshrrev_b32', v(g), 4, v(LN_)); A('v_and_b32', v(n), 15, v(LN_))
    A('v_and_b32', v(TM + 2), 13, v(n)); A('v_and_b32', v(TM + 3), 1, v(g)); A('v_lshl_or_b32', v(TM + 2), v(TM + 3), 1, v(TM + 2))
    A('v_lshlrev_b32', v(TM + 2), 4, v(TM + 2)); A('v_lshrrev_b32', v(TM + 3), 1, v(g)); A('v_lshl_add_u32', v(FRK), v(TM + 3), 8, v(TM + 2))
    A('v_lshlrev_b32', v(L8), 3, v(LN_))
    A('v_lshlrev_b32', v(TM + 2), 9, v(g)); A('v_lshl_add_u32', v(SA), v(n), 4, v(TM + 2))
    for r in range(4):
        A('v_lshl_add_u32', v(TM + 2), v(g), 2, r); A('v_cmp_le_u32', msk[r], v(TM + 2), v(n))
    A('v_mov_b32', v(NEG), hex(f32bits(-1e9 * 128 ** 0.5))); A('v_mov_b32', v(ZR), 0)
    A('s_lshl_b32', sT2, sI, 2); A('s_add_u32', sT2, sT2, sW)
    A('s_mul_i32', sT3, sL, LAYER_F); A('s_lshl_b32', sT1, sT2, 13); A('s_add_u32', sT3, sT3, sT1)
    A('s_add_u32', sIN, sT3, KF); A('s_add_u32', sOUT_, sT3, OF)
    A('s_mul_i32', sKMo, sL, LAYER_KM); A('s_lshl_b32', sT1, sT2, 12); A('s_add_u32', sKMo, sKMo, sT1); A('s_add_u32', sKMo, sKMo, KM)
    A('s_mul_i32', sT3, sL, FL_LAYER)
    A('s_lshr_b32', sT1, sT2, 1); A('s_mul_i32', sT1, sT1, 384); A('s_add_u32', sFI, sT3, sT1); A('s_and_b32', sT1, sT2, 1); A('s_lshl_b32', sT1, sT1, 3)
    A('s_add_u32', sFI, sFI, sT1); A('s_add_u32', sFI, sFI, FL_QKV)
    A('s_lshl_b32', sT1, sT2, 7); A('s_add_u32', sFC, sT3, sT1); A('s_add_u32', sFC, sFC, FL_CH)
    A('s_mov_b32', sCH, 0); A('s_mov_b32', sSC, hex(f32bits(128 ** -0.5 * 1.4426950408889634)))
    flag_out_addr(A, FL_ATT)
    ready(A)
    def ld8(reg, base, delta):
        for i in range(8):
            if i % 4 == 0: A('s_add_u32', sT3, base, delta + i * 1024)
            A('buffer_load_dwordx4', v(reg + 4 * i, 4), v(L16), WS, sT3, mods=f'offen offset:{(i%4)*1024} sc1')
    A.label(P + 'fetch')
    poll(A, P + 'p', sU, n=2, lanes=3)
    ld8(Q, sIN, QF - KF); ld8(K, sIN, 0); ld8(V, sIN, VT - KF)
    A.label(P + 'top')
    A('s_waitcnt', 'vmcnt(8)')
    A.reset_counts()
    sreg = {(0, 'm'): S, (0, 0): S + 4, (1, 'm'): S + 8, (1, 0): S + 12, (1, 1): S + 16}
    for kp in range(4):
        for qt, kt in ((0, 0), (1, 0), (1, 1)):
            r = v(sreg[(qt, kt)], 4)
            A('v_mfma_f32_16x16x32_bf16', r, v(K + 16 * kt + 4 * kp, 4), v(Q + 16 * qt + 4 * kp, 4), '0' if kp == 0 else r)
    for base in (sreg[(0, 0)], sreg[(1, 1)]):
        for r in range(4): A('v_cndmask_b32', v(base + r), v(NEG), v(base + r), msk[r])
    A('s_mov_b32', sSPIN, 0)
    A.label(P + 'km')
    for kp in range(4): A('buffer_load_dwordx4', v(KMR + 4 * kp, 4), v(FRK), WS, sKMo, mods=f'offen offset:{1024*kp} sc1', tag=('km', kp))
    for w_ in range(4): A('buffer_load_dwordx2', v(VMR + 2 * w_, 2), v(L8), WS, sKMo, mods=f'offen offset:{1024*w_+512} sc1', tag='vm')
    flag_load(A, n=2)
    regs = [KMR + i for i in range(24)]
    for kp in range(4):
        A.wait(vm=[('km', kp)])
        for qt in range(2):
            r = v(sreg[(qt, 'm')], 4)
            A('v_mfma_f32_16x16x32_bf16', r, v(KMR + 4 * kp, 4), v(Q + 16 * qt + 4 * kp, 4), '0' if kp == 0 else r)
            for i in range(2):
                x = KMR + 4 * kp + 2 * qt + i
                A('v_pk_max_u16', v(TM + 8), v(x), v(x) if x == KMR else v(TM + 8))
    A.wait(vm=0)
    for i in range(8): A('v_pk_max_u16', v(TM + 8), v(VMR + i), v(TM + 8))
    A('v_pk_max_u16', v(TM + 8), v(TM + 8), v(TM + 8), mods='op_sel:[0,1] op_sel_hi:[1,0]')
    A('v_cmp_le_u32', 'vcc', '0xff810000', v(TM + 8))
    A('s_cbranch_vccz', P + 'kmok')
    A('s_cmp_lg_u32', sDEAD, 0); A('s_cbranch_scc1', P + 'kmok')
    A('v_mov_b32', v(TM + 8), -1)
    for r_ in regs:
        A('v_xor_b32', v(TM + 9), hex(SENT), v(r_)); A('v_pk_min_u16', v(TM + 8), v(TM + 8), v(TM + 9))
    A('v_pk_min_u16', v(TM + 8), v(TM + 8), v(TM + 8), mods='op_sel:[0,1] op_sel_hi:[1,0]')
    A('v_cmp_eq_u32', 'vcc', 0, v(TM + 8))
    A('s_cbranch_vccz', P + 'kmok')
    A('s_add_u32', sSPIN, sSPIN, 1); A('s_cmp_lt_u32', sSPIN, 4 * SPIN_MAX); A('s_cbranch_scc1', P + 'km')
    A('s_mov_b32', sDEAD, 1)
    A.label(P + 'kmok')
    A('s_add_u32', sKMo, sKMo, 32 * 4096)
    flag_min(A, sPROG, n=2, lanes=3)
    A('s_add_u32', sT2, sU, 1); A('s_cmp_gt_u32', sPROG, sT2); A('s_cselect_b32', sNX, 1, 0)
    A('s_add_u32', sIN, sIN, 32 * 8192); A('s_cmp_eq_u32', sNX, 0); A('s_cbranch_scc1', P + 'nq')
    ld8(Q, sIN, QF - KF); ld8(K, sIN, 0)
    A.label(P + 'nq')
    for qt in range(2):
        m_ = sreg[(qt, 'm')]
        vals = [m_, m_ + 1] + [sreg[(qt, 0)] + i for i in range(4 + 4 * qt)]
        mx, tm, sm = TM, TM + 1, TM + 2 + qt
        A('v_max3_f32', v(mx), v(vals[0]), v(vals[1]), v(vals[2])); A('v_max3_f32', v(tm), v(vals[3]), v(vals[4]), v(vals[5]))
        if qt:
            A('v_max3_f32', v(mx), v(mx), v(vals[6]), v(vals[7])); A('v_max3_f32', v(tm), v(tm), v(vals[8]), v(vals[9]))
        A('v_max_f32', v(mx), v(mx), v(tm)); A('v_mov_b32', v(tm), v(mx))
        A('v_permlane32_swap_b32', v(tm), v(mx)); A('v_max_f32', v(mx), v(mx), v(tm)); A('v_mov_b32', v(tm), v(mx))
        A('v_permlane16_swap_b32', v(tm), v(mx)); A('v_max_f32', v(mx), v(mx), v(tm))
        A('v_mul_f32', v(mx), sSC, v(mx))
        for r in vals: A('v_fma_f32', v(r), v(r), sSC, '-' + v(mx))
        for r in vals: A('v_exp_f32', v(r), v(r))
        pb = PB + 8 * qt
        for i in range(2 + 2 * qt): A('v_cvt_pk_bf16_f32', v(pb + i), v(vals[2 + 2 * i]), v(vals[3 + 2 * i]))
        if qt == 0: A('v_mov_b64', v(pb + 2, 2), 0)
        A('v_cvt_pk_bf16_f32', v(pb + 4), v(m_), v(m_ + 1)); A('v_mov_b32', v(pb + 5), 0); A('v_mov_b32', v(pb + 6), 0); A('v_mov_b32', v(pb + 7), v(pb + 4))
        A('v_add_f32', v(sm), v(vals[0]), v(vals[1]))
        for r in vals[2:]: A('v_add_f32', v(sm), v(sm), v(r))
        xlane_sum(A, sm, tm, [])
        A('v_rcp_f32', v(sm), v(sm))
    for qt in range(2):
        pb = PB + 8 * qt; sm = TM + 2 + qt
        for et in range(8):
            A('v_mfma_f32_16x16x32_bf16', v(O + 4 * et, 4), v(V + 4 * et, 4), v(pb, 4), '0')
        for et in range(8):
            A('v_mfma_f32_16x16x16_bf16', v(O + 4 * et, 4), v(VMR + 2 * (et >> 1), 2), v(pb + 4 + 2 * (et & 1), 2), v(O + 4 * et, 4))
        for p in range(4):
            st = S + 4 * (p & 1) + 8 * qt if False else KMR + 4 * p
            for i in range(8): A('v_mul_f32', v(O + 8 * p + i), v(O + 8 * p + i), v(sm))
            for i in range(4): A('v_cvt_pk_bf16_f32', v(st + i), v(O + 8 * p + 2 * i), v(O + 8 * p + 2 * i + 1))
            if p % 2 == 0: A('s_add_u32', sT3, sOUT_, p * 2048)
            local(A, lambda md: A('buffer_store_dwordx4', v(st, 4), v(SA), WS, sT3, mods=f'offen offset:{(p%2)*2048 + qt*256} {md}'))
    A('s_add_u32', sOUT_, sOUT_, 32 * 8192); A('s_add_u32', sU, sU, 1)
    A('s_cmp_eq_u32', sNX, 0); A('s_cbranch_scc1', P + 'nv')
    ld8(V, sIN, VT - KF)
    A('s_waitcnt', 'vmcnt(8)')
    publish(A, sU, loc=True)
    A('s_branch', P + 'top')
    A.label(P + 'nv')
    A('s_waitcnt', 'vmcnt(0)')
    publish(A, sU, loc=True)
    A('s_cmp_lt_u32', sU, NU); A('s_cbranch_scc1', P + 'fetch')
    A('s_endpgm')
```

```python
from asmgen import *
from layout import *
import os, struct
def env(n, d=0): return int(os.environ.get(n, d))
X_NOADV, X_NOFLAG, X_NOPUB, X_NOPF = env('X_NOADV'), env('X_NOFLAG'), env('X_NOPUB'), env('X_NOPF')
RDELAY, GDELAY = env('RDELAY', 9), env('GDELAY', 30)
PUBAT = env('PUBAT', 8)
RGAP = env('RGAP', 6)
KVMOD = os.environ.get('KVMOD', 'sc1')

WS = 's[8:11]'; SQ = 's[12:15]'; SK = 's[16:19]'; SV = 's[20:23]'; SO = 's[24:27]'; SX = 's[28:31]'; SM0 = 's[32:35]'
SW1 = 's[36:39]'; SW2 = 's[40:43]'; SOUT = 's[44:47]'; SDBG = 's[48:51]'
sW, sH, sC, sS = 's52', 's53', 's54', 's55'
sMEMc, sMEMo, sPST, sPLD, sPLD1, sSTR, sVT, sKF, sKM, sTAG, sFLO, sPROG, sSPIN, sDEAD = ['s%d' % i for i in range(56, 70)]
sT0, sT1, sT2, sT3 = 's70', 's71', 's72', 's73'
sDMEM, sPST1, sPST2, sXX, sFIN, sSCALE = 's74', 's75', 's76', 's77', 's78', 's79'

sPSTS = [sPST, sPST1, sPST2, sXX, 's4']
sSTRS = [sSTR, 's3', 's5', 's6', 's7']
sONES = 's[40:41]'
sPFK, sPFV, sFOV = 's36', 's37', 's38'
L_MEM = 0; L_QB = 10240; L_KB = 12288; L_VM = 14336; L_KX = 16384; L_O = L_KX; L_W = 24576
UNITS = [9, 8, 8, 9]
L_WBASE = [L_W + 4096 * sum(UNITS[:w]) for w in range(4)]
NSTR = [8, 10, 10, 9]
LANE16, IDX, RDEST, KW, PST2, QKW, FR, LDSW = range(8)
AQK = 8; AV = 24; AW = 32; SL = [40, 48, 56, 64, 72]; RES0 = 80
SPIN_MAX = 1 << 16
STAMPS = ['top', 'b1', 0, 'b2', 'sc', 2, 3, 4, 'r1', 5, 'start']
if env('ACKT'): STAMPS = ['top', 'b1', 0, 'b2', 'sc', 2, 3, 4, 'ack', 5, 'start']
if env('STAMPSET') == 1: STAMPS = ['top', 2, 'p1', 'p2', 'p3', 'p4', 3, 'o4', 'o10', 'o16', 'start']
if env('STAMPSET') == 2: STAMPS = ['top', 'q8', 'q16', 'q24', 'q32', 0, 'sc', 's1', 's2', 2, 'start']

def f32bits(x):
    return struct.unpack('<I', struct.pack('<f', x))[0]

def tstamp(A, sfo, val, tmp):
    A('s_memrealtime', 's[90:91]')
    if env('CLK'): A('s_memtime', 's[86:87]')
    A('s_lshr_b32', 's92', sfo, 7); A('s_lshl_b32', 's92', 's92', 2); A('s_bfe_u32', 's93', sfo, 0x20002); A('s_add_u32', 's92', 's92', 's93')
    A('s_lshl_b32', 's92', 's92', 9); A('s_lshl_b32', 's93', val, 2); A('s_add_u32', 's92', 's92', 's93'); A('s_add_u32', 's92', 's92', DBGT + (1 << 20))
    A('s_waitcnt', 'lgkmcnt(0)')
    A('v_mov_b32', v(tmp), 's90')
    if env('CLK'):
        A('s_bitcmp1_b32', val, 0); A('s_cselect_b32', 's90', 's86', 's90'); A('v_mov_b32', v(tmp), 's90')
    A('buffer_store_dword', v(tmp), 'off', WS, 's92'); A.vm.pop()

KOWN = [0, 3, 6, 8]; NOWN = [3, 3, 2, 2]
def korder(w):
    return [(KOWN[w] + j) % 10 for j in range(10)]

def frag_plan(w):
    qk = []
    for j in range(10):
        qk += [('q', j, 0), ('q', j, 1), ('k', j, 0), ('k', j, 1)]
    qk[34:38] = qk[36:38] + qk[34:36]
    qslot = {0: 0, 1: 1, 2: 2, 3: 3, 4: 4, 10: 2, 11: 3, 16: 4, 17: 2, 22: 3, 23: 4, 28: 2, 29: 3, 34: 4, 35: 2}
    qfill = [(2, 1, 2, 10), (4, 1, 3, 11), (6, 2, 4, 16), (10, 0, 2, 17), (12, 1, 3, 22), (16, 0, 4, 23), (18, 2, 2, 28), (22, 0, 3, 29), (24, 1, 4, 34), (28, 0, 2, 35)]
    oo = []
    for p in range(5):
        oo += [('o', 0, 2 * p), ('o', 0, 2 * p + 1), ('o', 1, 2 * p), ('o', 1, 2 * p + 1)]
    OV = env('OVAR', 3)
    ab, cd, e_ = [([0, 6, 12, 18], 2, 9), ([4, 10, 14, 18], 6, 9), ([6, 10, 14, 18], 8, 13), ([4, 10, 14, 18], 2, 9), ([2, 8, 14, 18], 4, 7)][OV]
    oslot = {cd: 4, cd + 1: 0, e_: 1}
    for x in ab: oslot[x] = 2; oslot[x + 1] = 3
    opre = sorted([ab[0], ab[0] + 1, cd, cd + 1])
    streams = [qk[0], qk[1], qk[4]] + [oo[i] for i in opre] + [oo[e_]]
    ldsf = [qk[i] for i in (10, 11, 16, 17, 22, 23, 28, 29, 34, 35)] + [oo[x + i] for x in ab[1:] for i in range(2)]
    if w in (1, 2): streams += [qk[2], qk[3]]
    else: ldsf += [qk[2], qk[3]]
    if w == 3:
        streams += [qk[25]]; qslot[25] = 0; qfill += [(0, 1, 0, 25)]
    assert len(streams) == NSTR[w] and len(ldsf) == 2 * UNITS[w]
    return qk, qslot, qfill, oo, oslot, ab, cd, e_, opre, streams, ldsf

sMODE = 's96'
def emit_chain_wave(A, w, ready, modes=('', 'sc1'), dbg=False, nsteps=64):
    L = lambda nm: f'CH{w}_{nm}'
    KO = korder(w)
    qk, qslot, qfill, oo, oslot, ab, cd, e_, opre, streams, ldsf = frag_plan(w)
    allf = qk + [('v', j, t) for j in range(10) for t in range(2)] + oo
    res = [f for f in allf if f not in streams and f not in ldsf]
    assert len(res) == (54 if w < 3 else 53), len(res)
    resreg = {f: (RES0 if w < 3 else RES0 + 8) + 8 * i for i, f in enumerate(res)}
    XR = RES0
    strm_idx = {f: i for i, f in enumerate(streams)}
    unit_of = lambda f: (f[0], f[1], f[2] >> 1)
    for i in range(0, len(ldsf), 2):
        assert unit_of(ldsf[i]) == unit_of(ldsf[i + 1]), (ldsf[i], ldsf[i + 1])
    lds_units = [unit_of(ldsf[i]) for i in range(0, len(ldsf), 2)]
    lds_off = {}
    for i, u in enumerate(lds_units):
        for t in range(2):
            lds_off[(u[0], u[1], 2 * u[2] + t)] = i * 4096 + t * 2048
    groups = [[0, 1], [2], [3], [4]][w]
    ng = len(groups)

    def half_fill(slot, f, hf):
        r = SL[slot] + 4 * hf
        tag = ('F', f)
        if f in lds_off:
            A('ds_read_b128', v(r, 4), v(LDSW), mods=f'offset:{lds_off[f] + 1024*hf}', tag=tag)
        else:
            i = strm_idx[f]
            so = sSTRS[i >> 1]
            A('buffer_load_dwordx4', v(r, 4), v(LANE16), WS, so, mods=f'offen offset:{(i&1)*2048 + 1024*hf}', tag=tag)
    def fill(slot, f):
        half_fill(slot, f, 0); half_fill(slot, f, 1)
    def smf(acc, areg, f, slot):
        if slot is None:
            b = R(resreg[f], 8)
        else:
            if f in lds_off: A.wait(lg=[('F', f)])
            else: A.wait(vm=[('F', f)])
            b = v(SL[slot], 8)
        A('v_smfmac_f32_16x16x64_bf16', v(acc, 4), v(areg, 4), b, v(IDX))
    def add2(d, a_, b_):
        A('v_add_f32', v(d), v(a_), v(b_)); A('v_add_f32', v(d + 1), v(a_ + 1), v(b_ + 1))

    A.label(L('entry'))
    A.reset_counts()
    T = [SL[0] + i for i in range(40)]
    ln = T[0]; g = T[1]; c = T[2]
    A('v_and_b32', v(ln), 63, 'v0')
    A('v_lshlrev_b32', v(LANE16), 4, v(ln))
    A('v_lshrrev_b32', v(g), 4, v(ln)); A('v_and_b32', v(c), 15, v(ln))
    A('v_and_b32', v(T[3]), 2, v(ln)); A('v_cmp_ne_u32', 'vcc', 0, v(T[3]))
    A('v_mov_b32', v(T[4]), '0x4444'); A('v_mov_b32', v(T[5]), '0xeeee'); A('v_cndmask_b32', v(IDX), v(T[4]), v(T[5]), 'vcc')
    A('v_and_b32', v(T[3]), 13, v(c)); A('v_and_b32', v(T[4]), 1, v(g)); A('v_lshl_or_b32', v(T[3]), v(T[4]), 1, v(T[3]))
    A('v_lshlrev_b32', v(T[3]), 4, v(T[3])); A('v_lshrrev_b32', v(T[4]), 1, v(g)); A('v_lshl_add_u32', v(FR), v(T[4]), 8, v(T[3]))
    A('v_lshrrev_b32', v(T[3]), 3, v(c)); A('v_lshlrev_b32', v(T[3]), 8, v(T[3]))
    A('v_lshl_add_u32', v(T[3]), v(g), 6, v(T[3]))
    A('v_bfe_u32', v(T[4]), v(c), 2, 1); A('v_lshl_add_u32', v(T[3]), v(T[4]), 5, v(T[3]))
    A('v_and_b32', v(T[4]), 3, v(c)); A('v_lshl_add_u32', v(T[3]), v(T[4]), 2, v(T[3]))
    A('v_add_u32', v(QKW), L_QB + w * 512, v(T[3]))
    A('v_add_u32', v(LDSW), L_WBASE[w], v(LANE16))
    A('v_add_u32', v(KW), L_KB - L_QB, v(QKW))
    A('s_mov_b32', sT0, PIECE)
    A('v_lshrrev_b32', v(T[3]), 3, v(c)); A('v_lshl_add_u32', v(T[3]), v(T[3]), 2, v(g)); A('v_mul_lo_u32', v(T[3]), v(T[3]), sT0)
    A('v_and_b32', v(T[4]), 7, v(c)); A('v_lshl_add_u32', v(PST2), v(T[4]), 3, v(T[3]))
    A('s_mul_i32', sT0, sH, 5); A('s_add_u32', sT0, sT0, groups[0])
    A('v_lshrrev_b32', v(T[3]), 3, v(c)); A('v_add_u32', v(T[3]), sT0, v(T[3]))
    A('v_and_b32', v(T[9]), 3, v(c)); A('v_lshlrev_b32', v(T[9]), 4, v(T[9]))
    A('v_lshl_add_u32', v(T[9]), v(g), 2, v(T[9]))
    A('v_bfe_u32', v(T[8]), v(c), 2, 1); A('v_lshl_add_u32', v(T[9]), v(T[8]), 1, v(T[9]))
    A('v_lshl_add_u32', v(RDEST), v(T[3]), 6, v(T[9]))
    if ng == 1:
        A('v_mov_b32', v(T[6]), '0x40000000'); A('v_cmp_lt_u32', 'vcc', 7, v(c)); A('v_cndmask_b32', v(RDEST), v(RDEST), v(T[6]), 'vcc')
    if w == 3:
        A('v_lshlrev_b32', v(XR + 3), 7, v(ln))
        A('v_mov_b64', v(XR + 6, 2), 0)
        A('v_mov_b32', v(T[6]), '0x40000000'); A('v_cmp_gt_u32', 'vcc', 2, v(ln)); A('v_cndmask_b32', v(XR + 5), v(T[6]), v(XR + 3), 'vcc')
        A('v_cmp_gt_u32', 'vcc', 1, v(ln)); A('v_cndmask_b32', v(XR + 2), v(T[6]), v(XR + 3), 'vcc')
    A('s_mul_i32', sT0, sC, 2 * MEMB_SZ); A('s_add_u32', sMEMc, sT0, MEMB); A('s_add_u32', sMEMo, sMEMc, MEMB_SZ)
    A('s_xor_b32', sDMEM, sMEMc, sMEMo)
    A('s_mul_i32', sT0, sC, PART_SZ); A('s_add_u32', sT0, sT0, PART)
    A('s_lshl_b32', sT1, sH, 6); A('s_add_u32', sPST, sT0, sT1); A('s_add_u32', sPST, sPST, 8 * w * PIECE)
    for p in range(1, 5): A('s_add_u32', sPSTS[p], sPST, 32 * p * PIECE)
    A('s_mul_i32', sT1, sH, 5 * PIECE); A('s_add_u32', sPLD, sT1, sT0); A('s_add_u32', sPLD, sPLD, groups[0] * PIECE)
    A('s_add_u32', sPLD1, sPLD, PIECE)
    A('s_mov_b32', sTAG, 0)
    A('s_lshl_b32', sT0, sC, 5); A('s_add_u32', sT0, sT0, sH)
    A('s_mul_i32', sSTR, sT0, STRM_H); A('s_add_u32', sSTR, sSTR, STRM + 2048 * sum(NSTR[:w]))
    for i in range(1, 5): A('s_add_u32', sSTRS[i], sSTR, 4096 * i)
    A('s_mul_i32', sT0, sC, LAYER_F); A('s_lshl_b32', sT1, sH, 13); A('s_add_u32', sT0, sT0, sT1)
    A('s_add_u32', sVT, sT0, VT + w * 2048); A('s_add_u32', sKF, sT0, KF + w * 2048)
    A('s_mul_i32', sT0, sC, LAYER_KM); A('s_lshl_b32', sT1, sH, 12); A('s_add_u32', sT0, sT0, sT1); A('s_add_u32', sKM, sT0, KM + 1024 * w - 32 * 4096)
    A('s_mul_i32', sT0, sC, FL_LAYER); A('s_lshr_b32', sT1, sH, 1); A('s_mul_i32', sT1, sT1, 3 * 128); A('s_add_u32', sFIN, sT0, sT1); A('s_add_u32', sFIN, sFIN, FL_QKV + 128)
    A('s_and_b32', sT1, sH, 1); A('s_lshl_b32', sT1, sT1, 3); A('s_add_u32', sFIN, sFIN, sT1)
    A('s_lshl_b32', sT1, sH, 7); A('s_add_u32', sFLO, sT0, sT1); A('s_add_u32', sFLO, sFLO, FL_CH)
    A('s_mov_b32', sS, 0); A('s_mov_b32', sPROG, 0); A('s_mov_b32', sDEAD, 0)
    A('s_mov_b32', sSCALE, hex(f32bits(128 ** -0.5 * 1.4426950408889634)))

    SRCQ, SRCO1, SRCO2, TRN, TRO1, TRO2 = AW, AW + 1, AW + 2, AW + 3, AW + 4, AW + 5
    r16 = T[3]; ch = T[4]
    A('v_lshrrev_b32', v(r16), 2, v(ln)); A('v_and_b32', v(ch), 3, v(ln))
    A('v_bfe_u32', v(T[5]), v(r16), 1, 1); A('v_lshlrev_b32', v(T[5]), 3, v(T[5]))
    A('v_bfe_u32', v(T[6]), v(r16), 2, 2); A('v_lshl_add_u32', v(T[5]), v(T[6]), 1, v(T[5]))
    A('v_and_b32', v(T[6]), 1, v(r16)); A('v_add_u32', v(T[5]), v(T[5]), v(T[6]))
    A('v_lshlrev_b32', v(T[5]), 13, v(T[5]))
    A('v_bfe_u32', v(T[6]), v(r16), 3, 1); A('v_lshlrev_b32', v(T[6]), 1, v(T[6])); A('v_xor_b32', v(T[6]), v(ch), v(T[6]))
    A('v_lshl_add_u32', v(T[5]), v(T[6]), 4, v(T[5]))
    A('s_lshl_b32', sT0, sH, 8); A('s_add_u32', sT0, sT0, w * 64); A('v_add_u32', v(SRCQ), sT0, v(T[5]))
    A('v_bfe_u32', v(T[5]), v(r16), 3, 1); A('v_lshlrev_b32', v(T[5]), 4, v(T[5]))
    A('v_bfe_u32', v(T[6]), v(r16), 1, 1); A('v_lshl_add_u32', v(T[5]), v(T[6]), 2, v(T[5]))
    A('v_bfe_u32', v(T[6]), v(r16), 2, 1); A('v_lshl_add_u32', v(T[5]), v(T[6]), 1, v(T[5]))
    A('v_and_b32', v(T[6]), 1, v(r16)); A('v_add_u32', v(T[5]), v(T[5]), v(T[6]))
    A('v_mul_u32_u24', v(T[5]), 1280, v(T[5]))
    A('s_mul_i32', sT0, sH, 163840); A('s_add_u32', sT0, sT0, w * 64); A('v_add_u32', v(T[5]), sT0, v(T[5]))
    A('v_lshl_add_u32', v(SRCO1), v(ch), 5, v(T[5]))
    A('v_lshl_add_u32', v(SRCO2), v(ch), 4, v(T[5]))
    A('v_bfe_u32', v(T[5]), v(ln), 2, 2); A('v_lshl_add_u32', v(T[5]), v(g), 3, v(T[5])); A('v_lshlrev_b32', v(T[5]), 6, v(T[5]))
    A('v_add_u32', v(T[5]), L_WBASE[w], v(T[5]))
    A('v_and_b32', v(T[6]), 1, v(g)); A('v_lshl_add_u32', v(T[6]), v(T[6]), 5, v(T[5])); A('v_lshl_add_u32', v(TRN), v(ch), 3, v(T[6]))
    A('v_xor_b32', v(TRN + 3), 32, v(TRN))
    A('v_lshl_add_u32', v(TRO1), v(ch), 4, v(T[5]))
    A('v_lshrrev_b32', v(T[6]), 1, v(ch)); A('v_lshl_add_u32', v(T[6]), v(T[6]), 5, v(T[5]))
    A('v_and_b32', v(T[7]), 1, v(ch)); A('v_lshl_add_u32', v(TRO2), v(T[7]), 3, v(T[6]))
    CS, CO, CT = AQK, AQK + 1, AQK + 2
    rr = T[5]; ck = T[6]
    A('v_lshlrev_b32', v(ck), 1, v(g)); A('v_xor_b32', v(ck), v(ck), v(c)); A('v_lshlrev_b32', v(ck), 4, v(ck))
    A('v_lshrrev_b32', v(rr), 1, v(g)); A('v_lshlrev_b32', v(rr), 3, v(rr)); A('v_and_b32', v(T[7]), 1, v(g)); A('v_add_u32', v(rr), v(rr), v(T[7]))
    A('v_lshlrev_b32', v(rr), 13, v(rr)); A('s_lshl_b32', sT0, sH, 8); A('v_add3_u32', v(CS), v(rr), v(ck), sT0); A('v_xor_b32', v(CS + 6), 128, v(CS))
    A('v_lshrrev_b32', v(rr), 1, v(g)); A('v_lshlrev_b32', v(rr), 2, v(rr)); A('v_add_u32', v(rr), v(rr), v(T[7]))
    A('v_mul_u32_u24', v(rr), 1280, v(rr)); A('s_mul_i32', sT0, sH, 163840); A('v_add3_u32', v(CO), v(rr), v(ck), sT0); A('v_xor_b32', v(CO + 6), 128, v(CO))
    A('v_bfe_u32', v(rr), v(ln), 2, 2); A('v_lshl_add_u32', v(T[8]), v(T[7]), 2, v(rr)); A('v_lshlrev_b32', v(T[8]), 5, v(T[8]))
    A('v_lshl_add_u32', v(rr), v(g), 3, v(rr)); A('v_lshlrev_b32', v(rr), 8, v(rr)); A('v_add_u32', v(rr), L_W, v(rr))
    for t in range(2):
        A('v_lshl_add_u32', v(T[9]), v(ch), 3, 64 * w + 32 * t) if 64 * w + 32 * t <= 64 else (A('v_lshlrev_b32', v(T[9]), 3, v(ch)), A('v_add_u32', v(T[9]), 64 * w + 32 * t, v(T[9])))
        A('v_xor_b32', v(T[9]), v(T[9]), v(T[8])); A('v_add_u32', v(CT + t), v(T[9]), v(rr))
        A('v_lshrrev_b32', v(T[9]), 1, v(ch)); A('v_lshlrev_b32', v(T[9]), 5, v(T[9])); A('v_and_b32', v(T[10]), 1, v(ch)); A('v_lshl_add_u32', v(T[9]), v(T[10]), 3, v(T[9]))
        A('v_add_u32', v(T[9]), 64 * w + 16 * t, v(T[9]))
        A('v_xor_b32', v(T[9]), v(T[9]), v(T[8])); A('v_add_u32', v(CT + 2 + t), v(T[9]), v(rr))
    for t in range(4): A('v_add_u32', v(CT + 6 + t), 65536, v(CT + t))
    stages = [(X, k, 0) for X in 'qkv' for k in range(10)] + [('o', kp, p) for kp in range(2) for p in range(5)]
    def mine(st, ww):
        X, k, p = st
        return (X, korder(ww).index(k), 0) if X != 'o' else st
    nl_ = {st: sum(1 for ww in range(4) if any(unit_of(f) == mine(st, ww) for f in frag_plan(ww)[10])) for st in stages}
    stages = sorted([st for st in stages if nl_[st] < 4], key=lambda st: nl_[st])
    def cdma(n):
        X, k, p = stages[n]
        for ii in range(4):
            A('s_mov_b32', 'm0', L_W + (n % 8) * 16384 + w * 4096 + ii * 1024)
            if X == 'o':
                A('s_mov_b32', sT0, (64 * k + 32 * (w >> 1) + 8 * (w & 1) + 16 * (ii >> 1) + 2 * (ii & 1)) * 1280 + 256 * p)
                A('buffer_load_dwordx4', v(CO + 6 * (ii >> 1)), SO, sT0, mods='offen lds', tag=('C', n))
            else:
                A('s_mov_b32', sT0, (64 * k + 16 * w + 2 * ii) * 8192)
                A('buffer_load_dwordx4', v(CS + 6 * (ii >> 1)), {'q': SQ, 'k': SK, 'v': SV}[X], sT0, mods='offen lds', tag=('C', n))
    order = list(lds_units)
    pos = {u: i for i, u in enumerate(lds_units)}
    def dma(u):
        X, j, p = u
        for i in range(4):
            A('s_mov_b32', 'm0', L_WBASE[w] + pos[u] * 4096 + i * 1024)
            if X == 'o':
                off = (64 * j + 32 * (i >> 1) + 8 * (i & 1)) * 1280 + 256 * p
                A('s_mov_b32', sT0, off)
                A('buffer_load_dwordx4', v(SRCO2), SO, sT0, mods='offen lds', tag=('U', u))
            else:
                A('s_mov_b32', sT0, (64 * KO[j] + 16 * i) * 8192)
                A('buffer_load_dwordx4', v(SRCQ), {'q': SQ, 'k': SK, 'v': SV}[X], sT0, mods='offen lds', tag=('U', u))
    slot_of = lambda u: (L_WBASE[w] + pos[u] * 4096 - L_W) // 16384
    order = []
    def retire(sl_):
        for u in lds_units:
            if slot_of(u) == sl_: dma(u); order.append(u)
    for n in range(8): cdma(n)
    pend = []
    def flush():
        for f, d in pend:
            i = strm_idx[f]
            A('buffer_store_dwordx4', v(d, 4), v(LANE16), WS, sSTRS[i >> 1], mods=f'offen offset:{(i&1)*2048} sc1', tag='ST')
            A('buffer_store_dwordx4', v(d + 4, 4), v(LANE16), WS, sSTRS[i >> 1], mods=f'offen offset:{(i&1)*2048+1024} sc1', tag='ST')
        pend.clear()
    for n, st in enumerate(stages):
        A.wait(vm=[('C', n)], lg=0)
        A('s_barrier')
        flush()
        if n >= 1 and n + 7 < len(stages): cdma(n + 7)
        if n >= 1 and n + 7 >= len(stages): retire((n - 1) % 8)
        if n + 8 == len(stages): retire(8)
        u = mine(st, w)
        if u in lds_units: continue
        for t in range(2):
            f = (u[0], u[1], 2 * u[2] + t)
            d = resreg[f] if f in resreg else SL[(n & 1) * 2 + t]
            if f in strm_idx: pend.append((f, d))
            ad = CT + t + (2 if u[0] == 'o' else 0) + (6 if (n % 8) >= 4 else 0)
            for q4, ro in enumerate((0, 1024, 8192, 9216)):
                A('ds_read_b64_tr_b16', R(d + 2 * q4, 2), v(ad), mods=f'offset:{(n % 4)*16384 + ro}')
    A.wait(lg=0); A('s_barrier'); flush(); retire((len(stages) - 1) % 8)
    assert len(order) == len(lds_units)
    def consume(u, n):
        X, j, p = u
        A.wait(vm=[('U', u)])
        dst = []
        for t in range(2):
            f = (X, j, 2 * p + t)
            d = resreg[f] if f in resreg else SL[(n & 1) * 2 + t]
            dst.append((f, d))
            if X != 'o': ad, o = (TRN if t == 0 else TRN + 3), 0
            else: ad, o = TRO2, 16 * t
            for q4, ro in enumerate((0, 256, 2048, 2304)):
                A('ds_read_b64_tr_b16', R(d + 2 * q4, 2), v(ad), mods=f'offset:{pos[u]*4096 + ro + o}', tag=('T', u))
        A.wait(lg=0)
        for f, d in dst:
            if f in lds_off:
                A('ds_write_b128', v(LDSW), v(d, 4), mods=f'offset:{lds_off[f]}')
                A('ds_write_b128', v(LDSW), v(d + 4, 4), mods=f'offset:{lds_off[f]+1024}')
            elif f in strm_idx:
                i = strm_idx[f]
                A('s_add_u32', sT1, sSTR, (i >> 1) * 4096)
                A('buffer_store_dwordx4', v(d, 4), v(LANE16), WS, sT1, mods=f'offen offset:{(i&1)*2048}', tag='ST')
                A('buffer_store_dwordx4', v(d + 4, 4), v(LANE16), WS, sT1, mods=f'offen offset:{(i&1)*2048+1024}', tag='ST')
    nd = NOWN[w]
    ownreg = [AW, AW + 4, AV + 4][:nd]
    t0_, t1_, t2_ = AV, AV + 1, AV + 2
    A('v_lshrrev_b32', v(t0_), 4, v(LANE16))
    A('v_bfe_u32', v(t1_), v(t0_), 2, 2); A('v_lshlrev_b32', v(t1_), 1, v(t1_))
    A('v_and_b32', v(t2_), 1, v(t0_)); A('v_add_u32', v(t1_), v(t1_), v(t2_)); A('v_mul_u32_u24', v(t1_), 1280, v(t1_))
    A('v_lshrrev_b32', v(t2_), 4, v(t0_)); A('v_lshl_add_u32', v(t1_), v(t2_), 5, v(t1_))
    A('v_bfe_u32', v(t2_), v(t0_), 1, 1); A('v_lshl_add_u32', v(t1_), v(t2_), 4, v(t1_))
    for j in range(nd): A('buffer_load_dwordx4', v(AQK + 4 + 4 * j, 4), v(t1_), SM0, 0, mods=f'offen offset:{128*KO[j]}')
    A('v_and_b32', v(t2_), 7, v(t0_)); A('v_min_u32', v(AV + 3), 1, v(t2_)); A('v_lshlrev_b32', v(t2_), 2, v(t2_)); A('v_lshl_add_u32', v(t2_), v(AV + 3), 7, v(t2_))
    A('buffer_load_dword', v(AQK), 'off', SDBG, 0, mods='offset:32 sc1')
    A('buffer_load_dword', v(AQK + 1), v(t2_), SDBG, 0, mods='offen sc1')
    A('v_lshlrev_b32', v(t0_), 3, v(LANE16))
    for n, u in enumerate(order):
        consume(u, n)
        if n == len(order) - 2:
            A.wait(vm=['ST'])
            for i in range(3): A('buffer_load_dword', v(AQK + 2), v(t0_), WS, sSTRS[2 * i], mods='offen sc1')
        if n == 0:
            for i in range(2 * ng): A('buffer_load_dwordx4', v(AV + 4, 4), v(LANE16), WS, sPLD if i < 2 else sPLD1, mods=f'offen offset:{(i&1)*1024} sc1')
            A('s_add_u32', sT0, sMEMc, 5120 * w)
            A('buffer_load_dword', v(AQK + 2), v(t0_), WS, sT0, mods='offen sc1')
            if w == 3:
                A('s_sub_u32', sT0, sKF, 3 * 2048); A('buffer_load_dword', v(XR), v(t0_), WS, sT0, mods='offen sc1')
                A('s_add_u32', sT0, sT0, VT - KF); A('buffer_load_dword', v(XR + 1), v(t0_), WS, sT0, mods='offen sc1')
    A.wait(vm=0, lg=0)
    A('v_readfirstlane_b32', sT0, v(AQK)); A('v_cmp_ne_u32', 'vcc', 32 if not env('FORCE_SLOW') else 33, v(AQK + 1))
    A('s_cmp_ge_u32', sT0, 256); A('s_cselect_b32', sT0, 'vcc_lo', 1); A('s_cmp_eq_u32', sT0, 0)
    if not env('DBG'): A('s_cbranch_scc1', L('rdy'))
    ready(A)
    A.label(L('rdy'))
    A('s_mov_b32', 's40', '0x3f803f80'); A('s_mov_b32', 's41', '0x3f803f80')
    for j in range(nd):
        A('ds_write_b128', v(LANE16), v(AQK + 4 + 4 * j, 4), mods=f'offset:{L_MEM + 1024*KO[j]}')
        A('v_mov_b64', v(ownreg[j], 2), v(AQK + 4 + 4 * j, 2)); A('v_mov_b64', v(ownreg[j] + 2, 2), v(AQK + 6 + 4 * j, 2))
    for n in range(5): fill(qslot[n], qk[n])
    A('s_waitcnt', 'lgkmcnt(0)')
    for i in range(0, 16, 2): A('v_mov_b64', v(AQK + i, 2), 0)
    if len(modes) > 1:
        A('s_cmp_lg_u32', sMODE, 0); A('s_cbranch_scc1', f'CHS{w}_start')
    for sc in modes:
        L = lambda nm: f'CH{"S" if sc else "F"}{w}_{nm}'
        A.label(L('start')); A.reset_counts()
        def stamp(i):
            if not dbg or i not in STAMPS: return
            A('s_memtime', s(80 + 2 * STAMPS.index(i), 2))
        def dump():
            A('s_lshl_b32', sT0, sC, 5); A('s_add_u32', sT0, sT0, sH); A('s_lshl_b32', sT0, sT0, 2); A('s_add_u32', sT0, sT0, w)
            A('s_lshl_b32', sT0, sT0, 6); A('s_add_u32', sT0, sT0, DBGT)
            A('s_waitcnt', 'lgkmcnt(0)')
            for i, r_ in enumerate([s(80 + 2 * k) for k in range(11)] + [sDEAD]):
                A('v_mov_b32', v(AV), r_)
                A('buffer_store_dword', v(AV), 'off', WS, sT0, mods=f'offset:{4*i}'); A.vm.pop()
            A('s_waitcnt', 'vmcnt(0)')
        def pub_read(reg, tmp):
            A('v_and_b32', v(tmp), 512, v(LANE16)); A('v_mul_u32_u24', v(tmp), (L_VM - L_KB - 512) // 512, v(tmp)); A('v_add_u32', v(tmp), v(tmp), v(LANE16))
            A('ds_read_b128', v(reg, 4), v(tmp), mods=f'offset:{L_KB + 512*w}', tag='pk')
        def w3upd():
            A('v_min_u32', v(XR), v(XR + 6), v(XR + 7)); A('v_readlane_b32', sT0, v(XR), 0); A('v_readlane_b32', sT3, v(XR), 1)
            A('s_min_u32', sT0, sT0, sT3); A('s_max_u32', sPROG, sPROG, sT0)
        def w3in(need):
            ok = A.newlabel(L('inok')); lp = A.newlabel(L('inlp'))
            A('s_cmp_gt_u32', sPROG, need); A('s_cbranch_scc1', ok)
            A('s_mov_b32', sSPIN, 0)
            A.label(lp)
            A('buffer_load_dwordx2', v(XR + 6, 2), v(XR + 5), WS, sFIN, mods='offen sc1'); A.vm.pop()
            A('s_waitcnt', 'vmcnt(0)')
            w3upd()
            A('s_cmp_gt_u32', sPROG, need); A('s_cbranch_scc1', ok)
            A('s_cmp_lg_u32', sDEAD, 0); A('s_cbranch_scc1', ok)
            A('s_sleep', 2)
            A('s_add_u32', sSPIN, sSPIN, 1); A('s_cmp_lt_u32', sSPIN, SPIN_MAX); A('s_cbranch_scc1', lp)
            A('s_mov_b32', sDEAD, 1)
            A.label(ok)
        def w3prep():
            A('s_add_u32', sFOV, sS, 1)
            if env('SPECPF', 1): A('s_cmp_lt_u32', sFOV, nsteps)
            else: A('s_cmp_gt_u32', sPROG, sFOV)
            A('s_cselect_b32', sT0, 0, (0 if X_NOADV else 32 * 8192)); A('s_sub_u32', sPFK, sKF, sT0); A('s_sub_u32', sPFK, sPFK, 3 * 2048)
            A('s_add_u32', sPFV, sPFK, VT - KF)
            A('s_max_u32', sT0, sS, 1); A('s_sub_u32', sT0, sT0, 1); A('v_mov_b32', v(XR + 4), sT0)
        def kdma():
            A('s_mov_b32', 'm0', L_KX + w * 2048)
            for i in range(2): A('buffer_load_dwordx4', v(LANE16), WS, sKF, mods=f'offen offset:{i*1024} {KVMOD} lds')
            if not X_NOADV: A('s_add_u32', sKF, sKF, 32 * 8192)
        if w == 3: w3in(sS)
        A('s_barrier')
        kdma()
        if w == 3: w3prep()
        A('s_waitcnt', 'vmcnt(0) lgkmcnt(0)')
        A.label(L('loop'))
        A.reset_counts()
        stamp('top')
        accq = {('q', 0): AQK, ('q', 1): AQK + 4, ('k', 0): AQK + 8, ('k', 1): AQK + 12}
        awin = [AW, AW + 4, AV + 4, AW, AW + 4, AV, AV + 4, AV, AW, AW + 4]
        aat = {3: 3, 4: 7, 5: PUBAT + 1, 6: 11, 7: 23, 8: 15, 9: 19}
        def aread(j, reg, tag):
            A('ds_read_b128', v(reg, 4), v(LANE16), mods=f'offset:{L_MEM + 1024*KO[j]}', tag=tag)
        kfr = {}
        def kread(tk, reg):
            t, kp = tk
            kfr[tk] = reg
            if t == 0: A('ds_read_b128', v(reg, 4), v(FR), mods=f'offset:{L_KB + 512*kp}', tag=('K', tk))
            else: A('ds_read_b128', v(reg, 4), v(LANE16), mods=f'offset:{L_KX + ((t-1)*4+kp)*1024}', tag=('K', tk))
        NPRE = 0
        side = {}
        def at(n, fn): side.setdefault(n, []).append(fn)
        for n0, st, s2, fi in qfill:
            at(n0, lambda s2=s2, fi=fi: half_fill(s2, qk[fi], 0)); at(n0 + st, lambda s2=s2, fi=fi: half_fill(s2, qk[fi], 1))
        if dbg:
            def st8():
                sk = A.newlabel(L('st8'))
                A('s_cmp_lg_u32', sS, 8); A('s_cbranch_scc1', sk); A('s_mov_b32', 's100', 's80'); A.label(sk)
            at(20, st8)
        for n0, tk, reg in [(26, (1, 0), SL[0]), (27, (2, 0), SL[0] + 4), (30, (1, 1), SL[3]), (31, (2, 1), SL[3] + 4)]:
            at(n0, lambda tk=tk, reg=reg: kread(tk, reg))
        def vxload(hf):
            A('buffer_load_dwordx4', v(SL[1] + 4 * hf, 4), v(LANE16), WS, sVT, mods=f'offen offset:{1024*hf} {KVMOD}', tag='vx')
        at(1, lambda: vxload(0)); at(3, lambda: vxload(1))
        if w == 3:
            if not X_NOPF:
                at(PUBAT + 1, lambda: A('buffer_load_dword', v(XR), v(XR + 3), WS, sPFK, mods='offen sc1'))
                at(PUBAT + 3, lambda: A('buffer_load_dword', v(XR + 1), v(XR + 3), WS, sPFV, mods='offen sc1'))
            if not X_NOFLAG: at(PUBAT + 5, lambda: A('buffer_load_dwordx2', v(XR + 6, 2), v(XR + 5), WS, sFIN, mods='offen sc1'))
            if not X_NOPUB:
                if env('CHFLAG'): at(PUBAT + 6, lambda: A('buffer_store_dword', v(XR + 4), v(XR + 2), WS, sFLO, mods='offen sc1'))
                if env('DBG') == 2: at(PUBAT + 7, lambda: (tstamp(A, sFLO, sS, XR + 4), A.vm.append(None)))
        def pub2():
            if not X_NOPUB and not env('X_NOKM'): A('buffer_store_dwordx4', v(AV, 4), v(LANE16), WS, sKM, mods='offen ' + os.environ.get('PUBMOD', 'sc1'))
        at(PUBAT, pub2)
        at(28, lambda: A('v_mov_b64', v(AV + 4, 2), 0)); at(29, lambda: A('v_mov_b64', v(AV + 6, 2), 0))
        at(32, lambda: A('v_mov_b64', v(AV, 2), 0)); at(33, lambda: A('v_mov_b64', v(AV + 2, 2), 0))
        A('s_barrier'); stamp('b1')
        if nd == 2: aread(2, awin[2], ('A', 2))
        A('v_mov_b32', v(AQK + 15), 0)
        for n in range(NPRE, 40):
            f = qk[n]; j = f[1]
            if (n & 1) == 0: A.wait(lg=[('A', j)] + [('F', qk[m]) for m in (n, n + 1) if qk[m] in lds_off])
            stamp(f'q{n}')
            smf(accq[(f[0], f[2])], awin[j], f, qslot.get(n))
            for j2, n2 in aat.items():
                if n2 == n: aread(j2, awin[j2], ('A', j2))
            for fn in side.get(n, []): fn()
        vj = [9, 8, 0, 1, 2, 3, 4, 5, 6, 7]
        vq = []
        for idx, j in enumerate(vj):
            reg = AW + 4 if idx % 2 == 0 else AW
            vq.append((j, 0, reg, idx)); vq.append((j, 1, reg, idx))
        vstate = {'i': 0, 'p': 0}
        def vpass(cnt):
            for _ in range(cnt):
                if vstate['i'] >= 20: return
                j, t, reg, idx = vq[vstate['i']]; vstate['i'] += 1
                if t == 0 and idx >= 2: A.wait(lg=[('B', idx)])
                smf(AV + 4 * t, reg, ('v', j, t), None)
                if t == 1 and idx + 2 < 10: aread(vj[idx + 2], reg, ('B', idx + 2))
        stamp(0)
        add2(AQK, AQK, AQK + 2); add2(AQK + 4, AQK + 4, AQK + 6)
        A('v_cvt_pk_bf16_f32', v(AQK + 2), v(AQK), v(AQK + 4)); A('v_cvt_pk_bf16_f32', v(AQK + 3), v(AQK + 1), v(AQK + 5))
        A('ds_write2_b32', v(QKW), v(AQK + 2), v(AQK + 3), mods='offset0:0 offset1:4', tag='qw')
        add2(AQK + 8, AQK + 8, AQK + 10); add2(AQK + 12, AQK + 12, AQK + 14)
        A('v_cvt_pk_bf16_f32', v(AQK + 10), v(AQK + 8), v(AQK + 12)); A('v_cvt_pk_bf16_f32', v(AQK + 11), v(AQK + 9), v(AQK + 13))
        A('ds_write2_b32', v(KW), v(AQK + 10), v(AQK + 11), mods='offset0:0 offset1:4', tag='qw')
        vpass(env('VP1', 4))
        A.wait(lg=['qw']); A('s_barrier'); stamp('b2')
        qreg = [SL[2], SL[2] + 4, SL[4], SL[4] + 4]
        A('ds_read_b128', v(qreg[0], 4), v(FR), mods=f'offset:{L_QB}', tag=('Q', 0))
        A('ds_read_b128', v(qreg[1], 4), v(FR), mods=f'offset:{L_QB + 512}', tag=('Q', 1))
        kread((0, 0), AQK + 12)
        for kp in range(2, 4): A('ds_read_b128', v(qreg[kp], 4), v(FR), mods=f'offset:{L_QB + 512*kp}', tag=('Q', kp))
        vpass(env('VP2', 4))
        sacc = {0: AQK, 1: AQK + 4, 2: AQK + 8}
        sc_order = [(1, 0), (2, 0), (1, 1), (2, 1), (0, 0), (0, 1), (1, 2), (2, 2), (0, 2), (0, 3), (1, 3), (2, 3)]
        pending = sc_order[5:]
        pf = []
        for n in opre:
            pf.append((oslot[n], oo[n], 0)); pf.append((oslot[n], oo[n], 1))
        def pfill(cnt=1):
            for _ in range(cnt):
                if pf: half_fill(*pf.pop(0))
        for tk in sc_order:
            t, kp = tk
            A.wait(lg=[('K', tk), ('Q', kp)])
            A('v_mfma_f32_16x16x32_bf16', v(sacc[t], 4), v(kfr[tk], 4), v(qreg[kp], 4), '0' if kp == 0 else v(sacc[t], 4))
            if pending: kread(pending.pop(0), kfr[tk])
        stamp('sc')
        vpass(1); pfill(); vpass(1); pfill()
        vals = [AQK, AQK + 1] + [AQK + 4 + i for i in range(8)]
        mx = AQK + 2; tm = AQK + 3
        A('v_max3_f32', v(mx), v(vals[0]), v(vals[1]), v(vals[2])); A('v_max3_f32', v(tm), v(vals[3]), v(vals[4]), v(vals[5]))
        A('v_max3_f32', v(mx), v(mx), v(vals[6]), v(vals[7])); A('v_max3_f32', v(tm), v(tm), v(vals[8]), v(vals[9]))
        A('v_max_f32', v(mx), v(mx), v(tm)); A('v_max_f32', v(tm), v(mx), v(tm))
        vpass(1); pfill()
        A('v_permlane32_swap_b32', v(tm), v(mx)); A('v_max_f32', v(mx), v(mx), v(tm)); A('v_max_f32', v(tm), v(mx), v(tm))
        vpass(1)
        A('v_permlane16_swap_b32', v(tm), v(mx)); A('v_max_f32', v(mx), v(mx), v(tm))
        A('v_mul_f32', v(mx), sSCALE, v(mx))
        stamp('s1')
        order = vals[2:] + vals[:2]
        for i, r_ in enumerate(order):
            A('v_fma_f32', v(r_), v(r_), sSCALE, '-' + v(mx))
            if i >= 1: A('v_exp_f32', v(order[i - 1]), v(order[i - 1]))
            if i < 8: vpass(1)
            if i % 3 == 1: pfill()
            if i in (3, 5, 7, 9): A('v_cvt_pk_bf16_f32', v(AQK + 12 + (i - 3) // 2), v(order[i - 3]), v(order[i - 2]))
            if i == 6: A('v_mov_b64', v(AQK + 4, 2), sONES); A('v_mov_b64', v(AQK + 6, 2), sONES)
        A('v_exp_f32', v(order[9]), v(order[9]))
        stamp('s2')
        vpass(20)
        A('v_mov_b32', v(AQK + 3), 0)
        stamp(2)
        A('v_cvt_pk_bf16_f32', v(AQK + 2), v(AQK), v(AQK + 1))
        A.wait(vm=['vx'])
        A('v_mfma_f32_16x16x32_bf16', v(AQK + 8, 4), v(AQK + 4, 4), v(AQK + 12, 4), '0')
        add2(AV, AV, AV + 2)
        A('v_mfma_f32_16x16x32_bf16', v(AW, 4), v(SL[1], 4), v(AQK + 12, 4), '0')
        add2(AV + 4, AV + 4, AV + 6)
        A('v_mfma_f32_16x16x32_bf16', v(AW + 4, 4), v(SL[1] + 4, 4), v(AQK + 12, 4), '0')
        A('v_cvt_pk_bf16_f32', v(AV + 2), v(AV), v(AV + 1)); A('v_cvt_pk_bf16_f32', v(AV + 3), v(AV + 4), v(AV + 5))
        A('v_mfma_f32_16x16x16_bf16', v(AQK + 8, 4), v(AQK + 4, 2), v(AQK + 2, 2), v(AQK + 8, 4))
        A('v_cvt_pk_bf16_f32', v(AV + 4), v(AV + 4), v(AV + 5)); A('v_mov_b32', v(AV + 5), 0)
        stamp('p1')
        A('v_mfma_f32_16x16x16_bf16', v(AW, 4), v(AV + 2, 2), v(AQK + 2, 2), v(AW, 4))
        pfill(2)
        A('v_mfma_f32_16x16x16_bf16', v(AW + 4, 4), v(AV + 4, 2), v(AQK + 2, 2), v(AW + 4, 4))
        stamp('p2')
        pf.append((oslot[e_], oo[e_], 0)); pf.append((oslot[e_], oo[e_], 1))
        pfill(1)
        sm = AQK
        A('v_lshrrev_b32', v(AV + 6), 1, v(LANE16))
        A('ds_write_b64', v(AV + 6), v(AV + 2, 2), mods=f'offset:{L_VM + 512*w}', tag='ow')
        A('v_rcp_f32', v(sm), v(AQK + 8))
        for i in (4, 6): A('v_mov_b64', v(AQK + i, 2), 0)
        for i in range(4):
            A('v_mul_f32', v(AW + 2 * i), v(AW + 2 * i), v(sm)); A('v_mul_f32', v(AW + 2 * i + 1), v(AW + 2 * i + 1), v(sm))
            A('v_cvt_pk_bf16_f32', v(AQK + 8 + i), v(AW + 2 * i), v(AW + 2 * i + 1))
        A('ds_write_b128', v(FR), v(AQK + 8, 4), mods=f'offset:{L_O + 512*w}', tag='ow')
        stamp('p3')
        pfill(3)
        for i in (0, 2, 12, 14): A('v_mov_b64', v(AQK + i, 2), 0)
        for i in (0, 4): A('v_mov_b64', v(AV + i, 2), 0)
        stamp('p4')
        A.wait(lg=['ow']); A('s_barrier')
        A('ds_read_b128', v(AW, 4), v(LANE16), mods=f'offset:{L_O}', tag='oa0')
        A('ds_read_b128', v(AW + 4, 4), v(LANE16), mods=f'offset:{L_O+1024}', tag='oa1')
        pfill()
        A('s_cmp_eq_u32', sS, nsteps - 1)
        A('s_cbranch_scc1', L('last'))
        if dbg and env('FRZ'):
            A('s_cmp_lg_u32', sS, env('FRZ')); A('s_cbranch_scc1', L('nofrz'))
            A('s_memtime', 's[100:101]'); dump(); A('v_mov_b32', v(AV), 0)
            A.label(L('nofrz'))
        for i in (8, 10): A('v_mov_b64', v(AQK + i, 2), 0)
        for i in (2, 6): A('v_mov_b64', v(AV + i, 2), 0)
        assert not pf
        stamp(3)
        accs = [AQK, AQK + 4, AQK + 8, AQK + 12, AV, AV + 4]
        tacc = {t: t % 6 for t in range(10)}
        def post_ops(t):
            r_ = accs[tacc[t]]; st = accs[tacc[t & ~1]] + (t & 1)
            ops = [lambda: A('v_add_f32', v(r_), v(r_), v(r_ + 2)), lambda: A('v_add_f32', v(r_ + 1), v(r_ + 1), v(r_ + 3)),
                   lambda: A('v_cvt_pk_bf16_f32', v(st), v(r_), v(r_ + 1))]
            if t % 2 == 0: ops.append(lambda: A('v_and_or_b32', v(st), v(st), -2, sTAG))
            else:
                ops.append(lambda: A('buffer_store_dwordx2', v(st - 1, 2), v(PST2), WS, sPSTS[t >> 1], mods=f'offen {sc}'.strip(), tag='ps'))
                if t < 4:
                    for rr in (r_, r_ + 2, st + 1, st - 1): ops.append(lambda rr=rr: A('v_mov_b64', v(rr, 2), 0))
            return ops
        oside = {}
        def oat(n, fn): oside.setdefault(n, []).append(fn)
        for a_, b_ in [(ab[i] + k, ab[i + 1] + k) for i in range(3) for k in range(2)]:
            oat(a_, lambda b_=b_: fill(oslot[b_], oo[b_]))
        for n0, qi in (((cd, 4), (cd + 3, 0), (max(e_, cd + 6), 1)) if not env('NOHELD') else ()):
            oat(n0, lambda qi=qi: half_fill(qslot[qi], qk[qi], 0)); oat(n0 + 2, lambda qi=qi: half_fill(qslot[qi], qk[qi], 1))
        vq_ = []
        for n, f in enumerate(oo):
            if n % 2 == 0:
                pr = [oo[n], oo[n + 1]]
                A.wait(lg=(['oa0'] if n == 0 else ['oa1'] if n == 2 else []) + [('F', x) for x in pr if x in lds_off], vm=[('F', x) for x in pr if x in strm_idx])
            if f[1] == 0 and f[2] >= 6:
                need = {6: 1, 7: 1, 8: 3, 9: 3}[f[2]]
                while any(t == need for t, _ in vq_): vq_.pop(0)[1]()
            stamp(f'o{n}')
            smf(accs[tacc[f[2]]], AW + 4 * f[1], f, oslot.get(n))
            for fn in oside.get(n, []): fn()
            for t in range(10):
                if 4 * (t >> 1) + 2 + (t & 1) + 3 == n: vq_ += [(t, o_) for o_ in post_ops(t)]
            for _ in range(3):
                if vq_: vq_.pop(0)[1]()
        while vq_: vq_.pop(0)[1]()
        for t in (8, 9):
            for o_ in post_ops(t): o_()
        stamp(4)
        if env('ACKT'): A('s_waitcnt', 'vmcnt(0)'); stamp('ack')
        if w in (1, 2) and env('P1POS', 0) == 0: fill(qslot[2], qk[2]); fill(qslot[3], qk[3])
        if w == 3: w3upd(); w3in(sFOV)
        A('s_barrier')
        ra = AV + 4
        setreg = [AQK, AQK + 8 if ng == 1 else SL[2]]
        A('s_mov_b32', sSPIN, 0)
        A('v_bfe_u32', v(ra + 1), v(LANE16), 4, 1); A('v_lshlrev_b32', v(ra + 1), 4, v(ra + 1))
        A('v_mov_b32', v(ra + 2), '0x3f80'); A('v_lshlrev_b32', v(ra + 1), v(ra + 1), v(ra + 2))
        A('v_bfe_u32', v(ra + 2), v(LANE16), 5, 3)
        def rloads(st):
            for i in range(2 * ng):
                A('buffer_load_dwordx4', v(setreg[st] + 4 * i, 4), v(LANE16), WS, sPLD if i < 2 else sPLD1, mods=f'offen offset:{(i&1)*1024} sc1')
        sel = lambda jj: (A('v_cmp_eq_u32', 'vcc', jj, v(ra + 2)), A('v_cndmask_b32', v(AW + jj), 0, v(ra + 1), 'vcc'))
        for jj in range(RDELAY): sel(jj % (4 * ng))
        rloads(0)
        for jj in range(max(RGAP, 4 * ng - RDELAY)): sel((RDELAY + jj) % (4 * ng))
        rloads(1)
        for jj in range(env('RFILL', 0)): sel(jj % (4 * ng))
        A.label(L('rloop'))
        for st in range(2):
            A('s_waitcnt', f'vmcnt({2*ng})')
            stamp('r1')
            for i in range(2 * ng):
                b = setreg[st] + 4 * i
                A('v_mfma_f32_16x16x32_bf16', v(AV, 4), v(b, 4), v(AW + 4 * (i >> 1), 4), '0' if i == 0 else v(AV, 4))
                if i == 0:
                    A('v_and_b32', v(ra + 1), v(b), v(b + 2)); A('v_or_b32', v(ra + 2), v(b), v(b + 2))
                else:
                    A('v_bitop3_b32', v(ra + 1), v(ra + 1), v(b), v(b + 2), mods='bitop3:0x80'); A('v_or3_b32', v(ra + 2), v(ra + 2), v(b), v(b + 2))
            A('v_bitop3_b32', v(ra + 1), v(ra + 1), v(ra + 2), sTAG, mods='bitop3:0x4e')
            A('v_and_b32', v(ra + 1), 1, v(ra + 1))
            A('v_cmp_ne_u32', 'vcc', 0, v(ra + 1))
            A('s_cbranch_vccz', L('rok'))
            rloads(st)
        A('s_cmp_lg_u32', sDEAD, 0); A('s_cbranch_scc1', L('rok'))
        A('s_add_u32', sSPIN, sSPIN, 1)
        A('s_cmp_lt_u32', sSPIN, SPIN_MAX); A('s_cbranch_scc1', L('rloop'))
        A('s_mov_b32', sDEAD, 1)
        A.label(L('rok'))
        A('v_permlane32_swap_b32', v(AV), v(AV + 2)); A('v_permlane32_swap_b32', v(AV + 1), v(AV + 3))
        add2(AV, AV, AV + 2)
        A('v_permlane16_swap_b32', v(AV), v(AV + 1)); A('v_add_f32', v(AV), v(AV), v(AV + 1))
        A('v_cvt_pk_bf16_f32', v(AV), v(AV), v(AV))
        A('buffer_store_short', v(AV), v(RDEST), WS, sMEMc, mods=f'offen {sc}'.strip())
        stamp(5)
        A('v_mov_b32', v(AV + 1), hex(SENT))
        A('buffer_store_short', v(AV + 1), v(RDEST), WS, sMEMo, mods=f'offen {sc}'.strip())
        A.reset_counts()
        xl = 0
        if w in (1, 2) and env('P1POS', 0) == 1: fill(qslot[2], qk[2]); fill(qslot[3], qk[3]); xl = 4
        kdma()
        pub_read(AV, AV + 4)
        A('s_add_u32', sT2, sMEMc, 1024 * KOWN[w])
        A('s_xor_b32', sTAG, sTAG, 1); A('s_add_u32', sKM, sKM, 32 * 4096)
        A('s_xor_b32', sMEMc, sMEMc, sDMEM); A('s_xor_b32', sMEMo, sMEMo, sDMEM)
        if not X_NOADV: A('s_add_u32', sVT, sVT, 32 * 8192)
        A('s_add_u32', sS, sS, 1)
        A('s_mov_b32', sSPIN, 0)
        A('s_mov_b32', 'm0', L_MEM + 1024 * KOWN[w])
        def gdma():
            for j in range(nd): A('buffer_load_dwordx4', v(LANE16), WS, sT2, mods=f'offen offset:{1024*j} sc1 lds')
        if w == 3: w3prep()
        for i in range(GDELAY - (8 if w == 3 else 0)): A('v_mov_b32', v(AW + (i % 8)), 0)
        gdma()
        A('s_waitcnt', f'vmcnt({4 + nd + xl})')
        if w in (0, 3): fill(qslot[2], qk[2]); fill(qslot[3], qk[3])
        for i in range(0, 16, 2): A('v_mov_b64', v(AQK + i, 2), 0)
        for i in range(env('GGAP', 12)): A('v_mov_b32', v(AW + (i % 8)), 0)
        gdma()
        A.label(L('gloop'))
        A('s_waitcnt', f'vmcnt({nd})')
        for j in range(nd): A('ds_read_b128', v(ownreg[j], 4), v(LANE16), mods=f'offset:{L_MEM + 1024*KO[j]}')
        gdma()
        gregs = [r_ + i for r_ in ownreg for i in range(4)]
        A('s_waitcnt', f'lgkmcnt({nd-1})')
        m0_ = AQK + 15
        A('v_pk_max_u16', v(m0_), v(gregs[0]), v(gregs[1]))
        for i in range(2, len(gregs)):
            if i % 4 == 0: A('s_waitcnt', f'lgkmcnt({nd-1-i//4})')
            A('v_pk_max_u16', v(m0_), v(m0_), v(gregs[i]))
        emit_check(A, m0_, AQK + 14, gregs, L('gloop'), L('loop'), define=False)
        A('s_branch', L('loop'))
        A.label(L('last'))
        A.reset_counts()
        pub_read(AV, AV + 4); A('s_add_u32', sKM, sKM, 32 * 4096)
        A('s_waitcnt', 'lgkmcnt(0)')
        A('buffer_store_dwordx4', v(AV, 4), v(LANE16), WS, sKM, mods='offen sc1')
        A('s_waitcnt', 'vmcnt(0)')
        A('s_barrier')
        if w == 3:
            A('v_mov_b32', v(XR), nsteps)
            A('s_mov_b64', 'exec', 1)
            A('buffer_store_dword', v(XR), 'off', WS, sFLO, mods='sc1')
            A('s_mov_b64', 'exec', -1)
        if dbg and not env('FRZ'): dump()
        A('s_waitcnt', 'vmcnt(0) lgkmcnt(0)')
        A('s_endpgm')

def emit_check(A, m0, m1, regs, retry, ok, define=True):
    A('v_pk_max_u16', v(m0), v(m0), v(m0), mods='op_sel:[0,1] op_sel_hi:[1,0]')
    A('v_cmp_le_u32', 'vcc', '0xff810000', v(m0))
    A('s_cbranch_vccz', ok)
    A('s_add_u32', sSPIN, sSPIN, 1)
    A('s_cmp_lt_u32', sSPIN, 64); A('s_cbranch_scc1', retry)
    A('s_cmp_lg_u32', sDEAD, 0); A('s_cbranch_scc1', ok)
    A('v_mov_b32', v(m0), -1)
    for r_ in regs:
        A('v_xor_b32', v(m1), hex(SENT), v(r_)); A('v_pk_min_u16', v(m0), v(m0), v(m1))
    A('v_pk_min_u16', v(m0), v(m0), v(m0), mods='op_sel:[0,1] op_sel_hi:[1,0]')
    A('v_mov_b32', v(m1), 0)
    A('v_cmp_eq_u32', 'vcc', 0, v(m0))
    A('s_cbranch_vccz', ok)
    A('s_sleep', 1)
    A('s_cmp_lt_u32', sSPIN, SPIN_MAX); A('s_cbranch_scc1', retry)
    A('s_mov_b32', sDEAD, 1)
    if define: A.label(ok)
```

```python
from asmgen import *
from common import *
from layout import *
import chain, bulk
from chain import SDBG, WS, sMODE
from prologue import emit_srds
import sys, os
NAME = 'interleave_layers__memory_aug_recurrent_mem_tr__dense_activation_relu__prompt'
ROLES = os.environ.get('ROLES', 'chain,qkv,att,op,lna,ln,f1,f2').split(',')
NOINIT = int(os.environ.get('NOINIT', 0))
FORCE_SLOW = int(os.environ.get('FORCE_SLOW', 0))
DBG = int(os.environ.get('DBG', 0))
sW, sI, sL = 's52', 's53', 's54'
sX, sR, sV = 's97', 's98', 's99'
CHDBG = int(os.environ.get('CHDBG', 0))
T0, T1, T2 = 's70', 's71', 's72'

def build():
    A = Asm()
    A('s_cmp_ge_u32', 's2', 256); A('s_cbranch_scc1', 'L_end')
    emit_srds(A)
    if DBG:
        A('s_memrealtime', 's[90:91]'); A('s_waitcnt', 'lgkmcnt(0)'); A('v_mov_b32', 'v1', 's90'); A('s_lshl_b32', T0, 's2', 2); A('s_add_u32', T0, T0, DBGT + (1 << 19))
        A('buffer_store_dword', 'v1', 'off', WS, T0)
    A('s_getreg_b32', sX, 'hwreg(HW_REG_XCC_ID)'); A('s_and_b32', sX, sX, 15)
    A('v_lshrrev_b32', 'v1', 6, 'v0'); A('v_readfirstlane_b32', sW, 'v1')
    A('s_mov_b32', sMODE, 0)
    def init_and_arrive(first):
        t = 'a' if first else 'b'
        A('v_mbcnt_lo_u32_b32', 'v1', -1, 0); A('v_mbcnt_hi_u32_b32', 'v1', -1, 'v1'); A('v_lshlrev_b32', 'v2', 4, 'v1')
        A('s_cmp_lg_u32', sW, 0); A('s_cbranch_scc1', 'L_w123' + t)
        if first:
            A('s_mov_b64', 'exec', 1)
            A('v_mov_b32', 'v8', 1); A('s_lshl_b32', T0, sX, 2); A('s_add_u32', T0, T0, 128); A('s_cmp_eq_u32', sX, 0); A('s_cselect_b32', T0, 0, T0)
            A('buffer_atomic_add', 'v8', 'off', SDBG, T0, mods='sc0')
            A('s_waitcnt', 'vmcnt(0)')
            A('v_mov_b32', 'v3', 0); A('ds_write_b32', 'v3', 'v8')
        A('s_mov_b64', 'exec', '0xffffffff')
        for i in range(4): A('v_mov_b32', v(4 + i), 0)
        A('s_lshl_b32', T0, 's2', 9)
        if first:
            A('s_sub_u32', T1, T0, FL_XN); A('s_cmp_lt_u32', T1, 2048); A('s_cselect_b32', T0, '0x20000000', T0)
        A('buffer_store_dwordx4', 'v[4:7]', 'v2', WS, T0, mods='offen sc1')
        A('s_mov_b64', 'exec', -1)
        A('s_branch', 'L_join' + t)
        A.label('L_w123' + t)
        for i in range(4): A('v_mov_b32', v(4 + i), hex(SENT))
        A('s_mul_i32', T0, 's2', 3072); A('s_lshl_b32', T1, sW, 10); A('s_add_u32', T0, T0, T1); A('s_add_u32', T0, T0, POISON_LO - 1024)
        A('buffer_store_dwordx4', 'v[4:7]', 'v2', WS, T0, mods='offen sc1')
        A.label('L_join' + t)
    init_and_arrive(True)
    A('s_waitcnt', 'lgkmcnt(0)'); A('s_barrier')
    A('v_mov_b32', 'v3', 0); A('ds_read_b32', 'v9', 'v3'); A('s_waitcnt', 'lgkmcnt(0)')
    A('v_readfirstlane_b32', sR, 'v9')
    xm = [int(c) for c in os.environ.get('XMAP', '01234567')]
    A('s_min_u32', T0, sX, 8); A('s_cmp_ge_u32', sX, 8); A('s_cbranch_scc1', 'L_nomap')
    A('s_lshl_b32', T0, sX, 2); A('s_lshr_b32', sX, hex(sum(x << (4 * i) for i, x in enumerate(xm))), T0); A('s_and_b32', sX, sX, 15)
    A.label('L_nomap')
    A('s_lshl_b32', sV, sX, 5); A('s_add_u32', sV, sV, sR)
    A('s_sub_u32', T0, sR, 20); A('s_cmp_lt_u32', T0, 8); A('s_cbranch_scc0', 'L_noown')
    A('s_lshl_b32', T0, T0, 8); A('s_lshl_b32', T1, sW, 2); A('s_add_u32', T0, T0, T1); A('s_add_u32', T0, T0, FL_XN)
    A('s_cmp_eq_u32', sX, 2); A('s_cbranch_scc1', 'L_own')
    A('s_add_u32', T0, T0, 128); A('s_cmp_eq_u32', sX, 5); A('s_cbranch_scc0', 'L_noown')
    A.label('L_own')
    A('buffer_store_dword', 'v3', 'off', WS, T0, mods='sc1')
    A.label('L_noown')
    A('s_waitcnt', 'vmcnt(0)'); A('s_barrier')
    A('s_cmp_lg_u32', sW, 0); A('s_cbranch_scc1', 'L_arr')
    A('s_mov_b64', 'exec', 1); A('v_mov_b32', 'v9', 1)
    A('buffer_atomic_add', 'v9', 'off', SDBG, 0, mods='offset:32')
    A('s_mov_b64', 'exec', -1)
    A.label('L_arr')
    A('s_cmp_ge_u32', sR, 32); A('s_cbranch_scc1', 'L_slow')
    A('s_cmp_ge_u32', sX, 8); A('s_cbranch_scc0', 'L_dispatch')
    A.label('L_slow')
    A('s_waitcnt', 'vmcnt(0) lgkmcnt(0)'); A('s_barrier')
    init_and_arrive(False)
    A('s_waitcnt', 'vmcnt(0)'); A('s_barrier')
    A('s_cmp_lg_u32', sW, 0); A('s_cbranch_scc1', 'L_arr2')
    A('s_mov_b64', 'exec', 1); A('v_mov_b32', 'v9', 1)
    A('buffer_atomic_add', 'v9', 'off', SDBG, 0, mods='offset:36')
    A('s_mov_b64', 'exec', -1)
    A('s_mov_b32', 's68', 0)
    A.label('L_poll2')
    A('buffer_load_dword', 'v9', 'off', SDBG, 0, mods='offset:36 sc1'); A('s_waitcnt', 'vmcnt(0)')
    A('v_readfirstlane_b32', T0, 'v9'); A('s_cmp_ge_u32', T0, 256); A('s_cbranch_scc1', 'L_arr2')
    A('s_sleep', 8)
    A('s_add_u32', 's68', 's68', 1); A('s_cmp_lt_u32', 's68', chain.SPIN_MAX); A('s_cbranch_scc1', 'L_poll2')
    A.label('L_arr2')
    A('s_barrier')
    A('s_mov_b32', sMODE, 1); A('s_mov_b32', sV, 's2')
    A('v_mov_b32', 'v0', 'v1')
    A.label('L_dispatch')
    A('s_lshr_b32', sX, sV, 5); A('s_and_b32', sR, sV, 31)
    if DBG:
        A('s_memrealtime', 's[90:91]'); A('s_waitcnt', 'lgkmcnt(0)'); A('v_mov_b32', 'v1', 's90'); A('s_lshl_b32', T0, sV, 2); A('s_add_u32', T0, T0, DBGT + (1 << 19) + 4096)
        A('buffer_store_dword', 'v1', 'off', WS, T0)
    LATE = os.environ.get('LATE', '')
    if LATE:
        mask = sum(1 << int(c) for c in LATE)
        A('s_lshr_b32', T0, hex(mask), sX); A('s_and_b32', T0, T0, 1); A('s_cmp_eq_u32', T0, 0); A('s_cbranch_scc1', 'L_nolate')
        A('s_sub_u32', T0, sR, 20); A('s_cmp_lt_u32', T0, 8); A('s_cselect_b32', T0, 1, 0); A('s_cmp_eq_u32', sX, 5); A('s_cselect_b32', T0, T0, 0)
        A('s_cmp_lg_u32', T0, 0); A('s_cbranch_scc1', 'L_nolate')
        A('s_mov_b32', 's68', 0)
        A.label('L_latep')
        A('buffer_load_dword', 'v9', 'off', SDBG, 0, mods='offset:40 sc1'); A('s_waitcnt', 'vmcnt(0)')
        A('v_readfirstlane_b32', T0, 'v9'); A('s_cmp_ge_u32', T0, 128); A('s_cbranch_scc1', 'L_nolate')
        A('s_sleep', 32)
        A('s_add_u32', 's68', 's68', 1); A('s_cmp_lt_u32', 's68', 64); A('s_cbranch_scc1', 'L_latep')
        A.label('L_nolate')
    def go(role, label):
        return label if role in ROLES else 'L_end'
    A('s_cmp_ge_u32', sX, 2); A('s_cbranch_scc1', 'L_bulk')
    A('s_mov_b32', sI, sR); A('s_mov_b32', sL, sX)
    for w in range(4):
        A('s_cmp_eq_u32', sW, w); A('s_cbranch_scc1', go('chain', f'CH{w}_entry'))
    A.label('L_bulk')
    A('s_cmp_ge_u32', sX, 5); A('s_cselect_b32', sL, 1, 0)
    A('s_mul_i32', T0, sL, 3); A('s_sub_u32', T0, sX, T0); A('s_sub_u32', T0, T0, 2)
    A('s_mov_b32', sI, sR)
    A('s_cmp_eq_u32', T0, 2); A('s_cbranch_scc1', 'L_qkv')
    A('s_cmp_eq_u32', T0, 1); A('s_cbranch_scc1', 'L_t1')
    A('s_cmp_lt_u32', sR, 20); A('s_cbranch_scc1', go('op', 'G2op_entry'))
    A('s_sub_u32', sI, sR, 20); A('s_lshl_b32', sI, sI, 1); A('s_add_u32', sI, sI, sL); A('s_cmp_lt_u32', sR, 28); A('s_cbranch_scc1', 'LN0_entry')
    A('s_sub_u32', sI, sR, 28); A('s_cmp_lt_u32', sR, 30); A('s_cbranch_scc1', go('lna', 'LNA_entry'))
    A('s_add_u32', sI, sR, 16); A('s_branch', 'L_qkv')
    A.label('L_t1')
    A('s_cmp_lt_u32', sR, 7); A('s_cbranch_scc1', go('f1', 'G1f1_entry'))
    A('s_sub_u32', sI, sR, 7); A('s_cmp_lt_u32', sR, 17); A('s_cbranch_scc1', go('f2', 'G2f2_entry'))
    A('s_add_u32', sI, sR, 14); A('s_cmp_gt_u32', sR, 17); A('s_cbranch_scc1', 'L_qkv')
    A('s_mov_b32', sI, sL); A('s_branch', 'LN1_entry')
    A.label('L_qkv')
    A('s_mul_i32', T0, sI, 43); A('s_lshr_b32', T0, T0, 7); A('s_mul_i32', T0, T0, 3); A('s_sub_u32', T0, sI, T0)
    A('s_cmp_eq_u32', T0, 2); A('s_cbranch_scc1', go('qkv', 'G1v_entry'))
    A('s_branch', go('qkv', 'G1qk_entry'))
    A.label('L_end')
    A('s_endpgm')
    def ready(A):
        ok = A.newlabel('RDY_ok'); lp = A.newlabel('RDY_lp'); al = A.newlabel('RDY_all')
        if LATE:
            sk = A.newlabel('RDY_sk')
            A('s_cmp_lg_u32', sX, 0); A('s_cbranch_scc1', sk)
            A('s_mov_b64', 'exec', 1); A('v_mov_b32', 'v40', 1); A('buffer_atomic_add', 'v40', 'off', SDBG, 0, mods='offset:40'); A('s_mov_b64', 'exec', -1)
            A.label(sk)
        A('s_cmp_lg_u32', sMODE, 0); A('s_cbranch_scc1', ok)
        A('s_mov_b32', 's68', 0)
        A.label(lp)
        A('buffer_load_dword', 'v40', 'off', SDBG, 0, mods='offset:32 sc1'); A('s_waitcnt', 'vmcnt(0)')
        A('v_readfirstlane_b32', T0, 'v40'); A('s_cmp_ge_u32', T0, 256); A('s_cbranch_scc1', al)
        A('s_sleep', 8)
        A('s_add_u32', 's68', 's68', 1); A('s_cmp_lt_u32', 's68', chain.SPIN_MAX); A('s_cbranch_scc1', lp)
        A('s_branch', ok)
        A.label(al)
        A('v_mbcnt_lo_u32_b32', 'v41', -1, 0); A('v_and_b32', 'v41', 7, 'v41'); A('v_min_u32', 'v42', 1, 'v41'); A('v_lshlrev_b32', 'v41', 2, 'v41'); A('v_lshl_add_u32', 'v41', 'v42', 7, 'v41')
        A('buffer_load_dword', 'v40', 'v41', SDBG, 0, mods='offen sc1'); A('s_waitcnt', 'vmcnt(0)')
        A('v_cmp_ne_u32', 'vcc', 32 if not FORCE_SLOW else 33, 'v40')
        A('s_cbranch_vccnz', 'L_slow')
        A.label(ok)
        A.vm.clear()
        if DBG:
            A('s_memrealtime', 's[90:91]'); A('s_waitcnt', 'lgkmcnt(0)'); A('v_mov_b32', 'v40', 's90'); A('s_lshl_b32', T0, sV, 2); A('s_add_u32', T0, T0, sW); A('s_lshl_b32', T0, T0, 2)
            A('s_add_u32', T0, T0, DBGT + (1 << 19) + 8192); A('buffer_store_dword', 'v40', 'off', WS, T0); A('s_waitcnt', 'vmcnt(0)'); A.vm.clear()
    bulk.emit_ln(A, 'ln1', ready); bulk.emit_ln(A, 'lna', ready)
    bulk.emit_ln(A, 'ln0', lambda A: None, after=lambda: A('s_lshr_b32', sI, sI, 1))
    bulk.emit_att(A, ready)
    if 'qkv' in ROLES: bulk.emit_gemm1(A, 'qk', ready); bulk.emit_gemm1(A, 'v', ready)
    if 'f1' in ROLES: bulk.emit_gemm1(A, 'f1', ready)
    if 'op' in ROLES: bulk.emit_gemm2(A, 'op', ready)
    if 'f2' in ROLES: bulk.emit_gemm2(A, 'f2', ready)
    if 'chain' in ROLES:
        for w in range(4): chain.emit_chain_wave(A, w, ready, dbg=bool(CHDBG))
    return A.finalize()

if __name__ == '__main__':
    out = sys.argv[1]
    k = NAME + '_kernel'
    hdr = open('cdna_kernels/' + NAME + '.s.ref').read().split('; Override launch geometry')[0]
    txt = hdr + f'; @launch kernel={k} grid=(256,1,1) block=(256,1,1) lds=163840\n' + TARGET + kernel_header(k) + build() + kernel_desc(k)
    open(out, 'w').write(txt)
```

```python
from asmgen import *
from layout import *
import os, struct
def env(n, d=0): return int(os.environ.get(n, d))
X_NOADV, X_NOFLAG, X_NOPUB, X_NOPF = env('X_NOADV'), env('X_NOFLAG'), env('X_NOPUB'), env('X_NOPF')
RDELAY, GDELAY = env('RDELAY', 8), env('GDELAY', 50)
PUBAT = env('PUBAT', 8)
RGAP = env('RGAP', 6)
KVMOD = os.environ.get('KVMOD', 'sc1')

WS = 's[8:11]'; SQ = 's[12:15]'; SK = 's[16:19]'; SV = 's[20:23]'; SO = 's[24:27]'; SX = 's[28:31]'; SM0 = 's[32:35]'
SW1 = 's[36:39]'; SW2 = 's[40:43]'; SOUT = 's[44:47]'; SDBG = 's[48:51]'
sW, sH, sC, sS = 's52', 's53', 's54', 's55'
sMEMc, sMEMo, sPST, sPLD, sPLD1, sSTR, sVT, sKF, sKM, sTAG, sFLO, sPROG, sSPIN, sDEAD = ['s%d' % i for i in range(56, 70)]
sT0, sT1, sT2, sT3 = 's70', 's71', 's72', 's73'
sDMEM, sPST1, sPST2, sXX, sFIN, sSCALE = 's74', 's75', 's76', 's77', 's78', 's79'

sPSTS = [sPST, sPST1, sPST2, sXX, 's4']
sSTRS = [sSTR, 's3', 's5', 's6', 's7']
sONES = 's[40:41]'
sPFK, sPFV, sFOV = 's36', 's37', 's38'
L_MEM = 0; L_QB = 10240; L_KB = 12288; L_VM = 14336; L_KX = 16384; L_O = L_KX; L_W = 24576
UNITS = [9, 8, 8, 9]
L_WBASE = [L_W + 4096 * sum(UNITS[:w]) for w in range(4)]
NSTR = [8, 10, 10, 9]
LANE16, IDX, RDEST, KW, PST2, QKW, FR, LDSW = range(8)
AQK = 8; AV = 24; AW = 32; SL = [40, 48, 56, 64, 72]; RES0 = 80
SPIN_MAX = 1 << 16
STAMPS = ['top', 'b1', 0, 'b2', 'sc', 2, 3, 4, 'r1', 5, 'start']
if env('ACKT'): STAMPS = ['top', 'b1', 0, 'b2', 'sc', 2, 3, 4, 'ack', 5, 'start']
if env('STAMPSET') == 1: STAMPS = ['top', 2, 'p1', 'p2', 'p3', 'p4', 3, 'o4', 'o10', 'o16', 'start']
if env('STAMPSET') == 2: STAMPS = ['top', 'q8', 'q16', 'q24', 'q32', 0, 'sc', 's1', 's2', 2, 'start']

def f32bits(x):
    return struct.unpack('<I', struct.pack('<f', x))[0]

def tstamp(A, sfo, val, tmp):
    A('s_memrealtime', 's[90:91]')
    if env('CLK'): A('s_memtime', 's[86:87]')
    A('s_lshr_b32', 's92', sfo, 7); A('s_lshl_b32', 's92', 's92', 2); A('s_bfe_u32', 's93', sfo, 0x20002); A('s_add_u32', 's92', 's92', 's93')
    A('s_lshl_b32', 's92', 's92', 9); A('s_lshl_b32', 's93', val, 2); A('s_add_u32', 's92', 's92', 's93'); A('s_add_u32', 's92', 's92', DBGT + (1 << 20))
    A('s_waitcnt', 'lgkmcnt(0)')
    A('v_mov_b32', v(tmp), 's90')
    if env('CLK'):
        A('s_bitcmp1_b32', val, 0); A('s_cselect_b32', 's90', 's86', 's90'); A('v_mov_b32', v(tmp), 's90')
    A('buffer_store_dword', v(tmp), 'off', WS, 's92'); A.vm.pop()

KOWN = [0, 3, 6, 8]; NOWN = [3, 3, 2, 2]
def korder(w):
    return [(KOWN[w] + j) % 10 for j in range(10)]

def frag_plan(w):
    qk = []
    for j in range(10):
        qk += [('q', j, 0), ('q', j, 1), ('k', j, 0), ('k', j, 1)]
    qk[34:38] = qk[36:38] + qk[34:36]
    qslot = {0: 0, 1: 1, 2: 2, 3: 3, 4: 4, 10: 2, 11: 3, 16: 4, 17: 2, 22: 3, 23: 4, 28: 2, 29: 3, 34: 4, 35: 2}
    qfill = [(2, 1, 2, 10), (4, 1, 3, 11), (6, 2, 4, 16), (10, 0, 2, 17), (12, 1, 3, 22), (16, 0, 4, 23), (18, 2, 2, 28), (22, 0, 3, 29), (24, 1, 4, 34), (28, 0, 2, 35)]
    oo = []
    for p in range(5):
        oo += [('o', 0, 2 * p), ('o', 0, 2 * p + 1), ('o', 1, 2 * p), ('o', 1, 2 * p + 1)]
    OV = env('OVAR', 3)
    ab, cd, e_ = [([0, 6, 12, 18], 2, 9), ([4, 10, 14, 18], 6, 9), ([6, 10, 14, 18], 8, 13), ([4, 10, 14, 18], 2, 9), ([2, 8, 14, 18], 4, 7)][OV]
    oslot = {cd: 4, cd + 1: 0, e_: 1}
    for x in ab: oslot[x] = 2; oslot[x + 1] = 3
    opre = sorted([ab[0], ab[0] + 1, cd, cd + 1])
    streams = [qk[0], qk[1], qk[4]] + [oo[i] for i in opre] + [oo[e_]]
    ldsf = [qk[i] for i in (10, 11, 16, 17, 22, 23, 28, 29, 34, 35)] + [oo[x + i] for x in ab[1:] for i in range(2)]
    if w in (1, 2): streams += [qk[2], qk[3]]
    else: ldsf += [qk[2], qk[3]]
    if w == 3:
        streams += [qk[25]]; qslot[25] = 0; qfill += [(0, 1, 0, 25)]
    assert len(streams) == NSTR[w] and len(ldsf) == 2 * UNITS[w]
    return qk, qslot, qfill, oo, oslot, ab, cd, e_, opre, streams, ldsf

sMODE = 's96'
def emit_chain_wave(A, w, ready, modes=('', 'sc1'), dbg=False, nsteps=64):
    L = lambda nm: f'CH{w}_{nm}'
    KO = korder(w)
    qk, qslot, qfill, oo, oslot, ab, cd, e_, opre, streams, ldsf = frag_plan(w)
    allf = qk + [('v', j, t) for j in range(10) for t in range(2)] + oo
    res = [f for f in allf if f not in streams and f not in ldsf]
    assert len(res) == (54 if w < 3 else 53), len(res)
    resreg = {f: (RES0 if w < 3 else RES0 + 8) + 8 * i for i, f in enumerate(res)}
    XR = RES0
    strm_idx = {f: i for i, f in enumerate(streams)}
    unit_of = lambda f: (f[0], f[1], f[2] >> 1)
    for i in range(0, len(ldsf), 2):
        assert unit_of(ldsf[i]) == unit_of(ldsf[i + 1]), (ldsf[i], ldsf[i + 1])
    lds_units = [unit_of(ldsf[i]) for i in range(0, len(ldsf), 2)]
    lds_off = {}
    for i, u in enumerate(lds_units):
        for t in range(2):
            lds_off[(u[0], u[1], 2 * u[2] + t)] = i * 4096 + t * 2048
    groups = [[0, 1], [2], [3], [4]][w]
    ng = len(groups)

    def half_fill(slot, f, hf):
        r = SL[slot] + 4 * hf
        tag = ('F', f)
        if f in lds_off:
            A('ds_read_b128', v(r, 4), v(LDSW), mods=f'offset:{lds_off[f] + 1024*hf}', tag=tag)
        else:
            i = strm_idx[f]
            so = sSTRS[i >> 1]
            A('buffer_load_dwordx4', v(r, 4), v(LANE16), WS, so, mods=f'offen offset:{(i&1)*2048 + 1024*hf}', tag=tag)
    def fill(slot, f):
        half_fill(slot, f, 0); half_fill(slot, f, 1)
    def smf(acc, areg, f, slot):
        if slot is None:
            b = R(resreg[f], 8)
        else:
            if f in lds_off: A.wait(lg=[('F', f)])
            else: A.wait(vm=[('F', f)])
            b = v(SL[slot], 8)
        A('v_smfmac_f32_16x16x64_bf16', v(acc, 4), v(areg, 4), b, v(IDX))
    def add2(d, a_, b_):
        A('v_add_f32', v(d), v(a_), v(b_)); A('v_add_f32', v(d + 1), v(a_ + 1), v(b_ + 1))

    A.label(L('entry'))
    A.reset_counts()
    T = [SL[0] + i for i in range(40)]
    ln = T[0]; g = T[1]; c = T[2]
    A('v_and_b32', v(ln), 63, 'v0')
    A('v_lshlrev_b32', v(LANE16), 4, v(ln))
    A('v_lshrrev_b32', v(g), 4, v(ln)); A('v_and_b32', v(c), 15, v(ln))
    A('v_and_b32', v(T[3]), 2, v(ln)); A('v_cmp_ne_u32', 'vcc', 0, v(T[3]))
    A('v_mov_b32', v(T[4]), '0x4444'); A('v_mov_b32', v(T[5]), '0xeeee'); A('v_cndmask_b32', v(IDX), v(T[4]), v(T[5]), 'vcc')
    A('v_and_b32', v(T[3]), 13, v(c)); A('v_and_b32', v(T[4]), 1, v(g)); A('v_lshl_or_b32', v(T[3]), v(T[4]), 1, v(T[3]))
    A('v_lshlrev_b32', v(T[3]), 4, v(T[3])); A('v_lshrrev_b32', v(T[4]), 1, v(g)); A('v_lshl_add_u32', v(FR), v(T[4]), 8, v(T[3]))
    A('v_lshrrev_b32', v(T[3]), 3, v(c)); A('v_lshlrev_b32', v(T[3]), 8, v(T[3]))
    A('v_lshl_add_u32', v(T[3]), v(g), 6, v(T[3]))
    A('v_bfe_u32', v(T[4]), v(c), 2, 1); A('v_lshl_add_u32', v(T[3]), v(T[4]), 5, v(T[3]))
    A('v_and_b32', v(T[4]), 3, v(c)); A('v_lshl_add_u32', v(T[3]), v(T[4]), 2, v(T[3]))
    A('v_add_u32', v(QKW), L_QB + w * 512, v(T[3]))
    A('v_add_u32', v(LDSW), L_WBASE[w], v(LANE16))
    A('v_add_u32', v(KW), L_KB - L_QB, v(QKW))
    A('s_mov_b32', sT0, PIECE)
    A('v_lshrrev_b32', v(T[3]), 3, v(c)); A('v_lshl_add_u32', v(T[3]), v(T[3]), 2, v(g)); A('v_mul_lo_u32', v(T[3]), v(T[3]), sT0)
    A('v_and_b32', v(T[4]), 7, v(c)); A('v_lshl_add_u32', v(PST2), v(T[4]), 3, v(T[3]))
    A('s_mul_i32', sT0, sH, 5); A('s_add_u32', sT0, sT0, groups[0])
    A('v_lshrrev_b32', v(T[3]), 3, v(c)); A('v_add_u32', v(T[3]), sT0, v(T[3]))
    A('v_and_b32', v(T[9]), 3, v(c)); A('v_lshlrev_b32', v(T[9]), 4, v(T[9]))
    A('v_lshl_add_u32', v(T[9]), v(g), 2, v(T[9]))
    A('v_bfe_u32', v(T[8]), v(c), 2, 1); A('v_lshl_add_u32', v(T[9]), v(T[8]), 1, v(T[9]))
    A('v_lshl_add_u32', v(RDEST), v(T[3]), 6, v(T[9]))
    if ng == 1:
        A('v_mov_b32', v(T[6]), '0x40000000'); A('v_cmp_lt_u32', 'vcc', 7, v(c)); A('v_cndmask_b32', v(RDEST), v(RDEST), v(T[6]), 'vcc')
    if w == 3:
        A('v_lshlrev_b32', v(XR + 3), 7, v(ln))
        A('v_mov_b64', v(XR + 6, 2), 0)
        A('v_mov_b32', v(T[6]), '0x40000000'); A('v_cmp_gt_u32', 'vcc', 2, v(ln)); A('v_cndmask_b32', v(XR + 5), v(T[6]), v(XR + 3), 'vcc')
        A('v_cmp_gt_u32', 'vcc', 1, v(ln)); A('v_cndmask_b32', v(XR + 2), v(T[6]), v(XR + 3), 'vcc')
    A('s_mul_i32', sT0, sC, 2 * MEMB_SZ); A('s_add_u32', sMEMc, sT0, MEMB); A('s_add_u32', sMEMo, sMEMc, MEMB_SZ)
    A('s_xor_b32', sDMEM, sMEMc, sMEMo)
    A('s_mul_i32', sT0, sC, PART_SZ); A('s_add_u32', sT0, sT0, PART)
    A('s_lshl_b32', sT1, sH, 6); A('s_add_u32', sPST, sT0, sT1); A('s_add_u32', sPST, sPST, 8 * w * PIECE)
    for p in range(1, 5): A('s_add_u32', sPSTS[p], sPST, 32 * p * PIECE)
    A('s_mul_i32', sT1, sH, 5 * PIECE); A('s_add_u32', sPLD, sT1, sT0); A('s_add_u32', sPLD, sPLD, groups[0] * PIECE)
    A('s_add_u32', sPLD1, sPLD, PIECE)
    A('s_mov_b32', sTAG, 0)
    A('s_lshl_b32', sT0, sC, 5); A('s_add_u32', sT0, sT0, sH)
    A('s_mul_i32', sSTR, sT0, STRM_H); A('s_add_u32', sSTR, sSTR, STRM + 2048 * sum(NSTR[:w]))
    for i in range(1, 5): A('s_add_u32', sSTRS[i], sSTR, 4096 * i)
    A('s_mul_i32', sT0, sC, LAYER_F); A('s_lshl_b32', sT1, sH, 13); A('s_add_u32', sT0, sT0, sT1)
    A('s_add_u32', sVT, sT0, VT + w * 2048); A('s_add_u32', sKF, sT0, KF + w * 2048)
    A('s_mul_i32', sT0, sC, LAYER_KM); A('s_lshl_b32', sT1, sH, 12); A('s_add_u32', sT0, sT0, sT1); A('s_add_u32', sKM, sT0, KM + 1024 * w - 32 * 4096)
    A('s_mul_i32', sT0, sC, FL_LAYER); A('s_lshr_b32', sT1, sH, 1); A('s_mul_i32', sT1, sT1, 3 * 128); A('s_add_u32', sFIN, sT0, sT1); A('s_add_u32', sFIN, sFIN, FL_QKV + 128)
    A('s_and_b32', sT1, sH, 1); A('s_lshl_b32', sT1, sT1, 3); A('s_add_u32', sFIN, sFIN, sT1)
    A('s_lshl_b32', sT1, sH, 7); A('s_add_u32', sFLO, sT0, sT1); A('s_add_u32', sFLO, sFLO, FL_CH)
    A('s_mov_b32', sS, 0); A('s_mov_b32', sPROG, 0); A('s_mov_b32', sDEAD, 0)
    A('s_mov_b32', sSCALE, hex(f32bits(128 ** -0.5 * 1.4426950408889634)))

    SRCQ, SRCO1, SRCO2, TRN, TRO1, TRO2 = AW, AW + 1, AW + 2, AW + 3, AW + 4, AW + 5
    r16 = T[3]; ch = T[4]
    A('v_lshrrev_b32', v(r16), 2, v(ln)); A('v_and_b32', v(ch), 3, v(ln))
    A('v_bfe_u32', v(T[5]), v(r16), 1, 1); A('v_lshlrev_b32', v(T[5]), 3, v(T[5]))
    A('v_bfe_u32', v(T[6]), v(r16), 2, 2); A('v_lshl_add_u32', v(T[5]), v(T[6]), 1, v(T[5]))
    A('v_and_b32', v(T[6]), 1, v(r16)); A('v_add_u32', v(T[5]), v(T[5]), v(T[6]))
    A('v_lshlrev_b32', v(T[5]), 13, v(T[5]))
    A('v_bfe_u32', v(T[6]), v(r16), 3, 1); A('v_lshlrev_b32', v(T[6]), 1, v(T[6])); A('v_xor_b32', v(T[6]), v(ch), v(T[6]))
    A('v_lshl_add_u32', v(T[5]), v(T[6]), 4, v(T[5]))
    A('s_lshl_b32', sT0, sH, 8); A('s_add_u32', sT0, sT0, w * 64); A('v_add_u32', v(SRCQ), sT0, v(T[5]))
    A('v_bfe_u32', v(T[5]), v(r16), 3, 1); A('v_lshlrev_b32', v(T[5]), 4, v(T[5]))
    A('v_bfe_u32', v(T[6]), v(r16), 1, 1); A('v_lshl_add_u32', v(T[5]), v(T[6]), 2, v(T[5]))
    A('v_bfe_u32', v(T[6]), v(r16), 2, 1); A('v_lshl_add_u32', v(T[5]), v(T[6]), 1, v(T[5]))
    A('v_and_b32', v(T[6]), 1, v(r16)); A('v_add_u32', v(T[5]), v(T[5]), v(T[6]))
    A('v_mul_u32_u24', v(T[5]), 1280, v(T[5]))
    A('s_mul_i32', sT0, sH, 163840); A('s_add_u32', sT0, sT0, w * 64); A('v_add_u32', v(T[5]), sT0, v(T[5]))
    A('v_lshl_add_u32', v(SRCO1), v(ch), 5, v(T[5]))
    A('v_lshl_add_u32', v(SRCO2), v(ch), 4, v(T[5]))
    A('v_bfe_u32', v(T[5]), v(ln), 2, 2); A('v_lshl_add_u32', v(T[5]), v(g), 3, v(T[5])); A('v_lshlrev_b32', v(T[5]), 6, v(T[5]))
    A('v_add_u32', v(T[5]), L_WBASE[w], v(T[5]))
    A('v_and_b32', v(T[6]), 1, v(g)); A('v_lshl_add_u32', v(T[6]), v(T[6]), 5, v(T[5])); A('v_lshl_add_u32', v(TRN), v(ch), 3, v(T[6]))
    A('v_xor_b32', v(TRN + 3), 32, v(TRN))
    A('v_lshl_add_u32', v(TRO1), v(ch), 4, v(T[5]))
    A('v_lshrrev_b32', v(T[6]), 1, v(ch)); A('v_lshl_add_u32', v(T[6]), v(T[6]), 5, v(T[5]))
    A('v_and_b32', v(T[7]), 1, v(ch)); A('v_lshl_add_u32', v(TRO2), v(T[7]), 3, v(T[6]))
    CS, CO, CT = AQK, AQK + 1, AQK + 2
    rr = T[5]; ck = T[6]
    A('v_lshlrev_b32', v(ck), 1, v(g)); A('v_xor_b32', v(ck), v(ck), v(c)); A('v_lshlrev_b32', v(ck), 4, v(ck))
    A('v_lshrrev_b32', v(rr), 1, v(g)); A('v_lshlrev_b32', v(rr), 3, v(rr)); A('v_and_b32', v(T[7]), 1, v(g)); A('v_add_u32', v(rr), v(rr), v(T[7]))
    A('v_lshlrev_b32', v(rr), 13, v(rr)); A('s_lshl_b32', sT0, sH, 8); A('v_add3_u32', v(CS), v(rr), v(ck), sT0); A('v_xor_b32', v(CS + 6), 128, v(CS))
    A('v_lshrrev_b32', v(rr), 1, v(g)); A('v_lshlrev_b32', v(rr), 2, v(rr)); A('v_add_u32', v(rr), v(rr), v(T[7]))
    A('v_mul_u32_u24', v(rr), 1280, v(rr)); A('s_mul_i32', sT0, sH, 163840); A('v_add3_u32', v(CO), v(rr), v(ck), sT0); A('v_xor_b32', v(CO + 6), 128, v(CO))
    A('v_bfe_u32', v(rr), v(ln), 2, 2); A('v_lshl_add_u32', v(T[8]), v(T[7]), 2, v(rr)); A('v_lshlrev_b32', v(T[8]), 5, v(T[8]))
    A('v_lshl_add_u32', v(rr), v(g), 3, v(rr)); A('v_lshlrev_b32', v(rr), 8, v(rr)); A('v_add_u32', v(rr), L_W, v(rr))
    for t in range(2):
        A('v_lshl_add_u32', v(T[9]), v(ch), 3, 64 * w + 32 * t) if 64 * w + 32 * t <= 64 else (A('v_lshlrev_b32', v(T[9]), 3, v(ch)), A('v_add_u32', v(T[9]), 64 * w + 32 * t, v(T[9])))
        A('v_xor_b32', v(T[9]), v(T[9]), v(T[8])); A('v_add_u32', v(CT + t), v(T[9]), v(rr))
        A('v_lshrrev_b32', v(T[9]), 1, v(ch)); A('v_lshlrev_b32', v(T[9]), 5, v(T[9])); A('v_and_b32', v(T[10]), 1, v(ch)); A('v_lshl_add_u32', v(T[9]), v(T[10]), 3, v(T[9]))
        A('v_add_u32', v(T[9]), 64 * w + 16 * t, v(T[9]))
        A('v_xor_b32', v(T[9]), v(T[9]), v(T[8])); A('v_add_u32', v(CT + 2 + t), v(T[9]), v(rr))
    for t in range(4): A('v_add_u32', v(CT + 6 + t), 65536, v(CT + t))
    stages = [(X, k, 0) for X in 'qkv' for k in range(10)] + [('o', kp, p) for kp in range(2) for p in range(5)]
    def mine(st, ww):
        X, k, p = st
        return (X, korder(ww).index(k), 0) if X != 'o' else st
    nl_ = {st: sum(1 for ww in range(4) if any(unit_of(f) == mine(st, ww) for f in frag_plan(ww)[10])) for st in stages}
    stages = sorted([st for st in stages if nl_[st] < 4], key=lambda st: nl_[st])
    def cdma(n):
        X, k, p = stages[n]
        for ii in range(4):
            A('s_mov_b32', 'm0', L_W + (n % 8) * 16384 + w * 4096 + ii * 1024)
            if X == 'o':
                A('s_mov_b32', sT0, (64 * k + 32 * (w >> 1) + 8 * (w & 1) + 16 * (ii >> 1) + 2 * (ii & 1)) * 1280 + 256 * p)
                A('buffer_load_dwordx4', v(CO + 6 * (ii >> 1)), SO, sT0, mods='offen lds', tag=('C', n))
            else:
                A('s_mov_b32', sT0, (64 * k + 16 * w + 2 * ii) * 8192)
                A('buffer_load_dwordx4', v(CS + 6 * (ii >> 1)), {'q': SQ, 'k': SK, 'v': SV}[X], sT0, mods='offen lds', tag=('C', n))
    order = list(lds_units)
    pos = {u: i for i, u in enumerate(lds_units)}
    def dma(u):
        X, j, p = u
        for i in range(4):
            A('s_mov_b32', 'm0', L_WBASE[w] + pos[u] * 4096 + i * 1024)
            if X == 'o':
                off = (64 * j + 32 * (i >> 1) + 8 * (i & 1)) * 1280 + 256 * p
                A('s_mov_b32', sT0, off)
                A('buffer_load_dwordx4', v(SRCO2), SO, sT0, mods='offen lds', tag=('U', u))
            else:
                A('s_mov_b32', sT0, (64 * KO[j] + 16 * i) * 8192)
                A('buffer_load_dwordx4', v(SRCQ), {'q': SQ, 'k': SK, 'v': SV}[X], sT0, mods='offen lds', tag=('U', u))
    slot_of = lambda u: (L_WBASE[w] + pos[u] * 4096 - L_W) // 16384
    order = []
    def retire(sl_):
        for u in lds_units:
            if slot_of(u) == sl_: dma(u); order.append(u)
    for n in range(8): cdma(n)
    pend = []
    def flush():
        for f, d in pend:
            i = strm_idx[f]
            A('buffer_store_dwordx4', v(d, 4), v(LANE16), WS, sSTRS[i >> 1], mods=f'offen offset:{(i&1)*2048} sc1', tag='ST')
            A('buffer_store_dwordx4', v(d + 4, 4), v(LANE16), WS, sSTRS[i >> 1], mods=f'offen offset:{(i&1)*2048+1024} sc1', tag='ST')
        pend.clear()
    for n, st in enumerate(stages):
        A.wait(vm=[('C', n)], lg=0)
        A('s_barrier')
        flush()
        if n >= 1 and n + 7 < len(stages): cdma(n + 7)
        if n >= 1 and n + 7 >= len(stages): retire((n - 1) % 8)
        if n + 8 == len(stages): retire(8)
        u = mine(st, w)
        if u in lds_units: continue
        for t in range(2):
            f = (u[0], u[1], 2 * u[2] + t)
            d = resreg[f] if f in resreg else SL[(n & 1) * 2 + t]
            if f in strm_idx: pend.append((f, d))
            ad = CT + t + (2 if u[0] == 'o' else 0) + (6 if (n % 8) >= 4 else 0)
            for q4, ro in enumerate((0, 1024, 8192, 9216)):
                A('ds_read_b64_tr_b16', R(d + 2 * q4, 2), v(ad), mods=f'offset:{(n % 4)*16384 + ro}')
    A.wait(lg=0); A('s_barrier'); flush(); retire((len(stages) - 1) % 8)
    assert len(order) == len(lds_units)
    def consume(u, n):
        X, j, p = u
        A.wait(vm=[('U', u)])
        dst = []
        for t in range(2):
            f = (X, j, 2 * p + t)
            d = resreg[f] if f in resreg else SL[(n & 1) * 2 + t]
            dst.append((f, d))
            if X != 'o': ad, o = (TRN if t == 0 else TRN + 3), 0
            else: ad, o = TRO2, 16 * t
            for q4, ro in enumerate((0, 256, 2048, 2304)):
                A('ds_read_b64_tr_b16', R(d + 2 * q4, 2), v(ad), mods=f'offset:{pos[u]*4096 + ro + o}', tag=('T', u))
        A.wait(lg=0)
        for f, d in dst:
            if f in lds_off:
                A('ds_write_b128', v(LDSW), v(d, 4), mods=f'offset:{lds_off[f]}')
                A('ds_write_b128', v(LDSW), v(d + 4, 4), mods=f'offset:{lds_off[f]+1024}')
            elif f in strm_idx:
                i = strm_idx[f]
                A('s_add_u32', sT1, sSTR, (i >> 1) * 4096)
                A('buffer_store_dwordx4', v(d, 4), v(LANE16), WS, sT1, mods=f'offen offset:{(i&1)*2048}', tag='ST')
                A('buffer_store_dwordx4', v(d + 4, 4), v(LANE16), WS, sT1, mods=f'offen offset:{(i&1)*2048+1024}', tag='ST')
    nd = NOWN[w]
    ownreg = [AW, AW + 4, AV + 4][:nd]
    t0_, t1_, t2_ = AV, AV + 1, AV + 2
    A('v_lshrrev_b32', v(t0_), 4, v(LANE16))
    A('v_bfe_u32', v(t1_), v(t0_), 2, 2); A('v_lshlrev_b32', v(t1_), 1, v(t1_))
    A('v_and_b32', v(t2_), 1, v(t0_)); A('v_add_u32', v(t1_), v(t1_), v(t2_)); A('v_mul_u32_u24', v(t1_), 1280, v(t1_))
    A('v_lshrrev_b32', v(t2_), 4, v(t0_)); A('v_lshl_add_u32', v(t1_), v(t2_), 5, v(t1_))
    A('v_bfe_u32', v(t2_), v(t0_), 1, 1); A('v_lshl_add_u32', v(t1_), v(t2_), 4, v(t1_))
    for j in range(nd): A('buffer_load_dwordx4', v(AQK + 4 + 4 * j, 4), v(t1_), SM0, 0, mods=f'offen offset:{128*KO[j]}')
    A('v_and_b32', v(t2_), 7, v(t0_)); A('v_min_u32', v(AV + 3), 1, v(t2_)); A('v_lshlrev_b32', v(t2_), 2, v(t2_)); A('v_lshl_add_u32', v(t2_), v(AV + 3), 7, v(t2_))
    A('buffer_load_dword', v(AQK), 'off', SDBG, 0, mods='offset:32 sc1')
    A('buffer_load_dword', v(AQK + 1), v(t2_), SDBG, 0, mods='offen sc1')
    A('v_lshlrev_b32', v(t0_), 3, v(LANE16))
    for n, u in enumerate(order):
        consume(u, n)
        if n == len(order) - 2:
            A.wait(vm=['ST'])
            for i in range(3): A('buffer_load_dword', v(AQK + 2), v(t0_), WS, sSTRS[2 * i], mods='offen sc1')
        if n == 0:
            for i in range(2 * ng): A('buffer_load_dwordx4', v(AV + 4, 4), v(LANE16), WS, sPLD if i < 2 else sPLD1, mods=f'offen offset:{(i&1)*1024} sc1')
            A('s_add_u32', sT0, sMEMc, 5120 * w)
            A('buffer_load_dword', v(AQK + 2), v(t0_), WS, sT0, mods='offen sc1')
            if w == 3:
                A('s_sub_u32', sT0, sKF, 3 * 2048); A('buffer_load_dword', v(XR), v(t0_), WS, sT0, mods='offen sc1')
                A('s_add_u32', sT0, sT0, VT - KF); A('buffer_load_dword', v(XR + 1), v(t0_), WS, sT0, mods='offen sc1')
    A.wait(vm=0, lg=0)
    A('v_readfirstlane_b32', sT0, v(AQK)); A('v_cmp_ne_u32', 'vcc', 32 if not env('FORCE_SLOW') else 33, v(AQK + 1))
    A('s_cmp_ge_u32', sT0, 256); A('s_cselect_b32', sT0, 'vcc_lo', 1); A('s_cmp_eq_u32', sT0, 0)
    if not env('DBG'): A('s_cbranch_scc1', L('rdy'))
    ready(A)
    A.label(L('rdy'))
    A('s_mov_b32', 's40', '0x3f803f80'); A('s_mov_b32', 's41', '0x3f803f80')
    for j in range(nd):
        A('ds_write_b128', v(LANE16), v(AQK + 4 + 4 * j, 4), mods=f'offset:{L_MEM + 1024*KO[j]}')
        A('v_mov_b64', v(ownreg[j], 2), v(AQK + 4 + 4 * j, 2)); A('v_mov_b64', v(ownreg[j] + 2, 2), v(AQK + 6 + 4 * j, 2))
    for n in range(5): fill(qslot[n], qk[n])
    A('s_waitcnt', 'lgkmcnt(0)')
    for i in range(0, 16, 2): A('v_mov_b64', v(AQK + i, 2), 0)
    if len(modes) > 1:
        A('s_cmp_lg_u32', sMODE, 0); A('s_cbranch_scc1', f'CHS{w}_start')
    for sc in modes:
        L = lambda nm: f'CH{"S" if sc else "F"}{w}_{nm}'
        A.label(L('start')); A.reset_counts()
        def stamp(i):
            if not dbg or i not in STAMPS: return
            A('s_memtime', s(80 + 2 * STAMPS.index(i), 2))
        def dump():
            A('s_lshl_b32', sT0, sC, 5); A('s_add_u32', sT0, sT0, sH); A('s_lshl_b32', sT0, sT0, 2); A('s_add_u32', sT0, sT0, w)
            A('s_lshl_b32', sT0, sT0, 6); A('s_add_u32', sT0, sT0, DBGT)
            A('s_waitcnt', 'lgkmcnt(0)')
            for i, r_ in enumerate([s(80 + 2 * k) for k in range(11)] + [sDEAD]):
                A('v_mov_b32', v(AV), r_)
                A('buffer_store_dword', v(AV), 'off', WS, sT0, mods=f'offset:{4*i}'); A.vm.pop()
            A('s_waitcnt', 'vmcnt(0)')
        def pub_read(reg, tmp):
            A('v_and_b32', v(tmp), 512, v(LANE16)); A('v_mul_u32_u24', v(tmp), (L_VM - L_KB - 512) // 512, v(tmp)); A('v_add_u32', v(tmp), v(tmp), v(LANE16))
            A('ds_read_b128', v(reg, 4), v(tmp), mods=f'offset:{L_KB + 512*w}', tag='pk')
        def w3upd():
            A('v_min_u32', v(XR), v(XR + 6), v(XR + 7)); A('v_readlane_b32', sT0, v(XR), 0); A('v_readlane_b32', sT3, v(XR), 1)
            A('s_min_u32', sT0, sT0, sT3); A('s_max_u32', sPROG, sPROG, sT0)
        def w3in(need):
            ok = A.newlabel(L('inok')); lp = A.newlabel(L('inlp'))
            A('s_cmp_gt_u32', sPROG, need); A('s_cbranch_scc1', ok)
            A('s_mov_b32', sSPIN, 0)
            A.label(lp)
            A('buffer_load_dwordx2', v(XR + 6, 2), v(XR + 5), WS, sFIN, mods='offen sc1'); A.vm.pop()
            A('s_waitcnt', 'vmcnt(0)')
            w3upd()
            A('s_cmp_gt_u32', sPROG, need); A('s_cbranch_scc1', ok)
            A('s_cmp_lg_u32', sDEAD, 0); A('s_cbranch_scc1', ok)
            A('s_sleep', 2)
            A('s_add_u32', sSPIN, sSPIN, 1); A('s_cmp_lt_u32', sSPIN, SPIN_MAX); A('s_cbranch_scc1', lp)
            A('s_mov_b32', sDEAD, 1)
            A.label(ok)
        def w3prep():
            A('s_add_u32', sFOV, sS, 1)
            if env('SPECPF', 1): A('s_cmp_lt_u32', sFOV, nsteps)
            else: A('s_cmp_gt_u32', sPROG, sFOV)
            A('s_cselect_b32', sT0, 0, (0 if X_NOADV else 32 * 8192)); A('s_sub_u32', sPFK, sKF, sT0); A('s_sub_u32', sPFK, sPFK, 3 * 2048)
            A('s_add_u32', sPFV, sPFK, VT - KF)
            A('s_max_u32', sT0, sS, 1); A('s_sub_u32', sT0, sT0, 1); A('v_mov_b32', v(XR + 4), sT0)
        def kdma():
            A('s_mov_b32', 'm0', L_KX + w * 2048)
            for i in range(2): A('buffer_load_dwordx4', v(LANE16), WS, sKF, mods=f'offen offset:{i*1024} {KVMOD} lds')
            if not X_NOADV: A('s_add_u32', sKF, sKF, 32 * 8192)
        if w == 3: w3in(sS)
        A('s_barrier')
        kdma()
        if w == 3: w3prep()
        A('s_waitcnt', 'vmcnt(0) lgkmcnt(0)')
        A.label(L('loop'))
        A.reset_counts()
        stamp('top')
        accq = {('q', 0): AQK, ('q', 1): AQK + 4, ('k', 0): AQK + 8, ('k', 1): AQK + 12}
        awin = [AW, AW + 4, AV + 4, AW, AW + 4, AV, AV + 4, AV, AW, AW + 4]
        aat = {3: 3, 4: 7, 5: PUBAT + 1, 6: 11, 7: 23, 8: 15, 9: 19}
        def aread(j, reg, tag):
            A('ds_read_b128', v(reg, 4), v(LANE16), mods=f'offset:{L_MEM + 1024*KO[j]}', tag=tag)
        kfr = {}
        def kread(tk, reg):
            t, kp = tk
            kfr[tk] = reg
            if t == 0: A('ds_read_b128', v(reg, 4), v(FR), mods=f'offset:{L_KB + 512*kp}', tag=('K', tk))
            else: A('ds_read_b128', v(reg, 4), v(LANE16), mods=f'offset:{L_KX + ((t-1)*4+kp)*1024}', tag=('K', tk))
        NPRE = 0
        side = {}
        def at(n, fn): side.setdefault(n, []).append(fn)
        for n0, st, s2, fi in qfill:
            at(n0, lambda s2=s2, fi=fi: half_fill(s2, qk[fi], 0)); at(n0 + st, lambda s2=s2, fi=fi: half_fill(s2, qk[fi], 1))
        if dbg:
            def st8():
                sk = A.newlabel(L('st8'))
                A('s_cmp_lg_u32', sS, 8); A('s_cbranch_scc1', sk); A('s_mov_b32', 's100', 's80'); A.label(sk)
            at(20, st8)
        for n0, tk, reg in [(26, (1, 0), SL[0]), (27, (2, 0), SL[0] + 4), (30, (1, 1), SL[3]), (31, (2, 1), SL[3] + 4)]:
            at(n0, lambda tk=tk, reg=reg: kread(tk, reg))
        def vxload(hf):
            A('buffer_load_dwordx4', v(SL[1] + 4 * hf, 4), v(LANE16), WS, sVT, mods=f'offen offset:{1024*hf} {KVMOD}', tag='vx')
        if env('LATEPO', 0):
            pr = XR + 2 if w == 3 else SL[0] + 7
            at(0, lambda: A('v_mov_b32', v(pr), hex(SENT)))
            at(1, lambda: A('buffer_store_short', v(pr), v(RDEST), WS, sMEMc, mods=f'offen {sc}'.strip()))
        at(1, lambda: vxload(0)); at(3, lambda: vxload(1))
        if w == 3:
            if not X_NOPF:
                at(PUBAT + 1, lambda: A('buffer_load_dword', v(XR), v(XR + 3), WS, sPFK, mods='offen sc1'))
                at(PUBAT + 3, lambda: A('buffer_load_dword', v(XR + 1), v(XR + 3), WS, sPFV, mods='offen sc1'))
            if not X_NOFLAG: at(PUBAT + 5, lambda: A('buffer_load_dwordx2', v(XR + 6, 2), v(XR + 5), WS, sFIN, mods='offen sc1'))
            if not X_NOPUB:
                if env('CHFLAG'): at(PUBAT + 6, lambda: A('buffer_store_dword', v(XR + 4), v(XR + 2), WS, sFLO, mods='offen sc1'))
                if env('DBG') == 2: at(PUBAT + 7, lambda: (tstamp(A, sFLO, sS, XR + 4), A.vm.append(None)))
        def pub2():
            if not X_NOPUB and not env('X_NOKM'): A('buffer_store_dwordx4', v(AV, 4), v(LANE16), WS, sKM, mods='offen ' + os.environ.get('PUBMOD', 'sc1'))
        at(PUBAT, pub2)
        at(28, lambda: A('v_mov_b64', v(AV + 4, 2), 0)); at(29, lambda: A('v_mov_b64', v(AV + 6, 2), 0))
        at(32, lambda: A('v_mov_b64', v(AV, 2), 0)); at(33, lambda: A('v_mov_b64', v(AV + 2, 2), 0))
        A('s_barrier'); stamp('b1')
        if nd == 2: aread(2, awin[2], ('A', 2))
        A('v_mov_b32', v(AQK + 15), 0)
        for n in range(NPRE, 40):
            f = qk[n]; j = f[1]
            if (n & 1) == 0: A.wait(lg=[('A', j)] + [('F', qk[m]) for m in (n, n + 1) if qk[m] in lds_off])
            stamp(f'q{n}')
            smf(accq[(f[0], f[2])], awin[j], f, qslot.get(n))
            for j2, n2 in aat.items():
                if n2 == n: aread(j2, awin[j2], ('A', j2))
            for fn in side.get(n, []): fn()
        vj = [9, 8, 0, 1, 2, 3, 4, 5, 6, 7]
        vq = []
        for idx, j in enumerate(vj):
            reg = AW + 4 if idx % 2 == 0 else AW
            vq.append((j, 0, reg, idx)); vq.append((j, 1, reg, idx))
        vstate = {'i': 0, 'p': 0}
        def vpass(cnt):
            for _ in range(cnt):
                if vstate['i'] >= 20: return
                j, t, reg, idx = vq[vstate['i']]; vstate['i'] += 1
                if t == 0 and idx >= 2: A.wait(lg=[('B', idx)])
                smf(AV + 4 * t, reg, ('v', j, t), None)
                if t == 1 and idx + 2 < 10: aread(vj[idx + 2], reg, ('B', idx + 2))
        stamp(0)
        add2(AQK, AQK, AQK + 2); add2(AQK + 4, AQK + 4, AQK + 6)
        A('v_cvt_pk_bf16_f32', v(AQK + 2), v(AQK), v(AQK + 4)); A('v_cvt_pk_bf16_f32', v(AQK + 3), v(AQK + 1), v(AQK + 5))
        A('ds_write2_b32', v(QKW), v(AQK + 2), v(AQK + 3), mods='offset0:0 offset1:4', tag='qw')
        add2(AQK + 8, AQK + 8, AQK + 10); add2(AQK + 12, AQK + 12, AQK + 14)
        A('v_cvt_pk_bf16_f32', v(AQK + 10), v(AQK + 8), v(AQK + 12)); A('v_cvt_pk_bf16_f32', v(AQK + 11), v(AQK + 9), v(AQK + 13))
        A('ds_write2_b32', v(KW), v(AQK + 10), v(AQK + 11), mods='offset0:0 offset1:4', tag='qw')
        vpass(env('VP1', 4))
        A.wait(lg=['qw']); A('s_barrier'); stamp('b2')
        qreg = [SL[2], SL[2] + 4, SL[4], SL[4] + 4]
        A('ds_read_b128', v(qreg[0], 4), v(FR), mods=f'offset:{L_QB}', tag=('Q', 0))
        A('ds_read_b128', v(qreg[1], 4), v(FR), mods=f'offset:{L_QB + 512}', tag=('Q', 1))
        kread((0, 0), AQK + 12)
        for kp in range(2, 4): A('ds_read_b128', v(qreg[kp], 4), v(FR), mods=f'offset:{L_QB + 512*kp}', tag=('Q', kp))
        vpass(env('VP2', 4))
        sacc = {0: AQK, 1: AQK + 4, 2: AQK + 8}
        sc_order = [(1, 0), (2, 0), (1, 1), (2, 1), (0, 0), (0, 1), (1, 2), (2, 2), (0, 2), (0, 3), (1, 3), (2, 3)]
        pending = sc_order[5:]
        pf = []
        for n in opre:
            pf.append((oslot[n], oo[n], 0)); pf.append((oslot[n], oo[n], 1))
        def pfill(cnt=1):
            for _ in range(cnt):
                if pf: half_fill(*pf.pop(0))
        for tk in sc_order:
            t, kp = tk
            A.wait(lg=[('K', tk), ('Q', kp)])
            A('v_mfma_f32_16x16x32_bf16', v(sacc[t], 4), v(kfr[tk], 4), v(qreg[kp], 4), '0' if kp == 0 else v(sacc[t], 4))
            if pending: kread(pending.pop(0), kfr[tk])
        stamp('sc')
        vpass(1); pfill(); vpass(1); pfill()
        vals = [AQK, AQK + 1] + [AQK + 4 + i for i in range(8)]
        mx = AQK + 2; tm = AQK + 3
        A('v_max3_f32', v(mx), v(vals[0]), v(vals[1]), v(vals[2])); A('v_max3_f32', v(tm), v(vals[3]), v(vals[4]), v(vals[5]))
        A('v_max3_f32', v(mx), v(mx), v(vals[6]), v(vals[7])); A('v_max3_f32', v(tm), v(tm), v(vals[8]), v(vals[9]))
        A('v_max_f32', v(mx), v(mx), v(tm)); A('v_max_f32', v(tm), v(mx), v(tm))
        vpass(1); pfill()
        A('v_permlane32_swap_b32', v(tm), v(mx)); A('v_max_f32', v(mx), v(mx), v(tm)); A('v_max_f32', v(tm), v(mx), v(tm))
        vpass(1)
        A('v_permlane16_swap_b32', v(tm), v(mx)); A('v_max_f32', v(mx), v(mx), v(tm))
        A('v_mul_f32', v(mx), sSCALE, v(mx))
        stamp('s1')
        order = vals[2:] + vals[:2]
        for i, r_ in enumerate(order):
            A('v_fma_f32', v(r_), v(r_), sSCALE, '-' + v(mx))
            if i >= 1: A('v_exp_f32', v(order[i - 1]), v(order[i - 1]))
            if i < 8: vpass(1)
            if i % 3 == 1: pfill()
            if i in (3, 5, 7, 9): A('v_cvt_pk_bf16_f32', v(AQK + 12 + (i - 3) // 2), v(order[i - 3]), v(order[i - 2]))
            if i == 6: A('v_mov_b64', v(AQK + 4, 2), sONES); A('v_mov_b64', v(AQK + 6, 2), sONES)
        A('v_exp_f32', v(order[9]), v(order[9]))
        stamp('s2')
        vpass(20)
        A('v_mov_b32', v(AQK + 3), 0)
        stamp(2)
        A('v_cvt_pk_bf16_f32', v(AQK + 2), v(AQK), v(AQK + 1))
        A.wait(vm=['vx'])
        A('v_mfma_f32_16x16x32_bf16', v(AQK + 8, 4), v(AQK + 4, 4), v(AQK + 12, 4), '0')
        add2(AV, AV, AV + 2)
        A('v_mfma_f32_16x16x32_bf16', v(AW, 4), v(SL[1], 4), v(AQK + 12, 4), '0')
        add2(AV + 4, AV + 4, AV + 6)
        A('v_mfma_f32_16x16x32_bf16', v(AW + 4, 4), v(SL[1] + 4, 4), v(AQK + 12, 4), '0')
        A('v_cvt_pk_bf16_f32', v(AV + 2), v(AV), v(AV + 1)); A('v_cvt_pk_bf16_f32', v(AV + 3), v(AV + 4), v(AV + 5))
        A('v_mfma_f32_16x16x16_bf16', v(AQK + 8, 4), v(AQK + 4, 2), v(AQK + 2, 2), v(AQK + 8, 4))
        A('v_cvt_pk_bf16_f32', v(AV + 4), v(AV + 4), v(AV + 5)); A('v_mov_b32', v(AV + 5), 0)
        stamp('p1')
        A('v_mfma_f32_16x16x16_bf16', v(AW, 4), v(AV + 2, 2), v(AQK + 2, 2), v(AW, 4))
        pfill(2)
        A('v_mfma_f32_16x16x16_bf16', v(AW + 4, 4), v(AV + 4, 2), v(AQK + 2, 2), v(AW + 4, 4))
        stamp('p2')
        pf.append((oslot[e_], oo[e_], 0)); pf.append((oslot[e_], oo[e_], 1))
        pfill(1)
        sm = AQK
        A('v_lshrrev_b32', v(AV + 6), 1, v(LANE16))
        A('ds_write_b64', v(AV + 6), v(AV + 2, 2), mods=f'offset:{L_VM + 512*w}', tag='ow')
        A('v_rcp_f32', v(sm), v(AQK + 8))
        for i in (4, 6): A('v_mov_b64', v(AQK + i, 2), 0)
        for i in range(4):
            A('v_mul_f32', v(AW + 2 * i), v(AW + 2 * i), v(sm)); A('v_mul_f32', v(AW + 2 * i + 1), v(AW + 2 * i + 1), v(sm))
            A('v_cvt_pk_bf16_f32', v(AQK + 8 + i), v(AW + 2 * i), v(AW + 2 * i + 1))
        A('ds_write_b128', v(FR), v(AQK + 8, 4), mods=f'offset:{L_O + 512*w}', tag='ow')
        stamp('p3')
        pfill(3)
        for i in (0, 2, 12, 14): A('v_mov_b64', v(AQK + i, 2), 0)
        for i in (0, 4): A('v_mov_b64', v(AV + i, 2), 0)
        stamp('p4')
        A.wait(lg=['ow']); A('s_barrier')
        A('ds_read_b128', v(AW, 4), v(LANE16), mods=f'offset:{L_O}', tag='oa0')
        A('ds_read_b128', v(AW + 4, 4), v(LANE16), mods=f'offset:{L_O+1024}', tag='oa1')
        pfill()
        A('s_cmp_eq_u32', sS, nsteps - 1)
        A('s_cbranch_scc1', L('last'))
        if dbg and env('FRZ'):
            A('s_cmp_lg_u32', sS, env('FRZ')); A('s_cbranch_scc1', L('nofrz'))
            A('s_memtime', 's[100:101]'); dump(); A('v_mov_b32', v(AV), 0)
            A.label(L('nofrz'))
        for i in (8, 10): A('v_mov_b64', v(AQK + i, 2), 0)
        for i in (2, 6): A('v_mov_b64', v(AV + i, 2), 0)
        assert not pf
        stamp(3)
        accs = [AQK, AQK + 4, AQK + 8, AQK + 12, AV, AV + 4]
        tacc = {t: t % 6 for t in range(10)}
        def post_ops(t):
            r_ = accs[tacc[t]]; st = accs[tacc[t & ~1]] + (t & 1)
            ops = [lambda: A('v_add_f32', v(r_), v(r_), v(r_ + 2)), lambda: A('v_add_f32', v(r_ + 1), v(r_ + 1), v(r_ + 3)),
                   lambda: A('v_cvt_pk_bf16_f32', v(st), v(r_), v(r_ + 1))]
            if t % 2 == 0: ops.append(lambda: A('v_and_or_b32', v(st), v(st), -2, sTAG))
            else:
                ops.append(lambda: A('buffer_store_dwordx2', v(st - 1, 2), v(PST2), WS, sPSTS[t >> 1], mods=f'offen {sc}'.strip(), tag='ps'))
                if t < 4:
                    for rr in (r_, r_ + 2, st + 1, st - 1): ops.append(lambda rr=rr: A('v_mov_b64', v(rr, 2), 0))
            return ops
        oside = {}
        def oat(n, fn): oside.setdefault(n, []).append(fn)
        for a_, b_ in [(ab[i] + k, ab[i + 1] + k) for i in range(3) for k in range(2)]:
            oat(a_, lambda b_=b_: fill(oslot[b_], oo[b_]))
        for n0, qi in (((cd, 4), (cd + 3, 0), (max(e_, cd + 6), 1)) if not env('NOHELD') else ()):
            oat(n0, lambda qi=qi: half_fill(qslot[qi], qk[qi], 0)); oat(n0 + 2, lambda qi=qi: half_fill(qslot[qi], qk[qi], 1))
        vq_ = []
        for n, f in enumerate(oo):
            if n % 2 == 0:
                pr = [oo[n], oo[n + 1]]
                A.wait(lg=(['oa0'] if n == 0 else ['oa1'] if n == 2 else []) + [('F', x) for x in pr if x in lds_off], vm=[('F', x) for x in pr if x in strm_idx])
            if f[1] == 0 and f[2] >= 6:
                need = {6: 1, 7: 1, 8: 3, 9: 3}[f[2]]
                while any(t == need for t, _ in vq_): vq_.pop(0)[1]()
            stamp(f'o{n}')
            smf(accs[tacc[f[2]]], AW + 4 * f[1], f, oslot.get(n))
            for fn in oside.get(n, []): fn()
            for t in range(10):
                if 4 * (t >> 1) + 2 + (t & 1) + 3 == n: vq_ += [(t, o_) for o_ in post_ops(t)]
            for _ in range(3):
                if vq_: vq_.pop(0)[1]()
        while vq_: vq_.pop(0)[1]()
        for t in (8, 9):
            for o_ in post_ops(t): o_()
        stamp(4)
        if env('ACKT'): A('s_waitcnt', 'vmcnt(0)'); stamp('ack')
        if w in (1, 2) and env('P1POS', 0) == 0: fill(qslot[2], qk[2]); fill(qslot[3], qk[3])
        if w == 3: w3upd(); w3in(sFOV)
        A('s_barrier')
        ra = AV + 4
        setreg = [AQK, AQK + 8 if ng == 1 else SL[2]]
        A('s_mov_b32', sSPIN, 0)
        A('v_bfe_u32', v(ra + 1), v(LANE16), 4, 1); A('v_lshlrev_b32', v(ra + 1), 4, v(ra + 1))
        A('v_mov_b32', v(ra + 2), '0x3f80'); A('v_lshlrev_b32', v(ra + 1), v(ra + 1), v(ra + 2))
        A('v_bfe_u32', v(ra + 2), v(LANE16), 5, 3)
        def rloads(st):
            for i in range(2 * ng):
                A('buffer_load_dwordx4', v(setreg[st] + 4 * i, 4), v(LANE16), WS, sPLD if i < 2 else sPLD1, mods=f'offen offset:{(i&1)*1024} sc1')
        sel = lambda jj: (A('v_cmp_eq_u32', 'vcc', jj, v(ra + 2)), A('v_cndmask_b32', v(AW + jj), 0, v(ra + 1), 'vcc'))
        for jj in range(RDELAY): sel(jj % (4 * ng))
        rloads(0)
        for jj in range(max(RGAP, 4 * ng - RDELAY)): sel((RDELAY + jj) % (4 * ng))
        rloads(1)
        for jj in range(env('RFILL', 0)): sel(jj % (4 * ng))
        A.label(L('rloop'))
        for st in range(2):
            A('s_waitcnt', f'vmcnt({2*ng})')
            stamp('r1')
            for i in range(2 * ng):
                b = setreg[st] + 4 * i
                A('v_mfma_f32_16x16x32_bf16', v(AV, 4), v(b, 4), v(AW + 4 * (i >> 1), 4), '0' if i == 0 else v(AV, 4))
                if i == 0:
                    A('v_and_b32', v(ra + 1), v(b), v(b + 2)); A('v_or_b32', v(ra + 2), v(b), v(b + 2))
                else:
                    A('v_bitop3_b32', v(ra + 1), v(ra + 1), v(b), v(b + 2), mods='bitop3:0x80'); A('v_or3_b32', v(ra + 2), v(ra + 2), v(b), v(b + 2))
            A('v_bitop3_b32', v(ra + 1), v(ra + 1), v(ra + 2), sTAG, mods='bitop3:0x4e')
            A('v_and_b32', v(ra + 1), 1, v(ra + 1))
            A('v_cmp_ne_u32', 'vcc', 0, v(ra + 1))
            A('s_cbranch_vccz', L('rok'))
            rloads(st)
        A('s_cmp_lg_u32', sDEAD, 0); A('s_cbranch_scc1', L('rok'))
        A('s_add_u32', sSPIN, sSPIN, 1)
        A('s_cmp_lt_u32', sSPIN, SPIN_MAX); A('s_cbranch_scc1', L('rloop'))
        A('s_mov_b32', sDEAD, 1)
        A.label(L('rok'))
        A('v_permlane32_swap_b32', v(AV), v(AV + 2)); A('v_permlane32_swap_b32', v(AV + 1), v(AV + 3))
        add2(AV, AV, AV + 2)
        A('v_permlane16_swap_b32', v(AV), v(AV + 1)); A('v_add_f32', v(AV), v(AV), v(AV + 1))
        A('v_cvt_pk_bf16_f32', v(AV), v(AV), v(AV))
        A('buffer_store_short', v(AV), v(RDEST), WS, sMEMc, mods=f'offen {sc}'.strip())
        stamp(5)
        if not env('LATEPO', 0):
            A('v_mov_b32', v(AV + 1), hex(SENT))
            A('buffer_store_short', v(AV + 1), v(RDEST), WS, sMEMo, mods=f'offen {sc}'.strip())
        A.reset_counts()
        xl = 0
        if w in (1, 2) and env('P1POS', 0) == 1: fill(qslot[2], qk[2]); fill(qslot[3], qk[3]); xl = 4
        kdma()
        pub_read(AV, AV + 4)
        A('s_add_u32', sT2, sMEMc, 1024 * KOWN[w])
        A('s_xor_b32', sTAG, sTAG, 1); A('s_add_u32', sKM, sKM, 32 * 4096)
        A('s_xor_b32', sMEMc, sMEMc, sDMEM); A('s_xor_b32', sMEMo, sMEMo, sDMEM)
        if not X_NOADV: A('s_add_u32', sVT, sVT, 32 * 8192)
        A('s_add_u32', sS, sS, 1)
        A('s_mov_b32', sSPIN, 0)
        A('s_mov_b32', 'm0', L_MEM + 1024 * KOWN[w])
        def gdma():
            for j in range(nd): A('buffer_load_dwordx4', v(LANE16), WS, sT2, mods=f'offen offset:{1024*j} sc1 lds')
        if w == 3: w3prep()
        for i in range(GDELAY - (8 if w == 3 else 0)): A('v_mov_b32', v(AW + (i % 8)), 0)
        gdma()
        A('s_waitcnt', f'vmcnt({(3 if env("LATEPO", 0) else 4) + nd + xl})')
        if w in (0, 3): fill(qslot[2], qk[2]); fill(qslot[3], qk[3])
        for i in range(0, 16, 2): A('v_mov_b64', v(AQK + i, 2), 0)
        for i in range(env('GGAP', 24)): A('v_mov_b32', v(AW + (i % 8)), 0)
        gdma()
        A.label(L('gloop'))
        A('s_waitcnt', f'vmcnt({nd})')
        for j in range(nd): A('ds_read_b128', v(ownreg[j], 4), v(LANE16), mods=f'offset:{L_MEM + 1024*KO[j]}')
        gdma()
        gregs = [r_ + i for r_ in ownreg for i in range(4)]
        A('s_waitcnt', f'lgkmcnt({nd-1})')
        m0_ = AQK + 15
        A('v_pk_max_u16', v(m0_), v(gregs[0]), v(gregs[1]))
        for i in range(2, len(gregs)):
            if i % 4 == 0: A('s_waitcnt', f'lgkmcnt({nd-1-i//4})')
            A('v_pk_max_u16', v(m0_), v(m0_), v(gregs[i]))
        emit_check(A, m0_, AQK + 14, gregs, L('gloop'), L('loop'), define=False)
        A('s_branch', L('loop'))
        A.label(L('last'))
        A.reset_counts()
        pub_read(AV, AV + 4); A('s_add_u32', sKM, sKM, 32 * 4096)
        A('s_waitcnt', 'lgkmcnt(0)')
        A('buffer_store_dwordx4', v(AV, 4), v(LANE16), WS, sKM, mods='offen sc1')
        A('s_waitcnt', 'vmcnt(0)')
        A('s_barrier')
        if w == 3:
            A('v_mov_b32', v(XR), nsteps)
            A('s_mov_b64', 'exec', 1)
            A('buffer_store_dword', v(XR), 'off', WS, sFLO, mods='sc1')
            A('s_mov_b64', 'exec', -1)
        if dbg and not env('FRZ'): dump()
        A('s_waitcnt', 'vmcnt(0) lgkmcnt(0)')
        A('s_endpgm')

def emit_check(A, m0, m1, regs, retry, ok, define=True):
    A('v_pk_max_u16', v(m0), v(m0), v(m0), mods='op_sel:[0,1] op_sel_hi:[1,0]')
    A('v_cmp_le_u32', 'vcc', '0xff810000', v(m0))
    A('s_cbranch_vccz', ok)
    A('s_add_u32', sSPIN, sSPIN, 1)
    A('s_cmp_lt_u32', sSPIN, 64); A('s_cbranch_scc1', retry)
    A('s_cmp_lg_u32', sDEAD, 0); A('s_cbranch_scc1', ok)
    A('v_mov_b32', v(m0), -1)
    for r_ in regs:
        A('v_xor_b32', v(m1), hex(SENT), v(r_)); A('v_pk_min_u16', v(m0), v(m0), v(m1))
    A('v_pk_min_u16', v(m0), v(m0), v(m0), mods='op_sel:[0,1] op_sel_hi:[1,0]')
    A('v_mov_b32', v(m1), 0)
    A('v_cmp_eq_u32', 'vcc', 0, v(m0))
    A('s_cbranch_vccz', ok)
    A('s_sleep', 1)
    A('s_cmp_lt_u32', sSPIN, SPIN_MAX); A('s_cbranch_scc1', retry)
    A('s_mov_b32', sDEAD, 1)
    if define: A.label(ok)
```

```python
from asmgen import *
from layout import *
from chain import tstamp, sMODE, WS, SQ, SK, SV, SO, SX, SM0, SW1, SW2, SOUT, SDBG, f32bits, SPIN_MAX
sW, sI, sL, sU = 's52', 's53', 's54', 's55'
sIN, sOUT_, sFI, sFO, sPROG, sPEND, sLB, sNX, sA, sB, sC_, sD = ['s%d' % i for i in range(56, 68)]
sSPIN, sDEAD = 's68', 's69'
sT0, sT1, sT2, sT3 = 's70', 's71', 's72', 's73'
NU = 64
CHK1 = [int(x) for x in __import__('os').environ.get('CHK1', '10,20,30').split(',')]
import os
DBG = int(os.environ.get('DBG', 0))
LN_, L16, FOFF = 0, 1, 2
FV = 4
TM = 8

def common_setup(A, nlines):
    A('v_and_b32', v(LN_), 63, 'v0'); A('v_lshlrev_b32', v(L16), 4, v(LN_))
    A('v_min_u32', v(FOFF), nlines - 1, v(LN_)); A('v_lshlrev_b32', v(FOFF), 7, v(FOFF))
    A('s_mov_b32', sU, 0); A('s_mov_b32', sPROG, 0); A('s_mov_b32', sPEND, 0); A('s_mov_b32', sDEAD, 0)

def ph(A, i):
    if DBG: A('s_memtime', s(2 * i + (4 if i < 2 else 90 - 4), 2)) if False else None
PHR = [4, 6, 88, 94, 100]
def ph(A, i):
    if DBG: A('s_memtime', s(PHR[i], 2))
def ph_dump(A, tmp=3):
    if not DBG: return
    sk = A.newlabel('phd')
    A('s_cmp_lg_u32', sU, 40); A('s_cbranch_scc1', sk)
    A('s_lshr_b32', 's92', sFO, 7); A('s_lshl_b32', 's92', 's92', 2); A('s_bfe_u32', 's93', sFO, 0x20002); A('s_add_u32', 's92', 's92', 's93')
    A('s_lshl_b32', 's92', 's92', 6); A('s_add_u32', 's92', 's92', DBGT + (3 << 20))
    A('s_waitcnt', 'lgkmcnt(0)')
    for i, r in enumerate(PHR):
        A('v_mov_b32', v(tmp), s(r)); A('buffer_store_dword', v(tmp), 'off', WS, 's92', mods=f'offset:{4*i}'); A.vm.pop()
    A.label(sk)

def flag_load(A, soff=sFI, reg=FV, voff=FOFF, n=4):
    op = {1: 'buffer_load_dword', 2: 'buffer_load_dwordx2', 4: 'buffer_load_dwordx4'}[n]
    A(op, v(reg, n), v(voff), WS, soff, mods='offen sc1', tag='fl')

def flag_min(A, dst, reg=FV, n=4, lanes=64, floor=None):
    if n == 4:
        A('v_min3_u32', v(reg), v(reg), v(reg + 1), v(reg + 2)); A('v_min_u32', v(reg), v(reg), v(reg + 3))
    elif n == 2:
        A('v_min_u32', v(reg), v(reg), v(reg + 1))
    if floor is not None: A('v_max_u32', v(reg), v(reg), v(floor))
    if lanes > 1:
        for sh in (1, 2, 4, 8): A('v_min_u32_dpp', v(reg), v(reg), v(reg), mods=f'row_ror:{sh} row_mask:0xf bank_mask:0xf')
    A('v_readlane_b32', sT0, v(reg), 0)
    if lanes > 16:
        assert lanes <= 32
        A('v_readlane_b32', sT1, v(reg), 16); A('s_min_u32', sT0, sT0, sT1)
    A('s_max_u32', dst, dst, sT0)

def poll(A, pre, need, prog=sPROG, soff=sFI, reg=FV, voff=FOFF, n=4, lanes=64, floor=None):
    ok = A.newlabel(pre + '_ok'); lp = A.newlabel(pre + '_lp')
    A('s_cmp_gt_u32', prog, need); A('s_cbranch_scc1', ok)
    A('s_mov_b32', sSPIN, 0)
    A.label(lp)
    flag_load(A, soff, reg, voff, n); A.vm.pop()
    A('s_waitcnt', 'vmcnt(0)')
    flag_min(A, prog, reg, n, lanes, floor)
    A('s_cmp_gt_u32', prog, need); A('s_cbranch_scc1', ok)
    A('s_cmp_lg_u32', sDEAD, 0); A('s_cbranch_scc1', ok)
    A('s_sleep', 2)
    A('s_add_u32', sSPIN, sSPIN, 1); A('s_cmp_lt_u32', sSPIN, SPIN_MAX); A('s_cbranch_scc1', lp)
    A('s_mov_b32', sDEAD, 1)
    A.label(ok)

def publish(A, val, tmp=3, loc=False):
    A('v_mov_b32', v(tmp), val)
    A('s_mov_b64', 'exec', 1)
    if loc: local_flag(A, lambda md: A('buffer_store_dword', v(tmp), 'off', WS, sFO, mods=md))
    else: A('buffer_store_dword', v(tmp), 'off', WS, sFO, mods='sc1')
    A.vm.pop()
    if DBG: tstamp(A, sFO, val, tmp)
    A('s_mov_b64', 'exec', -1)

def local(A, fn):
    fn('sc1')

def local_flag(A, fn):
    sl = A.newlabel('loc_s'); e = A.newlabel('loc_e')
    A('s_cmp_lg_u32', sMODE, 0); A('s_cbranch_scc1', sl)
    n0 = len(A.vm); fn(''); del A.vm[n0:]
    A('s_branch', e)
    A.label(sl)
    fn('sc1')
    A.label(e)

def flag_out_addr(A, kind):
    A('s_mul_i32', sFO, sL, FL_LAYER); A('s_lshl_b32', sT0, sI, 7); A('s_add_u32', sFO, sFO, sT0)
    A('s_lshl_b32', sT0, sW, 2); A('s_add_u32', sFO, sFO, sT0); A('s_add_u32', sFO, sFO, kind)

def load_weights(A, srd, stride, rowpart, sbase, soffs, dst, perm):
    SRC, TR0, TR1 = TM, TM + 1, TM + 2
    t = [TM + 3 + i for i in range(6)]
    A('v_lshrrev_b32', v(t[0]), 5, v(LN_)); A('v_mul_u32_u24', v(t[0]), rowpart, v(t[0]))
    A('v_bfe_u32', v(t[1]), v(LN_), 3, 2); A('v_add_u32', v(t[0]), v(t[0]), v(t[1]))
    A('s_mov_b32', sT0, stride); A('v_mul_lo_u32', v(t[0]), v(t[0]), sT0)
    A('v_bfe_u32', v(t[1]), v(LN_), 4, 1); A('v_lshlrev_b32', v(t[1]), 2, v(t[1])); A('v_and_b32', v(t[2]), 7, v(LN_)); A('v_xor_b32', v(t[1]), v(t[1]), v(t[2]))
    A('v_lshl_add_u32', v(t[0]), v(t[1]), 4, v(t[0])); A('v_add_u32', v(SRC), sbase, v(t[0]))
    A('s_mul_i32', sLB, sW, 40960)
    A('v_lshrrev_b32', v(t[0]), 5, v(LN_)); A('v_lshlrev_b32', v(t[0]), 10, v(t[0]))
    A('v_bfe_u32', v(t[1]), v(LN_), 2, 2); A('v_lshl_add_u32', v(t[0]), v(t[1]), 7, v(t[0]))
    A('v_bfe_u32', v(t[1]), v(LN_), 3, 1); A('v_lshl_add_u32', v(t[0]), v(t[1]), 6, v(t[0]))
    A('v_bfe_u32', v(t[1]), v(LN_), 4, 1); A('v_lshl_add_u32', v(t[0]), v(t[1]), 5, v(t[0]))
    if perm:
        A('v_and_b32', v(t[1]), 1, v(LN_)); A('v_lshl_add_u32', v(t[0]), v(t[1]), 4, v(t[0]))
        A('v_bfe_u32', v(t[1]), v(LN_), 1, 1); A('v_lshl_add_u32', v(t[0]), v(t[1]), 3, v(t[0]))
    else:
        A('v_and_b32', v(t[1]), 3, v(LN_)); A('v_lshl_add_u32', v(t[0]), v(t[1]), 3, v(t[0]))
    A('v_add_u32', v(TR0), sLB, v(t[0])); A('v_xor_b32', v(TR1), 64, v(TR0))
    n_st = len(soffs); depth = 20
    def dma(n):
        for b in range(2):
            A('s_add_u32', 'm0', sLB, (n % depth) * 2048 + b * 1024)
            A('s_mov_b32', sT0, soffs[n][b])
            A('buffer_load_dwordx4', v(SRC), srd, sT0, mods='offen lds', tag=('W', n))
    for n in range(min(depth, n_st)): dma(n)
    for n in range(n_st):
        A.wait(vm=[('W', n)])
        for T in range(2):
            for hq in range(2):
                A('ds_read_b64_tr_b16', R(dst(n, T) + 2 * hq, 2), v(TR0 if T == 0 else TR1), mods=f'offset:{(n % depth)*2048 + 512*hq}', tag=('T', n))
        if n >= 1 and n - 1 + depth < n_st:
            A.wait(lg=[('T', n - 1)]); dma(n - 1 + depth)
    A.wait(vm=0, lg=0)

def emit_gemm1(A, kind, ready):
    P = f'G1{kind}_'
    A.label(P + 'entry'); A.reset_counts()
    RING, ACC, STG, WR = 64, 128, 160, 192
    AD, SA = 32, 33
    wreg = lambda n, T: WR + (2 * n + T) * 4
    common_setup(A, 2)
    FLR = 34
    A('v_mov_b32', v(FLR), 0)
    if kind != 'f1':
        A('s_cmp_eq_u32', sL, 0); A('s_cselect_b32', sT0, 15, 1); A('v_min_u32', v(FOFF), sT0, v(LN_))
        A('v_lshrrev_b32', v(FLR), 1, v(FOFF)); A('v_lshlrev_b32', v(FOFF), 7, v(FOFF))
    if kind == 'f1':
        A('s_lshl_b32', sT1, sI, 2); A('s_add_u32', sT1, sT1, sW)
        A('s_lshl_b32', sA, sT1, 7)
        A('s_cmp_lt_u32', sT1, 27); A('s_cselect_b32', sA, sA, '0x20000000')
        A('s_mul_i32', sOUT_, sL, LAYER_H); A('s_lshl_b32', sT1, sT1, 12); A('s_add_u32', sOUT_, sOUT_, sT1); A('s_add_u32', sOUT_, sOUT_, HF)
        load_weights(A, SW1, 3456, 4, sA, [(16 * n * 3456, (16 * n + 8) * 3456) for n in range(40)], wreg, False)
        A('s_mul_i32', sIN, sL, LAYER_X); A('s_add_u32', sIN, sIN, XN1)
        A('s_mul_i32', sFI, sL, FL_LAYER); A('s_add_u32', sFI, sFI, FL_LNA)
        flag_out_addr(A, FL_F1); nl = 2; ostep = UH
        A('v_mov_b32', v(SA), v(L16))
    else:
        A('s_mul_i32', sT1, sI, 43); A('s_lshr_b32', sB, sT1, 7)
        A('s_mul_i32', sT1, sB, 3); A('s_sub_u32', sC_, sI, sT1)
        A('s_lshl_b32', sA, sB, 9); A('s_lshl_b32', sT1, sW, 7); A('s_add_u32', sA, sA, sT1)
        soffs = [(16 * n * 8192, (16 * n + 8) * 8192) for n in range(40)]
        if kind == 'v':
            load_weights(A, SV, 8192, 4, sA, soffs, wreg, False)
        else:
            A('s_cmp_eq_u32', sC_, 0)
            A('s_cselect_b32', 's76', 's12', 's16'); A('s_cselect_b32', 's77', 's13', 's17'); A('s_mov_b32', 's78', hex(640 * 4096 * 2)); A('s_mov_b32', 's79', '0x20000')
            load_weights(A, 's[76:79]', 8192, 4, sA, soffs, wreg, False)
        A('s_mul_i32', sOUT_, sL, LAYER_F); A('s_lshl_b32', sT1, sB, 14); A('s_add_u32', sOUT_, sOUT_, sT1)
        A('s_lshr_b32', sT1, sW, 1); A('s_lshl_b32', sT1, sT1, 13); A('s_add_u32', sOUT_, sOUT_, sT1)
        A('s_and_b32', sT1, sW, 1)
        if kind == 'v':
            A('s_lshl_b32', sT1, sT1, 12); A('s_add_u32', sOUT_, sOUT_, sT1); A('s_add_u32', sOUT_, sOUT_, VT)
            A('s_mul_i32', 's74', sL, LAYER_KM); A('s_lshl_b32', sT1, sB, 13); A('s_add_u32', 's74', 's74', sT1)
            A('s_lshl_b32', sT1, sW, 11); A('s_add_u32', 's74', 's74', sT1); A('s_add_u32', 's74', 's74', KM)
            for i in range(4): A('v_mov_b32', v(36 + i), hex(SENT))
        else:
            A('s_lshl_b32', sT1, sT1, 11); A('s_add_u32', sOUT_, sOUT_, sT1)
            A('s_cmp_eq_u32', sC_, 0); A('s_cselect_b32', sT1, QF - KF, 0); A('s_add_u32', sOUT_, sOUT_, sT1); A('s_add_u32', sOUT_, sOUT_, KF)
        A('s_mul_i32', sIN, sL, LAYER_X); A('s_add_u32', sIN, sIN, XN)
        A('s_mul_i32', sFI, sL, FL_LAYER); A('s_add_u32', sFI, sFI, FL_XN)
        flag_out_addr(A, FL_QKV); nl = 16; ostep = 32 * 8192
        A('v_bfe_u32', v(TM), v(LN_), 4, 1); A('v_lshlrev_b32', v(TM), 10 if kind == 'v' else 12, v(TM))
        A('v_lshrrev_b32', v(TM + 1), 5, v(LN_)); A('v_lshl_add_u32', v(TM), v(TM + 1), 8, v(TM))
        A('v_and_b32', v(TM + 1), 15, v(LN_)); A('v_lshl_add_u32', v(SA), v(TM + 1), 4, v(TM))
    A('s_mul_i32', sT0, sW, 10240); A('s_add_u32', sIN, sIN, sT0); A('s_mov_b32', sLB, sT0)
    A('s_mov_b32', sD, 0)
    ready(A)
    A('s_barrier')
    def dma_in():
        for i in range(10):
            if i % 4 == 0:
                A('s_add_u32', 'm0', sLB, i * 1024); A('s_add_u32', sT0, sIN, i * 1024)
            A('buffer_load_dwordx4', v(L16), WS, sT0, mods=f'offen offset:{(i%4)*1024} sc1 lds'); A.vm.pop()
        A('s_add_u32', sIN, sIN, UX)
        A('s_add_u32', sT0, sLB, UX); A('s_sub_u32', sT1, sLB, UX); A('s_cmp_ge_u32', sLB, UX); A('s_cselect_b32', sLB, sT1, sT0)
    A.label(P + 'fetch')
    poll(A, P + 'p', sU, lanes=nl, floor=FLR)
    dma_in()
    A('s_waitcnt', 'vmcnt(0)')
    flag_load(A)
    A.label(P + 'top')
    A.reset_counts()
    NST = 4 if kind != 'v' else 6
    ph_dump(A); ph(A, 0)
    A('s_waitcnt', f'vmcnt({NST+1})')
    A('s_barrier')
    ph(A, 1)
    A('v_add_u32', v(AD), sD, v(L16))
    A('s_xor_b32', sD, sD, UX)
    D = 8
    def rd(k): A('ds_read_b128', v(RING + 4 * (k % D), 4), v(AD), mods=f'offset:{k*1024}', tag=('A', k))
    for k in range(D): rd(k)
    A('s_mov_b32', sNX, 0)
    for k in range(40):
        A.wait(lg=[('A', k)])
        x = v(RING + 4 * (k % D), 4)
        for T in range(2):
            wv = R(wreg(k, T), 4); acc = v(ACC + 16 * T, 16)
            a_, b_ = (x, wv) if kind == 'v' else (wv, x)
            A('v_mfma_f32_32x32x16_bf16', acc, a_, b_, '0' if k == 0 else acc)
        if k + D < 40: rd(k + D)
        if k in CHK1:
            sk = A.newlabel(P + 'chk')
            A('s_cmp_lg_u32', sNX, 0); A('s_cbranch_scc1', sk)
            A('s_waitcnt', 'vmcnt(0)')
            if k == CHK1[0]:
                s2 = A.newlabel(P + 'nop')
                A('s_cmp_eq_u32', sPEND, 0); A('s_cbranch_scc1', s2)
                publish(A, sU, loc=(kind == 'f1')); A('s_mov_b32', sPEND, 0)
                A.label(s2)
            flag_min(A, sPROG, lanes=nl, floor=FLR)
            s3 = A.newlabel(P + 'nopf')
            A('s_add_u32', sT2, sU, 1); A('s_min_u32', sPROG, sPROG, NU); A('s_cmp_gt_u32', sPROG, sT2); A('s_cbranch_scc0', s3)
            dma_in()
            A('s_mov_b32', sNX, 1)
            A('s_branch', sk)
            A.label(s3)
            if k != CHK1[-1]: flag_load(A); A.vm.pop()
            A.label(sk)
    ph(A, 4)
    flag_load(A)
    if kind == 'v':
        for i in range(2): A('buffer_store_dwordx4', v(36, 4), v(L16), WS, 's74', mods=f'offen offset:{1024*i} sc1')
        A('s_add_u32', 's74', 's74', 32 * 4096)
    for T in range(2):
        ac = ACC + 16 * T
        for i in range(2):
            st = STG + 8 * T + 4 * i
            if kind == 'qk':
                for c in range(4): A('v_cvt_pk_bf16_f32', v(st + c), v(ac + 4 * i + c), v(ac + 8 + 4 * i + c))
                off = T * 1024 + i * 512
            elif kind == 'v':
                for hh in range(2):
                    for c in range(2): A('v_cvt_pk_bf16_f32', v(st + 2 * hh + c), v(ac + 8 * hh + 4 * i + 2 * c), v(ac + 8 * hh + 4 * i + 2 * c + 1))
                off = T * 2048 + i * 512
            else:
                for c in range(4):
                    A('v_cvt_pk_bf16_f32', v(st + c), v(ac + 8 * i + 2 * c), v(ac + 8 * i + 2 * c + 1))
                    A('v_pk_max_i16', v(st + c), v(st + c), 0)
                off = T * 2048 + i * 1024
            if kind == 'f1': local(A, lambda md: A('buffer_store_dwordx4', v(st, 4), v(SA), WS, sOUT_, mods=f'offen offset:{off} {md}'))
            else: A('buffer_store_dwordx4', v(st, 4), v(SA), WS, sOUT_, mods=f'offen offset:{off} sc1')
    A('s_add_u32', sOUT_, sOUT_, ostep)
    A('s_add_u32', sU, sU, 1); A('s_mov_b32', sPEND, 1)
    A('s_cmp_lg_u32', sNX, 0); A('s_cbranch_scc1', P + 'top')
    A('s_waitcnt', 'vmcnt(0)')
    publish(A, sU, loc=(kind == 'f1')); flag_min(A, sPROG, lanes=nl, floor=FLR); A('s_mov_b32', sPEND, 0)
    A('s_cmp_lt_u32', sU, NU); A('s_cbranch_scc1', P + 'fetch')
    A('s_endpgm')

def emit_gemm2(A, kind, ready):
    P = f'G2{kind}_'
    A.label(P + 'entry'); A.reset_counts()
    nk = 32 if kind == 'op' else 27
    RING, ACC, RT = 64, 192, 224
    LW, LR, RES, SA = 32, 33, 36, 34
    wreg = lambda n, T: 256 + (2 * n + T) * 4
    if kind == 'op':
        common_setup(A, 1); nl = 1
        A('s_cmp_ge_u32', sI, 10); A('s_cselect_b32', sB, 1, 0)
        A('s_mul_i32', sT1, sB, 10); A('s_sub_u32', sC_, sI, sT1)
        A('s_lshl_b32', sT1, sB, 2); A('s_add_u32', sT1, sT1, sW)
        A('s_mul_i32', sA, sT1, 4 * 163840); A('s_lshl_b32', sT2, sC_, 7); A('s_add_u32', sA, sA, sT2)
        A('s_mul_i32', sIN, sL, LAYER_F); A('s_lshl_b32', sT2, sT1, 15); A('s_add_u32', sIN, sIN, sT2); A('s_add_u32', sIN, sIN, OF)
        A('s_mul_i32', sFI, sL, FL_LAYER); A('s_lshl_b32', sT2, sT1, 7); A('s_add_u32', sFI, sFI, sT2); A('s_add_u32', sFI, sFI, FL_ATT)
        soffs = [[(128 * (n >> 3) + 32 * ((n & 7) >> 1) + 8 * (n & 1) + 4 * b) * 1280 for b in range(2)] for n in range(32)]
        load_weights(A, SO, 1280, 16, sA, [tuple(x) for x in soffs], wreg, True)
        istep = 32 * 8192
        A('s_mul_i32', sOUT_, sL, LAYER_OP); A('s_mul_i32', sT2, sB, UP); A('s_add_u32', sOUT_, sOUT_, sT2)
        A('s_lshl_b32', sT2, sC_, 12); A('s_add_u32', sOUT_, sOUT_, sT2); A('s_lshl_b32', sT2, sW, 10); A('s_add_u32', sOUT_, sOUT_, sT2)
        A('s_add_u32', sOUT_, sOUT_, OPART)
        flag_out_addr(A, FL_OP); ostep = 2 * UP
    else:
        common_setup(A, 7); nl = 7
        A('s_mul_i32', sA, sW, 27 * 16 * 1280); A('s_lshl_b32', sT2, sI, 7); A('s_add_u32', sA, sA, sT2)
        A('s_mul_i32', sIN, sL, LAYER_H); A('s_mul_i32', sT2, sW, 27 * 1024); A('s_add_u32', sIN, sIN, sT2); A('s_add_u32', sIN, sIN, HF)
        A('s_mul_i32', sFI, sL, FL_LAYER); A('s_add_u32', sFI, sFI, FL_F1)
        load_weights(A, SW2, 1280, 8, sA, [((16 * n) * 1280, (16 * n + 4) * 1280) for n in range(27)], wreg, True)
        istep = UH
        A('s_lshl_b32', sT2, sI, 12); A('s_lshl_b32', sT3, sW, 10); A('s_add_u32', sT2, sT2, sT3)
        A('s_mul_i32', sB, sL, LAYER_X); A('s_add_u32', sB, sB, sT2); A('s_add_u32', sB, sB, XRES)
        A('s_mul_i32', 's74', sL, LAYER_OP); A('s_add_u32', 's74', 's74', sT2); A('s_add_u32', 's74', 's74', OPART)
        A('s_add_u32', sOUT_, sT2, XRES + LAYER_X)
        A('s_lshl_b32', sT2, sI, 7); A('s_lshl_b32', sT3, sW, 5); A('s_add_u32', sC_, sT2, sT3)
        A('v_and_b32', v(TM), 31, v(LN_)); A('v_mul_u32_u24', v(TM), 1280, v(TM)); A('v_lshrrev_b32', v(TM + 1), 5, v(LN_)); A('v_lshl_add_u32', v(SA), v(TM + 1), 4, v(TM))
        flag_out_addr(A, FL_F2); ostep = UX
        A('v_and_b32', v(TM), 31, v(LN_)); A('v_mul_u32_u24', v(TM), 144, v(TM)); A('v_lshl_add_u32', v(TM), v(TM + 1), 4, v(TM))
        A('s_lshl_b32', sT2, sW, 5); A('s_add_u32', sT2, sT2, 65536); A('v_add_u32', v(50), sT2, v(TM))
        A('v_lshrrev_b32', v(TM), 3, v(LN_)); A('v_and_b32', v(TM + 1), 7, v(LN_)); A('v_lshlrev_b32', v(TM + 1), 4, v(TM + 1))
        A('v_mad_u32_u24', v(51), v(TM), 36, 0); A('v_lshl_add_u32', v(51), v(51), 2, v(TM + 1))
        A('s_mul_i32', sT2, sW, 8 * 144); A('s_add_u32', sT2, sT2, 65536); A('v_add_u32', v(51), sT2, v(51))
        A('v_mul_u32_u24', v(TM), 1280, v(TM)); A('v_add_u32', v(52), v(TM), v(TM + 1))
        A('s_lshl_b32', 's75', sI, 7); A('s_mul_i32', sT2, sW, 8 * 1280); A('s_add_u32', 's75', 's75', sT2)
    A('s_lshl_b32', sT2, sW, 11); A('v_add_u32', v(LW), sT2, v(L16))
    A('s_lshl_b32', sT2, sW, 13); A('v_add_u32', v(LR), sT2, v(L16))
    ready(A)
    A('s_barrier')
    def ld(k, base):
        if k % 4 == 0: A('s_add_u32', sT3, base, k * 1024)
        A('buffer_load_dwordx4', v(RING + 4 * k, 4), v(L16), WS, sT3, mods=f'offen offset:{(k%4)*1024} sc1'); A.vm.pop()
    A.label(P + 'fetch')
    poll(A, P + 'p', sU, lanes=nl)
    W = int(os.environ.get('G2W', 10))
    for k in range(W): ld(k, sIN)
    A.label(P + 'top')
    A.reset_counts()
    ph_dump(A); ph(A, 0)
    def mm(k, cnt):
        A('s_waitcnt', f'vmcnt({cnt})')
        x = v(RING + 4 * k, 4)
        for T in range(2):
            acc = v(ACC + 16 * T, 16)
            A('v_mfma_f32_32x32x16_bf16', acc, R(wreg(k, T), 4), x, '0' if k == 0 else acc)
    if W % 4: A('s_add_u32', sT3, sIN, (W // 4) * 4096)
    for k in range(nk - W):
        mm(k, W - 1)
        if k == W:
            sk = A.newlabel(P + 'nop')
            A('s_cmp_eq_u32', sPEND, 0); A('s_cbranch_scc1', sk)
            publish(A, sU, loc=(kind == 'op')); A('s_mov_b32', sPEND, 0)
            A.label(sk)
        if k == 0 and kind == 'f2':
            A('buffer_load_dwordx4', v(RES, 4), v(L16), WS, sB, mods='offen sc1'); A.vm.pop()
            A('s_add_u32', sB, sB, UX)
        if k in (1, 2) and kind == 'f2':
            A('buffer_load_dwordx4', v(RES + 4 * k, 4), v(L16), WS, 's74', mods='offen sc1'); A.vm.pop()
            A('s_add_u32', 's74', 's74', UP)
        if k == 14 and kind == 'f2':
            for i in range(4):
                A('v_lshlrev_b32', v(TM), 16, v(RES + i)); A('v_and_b32', v(TM + 1), '0xffff0000', v(RES + i))
                for pp in (1, 2):
                    A('v_lshlrev_b32', v(TM + 2), 16, v(RES + 4 * pp + i)); A('v_and_b32', v(TM + 3), '0xffff0000', v(RES + 4 * pp + i))
                    A('v_add_f32', v(TM), v(TM), v(TM + 2)); A('v_add_f32', v(TM + 1), v(TM + 1), v(TM + 3))
                A('v_cvt_pk_bf16_f32', v(RES + i), v(TM), v(TM + 1))
        if k == nk - 2 * W: flag_load(A); A.vm.pop()
        ld(k + W, sIN)
    assert nk - W > W
    ph(A, 1)
    mm(nk - W, W - 1)
    flag_min(A, sPROG, lanes=nl)
    A('s_add_u32', sIN, sIN, istep)
    A('s_add_u32', sT2, sU, 1); A('s_cmp_gt_u32', sPROG, sT2); A('s_cselect_b32', sNX, 1, 0)
    A('s_cbranch_scc1', P + 'pf')
    for k in range(nk - W + 1, nk): mm(k, nk - 1 - k)
    A('s_branch', P + 'red')
    A.label(P + 'pf')
    ld(0, sIN)
    for k in range(nk - W + 1, nk):
        mm(k, W - 1); ld(k - (nk - W), sIN)
    A.label(P + 'red')
    ph(A, 3)
    flag_load(A); A.vm.pop()
    for q in range(4):
        sk = A.newlabel(P + 'own')
        A('s_cmp_eq_u32', sW, q); A('s_cbranch_scc1', sk)
        A('ds_write_b128', v(LW), v(ACC + 8 * q, 4), mods=f'offset:{q*8192}'); A('ds_write_b128', v(LW), v(ACC + 8 * q + 4, 4), mods=f'offset:{q*8192+1024}')
        A('s_branch', sk + 'e')
        A.label(sk)
        for i in range(0, 8, 2): A('v_mov_b64', v(RT + 24 + i, 2), v(ACC + 8 * q + i, 2))
        A.label(sk + 'e')
    A('s_waitcnt', 'lgkmcnt(0)'); A('s_barrier')
    A('s_lshl_b32', sT2, sW, 11)
    for j in range(1, 4):
        A('s_xor_b32', sT3, sT2, j * 2048); A('v_add_u32', v(TM + j), sT3, v(LR))
        A('ds_read_b128', v(RT + 8 * (j - 1), 4), v(TM + j)); A('ds_read_b128', v(RT + 8 * (j - 1) + 4, 4), v(TM + j), mods='offset:1024')
    A('v_xor_b32', v(LW), 32768, v(LW)); A('v_xor_b32', v(LR), 32768, v(LR))
    A('s_waitcnt', 'lgkmcnt(0)')
    O = RT + 24
    for i in range(8):
        A('v_add_f32', v(RT + i), v(RT + i), v(RT + 8 + i)); A('v_add_f32', v(O + i), v(O + i), v(RT + 16 + i))
    for i in range(8): A('v_add_f32', v(O + i), v(O + i), v(RT + i))
    if kind == 'op':
        for i in range(4): A('v_cvt_pk_bf16_f32', v(RT + i), v(O + 2 * i), v(O + 2 * i + 1))
        A('buffer_store_dwordx4', v(RT, 4), v(L16), WS, sOUT_, mods='offen sc1')
    else:
        for i in range(4):
            A('v_cvt_pk_bf16_f32', v(RT + i), v(O + 2 * i), v(O + 2 * i + 1))
            A('v_lshlrev_b32', v(O + 2 * i), 16, v(RT + i)); A('v_and_b32', v(O + 2 * i + 1), '0xffff0000', v(RT + i))
            A('v_lshlrev_b32', v(RT + 8), 16, v(RES + i)); A('v_and_b32', v(RT + 9), '0xffff0000', v(RES + i))
            A('v_add_f32', v(O + 2 * i), v(O + 2 * i), v(RT + 8)); A('v_add_f32', v(O + 2 * i + 1), v(O + 2 * i + 1), v(RT + 9))
            A('v_cvt_pk_bf16_f32', v(RT + 4 + i), v(O + 2 * i), v(O + 2 * i + 1))
        l1 = A.newlabel(P + 'l1')
        A('s_cmp_lg_u32', sL, 0); A('s_cbranch_scc1', l1)
        local(A, lambda md: A('buffer_store_dwordx4', v(RT + 4, 4), v(L16), WS, sOUT_, mods=f'offen {md}'))
        A('s_branch', l1 + 'e')
        A.label(l1)
        if int(os.environ.get('OUTT', 0)):
            A('ds_write_b128', v(50), v(RT + 4, 4)); A('s_waitcnt', 'lgkmcnt(0)'); A('s_barrier')
            A('ds_read_b128', v(RT + 8, 4), v(51)); A('s_waitcnt', 'lgkmcnt(0)')
            A('buffer_store_dwordx4', v(RT + 8, 4), v(52), SOUT, 's75', mods='offen ' + os.environ.get('OUTMOD', 'nt'))
            A('s_add_u32', 's75', 's75', 32 * 1280)
        else:
            A('buffer_store_dwordx4', v(RT + 4, 4), v(SA), SOUT, sC_, mods='offen ' + os.environ.get('OUTMOD', 'nt'))
            A('s_add_u32', sC_, sC_, 32 * 1280)
        A.label(l1 + 'e')
    ph(A, 4)
    A('s_add_u32', sOUT_, sOUT_, ostep)
    A('s_add_u32', sU, sU, 1); A('s_mov_b32', sPEND, 1)
    A('s_cmp_lg_u32', sNX, 0); A('s_cbranch_scc1', P + 'top')
    A('s_waitcnt', 'vmcnt(0)')
    publish(A, sU, loc=(kind == 'op')); flag_min(A, sPROG, lanes=nl); A('s_mov_b32', sPEND, 0)
    A('s_cmp_lt_u32', sU, NU); A('s_cbranch_scc1', P + 'fetch')
    A('s_endpgm')

def xlane_sum(A, r, t, rors):
    for sh in rors: A('v_add_f32_dpp', v(r), v(r), v(r), mods=f'row_ror:{sh} row_mask:0xf bank_mask:0xf')
    A('v_mov_b32', v(t), v(r)); A('v_permlane16_swap_b32', v(t), v(r)); A('v_add_f32', v(r), v(r), v(t))
    A('v_mov_b32', v(t), v(r)); A('v_permlane32_swap_b32', v(t), v(r)); A('v_add_f32', v(r), v(r), v(t))

def emit_ln(A, mode, ready, after=None):
    P = mode.upper() + '_'
    A.label(P + 'entry'); A.reset_counts()
    X, P0, P1, X1R, F, O = 44, 64, 104, 144, 164, 204
    VF, VP, LW = 32, 33, 34
    nl = {'ln0': 1, 'ln1': 10, 'lna': 20}[mode]
    step = 8 if mode == 'ln0' else 1
    common_setup(A, nl)
    A('v_lshrrev_b32', v(TM), 4, v(LN_)); A('v_and_b32', v(TM + 1), 15, v(LN_))
    A('v_lshlrev_b32', v(TM + 2), 9, v(TM)); A('v_lshl_add_u32', v(VF), v(TM + 1), 4, v(TM + 2))
    A('s_lshl_b32', sT0, sW, 2); A('v_add_u32', v(LW), sT0, v(L16))
    A('s_and_b32', sT3, sI, 1); A('s_lshl_b32', sT3, sT3, 8)
    A('s_mul_i32', sT2, sW, 20 * 512); A('s_add_u32', sT2, sT2, sT3)
    if mode == 'ln0':
        A('v_mul_u32_u24', v(TM + 2), 1280, v(TM + 1)); A('v_lshl_add_u32', v(VP), v(TM), 4, v(TM + 2))
        A('s_lshr_b32', sU, sI, 1); A('s_mul_i32', sT1, sU, UX); A('s_add_u32', sT2, sT2, sT1)
        A('s_add_u32', sB, sT2, XRES); A('s_add_u32', sOUT_, sT2, XN)
        A('s_mul_i32', sA, sT3, 80); A('s_add_u32', sA, sA, sT1); A('s_mul_i32', sT1, sW, 320); A('s_add_u32', sA, sA, sT1)
        A('s_mov_b32', sPROG, NU); A('s_mov_b32', 's78', sL); A('s_mov_b32', sL, 0)
        flag_out_addr(A, FL_XN); A('s_mov_b32', sL, 's78')
    elif mode == 'ln1':
        A('s_add_u32', sIN, sT2, XRES + LAYER_X); A('s_add_u32', sOUT_, sT2, XN + LAYER_X)
        A('s_mov_b32', sFI, FL_F2); A('s_mov_b32', sL, 1)
        flag_out_addr(A, FL_XN)
    else:
        A('s_mul_i32', sA, sL, LAYER_OP); A('s_add_u32', sA, sA, sT2); A('s_add_u32', sA, sA, OPART)
        A('s_mul_i32', sT1, sL, LAYER_X); A('s_add_u32', sT2, sT2, sT1)
        A('s_add_u32', sIN, sT2, XRES); A('s_add_u32', sOUT_, sT2, XN1); A('s_add_u32', sB, sT2, X1)
        A('s_mul_i32', sFI, sL, FL_LAYER); A('s_add_u32', sFI, sFI, FL_OP)
        flag_out_addr(A, FL_LNA)
    def f5(op, reg, base):
        for i in range(5):
            if i % 2 == 0: A('s_add_u32', sT3, base, i * 2048)
            A(op, v(reg + 4 * i, 4), v(VF), WS, sT3, mods=f'offen offset:{(i%2)*2048} sc1')
    nld = {'ln0': 5, 'ln1': 6, 'lna': 16}[mode]
    def loads():
        if mode == 'ln0':
            for i in range(5): A('buffer_load_dwordx4', v(X + 4 * i, 4), v(VP), SX, sA, mods=f'offen offset:{64*i}')
            A('s_add_u32', sA, sA, 8 * UX)
            return
        f5('buffer_load_dwordx4', X, sIN)
        if mode == 'lna':
            f5('buffer_load_dwordx4', P0, sA); A('s_add_u32', sA, sA, UP)
            f5('buffer_load_dwordx4', P1, sA); A('s_add_u32', sA, sA, UP)
        flag_load(A)
        A('s_add_u32', sIN, sIN, UX)
    a0, a1, tt = TM, TM + 2, TM + 4
    def xsum(region, mid=None):
        xlane_sum(A, a0, tt, [])
        A('ds_write_b32', v(LW), v(a0), mods=f'offset:{region}')
        if mid: mid()
        A('s_waitcnt', 'lgkmcnt(0)'); A('s_barrier')
        A('ds_read_b128', v(a0, 4), v(L16), mods=f'offset:{region}')
        A('s_waitcnt', 'lgkmcnt(0)')
        A('v_pk_add_f32', v(a0, 2), v(a0, 2), v(a0 + 2, 2)); A('v_add_f32', v(a0), v(a0), v(a0 + 1))
    ready(A)
    A.label(P + 'fetch')
    if mode != 'ln0': poll(A, P + 'p', sU, lanes=nl)
    loads()
    A.label(P + 'top')
    ph_dump(A); ph(A, 0)
    n = 20
    def unp(d, x):
        A('v_lshlrev_b32', v(d), 16, v(x)); A('v_and_b32', v(d + 1), '0xffff0000', v(x))
    fl = 0 if mode == 'ln0' else 1
    if mode == 'lna':
        A('s_waitcnt', 'vmcnt(6)')
        for i in range(n):
            unp(F + 2 * i, X + i); unp(TM + 6, P0 + i)
            A('v_pk_add_f32', v(F + 2 * i, 2), v(F + 2 * i, 2), v(TM + 6, 2))
    for i in range(n):
        if i % 4 == 0: A('s_waitcnt', f'vmcnt({4 - i//4 + fl})')
        if mode == 'lna':
            unp(TM + 6, P1 + i)
            A('v_pk_add_f32', v(F + 2 * i, 2), v(F + 2 * i, 2), v(TM + 6, 2))
            A('v_cvt_pk_bf16_f32', v(X1R + i), v(F + 2 * i), v(F + 2 * i + 1))
            unp(F + 2 * i, X1R + i)
        else:
            unp(F + 2 * i, X + i)
            if mode == 'ln0': A('v_mov_b32', v(X1R + i), v(X + i))
        if i == 1: A('v_pk_add_f32', v(a0, 2), v(F, 2), v(F + 2, 2))
        elif i > 1: A('v_pk_add_f32', v(a0, 2), v(a0, 2), v(F + 2 * i, 2))
    ph(A, 1)
    A('v_add_f32', v(a0), v(a0), v(a0 + 1))
    def pf():
        A('s_add_u32', sU, sU, step)
        if mode != 'ln0':
            A('s_waitcnt', 'vmcnt(0)'); flag_min(A, sPROG, lanes=nl)
        A('s_cmp_gt_u32', sPROG, sU); A('s_cselect_b32', sNX, 1, 0)
        A('s_cselect_b32', 's74', sIN, '0x20000000'); A('s_cselect_b32', 's75', sA, '0x20000000')
        A('s_cselect_b32', sT2, UX, 0); A('s_add_u32', sIN, sIN, sT2)
        A('s_mul_i32', sT2, sT2, 8 if mode == 'ln0' else 2); A('s_add_u32', sA, sA, sT2)
    pl = []
    for i in range(5):
        if mode == 'ln0': pl.append(lambda i=i: A('buffer_load_dwordx4', v(X + 4 * i, 4), v(VP), SX, 's75', mods=f'offen offset:{64*i}'))
        else: pl.append(lambda i=i: (A('s_add_u32', 's76', 's74', (i // 2) * 4096), A('buffer_load_dwordx4', v(X + 4 * i, 4), v(VF), WS, 's76', mods=f'offen offset:{(i%2)*2048} sc1')))
    if mode == 'lna':
        for pp, reg in ((0, P0), (1, P1)):
            for i in range(5):
                pl.append(lambda i=i, pp=pp, reg=reg: (A('s_add_u32', 's76', 's75', pp * UP + (i // 2) * 4096), A('buffer_load_dwordx4', v(reg + 4 * i, 4), v(VF), WS, 's76', mods=f'offen offset:{(i%2)*2048} sc1')))
    xsum(0, pf)
    A('v_mul_f32', v(a0), hex(f32bits(-1.0 / 640)), v(a0)); A('v_mov_b32', v(a0 + 1), v(a0))
    def rnd(r):
        A('v_cvt_pk_bf16_f32', v(r), v(r), v(r)); A('v_lshlrev_b32', v(r), 16, v(r))
    dm = TM + 10
    A('v_mov_b32', v(dm), v(a0)); rnd(dm); A('v_sub_f32', v(dm), v(dm), v(a0))
    for i in range(n):
        A('v_pk_add_f32', v(F + 2 * i, 2), v(F + 2 * i, 2), v(a0, 2))
        if i == 0: A('v_pk_mul_f32', v(a1, 2), v(F, 2), v(F, 2))
        else: A('v_pk_fma_f32', v(a1, 2), v(F + 2 * i, 2), v(F + 2 * i, 2), v(a1, 2))
        if i % 4 == 3 and pl: pl.pop(0)()
    A('v_add_f32', v(a0), v(a1), v(a1 + 1))
    def st1():
        if mode == 'ln0':
            f5('buffer_store_dwordx4', X1R, sB); A('s_add_u32', sB, sB, step * UX)
    xsum(1024, st1)
    A('v_mul_f32', v(a1), hex(f32bits(1.0 / 640)), v(a0)); rnd(a1)
    A('v_add_f32', v(a1), hex(f32bits(1e-5)), v(a1)); rnd(a1)
    A('v_sqrt_f32', v(a1), v(a1)); rnd(a1)
    A('v_rcp_f32', v(a0), v(a1)); A('v_mov_b32', v(a0 + 1), v(a0))
    A('v_mul_f32', v(dm), v(dm), v(a0)); A('v_mov_b32', v(dm + 1), v(dm))
    for i in range(n):
        A('v_pk_fma_f32', v(F + 2 * i, 2), v(F + 2 * i, 2), v(a0, 2), v(dm, 2))
        A('v_cvt_pk_bf16_f32', v(O + i), v(F + 2 * i), v(F + 2 * i + 1))
        if i % 4 == 3:
            k = i // 4
            if k % 2 == 0: A('s_add_u32', sT3, sOUT_, k * 2048)
            A('buffer_store_dwordx4', v(O + 4 * k, 4), v(VF), WS, sT3, mods=f'offen offset:{(k%2)*2048} sc1')
    ph(A, 2)
    A('s_add_u32', sOUT_, sOUT_, step * UX)
    A('s_cmp_lg_u32', sNX, 0); A('s_cbranch_scc1', P + 'pub')
    if mode != 'ln0': flag_load(A)
    A('s_waitcnt', 'vmcnt(0)')
    publish(A, sU)
    if mode != 'ln0': flag_min(A, sPROG, lanes=nl)
    A('s_cmp_lt_u32', sU, NU); A('s_cbranch_scc1', P + 'fetch')
    A('s_branch', P + 'end')
    A.label(P + 'pub')
    nrest = len(pl)
    while pl: pl.pop(0)()
    if mode != 'ln0': flag_load(A); nrest += 1
    A('s_waitcnt', f'vmcnt({nrest})')
    ph(A, 3)
    publish(A, sU)
    A('s_branch', P + 'top')
    A.label(P + 'end')
    if after: after()
    else: A('s_endpgm')

def emit_att(A, ready):
    P = 'ATT_'
    A.label(P + 'entry'); A.reset_counts()
    Q, K, V, KMR, VMR, S, PB, O = 64, 96, 128, 160, 176, 184, 208, 224
    FRK, L8, SA, NEG, ZR = 32, 33, 34, 35, 36
    sCH, sFC, sKMo, sSC = 's74', 's75', 's76', 's77'
    msk = ['s[80:81]', 's[82:83]', 's[84:85]', 's[86:87]']
    common_setup(A, 3)
    g, n = TM, TM + 1
    A('v_lshrrev_b32', v(g), 4, v(LN_)); A('v_and_b32', v(n), 15, v(LN_))
    A('v_and_b32', v(TM + 2), 13, v(n)); A('v_and_b32', v(TM + 3), 1, v(g)); A('v_lshl_or_b32', v(TM + 2), v(TM + 3), 1, v(TM + 2))
    A('v_lshlrev_b32', v(TM + 2), 4, v(TM + 2)); A('v_lshrrev_b32', v(TM + 3), 1, v(g)); A('v_lshl_add_u32', v(FRK), v(TM + 3), 8, v(TM + 2))
    A('v_lshlrev_b32', v(L8), 3, v(LN_))
    A('v_lshlrev_b32', v(TM + 2), 9, v(g)); A('v_lshl_add_u32', v(SA), v(n), 4, v(TM + 2))
    for r in range(4):
        A('v_lshl_add_u32', v(TM + 2), v(g), 2, r); A('v_cmp_le_u32', msk[r], v(TM + 2), v(n))
    A('v_mov_b32', v(NEG), hex(f32bits(-1e9 * 128 ** 0.5))); A('v_mov_b32', v(ZR), 0)
    A('s_lshl_b32', sT2, sI, 2); A('s_add_u32', sT2, sT2, sW)
    A('s_mul_i32', sT3, sL, LAYER_F); A('s_lshl_b32', sT1, sT2, 13); A('s_add_u32', sT3, sT3, sT1)
    A('s_add_u32', sIN, sT3, KF); A('s_add_u32', sOUT_, sT3, OF)
    A('s_mul_i32', sKMo, sL, LAYER_KM); A('s_lshl_b32', sT1, sT2, 12); A('s_add_u32', sKMo, sKMo, sT1); A('s_add_u32', sKMo, sKMo, KM)
    A('s_mul_i32', sT3, sL, FL_LAYER)
    A('s_lshr_b32', sT1, sT2, 1); A('s_mul_i32', sT1, sT1, 384); A('s_add_u32', sFI, sT3, sT1); A('s_and_b32', sT1, sT2, 1); A('s_lshl_b32', sT1, sT1, 3)
    A('s_add_u32', sFI, sFI, sT1); A('s_add_u32', sFI, sFI, FL_QKV)
    A('s_lshl_b32', sT1, sT2, 7); A('s_add_u32', sFC, sT3, sT1); A('s_add_u32', sFC, sFC, FL_CH)
    A('s_mov_b32', sCH, 0); A('s_mov_b32', sSC, hex(f32bits(128 ** -0.5 * 1.4426950408889634)))
    flag_out_addr(A, FL_ATT)
    ready(A)
    def ld8(reg, base, delta):
        for i in range(8):
            if i % 4 == 0: A('s_add_u32', sT3, base, delta + i * 1024)
            A('buffer_load_dwordx4', v(reg + 4 * i, 4), v(L16), WS, sT3, mods=f'offen offset:{(i%4)*1024} sc1')
    A.label(P + 'fetch')
    poll(A, P + 'p', sU, n=2, lanes=3)
    ld8(Q, sIN, QF - KF); ld8(K, sIN, 0); ld8(V, sIN, VT - KF)
    A.label(P + 'top')
    A('s_waitcnt', 'vmcnt(8)')
    A.reset_counts()
    sreg = {(0, 'm'): S, (0, 0): S + 4, (1, 'm'): S + 8, (1, 0): S + 12, (1, 1): S + 16}
    for kp in range(4):
        for qt, kt in ((0, 0), (1, 0), (1, 1)):
            r = v(sreg[(qt, kt)], 4)
            A('v_mfma_f32_16x16x32_bf16', r, v(K + 16 * kt + 4 * kp, 4), v(Q + 16 * qt + 4 * kp, 4), '0' if kp == 0 else r)
    for base in (sreg[(0, 0)], sreg[(1, 1)]):
        for r in range(4): A('v_cndmask_b32', v(base + r), v(NEG), v(base + r), msk[r])
    A('s_mov_b32', sSPIN, 0)
    A.label(P + 'km')
    for kp in range(4): A('buffer_load_dwordx4', v(KMR + 4 * kp, 4), v(FRK), WS, sKMo, mods=f'offen offset:{1024*kp} sc1', tag=('km', kp))
    for w_ in range(4): A('buffer_load_dwordx2', v(VMR + 2 * w_, 2), v(L8), WS, sKMo, mods=f'offen offset:{1024*w_+512} sc1', tag='vm')
    flag_load(A, n=2)
    regs = [KMR + i for i in range(24)]
    for kp in range(4):
        A.wait(vm=[('km', kp)])
        for qt in range(2):
            r = v(sreg[(qt, 'm')], 4)
            A('v_mfma_f32_16x16x32_bf16', r, v(KMR + 4 * kp, 4), v(Q + 16 * qt + 4 * kp, 4), '0' if kp == 0 else r)
            for i in range(2):
                x = KMR + 4 * kp + 2 * qt + i
                A('v_pk_max_u16', v(TM + 8), v(x), v(x) if x == KMR else v(TM + 8))
    A.wait(vm=0)
    for i in range(8): A('v_pk_max_u16', v(TM + 8), v(VMR + i), v(TM + 8))
    A('v_pk_max_u16', v(TM + 8), v(TM + 8), v(TM + 8), mods='op_sel:[0,1] op_sel_hi:[1,0]')
    A('v_cmp_le_u32', 'vcc', '0xff810000', v(TM + 8))
    A('s_cbranch_vccz', P + 'kmok')
    A('s_cmp_lg_u32', sDEAD, 0); A('s_cbranch_scc1', P + 'kmok')
    A('v_mov_b32', v(TM + 8), -1)
    for r_ in regs:
        A('v_xor_b32', v(TM + 9), hex(SENT), v(r_)); A('v_pk_min_u16', v(TM + 8), v(TM + 8), v(TM + 9))
    A('v_pk_min_u16', v(TM + 8), v(TM + 8), v(TM + 8), mods='op_sel:[0,1] op_sel_hi:[1,0]')
    A('v_cmp_eq_u32', 'vcc', 0, v(TM + 8))
    A('s_cbranch_vccz', P + 'kmok')
    A('s_add_u32', sSPIN, sSPIN, 1); A('s_cmp_lt_u32', sSPIN, 4 * SPIN_MAX); A('s_cbranch_scc1', P + 'km')
    A('s_mov_b32', sDEAD, 1)
    A.label(P + 'kmok')
    A('s_add_u32', sKMo, sKMo, 32 * 4096)
    flag_min(A, sPROG, n=2, lanes=3)
    A('s_add_u32', sT2, sU, 1); A('s_cmp_gt_u32', sPROG, sT2); A('s_cselect_b32', sNX, 1, 0)
    A('s_add_u32', sIN, sIN, 32 * 8192); A('s_cmp_eq_u32', sNX, 0); A('s_cbranch_scc1', P + 'nq')
    ld8(Q, sIN, QF - KF); ld8(K, sIN, 0)
    A.label(P + 'nq')
    for qt in range(2):
        m_ = sreg[(qt, 'm')]
        vals = [m_, m_ + 1] + [sreg[(qt, 0)] + i for i in range(4 + 4 * qt)]
        mx, tm, sm = TM, TM + 1, TM + 2 + qt
        A('v_max3_f32', v(mx), v(vals[0]), v(vals[1]), v(vals[2])); A('v_max3_f32', v(tm), v(vals[3]), v(vals[4]), v(vals[5]))
        if qt:
            A('v_max3_f32', v(mx), v(mx), v(vals[6]), v(vals[7])); A('v_max3_f32', v(tm), v(tm), v(vals[8]), v(vals[9]))
        A('v_max_f32', v(mx), v(mx), v(tm)); A('v_mov_b32', v(tm), v(mx))
        A('v_permlane32_swap_b32', v(tm), v(mx)); A('v_max_f32', v(mx), v(mx), v(tm)); A('v_mov_b32', v(tm), v(mx))
        A('v_permlane16_swap_b32', v(tm), v(mx)); A('v_max_f32', v(mx), v(mx), v(tm))
        A('v_mul_f32', v(mx), sSC, v(mx))
        for r in vals: A('v_fma_f32', v(r), v(r), sSC, '-' + v(mx))
        for r in vals: A('v_exp_f32', v(r), v(r))
        pb = PB + 8 * qt
        for i in range(2 + 2 * qt): A('v_cvt_pk_bf16_f32', v(pb + i), v(vals[2 + 2 * i]), v(vals[3 + 2 * i]))
        if qt == 0: A('v_mov_b64', v(pb + 2, 2), 0)
        A('v_cvt_pk_bf16_f32', v(pb + 4), v(m_), v(m_ + 1)); A('v_mov_b32', v(pb + 5), 0); A('v_mov_b32', v(pb + 6), 0); A('v_mov_b32', v(pb + 7), v(pb + 4))
        A('v_add_f32', v(sm), v(vals[0]), v(vals[1]))
        for r in vals[2:]: A('v_add_f32', v(sm), v(sm), v(r))
        xlane_sum(A, sm, tm, [])
        A('v_rcp_f32', v(sm), v(sm))
    for qt in range(2):
        pb = PB + 8 * qt; sm = TM + 2 + qt
        for et in range(8):
            A('v_mfma_f32_16x16x32_bf16', v(O + 4 * et, 4), v(V + 4 * et, 4), v(pb, 4), '0')
        for et in range(8):
            A('v_mfma_f32_16x16x16_bf16', v(O + 4 * et, 4), v(VMR + 2 * (et >> 1), 2), v(pb + 4 + 2 * (et & 1), 2), v(O + 4 * et, 4))
        for p in range(4):
            st = S + 4 * (p & 1) + 8 * qt if False else KMR + 4 * p
            for i in range(8): A('v_mul_f32', v(O + 8 * p + i), v(O + 8 * p + i), v(sm))
            for i in range(4): A('v_cvt_pk_bf16_f32', v(st + i), v(O + 8 * p + 2 * i), v(O + 8 * p + 2 * i + 1))
            if p % 2 == 0: A('s_add_u32', sT3, sOUT_, p * 2048)
            local(A, lambda md: A('buffer_store_dwordx4', v(st, 4), v(SA), WS, sT3, mods=f'offen offset:{(p%2)*2048 + qt*256} {md}'))
    A('s_add_u32', sOUT_, sOUT_, 32 * 8192); A('s_add_u32', sU, sU, 1)
    A('s_cmp_eq_u32', sNX, 0); A('s_cbranch_scc1', P + 'nv')
    ld8(V, sIN, VT - KF)
    A('s_waitcnt', 'vmcnt(8)')
    publish(A, sU, loc=True)
    A('s_branch', P + 'top')
    A.label(P + 'nv')
    A('s_waitcnt', 'vmcnt(0)')
    publish(A, sU, loc=True)
    A('s_cmp_lt_u32', sU, NU); A('s_cbranch_scc1', P + 'fetch')
    A('s_endpgm')
```

```python
from asmgen import *
from layout import *
import os, struct
def env(n, d=0): return int(os.environ.get(n, d))
X_NOADV, X_NOFLAG, X_NOPUB, X_NOPF = env('X_NOADV'), env('X_NOFLAG'), env('X_NOPUB'), env('X_NOPF')
RDELAY, GDELAY = env('RDELAY', 8), env('GDELAY', 50)
PUBAT = env('PUBAT', 8)
RGAP = env('RGAP', 6)
KVMOD = os.environ.get('KVMOD', 'sc1')

WS = 's[8:11]'; SQ = 's[12:15]'; SK = 's[16:19]'; SV = 's[20:23]'; SO = 's[24:27]'; SX = 's[28:31]'; SM0 = 's[32:35]'
SW1 = 's[36:39]'; SW2 = 's[40:43]'; SOUT = 's[44:47]'; SDBG = 's[48:51]'
sW, sH, sC, sS = 's52', 's53', 's54', 's55'
sMEMc, sMEMo, sPST, sPLD, sPLD1, sSTR, sVT, sKF, sKM, sTAG, sFLO, sPROG, sSPIN, sDEAD = ['s%d' % i for i in range(56, 70)]
sT0, sT1, sT2, sT3 = 's70', 's71', 's72', 's73'
sDMEM, sPST1, sPST2, sXX, sFIN, sSCALE = 's74', 's75', 's76', 's77', 's78', 's79'

sPSTS = [sPST, sPST1, sPST2, sXX, 's4']
sSTRS = [sSTR, 's3', 's5', 's6', 's7']
sONES = 's[40:41]'
sPFK, sPFV, sFOV = 's36', 's37', 's38'
L_MEM = 0; L_QB = 10240; L_KB = 12288; L_VM = 14336; L_KX = 16384; L_O = L_KX; L_W = 24576
UNITS = [9, 8, 8, 9]
L_WBASE = [L_W + 4096 * sum(UNITS[:w]) for w in range(4)]
NSTR = [8, 10, 10, 9]
LANE16, IDX, RDEST, KW, PST2, QKW, FR, LDSW = range(8)
AQK = 8; AV = 24; AW = 32; SL = [40, 48, 56, 64, 72]; RES0 = 80
SPIN_MAX = 1 << 16
STAMPS = ['top', 'b1', 0, 'b2', 'sc', 2, 3, 4, 'r1', 5, 'start']
if env('ACKT'): STAMPS = ['top', 'b1', 0, 'b2', 'sc', 2, 3, 4, 'ack', 5, 'start']
if env('STAMPSET') == 1: STAMPS = ['top', 2, 'p1', 'p2', 'p3', 'p4', 3, 'o4', 'o10', 'o16', 'start']
if env('STAMPSET') == 2: STAMPS = ['top', 'q8', 'q16', 'q24', 'q32', 0, 'sc', 's1', 's2', 2, 'start']

def f32bits(x):
    return struct.unpack('<I', struct.pack('<f', x))[0]

def tstamp(A, sfo, val, tmp):
    A('s_memrealtime', 's[90:91]')
    if env('CLK'): A('s_memtime', 's[86:87]')
    A('s_lshr_b32', 's92', sfo, 7); A('s_lshl_b32', 's92', 's92', 2); A('s_bfe_u32', 's93', sfo, 0x20002); A('s_add_u32', 's92', 's92', 's93')
    A('s_lshl_b32', 's92', 's92', 9); A('s_lshl_b32', 's93', val, 2); A('s_add_u32', 's92', 's92', 's93'); A('s_add_u32', 's92', 's92', DBGT + (1 << 20))
    A('s_waitcnt', 'lgkmcnt(0)')
    A('v_mov_b32', v(tmp), 's90')
    if env('CLK'):
        A('s_bitcmp1_b32', val, 0); A('s_cselect_b32', 's90', 's86', 's90'); A('v_mov_b32', v(tmp), 's90')
    A('buffer_store_dword', v(tmp), 'off', WS, 's92'); A.vm.pop()

KOWN = [0, 3, 6, 8]; NOWN = [3, 3, 2, 2]
def korder(w):
    return [(KOWN[w] + j) % 10 for j in range(10)]

def frag_plan(w):
    qk = []
    for j in range(10):
        qk += [('q', j, 0), ('q', j, 1), ('k', j, 0), ('k', j, 1)]
    qk[34:38] = qk[36:38] + qk[34:36]
    qslot = {0: 0, 1: 1, 2: 2, 3: 3, 4: 4, 10: 2, 11: 3, 16: 4, 17: 2, 22: 3, 23: 4, 28: 2, 29: 3, 34: 4, 35: 2}
    qfill = [(2, 1, 2, 10), (4, 1, 3, 11), (6, 2, 4, 16), (10, 0, 2, 17), (12, 1, 3, 22), (16, 0, 4, 23), (18, 2, 2, 28), (22, 0, 3, 29), (24, 1, 4, 34), (28, 0, 2, 35)]
    oo = []
    for p in range(5):
        oo += [('o', 0, 2 * p), ('o', 0, 2 * p + 1), ('o', 1, 2 * p), ('o', 1, 2 * p + 1)]
    OV = env('OVAR', 3)
    ab, cd, e_ = [([0, 6, 12, 18], 2, 9), ([4, 10, 14, 18], 6, 9), ([6, 10, 14, 18], 8, 13), ([4, 10, 14, 18], 2, 9), ([2, 8, 14, 18], 4, 7)][OV]
    oslot = {cd: 4, cd + 1: 0, e_: 1}
    for x in ab: oslot[x] = 2; oslot[x + 1] = 3
    opre = sorted([ab[0], ab[0] + 1, cd, cd + 1])
    streams = [qk[0], qk[1], qk[4]] + [oo[i] for i in opre] + [oo[e_]]
    ldsf = [qk[i] for i in (10, 11, 16, 17, 22, 23, 28, 29, 34, 35)] + [oo[x + i] for x in ab[1:] for i in range(2)]
    if w in (1, 2): streams += [qk[2], qk[3]]
    else: ldsf += [qk[2], qk[3]]
    if w == 3:
        streams += [qk[25]]; qslot[25] = 0; qfill += [(0, 1, 0, 25)]
    assert len(streams) == NSTR[w] and len(ldsf) == 2 * UNITS[w]
    return qk, qslot, qfill, oo, oslot, ab, cd, e_, opre, streams, ldsf

sMODE = 's96'
def emit_chain_wave(A, w, ready, modes=('', 'sc1'), dbg=False, nsteps=64):
    L = lambda nm: f'CH{w}_{nm}'
    KO = korder(w)
    qk, qslot, qfill, oo, oslot, ab, cd, e_, opre, streams, ldsf = frag_plan(w)
    allf = qk + [('v', j, t) for j in range(10) for t in range(2)] + oo
    res = [f for f in allf if f not in streams and f not in ldsf]
    assert len(res) == (54 if w < 3 else 53), len(res)
    resreg = {f: (RES0 if w < 3 else RES0 + 8) + 8 * i for i, f in enumerate(res)}
    XR = RES0
    strm_idx = {f: i for i, f in enumerate(streams)}
    unit_of = lambda f: (f[0], f[1], f[2] >> 1)
    for i in range(0, len(ldsf), 2):
        assert unit_of(ldsf[i]) == unit_of(ldsf[i + 1]), (ldsf[i], ldsf[i + 1])
    lds_units = [unit_of(ldsf[i]) for i in range(0, len(ldsf), 2)]
    lds_off = {}
    for i, u in enumerate(lds_units):
        for t in range(2):
            lds_off[(u[0], u[1], 2 * u[2] + t)] = i * 4096 + t * 2048
    groups = [[0, 1], [2], [3], [4]][w]
    ng = len(groups)

    def half_fill(slot, f, hf):
        r = SL[slot] + 4 * hf
        tag = ('F', f)
        if f in lds_off:
            A('ds_read_b128', v(r, 4), v(LDSW), mods=f'offset:{lds_off[f] + 1024*hf}', tag=tag)
        else:
            i = strm_idx[f]
            so = sSTRS[i >> 1]
            A('buffer_load_dwordx4', v(r, 4), v(LANE16), WS, so, mods=f'offen offset:{(i&1)*2048 + 1024*hf}', tag=tag)
    def fill(slot, f):
        half_fill(slot, f, 0); half_fill(slot, f, 1)
    def smf(acc, areg, f, slot):
        if slot is None:
            b = R(resreg[f], 8)
        else:
            if f in lds_off: A.wait(lg=[('F', f)])
            else: A.wait(vm=[('F', f)])
            b = v(SL[slot], 8)
        A('v_smfmac_f32_16x16x64_bf16', v(acc, 4), v(areg, 4), b, v(IDX))
    def add2(d, a_, b_):
        A('v_add_f32', v(d), v(a_), v(b_)); A('v_add_f32', v(d + 1), v(a_ + 1), v(b_ + 1))

    A.label(L('entry'))
    A.reset_counts()
    T = [SL[0] + i for i in range(40)]
    ln = T[0]; g = T[1]; c = T[2]
    A('v_and_b32', v(ln), 63, 'v0')
    A('v_lshlrev_b32', v(LANE16), 4, v(ln))
    A('v_lshrrev_b32', v(g), 4, v(ln)); A('v_and_b32', v(c), 15, v(ln))
    A('v_and_b32', v(T[3]), 2, v(ln)); A('v_cmp_ne_u32', 'vcc', 0, v(T[3]))
    A('v_mov_b32', v(T[4]), '0x4444'); A('v_mov_b32', v(T[5]), '0xeeee'); A('v_cndmask_b32', v(IDX), v(T[4]), v(T[5]), 'vcc')
    A('v_and_b32', v(T[3]), 13, v(c)); A('v_and_b32', v(T[4]), 1, v(g)); A('v_lshl_or_b32', v(T[3]), v(T[4]), 1, v(T[3]))
    A('v_lshlrev_b32', v(T[3]), 4, v(T[3])); A('v_lshrrev_b32', v(T[4]), 1, v(g)); A('v_lshl_add_u32', v(FR), v(T[4]), 8, v(T[3]))
    A('v_lshrrev_b32', v(T[3]), 3, v(c)); A('v_lshlrev_b32', v(T[3]), 8, v(T[3]))
    A('v_lshl_add_u32', v(T[3]), v(g), 6, v(T[3]))
    A('v_bfe_u32', v(T[4]), v(c), 2, 1); A('v_lshl_add_u32', v(T[3]), v(T[4]), 5, v(T[3]))
    A('v_and_b32', v(T[4]), 3, v(c)); A('v_lshl_add_u32', v(T[3]), v(T[4]), 2, v(T[3]))
    A('v_add_u32', v(QKW), L_QB + w * 512, v(T[3]))
    A('v_add_u32', v(LDSW), L_WBASE[w], v(LANE16))
    A('v_add_u32', v(KW), L_KB - L_QB, v(QKW))
    A('s_mov_b32', sT0, PIECE)
    A('v_lshrrev_b32', v(T[3]), 3, v(c)); A('v_lshl_add_u32', v(T[3]), v(T[3]), 2, v(g)); A('v_mul_lo_u32', v(T[3]), v(T[3]), sT0)
    A('v_and_b32', v(T[4]), 7, v(c)); A('v_lshl_add_u32', v(PST2), v(T[4]), 3, v(T[3]))
    A('s_mul_i32', sT0, sH, 5); A('s_add_u32', sT0, sT0, groups[0])
    A('v_lshrrev_b32', v(T[3]), 3, v(c)); A('v_add_u32', v(T[3]), sT0, v(T[3]))
    A('v_and_b32', v(T[9]), 3, v(c)); A('v_lshlrev_b32', v(T[9]), 4, v(T[9]))
    A('v_lshl_add_u32', v(T[9]), v(g), 2, v(T[9]))
    A('v_bfe_u32', v(T[8]), v(c), 2, 1); A('v_lshl_add_u32', v(T[9]), v(T[8]), 1, v(T[9]))
    A('v_lshl_add_u32', v(RDEST), v(T[3]), 6, v(T[9]))
    if ng == 1:
        A('v_mov_b32', v(T[6]), '0x40000000'); A('v_cmp_lt_u32', 'vcc', 7, v(c)); A('v_cndmask_b32', v(RDEST), v(RDEST), v(T[6]), 'vcc')
    if w == 3:
        A('v_lshlrev_b32', v(XR + 3), 7, v(ln))
        A('v_mov_b64', v(XR + 6, 2), 0)
        A('v_mov_b32', v(T[6]), '0x40000000'); A('v_cmp_gt_u32', 'vcc', 2, v(ln)); A('v_cndmask_b32', v(XR + 5), v(T[6]), v(XR + 3), 'vcc')
        A('v_cmp_gt_u32', 'vcc', 1, v(ln)); A('v_cndmask_b32', v(XR + 2), v(T[6]), v(XR + 3), 'vcc')
    A('s_mul_i32', sT0, sC, 2 * MEMB_SZ); A('s_add_u32', sMEMc, sT0, MEMB); A('s_add_u32', sMEMo, sMEMc, MEMB_SZ)
    A('s_xor_b32', sDMEM, sMEMc, sMEMo)
    A('s_mul_i32', sT0, sC, PART_SZ); A('s_add_u32', sT0, sT0, PART)
    A('s_lshl_b32', sT1, sH, 6); A('s_add_u32', sPST, sT0, sT1); A('s_add_u32', sPST, sPST, 8 * w * PIECE)
    for p in range(1, 5): A('s_add_u32', sPSTS[p], sPST, 32 * p * PIECE)
    A('s_mul_i32', sT1, sH, 5 * PIECE); A('s_add_u32', sPLD, sT1, sT0); A('s_add_u32', sPLD, sPLD, groups[0] * PIECE)
    A('s_add_u32', sPLD1, sPLD, PIECE)
    A('s_mov_b32', sTAG, 0)
    A('s_lshl_b32', sT0, sC, 5); A('s_add_u32', sT0, sT0, sH)
    A('s_mul_i32', sSTR, sT0, STRM_H); A('s_add_u32', sSTR, sSTR, STRM + 2048 * sum(NSTR[:w]))
    for i in range(1, 5): A('s_add_u32', sSTRS[i], sSTR, 4096 * i)
    A('s_mul_i32', sT0, sC, LAYER_F); A('s_lshl_b32', sT1, sH, 13); A('s_add_u32', sT0, sT0, sT1)
    A('s_add_u32', sVT, sT0, VT + w * 2048); A('s_add_u32', sKF, sT0, KF + w * 2048)
    A('s_mul_i32', sT0, sC, LAYER_KM); A('s_lshl_b32', sT1, sH, 12); A('s_add_u32', sT0, sT0, sT1); A('s_add_u32', sKM, sT0, KM + 1024 * w - 32 * 4096)
    A('s_mul_i32', sT0, sC, FL_LAYER); A('s_lshr_b32', sT1, sH, 1); A('s_mul_i32', sT1, sT1, 3 * 128); A('s_add_u32', sFIN, sT0, sT1); A('s_add_u32', sFIN, sFIN, FL_QKV + 128)
    A('s_and_b32', sT1, sH, 1); A('s_lshl_b32', sT1, sT1, 3); A('s_add_u32', sFIN, sFIN, sT1)
    A('s_lshl_b32', sT1, sH, 7); A('s_add_u32', sFLO, sT0, sT1); A('s_add_u32', sFLO, sFLO, FL_CH)
    A('s_mov_b32', sS, 0); A('s_mov_b32', sPROG, 0); A('s_mov_b32', sDEAD, 0)
    A('s_mov_b32', sSCALE, hex(f32bits(128 ** -0.5 * 1.4426950408889634)))

    SRCQ, SRCO1, SRCO2, TRN, TRO1, TRO2 = AW, AW + 1, AW + 2, AW + 3, AW + 4, AW + 5
    r16 = T[3]; ch = T[4]
    A('v_lshrrev_b32', v(r16), 2, v(ln)); A('v_and_b32', v(ch), 3, v(ln))
    A('v_bfe_u32', v(T[5]), v(r16), 1, 1); A('v_lshlrev_b32', v(T[5]), 3, v(T[5]))
    A('v_bfe_u32', v(T[6]), v(r16), 2, 2); A('v_lshl_add_u32', v(T[5]), v(T[6]), 1, v(T[5]))
    A('v_and_b32', v(T[6]), 1, v(r16)); A('v_add_u32', v(T[5]), v(T[5]), v(T[6]))
    A('v_lshlrev_b32', v(T[5]), 13, v(T[5]))
    A('v_bfe_u32', v(T[6]), v(r16), 3, 1); A('v_lshlrev_b32', v(T[6]), 1, v(T[6])); A('v_xor_b32', v(T[6]), v(ch), v(T[6]))
    A('v_lshl_add_u32', v(T[5]), v(T[6]), 4, v(T[5]))
    A('s_lshl_b32', sT0, sH, 8); A('s_add_u32', sT0, sT0, w * 64); A('v_add_u32', v(SRCQ), sT0, v(T[5]))
    A('v_bfe_u32', v(T[5]), v(r16), 3, 1); A('v_lshlrev_b32', v(T[5]), 4, v(T[5]))
    A('v_bfe_u32', v(T[6]), v(r16), 1, 1); A('v_lshl_add_u32', v(T[5]), v(T[6]), 2, v(T[5]))
    A('v_bfe_u32', v(T[6]), v(r16), 2, 1); A('v_lshl_add_u32', v(T[5]), v(T[6]), 1, v(T[5]))
    A('v_and_b32', v(T[6]), 1, v(r16)); A('v_add_u32', v(T[5]), v(T[5]), v(T[6]))
    A('v_mul_u32_u24', v(T[5]), 1280, v(T[5]))
    A('s_mul_i32', sT0, sH, 163840); A('s_add_u32', sT0, sT0, w * 64); A('v_add_u32', v(T[5]), sT0, v(T[5]))
    A('v_lshl_add_u32', v(SRCO1), v(ch), 5, v(T[5]))
    A('v_lshl_add_u32', v(SRCO2), v(ch), 4, v(T[5]))
    A('v_bfe_u32', v(T[5]), v(ln), 2, 2); A('v_lshl_add_u32', v(T[5]), v(g), 3, v(T[5])); A('v_lshlrev_b32', v(T[5]), 6, v(T[5]))
    A('v_add_u32', v(T[5]), L_WBASE[w], v(T[5]))
    A('v_and_b32', v(T[6]), 1, v(g)); A('v_lshl_add_u32', v(T[6]), v(T[6]), 5, v(T[5])); A('v_lshl_add_u32', v(TRN), v(ch), 3, v(T[6]))
    A('v_xor_b32', v(TRN + 3), 32, v(TRN))
    A('v_lshl_add_u32', v(TRO1), v(ch), 4, v(T[5]))
    A('v_lshrrev_b32', v(T[6]), 1, v(ch)); A('v_lshl_add_u32', v(T[6]), v(T[6]), 5, v(T[5]))
    A('v_and_b32', v(T[7]), 1, v(ch)); A('v_lshl_add_u32', v(TRO2), v(T[7]), 3, v(T[6]))
    CS, CO, CT = AQK, AQK + 1, AQK + 2
    rr = T[5]; ck = T[6]
    A('v_lshlrev_b32', v(ck), 1, v(g)); A('v_xor_b32', v(ck), v(ck), v(c)); A('v_lshlrev_b32', v(ck), 4, v(ck))
    A('v_lshrrev_b32', v(rr), 1, v(g)); A('v_lshlrev_b32', v(rr), 3, v(rr)); A('v_and_b32', v(T[7]), 1, v(g)); A('v_add_u32', v(rr), v(rr), v(T[7]))
    A('v_lshlrev_b32', v(rr), 13, v(rr)); A('s_lshl_b32', sT0, sH, 8); A('v_add3_u32', v(CS), v(rr), v(ck), sT0); A('v_xor_b32', v(CS + 6), 128, v(CS))
    A('v_lshrrev_b32', v(rr), 1, v(g)); A('v_lshlrev_b32', v(rr), 2, v(rr)); A('v_add_u32', v(rr), v(rr), v(T[7]))
    A('v_mul_u32_u24', v(rr), 1280, v(rr)); A('s_mul_i32', sT0, sH, 163840); A('v_add3_u32', v(CO), v(rr), v(ck), sT0); A('v_xor_b32', v(CO + 6), 128, v(CO))
    A('v_bfe_u32', v(rr), v(ln), 2, 2); A('v_lshl_add_u32', v(T[8]), v(T[7]), 2, v(rr)); A('v_lshlrev_b32', v(T[8]), 5, v(T[8]))
    A('v_lshl_add_u32', v(rr), v(g), 3, v(rr)); A('v_lshlrev_b32', v(rr), 8, v(rr)); A('v_add_u32', v(rr), L_W, v(rr))
    for t in range(2):
        A('v_lshl_add_u32', v(T[9]), v(ch), 3, 64 * w + 32 * t) if 64 * w + 32 * t <= 64 else (A('v_lshlrev_b32', v(T[9]), 3, v(ch)), A('v_add_u32', v(T[9]), 64 * w + 32 * t, v(T[9])))
        A('v_xor_b32', v(T[9]), v(T[9]), v(T[8])); A('v_add_u32', v(CT + t), v(T[9]), v(rr))
        A('v_lshrrev_b32', v(T[9]), 1, v(ch)); A('v_lshlrev_b32', v(T[9]), 5, v(T[9])); A('v_and_b32', v(T[10]), 1, v(ch)); A('v_lshl_add_u32', v(T[9]), v(T[10]), 3, v(T[9]))
        A('v_add_u32', v(T[9]), 64 * w + 16 * t, v(T[9]))
        A('v_xor_b32', v(T[9]), v(T[9]), v(T[8])); A('v_add_u32', v(CT + 2 + t), v(T[9]), v(rr))
    for t in range(4): A('v_add_u32', v(CT + 6 + t), 65536, v(CT + t))
    stages = [(X, k, 0) for X in 'qkv' for k in range(10)] + [('o', kp, p) for kp in range(2) for p in range(5)]
    def mine(st, ww):
        X, k, p = st
        return (X, korder(ww).index(k), 0) if X != 'o' else st
    nl_ = {st: sum(1 for ww in range(4) if any(unit_of(f) == mine(st, ww) for f in frag_plan(ww)[10])) for st in stages}
    stages = sorted([st for st in stages if nl_[st] < 4], key=lambda st: nl_[st])
    def cdma(n):
        X, k, p = stages[n]
        for ii in range(4):
            A('s_mov_b32', 'm0', L_W + (n % 8) * 16384 + w * 4096 + ii * 1024)
            if X == 'o':
                A('s_mov_b32', sT0, (64 * k + 32 * (w >> 1) + 8 * (w & 1) + 16 * (ii >> 1) + 2 * (ii & 1)) * 1280 + 256 * p)
                A('buffer_load_dwordx4', v(CO + 6 * (ii >> 1)), SO, sT0, mods='offen lds', tag=('C', n))
            else:
                A('s_mov_b32', sT0, (64 * k + 16 * w + 2 * ii) * 8192)
                A('buffer_load_dwordx4', v(CS + 6 * (ii >> 1)), {'q': SQ, 'k': SK, 'v': SV}[X], sT0, mods='offen lds', tag=('C', n))
    order = list(lds_units)
    pos = {u: i for i, u in enumerate(lds_units)}
    def dma(u):
        X, j, p = u
        for i in range(4):
            A('s_mov_b32', 'm0', L_WBASE[w] + pos[u] * 4096 + i * 1024)
            if X == 'o':
                off = (64 * j + 32 * (i >> 1) + 8 * (i & 1)) * 1280 + 256 * p
                A('s_mov_b32', sT0, off)
                A('buffer_load_dwordx4', v(SRCO2), SO, sT0, mods='offen lds', tag=('U', u))
            else:
                A('s_mov_b32', sT0, (64 * KO[j] + 16 * i) * 8192)
                A('buffer_load_dwordx4', v(SRCQ), {'q': SQ, 'k': SK, 'v': SV}[X], sT0, mods='offen lds', tag=('U', u))
    slot_of = lambda u: (L_WBASE[w] + pos[u] * 4096 - L_W) // 16384
    order = []
    def retire(sl_):
        for u in lds_units:
            if slot_of(u) == sl_: dma(u); order.append(u)
    for n in range(8): cdma(n)
    pend = []
    def flush():
        for f, d in pend:
            i = strm_idx[f]
            A('buffer_store_dwordx4', v(d, 4), v(LANE16), WS, sSTRS[i >> 1], mods=f'offen offset:{(i&1)*2048} sc1', tag='ST')
            A('buffer_store_dwordx4', v(d + 4, 4), v(LANE16), WS, sSTRS[i >> 1], mods=f'offen offset:{(i&1)*2048+1024} sc1', tag='ST')
        pend.clear()
    for n, st in enumerate(stages):
        A.wait(vm=[('C', n)], lg=0)
        A('s_barrier')
        flush()
        if n >= 1 and n + 7 < len(stages): cdma(n + 7)
        if n >= 1 and n + 7 >= len(stages): retire((n - 1) % 8)
        if n + 8 == len(stages): retire(8)
        u = mine(st, w)
        if u in lds_units: continue
        for t in range(2):
            f = (u[0], u[1], 2 * u[2] + t)
            d = resreg[f] if f in resreg else SL[(n & 1) * 2 + t]
            if f in strm_idx: pend.append((f, d))
            ad = CT + t + (2 if u[0] == 'o' else 0) + (6 if (n % 8) >= 4 else 0)
            for q4, ro in enumerate((0, 1024, 8192, 9216)):
                A('ds_read_b64_tr_b16', R(d + 2 * q4, 2), v(ad), mods=f'offset:{(n % 4)*16384 + ro}')
    A.wait(lg=0); A('s_barrier'); flush(); retire((len(stages) - 1) % 8)
    assert len(order) == len(lds_units)
    def consume(u, n):
        X, j, p = u
        A.wait(vm=[('U', u)])
        dst = []
        for t in range(2):
            f = (X, j, 2 * p + t)
            d = resreg[f] if f in resreg else SL[(n & 1) * 2 + t]
            dst.append((f, d))
            if X != 'o': ad, o = (TRN if t == 0 else TRN + 3), 0
            else: ad, o = TRO2, 16 * t
            for q4, ro in enumerate((0, 256, 2048, 2304)):
                A('ds_read_b64_tr_b16', R(d + 2 * q4, 2), v(ad), mods=f'offset:{pos[u]*4096 + ro + o}', tag=('T', u))
        A.wait(lg=0)
        for f, d in dst:
            if f in lds_off:
                A('ds_write_b128', v(LDSW), v(d, 4), mods=f'offset:{lds_off[f]}')
                A('ds_write_b128', v(LDSW), v(d + 4, 4), mods=f'offset:{lds_off[f]+1024}')
            elif f in strm_idx:
                i = strm_idx[f]
                A('s_add_u32', sT1, sSTR, (i >> 1) * 4096)
                A('buffer_store_dwordx4', v(d, 4), v(LANE16), WS, sT1, mods=f'offen offset:{(i&1)*2048}', tag='ST')
                A('buffer_store_dwordx4', v(d + 4, 4), v(LANE16), WS, sT1, mods=f'offen offset:{(i&1)*2048+1024}', tag='ST')
    nd = NOWN[w]
    ownreg = [AW, AW + 4, AV + 4][:nd]
    t0_, t1_, t2_ = AV, AV + 1, AV + 2
    A('v_lshrrev_b32', v(t0_), 4, v(LANE16))
    A('v_bfe_u32', v(t1_), v(t0_), 2, 2); A('v_lshlrev_b32', v(t1_), 1, v(t1_))
    A('v_and_b32', v(t2_), 1, v(t0_)); A('v_add_u32', v(t1_), v(t1_), v(t2_)); A('v_mul_u32_u24', v(t1_), 1280, v(t1_))
    A('v_lshrrev_b32', v(t2_), 4, v(t0_)); A('v_lshl_add_u32', v(t1_), v(t2_), 5, v(t1_))
    A('v_bfe_u32', v(t2_), v(t0_), 1, 1); A('v_lshl_add_u32', v(t1_), v(t2_), 4, v(t1_))
    for j in range(nd): A('buffer_load_dwordx4', v(AQK + 4 + 4 * j, 4), v(t1_), SM0, 0, mods=f'offen offset:{128*KO[j]}')
    A('v_and_b32', v(t2_), 7, v(t0_)); A('v_min_u32', v(AV + 3), 1, v(t2_)); A('v_lshlrev_b32', v(t2_), 2, v(t2_)); A('v_lshl_add_u32', v(t2_), v(AV + 3), 7, v(t2_))
    A('buffer_load_dword', v(AQK), 'off', SDBG, 0, mods='offset:32 sc1')
    A('buffer_load_dword', v(AQK + 1), v(t2_), SDBG, 0, mods='offen sc1')
    A('v_lshlrev_b32', v(t0_), 3, v(LANE16))
    for n, u in enumerate(order):
        consume(u, n)
        if n == len(order) - 2:
            A.wait(vm=['ST'])
            for i in range(3): A('buffer_load_dword', v(AQK + 2), v(t0_), WS, sSTRS[2 * i], mods='offen sc1')
        if n == 0:
            for i in range(2 * ng): A('buffer_load_dwordx4', v(AV + 4, 4), v(LANE16), WS, sPLD if i < 2 else sPLD1, mods=f'offen offset:{(i&1)*1024} sc1')
            A('s_add_u32', sT0, sMEMc, 5120 * w)
            A('buffer_load_dword', v(AQK + 2), v(t0_), WS, sT0, mods='offen sc1')
            if w == 3:
                A('s_sub_u32', sT0, sKF, 3 * 2048); A('buffer_load_dword', v(XR), v(t0_), WS, sT0, mods='offen sc1')
                A('s_add_u32', sT0, sT0, VT - KF); A('buffer_load_dword', v(XR + 1), v(t0_), WS, sT0, mods='offen sc1')
    A.wait(vm=0, lg=0)
    A('v_readfirstlane_b32', sT0, v(AQK)); A('v_cmp_ne_u32', 'vcc', 32 if not env('FORCE_SLOW') else 33, v(AQK + 1))
    A('s_cmp_ge_u32', sT0, 256); A('s_cselect_b32', sT0, 'vcc_lo', 1); A('s_cmp_eq_u32', sT0, 0)
    if not env('DBG'): A('s_cbranch_scc1', L('rdy'))
    ready(A)
    A.label(L('rdy'))
    A('s_mov_b32', 's40', '0x3f803f80'); A('s_mov_b32', 's41', '0x3f803f80')
    for j in range(nd):
        A('ds_write_b128', v(LANE16), v(AQK + 4 + 4 * j, 4), mods=f'offset:{L_MEM + 1024*KO[j]}')
        A('v_mov_b64', v(ownreg[j], 2), v(AQK + 4 + 4 * j, 2)); A('v_mov_b64', v(ownreg[j] + 2, 2), v(AQK + 6 + 4 * j, 2))
    for n in range(5): fill(qslot[n], qk[n])
    A('s_waitcnt', 'lgkmcnt(0)')
    for i in range(0, 16, 2): A('v_mov_b64', v(AQK + i, 2), 0)
    if len(modes) > 1:
        A('s_cmp_lg_u32', sMODE, 0); A('s_cbranch_scc1', f'CHS{w}_start')
    for sc in modes:
        L = lambda nm: f'CH{"S" if sc else "F"}{w}_{nm}'
        A.label(L('start')); A.reset_counts()
        def stamp(i):
            if not dbg or i not in STAMPS: return
            A('s_memtime', s(80 + 2 * STAMPS.index(i), 2))
        def dump():
            A('s_lshl_b32', sT0, sC, 5); A('s_add_u32', sT0, sT0, sH); A('s_lshl_b32', sT0, sT0, 2); A('s_add_u32', sT0, sT0, w)
            A('s_lshl_b32', sT0, sT0, 6); A('s_add_u32', sT0, sT0, DBGT)
            A('s_waitcnt', 'lgkmcnt(0)')
            for i, r_ in enumerate([s(80 + 2 * k) for k in range(11)] + [sDEAD]):
                A('v_mov_b32', v(AV), r_)
                A('buffer_store_dword', v(AV), 'off', WS, sT0, mods=f'offset:{4*i}'); A.vm.pop()
            A('s_waitcnt', 'vmcnt(0)')
        def pub_read(reg, tmp):
            A('v_and_b32', v(tmp), 512, v(LANE16)); A('v_mul_u32_u24', v(tmp), (L_VM - L_KB - 512) // 512, v(tmp)); A('v_add_u32', v(tmp), v(tmp), v(LANE16))
            A('ds_read_b128', v(reg, 4), v(tmp), mods=f'offset:{L_KB + 512*w}', tag='pk')
        def w3upd():
            A('v_min_u32', v(XR), v(XR + 6), v(XR + 7)); A('v_readlane_b32', sT0, v(XR), 0); A('v_readlane_b32', sT3, v(XR), 1)
            A('s_min_u32', sT0, sT0, sT3); A('s_max_u32', sPROG, sPROG, sT0)
        def w3in(need):
            ok = A.newlabel(L('inok')); lp = A.newlabel(L('inlp'))
            A('s_cmp_gt_u32', sPROG, need); A('s_cbranch_scc1', ok)
            A('s_mov_b32', sSPIN, 0)
            A.label(lp)
            A('buffer_load_dwordx2', v(XR + 6, 2), v(XR + 5), WS, sFIN, mods='offen sc1'); A.vm.pop()
            A('s_waitcnt', 'vmcnt(0)')
            w3upd()
            A('s_cmp_gt_u32', sPROG, need); A('s_cbranch_scc1', ok)
            A('s_cmp_lg_u32', sDEAD, 0); A('s_cbranch_scc1', ok)
            A('s_sleep', 2)
            A('s_add_u32', sSPIN, sSPIN, 1); A('s_cmp_lt_u32', sSPIN, SPIN_MAX); A('s_cbranch_scc1', lp)
            A('s_mov_b32', sDEAD, 1)
            A.label(ok)
        def w3prep():
            A('s_add_u32', sFOV, sS, 1)
            if env('SPECPF', 1): A('s_cmp_lt_u32', sFOV, nsteps)
            else: A('s_cmp_gt_u32', sPROG, sFOV)
            A('s_cselect_b32', sT0, 0, (0 if X_NOADV else 32 * 8192)); A('s_sub_u32', sPFK, sKF, sT0); A('s_sub_u32', sPFK, sPFK, 3 * 2048)
            A('s_add_u32', sPFV, sPFK, VT - KF)
            A('s_max_u32', sT0, sS, 1); A('s_sub_u32', sT0, sT0, 1); A('v_mov_b32', v(XR + 4), sT0)
        def kdma():
            A('s_mov_b32', 'm0', L_KX + w * 2048)
            for i in range(2): A('buffer_load_dwordx4', v(LANE16), WS, sKF, mods=f'offen offset:{i*1024} {KVMOD} lds')
            if not X_NOADV: A('s_add_u32', sKF, sKF, 32 * 8192)
        if w == 3: w3in(sS)
        A('s_barrier')
        kdma()
        if w == 3: w3prep()
        A('s_waitcnt', 'vmcnt(0) lgkmcnt(0)')
        A.label(L('loop'))
        A.reset_counts()
        stamp('top')
        accq = {('q', 0): AQK, ('q', 1): AQK + 4, ('k', 0): AQK + 8, ('k', 1): AQK + 12}
        awin = [AW, AW + 4, AV + 4, AW, AW + 4, AV, AV + 4, AV, AW, AW + 4]
        aat = {3: 3, 4: 7, 5: PUBAT + 1, 6: 11, 7: 23, 8: 15, 9: 19}
        def aread(j, reg, tag):
            A('ds_read_b128', v(reg, 4), v(LANE16), mods=f'offset:{L_MEM + 1024*KO[j]}', tag=tag)
        kfr = {}
        def kread(tk, reg):
            t, kp = tk
            kfr[tk] = reg
            if t == 0: A('ds_read_b128', v(reg, 4), v(FR), mods=f'offset:{L_KB + 512*kp}', tag=('K', tk))
            else: A('ds_read_b128', v(reg, 4), v(LANE16), mods=f'offset:{L_KX + ((t-1)*4+kp)*1024}', tag=('K', tk))
        NPRE = 0
        side = {}
        def at(n, fn): side.setdefault(n, []).append(fn)
        for n0, st, s2, fi in qfill:
            at(n0, lambda s2=s2, fi=fi: half_fill(s2, qk[fi], 0)); at(n0 + st, lambda s2=s2, fi=fi: half_fill(s2, qk[fi], 1))
        if dbg:
            def st8():
                sk = A.newlabel(L('st8'))
                A('s_cmp_lg_u32', sS, 8); A('s_cbranch_scc1', sk); A('s_mov_b32', 's100', 's80'); A.label(sk)
            at(20, st8)
        for n0, tk, reg in [(26, (1, 0), SL[0]), (27, (2, 0), SL[0] + 4), (30, (1, 1), SL[3]), (31, (2, 1), SL[3] + 4)]:
            at(n0, lambda tk=tk, reg=reg: kread(tk, reg))
        def vxload(hf):
            A('buffer_load_dwordx4', v(SL[1] + 4 * hf, 4), v(LANE16), WS, sVT, mods=f'offen offset:{1024*hf} {KVMOD}', tag='vx')
        if env('LATEPO', 0):
            pr = XR + 2 if w == 3 else SL[0] + 7
            at(0, lambda: A('v_mov_b32', v(pr), hex(SENT)))
            at(1, lambda: A('buffer_store_short', v(pr), v(RDEST), WS, sMEMc, mods=f'offen {sc}'.strip()))
        at(1, lambda: vxload(0)); at(3, lambda: vxload(1))
        if w == 3:
            if not X_NOPF:
                at(PUBAT + 1, lambda: A('buffer_load_dword', v(XR), v(XR + 3), WS, sPFK, mods='offen sc1'))
                at(PUBAT + 3, lambda: A('buffer_load_dword', v(XR + 1), v(XR + 3), WS, sPFV, mods='offen sc1'))
            if not X_NOFLAG: at(PUBAT + 5, lambda: A('buffer_load_dwordx2', v(XR + 6, 2), v(XR + 5), WS, sFIN, mods='offen sc1'))
            if not X_NOPUB:
                if env('CHFLAG'): at(PUBAT + 6, lambda: A('buffer_store_dword', v(XR + 4), v(XR + 2), WS, sFLO, mods='offen sc1'))
                if env('DBG') == 2: at(PUBAT + 7, lambda: (tstamp(A, sFLO, sS, XR + 4), A.vm.append(None)))
        def pub2():
            if not X_NOPUB and not env('X_NOKM'): A('buffer_store_dwordx4', v(AV, 4), v(LANE16), WS, sKM, mods='offen ' + os.environ.get('PUBMOD', 'sc1'))
        at(PUBAT, pub2)
        at(28, lambda: A('v_mov_b64', v(AV + 4, 2), 0)); at(29, lambda: A('v_mov_b64', v(AV + 6, 2), 0))
        at(32, lambda: A('v_mov_b64', v(AV, 2), 0)); at(33, lambda: A('v_mov_b64', v(AV + 2, 2), 0))
        A('s_barrier'); stamp('b1')
        if nd == 2: aread(2, awin[2], ('A', 2))
        A('v_mov_b32', v(AQK + 15), 0)
        for n in range(NPRE, 40):
            f = qk[n]; j = f[1]
            if (n & 1) == 0: A.wait(lg=[('A', j)] + [('F', qk[m]) for m in (n, n + 1) if qk[m] in lds_off])
            stamp(f'q{n}')
            smf(accq[(f[0], f[2])], awin[j], f, qslot.get(n))
            for j2, n2 in aat.items():
                if n2 == n: aread(j2, awin[j2], ('A', j2))
            for fn in side.get(n, []): fn()
        vj = [9, 8, 0, 1, 2, 3, 4, 5, 6, 7]
        vq = []
        for idx, j in enumerate(vj):
            reg = AW + 4 if idx % 2 == 0 else AW
            vq.append((j, 0, reg, idx)); vq.append((j, 1, reg, idx))
        vstate = {'i': 0, 'p': 0}
        def vpass(cnt):
            for _ in range(cnt):
                if vstate['i'] >= 20: return
                j, t, reg, idx = vq[vstate['i']]; vstate['i'] += 1
                if t == 0 and idx >= 2: A.wait(lg=[('B', idx)])
                smf(AV + 4 * t, reg, ('v', j, t), None)
                if t == 1 and idx + 2 < 10: aread(vj[idx + 2], reg, ('B', idx + 2))
        stamp(0)
        add2(AQK, AQK, AQK + 2); add2(AQK + 4, AQK + 4, AQK + 6)
        A('v_cvt_pk_bf16_f32', v(AQK + 2), v(AQK), v(AQK + 4)); A('v_cvt_pk_bf16_f32', v(AQK + 3), v(AQK + 1), v(AQK + 5))
        A('ds_write2_b32', v(QKW), v(AQK + 2), v(AQK + 3), mods='offset0:0 offset1:4', tag='qw')
        add2(AQK + 8, AQK + 8, AQK + 10); add2(AQK + 12, AQK + 12, AQK + 14)
        A('v_cvt_pk_bf16_f32', v(AQK + 10), v(AQK + 8), v(AQK + 12)); A('v_cvt_pk_bf16_f32', v(AQK + 11), v(AQK + 9), v(AQK + 13))
        A('ds_write2_b32', v(KW), v(AQK + 10), v(AQK + 11), mods='offset0:0 offset1:4', tag='qw')
        vpass(env('VP1', 4))
        A.wait(lg=['qw']); A('s_barrier'); stamp('b2')
        qreg = [SL[2], SL[2] + 4, SL[4], SL[4] + 4]
        A('ds_read_b128', v(qreg[0], 4), v(FR), mods=f'offset:{L_QB}', tag=('Q', 0))
        A('ds_read_b128', v(qreg[1], 4), v(FR), mods=f'offset:{L_QB + 512}', tag=('Q', 1))
        kread((0, 0), AQK + 12)
        for kp in range(2, 4): A('ds_read_b128', v(qreg[kp], 4), v(FR), mods=f'offset:{L_QB + 512*kp}', tag=('Q', kp))
        vpass(env('VP2', 4))
        sacc = {0: AQK, 1: AQK + 4, 2: AQK + 8}
        sc_order = [(1, 0), (2, 0), (1, 1), (2, 1), (0, 0), (0, 1), (1, 2), (2, 2), (0, 2), (0, 3), (1, 3), (2, 3)]
        pending = sc_order[5:]
        pf = []
        for n in opre:
            pf.append((oslot[n], oo[n], 0)); pf.append((oslot[n], oo[n], 1))
        def pfill(cnt=1):
            for _ in range(cnt):
                if pf: half_fill(*pf.pop(0))
        for tk in sc_order:
            t, kp = tk
            A.wait(lg=[('K', tk), ('Q', kp)])
            A('v_mfma_f32_16x16x32_bf16', v(sacc[t], 4), v(kfr[tk], 4), v(qreg[kp], 4), '0' if kp == 0 else v(sacc[t], 4))
            if pending: kread(pending.pop(0), kfr[tk])
        stamp('sc')
        vpass(1); pfill(); vpass(1); pfill()
        vals = [AQK, AQK + 1] + [AQK + 4 + i for i in range(8)]
        mx = AQK + 2; tm = AQK + 3
        A('v_max3_f32', v(mx), v(vals[0]), v(vals[1]), v(vals[2])); A('v_max3_f32', v(tm), v(vals[3]), v(vals[4]), v(vals[5]))
        A('v_max3_f32', v(mx), v(mx), v(vals[6]), v(vals[7])); A('v_max3_f32', v(tm), v(tm), v(vals[8]), v(vals[9]))
        A('v_max_f32', v(mx), v(mx), v(tm)); A('v_max_f32', v(tm), v(mx), v(tm))
        vpass(1); pfill()
        A('v_permlane32_swap_b32', v(tm), v(mx)); A('v_max_f32', v(mx), v(mx), v(tm)); A('v_max_f32', v(tm), v(mx), v(tm))
        vpass(1)
        A('v_permlane16_swap_b32', v(tm), v(mx)); A('v_max_f32', v(mx), v(mx), v(tm))
        A('v_mul_f32', v(mx), sSCALE, v(mx))
        stamp('s1')
        order = vals[2:] + vals[:2]
        for i, r_ in enumerate(order):
            A('v_fma_f32', v(r_), v(r_), sSCALE, '-' + v(mx))
            if i >= 1: A('v_exp_f32', v(order[i - 1]), v(order[i - 1]))
            if i < 8: vpass(1)
            if i % 3 == 1: pfill()
            if i in (3, 5, 7, 9): A('v_cvt_pk_bf16_f32', v(AQK + 12 + (i - 3) // 2), v(order[i - 3]), v(order[i - 2]))
            if i == 6: A('v_mov_b64', v(AQK + 4, 2), sONES); A('v_mov_b64', v(AQK + 6, 2), sONES)
        A('v_exp_f32', v(order[9]), v(order[9]))
        stamp('s2')
        vpass(20)
        A('v_mov_b32', v(AQK + 3), 0)
        stamp(2)
        A('v_cvt_pk_bf16_f32', v(AQK + 2), v(AQK), v(AQK + 1))
        A.wait(vm=['vx'])
        A('v_mfma_f32_16x16x32_bf16', v(AQK + 8, 4), v(AQK + 4, 4), v(AQK + 12, 4), '0')
        add2(AV, AV, AV + 2)
        A('v_mfma_f32_16x16x32_bf16', v(AW, 4), v(SL[1], 4), v(AQK + 12, 4), '0')
        add2(AV + 4, AV + 4, AV + 6)
        A('v_mfma_f32_16x16x32_bf16', v(AW + 4, 4), v(SL[1] + 4, 4), v(AQK + 12, 4), '0')
        A('v_cvt_pk_bf16_f32', v(AV + 2), v(AV), v(AV + 1)); A('v_cvt_pk_bf16_f32', v(AV + 3), v(AV + 4), v(AV + 5))
        A('v_mfma_f32_16x16x16_bf16', v(AQK + 8, 4), v(AQK + 4, 2), v(AQK + 2, 2), v(AQK + 8, 4))
        A('v_cvt_pk_bf16_f32', v(AV + 4), v(AV + 4), v(AV + 5)); A('v_mov_b32', v(AV + 5), 0)
        stamp('p1')
        A('v_mfma_f32_16x16x16_bf16', v(AW, 4), v(AV + 2, 2), v(AQK + 2, 2), v(AW, 4))
        pfill(2)
        A('v_mfma_f32_16x16x16_bf16', v(AW + 4, 4), v(AV + 4, 2), v(AQK + 2, 2), v(AW + 4, 4))
        stamp('p2')
        pf.append((oslot[e_], oo[e_], 0)); pf.append((oslot[e_], oo[e_], 1))
        pfill(1)
        sm = AQK
        A('v_lshrrev_b32', v(AV + 6), 1, v(LANE16))
        A('ds_write_b64', v(AV + 6), v(AV + 2, 2), mods=f'offset:{L_VM + 512*w}', tag='ow')
        A('v_rcp_f32', v(sm), v(AQK + 8))
        for i in (4, 6): A('v_mov_b64', v(AQK + i, 2), 0)
        for i in range(4):
            A('v_mul_f32', v(AW + 2 * i), v(AW + 2 * i), v(sm)); A('v_mul_f32', v(AW + 2 * i + 1), v(AW + 2 * i + 1), v(sm))
            A('v_cvt_pk_bf16_f32', v(AQK + 8 + i), v(AW + 2 * i), v(AW + 2 * i + 1))
        A('ds_write_b128', v(FR), v(AQK + 8, 4), mods=f'offset:{L_O + 512*w}', tag='ow')
        stamp('p3')
        pfill(3)
        for i in (0, 2, 12, 14): A('v_mov_b64', v(AQK + i, 2), 0)
        for i in (0, 4): A('v_mov_b64', v(AV + i, 2), 0)
        stamp('p4')
        A.wait(lg=['ow']); A('s_barrier')
        A('ds_read_b128', v(AW, 4), v(LANE16), mods=f'offset:{L_O}', tag='oa0')
        A('ds_read_b128', v(AW + 4, 4), v(LANE16), mods=f'offset:{L_O+1024}', tag='oa1')
        pfill()
        A('s_cmp_eq_u32', sS, nsteps - 1)
        A('s_cbranch_scc1', L('last'))
        if dbg and env('FRZ'):
            A('s_cmp_lg_u32', sS, env('FRZ')); A('s_cbranch_scc1', L('nofrz'))
            A('s_memtime', 's[100:101]'); dump(); A('v_mov_b32', v(AV), 0)
            A.label(L('nofrz'))
        for i in (8, 10): A('v_mov_b64', v(AQK + i, 2), 0)
        for i in (2, 6): A('v_mov_b64', v(AV + i, 2), 0)
        assert not pf
        stamp(3)
        accs = [AQK, AQK + 4, AQK + 8, AQK + 12, AV, AV + 4]
        tacc = {t: t % 6 for t in range(10)}
        def post_ops(t):
            r_ = accs[tacc[t]]; st = accs[tacc[t & ~1]] + (t & 1)
            ops = [lambda: A('v_add_f32', v(r_), v(r_), v(r_ + 2)), lambda: A('v_add_f32', v(r_ + 1), v(r_ + 1), v(r_ + 3)),
                   lambda: A('v_cvt_pk_bf16_f32', v(st), v(r_), v(r_ + 1))]
            if t % 2 == 0: ops.append(lambda: A('v_and_or_b32', v(st), v(st), -2, sTAG))
            else:
                ops.append(lambda: A('buffer_store_dwordx2', v(st - 1, 2), v(PST2), WS, sPSTS[t >> 1], mods=f'offen {sc}'.strip(), tag='ps'))
                if t < 4:
                    for rr in (r_, r_ + 2, st + 1, st - 1): ops.append(lambda rr=rr: A('v_mov_b64', v(rr, 2), 0))
            return ops
        oside = {}
        def oat(n, fn): oside.setdefault(n, []).append(fn)
        for a_, b_ in [(ab[i] + k, ab[i + 1] + k) for i in range(3) for k in range(2)]:
            oat(a_, lambda b_=b_: fill(oslot[b_], oo[b_]))
        for n0, qi in (((cd, 4), (cd + 3, 0), (max(e_, cd + 6), 1)) if not env('NOHELD') else ()):
            oat(n0, lambda qi=qi: half_fill(qslot[qi], qk[qi], 0)); oat(n0 + 2, lambda qi=qi: half_fill(qslot[qi], qk[qi], 1))
        vq_ = []
        for n, f in enumerate(oo):
            if n % 2 == 0:
                pr = [oo[n], oo[n + 1]]
                A.wait(lg=(['oa0'] if n == 0 else ['oa1'] if n == 2 else []) + [('F', x) for x in pr if x in lds_off], vm=[('F', x) for x in pr if x in strm_idx])
            if f[1] == 0 and f[2] >= 6:
                need = {6: 1, 7: 1, 8: 3, 9: 3}[f[2]]
                while any(t == need for t, _ in vq_): vq_.pop(0)[1]()
            stamp(f'o{n}')
            smf(accs[tacc[f[2]]], AW + 4 * f[1], f, oslot.get(n))
            for fn in oside.get(n, []): fn()
            for t in range(10):
                if 4 * (t >> 1) + 2 + (t & 1) + 3 == n: vq_ += [(t, o_) for o_ in post_ops(t)]
            for _ in range(3):
                if vq_: vq_.pop(0)[1]()
        while vq_: vq_.pop(0)[1]()
        for t in (8, 9):
            for o_ in post_ops(t): o_()
        stamp(4)
        if env('ACKT'): A('s_waitcnt', 'vmcnt(0)'); stamp('ack')
        if w in (1, 2) and env('P1POS', 0) == 0: fill(qslot[2], qk[2]); fill(qslot[3], qk[3])
        if w == 3: w3upd(); w3in(sFOV)
        A('s_barrier')
        ra = AV + 4
        setreg = [AQK, AQK + 8 if ng == 1 else SL[2]]
        A('s_mov_b32', sSPIN, 0)
        A('v_bfe_u32', v(ra + 1), v(LANE16), 4, 1); A('v_lshlrev_b32', v(ra + 1), 4, v(ra + 1))
        A('v_mov_b32', v(ra + 2), '0x3f80'); A('v_lshlrev_b32', v(ra + 1), v(ra + 1), v(ra + 2))
        A('v_bfe_u32', v(ra + 2), v(LANE16), 5, 3)
        def rloads(st):
            for i in range(2 * ng):
                A('buffer_load_dwordx4', v(setreg[st] + 4 * i, 4), v(LANE16), WS, sPLD if i < 2 else sPLD1, mods=f'offen offset:{(i&1)*1024} sc1')
        sel = lambda jj: (A('v_cmp_eq_u32', 'vcc', jj, v(ra + 2)), A('v_cndmask_b32', v(AW + jj), 0, v(ra + 1), 'vcc'))
        if env('RSL', 1) >= 0:
            for jj in range(4): sel(jj)
            if env('RSL', 1): A('s_sleep', env('RSL', 1))
            rloads(0)
            for jj in range(4, 4 * ng): sel(jj)
            if ng == 1 or env('RSL2', 2) > 1: A('s_sleep', env('RSL2', 2) - (ng - 1))
        else:
            for jj in range(RDELAY): sel(jj % (4 * ng))
            rloads(0)
            for jj in range(max(RGAP, 4 * ng - RDELAY)): sel((RDELAY + jj) % (4 * ng))
        rloads(1)
        for jj in range(env('RFILL', 0)): sel(jj % (4 * ng))
        A.label(L('rloop'))
        for st in range(2):
            A('s_waitcnt', f'vmcnt({2*ng})')
            stamp('r1')
            for i in range(2 * ng):
                b = setreg[st] + 4 * i
                A('v_mfma_f32_16x16x32_bf16', v(AV, 4), v(b, 4), v(AW + 4 * (i >> 1), 4), '0' if i == 0 else v(AV, 4))
                if i == 0:
                    A('v_and_b32', v(ra + 1), v(b), v(b + 2)); A('v_or_b32', v(ra + 2), v(b), v(b + 2))
                else:
                    A('v_bitop3_b32', v(ra + 1), v(ra + 1), v(b), v(b + 2), mods='bitop3:0x80'); A('v_or3_b32', v(ra + 2), v(ra + 2), v(b), v(b + 2))
            A('v_bitop3_b32', v(ra + 1), v(ra + 1), v(ra + 2), sTAG, mods='bitop3:0x4e')
            A('v_and_b32', v(ra + 1), 1, v(ra + 1))
            A('v_cmp_ne_u32', 'vcc', 0, v(ra + 1))
            A('v_permlane32_swap_b32', v(AV), v(AV + 2)); A('v_permlane32_swap_b32', v(AV + 1), v(AV + 3))
            add2(AV, AV, AV + 2)
            A('s_cbranch_vccnz', L(f'rbad{st}'))
            if st == 1: A.label(L('rok'))
            A('v_permlane16_swap_b32', v(AV), v(AV + 1)); A('v_add_f32', v(AV), v(AV), v(AV + 1))
            A('v_cvt_pk_bf16_f32', v(AV), v(AV), v(AV))
            A('buffer_store_short', v(AV), v(RDEST), WS, sMEMc, mods=f'offen {sc}'.strip())
            A('s_branch', L('rdone'))
            A.label(L(f'rbad{st}'))
            rloads(st)
        A('s_cmp_lg_u32', sDEAD, 0); A('s_cbranch_scc1', L('rok'))
        A('s_add_u32', sSPIN, sSPIN, 1)
        A('s_cmp_lt_u32', sSPIN, SPIN_MAX); A('s_cbranch_scc1', L('rloop'))
        A('s_mov_b32', sDEAD, 1)
        A('s_branch', L('rok'))
        A.label(L('rdone'))
        stamp(5)
        if not env('LATEPO', 0):
            A('v_mov_b32', v(AV + 1), hex(SENT))
            A('buffer_store_short', v(AV + 1), v(RDEST), WS, sMEMo, mods=f'offen {sc}'.strip())
        A.reset_counts()
        xl = 0
        if w in (1, 2) and env('P1POS', 0) == 1: fill(qslot[2], qk[2]); fill(qslot[3], qk[3]); xl = 4
        kdma()
        pub_read(AV, AV + 4)
        A('s_add_u32', sT2, sMEMc, 1024 * KOWN[w])
        A('s_xor_b32', sTAG, sTAG, 1); A('s_add_u32', sKM, sKM, 32 * 4096)
        A('s_xor_b32', sMEMc, sMEMc, sDMEM); A('s_xor_b32', sMEMo, sMEMo, sDMEM)
        if not X_NOADV: A('s_add_u32', sVT, sVT, 32 * 8192)
        A('s_add_u32', sS, sS, 1)
        A('s_mov_b32', sSPIN, 0)
        A('s_mov_b32', 'm0', L_MEM + 1024 * KOWN[w])
        def gdma():
            for j in range(nd): A('buffer_load_dwordx4', v(LANE16), WS, sT2, mods=f'offen offset:{1024*j} sc1 lds')
        if w == 3: w3prep()
        if env('GSL', 2) >= 0: A('s_sleep', env('GSL', 2))
        else:
            for i in range(GDELAY - (8 if w == 3 else 0)): A('v_mov_b32', v(AW + (i % 8)), 0)
        gdma()
        A('s_waitcnt', f'vmcnt({(3 if env("LATEPO", 0) else 4) + nd + xl})')
        if w in (0, 3): fill(qslot[2], qk[2]); fill(qslot[3], qk[3])
        for i in range(0, 16, 2): A('v_mov_b64', v(AQK + i, 2), 0)
        if env('GSL', 2) >= 0: A('s_sleep', env('GSL2', 2))
        else:
            for i in range(env('GGAP', 24)): A('v_mov_b32', v(AW + (i % 8)), 0)
        gdma()
        A.label(L('gloop'))
        A('s_waitcnt', f'vmcnt({nd})')
        for j in range(nd): A('ds_read_b128', v(ownreg[j], 4), v(LANE16), mods=f'offset:{L_MEM + 1024*KO[j]}')
        gdma()
        gregs = [r_ + i for r_ in ownreg for i in range(4)]
        A('s_waitcnt', f'lgkmcnt({nd-1})')
        m0_ = AQK + 15
        A('v_pk_max_u16', v(m0_), v(gregs[0]), v(gregs[1]))
        for i in range(2, len(gregs)):
            if i % 4 == 0: A('s_waitcnt', f'lgkmcnt({nd-1-i//4})')
            A('v_pk_max_u16', v(m0_), v(m0_), v(gregs[i]))
        emit_check(A, m0_, AQK + 14, gregs, L('gloop'), L('loop'), define=False)
        A('s_branch', L('loop'))
        A.label(L('last'))
        A.reset_counts()
        pub_read(AV, AV + 4); A('s_add_u32', sKM, sKM, 32 * 4096)
        A('s_waitcnt', 'lgkmcnt(0)')
        A('buffer_store_dwordx4', v(AV, 4), v(LANE16), WS, sKM, mods='offen sc1')
        A('s_waitcnt', 'vmcnt(0)')
        A('s_barrier')
        if w == 3:
            A('v_mov_b32', v(XR), nsteps)
            A('s_mov_b64', 'exec', 1)
            A('buffer_store_dword', v(XR), 'off', WS, sFLO, mods='sc1')
            A('s_mov_b64', 'exec', -1)
        if dbg and not env('FRZ'): dump()
        A('s_waitcnt', 'vmcnt(0) lgkmcnt(0)')
        A('s_endpgm')

def emit_check(A, m0, m1, regs, retry, ok, define=True):
    A('v_pk_max_u16', v(m0), v(m0), v(m0), mods='op_sel:[0,1] op_sel_hi:[1,0]')
    A('v_cmp_le_u32', 'vcc', '0xff810000', v(m0))
    A('s_cbranch_vccz', ok)
    A('s_add_u32', sSPIN, sSPIN, 1)
    A('s_cmp_lt_u32', sSPIN, 64); A('s_cbranch_scc1', retry)
    A('s_cmp_lg_u32', sDEAD, 0); A('s_cbranch_scc1', ok)
    A('v_mov_b32', v(m0), -1)
    for r_ in regs:
        A('v_xor_b32', v(m1), hex(SENT), v(r_)); A('v_pk_min_u16', v(m0), v(m0), v(m1))
    A('v_pk_min_u16', v(m0), v(m0), v(m0), mods='op_sel:[0,1] op_sel_hi:[1,0]')
    A('v_mov_b32', v(m1), 0)
    A('v_cmp_eq_u32', 'vcc', 0, v(m0))
    A('s_cbranch_vccz', ok)
    A('s_sleep', 1)
    A('s_cmp_lt_u32', sSPIN, SPIN_MAX); A('s_cbranch_scc1', retry)
    A('s_mov_b32', sDEAD, 1)
    if define: A.label(ok)
```

```python
from asmgen import *
from layout import *
from chain import tstamp, sMODE, WS, SQ, SK, SV, SO, SX, SM0, SW1, SW2, SOUT, SDBG, f32bits, SPIN_MAX
sW, sI, sL, sU = 's52', 's53', 's54', 's55'
sIN, sOUT_, sFI, sFO, sPROG, sPEND, sLB, sNX, sA, sB, sC_, sD = ['s%d' % i for i in range(56, 68)]
sSPIN, sDEAD = 's68', 's69'
sT0, sT1, sT2, sT3 = 's70', 's71', 's72', 's73'
NU = 64
CHK1 = [int(x) for x in __import__('os').environ.get('CHK1', '10,20,30').split(',')]
import os
DBG = int(os.environ.get('DBG', 0))
LN_, L16, FOFF = 0, 1, 2
FV = 4
TM = 8

def common_setup(A, nlines):
    A('v_and_b32', v(LN_), 63, 'v0'); A('v_lshlrev_b32', v(L16), 4, v(LN_))
    A('v_min_u32', v(FOFF), nlines - 1, v(LN_)); A('v_lshlrev_b32', v(FOFF), 7, v(FOFF))
    A('s_mov_b32', sU, 0); A('s_mov_b32', sPROG, 0); A('s_mov_b32', sPEND, 0); A('s_mov_b32', sDEAD, 0)

def ph(A, i):
    if DBG: A('s_memtime', s(2 * i + (4 if i < 2 else 90 - 4), 2)) if False else None
PHR = [4, 6, 88, 94, 100]
def ph(A, i):
    if DBG: A('s_memtime', s(PHR[i], 2))
def ph_dump(A, tmp=3):
    if not DBG: return
    sk = A.newlabel('phd')
    A('s_cmp_lg_u32', sU, 40); A('s_cbranch_scc1', sk)
    A('s_lshr_b32', 's92', sFO, 7); A('s_lshl_b32', 's92', 's92', 2); A('s_bfe_u32', 's93', sFO, 0x20002); A('s_add_u32', 's92', 's92', 's93')
    A('s_lshl_b32', 's92', 's92', 6); A('s_add_u32', 's92', 's92', DBGT + (3 << 20))
    A('s_waitcnt', 'lgkmcnt(0)')
    for i, r in enumerate(PHR):
        A('v_mov_b32', v(tmp), s(r)); A('buffer_store_dword', v(tmp), 'off', WS, 's92', mods=f'offset:{4*i}'); A.vm.pop()
    A.label(sk)

def flag_load(A, soff=sFI, reg=FV, voff=FOFF, n=4):
    op = {1: 'buffer_load_dword', 2: 'buffer_load_dwordx2', 4: 'buffer_load_dwordx4'}[n]
    A(op, v(reg, n), v(voff), WS, soff, mods='offen sc1', tag='fl')

def flag_min(A, dst, reg=FV, n=4, lanes=64, floor=None):
    if n == 4:
        A('v_min3_u32', v(reg), v(reg), v(reg + 1), v(reg + 2)); A('v_min_u32', v(reg), v(reg), v(reg + 3))
    elif n == 2:
        A('v_min_u32', v(reg), v(reg), v(reg + 1))
    if floor is not None: A('v_max_u32', v(reg), v(reg), v(floor))
    if lanes > 1:
        for sh in (1, 2, 4, 8): A('v_min_u32_dpp', v(reg), v(reg), v(reg), mods=f'row_ror:{sh} row_mask:0xf bank_mask:0xf')
    A('v_readlane_b32', sT0, v(reg), 0)
    if lanes > 16:
        assert lanes <= 32
        A('v_readlane_b32', sT1, v(reg), 16); A('s_min_u32', sT0, sT0, sT1)
    A('s_max_u32', dst, dst, sT0)

def poll(A, pre, need, prog=sPROG, soff=sFI, reg=FV, voff=FOFF, n=4, lanes=64, floor=None):
    ok = A.newlabel(pre + '_ok'); lp = A.newlabel(pre + '_lp')
    A('s_cmp_gt_u32', prog, need); A('s_cbranch_scc1', ok)
    A('s_mov_b32', sSPIN, 0)
    A.label(lp)
    flag_load(A, soff, reg, voff, n); A.vm.pop()
    A('s_waitcnt', 'vmcnt(0)')
    flag_min(A, prog, reg, n, lanes, floor)
    A('s_cmp_gt_u32', prog, need); A('s_cbranch_scc1', ok)
    A('s_cmp_lg_u32', sDEAD, 0); A('s_cbranch_scc1', ok)
    A('s_sleep', int(os.environ.get('PSL', 2)))
    A('s_add_u32', sSPIN, sSPIN, 1); A('s_cmp_lt_u32', sSPIN, SPIN_MAX); A('s_cbranch_scc1', lp)
    A('s_mov_b32', sDEAD, 1)
    A.label(ok)

def publish(A, val, tmp=3, loc=False):
    A('v_mov_b32', v(tmp), val)
    A('s_mov_b64', 'exec', 1)
    if loc: local_flag(A, lambda md: A('buffer_store_dword', v(tmp), 'off', WS, sFO, mods=md))
    else: A('buffer_store_dword', v(tmp), 'off', WS, sFO, mods='sc1')
    A.vm.pop()
    if DBG: tstamp(A, sFO, val, tmp)
    A('s_mov_b64', 'exec', -1)

def local(A, fn):
    fn('sc1')

def local_flag(A, fn):
    sl = A.newlabel('loc_s'); e = A.newlabel('loc_e')
    A('s_cmp_lg_u32', sMODE, 0); A('s_cbranch_scc1', sl)
    n0 = len(A.vm); fn(''); del A.vm[n0:]
    A('s_branch', e)
    A.label(sl)
    fn('sc1')
    A.label(e)

def flag_out_addr(A, kind):
    A('s_mul_i32', sFO, sL, FL_LAYER); A('s_lshl_b32', sT0, sI, 7); A('s_add_u32', sFO, sFO, sT0)
    A('s_lshl_b32', sT0, sW, 2); A('s_add_u32', sFO, sFO, sT0); A('s_add_u32', sFO, sFO, kind)

def load_weights(A, srd, stride, rowpart, sbase, soffs, dst, perm):
    SRC, TR0, TR1 = TM, TM + 1, TM + 2
    t = [TM + 3 + i for i in range(6)]
    A('v_lshrrev_b32', v(t[0]), 5, v(LN_)); A('v_mul_u32_u24', v(t[0]), rowpart, v(t[0]))
    A('v_bfe_u32', v(t[1]), v(LN_), 3, 2); A('v_add_u32', v(t[0]), v(t[0]), v(t[1]))
    A('s_mov_b32', sT0, stride); A('v_mul_lo_u32', v(t[0]), v(t[0]), sT0)
    A('v_bfe_u32', v(t[1]), v(LN_), 4, 1); A('v_lshlrev_b32', v(t[1]), 2, v(t[1])); A('v_and_b32', v(t[2]), 7, v(LN_)); A('v_xor_b32', v(t[1]), v(t[1]), v(t[2]))
    A('v_lshl_add_u32', v(t[0]), v(t[1]), 4, v(t[0])); A('v_add_u32', v(SRC), sbase, v(t[0]))
    A('s_mul_i32', sLB, sW, 40960)
    A('v_lshrrev_b32', v(t[0]), 5, v(LN_)); A('v_lshlrev_b32', v(t[0]), 10, v(t[0]))
    A('v_bfe_u32', v(t[1]), v(LN_), 2, 2); A('v_lshl_add_u32', v(t[0]), v(t[1]), 7, v(t[0]))
    A('v_bfe_u32', v(t[1]), v(LN_), 3, 1); A('v_lshl_add_u32', v(t[0]), v(t[1]), 6, v(t[0]))
    A('v_bfe_u32', v(t[1]), v(LN_), 4, 1); A('v_lshl_add_u32', v(t[0]), v(t[1]), 5, v(t[0]))
    if perm:
        A('v_and_b32', v(t[1]), 1, v(LN_)); A('v_lshl_add_u32', v(t[0]), v(t[1]), 4, v(t[0]))
        A('v_bfe_u32', v(t[1]), v(LN_), 1, 1); A('v_lshl_add_u32', v(t[0]), v(t[1]), 3, v(t[0]))
    else:
        A('v_and_b32', v(t[1]), 3, v(LN_)); A('v_lshl_add_u32', v(t[0]), v(t[1]), 3, v(t[0]))
    A('v_add_u32', v(TR0), sLB, v(t[0])); A('v_xor_b32', v(TR1), 64, v(TR0))
    n_st = len(soffs); depth = 20
    def dma(n):
        for b in range(2):
            A('s_add_u32', 'm0', sLB, (n % depth) * 2048 + b * 1024)
            A('s_mov_b32', sT0, soffs[n][b])
            A('buffer_load_dwordx4', v(SRC), srd, sT0, mods='offen lds', tag=('W', n))
    for n in range(min(depth, n_st)): dma(n)
    for n in range(n_st):
        A.wait(vm=[('W', n)])
        for T in range(2):
            for hq in range(2):
                A('ds_read_b64_tr_b16', R(dst(n, T) + 2 * hq, 2), v(TR0 if T == 0 else TR1), mods=f'offset:{(n % depth)*2048 + 512*hq}', tag=('T', n))
        if n >= 1 and n - 1 + depth < n_st:
            A.wait(lg=[('T', n - 1)]); dma(n - 1 + depth)
    A.wait(vm=0, lg=0)

def emit_gemm1(A, kind, ready):
    P = f'G1{kind}_'
    A.label(P + 'entry'); A.reset_counts()
    RING, ACC, STG, WR = 64, 128, 160, 192
    AD, SA = 32, 33
    wreg = lambda n, T: WR + (2 * n + T) * 4
    common_setup(A, 2)
    FLR = 34
    A('v_mov_b32', v(FLR), 0)
    if kind != 'f1':
        A('s_cmp_eq_u32', sL, 0); A('s_cselect_b32', sT0, 15, 1); A('v_min_u32', v(FOFF), sT0, v(LN_))
        A('v_lshrrev_b32', v(FLR), 1, v(FOFF)); A('v_lshlrev_b32', v(FOFF), 7, v(FOFF))
    if kind == 'f1':
        A('s_lshl_b32', sT1, sI, 2); A('s_add_u32', sT1, sT1, sW)
        A('s_lshl_b32', sA, sT1, 7)
        A('s_cmp_lt_u32', sT1, 27); A('s_cselect_b32', sA, sA, '0x20000000')
        A('s_mul_i32', sOUT_, sL, LAYER_H); A('s_lshl_b32', sT1, sT1, 12); A('s_add_u32', sOUT_, sOUT_, sT1); A('s_add_u32', sOUT_, sOUT_, HF)
        load_weights(A, SW1, 3456, 4, sA, [(16 * n * 3456, (16 * n + 8) * 3456) for n in range(40)], wreg, False)
        A('s_mul_i32', sIN, sL, LAYER_X); A('s_add_u32', sIN, sIN, XN1)
        A('s_mul_i32', sFI, sL, FL_LAYER); A('s_add_u32', sFI, sFI, FL_LNA)
        flag_out_addr(A, FL_F1); nl = 2; ostep = UH
        A('v_mov_b32', v(SA), v(L16))
    else:
        A('s_mul_i32', sT1, sI, 43); A('s_lshr_b32', sB, sT1, 7)
        A('s_mul_i32', sT1, sB, 3); A('s_sub_u32', sC_, sI, sT1)
        A('s_lshl_b32', sA, sB, 9); A('s_lshl_b32', sT1, sW, 7); A('s_add_u32', sA, sA, sT1)
        soffs = [(16 * n * 8192, (16 * n + 8) * 8192) for n in range(40)]
        if kind == 'v':
            load_weights(A, SV, 8192, 4, sA, soffs, wreg, False)
        else:
            A('s_cmp_eq_u32', sC_, 0)
            A('s_cselect_b32', 's76', 's12', 's16'); A('s_cselect_b32', 's77', 's13', 's17'); A('s_mov_b32', 's78', hex(640 * 4096 * 2)); A('s_mov_b32', 's79', '0x20000')
            load_weights(A, 's[76:79]', 8192, 4, sA, soffs, wreg, False)
        A('s_mul_i32', sOUT_, sL, LAYER_F); A('s_lshl_b32', sT1, sB, 14); A('s_add_u32', sOUT_, sOUT_, sT1)
        A('s_lshr_b32', sT1, sW, 1); A('s_lshl_b32', sT1, sT1, 13); A('s_add_u32', sOUT_, sOUT_, sT1)
        A('s_and_b32', sT1, sW, 1)
        if kind == 'v':
            A('s_lshl_b32', sT1, sT1, 12); A('s_add_u32', sOUT_, sOUT_, sT1); A('s_add_u32', sOUT_, sOUT_, VT)
            A('s_mul_i32', 's74', sL, LAYER_KM); A('s_lshl_b32', sT1, sB, 13); A('s_add_u32', 's74', 's74', sT1)
            A('s_lshl_b32', sT1, sW, 11); A('s_add_u32', 's74', 's74', sT1); A('s_add_u32', 's74', 's74', KM)
            for i in range(4): A('v_mov_b32', v(36 + i), hex(SENT))
        else:
            A('s_lshl_b32', sT1, sT1, 11); A('s_add_u32', sOUT_, sOUT_, sT1)
            A('s_cmp_eq_u32', sC_, 0); A('s_cselect_b32', sT1, QF - KF, 0); A('s_add_u32', sOUT_, sOUT_, sT1); A('s_add_u32', sOUT_, sOUT_, KF)
        A('s_mul_i32', sIN, sL, LAYER_X); A('s_add_u32', sIN, sIN, XN)
        A('s_mul_i32', sFI, sL, FL_LAYER); A('s_add_u32', sFI, sFI, FL_XN)
        flag_out_addr(A, FL_QKV); nl = 16; ostep = 32 * 8192
        A('v_bfe_u32', v(TM), v(LN_), 4, 1); A('v_lshlrev_b32', v(TM), 10 if kind == 'v' else 12, v(TM))
        A('v_lshrrev_b32', v(TM + 1), 5, v(LN_)); A('v_lshl_add_u32', v(TM), v(TM + 1), 8, v(TM))
        A('v_and_b32', v(TM + 1), 15, v(LN_)); A('v_lshl_add_u32', v(SA), v(TM + 1), 4, v(TM))
    A('s_mul_i32', sT0, sW, 10240); A('s_add_u32', sIN, sIN, sT0); A('s_mov_b32', sLB, sT0)
    A('s_mov_b32', sD, 0)
    ready(A)
    A('s_barrier')
    def dma_in():
        for i in range(10):
            if i % 4 == 0:
                A('s_add_u32', 'm0', sLB, i * 1024); A('s_add_u32', sT0, sIN, i * 1024)
            A('buffer_load_dwordx4', v(L16), WS, sT0, mods=f'offen offset:{(i%4)*1024} sc1 lds'); A.vm.pop()
        A('s_add_u32', sIN, sIN, UX)
        A('s_add_u32', sT0, sLB, UX); A('s_sub_u32', sT1, sLB, UX); A('s_cmp_ge_u32', sLB, UX); A('s_cselect_b32', sLB, sT1, sT0)
    A.label(P + 'fetch')
    poll(A, P + 'p', sU, lanes=nl, floor=FLR)
    dma_in()
    A('s_waitcnt', 'vmcnt(0)')
    flag_load(A)
    A.label(P + 'top')
    A.reset_counts()
    NST = 4 if kind != 'v' else 6
    ph_dump(A); ph(A, 0)
    A('s_waitcnt', f'vmcnt({NST+1})')
    A('s_barrier')
    ph(A, 1)
    A('v_add_u32', v(AD), sD, v(L16))
    A('s_xor_b32', sD, sD, UX)
    D = 8
    def rd(k): A('ds_read_b128', v(RING + 4 * (k % D), 4), v(AD), mods=f'offset:{k*1024}', tag=('A', k))
    for k in range(D): rd(k)
    A('s_mov_b32', sNX, 0)
    for k in range(40):
        A.wait(lg=[('A', k)])
        x = v(RING + 4 * (k % D), 4)
        for T in range(2):
            wv = R(wreg(k, T), 4); acc = v(ACC + 16 * T, 16)
            a_, b_ = (x, wv) if kind == 'v' else (wv, x)
            A('v_mfma_f32_32x32x16_bf16', acc, a_, b_, '0' if k == 0 else acc)
        if k + D < 40: rd(k + D)
        if k in CHK1:
            sk = A.newlabel(P + 'chk')
            A('s_cmp_lg_u32', sNX, 0); A('s_cbranch_scc1', sk)
            A('s_waitcnt', 'vmcnt(0)')
            if k == CHK1[0]:
                s2 = A.newlabel(P + 'nop')
                A('s_cmp_eq_u32', sPEND, 0); A('s_cbranch_scc1', s2)
                publish(A, sU, loc=(kind == 'f1')); A('s_mov_b32', sPEND, 0)
                A.label(s2)
            flag_min(A, sPROG, lanes=nl, floor=FLR)
            s3 = A.newlabel(P + 'nopf')
            A('s_add_u32', sT2, sU, 1); A('s_min_u32', sPROG, sPROG, NU); A('s_cmp_gt_u32', sPROG, sT2); A('s_cbranch_scc0', s3)
            dma_in()
            A('s_mov_b32', sNX, 1)
            A('s_branch', sk)
            A.label(s3)
            if k != CHK1[-1]: flag_load(A); A.vm.pop()
            A.label(sk)
    ph(A, 4)
    flag_load(A)
    if kind == 'v':
        for i in range(2): A('buffer_store_dwordx4', v(36, 4), v(L16), WS, 's74', mods=f'offen offset:{1024*i} sc1')
        A('s_add_u32', 's74', 's74', 32 * 4096)
    for T in range(2):
        ac = ACC + 16 * T
        for i in range(2):
            st = STG + 8 * T + 4 * i
            if kind == 'qk':
                for c in range(4): A('v_cvt_pk_bf16_f32', v(st + c), v(ac + 4 * i + c), v(ac + 8 + 4 * i + c))
                off = T * 1024 + i * 512
            elif kind == 'v':
                for hh in range(2):
                    for c in range(2): A('v_cvt_pk_bf16_f32', v(st + 2 * hh + c), v(ac + 8 * hh + 4 * i + 2 * c), v(ac + 8 * hh + 4 * i + 2 * c + 1))
                off = T * 2048 + i * 512
            else:
                for c in range(4):
                    A('v_cvt_pk_bf16_f32', v(st + c), v(ac + 8 * i + 2 * c), v(ac + 8 * i + 2 * c + 1))
                    A('v_pk_max_i16', v(st + c), v(st + c), 0)
                off = T * 2048 + i * 1024
            if kind == 'f1': local(A, lambda md: A('buffer_store_dwordx4', v(st, 4), v(SA), WS, sOUT_, mods=f'offen offset:{off} {md}'))
            else: A('buffer_store_dwordx4', v(st, 4), v(SA), WS, sOUT_, mods=f'offen offset:{off} sc1')
    A('s_add_u32', sOUT_, sOUT_, ostep)
    A('s_add_u32', sU, sU, 1); A('s_mov_b32', sPEND, 1)
    A('s_cmp_lg_u32', sNX, 0); A('s_cbranch_scc1', P + 'top')
    A('s_waitcnt', 'vmcnt(0)')
    publish(A, sU, loc=(kind == 'f1')); flag_min(A, sPROG, lanes=nl, floor=FLR); A('s_mov_b32', sPEND, 0)
    A('s_cmp_lt_u32', sU, NU); A('s_cbranch_scc1', P + 'fetch')
    A('s_endpgm')

def emit_gemm2(A, kind, ready):
    P = f'G2{kind}_'
    A.label(P + 'entry'); A.reset_counts()
    nk = 32 if kind == 'op' else 27
    RING, ACC, RT = 64, 192, 224
    LW, LR, RES, SA = 32, 33, 36, 34
    wreg = lambda n, T: 256 + (2 * n + T) * 4
    if kind == 'op':
        common_setup(A, 1); nl = 1
        A('s_cmp_ge_u32', sI, 10); A('s_cselect_b32', sB, 1, 0)
        A('s_mul_i32', sT1, sB, 10); A('s_sub_u32', sC_, sI, sT1)
        A('s_lshl_b32', sT1, sB, 2); A('s_add_u32', sT1, sT1, sW)
        A('s_mul_i32', sA, sT1, 4 * 163840); A('s_lshl_b32', sT2, sC_, 7); A('s_add_u32', sA, sA, sT2)
        A('s_mul_i32', sIN, sL, LAYER_F); A('s_lshl_b32', sT2, sT1, 15); A('s_add_u32', sIN, sIN, sT2); A('s_add_u32', sIN, sIN, OF)
        A('s_mul_i32', sFI, sL, FL_LAYER); A('s_lshl_b32', sT2, sT1, 7); A('s_add_u32', sFI, sFI, sT2); A('s_add_u32', sFI, sFI, FL_ATT)
        soffs = [[(128 * (n >> 3) + 32 * ((n & 7) >> 1) + 8 * (n & 1) + 4 * b) * 1280 for b in range(2)] for n in range(32)]
        load_weights(A, SO, 1280, 16, sA, [tuple(x) for x in soffs], wreg, True)
        istep = 32 * 8192
        A('s_mul_i32', sOUT_, sL, LAYER_OP); A('s_mul_i32', sT2, sB, UP); A('s_add_u32', sOUT_, sOUT_, sT2)
        A('s_lshl_b32', sT2, sC_, 12); A('s_add_u32', sOUT_, sOUT_, sT2); A('s_lshl_b32', sT2, sW, 10); A('s_add_u32', sOUT_, sOUT_, sT2)
        A('s_add_u32', sOUT_, sOUT_, OPART)
        flag_out_addr(A, FL_OP); ostep = 2 * UP
    else:
        common_setup(A, 7); nl = 7
        A('s_mul_i32', sA, sW, 27 * 16 * 1280); A('s_lshl_b32', sT2, sI, 7); A('s_add_u32', sA, sA, sT2)
        A('s_mul_i32', sIN, sL, LAYER_H); A('s_mul_i32', sT2, sW, 27 * 1024); A('s_add_u32', sIN, sIN, sT2); A('s_add_u32', sIN, sIN, HF)
        A('s_mul_i32', sFI, sL, FL_LAYER); A('s_add_u32', sFI, sFI, FL_F1)
        load_weights(A, SW2, 1280, 8, sA, [((16 * n) * 1280, (16 * n + 4) * 1280) for n in range(27)], wreg, True)
        istep = UH
        A('s_lshl_b32', sT2, sI, 12); A('s_lshl_b32', sT3, sW, 10); A('s_add_u32', sT2, sT2, sT3)
        A('s_mul_i32', sB, sL, LAYER_X); A('s_add_u32', sB, sB, sT2); A('s_add_u32', sB, sB, XRES)
        A('s_mul_i32', 's74', sL, LAYER_OP); A('s_add_u32', 's74', 's74', sT2); A('s_add_u32', 's74', 's74', OPART)
        A('s_add_u32', sOUT_, sT2, XRES + LAYER_X)
        A('s_lshl_b32', sT2, sI, 7); A('s_lshl_b32', sT3, sW, 5); A('s_add_u32', sC_, sT2, sT3)
        A('v_and_b32', v(TM), 31, v(LN_)); A('v_mul_u32_u24', v(TM), 1280, v(TM)); A('v_lshrrev_b32', v(TM + 1), 5, v(LN_)); A('v_lshl_add_u32', v(SA), v(TM + 1), 4, v(TM))
        flag_out_addr(A, FL_F2); ostep = UX
        A('v_and_b32', v(TM), 31, v(LN_)); A('v_mul_u32_u24', v(TM), 144, v(TM)); A('v_lshl_add_u32', v(TM), v(TM + 1), 4, v(TM))
        A('s_lshl_b32', sT2, sW, 5); A('s_add_u32', sT2, sT2, 65536); A('v_add_u32', v(50), sT2, v(TM))
        A('v_lshrrev_b32', v(TM), 3, v(LN_)); A('v_and_b32', v(TM + 1), 7, v(LN_)); A('v_lshlrev_b32', v(TM + 1), 4, v(TM + 1))
        A('v_mad_u32_u24', v(51), v(TM), 36, 0); A('v_lshl_add_u32', v(51), v(51), 2, v(TM + 1))
        A('s_mul_i32', sT2, sW, 8 * 144); A('s_add_u32', sT2, sT2, 65536); A('v_add_u32', v(51), sT2, v(51))
        A('v_mul_u32_u24', v(TM), 1280, v(TM)); A('v_add_u32', v(52), v(TM), v(TM + 1))
        A('s_lshl_b32', 's75', sI, 7); A('s_mul_i32', sT2, sW, 8 * 1280); A('s_add_u32', 's75', 's75', sT2)
    A('s_lshl_b32', sT2, sW, 11); A('v_add_u32', v(LW), sT2, v(L16))
    A('s_lshl_b32', sT2, sW, 13); A('v_add_u32', v(LR), sT2, v(L16))
    ready(A)
    A('s_barrier')
    def ld(k, base):
        if k % 4 == 0: A('s_add_u32', sT3, base, k * 1024)
        A('buffer_load_dwordx4', v(RING + 4 * k, 4), v(L16), WS, sT3, mods=f'offen offset:{(k%4)*1024} sc1'); A.vm.pop()
    A.label(P + 'fetch')
    poll(A, P + 'p', sU, lanes=nl)
    W = int(os.environ.get('G2W', 10))
    for k in range(W): ld(k, sIN)
    A.label(P + 'top')
    A.reset_counts()
    ph_dump(A); ph(A, 0)
    def mm(k, cnt):
        A('s_waitcnt', f'vmcnt({cnt})')
        x = v(RING + 4 * k, 4)
        for T in range(2):
            acc = v(ACC + 16 * T, 16)
            A('v_mfma_f32_32x32x16_bf16', acc, R(wreg(k, T), 4), x, '0' if k == 0 else acc)
    if W % 4: A('s_add_u32', sT3, sIN, (W // 4) * 4096)
    for k in range(nk - W):
        mm(k, W - 1)
        if k == W:
            sk = A.newlabel(P + 'nop')
            A('s_cmp_eq_u32', sPEND, 0); A('s_cbranch_scc1', sk)
            publish(A, sU, loc=(kind == 'op')); A('s_mov_b32', sPEND, 0)
            A.label(sk)
        if k == 0 and kind == 'f2':
            A('buffer_load_dwordx4', v(RES, 4), v(L16), WS, sB, mods='offen sc1'); A.vm.pop()
            A('s_add_u32', sB, sB, UX)
        if k in (1, 2) and kind == 'f2':
            A('buffer_load_dwordx4', v(RES + 4 * k, 4), v(L16), WS, 's74', mods='offen sc1'); A.vm.pop()
            A('s_add_u32', 's74', 's74', UP)
        if k == 14 and kind == 'f2':
            for i in range(4):
                A('v_lshlrev_b32', v(TM), 16, v(RES + i)); A('v_and_b32', v(TM + 1), '0xffff0000', v(RES + i))
                for pp in (1, 2):
                    A('v_lshlrev_b32', v(TM + 2), 16, v(RES + 4 * pp + i)); A('v_and_b32', v(TM + 3), '0xffff0000', v(RES + 4 * pp + i))
                    A('v_add_f32', v(TM), v(TM), v(TM + 2)); A('v_add_f32', v(TM + 1), v(TM + 1), v(TM + 3))
                A('v_cvt_pk_bf16_f32', v(RES + i), v(TM), v(TM + 1))
        if k == nk - 2 * W: flag_load(A); A.vm.pop()
        ld(k + W, sIN)
    assert nk - W > W
    ph(A, 1)
    mm(nk - W, W - 1)
    flag_min(A, sPROG, lanes=nl)
    A('s_add_u32', sIN, sIN, istep)
    A('s_add_u32', sT2, sU, 1); A('s_cmp_gt_u32', sPROG, sT2); A('s_cselect_b32', sNX, 1, 0)
    A('s_cbranch_scc1', P + 'pf')
    for k in range(nk - W + 1, nk): mm(k, nk - 1 - k)
    A('s_branch', P + 'red')
    A.label(P + 'pf')
    ld(0, sIN)
    for k in range(nk - W + 1, nk):
        mm(k, W - 1); ld(k - (nk - W), sIN)
    A.label(P + 'red')
    ph(A, 3)
    flag_load(A); A.vm.pop()
    for q in range(4):
        sk = A.newlabel(P + 'own')
        A('s_cmp_eq_u32', sW, q); A('s_cbranch_scc1', sk)
        A('ds_write_b128', v(LW), v(ACC + 8 * q, 4), mods=f'offset:{q*8192}'); A('ds_write_b128', v(LW), v(ACC + 8 * q + 4, 4), mods=f'offset:{q*8192+1024}')
        A('s_branch', sk + 'e')
        A.label(sk)
        for i in range(0, 8, 2): A('v_mov_b64', v(RT + 24 + i, 2), v(ACC + 8 * q + i, 2))
        A.label(sk + 'e')
    A('s_waitcnt', 'lgkmcnt(0)'); A('s_barrier')
    A('s_lshl_b32', sT2, sW, 11)
    for j in range(1, 4):
        A('s_xor_b32', sT3, sT2, j * 2048); A('v_add_u32', v(TM + j), sT3, v(LR))
        A('ds_read_b128', v(RT + 8 * (j - 1), 4), v(TM + j)); A('ds_read_b128', v(RT + 8 * (j - 1) + 4, 4), v(TM + j), mods='offset:1024')
    A('v_xor_b32', v(LW), 32768, v(LW)); A('v_xor_b32', v(LR), 32768, v(LR))
    A('s_waitcnt', 'lgkmcnt(0)')
    O = RT + 24
    for i in range(8):
        A('v_add_f32', v(RT + i), v(RT + i), v(RT + 8 + i)); A('v_add_f32', v(O + i), v(O + i), v(RT + 16 + i))
    for i in range(8): A('v_add_f32', v(O + i), v(O + i), v(RT + i))
    if kind == 'op':
        for i in range(4): A('v_cvt_pk_bf16_f32', v(RT + i), v(O + 2 * i), v(O + 2 * i + 1))
        A('buffer_store_dwordx4', v(RT, 4), v(L16), WS, sOUT_, mods='offen sc1')
    else:
        for i in range(4):
            A('v_cvt_pk_bf16_f32', v(RT + i), v(O + 2 * i), v(O + 2 * i + 1))
            A('v_lshlrev_b32', v(O + 2 * i), 16, v(RT + i)); A('v_and_b32', v(O + 2 * i + 1), '0xffff0000', v(RT + i))
            A('v_lshlrev_b32', v(RT + 8), 16, v(RES + i)); A('v_and_b32', v(RT + 9), '0xffff0000', v(RES + i))
            A('v_add_f32', v(O + 2 * i), v(O + 2 * i), v(RT + 8)); A('v_add_f32', v(O + 2 * i + 1), v(O + 2 * i + 1), v(RT + 9))
            A('v_cvt_pk_bf16_f32', v(RT + 4 + i), v(O + 2 * i), v(O + 2 * i + 1))
        l1 = A.newlabel(P + 'l1')
        A('s_cmp_lg_u32', sL, 0); A('s_cbranch_scc1', l1)
        local(A, lambda md: A('buffer_store_dwordx4', v(RT + 4, 4), v(L16), WS, sOUT_, mods=f'offen {md}'))
        A('s_branch', l1 + 'e')
        A.label(l1)
        if int(os.environ.get('OUTT', 0)):
            A('ds_write_b128', v(50), v(RT + 4, 4)); A('s_waitcnt', 'lgkmcnt(0)'); A('s_barrier')
            A('ds_read_b128', v(RT + 8, 4), v(51)); A('s_waitcnt', 'lgkmcnt(0)')
            A('buffer_store_dwordx4', v(RT + 8, 4), v(52), SOUT, 's75', mods='offen ' + os.environ.get('OUTMOD', 'nt'))
            A('s_add_u32', 's75', 's75', 32 * 1280)
        else:
            A('buffer_store_dwordx4', v(RT + 4, 4), v(SA), SOUT, sC_, mods='offen ' + os.environ.get('OUTMOD', 'nt'))
            A('s_add_u32', sC_, sC_, 32 * 1280)
        A.label(l1 + 'e')
    ph(A, 4)
    A('s_add_u32', sOUT_, sOUT_, ostep)
    A('s_add_u32', sU, sU, 1); A('s_mov_b32', sPEND, 1)
    A('s_cmp_lg_u32', sNX, 0); A('s_cbranch_scc1', P + 'top')
    A('s_waitcnt', 'vmcnt(0)')
    publish(A, sU, loc=(kind == 'op')); flag_min(A, sPROG, lanes=nl); A('s_mov_b32', sPEND, 0)
    A('s_cmp_lt_u32', sU, NU); A('s_cbranch_scc1', P + 'fetch')
    A('s_endpgm')

def xlane_sum(A, r, t, rors):
    for sh in rors: A('v_add_f32_dpp', v(r), v(r), v(r), mods=f'row_ror:{sh} row_mask:0xf bank_mask:0xf')
    A('v_mov_b32', v(t), v(r)); A('v_permlane16_swap_b32', v(t), v(r)); A('v_add_f32', v(r), v(r), v(t))
    A('v_mov_b32', v(t), v(r)); A('v_permlane32_swap_b32', v(t), v(r)); A('v_add_f32', v(r), v(r), v(t))

def emit_ln(A, mode, ready, after=None):
    P = mode.upper() + '_'
    A.label(P + 'entry'); A.reset_counts()
    X, P0, P1, X1R, F, O = 44, 64, 104, 144, 164, 204
    VF, VP, LW = 32, 33, 34
    nl = {'ln0': 1, 'ln1': 10, 'lna': 20}[mode]
    step = 8 if mode == 'ln0' else 1
    common_setup(A, nl)
    A('v_lshrrev_b32', v(TM), 4, v(LN_)); A('v_and_b32', v(TM + 1), 15, v(LN_))
    A('v_lshlrev_b32', v(TM + 2), 9, v(TM)); A('v_lshl_add_u32', v(VF), v(TM + 1), 4, v(TM + 2))
    A('s_lshl_b32', sT0, sW, 2); A('v_add_u32', v(LW), sT0, v(L16))
    A('s_and_b32', sT3, sI, 1); A('s_lshl_b32', sT3, sT3, 8)
    A('s_mul_i32', sT2, sW, 20 * 512); A('s_add_u32', sT2, sT2, sT3)
    if mode == 'ln0':
        A('v_mul_u32_u24', v(TM + 2), 1280, v(TM + 1)); A('v_lshl_add_u32', v(VP), v(TM), 4, v(TM + 2))
        A('s_lshr_b32', sU, sI, 1); A('s_mul_i32', sT1, sU, UX); A('s_add_u32', sT2, sT2, sT1)
        A('s_add_u32', sB, sT2, XRES); A('s_add_u32', sOUT_, sT2, XN)
        A('s_mul_i32', sA, sT3, 80); A('s_add_u32', sA, sA, sT1); A('s_mul_i32', sT1, sW, 320); A('s_add_u32', sA, sA, sT1)
        A('s_mov_b32', sPROG, NU); A('s_mov_b32', 's78', sL); A('s_mov_b32', sL, 0)
        flag_out_addr(A, FL_XN); A('s_mov_b32', sL, 's78')
    elif mode == 'ln1':
        A('s_add_u32', sIN, sT2, XRES + LAYER_X); A('s_add_u32', sOUT_, sT2, XN + LAYER_X)
        A('s_mov_b32', sFI, FL_F2); A('s_mov_b32', sL, 1)
        flag_out_addr(A, FL_XN)
    else:
        A('s_mul_i32', sA, sL, LAYER_OP); A('s_add_u32', sA, sA, sT2); A('s_add_u32', sA, sA, OPART)
        A('s_mul_i32', sT1, sL, LAYER_X); A('s_add_u32', sT2, sT2, sT1)
        A('s_add_u32', sIN, sT2, XRES); A('s_add_u32', sOUT_, sT2, XN1); A('s_add_u32', sB, sT2, X1)
        A('s_mul_i32', sFI, sL, FL_LAYER); A('s_add_u32', sFI, sFI, FL_OP)
        flag_out_addr(A, FL_LNA)
    def f5(op, reg, base):
        for i in range(5):
            if i % 2 == 0: A('s_add_u32', sT3, base, i * 2048)
            A(op, v(reg + 4 * i, 4), v(VF), WS, sT3, mods=f'offen offset:{(i%2)*2048} sc1')
    nld = {'ln0': 5, 'ln1': 6, 'lna': 16}[mode]
    def loads():
        if mode == 'ln0':
            for i in range(5): A('buffer_load_dwordx4', v(X + 4 * i, 4), v(VP), SX, sA, mods=f'offen offset:{64*i}')
            A('s_add_u32', sA, sA, 8 * UX)
            return
        f5('buffer_load_dwordx4', X, sIN)
        if mode == 'lna':
            f5('buffer_load_dwordx4', P0, sA); A('s_add_u32', sA, sA, UP)
            f5('buffer_load_dwordx4', P1, sA); A('s_add_u32', sA, sA, UP)
        flag_load(A)
        A('s_add_u32', sIN, sIN, UX)
    a0, a1, tt = TM, TM + 2, TM + 4
    def xsum(region, mid=None):
        xlane_sum(A, a0, tt, [])
        A('ds_write_b32', v(LW), v(a0), mods=f'offset:{region}')
        if mid: mid()
        A('s_waitcnt', 'lgkmcnt(0)'); A('s_barrier')
        A('ds_read_b128', v(a0, 4), v(L16), mods=f'offset:{region}')
        A('s_waitcnt', 'lgkmcnt(0)')
        A('v_pk_add_f32', v(a0, 2), v(a0, 2), v(a0 + 2, 2)); A('v_add_f32', v(a0), v(a0), v(a0 + 1))
    ready(A)
    A.label(P + 'fetch')
    if mode != 'ln0': poll(A, P + 'p', sU, lanes=nl)
    loads()
    A.label(P + 'top')
    ph_dump(A); ph(A, 0)
    n = 20
    def unp(d, x):
        A('v_lshlrev_b32', v(d), 16, v(x)); A('v_and_b32', v(d + 1), '0xffff0000', v(x))
    fl = 0 if mode == 'ln0' else 1
    if mode == 'lna':
        A('s_waitcnt', 'vmcnt(6)')
        for i in range(n):
            unp(F + 2 * i, X + i); unp(TM + 6, P0 + i)
            A('v_pk_add_f32', v(F + 2 * i, 2), v(F + 2 * i, 2), v(TM + 6, 2))
    for i in range(n):
        if i % 4 == 0: A('s_waitcnt', f'vmcnt({4 - i//4 + fl})')
        if mode == 'lna':
            unp(TM + 6, P1 + i)
            A('v_pk_add_f32', v(F + 2 * i, 2), v(F + 2 * i, 2), v(TM + 6, 2))
            A('v_cvt_pk_bf16_f32', v(X1R + i), v(F + 2 * i), v(F + 2 * i + 1))
            unp(F + 2 * i, X1R + i)
        else:
            unp(F + 2 * i, X + i)
            if mode == 'ln0': A('v_mov_b32', v(X1R + i), v(X + i))
        if i == 1: A('v_pk_add_f32', v(a0, 2), v(F, 2), v(F + 2, 2))
        elif i > 1: A('v_pk_add_f32', v(a0, 2), v(a0, 2), v(F + 2 * i, 2))
    ph(A, 1)
    A('v_add_f32', v(a0), v(a0), v(a0 + 1))
    def pf():
        A('s_add_u32', sU, sU, step)
        if mode != 'ln0':
            A('s_waitcnt', 'vmcnt(0)'); flag_min(A, sPROG, lanes=nl)
        A('s_cmp_gt_u32', sPROG, sU); A('s_cselect_b32', sNX, 1, 0)
        A('s_cselect_b32', 's74', sIN, '0x20000000'); A('s_cselect_b32', 's75', sA, '0x20000000')
        A('s_cselect_b32', sT2, UX, 0); A('s_add_u32', sIN, sIN, sT2)
        A('s_mul_i32', sT2, sT2, 8 if mode == 'ln0' else 2); A('s_add_u32', sA, sA, sT2)
    pl = []
    for i in range(5):
        if mode == 'ln0': pl.append(lambda i=i: A('buffer_load_dwordx4', v(X + 4 * i, 4), v(VP), SX, 's75', mods=f'offen offset:{64*i}'))
        else: pl.append(lambda i=i: (A('s_add_u32', 's76', 's74', (i // 2) * 4096), A('buffer_load_dwordx4', v(X + 4 * i, 4), v(VF), WS, 's76', mods=f'offen offset:{(i%2)*2048} sc1')))
    if mode == 'lna':
        for pp, reg in ((0, P0), (1, P1)):
            for i in range(5):
                pl.append(lambda i=i, pp=pp, reg=reg: (A('s_add_u32', 's76', 's75', pp * UP + (i // 2) * 4096), A('buffer_load_dwordx4', v(reg + 4 * i, 4), v(VF), WS, 's76', mods=f'offen offset:{(i%2)*2048} sc1')))
    xsum(0, pf)
    A('v_mul_f32', v(a0), hex(f32bits(-1.0 / 640)), v(a0)); A('v_mov_b32', v(a0 + 1), v(a0))
    def rnd(r):
        A('v_cvt_pk_bf16_f32', v(r), v(r), v(r)); A('v_lshlrev_b32', v(r), 16, v(r))
    dm = TM + 10
    A('v_mov_b32', v(dm), v(a0)); rnd(dm); A('v_sub_f32', v(dm), v(dm), v(a0))
    for i in range(n):
        A('v_pk_add_f32', v(F + 2 * i, 2), v(F + 2 * i, 2), v(a0, 2))
        if i == 0: A('v_pk_mul_f32', v(a1, 2), v(F, 2), v(F, 2))
        else: A('v_pk_fma_f32', v(a1, 2), v(F + 2 * i, 2), v(F + 2 * i, 2), v(a1, 2))
        if i % 4 == 3 and pl: pl.pop(0)()
    A('v_add_f32', v(a0), v(a1), v(a1 + 1))
    def st1():
        if mode == 'ln0':
            f5('buffer_store_dwordx4', X1R, sB); A('s_add_u32', sB, sB, step * UX)
    xsum(1024, st1)
    A('v_mul_f32', v(a1), hex(f32bits(1.0 / 640)), v(a0)); rnd(a1)
    A('v_add_f32', v(a1), hex(f32bits(1e-5)), v(a1)); rnd(a1)
    A('v_sqrt_f32', v(a1), v(a1)); rnd(a1)
    A('v_rcp_f32', v(a0), v(a1)); A('v_mov_b32', v(a0 + 1), v(a0))
    A('v_mul_f32', v(dm), v(dm), v(a0)); A('v_mov_b32', v(dm + 1), v(dm))
    for i in range(n):
        A('v_pk_fma_f32', v(F + 2 * i, 2), v(F + 2 * i, 2), v(a0, 2), v(dm, 2))
        A('v_cvt_pk_bf16_f32', v(O + i), v(F + 2 * i), v(F + 2 * i + 1))
        if i % 4 == 3:
            k = i // 4
            if k % 2 == 0: A('s_add_u32', sT3, sOUT_, k * 2048)
            A('buffer_store_dwordx4', v(O + 4 * k, 4), v(VF), WS, sT3, mods=f'offen offset:{(k%2)*2048} sc1')
    ph(A, 2)
    A('s_add_u32', sOUT_, sOUT_, step * UX)
    A('s_cmp_lg_u32', sNX, 0); A('s_cbranch_scc1', P + 'pub')
    if mode != 'ln0': flag_load(A)
    A('s_waitcnt', 'vmcnt(0)')
    publish(A, sU)
    if mode != 'ln0': flag_min(A, sPROG, lanes=nl)
    A('s_cmp_lt_u32', sU, NU); A('s_cbranch_scc1', P + 'fetch')
    A('s_branch', P + 'end')
    A.label(P + 'pub')
    nrest = len(pl)
    while pl: pl.pop(0)()
    if mode != 'ln0': flag_load(A); nrest += 1
    A('s_waitcnt', f'vmcnt({nrest})')
    ph(A, 3)
    publish(A, sU)
    A('s_branch', P + 'top')
    A.label(P + 'end')
    if after: after()
    else: A('s_endpgm')

def emit_att(A, ready):
    P = 'ATT_'
    A.label(P + 'entry'); A.reset_counts()
    Q, K, V, KMR, VMR, S, PB, O = 64, 96, 128, 160, 176, 184, 208, 224
    FRK, L8, SA, NEG, ZR = 32, 33, 34, 35, 36
    sCH, sFC, sKMo, sSC = 's74', 's75', 's76', 's77'
    msk = ['s[80:81]', 's[82:83]', 's[84:85]', 's[86:87]']
    common_setup(A, 3)
    g, n = TM, TM + 1
    A('v_lshrrev_b32', v(g), 4, v(LN_)); A('v_and_b32', v(n), 15, v(LN_))
    A('v_and_b32', v(TM + 2), 13, v(n)); A('v_and_b32', v(TM + 3), 1, v(g)); A('v_lshl_or_b32', v(TM + 2), v(TM + 3), 1, v(TM + 2))
    A('v_lshlrev_b32', v(TM + 2), 4, v(TM + 2)); A('v_lshrrev_b32', v(TM + 3), 1, v(g)); A('v_lshl_add_u32', v(FRK), v(TM + 3), 8, v(TM + 2))
    A('v_lshlrev_b32', v(L8), 3, v(LN_))
    A('v_and_b32', v(37), 31, v(LN_)); A('v_lshlrev_b32', v(37), 7, v(37))
    A('v_lshlrev_b32', v(TM + 2), 9, v(g)); A('v_lshl_add_u32', v(SA), v(n), 4, v(TM + 2))
    for r in range(4):
        A('v_lshl_add_u32', v(TM + 2), v(g), 2, r); A('v_cmp_le_u32', msk[r], v(TM + 2), v(n))
    A('v_mov_b32', v(NEG), hex(f32bits(-1e9 * 128 ** 0.5))); A('v_mov_b32', v(ZR), 0)
    A('s_lshl_b32', sT2, sI, 2); A('s_add_u32', sT2, sT2, sW)
    A('s_mul_i32', sT3, sL, LAYER_F); A('s_lshl_b32', sT1, sT2, 13); A('s_add_u32', sT3, sT3, sT1)
    A('s_add_u32', sIN, sT3, KF); A('s_add_u32', sOUT_, sT3, OF)
    A('s_mul_i32', sKMo, sL, LAYER_KM); A('s_lshl_b32', sT1, sT2, 12); A('s_add_u32', sKMo, sKMo, sT1); A('s_add_u32', sKMo, sKMo, KM)
    A('s_mul_i32', sT3, sL, FL_LAYER)
    A('s_lshr_b32', sT1, sT2, 1); A('s_mul_i32', sT1, sT1, 384); A('s_add_u32', sFI, sT3, sT1); A('s_and_b32', sT1, sT2, 1); A('s_lshl_b32', sT1, sT1, 3)
    A('s_add_u32', sFI, sFI, sT1); A('s_add_u32', sFI, sFI, FL_QKV)
    A('s_lshl_b32', sT1, sT2, 7); A('s_add_u32', sFC, sT3, sT1); A('s_add_u32', sFC, sFC, FL_CH)
    A('s_mov_b32', sCH, 0); A('s_mov_b32', sSC, hex(f32bits(128 ** -0.5 * 1.4426950408889634)))
    flag_out_addr(A, FL_ATT)
    ready(A)
    def ld8(reg, base, delta):
        for i in range(8):
            if i % 4 == 0: A('s_add_u32', sT3, base, delta + i * 1024)
            A('buffer_load_dwordx4', v(reg + 4 * i, 4), v(L16), WS, sT3, mods=f'offen offset:{(i%4)*1024} sc1')
    A.label(P + 'fetch')
    poll(A, P + 'p', sU, n=2, lanes=3)
    ld8(Q, sIN, QF - KF); ld8(K, sIN, 0); ld8(V, sIN, VT - KF)
    A.label(P + 'top')
    A('s_waitcnt', 'vmcnt(8)')
    A.reset_counts()
    sreg = {(0, 'm'): S, (0, 0): S + 4, (1, 'm'): S + 8, (1, 0): S + 12, (1, 1): S + 16}
    for kp in range(4):
        for qt, kt in ((0, 0), (1, 0), (1, 1)):
            r = v(sreg[(qt, kt)], 4)
            A('v_mfma_f32_16x16x32_bf16', r, v(K + 16 * kt + 4 * kp, 4), v(Q + 16 * qt + 4 * kp, 4), '0' if kp == 0 else r)
    for base in (sreg[(0, 0)], sreg[(1, 1)]):
        for r in range(4): A('v_cndmask_b32', v(base + r), v(NEG), v(base + r), msk[r])
    A('s_mov_b32', sSPIN, 0)
    A.label(P + 'km')
    for kp in range(4): A('buffer_load_dwordx4', v(KMR + 4 * kp, 4), v(FRK), WS, sKMo, mods=f'offen offset:{1024*kp} sc1', tag=('km', kp))
    for w_ in range(4): A('buffer_load_dwordx2', v(VMR + 2 * w_, 2), v(L8), WS, sKMo, mods=f'offen offset:{1024*w_+512} sc1', tag='vm')
    flag_load(A, n=2)
    regs = [KMR + i for i in range(24)]
    for kp in range(4):
        A.wait(vm=[('km', kp)])
        for qt in range(2):
            r = v(sreg[(qt, 'm')], 4)
            A('v_mfma_f32_16x16x32_bf16', r, v(KMR + 4 * kp, 4), v(Q + 16 * qt + 4 * kp, 4), '0' if kp == 0 else r)
            for i in range(2):
                x = KMR + 4 * kp + 2 * qt + i
                A('v_pk_max_u16', v(TM + 8), v(x), v(x) if x == KMR else v(TM + 8))
    A.wait(vm=0)
    for i in range(8): A('v_pk_max_u16', v(TM + 8), v(VMR + i), v(TM + 8))
    A('v_pk_max_u16', v(TM + 8), v(TM + 8), v(TM + 8), mods='op_sel:[0,1] op_sel_hi:[1,0]')
    A('v_cmp_le_u32', 'vcc', '0xff810000', v(TM + 8))
    A('s_cbranch_vccz', P + 'kmok')
    A('s_cmp_lg_u32', sDEAD, 0); A('s_cbranch_scc1', P + 'kmok')
    if int(os.environ.get('KSL', 2)):
        A('s_cmp_lg_u32', sSPIN, 0); A('s_cbranch_scc1', P + 'kmx')
        A.label(P + 'kmw')
        A('s_sleep', int(os.environ.get('KSL', 2)) - 1)
        A('buffer_load_dword', v(TM + 8), v(37), WS, sKMo, mods='offen sc1'); A('s_waitcnt', 'vmcnt(0)')
        A('s_add_u32', sSPIN, sSPIN, 1)
        A('v_cmp_eq_u32', 'vcc', hex(SENT), v(TM + 8)); A('s_cbranch_vccz', P + 'km')
        A('s_cmp_lt_u32', sSPIN, 4 * SPIN_MAX); A('s_cbranch_scc1', P + 'kmw')
        A.label(P + 'kmx')
    A('v_mov_b32', v(TM + 8), -1)
    for r_ in regs:
        A('v_xor_b32', v(TM + 9), hex(SENT), v(r_)); A('v_pk_min_u16', v(TM + 8), v(TM + 8), v(TM + 9))
    A('v_pk_min_u16', v(TM + 8), v(TM + 8), v(TM + 8), mods='op_sel:[0,1] op_sel_hi:[1,0]')
    A('v_cmp_eq_u32', 'vcc', 0, v(TM + 8))
    A('s_cbranch_vccz', P + 'kmok')
    if int(os.environ.get('KSL2', 0)): A('s_sleep', int(os.environ.get('KSL2', 0)))
    A('s_add_u32', sSPIN, sSPIN, 1); A('s_cmp_lt_u32', sSPIN, 4 * SPIN_MAX); A('s_cbranch_scc1', P + 'km')
    A('s_mov_b32', sDEAD, 1)
    A.label(P + 'kmok')
    A('s_add_u32', sKMo, sKMo, 32 * 4096)
    flag_min(A, sPROG, n=2, lanes=3)
    A('s_add_u32', sT2, sU, 1); A('s_cmp_gt_u32', sPROG, sT2); A('s_cselect_b32', sNX, 1, 0)
    A('s_add_u32', sIN, sIN, 32 * 8192); A('s_cmp_eq_u32', sNX, 0); A('s_cbranch_scc1', P + 'nq')
    ld8(Q, sIN, QF - KF); ld8(K, sIN, 0)
    A.label(P + 'nq')
    for qt in range(2):
        m_ = sreg[(qt, 'm')]
        vals = [m_, m_ + 1] + [sreg[(qt, 0)] + i for i in range(4 + 4 * qt)]
        mx, tm, sm = TM, TM + 1, TM + 2 + qt
        A('v_max3_f32', v(mx), v(vals[0]), v(vals[1]), v(vals[2])); A('v_max3_f32', v(tm), v(vals[3]), v(vals[4]), v(vals[5]))
        if qt:
            A('v_max3_f32', v(mx), v(mx), v(vals[6]), v(vals[7])); A('v_max3_f32', v(tm), v(tm), v(vals[8]), v(vals[9]))
        A('v_max_f32', v(mx), v(mx), v(tm)); A('v_mov_b32', v(tm), v(mx))
        A('v_permlane32_swap_b32', v(tm), v(mx)); A('v_max_f32', v(mx), v(mx), v(tm)); A('v_mov_b32', v(tm), v(mx))
        A('v_permlane16_swap_b32', v(tm), v(mx)); A('v_max_f32', v(mx), v(mx), v(tm))
        A('v_mul_f32', v(mx), sSC, v(mx))
        for r in vals: A('v_fma_f32', v(r), v(r), sSC, '-' + v(mx))
        for r in vals: A('v_exp_f32', v(r), v(r))
        pb = PB + 8 * qt
        for i in range(2 + 2 * qt): A('v_cvt_pk_bf16_f32', v(pb + i), v(vals[2 + 2 * i]), v(vals[3 + 2 * i]))
        if qt == 0: A('v_mov_b64', v(pb + 2, 2), 0)
        A('v_cvt_pk_bf16_f32', v(pb + 4), v(m_), v(m_ + 1)); A('v_mov_b32', v(pb + 5), 0); A('v_mov_b32', v(pb + 6), 0); A('v_mov_b32', v(pb + 7), v(pb + 4))
        A('v_add_f32', v(sm), v(vals[0]), v(vals[1]))
        for r in vals[2:]: A('v_add_f32', v(sm), v(sm), v(r))
        xlane_sum(A, sm, tm, [])
        A('v_rcp_f32', v(sm), v(sm))
    for qt in range(2):
        pb = PB + 8 * qt; sm = TM + 2 + qt
        for et in range(8):
            A('v_mfma_f32_16x16x32_bf16', v(O + 4 * et, 4), v(V + 4 * et, 4), v(pb, 4), '0')
        for et in range(8):
            A('v_mfma_f32_16x16x16_bf16', v(O + 4 * et, 4), v(VMR + 2 * (et >> 1), 2), v(pb + 4 + 2 * (et & 1), 2), v(O + 4 * et, 4))
        for p in range(4):
            st = S + 4 * (p & 1) + 8 * qt if False else KMR + 4 * p
            for i in range(8): A('v_mul_f32', v(O + 8 * p + i), v(O + 8 * p + i), v(sm))
            for i in range(4): A('v_cvt_pk_bf16_f32', v(st + i), v(O + 8 * p + 2 * i), v(O + 8 * p + 2 * i + 1))
            if p % 2 == 0: A('s_add_u32', sT3, sOUT_, p * 2048)
            local(A, lambda md: A('buffer_store_dwordx4', v(st, 4), v(SA), WS, sT3, mods=f'offen offset:{(p%2)*2048 + qt*256} {md}'))
    A('s_add_u32', sOUT_, sOUT_, 32 * 8192); A('s_add_u32', sU, sU, 1)
    A('s_cmp_eq_u32', sNX, 0); A('s_cbranch_scc1', P + 'nv')
    ld8(V, sIN, VT - KF)
    A('s_waitcnt', 'vmcnt(8)')
    publish(A, sU, loc=True)
    A('s_branch', P + 'top')
    A.label(P + 'nv')
    A('s_waitcnt', 'vmcnt(0)')
    publish(A, sU, loc=True)
    A('s_cmp_lt_u32', sU, NU); A('s_cbranch_scc1', P + 'fetch')
    A('s_endpgm')
```

```python
from asmgen import *
from layout import *
import os, struct
def env(n, d=0): return int(os.environ.get(n, d))
X_NOADV, X_NOFLAG, X_NOPUB, X_NOPF = env('X_NOADV'), env('X_NOFLAG'), env('X_NOPUB'), env('X_NOPF')
RDELAY, GDELAY = env('RDELAY', 8), env('GDELAY', 50)
PUBAT = env('PUBAT', 6)
RGAP = env('RGAP', 6)
KVMOD = os.environ.get('KVMOD', 'sc1')

WS = 's[8:11]'; SQ = 's[12:15]'; SK = 's[16:19]'; SV = 's[20:23]'; SO = 's[24:27]'; SX = 's[28:31]'; SM0 = 's[32:35]'
SW1 = 's[36:39]'; SW2 = 's[40:43]'; SOUT = 's[44:47]'; SDBG = 's[48:51]'
sW, sH, sC, sS = 's52', 's53', 's54', 's55'
sMEMc, sMEMo, sPST, sPLD, sPLD1, sSTR, sVT, sKF, sKM, sTAG, sFLO, sPROG, sSPIN, sDEAD = ['s%d' % i for i in range(56, 70)]
sT0, sT1, sT2, sT3 = 's70', 's71', 's72', 's73'
sDMEM, sPST1, sPST2, sXX, sFIN, sSCALE = 's74', 's75', 's76', 's77', 's78', 's79'

sPSTS = [sPST, sPST1, sPST2, sXX, 's4']
sSTRS = [sSTR, 's3', 's5', 's6', 's7']
sONES = 's[40:41]'
sPFK, sPFV, sFOV = 's36', 's37', 's38'
L_MEM = 0; L_QB = 10240; L_KB = 12288; L_VM = 14336; L_KX = 16384; L_O = L_KX; L_W = 24576
UNITS = [9, 8, 8, 9]
L_WBASE = [L_W + 4096 * sum(UNITS[:w]) for w in range(4)]
NSTR = [8, 10, 10, 9]
LANE16, IDX, RDEST, KW, PST2, QKW, FR, LDSW = range(8)
AQK = 8; AV = 24; AW = 32; SL = [40, 48, 56, 64, 72]; RES0 = 80
SPIN_MAX = 1 << 16
STAMPS = ['top', 'b1', 0, 'b2', 'sc', 2, 3, 4, 'r1', 5, 'start']
if env('ACKT'): STAMPS = ['top', 'b1', 0, 'b2', 'sc', 2, 3, 4, 'ack', 5, 'start']
if env('STAMPSET') == 1: STAMPS = ['top', 2, 'p1', 'p2', 'p3', 'p4', 3, 'o4', 'o10', 'o16', 'start']
if env('STAMPSET') == 2: STAMPS = ['top', 'q8', 'q16', 'q24', 'q32', 0, 'sc', 's1', 's2', 2, 'start']

def f32bits(x):
    return struct.unpack('<I', struct.pack('<f', x))[0]

def tstamp(A, sfo, val, tmp):
    A('s_memrealtime', 's[90:91]')
    if env('CLK'): A('s_memtime', 's[94:95]')
    A('s_lshr_b32', 's92', sfo, 7); A('s_lshl_b32', 's92', 's92', 2); A('s_bfe_u32', 's93', sfo, 0x20002); A('s_add_u32', 's92', 's92', 's93')
    A('s_lshl_b32', 's92', 's92', 9); A('s_lshl_b32', 's93', val, 2); A('s_add_u32', 's92', 's92', 's93'); A('s_add_u32', 's92', 's92', DBGT + (1 << 20))
    A('s_waitcnt', 'lgkmcnt(0)')
    A('v_mov_b32', v(tmp), 's90')
    if env('CLK'):
        A('s_bitcmp1_b32', val, 0); A('s_cselect_b32', 's90', 's94', 's90'); A('v_mov_b32', v(tmp), 's90')
    A('buffer_store_dword', v(tmp), 'off', WS, 's92'); A.vm.pop()

KOWN = [0, 3, 6, 8]; NOWN = [3, 3, 2, 2]
def korder(w):
    return [(KOWN[w] + j) % 10 for j in range(10)]

def frag_plan(w):
    qk = []
    for j in range(10):
        qk += [('q', j, 0), ('q', j, 1), ('k', j, 0), ('k', j, 1)]
    qk[34:38] = qk[36:38] + qk[34:36]
    qslot = {0: 0, 1: 1, 2: 2, 3: 3, 4: 4, 10: 2, 11: 3, 16: 4, 17: 2, 22: 3, 23: 4, 28: 2, 29: 3, 34: 4, 35: 2}
    qfill = [(2, 1, 2, 10), (4, 1, 3, 11), (6, 2, 4, 16), (10, 0, 2, 17), (12, 1, 3, 22), (16, 0, 4, 23), (18, 2, 2, 28), (22, 0, 3, 29), (24, 1, 4, 34), (28, 0, 2, 35)]
    oo = []
    for p in range(5):
        oo += [('o', 0, 2 * p), ('o', 0, 2 * p + 1), ('o', 1, 2 * p), ('o', 1, 2 * p + 1)]
    OV = env('OVAR', 3)
    ab, cd, e_ = [([0, 6, 12, 18], 2, 9), ([4, 10, 14, 18], 6, 9), ([6, 10, 14, 18], 8, 13), ([4, 10, 14, 18], 2, 9), ([2, 8, 14, 18], 4, 7)][OV]
    oslot = {cd: 4, cd + 1: 0, e_: 1}
    for x in ab: oslot[x] = 2; oslot[x + 1] = 3
    opre = sorted([ab[0], ab[0] + 1, cd, cd + 1])
    streams = [qk[0], qk[1], qk[4]] + [oo[i] for i in opre] + [oo[e_]]
    ldsf = [qk[i] for i in (10, 11, 16, 17, 22, 23, 28, 29, 34, 35)] + [oo[x + i] for x in ab[1:] for i in range(2)]
    if w in (1, 2): streams += [qk[2], qk[3]]
    else: ldsf += [qk[2], qk[3]]
    if w == 3:
        streams += [qk[25]]; qslot[25] = 0; qfill += [(0, 1, 0, 25)]
    assert len(streams) == NSTR[w] and len(ldsf) == 2 * UNITS[w]
    return qk, qslot, qfill, oo, oslot, ab, cd, e_, opre, streams, ldsf

sMODE = 's96'
def emit_chain_wave(A, w, ready, modes=('', 'sc1'), dbg=False, nsteps=64):
    L = lambda nm: f'CH{w}_{nm}'
    KO = korder(w)
    qk, qslot, qfill, oo, oslot, ab, cd, e_, opre, streams, ldsf = frag_plan(w)
    allf = qk + [('v', j, t) for j in range(10) for t in range(2)] + oo
    res = [f for f in allf if f not in streams and f not in ldsf]
    assert len(res) == (54 if w < 3 else 53), len(res)
    resreg = {f: (RES0 if w < 3 else RES0 + 8) + 8 * i for i, f in enumerate(res)}
    XR = RES0
    strm_idx = {f: i for i, f in enumerate(streams)}
    unit_of = lambda f: (f[0], f[1], f[2] >> 1)
    for i in range(0, len(ldsf), 2):
        assert unit_of(ldsf[i]) == unit_of(ldsf[i + 1]), (ldsf[i], ldsf[i + 1])
    lds_units = [unit_of(ldsf[i]) for i in range(0, len(ldsf), 2)]
    lds_off = {}
    for i, u in enumerate(lds_units):
        for t in range(2):
            lds_off[(u[0], u[1], 2 * u[2] + t)] = i * 4096 + t * 2048
    groups = [[0, 1], [2], [3], [4]][w]
    ng = len(groups)

    def half_fill(slot, f, hf):
        r = SL[slot] + 4 * hf
        tag = ('F', f)
        if f in lds_off:
            A('ds_read_b128', v(r, 4), v(LDSW), mods=f'offset:{lds_off[f] + 1024*hf}', tag=tag)
        else:
            i = strm_idx[f]
            so = sSTRS[i >> 1]
            A('buffer_load_dwordx4', v(r, 4), v(LANE16), WS, so, mods=f'offen offset:{(i&1)*2048 + 1024*hf}', tag=tag)
    def fill(slot, f):
        half_fill(slot, f, 0); half_fill(slot, f, 1)
    def smf(acc, areg, f, slot):
        if slot is None:
            b = R(resreg[f], 8)
        else:
            if f in lds_off: A.wait(lg=[('F', f)])
            else: A.wait(vm=[('F', f)])
            b = v(SL[slot], 8)
        A('v_smfmac_f32_16x16x64_bf16', v(acc, 4), v(areg, 4), b, v(IDX))
    def add2(d, a_, b_):
        A('v_add_f32', v(d), v(a_), v(b_)); A('v_add_f32', v(d + 1), v(a_ + 1), v(b_ + 1))

    A.label(L('entry'))
    A.reset_counts()
    T = [SL[0] + i for i in range(40)]
    ln = T[0]; g = T[1]; c = T[2]
    A('v_and_b32', v(ln), 63, 'v0')
    A('v_lshlrev_b32', v(LANE16), 4, v(ln))
    A('v_lshrrev_b32', v(g), 4, v(ln)); A('v_and_b32', v(c), 15, v(ln))
    A('v_and_b32', v(T[3]), 2, v(ln)); A('v_cmp_ne_u32', 'vcc', 0, v(T[3]))
    A('v_mov_b32', v(T[4]), '0x4444'); A('v_mov_b32', v(T[5]), '0xeeee'); A('v_cndmask_b32', v(IDX), v(T[4]), v(T[5]), 'vcc')
    A('v_and_b32', v(T[3]), 13, v(c)); A('v_and_b32', v(T[4]), 1, v(g)); A('v_lshl_or_b32', v(T[3]), v(T[4]), 1, v(T[3]))
    A('v_lshlrev_b32', v(T[3]), 4, v(T[3])); A('v_lshrrev_b32', v(T[4]), 1, v(g)); A('v_lshl_add_u32', v(FR), v(T[4]), 8, v(T[3]))
    A('v_lshrrev_b32', v(T[3]), 3, v(c)); A('v_lshlrev_b32', v(T[3]), 8, v(T[3]))
    A('v_lshl_add_u32', v(T[3]), v(g), 6, v(T[3]))
    A('v_bfe_u32', v(T[4]), v(c), 2, 1); A('v_lshl_add_u32', v(T[3]), v(T[4]), 5, v(T[3]))
    A('v_and_b32', v(T[4]), 3, v(c)); A('v_lshl_add_u32', v(T[3]), v(T[4]), 2, v(T[3]))
    A('v_add_u32', v(QKW), L_QB + w * 512, v(T[3]))
    A('v_add_u32', v(LDSW), L_WBASE[w], v(LANE16))
    A('v_add_u32', v(KW), L_KB - L_QB, v(QKW))
    A('s_mov_b32', sT0, PIECE)
    A('v_lshrrev_b32', v(T[3]), 3, v(c)); A('v_lshl_add_u32', v(T[3]), v(T[3]), 2, v(g)); A('v_mul_lo_u32', v(T[3]), v(T[3]), sT0)
    A('v_and_b32', v(T[4]), 7, v(c)); A('v_lshl_add_u32', v(PST2), v(T[4]), 3, v(T[3]))
    A('s_mul_i32', sT0, sH, 5); A('s_add_u32', sT0, sT0, groups[0])
    A('v_lshrrev_b32', v(T[3]), 3, v(c)); A('v_add_u32', v(T[3]), sT0, v(T[3]))
    A('v_and_b32', v(T[9]), 3, v(c)); A('v_lshlrev_b32', v(T[9]), 4, v(T[9]))
    A('v_lshl_add_u32', v(T[9]), v(g), 2, v(T[9]))
    A('v_bfe_u32', v(T[8]), v(c), 2, 1); A('v_lshl_add_u32', v(T[9]), v(T[8]), 1, v(T[9]))
    A('v_lshl_add_u32', v(RDEST), v(T[3]), 6, v(T[9]))
    if ng == 1:
        A('v_mov_b32', v(T[6]), '0x40000000'); A('v_cmp_lt_u32', 'vcc', 7, v(c)); A('v_cndmask_b32', v(RDEST), v(RDEST), v(T[6]), 'vcc')
    if w == 3:
        A('v_lshlrev_b32', v(XR + 3), 7, v(ln))
        A('v_mov_b64', v(XR + 6, 2), 0)
        A('v_mov_b32', v(T[6]), '0x40000000'); A('v_cmp_gt_u32', 'vcc', 2, v(ln)); A('v_cndmask_b32', v(XR + 5), v(T[6]), v(XR + 3), 'vcc')
        A('v_cmp_gt_u32', 'vcc', 1, v(ln)); A('v_cndmask_b32', v(XR + 2), v(T[6]), v(XR + 3), 'vcc')
    A('s_mul_i32', sT0, sC, 2 * MEMB_SZ); A('s_add_u32', sMEMc, sT0, MEMB); A('s_add_u32', sMEMo, sMEMc, MEMB_SZ)
    A('s_xor_b32', sDMEM, sMEMc, sMEMo)
    A('s_mul_i32', sT0, sC, PART_SZ); A('s_add_u32', sT0, sT0, PART)
    A('s_lshl_b32', sT1, sH, 6); A('s_add_u32', sPST, sT0, sT1); A('s_add_u32', sPST, sPST, 8 * w * PIECE)
    for p in range(1, 5): A('s_add_u32', sPSTS[p], sPST, 32 * p * PIECE)
    A('s_mul_i32', sT1, sH, 5 * PIECE); A('s_add_u32', sPLD, sT1, sT0); A('s_add_u32', sPLD, sPLD, groups[0] * PIECE)
    A('s_add_u32', sPLD1, sPLD, PIECE)
    A('s_mov_b32', sTAG, 0)
    A('s_lshl_b32', sT0, sC, 5); A('s_add_u32', sT0, sT0, sH)
    A('s_mul_i32', sSTR, sT0, STRM_H); A('s_add_u32', sSTR, sSTR, STRM + 2048 * sum(NSTR[:w]))
    for i in range(1, 5): A('s_add_u32', sSTRS[i], sSTR, 4096 * i)
    A('s_mul_i32', sT0, sC, LAYER_F); A('s_lshl_b32', sT1, sH, 13); A('s_add_u32', sT0, sT0, sT1)
    A('s_add_u32', sVT, sT0, VT + w * 2048); A('s_add_u32', sKF, sT0, KF + w * 2048)
    A('s_mul_i32', sT0, sC, LAYER_KM); A('s_lshl_b32', sT1, sH, 12); A('s_add_u32', sT0, sT0, sT1); A('s_add_u32', sKM, sT0, KM + 1024 * w - 32 * 4096)
    A('s_mul_i32', sT0, sC, FL_LAYER); A('s_lshr_b32', sT1, sH, 1); A('s_mul_i32', sT1, sT1, 3 * 128); A('s_add_u32', sFIN, sT0, sT1); A('s_add_u32', sFIN, sFIN, FL_QKV + 128)
    A('s_and_b32', sT1, sH, 1); A('s_lshl_b32', sT1, sT1, 3); A('s_add_u32', sFIN, sFIN, sT1)
    A('s_lshl_b32', sT1, sH, 7); A('s_add_u32', sFLO, sT0, sT1); A('s_add_u32', sFLO, sFLO, FL_CH)
    A('s_mov_b32', sS, 0); A('s_mov_b32', sPROG, 0); A('s_mov_b32', sDEAD, 0)
    A('s_mov_b32', sSCALE, hex(f32bits(128 ** -0.5 * 1.4426950408889634)))

    SRCQ, SRCO1, SRCO2, TRN, TRO1, TRO2 = AW, AW + 1, AW + 2, AW + 3, AW + 4, AW + 5
    r16 = T[3]; ch = T[4]
    A('v_lshrrev_b32', v(r16), 2, v(ln)); A('v_and_b32', v(ch), 3, v(ln))
    A('v_bfe_u32', v(T[5]), v(r16), 1, 1); A('v_lshlrev_b32', v(T[5]), 3, v(T[5]))
    A('v_bfe_u32', v(T[6]), v(r16), 2, 2); A('v_lshl_add_u32', v(T[5]), v(T[6]), 1, v(T[5]))
    A('v_and_b32', v(T[6]), 1, v(r16)); A('v_add_u32', v(T[5]), v(T[5]), v(T[6]))
    A('v_lshlrev_b32', v(T[5]), 13, v(T[5]))
    A('v_bfe_u32', v(T[6]), v(r16), 3, 1); A('v_lshlrev_b32', v(T[6]), 1, v(T[6])); A('v_xor_b32', v(T[6]), v(ch), v(T[6]))
    A('v_lshl_add_u32', v(T[5]), v(T[6]), 4, v(T[5]))
    A('s_lshl_b32', sT0, sH, 8); A('s_add_u32', sT0, sT0, w * 64); A('v_add_u32', v(SRCQ), sT0, v(T[5]))
    A('v_bfe_u32', v(T[5]), v(r16), 3, 1); A('v_lshlrev_b32', v(T[5]), 4, v(T[5]))
    A('v_bfe_u32', v(T[6]), v(r16), 1, 1); A('v_lshl_add_u32', v(T[5]), v(T[6]), 2, v(T[5]))
    A('v_bfe_u32', v(T[6]), v(r16), 2, 1); A('v_lshl_add_u32', v(T[5]), v(T[6]), 1, v(T[5]))
    A('v_and_b32', v(T[6]), 1, v(r16)); A('v_add_u32', v(T[5]), v(T[5]), v(T[6]))
    A('v_mul_u32_u24', v(T[5]), 1280, v(T[5]))
    A('s_mul_i32', sT0, sH, 163840); A('s_add_u32', sT0, sT0, w * 64); A('v_add_u32', v(T[5]), sT0, v(T[5]))
    A('v_lshl_add_u32', v(SRCO1), v(ch), 5, v(T[5]))
    A('v_lshl_add_u32', v(SRCO2), v(ch), 4, v(T[5]))
    A('v_bfe_u32', v(T[5]), v(ln), 2, 2); A('v_lshl_add_u32', v(T[5]), v(g), 3, v(T[5])); A('v_lshlrev_b32', v(T[5]), 6, v(T[5]))
    A('v_add_u32', v(T[5]), L_WBASE[w], v(T[5]))
    A('v_and_b32', v(T[6]), 1, v(g)); A('v_lshl_add_u32', v(T[6]), v(T[6]), 5, v(T[5])); A('v_lshl_add_u32', v(TRN), v(ch), 3, v(T[6]))
    A('v_xor_b32', v(TRN + 3), 32, v(TRN))
    A('v_lshl_add_u32', v(TRO1), v(ch), 4, v(T[5]))
    A('v_lshrrev_b32', v(T[6]), 1, v(ch)); A('v_lshl_add_u32', v(T[6]), v(T[6]), 5, v(T[5]))
    A('v_and_b32', v(T[7]), 1, v(ch)); A('v_lshl_add_u32', v(TRO2), v(T[7]), 3, v(T[6]))
    CS, CO, CT = AQK, AQK + 1, AQK + 2
    rr = T[5]; ck = T[6]
    A('v_lshlrev_b32', v(ck), 1, v(g)); A('v_xor_b32', v(ck), v(ck), v(c)); A('v_lshlrev_b32', v(ck), 4, v(ck))
    A('v_lshrrev_b32', v(rr), 1, v(g)); A('v_lshlrev_b32', v(rr), 3, v(rr)); A('v_and_b32', v(T[7]), 1, v(g)); A('v_add_u32', v(rr), v(rr), v(T[7]))
    A('v_lshlrev_b32', v(rr), 13, v(rr)); A('s_lshl_b32', sT0, sH, 8); A('v_add3_u32', v(CS), v(rr), v(ck), sT0); A('v_xor_b32', v(CS + 6), 128, v(CS))
    A('v_lshrrev_b32', v(rr), 1, v(g)); A('v_lshlrev_b32', v(rr), 2, v(rr)); A('v_add_u32', v(rr), v(rr), v(T[7]))
    A('v_mul_u32_u24', v(rr), 1280, v(rr)); A('s_mul_i32', sT0, sH, 163840); A('v_add3_u32', v(CO), v(rr), v(ck), sT0); A('v_xor_b32', v(CO + 6), 128, v(CO))
    A('v_bfe_u32', v(rr), v(ln), 2, 2); A('v_lshl_add_u32', v(T[8]), v(T[7]), 2, v(rr)); A('v_lshlrev_b32', v(T[8]), 5, v(T[8]))
    A('v_lshl_add_u32', v(rr), v(g), 3, v(rr)); A('v_lshlrev_b32', v(rr), 8, v(rr)); A('v_add_u32', v(rr), L_W, v(rr))
    for t in range(2):
        A('v_lshl_add_u32', v(T[9]), v(ch), 3, 64 * w + 32 * t) if 64 * w + 32 * t <= 64 else (A('v_lshlrev_b32', v(T[9]), 3, v(ch)), A('v_add_u32', v(T[9]), 64 * w + 32 * t, v(T[9])))
        A('v_xor_b32', v(T[9]), v(T[9]), v(T[8])); A('v_add_u32', v(CT + t), v(T[9]), v(rr))
        A('v_lshrrev_b32', v(T[9]), 1, v(ch)); A('v_lshlrev_b32', v(T[9]), 5, v(T[9])); A('v_and_b32', v(T[10]), 1, v(ch)); A('v_lshl_add_u32', v(T[9]), v(T[10]), 3, v(T[9]))
        A('v_add_u32', v(T[9]), 64 * w + 16 * t, v(T[9]))
        A('v_xor_b32', v(T[9]), v(T[9]), v(T[8])); A('v_add_u32', v(CT + 2 + t), v(T[9]), v(rr))
    for t in range(4): A('v_add_u32', v(CT + 6 + t), 65536, v(CT + t))
    stages = [(X, k, 0) for X in 'qkv' for k in range(10)] + [('o', kp, p) for kp in range(2) for p in range(5)]
    def mine(st, ww):
        X, k, p = st
        return (X, korder(ww).index(k), 0) if X != 'o' else st
    nl_ = {st: sum(1 for ww in range(4) if any(unit_of(f) == mine(st, ww) for f in frag_plan(ww)[10])) for st in stages}
    stages = sorted([st for st in stages if nl_[st] < 4], key=lambda st: nl_[st])
    def cdma(n):
        X, k, p = stages[n]
        for ii in range(4):
            A('s_mov_b32', 'm0', L_W + (n % 8) * 16384 + w * 4096 + ii * 1024)
            if X == 'o':
                A('s_mov_b32', sT0, (64 * k + 32 * (w >> 1) + 8 * (w & 1) + 16 * (ii >> 1) + 2 * (ii & 1)) * 1280 + 256 * p)
                A('buffer_load_dwordx4', v(CO + 6 * (ii >> 1)), SO, sT0, mods='offen lds', tag=('C', n))
            else:
                A('s_mov_b32', sT0, (64 * k + 16 * w + 2 * ii) * 8192)
                A('buffer_load_dwordx4', v(CS + 6 * (ii >> 1)), {'q': SQ, 'k': SK, 'v': SV}[X], sT0, mods='offen lds', tag=('C', n))
    order = list(lds_units)
    pos = {u: i for i, u in enumerate(lds_units)}
    def dma(u):
        X, j, p = u
        for i in range(4):
            A('s_mov_b32', 'm0', L_WBASE[w] + pos[u] * 4096 + i * 1024)
            if X == 'o':
                off = (64 * j + 32 * (i >> 1) + 8 * (i & 1)) * 1280 + 256 * p
                A('s_mov_b32', sT0, off)
                A('buffer_load_dwordx4', v(SRCO2), SO, sT0, mods='offen lds', tag=('U', u))
            else:
                A('s_mov_b32', sT0, (64 * KO[j] + 16 * i) * 8192)
                A('buffer_load_dwordx4', v(SRCQ), {'q': SQ, 'k': SK, 'v': SV}[X], sT0, mods='offen lds', tag=('U', u))
    slot_of = lambda u: (L_WBASE[w] + pos[u] * 4096 - L_W) // 16384
    order = []
    def retire(sl_):
        for u in lds_units:
            if slot_of(u) == sl_: dma(u); order.append(u)
    for n in range(8): cdma(n)
    pend = []
    def flush():
        for f, d in pend:
            i = strm_idx[f]
            A('buffer_store_dwordx4', v(d, 4), v(LANE16), WS, sSTRS[i >> 1], mods=f'offen offset:{(i&1)*2048} sc1', tag='ST')
            A('buffer_store_dwordx4', v(d + 4, 4), v(LANE16), WS, sSTRS[i >> 1], mods=f'offen offset:{(i&1)*2048+1024} sc1', tag='ST')
        pend.clear()
    for n, st in enumerate(stages):
        A.wait(vm=[('C', n)], lg=0)
        A('s_barrier')
        flush()
        if n >= 1 and n + 7 < len(stages): cdma(n + 7)
        if n >= 1 and n + 7 >= len(stages): retire((n - 1) % 8)
        if n + 8 == len(stages): retire(8)
        u = mine(st, w)
        if u in lds_units: continue
        for t in range(2):
            f = (u[0], u[1], 2 * u[2] + t)
            d = resreg[f] if f in resreg else SL[(n & 1) * 2 + t]
            if f in strm_idx: pend.append((f, d))
            ad = CT + t + (2 if u[0] == 'o' else 0) + (6 if (n % 8) >= 4 else 0)
            for q4, ro in enumerate((0, 1024, 8192, 9216)):
                A('ds_read_b64_tr_b16', R(d + 2 * q4, 2), v(ad), mods=f'offset:{(n % 4)*16384 + ro}')
    A.wait(lg=0); A('s_barrier'); flush(); retire((len(stages) - 1) % 8)
    assert len(order) == len(lds_units)
    def consume(u, n):
        X, j, p = u
        A.wait(vm=[('U', u)])
        dst = []
        for t in range(2):
            f = (X, j, 2 * p + t)
            d = resreg[f] if f in resreg else SL[(n & 1) * 2 + t]
            dst.append((f, d))
            if X != 'o': ad, o = (TRN if t == 0 else TRN + 3), 0
            else: ad, o = TRO2, 16 * t
            for q4, ro in enumerate((0, 256, 2048, 2304)):
                A('ds_read_b64_tr_b16', R(d + 2 * q4, 2), v(ad), mods=f'offset:{pos[u]*4096 + ro + o}', tag=('T', u))
        A.wait(lg=0)
        for f, d in dst:
            if f in lds_off:
                A('ds_write_b128', v(LDSW), v(d, 4), mods=f'offset:{lds_off[f]}')
                A('ds_write_b128', v(LDSW), v(d + 4, 4), mods=f'offset:{lds_off[f]+1024}')
            elif f in strm_idx:
                i = strm_idx[f]
                A('s_add_u32', sT1, sSTR, (i >> 1) * 4096)
                A('buffer_store_dwordx4', v(d, 4), v(LANE16), WS, sT1, mods=f'offen offset:{(i&1)*2048}', tag='ST')
                A('buffer_store_dwordx4', v(d + 4, 4), v(LANE16), WS, sT1, mods=f'offen offset:{(i&1)*2048+1024}', tag='ST')
    nd = NOWN[w]
    ownreg = [AW, AW + 4, AV + 4][:nd]
    t0_, t1_, t2_ = AV, AV + 1, AV + 2
    A('v_lshrrev_b32', v(t0_), 4, v(LANE16))
    A('v_bfe_u32', v(t1_), v(t0_), 2, 2); A('v_lshlrev_b32', v(t1_), 1, v(t1_))
    A('v_and_b32', v(t2_), 1, v(t0_)); A('v_add_u32', v(t1_), v(t1_), v(t2_)); A('v_mul_u32_u24', v(t1_), 1280, v(t1_))
    A('v_lshrrev_b32', v(t2_), 4, v(t0_)); A('v_lshl_add_u32', v(t1_), v(t2_), 5, v(t1_))
    A('v_bfe_u32', v(t2_), v(t0_), 1, 1); A('v_lshl_add_u32', v(t1_), v(t2_), 4, v(t1_))
    for j in range(nd): A('buffer_load_dwordx4', v(AQK + 4 + 4 * j, 4), v(t1_), SM0, 0, mods=f'offen offset:{128*KO[j]}')
    A('v_and_b32', v(t2_), 7, v(t0_)); A('v_min_u32', v(AV + 3), 1, v(t2_)); A('v_lshlrev_b32', v(t2_), 2, v(t2_)); A('v_lshl_add_u32', v(t2_), v(AV + 3), 7, v(t2_))
    A('buffer_load_dword', v(AQK), 'off', SDBG, 0, mods='offset:32 sc1')
    A('buffer_load_dword', v(AQK + 1), v(t2_), SDBG, 0, mods='offen sc1')
    A('v_lshlrev_b32', v(t0_), 3, v(LANE16))
    for n, u in enumerate(order):
        consume(u, n)
        if n == len(order) - 2:
            A.wait(vm=['ST'])
            for i in range(3): A('buffer_load_dword', v(AQK + 2), v(t0_), WS, sSTRS[2 * i], mods='offen sc1')
        if n == 0:
            for i in range(2 * ng): A('buffer_load_dwordx4', v(AV + 4, 4), v(LANE16), WS, sPLD if i < 2 else sPLD1, mods=f'offen offset:{(i&1)*1024} sc1')
            A('s_add_u32', sT0, sMEMc, 5120 * w)
            A('buffer_load_dword', v(AQK + 2), v(t0_), WS, sT0, mods='offen sc1')
            if w == 3:
                A('s_sub_u32', sT0, sKF, 3 * 2048); A('buffer_load_dword', v(XR), v(t0_), WS, sT0, mods='offen sc1')
                A('s_add_u32', sT0, sT0, VT - KF); A('buffer_load_dword', v(XR + 1), v(t0_), WS, sT0, mods='offen sc1')
    A.wait(vm=0, lg=0)
    A('v_readfirstlane_b32', sT0, v(AQK)); A('v_cmp_ne_u32', 'vcc', 32 if not env('FORCE_SLOW') else 33, v(AQK + 1))
    A('s_cmp_ge_u32', sT0, 256); A('s_cselect_b32', sT0, 'vcc_lo', 1); A('s_cmp_eq_u32', sT0, 0)
    if not env('DBG'): A('s_cbranch_scc1', L('rdy'))
    ready(A)
    A.label(L('rdy'))
    A('s_mov_b32', 's40', '0x3f803f80'); A('s_mov_b32', 's41', '0x3f803f80')
    for j in range(nd):
        A('ds_write_b128', v(LANE16), v(AQK + 4 + 4 * j, 4), mods=f'offset:{L_MEM + 1024*KO[j]}')
        A('v_mov_b64', v(ownreg[j], 2), v(AQK + 4 + 4 * j, 2)); A('v_mov_b64', v(ownreg[j] + 2, 2), v(AQK + 6 + 4 * j, 2))
    for n in range(5): fill(qslot[n], qk[n])
    A('s_waitcnt', 'lgkmcnt(0)')
    for i in range(0, 16, 2): A('v_mov_b64', v(AQK + i, 2), 0)
    if len(modes) > 1:
        A('s_cmp_lg_u32', sMODE, 0); A('s_cbranch_scc1', f'CHS{w}_start')
    for sc in modes:
        L = lambda nm: f'CH{"S" if sc else "F"}{w}_{nm}'
        A.label(L('start')); A.reset_counts()
        def stamp(i):
            if not dbg or i not in STAMPS: return
            A('s_memtime', s(80 + 2 * STAMPS.index(i), 2))
        def dump():
            A('s_lshl_b32', sT0, sC, 5); A('s_add_u32', sT0, sT0, sH); A('s_lshl_b32', sT0, sT0, 2); A('s_add_u32', sT0, sT0, w)
            A('s_lshl_b32', sT0, sT0, 6); A('s_add_u32', sT0, sT0, DBGT)
            A('s_waitcnt', 'lgkmcnt(0)')
            for i, r_ in enumerate([s(80 + 2 * k) for k in range(11)] + [sDEAD]):
                A('v_mov_b32', v(AV), r_)
                A('buffer_store_dword', v(AV), 'off', WS, sT0, mods=f'offset:{4*i}'); A.vm.pop()
            A('s_waitcnt', 'vmcnt(0)')
        def pub_read(reg, tmp):
            A('v_and_b32', v(tmp), 512, v(LANE16)); A('v_mul_u32_u24', v(tmp), (L_VM - L_KB - 512) // 512, v(tmp)); A('v_add_u32', v(tmp), v(tmp), v(LANE16))
            A('ds_read_b128', v(reg, 4), v(tmp), mods=f'offset:{L_KB + 512*w}', tag='pk')
        def w3upd():
            A('v_min_u32', v(XR), v(XR + 6), v(XR + 7)); A('v_readlane_b32', sT0, v(XR), 0); A('v_readlane_b32', sT3, v(XR), 1)
            A('s_min_u32', sT0, sT0, sT3); A('s_max_u32', sPROG, sPROG, sT0)
        def w3in(need):
            ok = A.newlabel(L('inok')); lp = A.newlabel(L('inlp'))
            A('s_cmp_gt_u32', sPROG, need); A('s_cbranch_scc1', ok)
            A('s_mov_b32', sSPIN, 0)
            A.label(lp)
            A('buffer_load_dwordx2', v(XR + 6, 2), v(XR + 5), WS, sFIN, mods='offen sc1'); A.vm.pop()
            A('s_waitcnt', 'vmcnt(0)')
            w3upd()
            A('s_cmp_gt_u32', sPROG, need); A('s_cbranch_scc1', ok)
            A('s_cmp_lg_u32', sDEAD, 0); A('s_cbranch_scc1', ok)
            A('s_sleep', 2)
            A('s_add_u32', sSPIN, sSPIN, 1); A('s_cmp_lt_u32', sSPIN, SPIN_MAX); A('s_cbranch_scc1', lp)
            A('s_mov_b32', sDEAD, 1)
            A.label(ok)
        def w3prep():
            A('s_add_u32', sFOV, sS, 1)
            if env('SPECPF', 1): A('s_cmp_lt_u32', sFOV, nsteps)
            else: A('s_cmp_gt_u32', sPROG, sFOV)
            A('s_cselect_b32', sT0, 0, (0 if X_NOADV else 32 * 8192)); A('s_sub_u32', sPFK, sKF, sT0); A('s_sub_u32', sPFK, sPFK, 3 * 2048)
            A('s_add_u32', sPFV, sPFK, VT - KF)
            A('s_max_u32', sT0, sS, 1); A('s_sub_u32', sT0, sT0, 1); A('v_mov_b32', v(XR + 4), sT0)
        def kdma():
            A('s_mov_b32', 'm0', L_KX + w * 2048)
            for i in range(2): A('buffer_load_dwordx4', v(LANE16), WS, sKF, mods=f'offen offset:{i*1024} {KVMOD} lds')
            if not X_NOADV: A('s_add_u32', sKF, sKF, 32 * 8192)
        if w == 3: w3in(sS)
        A('s_barrier')
        kdma()
        if w == 3: w3prep()
        A('s_waitcnt', 'vmcnt(0) lgkmcnt(0)')
        A.label(L('loop'))
        A.reset_counts()
        stamp('top')
        accq = {('q', 0): AQK, ('q', 1): AQK + 4, ('k', 0): AQK + 8, ('k', 1): AQK + 12}
        awin = [AW, AW + 4, AV + 4, AW, AW + 4, AV, AV + 4, AV, AW, AW + 4]
        aat = {3: 3, 4: 7, 5: PUBAT + 1, 6: 11, 7: 23, 8: 15, 9: 19}
        def aread(j, reg, tag):
            A('ds_read_b128', v(reg, 4), v(LANE16), mods=f'offset:{L_MEM + 1024*KO[j]}', tag=tag)
        kfr = {}
        def kread(tk, reg):
            t, kp = tk
            kfr[tk] = reg
            if t == 0: A('ds_read_b128', v(reg, 4), v(FR), mods=f'offset:{L_KB + 512*kp}', tag=('K', tk))
            else: A('ds_read_b128', v(reg, 4), v(LANE16), mods=f'offset:{L_KX + ((t-1)*4+kp)*1024}', tag=('K', tk))
        NPRE = 0
        side = {}
        def at(n, fn): side.setdefault(n, []).append(fn)
        for n0, st, s2, fi in qfill:
            at(n0, lambda s2=s2, fi=fi: half_fill(s2, qk[fi], 0)); at(n0 + st, lambda s2=s2, fi=fi: half_fill(s2, qk[fi], 1))
        if dbg:
            def st8():
                sk = A.newlabel(L('st8'))
                A('s_cmp_lg_u32', sS, 8); A('s_cbranch_scc1', sk); A('s_mov_b32', 's100', 's80'); A.label(sk)
            at(20, st8)
        for n0, tk, reg in [(26, (1, 0), SL[0]), (27, (2, 0), SL[0] + 4), (30, (1, 1), SL[3]), (31, (2, 1), SL[3] + 4)]:
            at(n0, lambda tk=tk, reg=reg: kread(tk, reg))
        def vxload(hf):
            A('buffer_load_dwordx4', v(SL[1] + 4 * hf, 4), v(LANE16), WS, sVT, mods=f'offen offset:{1024*hf} {KVMOD}', tag='vx')
        if env('LATEPO', 0):
            pr = XR + 2 if w == 3 else SL[0] + 7
            at(0, lambda: A('v_mov_b32', v(pr), hex(SENT)))
            at(1, lambda: A('buffer_store_short', v(pr), v(RDEST), WS, sMEMc, mods=f'offen {sc}'.strip()))
        VXAT = env('VXAT', 3)
        at(VXAT, lambda: vxload(0)); at(VXAT + 2, lambda: vxload(1))
        if w == 3:
            if not X_NOPF:
                at(PUBAT + 1, lambda: A('buffer_load_dword', v(XR), v(XR + 3), WS, sPFK, mods='offen sc1'))
                if not env('NOVPF', 1): at(PUBAT + 3, lambda: A('buffer_load_dword', v(XR + 1), v(XR + 3), WS, sPFV, mods='offen sc1'))
            if not X_NOFLAG: at(PUBAT + 5, lambda: A('buffer_load_dwordx2', v(XR + 6, 2), v(XR + 5), WS, sFIN, mods='offen sc1'))
            if not X_NOPUB:
                if env('CHFLAG'): at(PUBAT + 6, lambda: A('buffer_store_dword', v(XR + 4), v(XR + 2), WS, sFLO, mods='offen sc1'))
                if env('DBG') == 2: at(PUBAT + 7, lambda: (tstamp(A, sFLO, sS, XR + 4), A.vm.append(None)))
        def pub2():
            if not X_NOPUB and not env('X_NOKM'): A('buffer_store_dwordx4', v(AV, 4), v(LANE16), WS, sKM, mods='offen ' + os.environ.get('PUBMOD', 'sc1'))
        at(PUBAT, pub2)
        at(28, lambda: A('v_mov_b64', v(AV + 4, 2), 0)); at(29, lambda: A('v_mov_b64', v(AV + 6, 2), 0))
        at(32, lambda: A('v_mov_b64', v(AV, 2), 0)); at(33, lambda: A('v_mov_b64', v(AV + 2, 2), 0))
        A('s_barrier'); stamp('b1')
        if nd == 2: aread(2, awin[2], ('A', 2))
        A('v_mov_b32', v(AQK + 15), 0)
        for n in range(NPRE, 40):
            f = qk[n]; j = f[1]
            if (n & 1) == 0: A.wait(lg=[('A', j)] + [('F', qk[m]) for m in (n, n + 1) if qk[m] in lds_off])
            stamp(f'q{n}')
            smf(accq[(f[0], f[2])], awin[j], f, qslot.get(n))
            for j2, n2 in aat.items():
                if n2 == n: aread(j2, awin[j2], ('A', j2))
            for fn in side.get(n, []): fn()
        vj = [9, 8, 0, 1, 2, 3, 4, 5, 6, 7]
        vq = []
        for idx, j in enumerate(vj):
            reg = AW + 4 if idx % 2 == 0 else AW
            vq.append((j, 0, reg, idx)); vq.append((j, 1, reg, idx))
        vstate = {'i': 0, 'p': 0}
        def vpass(cnt):
            for _ in range(cnt):
                if vstate['i'] >= 20: return
                j, t, reg, idx = vq[vstate['i']]; vstate['i'] += 1
                if t == 0 and idx >= 2: A.wait(lg=[('B', idx)])
                smf(AV + 4 * t, reg, ('v', j, t), None)
                if t == 1 and idx + 2 < 10: aread(vj[idx + 2], reg, ('B', idx + 2))
        stamp(0)
        add2(AQK, AQK, AQK + 2); add2(AQK + 4, AQK + 4, AQK + 6)
        A('v_cvt_pk_bf16_f32', v(AQK + 2), v(AQK), v(AQK + 4)); A('v_cvt_pk_bf16_f32', v(AQK + 3), v(AQK + 1), v(AQK + 5))
        A('ds_write2_b32', v(QKW), v(AQK + 2), v(AQK + 3), mods='offset0:0 offset1:4', tag='qw')
        add2(AQK + 8, AQK + 8, AQK + 10); add2(AQK + 12, AQK + 12, AQK + 14)
        A('v_cvt_pk_bf16_f32', v(AQK + 10), v(AQK + 8), v(AQK + 12)); A('v_cvt_pk_bf16_f32', v(AQK + 11), v(AQK + 9), v(AQK + 13))
        A('ds_write2_b32', v(KW), v(AQK + 10), v(AQK + 11), mods='offset0:0 offset1:4', tag='qw')
        vpass(env('VP1', 4))
        A.wait(lg=['qw']); A('s_barrier'); stamp('b2')
        qreg = [SL[2], SL[2] + 4, SL[4], SL[4] + 4]
        A('ds_read_b128', v(qreg[0], 4), v(FR), mods=f'offset:{L_QB}', tag=('Q', 0))
        A('ds_read_b128', v(qreg[1], 4), v(FR), mods=f'offset:{L_QB + 512}', tag=('Q', 1))
        kread((0, 0), AQK + 12)
        for kp in range(2, 4): A('ds_read_b128', v(qreg[kp], 4), v(FR), mods=f'offset:{L_QB + 512*kp}', tag=('Q', kp))
        vpass(env('VP2', 4))
        sacc = {0: AQK, 1: AQK + 4, 2: AQK + 8}
        sc_order = [(1, 0), (2, 0), (1, 1), (2, 1), (0, 0), (0, 1), (1, 2), (2, 2), (0, 2), (0, 3), (1, 3), (2, 3)]
        pending = sc_order[5:]
        pf = []
        for n in opre:
            pf.append((oslot[n], oo[n], 0)); pf.append((oslot[n], oo[n], 1))
        def pfill(cnt=1):
            for _ in range(cnt):
                if pf: half_fill(*pf.pop(0))
        for tk in sc_order:
            t, kp = tk
            A.wait(lg=[('K', tk), ('Q', kp)])
            A('v_mfma_f32_16x16x32_bf16', v(sacc[t], 4), v(kfr[tk], 4), v(qreg[kp], 4), '0' if kp == 0 else v(sacc[t], 4))
            if pending: kread(pending.pop(0), kfr[tk])
        stamp('sc')
        vpass(1); pfill(); vpass(1); pfill()
        vals = [AQK, AQK + 1] + [AQK + 4 + i for i in range(8)]
        mx = AQK + 2; tm = AQK + 3
        A('v_max3_f32', v(mx), v(vals[0]), v(vals[1]), v(vals[2])); A('v_max3_f32', v(tm), v(vals[3]), v(vals[4]), v(vals[5]))
        A('v_max3_f32', v(mx), v(mx), v(vals[6]), v(vals[7])); A('v_max3_f32', v(tm), v(tm), v(vals[8]), v(vals[9]))
        A('v_max_f32', v(mx), v(mx), v(tm)); A('v_max_f32', v(tm), v(mx), v(tm))
        vpass(1); pfill()
        A('v_permlane32_swap_b32', v(tm), v(mx)); A('v_max_f32', v(mx), v(mx), v(tm)); A('v_max_f32', v(tm), v(mx), v(tm))
        vpass(1)
        A('v_permlane16_swap_b32', v(tm), v(mx)); A('v_max_f32', v(mx), v(mx), v(tm))
        A('v_mul_f32', v(mx), sSCALE, v(mx))
        stamp('s1')
        order = vals[2:] + vals[:2]
        for i, r_ in enumerate(order):
            A('v_fma_f32', v(r_), v(r_), sSCALE, '-' + v(mx))
            if i >= 1: A('v_exp_f32', v(order[i - 1]), v(order[i - 1]))
            if i < 8: vpass(1)
            if i % 3 == 1: pfill()
            if i in (3, 5, 7, 9): A('v_cvt_pk_bf16_f32', v(AQK + 12 + (i - 3) // 2), v(order[i - 3]), v(order[i - 2]))
            if i == 6: A('v_mov_b64', v(AQK + 4, 2), sONES); A('v_mov_b64', v(AQK + 6, 2), sONES)
        A('v_exp_f32', v(order[9]), v(order[9]))
        stamp('s2')
        vpass(20)
        A('v_mov_b32', v(AQK + 3), 0)
        stamp(2)
        A('v_cvt_pk_bf16_f32', v(AQK + 2), v(AQK), v(AQK + 1))
        A.wait(vm=['vx'])
        A('v_mfma_f32_16x16x32_bf16', v(AQK + 8, 4), v(AQK + 4, 4), v(AQK + 12, 4), '0')
        add2(AV, AV, AV + 2)
        A('v_mfma_f32_16x16x32_bf16', v(AW, 4), v(SL[1], 4), v(AQK + 12, 4), '0')
        add2(AV + 4, AV + 4, AV + 6)
        A('v_mfma_f32_16x16x32_bf16', v(AW + 4, 4), v(SL[1] + 4, 4), v(AQK + 12, 4), '0')
        A('v_cvt_pk_bf16_f32', v(AV + 2), v(AV), v(AV + 1)); A('v_cvt_pk_bf16_f32', v(AV + 3), v(AV + 4), v(AV + 5))
        A('v_mfma_f32_16x16x16_bf16', v(AQK + 8, 4), v(AQK + 4, 2), v(AQK + 2, 2), v(AQK + 8, 4))
        A('v_cvt_pk_bf16_f32', v(AV + 4), v(AV + 4), v(AV + 5)); A('v_mov_b32', v(AV + 5), 0)
        stamp('p1')
        A('v_mfma_f32_16x16x16_bf16', v(AW, 4), v(AV + 2, 2), v(AQK + 2, 2), v(AW, 4))
        pfill(2)
        A('v_mfma_f32_16x16x16_bf16', v(AW + 4, 4), v(AV + 4, 2), v(AQK + 2, 2), v(AW + 4, 4))
        stamp('p2')
        pf.append((oslot[e_], oo[e_], 0)); pf.append((oslot[e_], oo[e_], 1))
        pfill(1)
        sm = AQK
        A('v_lshrrev_b32', v(AV + 6), 1, v(LANE16))
        A('ds_write_b64', v(AV + 6), v(AV + 2, 2), mods=f'offset:{L_VM + 512*w}', tag='ow')
        A('v_rcp_f32', v(sm), v(AQK + 8))
        for i in (4, 6): A('v_mov_b64', v(AQK + i, 2), 0)
        for i in range(4):
            A('v_mul_f32', v(AW + 2 * i), v(AW + 2 * i), v(sm)); A('v_mul_f32', v(AW + 2 * i + 1), v(AW + 2 * i + 1), v(sm))
            A('v_cvt_pk_bf16_f32', v(AQK + 8 + i), v(AW + 2 * i), v(AW + 2 * i + 1))
        A('ds_write_b128', v(FR), v(AQK + 8, 4), mods=f'offset:{L_O + 512*w}', tag='ow')
        stamp('p3')
        pfill(3)
        for i in (0, 2, 12, 14): A('v_mov_b64', v(AQK + i, 2), 0)
        for i in (0, 4): A('v_mov_b64', v(AV + i, 2), 0)
        stamp('p4')
        A.wait(lg=['ow']); A('s_barrier')
        A('ds_read_b128', v(AW, 4), v(LANE16), mods=f'offset:{L_O}', tag='oa0')
        A('ds_read_b128', v(AW + 4, 4), v(LANE16), mods=f'offset:{L_O+1024}', tag='oa1')
        pfill()
        A('s_cmp_eq_u32', sS, nsteps - 1)
        A('s_cbranch_scc1', L('last'))
        if dbg and env('FRZ'):
            A('s_cmp_lg_u32', sS, env('FRZ')); A('s_cbranch_scc1', L('nofrz'))
            A('s_memtime', 's[100:101]'); dump(); A('v_mov_b32', v(AV), 0)
            A.label(L('nofrz'))
        for i in (8, 10): A('v_mov_b64', v(AQK + i, 2), 0)
        for i in (2, 6): A('v_mov_b64', v(AV + i, 2), 0)
        assert not pf
        stamp(3)
        accs = [AQK, AQK + 4, AQK + 8, AQK + 12, AV, AV + 4]
        tacc = {t: t % 6 for t in range(10)}
        def post_ops(t):
            r_ = accs[tacc[t]]; st = accs[tacc[t & ~1]] + (t & 1)
            ops = [lambda: A('v_add_f32', v(r_), v(r_), v(r_ + 2)), lambda: A('v_add_f32', v(r_ + 1), v(r_ + 1), v(r_ + 3)),
                   lambda: A('v_cvt_pk_bf16_f32', v(st), v(r_), v(r_ + 1))]
            if t % 2 == 0: ops.append(lambda: A('v_and_or_b32', v(st), v(st), -2, sTAG))
            else:
                ops.append(lambda: A('buffer_store_dwordx2', v(st - 1, 2), v(PST2), WS, sPSTS[t >> 1], mods=f'offen {sc}'.strip(), tag='ps'))
                if t < 4:
                    for rr in (r_, r_ + 2, st + 1, st - 1): ops.append(lambda rr=rr: A('v_mov_b64', v(rr, 2), 0))
            return ops
        oside = {}
        def oat(n, fn): oside.setdefault(n, []).append(fn)
        for a_, b_ in [(ab[i] + k, ab[i + 1] + k) for i in range(3) for k in range(2)]:
            oat(a_, lambda b_=b_: fill(oslot[b_], oo[b_]))
        for n0, qi in (((cd, 4), (cd + 3, 0), (max(e_, cd + 6), 1)) if not env('NOHELD') else ()):
            oat(n0, lambda qi=qi: half_fill(qslot[qi], qk[qi], 0)); oat(n0 + 2, lambda qi=qi: half_fill(qslot[qi], qk[qi], 1))
        vq_ = []
        for n, f in enumerate(oo):
            if n % 2 == 0:
                pr = [oo[n], oo[n + 1]]
                A.wait(lg=(['oa0'] if n == 0 else ['oa1'] if n == 2 else []) + [('F', x) for x in pr if x in lds_off], vm=[('F', x) for x in pr if x in strm_idx])
            if f[1] == 0 and f[2] >= 6:
                need = {6: 1, 7: 1, 8: 3, 9: 3}[f[2]]
                while any(t == need for t, _ in vq_): vq_.pop(0)[1]()
            stamp(f'o{n}')
            smf(accs[tacc[f[2]]], AW + 4 * f[1], f, oslot.get(n))
            for fn in oside.get(n, []): fn()
            for t in range(10):
                if 4 * (t >> 1) + 2 + (t & 1) + 3 == n: vq_ += [(t, o_) for o_ in post_ops(t)]
            for _ in range(3):
                if vq_: vq_.pop(0)[1]()
        while vq_: vq_.pop(0)[1]()
        for t in (8, 9):
            for o_ in post_ops(t): o_()
        stamp(4)
        if env('ACKT'): A('s_waitcnt', 'vmcnt(0)'); stamp('ack')
        if w in (1, 2) and env('P1POS', 0) == 0: fill(qslot[2], qk[2]); fill(qslot[3], qk[3])
        if w == 3: w3upd(); w3in(sFOV)
        A('s_barrier')
        ra = AV + 4
        setreg = [AQK, AQK + 8 if ng == 1 else SL[2]]
        A('s_mov_b32', sSPIN, 0)
        A('v_bfe_u32', v(ra + 1), v(LANE16), 4, 1); A('v_lshlrev_b32', v(ra + 1), 4, v(ra + 1))
        A('v_mov_b32', v(ra + 2), '0x3f80'); A('v_lshlrev_b32', v(ra + 1), v(ra + 1), v(ra + 2))
        A('v_bfe_u32', v(ra + 2), v(LANE16), 5, 3)
        def rloads(st):
            for i in range(2 * ng):
                A('buffer_load_dwordx4', v(setreg[st] + 4 * i, 4), v(LANE16), WS, sPLD if i < 2 else sPLD1, mods=f'offen offset:{(i&1)*1024} sc1')
        sel = lambda jj: (A('v_cmp_eq_u32', 'vcc', jj, v(ra + 2)), A('v_cndmask_b32', v(AW + jj), 0, v(ra + 1), 'vcc'))
        if env('RSL', 1) >= 0:
            for jj in range(4): sel(jj)
            if env('RSL', 1): A('s_sleep', env('RSL', 1))
            rloads(0)
            for jj in range(4, 4 * ng): sel(jj)
            if ng == 1 or env('RSL2', 2) > 1: A('s_sleep', env('RSL2', 2) - (ng - 1))
        else:
            for jj in range(RDELAY): sel(jj % (4 * ng))
            rloads(0)
            for jj in range(max(RGAP, 4 * ng - RDELAY)): sel((RDELAY + jj) % (4 * ng))
        rloads(1)
        for jj in range(env('RFILL', 0)): sel(jj % (4 * ng))
        A.label(L('rloop'))
        for st in range(2):
            A('s_waitcnt', f'vmcnt({2*ng})')
            stamp('r1')
            for i in range(2 * ng):
                b = setreg[st] + 4 * i
                A('v_mfma_f32_16x16x32_bf16', v(AV, 4), v(b, 4), v(AW + 4 * (i >> 1), 4), '0' if i == 0 else v(AV, 4))
                if i == 0:
                    A('v_and_b32', v(ra + 1), v(b), v(b + 2)); A('v_or_b32', v(ra + 2), v(b), v(b + 2))
                else:
                    A('v_bitop3_b32', v(ra + 1), v(ra + 1), v(b), v(b + 2), mods='bitop3:0x80'); A('v_or3_b32', v(ra + 2), v(ra + 2), v(b), v(b + 2))
            A('v_bitop3_b32', v(ra + 1), v(ra + 1), v(ra + 2), sTAG, mods='bitop3:0x4e')
            A('v_and_b32', v(ra + 1), 1, v(ra + 1))
            A('v_cmp_ne_u32', 'vcc', 0, v(ra + 1))
            A('v_permlane32_swap_b32', v(AV), v(AV + 2)); A('v_permlane32_swap_b32', v(AV + 1), v(AV + 3))
            add2(AV, AV, AV + 2)
            A('s_cbranch_vccnz', L(f'rbad{st}'))
            if st == 1: A.label(L('rok'))
            A('v_permlane16_swap_b32', v(AV), v(AV + 1)); A('v_add_f32', v(AV), v(AV), v(AV + 1))
            A('v_cvt_pk_bf16_f32', v(AV), v(AV), v(AV))
            A('buffer_store_short', v(AV), v(RDEST), WS, sMEMc, mods=f'offen {sc}'.strip())
            A('s_branch', L('rdone'))
            A.label(L(f'rbad{st}'))
            rloads(st)
        A('s_cmp_lg_u32', sDEAD, 0); A('s_cbranch_scc1', L('rok'))
        A('s_add_u32', sSPIN, sSPIN, 1)
        A('s_cmp_lt_u32', sSPIN, SPIN_MAX); A('s_cbranch_scc1', L('rloop'))
        A('s_mov_b32', sDEAD, 1)
        A('s_branch', L('rok'))
        A.label(L('rdone'))
        stamp(5)
        if not env('LATEPO', 0):
            A('v_mov_b32', v(AV + 1), hex(SENT))
            A('buffer_store_short', v(AV + 1), v(RDEST), WS, sMEMo, mods=f'offen {sc}'.strip())
        A.reset_counts()
        xl = 0
        if w in (1, 2) and env('P1POS', 0) == 1: fill(qslot[2], qk[2]); fill(qslot[3], qk[3]); xl = 4
        kdma()
        pub_read(AV, AV + 4)
        A('s_add_u32', sT2, sMEMc, 1024 * KOWN[w])
        A('s_xor_b32', sTAG, sTAG, 1); A('s_add_u32', sKM, sKM, 32 * 4096)
        A('s_xor_b32', sMEMc, sMEMc, sDMEM); A('s_xor_b32', sMEMo, sMEMo, sDMEM)
        if not X_NOADV: A('s_add_u32', sVT, sVT, 32 * 8192)
        A('s_add_u32', sS, sS, 1)
        A('s_mov_b32', sSPIN, 0)
        A('s_mov_b32', 'm0', L_MEM + 1024 * KOWN[w])
        def gdma():
            for j in range(nd): A('buffer_load_dwordx4', v(LANE16), WS, sT2, mods=f'offen offset:{1024*j} sc1 lds')
        if w == 3: w3prep()
        if env('GSL', 2) >= 0: A('s_sleep', env('GSL', 2))
        else:
            for i in range(GDELAY - (8 if w == 3 else 0)): A('v_mov_b32', v(AW + (i % 8)), 0)
        gdma()
        A('s_waitcnt', f'vmcnt({(3 if env("LATEPO", 0) else 4) + nd + xl})')
        if w in (0, 3): fill(qslot[2], qk[2]); fill(qslot[3], qk[3])
        for i in range(0, 16, 2): A('v_mov_b64', v(AQK + i, 2), 0)
        if env('GSL', 2) >= 0: A('s_sleep', env('GSL2', 2))
        else:
            for i in range(env('GGAP', 24)): A('v_mov_b32', v(AW + (i % 8)), 0)
        gdma()
        A.label(L('gloop'))
        A('s_waitcnt', f'vmcnt({nd})')
        for j in range(nd): A('ds_read_b128', v(ownreg[j], 4), v(LANE16), mods=f'offset:{L_MEM + 1024*KO[j]}')
        gdma()
        gregs = [r_ + i for r_ in ownreg for i in range(4)]
        A('s_waitcnt', f'lgkmcnt({nd-1})')
        m0_ = AQK + 15
        A('v_pk_max_u16', v(m0_), v(gregs[0]), v(gregs[1]))
        for i in range(2, len(gregs)):
            if i % 4 == 0: A('s_waitcnt', f'lgkmcnt({nd-1-i//4})')
            A('v_pk_max_u16', v(m0_), v(m0_), v(gregs[i]))
        emit_check(A, m0_, AQK + 14, gregs, L('gloop'), L('loop'), define=False)
        A('s_branch', L('loop'))
        A.label(L('last'))
        A.reset_counts()
        pub_read(AV, AV + 4); A('s_add_u32', sKM, sKM, 32 * 4096)
        A('s_waitcnt', 'lgkmcnt(0)')
        A('buffer_store_dwordx4', v(AV, 4), v(LANE16), WS, sKM, mods='offen sc1')
        A('s_waitcnt', 'vmcnt(0)')
        A('s_barrier')
        if w == 3:
            A('v_mov_b32', v(XR), nsteps)
            A('s_mov_b64', 'exec', 1)
            A('buffer_store_dword', v(XR), 'off', WS, sFLO, mods='sc1')
            A('s_mov_b64', 'exec', -1)
        if dbg and not env('FRZ'): dump()
        A('s_waitcnt', 'vmcnt(0) lgkmcnt(0)')
        A('s_endpgm')

def emit_check(A, m0, m1, regs, retry, ok, define=True):
    A('v_pk_max_u16', v(m0), v(m0), v(m0), mods='op_sel:[0,1] op_sel_hi:[1,0]')
    A('v_cmp_le_u32', 'vcc', '0xff810000', v(m0))
    A('s_cbranch_vccz', ok)
    A('s_add_u32', sSPIN, sSPIN, 1)
    A('s_cmp_lt_u32', sSPIN, 64); A('s_cbranch_scc1', retry)
    A('s_cmp_lg_u32', sDEAD, 0); A('s_cbranch_scc1', ok)
    A('v_mov_b32', v(m0), -1)
    for r_ in regs:
        A('v_xor_b32', v(m1), hex(SENT), v(r_)); A('v_pk_min_u16', v(m0), v(m0), v(m1))
    A('v_pk_min_u16', v(m0), v(m0), v(m0), mods='op_sel:[0,1] op_sel_hi:[1,0]')
    A('v_mov_b32', v(m1), 0)
    A('v_cmp_eq_u32', 'vcc', 0, v(m0))
    A('s_cbranch_vccz', ok)
    A('s_sleep', 1)
    A('s_cmp_lt_u32', sSPIN, SPIN_MAX); A('s_cbranch_scc1', retry)
    A('s_mov_b32', sDEAD, 1)
    if define: A.label(ok)
```

```python
from asmgen import *
from layout import *
import os, struct
def env(n, d=0): return int(os.environ.get(n, d))
X_NOADV, X_NOFLAG, X_NOPUB, X_NOPF = env('X_NOADV'), env('X_NOFLAG'), env('X_NOPUB'), env('X_NOPF')
RDELAY, GDELAY = env('RDELAY', 8), env('GDELAY', 50)
PUBAT = env('PUBAT', 9)
RGAP = env('RGAP', 6)
KVMOD = os.environ.get('KVMOD', 'sc1')

WS = 's[8:11]'; SQ = 's[12:15]'; SK = 's[16:19]'; SV = 's[20:23]'; SO = 's[24:27]'; SX = 's[28:31]'; SM0 = 's[32:35]'
SW1 = 's[36:39]'; SW2 = 's[40:43]'; SOUT = 's[44:47]'; SDBG = 's[48:51]'
sW, sH, sC, sS = 's52', 's53', 's54', 's55'
sMEMc, sMEMo, sPST, sPLD, sPLD1, sSTR, sVT, sKF, sKM, sTAG, sFLO, sPROG, sSPIN, sDEAD = ['s%d' % i for i in range(56, 70)]
sT0, sT1, sT2, sT3 = 's70', 's71', 's72', 's73'
sDMEM, sPST1, sPST2, sXX, sFIN, sSCALE = 's74', 's75', 's76', 's77', 's78', 's79'

sPSTS = [sPST, sPST1, sPST2, sXX, 's4']
sSTRS = [sSTR, 's3', 's5', 's6', 's7']
sONES = 's[40:41]'
sPFK, sPFV, sFOV = 's36', 's37', 's38'
L_MEM = 0; L_QB = 10240; L_KB = 12288; L_VM = 14336; L_KX = 16384; L_O = L_KX; L_W = 24576
UNITS = [9, 8, 8, 9]
L_WBASE = [L_W + 4096 * sum(UNITS[:w]) for w in range(4)]
NSTR = [8, 10, 10, 9]
LANE16, IDX, RDEST, KW, PST2, QKW, FR, LDSW = range(8)
AQK = 8; AV = 24; AW = 32; SL = [40, 48, 56, 64, 72]; RES0 = 80
SPIN_MAX = 1 << 16
STAMPS = ['top', 'b1', 0, 'b2', 'sc', 2, 3, 4, 'r1', 5, 'start']
if env('ACKT'): STAMPS = ['top', 'b1', 0, 'b2', 'sc', 2, 3, 4, 'ack', 5, 'start']
if env('STAMPSET') == 1: STAMPS = ['top', 2, 'p1', 'p2', 'p3', 'p4', 3, 'o4', 'o10', 'o16', 'start']
if env('STAMPSET') == 2: STAMPS = ['top', 'q8', 'q16', 'q24', 'q32', 0, 'sc', 's1', 's2', 2, 'start']

def f32bits(x):
    return struct.unpack('<I', struct.pack('<f', x))[0]

def tstamp(A, sfo, val, tmp):
    A('s_memrealtime', 's[90:91]')
    if env('CLK'): A('s_memtime', 's[94:95]')
    A('s_lshr_b32', 's92', sfo, 7); A('s_lshl_b32', 's92', 's92', 2); A('s_bfe_u32', 's93', sfo, 0x20002); A('s_add_u32', 's92', 's92', 's93')
    A('s_lshl_b32', 's92', 's92', 9); A('s_lshl_b32', 's93', val, 2); A('s_add_u32', 's92', 's92', 's93'); A('s_add_u32', 's92', 's92', DBGT + (1 << 20))
    A('s_waitcnt', 'lgkmcnt(0)')
    A('v_mov_b32', v(tmp), 's90')
    if env('CLK'):
        A('s_bitcmp1_b32', val, 0); A('s_cselect_b32', 's90', 's94', 's90'); A('v_mov_b32', v(tmp), 's90')
    A('buffer_store_dword', v(tmp), 'off', WS, 's92'); A.vm.pop()

KOWN = [0, 3, 6, 8]; NOWN = [3, 3, 2, 2]
def korder(w):
    return [(KOWN[w] + j) % 10 for j in range(10)]

def frag_plan(w):
    qk = []
    for j in range(10):
        qk += [('q', j, 0), ('q', j, 1), ('k', j, 0), ('k', j, 1)]
    qk[34:38] = qk[36:38] + qk[34:36]
    oo = []
    for p in range(5):
        oo += [('o', 0, 2 * p), ('o', 0, 2 * p + 1), ('o', 1, 2 * p), ('o', 1, 2 * p + 1)]
    ab, cd, e_ = [([4, 10, 14, 18], 2, 9), ([4, 10, 14, 18], 6, 9), ([6, 10, 14, 18], 4, 9), ([6, 10, 14, 18], 8, 13), ([6, 10, 14, 18], 2, 9), ([4, 10, 14, 18], 0, 7), ([4, 10, 14, 18], 0, 3), ([6, 10, 14, 18], 2, 5), ([6, 10, 14, 18], 0, 3)][env('OVAR', 0)]
    oslot = {cd: 4, cd + 1: 0, e_: 1}
    for x in ab: oslot[x] = 2; oslot[x + 1] = 3
    opre = sorted([ab[0], ab[0] + 1, cd, cd + 1])
    held = [(1, 4), (0, 0), (4, 1)]
    if w in (1, 2):
        upos = [2, 10, 18, 26, 34]
        qslot = {24: 0, 28: 4}
        for x in upos: qslot[x] = 2; qslot[x + 1] = 3
        qfill = [(0, 1, 0, 24), (2, 1, 4, 28)]
        for a_, b_ in zip(upos, upos[1:]): qfill += [(a_ + (2 if a_ == 2 else 0), 1, 2, b_), (a_ + (2 if a_ > 2 else 3), 1, 3, b_ + 1)]
        mids = [24, 28]
        kslots, qslots = (0, 4), (2, 3)
    else:
        upos = [2, 10, 16, 22, 28, 34]
        qslot = {2: 2, 3: 3, 10: 2, 11: 3, 16: 4, 17: 2, 22: 3, 23: 4, 28: 2, 29: 3, 34: 4, 35: 2, 25: 0}
        qfill = [(2, 1, 2, 10), (4, 1, 3, 11), (6, 2, 4, 16), (10, 0, 2, 17), (12, 1, 3, 22), (16, 0, 4, 23), (18, 2, 2, 28), (22, 0, 3, 29), (24, 1, 4, 34), (28, 0, 2, 35), (0, 1, 0, 25)]
        mids = [25]
        kslots, qslots = (0, 3), (2, 4)
        if w == 0: held = held[:2]
    for n, sl_ in held: qslot[n] = sl_
    streams = [qk[n] for n, _ in held] + [qk[n] for n in mids] + [oo[i] for i in opre] + [oo[e_]]
    ldsf = [qk[x + i] for x in upos for i in range(2)] + [oo[x + i] for x in ab[1:] for i in range(2)]
    assert len(streams) == NSTR[w] and len(ldsf) == 2 * UNITS[w]
    return qk, qslot, qfill, oo, oslot, ab, cd, e_, opre, streams, ldsf, held, kslots, qslots

sMODE = 's96'
def emit_chain_wave(A, w, ready, modes=('', 'sc1'), dbg=False, nsteps=64):
    L = lambda nm: f'CH{w}_{nm}'
    KO = korder(w)
    qk, qslot, qfill, oo, oslot, ab, cd, e_, opre, streams, ldsf, held, kslots, qslots = frag_plan(w)
    allf = qk + [('v', j, t) for j in range(10) for t in range(2)] + oo
    res = [f for f in allf if f not in streams and f not in ldsf]
    assert len(res) == (54 if w < 3 else 53), len(res)
    resreg = {f: (RES0 if w < 3 else RES0 + 8) + 8 * i for i, f in enumerate(res)}
    XR = RES0
    strm_idx = {f: i for i, f in enumerate(streams)}
    unit_of = lambda f: (f[0], f[1], f[2] >> 1)
    for i in range(0, len(ldsf), 2):
        assert unit_of(ldsf[i]) == unit_of(ldsf[i + 1]), (ldsf[i], ldsf[i + 1])
    lds_units = [unit_of(ldsf[i]) for i in range(0, len(ldsf), 2)]
    lds_off = {}
    for i, u in enumerate(lds_units):
        for t in range(2):
            lds_off[(u[0], u[1], 2 * u[2] + t)] = i * 4096 + t * 2048
    groups = [[0, 1], [2], [3], [4]][w]
    ng = len(groups)

    def half_fill(slot, f, hf):
        r = SL[slot] + 4 * hf
        tag = ('F', f)
        if f in lds_off:
            A('ds_read_b128', v(r, 4), v(LDSW), mods=f'offset:{lds_off[f] + 1024*hf}', tag=tag)
        else:
            i = strm_idx[f]
            so = sSTRS[i >> 1]
            A('buffer_load_dwordx4', v(r, 4), v(LANE16), WS, so, mods=f'offen offset:{(i&1)*2048 + 1024*hf}', tag=tag)
    def fill(slot, f):
        half_fill(slot, f, 0); half_fill(slot, f, 1)
    def smf(acc, areg, f, slot):
        if slot is None:
            b = R(resreg[f], 8)
        else:
            if f in lds_off: A.wait(lg=[('F', f)])
            else: A.wait(vm=[('F', f)])
            b = v(SL[slot], 8)
        A('v_smfmac_f32_16x16x64_bf16', v(acc, 4), v(areg, 4), b, v(IDX))
    def add2(d, a_, b_):
        A('v_add_f32', v(d), v(a_), v(b_)); A('v_add_f32', v(d + 1), v(a_ + 1), v(b_ + 1))

    A.label(L('entry'))
    A.reset_counts()
    T = [SL[0] + i for i in range(40)]
    ln = T[0]; g = T[1]; c = T[2]
    A('v_and_b32', v(ln), 63, 'v0')
    A('v_lshlrev_b32', v(LANE16), 4, v(ln))
    A('v_lshrrev_b32', v(g), 4, v(ln)); A('v_and_b32', v(c), 15, v(ln))
    A('v_and_b32', v(T[3]), 2, v(ln)); A('v_cmp_ne_u32', 'vcc', 0, v(T[3]))
    A('v_mov_b32', v(T[4]), '0x4444'); A('v_mov_b32', v(T[5]), '0xeeee'); A('v_cndmask_b32', v(IDX), v(T[4]), v(T[5]), 'vcc')
    A('v_and_b32', v(T[3]), 13, v(c)); A('v_and_b32', v(T[4]), 1, v(g)); A('v_lshl_or_b32', v(T[3]), v(T[4]), 1, v(T[3]))
    A('v_lshlrev_b32', v(T[3]), 4, v(T[3])); A('v_lshrrev_b32', v(T[4]), 1, v(g)); A('v_lshl_add_u32', v(FR), v(T[4]), 8, v(T[3]))
    A('v_lshrrev_b32', v(T[3]), 3, v(c)); A('v_lshlrev_b32', v(T[3]), 8, v(T[3]))
    A('v_lshl_add_u32', v(T[3]), v(g), 6, v(T[3]))
    A('v_bfe_u32', v(T[4]), v(c), 2, 1); A('v_lshl_add_u32', v(T[3]), v(T[4]), 5, v(T[3]))
    A('v_and_b32', v(T[4]), 3, v(c)); A('v_lshl_add_u32', v(T[3]), v(T[4]), 2, v(T[3]))
    A('v_add_u32', v(QKW), L_QB + w * 512, v(T[3]))
    A('v_add_u32', v(LDSW), L_WBASE[w], v(LANE16))
    A('v_add_u32', v(KW), L_KB - L_QB, v(QKW))
    A('s_mov_b32', sT0, PIECE)
    A('v_lshrrev_b32', v(T[3]), 3, v(c)); A('v_lshl_add_u32', v(T[3]), v(T[3]), 2, v(g)); A('v_mul_lo_u32', v(T[3]), v(T[3]), sT0)
    A('v_and_b32', v(T[4]), 7, v(c)); A('v_lshl_add_u32', v(PST2), v(T[4]), 3, v(T[3]))
    A('s_mul_i32', sT0, sH, 5); A('s_add_u32', sT0, sT0, groups[0])
    A('v_lshrrev_b32', v(T[3]), 3, v(c)); A('v_add_u32', v(T[3]), sT0, v(T[3]))
    A('v_and_b32', v(T[9]), 3, v(c)); A('v_lshlrev_b32', v(T[9]), 4, v(T[9]))
    A('v_lshl_add_u32', v(T[9]), v(g), 2, v(T[9]))
    A('v_bfe_u32', v(T[8]), v(c), 2, 1); A('v_lshl_add_u32', v(T[9]), v(T[8]), 1, v(T[9]))
    A('v_lshl_add_u32', v(RDEST), v(T[3]), 6, v(T[9]))
    if ng == 1:
        A('v_mov_b32', v(T[6]), '0x40000000'); A('v_cmp_lt_u32', 'vcc', 7, v(c)); A('v_cndmask_b32', v(RDEST), v(RDEST), v(T[6]), 'vcc')
    if w == 3:
        A('v_lshlrev_b32', v(XR + 3), 7, v(ln))
        A('v_mov_b64', v(XR + 6, 2), 0)
        A('v_mov_b32', v(T[6]), '0x40000000'); A('v_cmp_gt_u32', 'vcc', 2, v(ln)); A('v_cndmask_b32', v(XR + 5), v(T[6]), v(XR + 3), 'vcc')
        A('v_cmp_gt_u32', 'vcc', 1, v(ln)); A('v_cndmask_b32', v(XR + 2), v(T[6]), v(XR + 3), 'vcc')
    A('s_mul_i32', sT0, sC, 2 * MEMB_SZ); A('s_add_u32', sMEMc, sT0, MEMB); A('s_add_u32', sMEMo, sMEMc, MEMB_SZ)
    A('s_xor_b32', sDMEM, sMEMc, sMEMo)
    A('s_mul_i32', sT0, sC, PART_SZ); A('s_add_u32', sT0, sT0, PART)
    A('s_lshl_b32', sT1, sH, 6); A('s_add_u32', sPST, sT0, sT1); A('s_add_u32', sPST, sPST, 8 * w * PIECE)
    for p in range(1, 5): A('s_add_u32', sPSTS[p], sPST, 32 * p * PIECE)
    A('s_mul_i32', sT1, sH, 5 * PIECE); A('s_add_u32', sPLD, sT1, sT0); A('s_add_u32', sPLD, sPLD, groups[0] * PIECE)
    A('s_add_u32', sPLD1, sPLD, PIECE)
    A('s_mov_b32', sTAG, 0)
    A('s_lshl_b32', sT0, sC, 5); A('s_add_u32', sT0, sT0, sH)
    A('s_mul_i32', sSTR, sT0, STRM_H); A('s_add_u32', sSTR, sSTR, STRM + 2048 * sum(NSTR[:w]))
    for i in range(1, 5): A('s_add_u32', sSTRS[i], sSTR, 4096 * i)
    A('s_mul_i32', sT0, sC, LAYER_F); A('s_lshl_b32', sT1, sH, 13); A('s_add_u32', sT0, sT0, sT1)
    A('s_add_u32', sVT, sT0, VT + w * 2048); A('s_add_u32', sKF, sT0, KF + w * 2048)
    A('s_mul_i32', sT0, sC, LAYER_KM); A('s_lshl_b32', sT1, sH, 12); A('s_add_u32', sT0, sT0, sT1); A('s_add_u32', sKM, sT0, KM + 1024 * w - 32 * 4096)
    A('s_mul_i32', sT0, sC, FL_LAYER); A('s_lshr_b32', sT1, sH, 1); A('s_mul_i32', sT1, sT1, 3 * 128); A('s_add_u32', sFIN, sT0, sT1); A('s_add_u32', sFIN, sFIN, FL_QKV + 128)
    A('s_and_b32', sT1, sH, 1); A('s_lshl_b32', sT1, sT1, 3); A('s_add_u32', sFIN, sFIN, sT1)
    A('s_lshl_b32', sT1, sH, 7); A('s_add_u32', sFLO, sT0, sT1); A('s_add_u32', sFLO, sFLO, FL_CH)
    A('s_mov_b32', sS, 0); A('s_mov_b32', sPROG, 0); A('s_mov_b32', sDEAD, 0)
    A('s_mov_b32', sSCALE, hex(f32bits(128 ** -0.5 * 1.4426950408889634)))

    SRCQ, SRCO1, SRCO2, TRN, TRO1, TRO2 = AW, AW + 1, AW + 2, AW + 3, AW + 4, AW + 5
    r16 = T[3]; ch = T[4]
    A('v_lshrrev_b32', v(r16), 2, v(ln)); A('v_and_b32', v(ch), 3, v(ln))
    A('v_bfe_u32', v(T[5]), v(r16), 1, 1); A('v_lshlrev_b32', v(T[5]), 3, v(T[5]))
    A('v_bfe_u32', v(T[6]), v(r16), 2, 2); A('v_lshl_add_u32', v(T[5]), v(T[6]), 1, v(T[5]))
    A('v_and_b32', v(T[6]), 1, v(r16)); A('v_add_u32', v(T[5]), v(T[5]), v(T[6]))
    A('v_lshlrev_b32', v(T[5]), 13, v(T[5]))
    A('v_bfe_u32', v(T[6]), v(r16), 3, 1); A('v_lshlrev_b32', v(T[6]), 1, v(T[6])); A('v_xor_b32', v(T[6]), v(ch), v(T[6]))
    A('v_lshl_add_u32', v(T[5]), v(T[6]), 4, v(T[5]))
    A('s_lshl_b32', sT0, sH, 8); A('s_add_u32', sT0, sT0, w * 64); A('v_add_u32', v(SRCQ), sT0, v(T[5]))
    A('v_bfe_u32', v(T[5]), v(r16), 3, 1); A('v_lshlrev_b32', v(T[5]), 4, v(T[5]))
    A('v_bfe_u32', v(T[6]), v(r16), 1, 1); A('v_lshl_add_u32', v(T[5]), v(T[6]), 2, v(T[5]))
    A('v_bfe_u32', v(T[6]), v(r16), 2, 1); A('v_lshl_add_u32', v(T[5]), v(T[6]), 1, v(T[5]))
    A('v_and_b32', v(T[6]), 1, v(r16)); A('v_add_u32', v(T[5]), v(T[5]), v(T[6]))
    A('v_mul_u32_u24', v(T[5]), 1280, v(T[5]))
    A('s_mul_i32', sT0, sH, 163840); A('s_add_u32', sT0, sT0, w * 64); A('v_add_u32', v(T[5]), sT0, v(T[5]))
    A('v_lshl_add_u32', v(SRCO1), v(ch), 5, v(T[5]))
    A('v_lshl_add_u32', v(SRCO2), v(ch), 4, v(T[5]))
    A('v_bfe_u32', v(T[5]), v(ln), 2, 2); A('v_lshl_add_u32', v(T[5]), v(g), 3, v(T[5])); A('v_lshlrev_b32', v(T[5]), 6, v(T[5]))
    A('v_add_u32', v(T[5]), L_WBASE[w], v(T[5]))
    A('v_and_b32', v(T[6]), 1, v(g)); A('v_lshl_add_u32', v(T[6]), v(T[6]), 5, v(T[5])); A('v_lshl_add_u32', v(TRN), v(ch), 3, v(T[6]))
    A('v_xor_b32', v(TRN + 3), 32, v(TRN))
    A('v_lshl_add_u32', v(TRO1), v(ch), 4, v(T[5]))
    A('v_lshrrev_b32', v(T[6]), 1, v(ch)); A('v_lshl_add_u32', v(T[6]), v(T[6]), 5, v(T[5]))
    A('v_and_b32', v(T[7]), 1, v(ch)); A('v_lshl_add_u32', v(TRO2), v(T[7]), 3, v(T[6]))
    CS, CO, CT = AQK, AQK + 1, AQK + 2
    rr = T[5]; ck = T[6]
    A('v_lshlrev_b32', v(ck), 1, v(g)); A('v_xor_b32', v(ck), v(ck), v(c)); A('v_lshlrev_b32', v(ck), 4, v(ck))
    A('v_lshrrev_b32', v(rr), 1, v(g)); A('v_lshlrev_b32', v(rr), 3, v(rr)); A('v_and_b32', v(T[7]), 1, v(g)); A('v_add_u32', v(rr), v(rr), v(T[7]))
    A('v_lshlrev_b32', v(rr), 13, v(rr)); A('s_lshl_b32', sT0, sH, 8); A('v_add3_u32', v(CS), v(rr), v(ck), sT0); A('v_xor_b32', v(CS + 6), 128, v(CS))
    A('v_lshrrev_b32', v(rr), 1, v(g)); A('v_lshlrev_b32', v(rr), 2, v(rr)); A('v_add_u32', v(rr), v(rr), v(T[7]))
    A('v_mul_u32_u24', v(rr), 1280, v(rr)); A('s_mul_i32', sT0, sH, 163840); A('v_add3_u32', v(CO), v(rr), v(ck), sT0); A('v_xor_b32', v(CO + 6), 128, v(CO))
    A('v_bfe_u32', v(rr), v(ln), 2, 2); A('v_lshl_add_u32', v(T[8]), v(T[7]), 2, v(rr)); A('v_lshlrev_b32', v(T[8]), 5, v(T[8]))
    A('v_lshl_add_u32', v(rr), v(g), 3, v(rr)); A('v_lshlrev_b32', v(rr), 8, v(rr)); A('v_add_u32', v(rr), L_W, v(rr))
    for t in range(2):
        A('v_lshl_add_u32', v(T[9]), v(ch), 3, 64 * w + 32 * t) if 64 * w + 32 * t <= 64 else (A('v_lshlrev_b32', v(T[9]), 3, v(ch)), A('v_add_u32', v(T[9]), 64 * w + 32 * t, v(T[9])))
        A('v_xor_b32', v(T[9]), v(T[9]), v(T[8])); A('v_add_u32', v(CT + t), v(T[9]), v(rr))
        A('v_lshrrev_b32', v(T[9]), 1, v(ch)); A('v_lshlrev_b32', v(T[9]), 5, v(T[9])); A('v_and_b32', v(T[10]), 1, v(ch)); A('v_lshl_add_u32', v(T[9]), v(T[10]), 3, v(T[9]))
        A('v_add_u32', v(T[9]), 64 * w + 16 * t, v(T[9]))
        A('v_xor_b32', v(T[9]), v(T[9]), v(T[8])); A('v_add_u32', v(CT + 2 + t), v(T[9]), v(rr))
    for t in range(4): A('v_add_u32', v(CT + 6 + t), 65536, v(CT + t))
    stages = [(X, k, 0) for X in 'qkv' for k in range(10)] + [('o', kp, p) for kp in range(2) for p in range(5)]
    def mine(st, ww):
        X, k, p = st
        return (X, korder(ww).index(k), 0) if X != 'o' else st
    nl_ = {st: sum(1 for ww in range(4) if any(unit_of(f) == mine(st, ww) for f in frag_plan(ww)[10])) for st in stages}
    stages = sorted([st for st in stages if nl_[st] < 4], key=lambda st: nl_[st])
    def cdma(n):
        X, k, p = stages[n]
        for ii in range(4):
            A('s_mov_b32', 'm0', L_W + (n % 8) * 16384 + w * 4096 + ii * 1024)
            if X == 'o':
                A('s_mov_b32', sT0, (64 * k + 32 * (w >> 1) + 8 * (w & 1) + 16 * (ii >> 1) + 2 * (ii & 1)) * 1280 + 256 * p)
                A('buffer_load_dwordx4', v(CO + 6 * (ii >> 1)), SO, sT0, mods='offen lds', tag=('C', n))
            else:
                A('s_mov_b32', sT0, (64 * k + 16 * w + 2 * ii) * 8192)
                A('buffer_load_dwordx4', v(CS + 6 * (ii >> 1)), {'q': SQ, 'k': SK, 'v': SV}[X], sT0, mods='offen lds', tag=('C', n))
    order = list(lds_units)
    pos = {u: i for i, u in enumerate(lds_units)}
    def dma(u):
        X, j, p = u
        for i in range(4):
            A('s_mov_b32', 'm0', L_WBASE[w] + pos[u] * 4096 + i * 1024)
            if X == 'o':
                off = (64 * j + 32 * (i >> 1) + 8 * (i & 1)) * 1280 + 256 * p
                A('s_mov_b32', sT0, off)
                A('buffer_load_dwordx4', v(SRCO2), SO, sT0, mods='offen lds', tag=('U', u))
            else:
                A('s_mov_b32', sT0, (64 * KO[j] + 16 * i) * 8192)
                A('buffer_load_dwordx4', v(SRCQ), {'q': SQ, 'k': SK, 'v': SV}[X], sT0, mods='offen lds', tag=('U', u))
    slot_of = lambda u: (L_WBASE[w] + pos[u] * 4096 - L_W) // 16384
    order = []
    def retire(sl_):
        for u in lds_units:
            if slot_of(u) == sl_: dma(u); order.append(u)
    for n in range(8): cdma(n)
    pend = []
    def flush():
        for f, d in pend:
            i = strm_idx[f]
            A('buffer_store_dwordx4', v(d, 4), v(LANE16), WS, sSTRS[i >> 1], mods=f'offen offset:{(i&1)*2048} sc1', tag='ST')
            A('buffer_store_dwordx4', v(d + 4, 4), v(LANE16), WS, sSTRS[i >> 1], mods=f'offen offset:{(i&1)*2048+1024} sc1', tag='ST')
        pend.clear()
    for n, st in enumerate(stages):
        A.wait(vm=[('C', n)], lg=0)
        A('s_barrier')
        flush()
        if n >= 1 and n + 7 < len(stages): cdma(n + 7)
        if n >= 1 and n + 7 >= len(stages): retire((n - 1) % 8)
        if n + 8 == len(stages): retire(8)
        u = mine(st, w)
        if u in lds_units: continue
        for t in range(2):
            f = (u[0], u[1], 2 * u[2] + t)
            d = resreg[f] if f in resreg else SL[(n & 1) * 2 + t]
            if f in strm_idx: pend.append((f, d))
            ad = CT + t + (2 if u[0] == 'o' else 0) + (6 if (n % 8) >= 4 else 0)
            for q4, ro in enumerate((0, 1024, 8192, 9216)):
                A('ds_read_b64_tr_b16', R(d + 2 * q4, 2), v(ad), mods=f'offset:{(n % 4)*16384 + ro}')
    A.wait(lg=0); A('s_barrier'); flush(); retire((len(stages) - 1) % 8)
    assert len(order) == len(lds_units)
    def consume(u, n):
        X, j, p = u
        A.wait(vm=[('U', u)])
        dst = []
        for t in range(2):
            f = (X, j, 2 * p + t)
            d = resreg[f] if f in resreg else SL[(n & 1) * 2 + t]
            dst.append((f, d))
            if X != 'o': ad, o = (TRN if t == 0 else TRN + 3), 0
            else: ad, o = TRO2, 16 * t
            for q4, ro in enumerate((0, 256, 2048, 2304)):
                A('ds_read_b64_tr_b16', R(d + 2 * q4, 2), v(ad), mods=f'offset:{pos[u]*4096 + ro + o}', tag=('T', u))
        A.wait(lg=0)
        for f, d in dst:
            if f in lds_off:
                A('ds_write_b128', v(LDSW), v(d, 4), mods=f'offset:{lds_off[f]}')
                A('ds_write_b128', v(LDSW), v(d + 4, 4), mods=f'offset:{lds_off[f]+1024}')
            elif f in strm_idx:
                i = strm_idx[f]
                A('s_add_u32', sT1, sSTR, (i >> 1) * 4096)
                A('buffer_store_dwordx4', v(d, 4), v(LANE16), WS, sT1, mods=f'offen offset:{(i&1)*2048}', tag='ST')
                A('buffer_store_dwordx4', v(d + 4, 4), v(LANE16), WS, sT1, mods=f'offen offset:{(i&1)*2048+1024}', tag='ST')
    nd = NOWN[w]
    ownreg = [AW, AW + 4, AV + 4][:nd]
    t0_, t1_, t2_ = AV, AV + 1, AV + 2
    A('v_lshrrev_b32', v(t0_), 4, v(LANE16))
    A('v_bfe_u32', v(t1_), v(t0_), 2, 2); A('v_lshlrev_b32', v(t1_), 1, v(t1_))
    A('v_and_b32', v(t2_), 1, v(t0_)); A('v_add_u32', v(t1_), v(t1_), v(t2_)); A('v_mul_u32_u24', v(t1_), 1280, v(t1_))
    A('v_lshrrev_b32', v(t2_), 4, v(t0_)); A('v_lshl_add_u32', v(t1_), v(t2_), 5, v(t1_))
    A('v_bfe_u32', v(t2_), v(t0_), 1, 1); A('v_lshl_add_u32', v(t1_), v(t2_), 4, v(t1_))
    for j in range(nd): A('buffer_load_dwordx4', v(AQK + 4 + 4 * j, 4), v(t1_), SM0, 0, mods=f'offen offset:{128*KO[j]}')
    A('v_and_b32', v(t2_), 7, v(t0_)); A('v_min_u32', v(AV + 3), 1, v(t2_)); A('v_lshlrev_b32', v(t2_), 2, v(t2_)); A('v_lshl_add_u32', v(t2_), v(AV + 3), 7, v(t2_))
    A('buffer_load_dword', v(AQK), 'off', SDBG, 0, mods='offset:32 sc1')
    A('buffer_load_dword', v(AQK + 1), v(t2_), SDBG, 0, mods='offen sc1')
    A('v_lshlrev_b32', v(t0_), 3, v(LANE16))
    for n, u in enumerate(order):
        consume(u, n)
        if n == len(order) - 2:
            A.wait(vm=['ST'])
            for i in range(3): A('buffer_load_dword', v(AQK + 2), v(t0_), WS, sSTRS[2 * i], mods='offen sc1')
        if n == 0:
            for i in range(2 * ng): A('buffer_load_dwordx4', v(AV + 4, 4), v(LANE16), WS, sPLD if i < 2 else sPLD1, mods=f'offen offset:{(i&1)*1024} sc1')
            A('s_add_u32', sT0, sMEMc, 5120 * w)
            A('buffer_load_dword', v(AQK + 2), v(t0_), WS, sT0, mods='offen sc1')
            if w == 3:
                A('s_sub_u32', sT0, sKF, 3 * 2048); A('buffer_load_dword', v(XR), v(t0_), WS, sT0, mods='offen sc1')
                A('s_add_u32', sT0, sT0, VT - KF); A('buffer_load_dword', v(XR + 1), v(t0_), WS, sT0, mods='offen sc1')
    A.wait(vm=0, lg=0)
    A('v_readfirstlane_b32', sT0, v(AQK)); A('v_cmp_ne_u32', 'vcc', 32 if not env('FORCE_SLOW') else 33, v(AQK + 1))
    A('s_cmp_ge_u32', sT0, 256); A('s_cselect_b32', sT0, 'vcc_lo', 1); A('s_cmp_eq_u32', sT0, 0)
    if not env('DBG'): A('s_cbranch_scc1', L('rdy'))
    ready(A)
    A.label(L('rdy'))
    A('s_mov_b32', 's40', '0x3f803f80'); A('s_mov_b32', 's41', '0x3f803f80')
    for j in range(nd):
        A('ds_write_b128', v(LANE16), v(AQK + 4 + 4 * j, 4), mods=f'offset:{L_MEM + 1024*KO[j]}')
        A('v_mov_b64', v(ownreg[j], 2), v(AQK + 4 + 4 * j, 2)); A('v_mov_b64', v(ownreg[j] + 2, 2), v(AQK + 6 + 4 * j, 2))
    for n in range(5):
        if n in qslot: fill(qslot[n], qk[n])
    A('s_waitcnt', 'lgkmcnt(0)')
    for i in range(0, 16, 2): A('v_mov_b64', v(AQK + i, 2), 0)
    if len(modes) > 1:
        A('s_cmp_lg_u32', sMODE, 0); A('s_cbranch_scc1', f'CHS{w}_start')
    for sc in modes:
        L = lambda nm: f'CH{"S" if sc else "F"}{w}_{nm}'
        A.label(L('start')); A.reset_counts()
        def stamp(i):
            if not dbg or i not in STAMPS: return
            A('s_memtime', s(80 + 2 * STAMPS.index(i), 2))
        def dump():
            A('s_lshl_b32', sT0, sC, 5); A('s_add_u32', sT0, sT0, sH); A('s_lshl_b32', sT0, sT0, 2); A('s_add_u32', sT0, sT0, w)
            A('s_lshl_b32', sT0, sT0, 6); A('s_add_u32', sT0, sT0, DBGT)
            A('s_waitcnt', 'lgkmcnt(0)')
            for i, r_ in enumerate([s(80 + 2 * k) for k in range(11)] + [sDEAD]):
                A('v_mov_b32', v(AV), r_)
                A('buffer_store_dword', v(AV), 'off', WS, sT0, mods=f'offset:{4*i}'); A.vm.pop()
            A('s_waitcnt', 'vmcnt(0)')
        def pub_read(reg, tmp):
            A('v_and_b32', v(tmp), 512, v(LANE16)); A('v_mul_u32_u24', v(tmp), (L_VM - L_KB - 512) // 512, v(tmp)); A('v_add_u32', v(tmp), v(tmp), v(LANE16))
            A('ds_read_b128', v(reg, 4), v(tmp), mods=f'offset:{L_KB + 512*w}', tag='pk')
        def w3upd():
            A('v_min_u32', v(XR), v(XR + 6), v(XR + 7)); A('v_readlane_b32', sT0, v(XR), 0); A('v_readlane_b32', sT3, v(XR), 1)
            A('s_min_u32', sT0, sT0, sT3); A('s_max_u32', sPROG, sPROG, sT0)
        def w3in(need):
            ok = A.newlabel(L('inok')); lp = A.newlabel(L('inlp'))
            A('s_cmp_gt_u32', sPROG, need); A('s_cbranch_scc1', ok)
            A('s_mov_b32', sSPIN, 0)
            A.label(lp)
            A('buffer_load_dwordx2', v(XR + 6, 2), v(XR + 5), WS, sFIN, mods='offen sc1'); A.vm.pop()
            A('s_waitcnt', 'vmcnt(0)')
            w3upd()
            A('s_cmp_gt_u32', sPROG, need); A('s_cbranch_scc1', ok)
            A('s_cmp_lg_u32', sDEAD, 0); A('s_cbranch_scc1', ok)
            A('s_sleep', 2)
            A('s_add_u32', sSPIN, sSPIN, 1); A('s_cmp_lt_u32', sSPIN, SPIN_MAX); A('s_cbranch_scc1', lp)
            A('s_mov_b32', sDEAD, 1)
            A.label(ok)
        def w3prep():
            A('s_add_u32', sFOV, sS, 1)
            if env('SPECPF', 1): A('s_cmp_lt_u32', sFOV, nsteps)
            else: A('s_cmp_gt_u32', sPROG, sFOV)
            A('s_cselect_b32', sT0, 0, (0 if X_NOADV else 32 * 8192)); A('s_sub_u32', sPFK, sKF, sT0); A('s_sub_u32', sPFK, sPFK, 3 * 2048)
            A('s_add_u32', sPFV, sPFK, VT - KF)
            if env('FLSEL', 1): A('s_add_u32', sT0, sS, 2); A('s_cmp_gt_u32', sPROG, sT0); A('s_cselect_b32', sPFV, '0x20000000', sFIN)
            A('s_max_u32', sT0, sS, 1); A('s_sub_u32', sT0, sT0, 1); A('v_mov_b32', v(XR + 4), sT0)
        def kdma():
            A('s_mov_b32', 'm0', L_KX + w * 2048)
            for i in range(2): A('buffer_load_dwordx4', v(LANE16), WS, sKF, mods=f'offen offset:{i*1024} {KVMOD} lds')
            if not X_NOADV: A('s_add_u32', sKF, sKF, 32 * 8192)
        if w == 3: w3in(sS)
        A('s_barrier')
        kdma()
        if w == 3: w3prep()
        A('s_waitcnt', 'vmcnt(0) lgkmcnt(0)')
        A.label(L('loop'))
        A.reset_counts()
        stamp('top')
        accq = {('q', 0): AQK, ('q', 1): AQK + 4, ('k', 0): AQK + 8, ('k', 1): AQK + 12}
        awin = [AW, AW + 4, AV + 4, AW, AW + 4, AV, AV + 4, AV, AW, AW + 4]
        aat = {3: 3, 4: 7, 5: PUBAT + 1, 6: 11, 7: 23, 8: 15, 9: 19}
        def aread(j, reg, tag):
            A('ds_read_b128', v(reg, 4), v(LANE16), mods=f'offset:{L_MEM + 1024*KO[j]}', tag=tag)
        kfr = {}
        def kread(tk, reg):
            t, kp = tk
            kfr[tk] = reg
            if t == 0: A('ds_read_b128', v(reg, 4), v(FR), mods=f'offset:{L_KB + 512*kp}', tag=('K', tk))
            else: A('ds_read_b128', v(reg, 4), v(LANE16), mods=f'offset:{L_KX + ((t-1)*4+kp)*1024}', tag=('K', tk))
        NPRE = 0
        side = {}
        def at(n, fn): side.setdefault(n, []).append(fn)
        for n0, st, s2, fi in qfill:
            at(n0, lambda s2=s2, fi=fi: half_fill(s2, qk[fi], 0)); at(n0 + st, lambda s2=s2, fi=fi: half_fill(s2, qk[fi], 1))
        if dbg:
            def st8():
                sk = A.newlabel(L('st8'))
                A('s_cmp_lg_u32', sS, 8); A('s_cbranch_scc1', sk); A('s_mov_b32', 's100', 's80'); A.label(sk)
            at(20, st8)
        for n0, tk, reg in [(30, (1, 0), SL[kslots[0]]), (31, (2, 0), SL[kslots[0]] + 4), (36, (1, 1), SL[kslots[1]]), (37, (2, 1), SL[kslots[1]] + 4)]:
            at(n0, lambda tk=tk, reg=reg: kread(tk, reg))
        def vxload(hf):
            A('buffer_load_dwordx4', v(SL[1] + 4 * hf, 4), v(LANE16), WS, sVT, mods=f'offen offset:{1024*hf} {KVMOD}', tag='vx')
        if env('LATEPO', 0):
            pr = XR + 2 if w == 3 else SL[0] + 7
            at(0, lambda: A('v_mov_b32', v(pr), hex(SENT)))
            at(1, lambda: A('buffer_store_short', v(pr), v(RDEST), WS, sMEMc, mods=f'offen {sc}'.strip()))
        VXAT = env('VXAT', 6)
        if env('X_KTOP') == 1: at(0, kdma)
        at(VXAT, lambda: vxload(0)); at(VXAT + 2, lambda: vxload(1))
        if w == 3:
            if not X_NOPF:
                at(PUBAT + env('KPAT', 1), lambda: A('buffer_load_dword', v(XR), v(XR + 3), WS, sPFK, mods='offen sc1'))
                if not env('NOVPF', 1): at(PUBAT + 3, lambda: A('buffer_load_dword', v(XR + 1), v(XR + 3), WS, sPFV, mods='offen sc1'))
            if not X_NOFLAG: at(PUBAT + env('FLAT', 5), lambda: A('buffer_load_dwordx2', v(XR + 6, 2), v(XR + 5), WS, sPFV if env('FLSEL', 1) else sFIN, mods='offen sc1'))
            if not X_NOPUB:
                if env('CHFLAG'): at(PUBAT + 6, lambda: A('buffer_store_dword', v(XR + 4), v(XR + 2), WS, sFLO, mods='offen sc1'))
                if env('DBG') == 2: at(PUBAT + 7, lambda: (tstamp(A, sFLO, sS, XR + 4), A.vm.append(None)))
        def pub2():
            if not X_NOPUB and not env('X_NOKM'): A('buffer_store_dwordx4', v(AV, 4), v(LANE16), WS, sKM, mods='offen ' + os.environ.get('PUBMOD', 'sc1'))
        at(PUBAT, pub2)
        at(28, lambda: A('v_mov_b64', v(AV + 4, 2), 0)); at(29, lambda: A('v_mov_b64', v(AV + 6, 2), 0))
        at(32, lambda: A('v_mov_b64', v(AV, 2), 0)); at(33, lambda: A('v_mov_b64', v(AV + 2, 2), 0))
        A('s_barrier'); stamp('b1')
        if nd == 2: aread(2, awin[2], ('A', 2))
        A('v_mov_b32', v(AQK + 15), 0)
        for n in range(NPRE, 40):
            f = qk[n]; j = f[1]
            if (n & 1) == 0: A.wait(lg=[('A', j)] + [('F', qk[m]) for m in (n, n + 1) if qk[m] in lds_off])
            stamp(f'q{n}')
            smf(accq[(f[0], f[2])], awin[j], f, qslot.get(n))
            for j2, n2 in aat.items():
                if n2 == n: aread(j2, awin[j2], ('A', j2))
            for fn in side.get(n, []): fn()
        vj = [9, 8, 0, 1, 2, 3, 4, 5, 6, 7]
        vq = []
        for idx, j in enumerate(vj):
            reg = AW + 4 if idx % 2 == 0 else AW
            vq.append((j, 0, reg, idx)); vq.append((j, 1, reg, idx))
        vstate = {'i': 0, 'p': 0}
        def vpass(cnt):
            for _ in range(cnt):
                if vstate['i'] >= 20: return
                j, t, reg, idx = vq[vstate['i']]; vstate['i'] += 1
                if t == 0 and idx >= 2: A.wait(lg=[('B', idx)])
                smf(AV + 4 * t, reg, ('v', j, t), None)
                if t == 1 and idx + 2 < 10: aread(vj[idx + 2], reg, ('B', idx + 2))
        stamp(0)
        add2(AQK, AQK, AQK + 2); add2(AQK + 4, AQK + 4, AQK + 6)
        A('v_cvt_pk_bf16_f32', v(AQK + 2), v(AQK), v(AQK + 4)); A('v_cvt_pk_bf16_f32', v(AQK + 3), v(AQK + 1), v(AQK + 5))
        A('ds_write2_b32', v(QKW), v(AQK + 2), v(AQK + 3), mods='offset0:0 offset1:4', tag='qw')
        add2(AQK + 8, AQK + 8, AQK + 10); add2(AQK + 12, AQK + 12, AQK + 14)
        A('v_cvt_pk_bf16_f32', v(AQK + 10), v(AQK + 8), v(AQK + 12)); A('v_cvt_pk_bf16_f32', v(AQK + 11), v(AQK + 9), v(AQK + 13))
        A('ds_write2_b32', v(KW), v(AQK + 10), v(AQK + 11), mods='offset0:0 offset1:4', tag='qw')
        vpass(env('VP1', 4))
        A.wait(lg=['qw']); A('s_barrier'); stamp('b2')
        qreg = [SL[qslots[0]], SL[qslots[0]] + 4, SL[qslots[1]], SL[qslots[1]] + 4]
        A('ds_read_b128', v(qreg[0], 4), v(FR), mods=f'offset:{L_QB}', tag=('Q', 0))
        A('ds_read_b128', v(qreg[1], 4), v(FR), mods=f'offset:{L_QB + 512}', tag=('Q', 1))
        kread((0, 0), AQK + 12)
        for kp in range(2, 4): A('ds_read_b128', v(qreg[kp], 4), v(FR), mods=f'offset:{L_QB + 512*kp}', tag=('Q', kp))
        vpass(env('VP2', 4))
        sacc = {0: AQK, 1: AQK + 4, 2: AQK + 8}
        sc_order = [(1, 0), (2, 0), (1, 1), (2, 1), (0, 0), (0, 1), (1, 2), (2, 2), (0, 2), (0, 3), (1, 3), (2, 3)]
        pending = sc_order[5:]
        pf = []
        for n in opre:
            pf.append((oslot[n], oo[n], 0)); pf.append((oslot[n], oo[n], 1))
        def pfill(cnt=1):
            for _ in range(cnt):
                if pf: half_fill(*pf.pop(0))
        for tk in sc_order:
            t, kp = tk
            A.wait(lg=[('K', tk), ('Q', kp)])
            A('v_mfma_f32_16x16x32_bf16', v(sacc[t], 4), v(kfr[tk], 4), v(qreg[kp], 4), '0' if kp == 0 else v(sacc[t], 4))
            if pending: kread(pending.pop(0), kfr[tk])
        stamp('sc')
        vpass(1); pfill(); vpass(1); pfill()
        vals = [AQK, AQK + 1] + [AQK + 4 + i for i in range(8)]
        mx = AQK + 2; tm = AQK + 3
        A('v_max3_f32', v(mx), v(vals[0]), v(vals[1]), v(vals[2])); A('v_max3_f32', v(tm), v(vals[3]), v(vals[4]), v(vals[5]))
        A('v_max3_f32', v(mx), v(mx), v(vals[6]), v(vals[7])); A('v_max3_f32', v(tm), v(tm), v(vals[8]), v(vals[9]))
        A('v_max_f32', v(mx), v(mx), v(tm)); A('v_max_f32', v(tm), v(mx), v(tm))
        vpass(1); pfill()
        A('v_permlane32_swap_b32', v(tm), v(mx)); A('v_max_f32', v(mx), v(mx), v(tm)); A('v_max_f32', v(tm), v(mx), v(tm))
        vpass(1)
        A('v_permlane16_swap_b32', v(tm), v(mx)); A('v_max_f32', v(mx), v(mx), v(tm))
        A('v_mul_f32', v(mx), sSCALE, v(mx))
        stamp('s1')
        order = vals[2:] + vals[:2]
        for i, r_ in enumerate(order):
            A('v_fma_f32', v(r_), v(r_), sSCALE, '-' + v(mx))
            if i >= 1: A('v_exp_f32', v(order[i - 1]), v(order[i - 1]))
            if i < 8: vpass(1)
            if i % 3 == 1: pfill()
            if i in (3, 5, 7, 9): A('v_cvt_pk_bf16_f32', v(AQK + 12 + (i - 3) // 2), v(order[i - 3]), v(order[i - 2]))
            if i == 6: A('v_mov_b64', v(AQK + 4, 2), sONES); A('v_mov_b64', v(AQK + 6, 2), sONES)
        A('v_exp_f32', v(order[9]), v(order[9]))
        stamp('s2')
        vpass(20)
        A('v_mov_b32', v(AQK + 3), 0)
        stamp(2)
        A('v_cvt_pk_bf16_f32', v(AQK + 2), v(AQK), v(AQK + 1))
        A.wait(vm=['vx'])
        A('v_mfma_f32_16x16x32_bf16', v(AQK + 8, 4), v(AQK + 4, 4), v(AQK + 12, 4), '0')
        add2(AV, AV, AV + 2)
        A('v_mfma_f32_16x16x32_bf16', v(AW, 4), v(SL[1], 4), v(AQK + 12, 4), '0')
        add2(AV + 4, AV + 4, AV + 6)
        A('v_mfma_f32_16x16x32_bf16', v(AW + 4, 4), v(SL[1] + 4, 4), v(AQK + 12, 4), '0')
        A('v_cvt_pk_bf16_f32', v(AV + 2), v(AV), v(AV + 1)); A('v_cvt_pk_bf16_f32', v(AV + 3), v(AV + 4), v(AV + 5))
        A('v_mfma_f32_16x16x16_bf16', v(AQK + 8, 4), v(AQK + 4, 2), v(AQK + 2, 2), v(AQK + 8, 4))
        A('v_cvt_pk_bf16_f32', v(AV + 4), v(AV + 4), v(AV + 5)); A('v_mov_b32', v(AV + 5), 0)
        stamp('p1')
        A('v_mfma_f32_16x16x16_bf16', v(AW, 4), v(AV + 2, 2), v(AQK + 2, 2), v(AW, 4))
        pfill(2)
        A('v_mfma_f32_16x16x16_bf16', v(AW + 4, 4), v(AV + 4, 2), v(AQK + 2, 2), v(AW + 4, 4))
        stamp('p2')
        pf.append((oslot[e_], oo[e_], 0)); pf.append((oslot[e_], oo[e_], 1))
        pfill(1)
        sm = AQK
        A('v_lshrrev_b32', v(AV + 6), 1, v(LANE16))
        A('ds_write_b64', v(AV + 6), v(AV + 2, 2), mods=f'offset:{L_VM + 512*w}', tag='ow')
        A('v_rcp_f32', v(sm), v(AQK + 8))
        for i in (4, 6): A('v_mov_b64', v(AQK + i, 2), 0)
        for i in range(4):
            A('v_mul_f32', v(AW + 2 * i), v(AW + 2 * i), v(sm)); A('v_mul_f32', v(AW + 2 * i + 1), v(AW + 2 * i + 1), v(sm))
            A('v_cvt_pk_bf16_f32', v(AQK + 8 + i), v(AW + 2 * i), v(AW + 2 * i + 1))
        A('ds_write_b128', v(FR), v(AQK + 8, 4), mods=f'offset:{L_O + 512*w}', tag='ow')
        stamp('p3')
        pfill(3)
        for i in (0, 2, 12, 14): A('v_mov_b64', v(AQK + i, 2), 0)
        for i in (0, 4): A('v_mov_b64', v(AV + i, 2), 0)
        stamp('p4')
        A.wait(lg=['ow']); A('s_barrier')
        A('ds_read_b128', v(AW, 4), v(LANE16), mods=f'offset:{L_O}', tag='oa0')
        A('ds_read_b128', v(AW + 4, 4), v(LANE16), mods=f'offset:{L_O+1024}', tag='oa1')
        pfill()
        A('s_cmp_eq_u32', sS, nsteps - 1)
        A('s_cbranch_scc1', L('last'))
        if dbg and env('FRZ'):
            A('s_cmp_lg_u32', sS, env('FRZ')); A('s_cbranch_scc1', L('nofrz'))
            A('s_memtime', 's[100:101]'); dump(); A('v_mov_b32', v(AV), 0)
            A.label(L('nofrz'))
        for i in (8, 10): A('v_mov_b64', v(AQK + i, 2), 0)
        for i in (2, 6): A('v_mov_b64', v(AV + i, 2), 0)
        assert not pf
        stamp(3)
        accs = [AQK, AQK + 4, AQK + 8, AQK + 12, AV, AV + 4]
        tacc = {t: t % 6 for t in range(10)}
        def post_ops(t):
            r_ = accs[tacc[t]]; st = accs[tacc[t & ~1]] + (t & 1)
            ops = [lambda: A('v_add_f32', v(r_), v(r_), v(r_ + 2)), lambda: A('v_add_f32', v(r_ + 1), v(r_ + 1), v(r_ + 3)),
                   lambda: A('v_cvt_pk_bf16_f32', v(st), v(r_), v(r_ + 1))]
            if t % 2 == 0: ops.append(lambda: A('v_and_or_b32', v(st), v(st), -2, sTAG))
            else:
                ops.append(lambda: A('buffer_store_dwordx2', v(st - 1, 2), v(PST2), WS, sPSTS[t >> 1], mods=f'offen {sc}'.strip(), tag='ps'))
                if t < 4:
                    for rr in (r_, r_ + 2, st + 1, st - 1): ops.append(lambda rr=rr: A('v_mov_b64', v(rr, 2), 0))
            return ops
        oside = {}
        def oat(n, fn): oside.setdefault(n, []).append(fn)
        for a_, b_ in [(ab[i] + k, ab[i + 1] + k) for i in range(3) for k in range(2)]:
            oat(a_, lambda b_=b_: fill(oslot[b_], oo[b_]))
        for n0, (qi, _) in zip((cd, cd + env('HS', 3), max(e_, cd + 2 * env('HS', 3))), held):
            oat(n0, lambda qi=qi: half_fill(qslot[qi], qk[qi], 0)); oat(n0 + (2 if env('HS', 3) > 2 else 1), lambda qi=qi: half_fill(qslot[qi], qk[qi], 1))
        vq_ = []
        for n, f in enumerate(oo):
            if n % 2 == 0:
                pr = [oo[n], oo[n + 1]]
                A.wait(lg=(['oa0'] if n == 0 else ['oa1'] if n == 2 else []) + [('F', x) for x in pr if x in lds_off], vm=[('F', x) for x in pr if x in strm_idx])
            if f[1] == 0 and f[2] >= 6:
                need = {6: 1, 7: 1, 8: 3, 9: 3}[f[2]]
                while any(t == need for t, _ in vq_): vq_.pop(0)[1]()
            stamp(f'o{n}')
            smf(accs[tacc[f[2]]], AW + 4 * f[1], f, oslot.get(n))
            for fn in oside.get(n, []): fn()
            for t in range(10):
                if 4 * (t >> 1) + 2 + (t & 1) + 3 == n: vq_ += [(t, o_) for o_ in post_ops(t)]
            for _ in range(3):
                if vq_: vq_.pop(0)[1]()
        while vq_: vq_.pop(0)[1]()
        for t in (8, 9):
            for o_ in post_ops(t): o_()
        stamp(4)
        if env('ACKT'): A('s_waitcnt', 'vmcnt(0)'); stamp('ack')
        if w == 3: w3upd(); w3in(sFOV)
        A('s_barrier')
        ra = AV + 4
        setreg = [AQK, AQK + 8 if ng == 1 else SL[2]]
        A('s_mov_b32', sSPIN, 0)
        A('v_bfe_u32', v(ra + 1), v(LANE16), 4, 1); A('v_lshlrev_b32', v(ra + 1), 4, v(ra + 1))
        A('v_mov_b32', v(ra + 2), '0x3f80'); A('v_lshlrev_b32', v(ra + 1), v(ra + 1), v(ra + 2))
        A('v_bfe_u32', v(ra + 2), v(LANE16), 5, 3)
        def rloads(st):
            for i in range(2 * ng):
                A('buffer_load_dwordx4', v(setreg[st] + 4 * i, 4), v(LANE16), WS, sPLD if i < 2 else sPLD1, mods=f'offen offset:{(i&1)*1024} sc1')
        sel = lambda jj: (A('v_cmp_eq_u32', 'vcc', jj, v(ra + 2)), A('v_cndmask_b32', v(AW + jj), 0, v(ra + 1), 'vcc'))
        if env('RSL', 1) >= 0:
            for jj in range(4): sel(jj)
            if env('RSL', 1): A('s_sleep', env('RSL', 1))
            rloads(0)
            for jj in range(4, 4 * ng): sel(jj)
            if ng == 1 or env('RSL2', 2) > 1: A('s_sleep', env('RSL2', 2) - (ng - 1))
        else:
            for jj in range(RDELAY): sel(jj % (4 * ng))
            rloads(0)
            for jj in range(max(RGAP, 4 * ng - RDELAY)): sel((RDELAY + jj) % (4 * ng))
        rloads(1)
        for jj in range(env('RFILL', 0)): sel(jj % (4 * ng))
        A.label(L('rloop'))
        for st in range(2):
            A('s_waitcnt', f'vmcnt({2*ng})')
            stamp('r1')
            for i in range(2 * ng):
                b = setreg[st] + 4 * i
                A('v_mfma_f32_16x16x32_bf16', v(AV, 4), v(b, 4), v(AW + 4 * (i >> 1), 4), '0' if i == 0 else v(AV, 4))
                if i == 0:
                    A('v_and_b32', v(ra + 1), v(b), v(b + 2)); A('v_or_b32', v(ra + 2), v(b), v(b + 2))
                else:
                    A('v_bitop3_b32', v(ra + 1), v(ra + 1), v(b), v(b + 2), mods='bitop3:0x80'); A('v_or3_b32', v(ra + 2), v(ra + 2), v(b), v(b + 2))
            A('v_bitop3_b32', v(ra + 1), v(ra + 1), v(ra + 2), sTAG, mods='bitop3:0x4e')
            A('v_and_b32', v(ra + 1), 1, v(ra + 1))
            A('v_cmp_ne_u32', 'vcc', 0, v(ra + 1))
            A('v_permlane32_swap_b32', v(AV), v(AV + 2)); A('v_permlane32_swap_b32', v(AV + 1), v(AV + 3))
            add2(AV, AV, AV + 2)
            A('s_cbranch_vccnz', L(f'rbad{st}'))
            if st == 1: A.label(L('rok'))
            A('v_permlane16_swap_b32', v(AV), v(AV + 1)); A('v_add_f32', v(AV), v(AV), v(AV + 1))
            A('v_cvt_pk_bf16_f32', v(AV), v(AV), v(AV))
            A('buffer_store_short', v(AV), v(RDEST), WS, sMEMc, mods=f'offen {sc}'.strip())
            A('s_branch', L('rdone'))
            A.label(L(f'rbad{st}'))
            rloads(st)
        A('s_cmp_lg_u32', sDEAD, 0); A('s_cbranch_scc1', L('rok'))
        A('s_add_u32', sSPIN, sSPIN, 1)
        A('s_cmp_lt_u32', sSPIN, SPIN_MAX); A('s_cbranch_scc1', L('rloop'))
        A('s_mov_b32', sDEAD, 1)
        A('s_branch', L('rok'))
        A.label(L('rdone'))
        stamp(5)
        if not env('LATEPO', 0):
            A('v_mov_b32', v(AV + 1), hex(SENT))
            A('buffer_store_short', v(AV + 1), v(RDEST), WS, sMEMo, mods=f'offen {sc}'.strip())
        A.reset_counts()
        xl = 0
        if env('X_KTOP'): xl -= 2
        else: kdma()
        pub_read(AV, AV + 4)
        A('s_add_u32', sT2, sMEMc, 1024 * KOWN[w])
        A('s_xor_b32', sTAG, sTAG, 1); A('s_add_u32', sKM, sKM, 32 * 4096)
        A('s_xor_b32', sMEMc, sMEMc, sDMEM); A('s_xor_b32', sMEMo, sMEMo, sDMEM)
        if not X_NOADV: A('s_add_u32', sVT, sVT, 32 * 8192)
        A('s_add_u32', sS, sS, 1)
        A('s_mov_b32', sSPIN, 0)
        A('s_mov_b32', 'm0', L_MEM + 1024 * KOWN[w])
        def gdma():
            for j in range(nd): A('buffer_load_dwordx4', v(LANE16), WS, sT2, mods=f'offen offset:{1024*j} sc1 lds')
        if w == 3: w3prep()
        if env('GSL', 3) >= 0: A('s_sleep', env('GSL', 3))
        else:
            for i in range(GDELAY - (8 if w == 3 else 0)): A('v_mov_b32', v(AW + (i % 8)), 0)
        gdma()
        A('s_waitcnt', f'vmcnt({(3 if env("LATEPO", 0) else 4) + nd + xl})')
        fill(qslot[2], qk[2]); fill(qslot[3], qk[3])
        for i in range(0, 16, 2): A('v_mov_b64', v(AQK + i, 2), 0)
        if env('GSL', 3) >= 0: A('s_sleep', env('GSL2', 1))
        else:
            for i in range(env('GGAP', 24)): A('v_mov_b32', v(AW + (i % 8)), 0)
        if env('GLATE', 1):
            A.label(L('gloop'))
            gdma()
            A('s_waitcnt', f'vmcnt({nd})')
            for j in range(nd): A('ds_read_b128', v(ownreg[j], 4), v(LANE16), mods=f'offset:{L_MEM + 1024*KO[j]}')
        else:
            gdma()
            A.label(L('gloop'))
            A('s_waitcnt', f'vmcnt({nd})')
            for j in range(nd): A('ds_read_b128', v(ownreg[j], 4), v(LANE16), mods=f'offset:{L_MEM + 1024*KO[j]}')
            gdma()
        gregs = [r_ + i for r_ in ownreg for i in range(4)]
        A('s_waitcnt', f'lgkmcnt({nd-1})')
        m0_ = AQK + 15
        A('v_pk_max_u16', v(m0_), v(gregs[0]), v(gregs[1]))
        for i in range(2, len(gregs)):
            if i % 4 == 0: A('s_waitcnt', f'lgkmcnt({nd-1-i//4})')
            A('v_pk_max_u16', v(m0_), v(m0_), v(gregs[i]))
        emit_check(A, m0_, AQK + 14, gregs, L('gloop'), L('loop'), define=False)
        A('s_branch', L('loop'))
        A.label(L('last'))
        A.reset_counts()
        pub_read(AV, AV + 4); A('s_add_u32', sKM, sKM, 32 * 4096)
        A('s_waitcnt', 'lgkmcnt(0)')
        A('buffer_store_dwordx4', v(AV, 4), v(LANE16), WS, sKM, mods='offen sc1')
        A('s_waitcnt', 'vmcnt(0)')
        A('s_barrier')
        if w == 3:
            A('v_mov_b32', v(XR), nsteps)
            A('s_mov_b64', 'exec', 1)
            A('buffer_store_dword', v(XR), 'off', WS, sFLO, mods='sc1')
            A('s_mov_b64', 'exec', -1)
        if dbg and not env('FRZ'): dump()
        A('s_waitcnt', 'vmcnt(0) lgkmcnt(0)')
        A('s_endpgm')

def emit_check(A, m0, m1, regs, retry, ok, define=True):
    A('v_pk_max_u16', v(m0), v(m0), v(m0), mods='op_sel:[0,1] op_sel_hi:[1,0]')
    A('v_cmp_le_u32', 'vcc', '0xff810000', v(m0))
    A('s_cbranch_vccz', ok)
    A('s_add_u32', sSPIN, sSPIN, 1)
    A('s_cmp_lt_u32', sSPIN, 64); A('s_cbranch_scc1', retry)
    A('s_cmp_lg_u32', sDEAD, 0); A('s_cbranch_scc1', ok)
    A('v_mov_b32', v(m0), -1)
    for r_ in regs:
        A('v_xor_b32', v(m1), hex(SENT), v(r_)); A('v_pk_min_u16', v(m0), v(m0), v(m1))
    A('v_pk_min_u16', v(m0), v(m0), v(m0), mods='op_sel:[0,1] op_sel_hi:[1,0]')
    A('v_mov_b32', v(m1), 0)
    A('v_cmp_eq_u32', 'vcc', 0, v(m0))
    A('s_cbranch_vccz', ok)
    A('s_sleep', 1)
    A('s_cmp_lt_u32', sSPIN, SPIN_MAX); A('s_cbranch_scc1', retry)
    A('s_mov_b32', sDEAD, 1)
    if define: A.label(ok)
```

```python
from asmgen import *
from layout import *
from chain import tstamp, sMODE, WS, SQ, SK, SV, SO, SX, SM0, SW1, SW2, SOUT, SDBG, f32bits, SPIN_MAX
sW, sI, sL, sU = 's52', 's53', 's54', 's55'
sIN, sOUT_, sFI, sFO, sPROG, sPEND, sLB, sNX, sA, sB, sC_, sD = ['s%d' % i for i in range(56, 68)]
sSPIN, sDEAD = 's68', 's69'
sT0, sT1, sT2, sT3 = 's70', 's71', 's72', 's73'
NU = 64
CHK1 = [int(x) for x in __import__('os').environ.get('CHK1', '10,20,30').split(',')]
import os
DBG = int(os.environ.get('DBG', 0))
LN_, L16, FOFF = 0, 1, 2
FV = 4
TM = 8

def common_setup(A, nlines):
    A('v_and_b32', v(LN_), 63, 'v0'); A('v_lshlrev_b32', v(L16), 4, v(LN_))
    A('v_min_u32', v(FOFF), nlines - 1, v(LN_)); A('v_lshlrev_b32', v(FOFF), 7, v(FOFF))
    A('s_mov_b32', sU, 0); A('s_mov_b32', sPROG, 0); A('s_mov_b32', sPEND, 0); A('s_mov_b32', sDEAD, 0)

def ph(A, i):
    if DBG: A('s_memtime', s(2 * i + (4 if i < 2 else 90 - 4), 2)) if False else None
PHR = [4, 6, 88, 94, 100]
def ph(A, i):
    if DBG: A('s_memtime', s(PHR[i], 2))
def ph_dump(A, tmp=3):
    if not DBG: return
    sk = A.newlabel('phd')
    A('s_cmp_lg_u32', sU, 40); A('s_cbranch_scc1', sk)
    A('s_lshr_b32', 's92', sFO, 7); A('s_lshl_b32', 's92', 's92', 2); A('s_bfe_u32', 's93', sFO, 0x20002); A('s_add_u32', 's92', 's92', 's93')
    A('s_lshl_b32', 's92', 's92', 6); A('s_add_u32', 's92', 's92', DBGT + (3 << 20))
    A('s_waitcnt', 'lgkmcnt(0)')
    for i, r in enumerate(PHR):
        A('v_mov_b32', v(tmp), s(r)); A('buffer_store_dword', v(tmp), 'off', WS, 's92', mods=f'offset:{4*i}'); A.vm.pop()
    A.label(sk)

def flag_load(A, soff=sFI, reg=FV, voff=FOFF, n=4):
    op = {1: 'buffer_load_dword', 2: 'buffer_load_dwordx2', 4: 'buffer_load_dwordx4'}[n]
    A(op, v(reg, n), v(voff), WS, soff, mods='offen sc1', tag='fl')

def flag_min(A, dst, reg=FV, n=4, lanes=64, floor=None):
    if n == 4:
        A('v_min3_u32', v(reg), v(reg), v(reg + 1), v(reg + 2)); A('v_min_u32', v(reg), v(reg), v(reg + 3))
    elif n == 2:
        A('v_min_u32', v(reg), v(reg), v(reg + 1))
    if floor is not None: A('v_max_u32', v(reg), v(reg), v(floor))
    if lanes > 1:
        for sh in (1, 2, 4, 8): A('v_min_u32_dpp', v(reg), v(reg), v(reg), mods=f'row_ror:{sh} row_mask:0xf bank_mask:0xf')
    A('v_readlane_b32', sT0, v(reg), 0)
    if lanes > 16:
        assert lanes <= 32
        A('v_readlane_b32', sT1, v(reg), 16); A('s_min_u32', sT0, sT0, sT1)
    A('s_max_u32', dst, dst, sT0)

def poll(A, pre, need, prog=sPROG, soff=sFI, reg=FV, voff=FOFF, n=4, lanes=64, floor=None):
    ok = A.newlabel(pre + '_ok'); lp = A.newlabel(pre + '_lp')
    A('s_cmp_gt_u32', prog, need); A('s_cbranch_scc1', ok)
    A('s_mov_b32', sSPIN, 0)
    A.label(lp)
    flag_load(A, soff, reg, voff, n); A.vm.pop()
    A('s_waitcnt', 'vmcnt(0)')
    flag_min(A, prog, reg, n, lanes, floor)
    A('s_cmp_gt_u32', prog, need); A('s_cbranch_scc1', ok)
    A('s_cmp_lg_u32', sDEAD, 0); A('s_cbranch_scc1', ok)
    A('s_sleep', int(os.environ.get('PSL', 2)))
    A('s_add_u32', sSPIN, sSPIN, 1); A('s_cmp_lt_u32', sSPIN, SPIN_MAX); A('s_cbranch_scc1', lp)
    A('s_mov_b32', sDEAD, 1)
    A.label(ok)

def publish(A, val, tmp=3, loc=False):
    A('v_mov_b32', v(tmp), val)
    A('s_mov_b64', 'exec', 1)
    if loc: local_flag(A, lambda md: A('buffer_store_dword', v(tmp), 'off', WS, sFO, mods=md))
    else: A('buffer_store_dword', v(tmp), 'off', WS, sFO, mods='sc1')
    A.vm.pop()
    if DBG: tstamp(A, sFO, val, tmp)
    A('s_mov_b64', 'exec', -1)

def local(A, fn):
    fn('sc1')

def local_flag(A, fn):
    sl = A.newlabel('loc_s'); e = A.newlabel('loc_e')
    A('s_cmp_lg_u32', sMODE, 0); A('s_cbranch_scc1', sl)
    n0 = len(A.vm); fn(''); del A.vm[n0:]
    A('s_branch', e)
    A.label(sl)
    fn('sc1')
    A.label(e)

def flag_out_addr(A, kind):
    A('s_mul_i32', sFO, sL, FL_LAYER); A('s_lshl_b32', sT0, sI, 7); A('s_add_u32', sFO, sFO, sT0)
    A('s_lshl_b32', sT0, sW, 2); A('s_add_u32', sFO, sFO, sT0); A('s_add_u32', sFO, sFO, kind)

def load_weights(A, srd, stride, rowpart, sbase, soffs, dst, perm):
    SRC, TR0, TR1 = TM, TM + 1, TM + 2
    t = [TM + 3 + i for i in range(6)]
    A('v_lshrrev_b32', v(t[0]), 5, v(LN_)); A('v_mul_u32_u24', v(t[0]), rowpart, v(t[0]))
    A('v_bfe_u32', v(t[1]), v(LN_), 3, 2); A('v_add_u32', v(t[0]), v(t[0]), v(t[1]))
    A('s_mov_b32', sT0, stride); A('v_mul_lo_u32', v(t[0]), v(t[0]), sT0)
    A('v_bfe_u32', v(t[1]), v(LN_), 4, 1); A('v_lshlrev_b32', v(t[1]), 2, v(t[1])); A('v_and_b32', v(t[2]), 7, v(LN_)); A('v_xor_b32', v(t[1]), v(t[1]), v(t[2]))
    A('v_lshl_add_u32', v(t[0]), v(t[1]), 4, v(t[0])); A('v_add_u32', v(SRC), sbase, v(t[0]))
    A('s_mul_i32', sLB, sW, 40960)
    A('v_lshrrev_b32', v(t[0]), 5, v(LN_)); A('v_lshlrev_b32', v(t[0]), 10, v(t[0]))
    A('v_bfe_u32', v(t[1]), v(LN_), 2, 2); A('v_lshl_add_u32', v(t[0]), v(t[1]), 7, v(t[0]))
    A('v_bfe_u32', v(t[1]), v(LN_), 3, 1); A('v_lshl_add_u32', v(t[0]), v(t[1]), 6, v(t[0]))
    A('v_bfe_u32', v(t[1]), v(LN_), 4, 1); A('v_lshl_add_u32', v(t[0]), v(t[1]), 5, v(t[0]))
    if perm:
        A('v_and_b32', v(t[1]), 1, v(LN_)); A('v_lshl_add_u32', v(t[0]), v(t[1]), 4, v(t[0]))
        A('v_bfe_u32', v(t[1]), v(LN_), 1, 1); A('v_lshl_add_u32', v(t[0]), v(t[1]), 3, v(t[0]))
    else:
        A('v_and_b32', v(t[1]), 3, v(LN_)); A('v_lshl_add_u32', v(t[0]), v(t[1]), 3, v(t[0]))
    A('v_add_u32', v(TR0), sLB, v(t[0])); A('v_xor_b32', v(TR1), 64, v(TR0))
    n_st = len(soffs); depth = 20
    def dma(n):
        for b in range(2):
            A('s_add_u32', 'm0', sLB, (n % depth) * 2048 + b * 1024)
            A('s_mov_b32', sT0, soffs[n][b])
            A('buffer_load_dwordx4', v(SRC), srd, sT0, mods='offen lds', tag=('W', n))
    for n in range(min(depth, n_st)): dma(n)
    for n in range(n_st):
        A.wait(vm=[('W', n)])
        for T in range(2):
            for hq in range(2):
                A('ds_read_b64_tr_b16', R(dst(n, T) + 2 * hq, 2), v(TR0 if T == 0 else TR1), mods=f'offset:{(n % depth)*2048 + 512*hq}', tag=('T', n))
        if n >= 1 and n - 1 + depth < n_st:
            A.wait(lg=[('T', n - 1)]); dma(n - 1 + depth)
    A.wait(vm=0, lg=0)

def emit_gemm1(A, kind, ready):
    P = f'G1{kind}_'
    A.label(P + 'entry'); A.reset_counts()
    RING, ACC, STG, WR = 64, 128, 160, 192
    AD, SA = 32, 33
    wreg = lambda n, T: WR + (2 * n + T) * 4
    common_setup(A, 2)
    FLR = 34
    A('v_mov_b32', v(FLR), 0)
    if kind != 'f1':
        A('s_cmp_eq_u32', sL, 0); A('s_cselect_b32', sT0, 15, 1); A('v_min_u32', v(FOFF), sT0, v(LN_))
        A('v_lshrrev_b32', v(FLR), 1, v(FOFF)); A('v_lshlrev_b32', v(FOFF), 7, v(FOFF))
    if kind == 'f1':
        A('s_lshl_b32', sT1, sI, 2); A('s_add_u32', sT1, sT1, sW)
        A('s_lshl_b32', sA, sT1, 7)
        A('s_cmp_lt_u32', sT1, 27); A('s_cselect_b32', sA, sA, '0x20000000')
        A('s_mul_i32', sOUT_, sL, LAYER_H); A('s_lshl_b32', sT1, sT1, 12); A('s_add_u32', sOUT_, sOUT_, sT1); A('s_add_u32', sOUT_, sOUT_, HF)
        load_weights(A, SW1, 3456, 4, sA, [(16 * n * 3456, (16 * n + 8) * 3456) for n in range(40)], wreg, False)
        A('s_mul_i32', sIN, sL, LAYER_X); A('s_add_u32', sIN, sIN, XN1)
        A('s_mul_i32', sFI, sL, FL_LAYER); A('s_add_u32', sFI, sFI, FL_LNA)
        flag_out_addr(A, FL_F1); nl = 2; ostep = UH
        A('v_mov_b32', v(SA), v(L16))
    else:
        A('s_mul_i32', sT1, sI, 43); A('s_lshr_b32', sB, sT1, 7)
        A('s_mul_i32', sT1, sB, 3); A('s_sub_u32', sC_, sI, sT1)
        A('s_lshl_b32', sA, sB, 9); A('s_lshl_b32', sT1, sW, 7); A('s_add_u32', sA, sA, sT1)
        soffs = [(16 * n * 8192, (16 * n + 8) * 8192) for n in range(40)]
        if kind == 'v':
            load_weights(A, SV, 8192, 4, sA, soffs, wreg, False)
        else:
            A('s_cmp_eq_u32', sC_, 0)
            A('s_cselect_b32', 's76', 's12', 's16'); A('s_cselect_b32', 's77', 's13', 's17'); A('s_mov_b32', 's78', hex(640 * 4096 * 2)); A('s_mov_b32', 's79', '0x20000')
            load_weights(A, 's[76:79]', 8192, 4, sA, soffs, wreg, False)
        A('s_mul_i32', sOUT_, sL, LAYER_F); A('s_lshl_b32', sT1, sB, 14); A('s_add_u32', sOUT_, sOUT_, sT1)
        A('s_lshr_b32', sT1, sW, 1); A('s_lshl_b32', sT1, sT1, 13); A('s_add_u32', sOUT_, sOUT_, sT1)
        A('s_and_b32', sT1, sW, 1)
        if kind == 'v':
            A('s_lshl_b32', sT1, sT1, 12); A('s_add_u32', sOUT_, sOUT_, sT1); A('s_add_u32', sOUT_, sOUT_, VT)
            A('s_mul_i32', 's74', sL, LAYER_KM); A('s_lshl_b32', sT1, sB, 13); A('s_add_u32', 's74', 's74', sT1)
            A('s_lshl_b32', sT1, sW, 11); A('s_add_u32', 's74', 's74', sT1); A('s_add_u32', 's74', 's74', KM)
            for i in range(4): A('v_mov_b32', v(36 + i), hex(SENT))
        else:
            A('s_lshl_b32', sT1, sT1, 11); A('s_add_u32', sOUT_, sOUT_, sT1)
            A('s_cmp_eq_u32', sC_, 0); A('s_cselect_b32', sT1, QF - KF, 0); A('s_add_u32', sOUT_, sOUT_, sT1); A('s_add_u32', sOUT_, sOUT_, KF)
        A('s_mul_i32', sIN, sL, LAYER_X); A('s_add_u32', sIN, sIN, XN)
        A('s_mul_i32', sFI, sL, FL_LAYER); A('s_add_u32', sFI, sFI, FL_XN)
        flag_out_addr(A, FL_QKV); nl = 16; ostep = 32 * 8192
        A('v_bfe_u32', v(TM), v(LN_), 4, 1); A('v_lshlrev_b32', v(TM), 10 if kind == 'v' else 12, v(TM))
        A('v_lshrrev_b32', v(TM + 1), 5, v(LN_)); A('v_lshl_add_u32', v(TM), v(TM + 1), 8, v(TM))
        A('v_and_b32', v(TM + 1), 15, v(LN_)); A('v_lshl_add_u32', v(SA), v(TM + 1), 4, v(TM))
    A('s_mul_i32', sT0, sW, 10240); A('s_add_u32', sIN, sIN, sT0); A('s_mov_b32', sLB, sT0)
    A('s_mov_b32', sD, 0)
    ready(A)
    A('s_barrier')
    def dma_in():
        for i in range(10):
            if i % 4 == 0:
                A('s_add_u32', 'm0', sLB, i * 1024); A('s_add_u32', sT0, sIN, i * 1024)
            A('buffer_load_dwordx4', v(L16), WS, sT0, mods=f'offen offset:{(i%4)*1024} sc1 lds'); A.vm.pop()
        A('s_add_u32', sIN, sIN, UX)
        A('s_add_u32', sT0, sLB, UX); A('s_sub_u32', sT1, sLB, UX); A('s_cmp_ge_u32', sLB, UX); A('s_cselect_b32', sLB, sT1, sT0)
    A.label(P + 'fetch')
    poll(A, P + 'p', sU, lanes=nl, floor=FLR)
    dma_in()
    A('s_waitcnt', 'vmcnt(0)')
    flag_load(A)
    A.label(P + 'top')
    A.reset_counts()
    NST = 4 if kind != 'v' else 6
    ph_dump(A); ph(A, 0)
    A('s_waitcnt', f'vmcnt({NST+1})')
    A('s_barrier')
    ph(A, 1)
    A('v_add_u32', v(AD), sD, v(L16))
    A('s_xor_b32', sD, sD, UX)
    D = 8
    def rd(k): A('ds_read_b128', v(RING + 4 * (k % D), 4), v(AD), mods=f'offset:{k*1024}')
    for k in range(D): rd(k)
    A('s_mov_b32', sNX, 0)
    A('s_add_u32', sT2, sU, 1); A('s_cmp_lt_u32', sT2, NU); A('s_cselect_b32', 's77', sT2, '0x7fffffff')
    def step(k, mid=None, end=None):
        A('s_waitcnt', f'lgkmcnt({min(D - 1, 39 - k)})')
        x = v(RING + 4 * (k % D), 4)
        for T in range(2):
            wv = R(wreg(k, T), 4); acc = v(ACC + 16 * T, 16)
            a_, b_ = (x, wv) if kind == 'v' else (wv, x)
            A('v_mfma_f32_32x32x16_bf16', acc, a_, b_, '0' if k == 0 else acc)
            if T == 0 and mid: mid()
        if k + D < 40: rd(k + D)
        if end: end()
    def dma1(i):
        if i % 4 == 0:
            A('s_add_u32', 'm0', sLB, i * 1024); A('s_add_u32', sT0, sIN, i * 1024)
        A('buffer_load_dwordx4', v(L16), WS, sT0, mods=f'offen offset:{(i%4)*1024} sc1 lds')
        if i == 9:
            A('s_add_u32', sIN, sIN, UX); A('s_mov_b32', sNX, 1)
            A('s_add_u32', sT0, sLB, UX); A('s_sub_u32', sT1, sLB, UX); A('s_cmp_ge_u32', sLB, UX); A('s_cselect_b32', sLB, sT1, sT0)
    CK = [9, 19, 29]
    def chk_mid(k):
        A('s_waitcnt', 'vmcnt(0)')
        A('v_min3_u32', v(FV), v(FV), v(FV + 1), v(FV + 2)); A('v_min_u32', v(FV), v(FV), v(FV + 3)); A('v_max_u32', v(FV), v(FV), v(FLR))
        A('v_cmp_ge_u32', 'vcc', 's77', v(FV))
    def chk_end(k):
        if k == CK[0]:
            s2 = A.newlabel(P + 'nop')
            A('s_cmp_eq_u32', sPEND, 0); A('s_cbranch_scc1', s2)
            publish(A, sU, loc=(kind == 'f1')); A('s_mov_b32', sPEND, 0)
            A.label(s2)
        A('s_cbranch_vccz', P + f'dma{k}')
        flag_load(A)
    for k in range(40):
        if k in CK: step(k, lambda: chk_mid(k), lambda: chk_end(k))
        else: step(k)
    A('s_branch', P + 'epi')
    for c in CK[1:]:
        A.label(P + f'dma{c}')
        for k in range(c + 1, c + 11): step(k, lambda: dma1(k - c - 1))
        A('s_branch', P + (f'rest{c+11}' if c + 11 < 40 else 'epi'))
    c = CK[0]
    A.label(P + f'dma{c}')
    for k in range(c + 1, c + 11): step(k, lambda: dma1(k - c - 1))
    for k in range(c + 11, 40):
        if k - 11 in CK: A.label(P + f'rest{k}')
        step(k)
    A.label(P + 'epi')
    A.reset_counts()
    ph(A, 4)
    if kind == 'v':
        for i in range(2): A('buffer_store_dwordx4', v(36, 4), v(L16), WS, 's74', mods=f'offen offset:{1024*i} sc1')
        A('s_add_u32', 's74', 's74', 32 * 4096)
    for T in range(2):
        ac = ACC + 16 * T
        for i in range(2):
            st = STG + 8 * T + 4 * i
            if kind == 'qk':
                for c in range(4): A('v_cvt_pk_bf16_f32', v(st + c), v(ac + 4 * i + c), v(ac + 8 + 4 * i + c))
                off = T * 1024 + i * 512
            elif kind == 'v':
                for hh in range(2):
                    for c in range(2): A('v_cvt_pk_bf16_f32', v(st + 2 * hh + c), v(ac + 8 * hh + 4 * i + 2 * c), v(ac + 8 * hh + 4 * i + 2 * c + 1))
                off = T * 2048 + i * 512
            else:
                for c in range(4):
                    A('v_cvt_pk_bf16_f32', v(st + c), v(ac + 8 * i + 2 * c), v(ac + 8 * i + 2 * c + 1))
                    A('v_pk_max_i16', v(st + c), v(st + c), 0)
                off = T * 2048 + i * 1024
            if kind == 'f1': local(A, lambda md: A('buffer_store_dwordx4', v(st, 4), v(SA), WS, sOUT_, mods=f'offen offset:{off} {md}'))
            else: A('buffer_store_dwordx4', v(st, 4), v(SA), WS, sOUT_, mods=f'offen offset:{off} sc1')
    A('s_add_u32', sOUT_, sOUT_, ostep)
    A('s_add_u32', sU, sU, 1); A('s_mov_b32', sPEND, 1)
    A('s_cmp_eq_u32', sNX, 0); A('s_cbranch_scc1', P + 'late')
    flag_load(A)
    A('s_branch', P + 'top')
    A.label(P + 'late')
    A('s_mov_b32', sPEND, 0)
    A('s_waitcnt', f'vmcnt({NST})')
    flag_min(A, sPROG, lanes=nl, floor=FLR)
    A('s_min_u32', sPROG, sPROG, NU); A('s_cmp_gt_u32', sPROG, sU); A('s_cbranch_scc0', P + 'idle')
    dma_in()
    A('s_waitcnt', 'vmcnt(10)')
    publish(A, sU, loc=(kind == 'f1'))
    A('s_waitcnt', f'vmcnt({2 if DBG else 1})')
    flag_load(A)
    A('s_branch', P + 'top')
    A.label(P + 'idle')
    flag_load(A)
    A('s_waitcnt', 'vmcnt(0)')
    publish(A, sU, loc=(kind == 'f1')); flag_min(A, sPROG, lanes=nl, floor=FLR)
    A('s_cmp_lt_u32', sU, NU); A('s_cbranch_scc1', P + 'fetch')
    A('s_endpgm')

def emit_gemm2(A, kind, ready):
    P = f'G2{kind}_'
    A.label(P + 'entry'); A.reset_counts()
    nk = 32 if kind == 'op' else 27
    RING, ACC, RT = 64, 192, 224
    LW, LR, RES, SA = 32, 33, 36, 34
    wreg = lambda n, T: 256 + (2 * n + T) * 4
    if kind == 'op':
        common_setup(A, 1); nl = 1
        A('s_cmp_ge_u32', sI, 10); A('s_cselect_b32', sB, 1, 0)
        A('s_mul_i32', sT1, sB, 10); A('s_sub_u32', sC_, sI, sT1)
        A('s_lshl_b32', sT1, sB, 2); A('s_add_u32', sT1, sT1, sW)
        A('s_mul_i32', sA, sT1, 4 * 163840); A('s_lshl_b32', sT2, sC_, 7); A('s_add_u32', sA, sA, sT2)
        A('s_mul_i32', sIN, sL, LAYER_F); A('s_lshl_b32', sT2, sT1, 15); A('s_add_u32', sIN, sIN, sT2); A('s_add_u32', sIN, sIN, OF)
        A('s_mul_i32', sFI, sL, FL_LAYER); A('s_lshl_b32', sT2, sT1, 7); A('s_add_u32', sFI, sFI, sT2); A('s_add_u32', sFI, sFI, FL_ATT)
        soffs = [[(128 * (n >> 3) + 32 * ((n & 7) >> 1) + 8 * (n & 1) + 4 * b) * 1280 for b in range(2)] for n in range(32)]
        load_weights(A, SO, 1280, 16, sA, [tuple(x) for x in soffs], wreg, True)
        istep = 32 * 8192
        A('s_mul_i32', sOUT_, sL, LAYER_OP); A('s_mul_i32', sT2, sB, UP); A('s_add_u32', sOUT_, sOUT_, sT2)
        A('s_lshl_b32', sT2, sC_, 12); A('s_add_u32', sOUT_, sOUT_, sT2); A('s_lshl_b32', sT2, sW, 10); A('s_add_u32', sOUT_, sOUT_, sT2)
        A('s_add_u32', sOUT_, sOUT_, OPART)
        flag_out_addr(A, FL_OP); ostep = 2 * UP
    else:
        common_setup(A, 7); nl = 7
        A('s_mul_i32', sA, sW, 27 * 16 * 1280); A('s_lshl_b32', sT2, sI, 7); A('s_add_u32', sA, sA, sT2)
        A('s_mul_i32', sIN, sL, LAYER_H); A('s_mul_i32', sT2, sW, 27 * 1024); A('s_add_u32', sIN, sIN, sT2); A('s_add_u32', sIN, sIN, HF)
        A('s_mul_i32', sFI, sL, FL_LAYER); A('s_add_u32', sFI, sFI, FL_F1)
        load_weights(A, SW2, 1280, 8, sA, [((16 * n) * 1280, (16 * n + 4) * 1280) for n in range(27)], wreg, True)
        istep = UH
        A('s_lshl_b32', sT2, sI, 12); A('s_lshl_b32', sT3, sW, 10); A('s_add_u32', sT2, sT2, sT3)
        A('s_mul_i32', sB, sL, LAYER_X); A('s_add_u32', sB, sB, sT2); A('s_add_u32', sB, sB, XRES)
        A('s_mul_i32', 's74', sL, LAYER_OP); A('s_add_u32', 's74', 's74', sT2); A('s_add_u32', 's74', 's74', OPART)
        A('s_add_u32', sOUT_, sT2, XRES + LAYER_X)
        A('s_lshl_b32', sT2, sI, 7); A('s_lshl_b32', sT3, sW, 5); A('s_add_u32', sC_, sT2, sT3)
        A('v_and_b32', v(TM), 31, v(LN_)); A('v_mul_u32_u24', v(TM), 1280, v(TM)); A('v_lshrrev_b32', v(TM + 1), 5, v(LN_)); A('v_lshl_add_u32', v(SA), v(TM + 1), 4, v(TM))
        flag_out_addr(A, FL_F2); ostep = UX
        if not DBG: A('s_cmp_lg_u32', sL, 0); A('s_cselect_b32', sFO, '0x20000000', sFO)
        A('v_and_b32', v(TM), 31, v(LN_)); A('v_mul_u32_u24', v(TM), 144, v(TM)); A('v_lshl_add_u32', v(TM), v(TM + 1), 4, v(TM))
        A('s_lshl_b32', sT2, sW, 5); A('s_add_u32', sT2, sT2, 65536); A('v_add_u32', v(50), sT2, v(TM))
        A('v_lshrrev_b32', v(TM), 3, v(LN_)); A('v_and_b32', v(TM + 1), 7, v(LN_)); A('v_lshlrev_b32', v(TM + 1), 4, v(TM + 1))
        A('v_mad_u32_u24', v(51), v(TM), 36, 0); A('v_lshl_add_u32', v(51), v(51), 2, v(TM + 1))
        A('s_mul_i32', sT2, sW, 8 * 144); A('s_add_u32', sT2, sT2, 65536); A('v_add_u32', v(51), sT2, v(51))
        A('v_mul_u32_u24', v(TM), 1280, v(TM)); A('v_add_u32', v(52), v(TM), v(TM + 1))
        A('s_lshl_b32', 's75', sI, 7); A('s_mul_i32', sT2, sW, 8 * 1280); A('s_add_u32', 's75', 's75', sT2)
    TL = (nk * 8 + 9) // 10
    A('s_mul_i32', sT2, sC_ if kind == 'op' else sI, TL); A('v_add_u32', v(54), sT2, v(LN_)); A('v_lshlrev_b32', v(53), 7, v(54))
    A('v_mov_b32', v(55), '0x40000000')
    A('v_cmp_gt_u32', 'vcc', TL, v(LN_)); A('v_cndmask_b32', v(53), v(55), v(53), 'vcc')
    A('v_cmp_gt_u32', 'vcc', nk * 8, v(54)); A('v_cndmask_b32', v(53), v(55), v(53), 'vcc')
    A('s_lshl_b32', sT2, sW, 11); A('v_add_u32', v(LW), sT2, v(L16))
    A('s_lshl_b32', sT2, sW, 13); A('v_add_u32', v(LR), sT2, v(L16))
    ready(A)
    A('s_barrier')
    XS = 3 if kind == 'f2' else 0
    def ld(k, base):
        if k == 0 and kind == 'f2':
            A('buffer_load_dwordx4', v(RES, 4), v(L16), WS, sB, mods='offen sc1'); A.vm.pop()
            A('s_add_u32', sB, sB, UX)
            for pp in (1, 2):
                A('buffer_load_dwordx4', v(RES + 4 * pp, 4), v(L16), WS, 's74', mods='offen sc1'); A.vm.pop()
                A('s_add_u32', 's74', 's74', UP)
        if k == 0 and int(os.environ.get('TOUCH', 0)): A('buffer_load_dword', v(54), v(53), WS, base, mods='offen sc1'); A.vm.pop()
        if k % 4 == 0: A('s_add_u32', sT3, base, k * 1024)
        A('buffer_load_dwordx4', v(RING + 4 * k, 4), v(L16), WS, sT3, mods=f'offen offset:{(k%4)*1024} sc1'); A.vm.pop()
    A.label(P + 'fetch')
    poll(A, P + 'p', sU, lanes=nl)
    W = int(os.environ.get('G2W', 10))
    for k in range(W): ld(k, sIN)
    A.label(P + 'top')
    A.reset_counts()
    ph_dump(A); ph(A, 0)
    def mm(k, cnt):
        A('s_waitcnt', f'vmcnt({cnt})')
        x = v(RING + 4 * k, 4)
        for T in range(2):
            acc = v(ACC + 16 * T, 16)
            A('v_mfma_f32_32x32x16_bf16', acc, R(wreg(k, T), 4), x, '0' if k == 0 else acc)
    if W % 4: A('s_add_u32', sT3, sIN, (W // 4) * 4096)
    for k in range(nk - W):
        mm(k, W - 1)
        if k == W:
            sk = A.newlabel(P + 'nop')
            A('s_cmp_eq_u32', sPEND, 0); A('s_cbranch_scc1', sk)
            publish(A, sU, loc=(kind == 'op')); A('s_mov_b32', sPEND, 0)
            A.label(sk)
        if k == 3 and kind == 'f2':
            for i in range(4):
                A('v_lshlrev_b32', v(TM), 16, v(RES + i)); A('v_and_b32', v(TM + 1), '0xffff0000', v(RES + i))
                for pp in (1, 2):
                    A('v_lshlrev_b32', v(TM + 2), 16, v(RES + 4 * pp + i)); A('v_and_b32', v(TM + 3), '0xffff0000', v(RES + 4 * pp + i))
                    A('v_add_f32', v(TM), v(TM), v(TM + 2)); A('v_add_f32', v(TM + 1), v(TM + 1), v(TM + 3))
                A('v_cvt_pk_bf16_f32', v(56 + i), v(TM), v(TM + 1))
        if k == nk - 2 * W: flag_load(A); A.vm.pop()
        ld(k + W, sIN)
    assert nk - W > W
    ph(A, 1)
    mm(nk - W, W - 1)
    flag_min(A, sPROG, lanes=nl)
    A('s_add_u32', sIN, sIN, istep)
    A('s_add_u32', sT2, sU, 1); A('s_cmp_gt_u32', sPROG, sT2); A('s_cselect_b32', sNX, 1, 0)
    A('s_cbranch_scc1', P + 'pf')
    flag_load(A); A.vm.pop()
    for k in range(nk - W + 1, nk): mm(k, nk - k)
    A('s_branch', P + 'red')
    A.label(P + 'pf')
    ld(0, sIN)
    for k in range(nk - W + 1, nk):
        mm(k, W - 1 + XS); ld(k - (nk - W), sIN)
    A.label(P + 'red')
    ph(A, 3)
    for q in range(4):
        sk = A.newlabel(P + 'own')
        A('s_cmp_eq_u32', sW, q); A('s_cbranch_scc1', sk)
        A('ds_write_b128', v(LW), v(ACC + 8 * q, 4), mods=f'offset:{q*8192}'); A('ds_write_b128', v(LW), v(ACC + 8 * q + 4, 4), mods=f'offset:{q*8192+1024}')
        A('s_branch', sk + 'e')
        A.label(sk)
        for i in range(0, 8, 2): A('v_mov_b64', v(RT + 24 + i, 2), v(ACC + 8 * q + i, 2))
        A.label(sk + 'e')
    A('s_waitcnt', 'lgkmcnt(0)'); A('s_barrier')
    A('s_lshl_b32', sT2, sW, 11)
    for j in range(1, 4):
        A('s_xor_b32', sT3, sT2, j * 2048); A('v_add_u32', v(TM + j), sT3, v(LR))
        A('ds_read_b128', v(RT + 8 * (j - 1), 4), v(TM + j)); A('ds_read_b128', v(RT + 8 * (j - 1) + 4, 4), v(TM + j), mods='offset:1024')
    A('v_xor_b32', v(LW), 32768, v(LW)); A('v_xor_b32', v(LR), 32768, v(LR))
    A('s_waitcnt', 'lgkmcnt(0)')
    O = RT + 24
    for i in range(8):
        A('v_add_f32', v(RT + i), v(RT + i), v(RT + 8 + i)); A('v_add_f32', v(O + i), v(O + i), v(RT + 16 + i))
    for i in range(8): A('v_add_f32', v(O + i), v(O + i), v(RT + i))
    if kind == 'op':
        for i in range(4): A('v_cvt_pk_bf16_f32', v(RT + i), v(O + 2 * i), v(O + 2 * i + 1))
        A('buffer_store_dwordx4', v(RT, 4), v(L16), WS, sOUT_, mods='offen sc1')
    else:
        for i in range(4):
            A('v_cvt_pk_bf16_f32', v(RT + i), v(O + 2 * i), v(O + 2 * i + 1))
            A('v_lshlrev_b32', v(O + 2 * i), 16, v(RT + i)); A('v_and_b32', v(O + 2 * i + 1), '0xffff0000', v(RT + i))
            A('v_lshlrev_b32', v(RT + 8), 16, v(56 + i)); A('v_and_b32', v(RT + 9), '0xffff0000', v(56 + i))
            A('v_add_f32', v(O + 2 * i), v(O + 2 * i), v(RT + 8)); A('v_add_f32', v(O + 2 * i + 1), v(O + 2 * i + 1), v(RT + 9))
            A('v_cvt_pk_bf16_f32', v(RT + 4 + i), v(O + 2 * i), v(O + 2 * i + 1))
        l1 = A.newlabel(P + 'l1')
        A('s_cmp_lg_u32', sL, 0); A('s_cbranch_scc1', l1)
        local(A, lambda md: A('buffer_store_dwordx4', v(RT + 4, 4), v(L16), WS, sOUT_, mods=f'offen {md}'))
        A('s_branch', l1 + 'e')
        A.label(l1)
        if int(os.environ.get('OUTT', 1)):
            A('ds_write_b128', v(50), v(RT + 4, 4)); A('s_waitcnt', 'lgkmcnt(0)'); A('s_barrier')
            A('ds_read_b128', v(RT + 8, 4), v(51)); A('s_waitcnt', 'lgkmcnt(0)')
            A('buffer_store_dwordx4', v(RT + 8, 4), v(52), SOUT, 's75', mods='offen ' + os.environ.get('OUTMOD', 'nt'))
            A('s_add_u32', 's75', 's75', 32 * 1280)
        else:
            A('buffer_store_dwordx4', v(RT + 4, 4), v(SA), SOUT, sC_, mods='offen ' + os.environ.get('OUTMOD', 'nt'))
            A('s_add_u32', sC_, sC_, 32 * 1280)
        A.label(l1 + 'e')
    ph(A, 4)
    A('s_add_u32', sOUT_, sOUT_, ostep)
    A('s_add_u32', sU, sU, 1); A('s_mov_b32', sPEND, 1)
    A('s_cmp_lg_u32', sNX, 0); A('s_cbranch_scc1', P + 'top')
    A('s_waitcnt', 'vmcnt(1)')
    flag_min(A, sPROG, lanes=nl)
    A('s_cmp_gt_u32', sPROG, sU); A('s_cbranch_scc0', P + 'idle')
    for k in range(W): ld(k, sIN)
    A('s_waitcnt', f"vmcnt({W + XS})")
    publish(A, sU, loc=(kind == 'op')); A('s_mov_b32', sPEND, 0)
    A('s_branch', P + 'top')
    A.label(P + 'idle')
    flag_load(A); A.vm.pop()
    A('s_waitcnt', 'vmcnt(0)')
    publish(A, sU, loc=(kind == 'op')); flag_min(A, sPROG, lanes=nl); A('s_mov_b32', sPEND, 0)
    A('s_cmp_lt_u32', sU, NU); A('s_cbranch_scc1', P + 'fetch')
    A('s_endpgm')

def xlane_sum(A, r, t, rors):
    for sh in rors: A('v_add_f32_dpp', v(r), v(r), v(r), mods=f'row_ror:{sh} row_mask:0xf bank_mask:0xf')
    A('v_mov_b32', v(t), v(r)); A('v_permlane16_swap_b32', v(t), v(r)); A('v_add_f32', v(r), v(r), v(t))
    A('v_mov_b32', v(t), v(r)); A('v_permlane32_swap_b32', v(t), v(r)); A('v_add_f32', v(r), v(r), v(t))

def emit_ln(A, mode, ready, after=None):
    P = mode.upper() + '_'
    A.label(P + 'entry'); A.reset_counts()
    X, P0, P1, X1R, F, O = 44, 64, 104, 144, 164, 204
    VF, VP, LW = 32, 33, 34
    nl = {'ln0': 1, 'ln1': 10, 'lna': 20}[mode]
    step = 8 if mode == 'ln0' else 1
    common_setup(A, nl)
    A('v_lshrrev_b32', v(TM), 4, v(LN_)); A('v_and_b32', v(TM + 1), 15, v(LN_))
    A('v_lshlrev_b32', v(TM + 2), 9, v(TM)); A('v_lshl_add_u32', v(VF), v(TM + 1), 4, v(TM + 2))
    A('s_lshl_b32', sT0, sW, 2); A('v_add_u32', v(LW), sT0, v(L16))
    A('s_and_b32', sT3, sI, 1); A('s_lshl_b32', sT3, sT3, 8)
    A('s_mul_i32', sT2, sW, 20 * 512); A('s_add_u32', sT2, sT2, sT3)
    if mode == 'ln0':
        A('v_mul_u32_u24', v(TM + 2), 1280, v(TM + 1)); A('v_lshl_add_u32', v(VP), v(TM), 4, v(TM + 2))
        A('s_lshr_b32', sU, sI, 1); A('s_mul_i32', sT1, sU, UX); A('s_add_u32', sT2, sT2, sT1)
        A('s_add_u32', sB, sT2, XRES); A('s_add_u32', sOUT_, sT2, XN)
        A('s_mul_i32', sA, sT3, 80); A('s_add_u32', sA, sA, sT1); A('s_mul_i32', sT1, sW, 320); A('s_add_u32', sA, sA, sT1)
        A('s_mov_b32', sPROG, NU); A('s_mov_b32', 's78', sL); A('s_mov_b32', sL, 0)
        flag_out_addr(A, FL_XN); A('s_mov_b32', sL, 's78')
    elif mode == 'ln1':
        A('s_add_u32', sIN, sT2, XRES + LAYER_X); A('s_add_u32', sOUT_, sT2, XN + LAYER_X)
        A('s_mov_b32', sFI, FL_F2); A('s_mov_b32', sL, 1)
        flag_out_addr(A, FL_XN)
    else:
        A('s_mul_i32', sA, sL, LAYER_OP); A('s_add_u32', sA, sA, sT2); A('s_add_u32', sA, sA, OPART)
        A('s_mul_i32', sT1, sL, LAYER_X); A('s_add_u32', sT2, sT2, sT1)
        A('s_add_u32', sIN, sT2, XRES); A('s_add_u32', sOUT_, sT2, XN1); A('s_add_u32', sB, sT2, X1)
        A('s_mul_i32', sFI, sL, FL_LAYER); A('s_add_u32', sFI, sFI, FL_OP)
        flag_out_addr(A, FL_LNA)
    def f5(op, reg, base):
        for i in range(5):
            if i % 2 == 0: A('s_add_u32', sT3, base, i * 2048)
            A(op, v(reg + 4 * i, 4), v(VF), WS, sT3, mods=f'offen offset:{(i%2)*2048} sc1')
    nld = {'ln0': 5, 'ln1': 6, 'lna': 16}[mode]
    def loads():
        if mode == 'ln0':
            for i in range(5): A('buffer_load_dwordx4', v(X + 4 * i, 4), v(VP), SX, sA, mods=f'offen offset:{64*i}')
            A('s_add_u32', sA, sA, 8 * UX)
            return
        f5('buffer_load_dwordx4', X, sIN)
        if mode == 'lna':
            f5('buffer_load_dwordx4', P0, sA); A('s_add_u32', sA, sA, UP)
            f5('buffer_load_dwordx4', P1, sA); A('s_add_u32', sA, sA, UP)
        A('s_add_u32', sIN, sIN, UX)
    a0, a1, tt = TM, TM + 2, TM + 4
    def xsum(region, mid=None):
        xlane_sum(A, a0, tt, [])
        A('ds_write_b32', v(LW), v(a0), mods=f'offset:{region}')
        if mid: mid()
        A('s_waitcnt', 'lgkmcnt(0)'); A('s_barrier')
        A('ds_read_b128', v(a0, 4), v(L16), mods=f'offset:{region}')
        A('s_waitcnt', 'lgkmcnt(0)')
        A('v_pk_add_f32', v(a0, 2), v(a0, 2), v(a0 + 2, 2)); A('v_add_f32', v(a0), v(a0), v(a0 + 1))
    ready(A)
    A.label(P + 'fetch')
    if mode != 'ln0': poll(A, P + 'p', sU, lanes=nl)
    loads()
    A.label(P + 'top')
    ph_dump(A); ph(A, 0)
    n = 20
    def unp(d, x):
        A('v_lshlrev_b32', v(d), 16, v(x)); A('v_and_b32', v(d + 1), '0xffff0000', v(x))
    fl = 0
    if mode == 'lna':
        A('s_waitcnt', 'vmcnt(5)')
        for i in range(n):
            unp(F + 2 * i, X + i); unp(TM + 6, P0 + i)
            A('v_pk_add_f32', v(F + 2 * i, 2), v(F + 2 * i, 2), v(TM + 6, 2))
    for i in range(n):
        if i % 4 == 0: A('s_waitcnt', f'vmcnt({4 - i//4 + fl})')
        if mode == 'lna':
            unp(TM + 6, P1 + i)
            A('v_pk_add_f32', v(F + 2 * i, 2), v(F + 2 * i, 2), v(TM + 6, 2))
            A('v_cvt_pk_bf16_f32', v(X1R + i), v(F + 2 * i), v(F + 2 * i + 1))
            unp(F + 2 * i, X1R + i)
        else:
            unp(F + 2 * i, X + i)
            if mode == 'ln0': A('v_mov_b32', v(X1R + i), v(X + i))
        if i == 1: A('v_pk_add_f32', v(a0, 2), v(F, 2), v(F + 2, 2))
        elif i > 1: A('v_pk_add_f32', v(a0, 2), v(a0, 2), v(F + 2 * i, 2))
    ph(A, 1)
    A('v_add_f32', v(a0), v(a0), v(a0 + 1))
    def pf():
        A('s_add_u32', sU, sU, step)
        if mode != 'ln0': flag_load(A)
        else:
            A('s_cmp_lt_u32', sU, NU); A('s_cselect_b32', 's75', sA, '0x20000000'); A('s_add_u32', sA, sA, 8 * UX)
    pl = []
    if mode == 'ln0':
        for i in range(5): pl.append(lambda i=i: A('buffer_load_dwordx4', v(X + 4 * i, 4), v(VP), SX, 's75', mods=f'offen offset:{64*i}'))
    xsum(0, pf)
    A('v_mul_f32', v(a0), hex(f32bits(-1.0 / 640)), v(a0)); A('v_mov_b32', v(a0 + 1), v(a0))
    def rnd(r):
        A('v_cvt_pk_bf16_f32', v(r), v(r), v(r)); A('v_lshlrev_b32', v(r), 16, v(r))
    dm = TM + 10
    A('v_mov_b32', v(dm), v(a0)); rnd(dm); A('v_sub_f32', v(dm), v(dm), v(a0))
    for i in range(n):
        A('v_pk_add_f32', v(F + 2 * i, 2), v(F + 2 * i, 2), v(a0, 2))
        if i == 0: A('v_pk_mul_f32', v(a1, 2), v(F, 2), v(F, 2))
        else: A('v_pk_fma_f32', v(a1, 2), v(F + 2 * i, 2), v(F + 2 * i, 2), v(a1, 2))
        if i % 4 == 3 and pl: pl.pop(0)()
    A('v_add_f32', v(a0), v(a1), v(a1 + 1))
    def st1():
        if mode == 'ln0':
            f5('buffer_store_dwordx4', X1R, sB); A('s_add_u32', sB, sB, step * UX)
    xsum(1024, st1)
    A('v_mul_f32', v(a1), hex(f32bits(1.0 / 640)), v(a0)); rnd(a1)
    A('v_add_f32', v(a1), hex(f32bits(1e-5)), v(a1)); rnd(a1)
    A('v_sqrt_f32', v(a1), v(a1)); rnd(a1)
    A('v_rcp_f32', v(a0), v(a1)); A('v_mov_b32', v(a0 + 1), v(a0))
    A('v_mul_f32', v(dm), v(dm), v(a0)); A('v_mov_b32', v(dm + 1), v(dm))
    for i in range(n):
        A('v_pk_fma_f32', v(F + 2 * i, 2), v(F + 2 * i, 2), v(a0, 2), v(dm, 2))
        A('v_cvt_pk_bf16_f32', v(O + i), v(F + 2 * i), v(F + 2 * i + 1))
        if i % 4 == 3:
            k = i // 4
            if k % 2 == 0: A('s_add_u32', sT3, sOUT_, k * 2048)
            A('buffer_store_dwordx4', v(O + 4 * k, 4), v(VF), WS, sT3, mods=f'offen offset:{(k%2)*2048} sc1')
    ph(A, 2)
    A('s_add_u32', sOUT_, sOUT_, step * UX)
    if mode == 'ln0':
        A('s_waitcnt', 'vmcnt(0)')
        publish(A, sU)
        A('s_cmp_lt_u32', sU, NU); A('s_cbranch_scc1', P + 'top')
    else:
        A('s_waitcnt', 'vmcnt(5)')
        flag_min(A, sPROG, lanes=nl)
        A('s_cmp_gt_u32', sPROG, sU); A('s_cbranch_scc0', P + 'idle')
        loads()
        A('s_waitcnt', f"vmcnt({15 if mode == 'lna' else 5})")
        publish(A, sU)
        A('s_branch', P + 'top')
        A.label(P + 'idle')
        flag_load(A)
        A('s_waitcnt', 'vmcnt(0)')
        publish(A, sU)
        flag_min(A, sPROG, lanes=nl)
        A('s_cmp_lt_u32', sU, NU); A('s_cbranch_scc1', P + 'fetch')
    A.label(P + 'end')
    if after: after()
    else: A('s_endpgm')

def emit_att(A, ready):
    P = 'ATT_'
    A.label(P + 'entry'); A.reset_counts()
    Q, K, V, KMR, VMR, S, PB, O = 64, 96, 128, 160, 176, 184, 208, 224
    FRK, L8, SA, NEG, ZR = 32, 33, 34, 35, 36
    sCH, sFC, sKMo, sSC = 's74', 's75', 's76', 's77'
    msk = ['s[80:81]', 's[82:83]', 's[84:85]', 's[86:87]']
    common_setup(A, 3)
    g, n = TM, TM + 1
    A('v_lshrrev_b32', v(g), 4, v(LN_)); A('v_and_b32', v(n), 15, v(LN_))
    A('v_and_b32', v(TM + 2), 13, v(n)); A('v_and_b32', v(TM + 3), 1, v(g)); A('v_lshl_or_b32', v(TM + 2), v(TM + 3), 1, v(TM + 2))
    A('v_lshlrev_b32', v(TM + 2), 4, v(TM + 2)); A('v_lshrrev_b32', v(TM + 3), 1, v(g)); A('v_lshl_add_u32', v(FRK), v(TM + 3), 8, v(TM + 2))
    A('v_lshlrev_b32', v(L8), 3, v(LN_))
    A('v_and_b32', v(37), 31, v(LN_)); A('v_lshlrev_b32', v(37), 7, v(37))
    A('v_lshlrev_b32', v(TM + 2), 9, v(g)); A('v_lshl_add_u32', v(SA), v(n), 4, v(TM + 2))
    for r in range(4):
        A('v_lshl_add_u32', v(TM + 2), v(g), 2, r); A('v_cmp_le_u32', msk[r], v(TM + 2), v(n))
    A('v_mov_b32', v(NEG), hex(f32bits(-1e9 * 128 ** 0.5))); A('v_mov_b32', v(ZR), 0)
    A('s_lshl_b32', sT2, sI, 2); A('s_add_u32', sT2, sT2, sW)
    A('s_mul_i32', sT3, sL, LAYER_F); A('s_lshl_b32', sT1, sT2, 13); A('s_add_u32', sT3, sT3, sT1)
    A('s_add_u32', sIN, sT3, KF); A('s_add_u32', sOUT_, sT3, OF)
    A('s_mul_i32', sKMo, sL, LAYER_KM); A('s_lshl_b32', sT1, sT2, 12); A('s_add_u32', sKMo, sKMo, sT1); A('s_add_u32', sKMo, sKMo, KM)
    A('s_mul_i32', sT3, sL, FL_LAYER)
    A('s_lshr_b32', sT1, sT2, 1); A('s_mul_i32', sT1, sT1, 384); A('s_add_u32', sFI, sT3, sT1); A('s_and_b32', sT1, sT2, 1); A('s_lshl_b32', sT1, sT1, 3)
    A('s_add_u32', sFI, sFI, sT1); A('s_add_u32', sFI, sFI, FL_QKV)
    A('s_lshl_b32', sT1, sT2, 7); A('s_add_u32', sFC, sT3, sT1); A('s_add_u32', sFC, sFC, FL_CH)
    A('s_mov_b32', sCH, 0); A('s_mov_b32', sSC, hex(f32bits(128 ** -0.5 * 1.4426950408889634)))
    flag_out_addr(A, FL_ATT)
    ready(A)
    def ld8(reg, base, delta):
        for i in range(8):
            if i % 4 == 0: A('s_add_u32', sT3, base, delta + i * 1024)
            A('buffer_load_dwordx4', v(reg + 4 * i, 4), v(L16), WS, sT3, mods=f'offen offset:{(i%4)*1024} sc1')
    A.label(P + 'fetch')
    poll(A, P + 'p', sU, n=2, lanes=3)
    ld8(Q, sIN, QF - KF); ld8(K, sIN, 0); ld8(V, sIN, VT - KF)
    A.label(P + 'top')
    A('s_waitcnt', 'vmcnt(8)')
    A.reset_counts()
    sreg = {(0, 'm'): S, (0, 0): S + 4, (1, 'm'): S + 8, (1, 0): S + 12, (1, 1): S + 16}
    for kp in range(4):
        for qt, kt in ((0, 0), (1, 0), (1, 1)):
            r = v(sreg[(qt, kt)], 4)
            A('v_mfma_f32_16x16x32_bf16', r, v(K + 16 * kt + 4 * kp, 4), v(Q + 16 * qt + 4 * kp, 4), '0' if kp == 0 else r)
    for base in (sreg[(0, 0)], sreg[(1, 1)]):
        for r in range(4): A('v_cndmask_b32', v(base + r), v(NEG), v(base + r), msk[r])
    A('s_mov_b32', sSPIN, 0)
    A.label(P + 'km')
    for kp in range(4): A('buffer_load_dwordx4', v(KMR + 4 * kp, 4), v(FRK), WS, sKMo, mods=f'offen offset:{1024*kp} sc1', tag=('km', kp))
    for w_ in range(4): A('buffer_load_dwordx2', v(VMR + 2 * w_, 2), v(L8), WS, sKMo, mods=f'offen offset:{1024*w_+512} sc1', tag='vm')
    flag_load(A, n=2)
    regs = [KMR + i for i in range(24)]
    for kp in range(4):
        A.wait(vm=[('km', kp)])
        for qt in range(2):
            r = v(sreg[(qt, 'm')], 4)
            A('v_mfma_f32_16x16x32_bf16', r, v(KMR + 4 * kp, 4), v(Q + 16 * qt + 4 * kp, 4), '0' if kp == 0 else r)
            for i in range(2):
                x = KMR + 4 * kp + 2 * qt + i
                A('v_pk_max_u16', v(TM + 8), v(x), v(x) if x == KMR else v(TM + 8))
    A.wait(vm=0)
    for i in range(8): A('v_pk_max_u16', v(TM + 8), v(VMR + i), v(TM + 8))
    A('v_pk_max_u16', v(TM + 8), v(TM + 8), v(TM + 8), mods='op_sel:[0,1] op_sel_hi:[1,0]')
    A('v_cmp_le_u32', 'vcc', '0xff810000', v(TM + 8))
    A('s_cbranch_vccz', P + 'kmok')
    A('s_cmp_lg_u32', sDEAD, 0); A('s_cbranch_scc1', P + 'kmok')
    if int(os.environ.get('KSL', 2)):
        A('s_cmp_lg_u32', sSPIN, 0); A('s_cbranch_scc1', P + 'kmx')
        A.label(P + 'kmw')
        A('s_sleep', int(os.environ.get('KSL', 2)) - 1)
        A('buffer_load_dword', v(TM + 8), v(37), WS, sKMo, mods='offen sc1'); A('s_waitcnt', 'vmcnt(0)')
        A('s_add_u32', sSPIN, sSPIN, 1)
        A('v_cmp_eq_u32', 'vcc', hex(SENT), v(TM + 8)); A('s_cbranch_vccz', P + 'km')
        A('s_cmp_lt_u32', sSPIN, 4 * SPIN_MAX); A('s_cbranch_scc1', P + 'kmw')
        A.label(P + 'kmx')
    A('v_mov_b32', v(TM + 8), -1)
    for r_ in regs:
        A('v_xor_b32', v(TM + 9), hex(SENT), v(r_)); A('v_pk_min_u16', v(TM + 8), v(TM + 8), v(TM + 9))
    A('v_pk_min_u16', v(TM + 8), v(TM + 8), v(TM + 8), mods='op_sel:[0,1] op_sel_hi:[1,0]')
    A('v_cmp_eq_u32', 'vcc', 0, v(TM + 8))
    A('s_cbranch_vccz', P + 'kmok')
    if int(os.environ.get('KSL2', 0)): A('s_sleep', int(os.environ.get('KSL2', 0)))
    A('s_add_u32', sSPIN, sSPIN, 1); A('s_cmp_lt_u32', sSPIN, 4 * SPIN_MAX); A('s_cbranch_scc1', P + 'km')
    A('s_mov_b32', sDEAD, 1)
    A.label(P + 'kmok')
    A('s_add_u32', sKMo, sKMo, 32 * 4096)
    flag_min(A, sPROG, n=2, lanes=3)
    A('s_add_u32', sT2, sU, 1); A('s_cmp_gt_u32', sPROG, sT2); A('s_cselect_b32', sNX, 1, 0)
    A('s_add_u32', sIN, sIN, 32 * 8192); A('s_cmp_eq_u32', sNX, 0); A('s_cbranch_scc1', P + 'nq')
    ld8(Q, sIN, QF - KF); ld8(K, sIN, 0)
    A.label(P + 'nq')
    for qt in range(2):
        m_ = sreg[(qt, 'm')]
        vals = [m_, m_ + 1] + [sreg[(qt, 0)] + i for i in range(4 + 4 * qt)]
        mx, tm, sm = TM, TM + 1, TM + 2 + qt
        A('v_max3_f32', v(mx), v(vals[0]), v(vals[1]), v(vals[2])); A('v_max3_f32', v(tm), v(vals[3]), v(vals[4]), v(vals[5]))
        if qt:
            A('v_max3_f32', v(mx), v(mx), v(vals[6]), v(vals[7])); A('v_max3_f32', v(tm), v(tm), v(vals[8]), v(vals[9]))
        A('v_max_f32', v(mx), v(mx), v(tm)); A('v_mov_b32', v(tm), v(mx))
        A('v_permlane32_swap_b32', v(tm), v(mx)); A('v_max_f32', v(mx), v(mx), v(tm)); A('v_mov_b32', v(tm), v(mx))
        A('v_permlane16_swap_b32', v(tm), v(mx)); A('v_max_f32', v(mx), v(mx), v(tm))
        A('v_mul_f32', v(mx), sSC, v(mx))
        for r in vals: A('v_fma_f32', v(r), v(r), sSC, '-' + v(mx))
        for r in vals: A('v_exp_f32', v(r), v(r))
        pb = PB + 8 * qt
        for i in range(2 + 2 * qt): A('v_cvt_pk_bf16_f32', v(pb + i), v(vals[2 + 2 * i]), v(vals[3 + 2 * i]))
        if qt == 0: A('v_mov_b64', v(pb + 2, 2), 0)
        A('v_cvt_pk_bf16_f32', v(pb + 4), v(m_), v(m_ + 1)); A('v_mov_b32', v(pb + 5), 0); A('v_mov_b32', v(pb + 6), 0); A('v_mov_b32', v(pb + 7), v(pb + 4))
        A('v_add_f32', v(sm), v(vals[0]), v(vals[1]))
        for r in vals[2:]: A('v_add_f32', v(sm), v(sm), v(r))
        xlane_sum(A, sm, tm, [])
        A('v_rcp_f32', v(sm), v(sm))
    for qt in range(2):
        pb = PB + 8 * qt; sm = TM + 2 + qt
        for et in range(8):
            A('v_mfma_f32_16x16x32_bf16', v(O + 4 * et, 4), v(V + 4 * et, 4), v(pb, 4), '0')
        for et in range(8):
            A('v_mfma_f32_16x16x16_bf16', v(O + 4 * et, 4), v(VMR + 2 * (et >> 1), 2), v(pb + 4 + 2 * (et & 1), 2), v(O + 4 * et, 4))
        for p in range(4):
            st = S + 4 * (p & 1) + 8 * qt if False else KMR + 4 * p
            for i in range(8): A('v_mul_f32', v(O + 8 * p + i), v(O + 8 * p + i), v(sm))
            for i in range(4): A('v_cvt_pk_bf16_f32', v(st + i), v(O + 8 * p + 2 * i), v(O + 8 * p + 2 * i + 1))
            if p % 2 == 0: A('s_add_u32', sT3, sOUT_, p * 2048)
            local(A, lambda md: A('buffer_store_dwordx4', v(st, 4), v(SA), WS, sT3, mods=f'offen offset:{(p%2)*2048 + qt*256} {md}'))
    A('s_add_u32', sOUT_, sOUT_, 32 * 8192); A('s_add_u32', sU, sU, 1)
    A('s_cmp_eq_u32', sNX, 0); A('s_cbranch_scc1', P + 'nv')
    ld8(V, sIN, VT - KF)
    A('s_waitcnt', 'vmcnt(8)')
    publish(A, sU, loc=True)
    A('s_branch', P + 'top')
    A.label(P + 'nv')
    A('s_waitcnt', 'vmcnt(0)')
    publish(A, sU, loc=True)
    A('s_cmp_lt_u32', sU, NU); A('s_cbranch_scc1', P + 'fetch')
    A('s_endpgm')
```

```python
from asmgen import *
from layout import *
from chain import tstamp, sMODE, WS, SQ, SK, SV, SO, SX, SM0, SW1, SW2, SOUT, SDBG, f32bits, SPIN_MAX
sW, sI, sL, sU = 's52', 's53', 's54', 's55'
sIN, sOUT_, sFI, sFO, sPROG, sPEND, sLB, sNX, sA, sB, sC_, sD = ['s%d' % i for i in range(56, 68)]
sSPIN, sDEAD = 's68', 's69'
sT0, sT1, sT2, sT3 = 's70', 's71', 's72', 's73'
NU = 64
CHK1 = [int(x) for x in __import__('os').environ.get('CHK1', '10,20,30').split(',')]
import os
DBG = int(os.environ.get('DBG', 0))
LN_, L16, FOFF = 0, 1, 2
FV = 4
TM = 8

def common_setup(A, nlines):
    A('v_and_b32', v(LN_), 63, 'v0'); A('v_lshlrev_b32', v(L16), 4, v(LN_))
    A('v_min_u32', v(FOFF), nlines - 1, v(LN_)); A('v_lshlrev_b32', v(FOFF), 7, v(FOFF))
    A('s_mov_b32', sU, 0); A('s_mov_b32', sPROG, 0); A('s_mov_b32', sPEND, 0); A('s_mov_b32', sDEAD, 0)

def ph(A, i):
    if DBG: A('s_memtime', s(2 * i + (4 if i < 2 else 90 - 4), 2)) if False else None
PHR = [4, 6, 88, 94, 100]
def ph(A, i):
    if DBG: A('s_memtime', s(PHR[i], 2))
def ph_dump(A, tmp=3):
    if not DBG: return
    sk = A.newlabel('phd')
    A('s_cmp_lg_u32', sU, 40); A('s_cbranch_scc1', sk)
    A('s_lshr_b32', 's92', sFO, 7); A('s_lshl_b32', 's92', 's92', 2); A('s_bfe_u32', 's93', sFO, 0x20002); A('s_add_u32', 's92', 's92', 's93')
    A('s_lshl_b32', 's92', 's92', 6); A('s_add_u32', 's92', 's92', DBGT + (3 << 20))
    A('s_waitcnt', 'lgkmcnt(0)')
    for i, r in enumerate(PHR):
        A('v_mov_b32', v(tmp), s(r)); A('buffer_store_dword', v(tmp), 'off', WS, 's92', mods=f'offset:{4*i}'); A.vm.pop()
    A.label(sk)

def flag_load(A, soff=sFI, reg=FV, voff=FOFF, n=4):
    op = {1: 'buffer_load_dword', 2: 'buffer_load_dwordx2', 4: 'buffer_load_dwordx4'}[n]
    A(op, v(reg, n), v(voff), WS, soff, mods='offen sc1', tag='fl')

def flag_min(A, dst, reg=FV, n=4, lanes=64, floor=None):
    if n == 4:
        A('v_min3_u32', v(reg), v(reg), v(reg + 1), v(reg + 2)); A('v_min_u32', v(reg), v(reg), v(reg + 3))
    elif n == 2:
        A('v_min_u32', v(reg), v(reg), v(reg + 1))
    if floor is not None: A('v_max_u32', v(reg), v(reg), v(floor))
    if lanes > 1:
        for sh in (1, 2, 4, 8): A('v_min_u32_dpp', v(reg), v(reg), v(reg), mods=f'row_ror:{sh} row_mask:0xf bank_mask:0xf')
    A('v_readlane_b32', sT0, v(reg), 0)
    if lanes > 16:
        assert lanes <= 32
        A('v_readlane_b32', sT1, v(reg), 16); A('s_min_u32', sT0, sT0, sT1)
    A('s_max_u32', dst, dst, sT0)

def poll(A, pre, need, prog=sPROG, soff=sFI, reg=FV, voff=FOFF, n=4, lanes=64, floor=None):
    ok = A.newlabel(pre + '_ok'); lp = A.newlabel(pre + '_lp')
    A('s_cmp_gt_u32', prog, need); A('s_cbranch_scc1', ok)
    A('s_mov_b32', sSPIN, 0)
    A.label(lp)
    flag_load(A, soff, reg, voff, n); A.vm.pop()
    A('s_waitcnt', 'vmcnt(0)')
    flag_min(A, prog, reg, n, lanes, floor)
    A('s_cmp_gt_u32', prog, need); A('s_cbranch_scc1', ok)
    A('s_cmp_lg_u32', sDEAD, 0); A('s_cbranch_scc1', ok)
    A('s_sleep', int(os.environ.get('PSL', 2)))
    A('s_add_u32', sSPIN, sSPIN, 1); A('s_cmp_lt_u32', sSPIN, SPIN_MAX); A('s_cbranch_scc1', lp)
    A('s_mov_b32', sDEAD, 1)
    A.label(ok)

def publish(A, val, tmp=3, loc=False):
    A('v_mov_b32', v(tmp), val)
    A('s_mov_b64', 'exec', 1)
    if loc: local_flag(A, lambda md: A('buffer_store_dword', v(tmp), 'off', WS, sFO, mods=md))
    else: A('buffer_store_dword', v(tmp), 'off', WS, sFO, mods='sc1')
    A.vm.pop()
    if DBG: tstamp(A, sFO, val, tmp)
    A('s_mov_b64', 'exec', -1)

def poll_lds(A, pre, need, lanes, floor, LA):
    ok = A.newlabel(pre + '_ok'); lp = A.newlabel(pre + '_lp'); gl = A.newlabel(pre + '_gl'); nx = A.newlabel(pre + '_nx')
    A('s_cmp_gt_u32', sPROG, need); A('s_cbranch_scc1', ok)
    A('s_mov_b32', sSPIN, 0)
    A.label(lp)
    A('s_cmp_eq_u32', sW, 0); A('s_cbranch_scc1', gl)
    A('s_and_b32', sT0, sSPIN, 31); A('s_cmp_eq_u32', sT0, 31); A('s_cbranch_scc1', gl)
    A('ds_read_b32', v(FV), v(LA)); A('s_waitcnt', 'lgkmcnt(0)')
    A('v_readfirstlane_b32', sT0, v(FV)); A('s_max_u32', sPROG, sPROG, sT0)
    A('s_branch', nx)
    A.label(gl)
    flag_load(A); A.vm.pop()
    A('s_waitcnt', 'vmcnt(0)')
    flag_min(A, sPROG, lanes=lanes, floor=floor)
    A.label(nx)
    A('s_cmp_gt_u32', sPROG, need); A('s_cbranch_scc1', ok)
    A('s_cmp_lg_u32', sDEAD, 0); A('s_cbranch_scc1', ok)
    A('s_sleep', 1)
    A('s_add_u32', sSPIN, sSPIN, 1); A('s_cmp_lt_u32', sSPIN, 8 * SPIN_MAX); A('s_cbranch_scc1', lp)
    A('s_mov_b32', sDEAD, 1)
    A.label(ok)

def publish_wg(A, val, tmp=3):
    sk = A.newlabel('pwg')
    A('s_barrier')
    A('s_cmp_lg_u32', sW, 0); A('s_cbranch_scc1', sk)
    A('v_mov_b32', v(tmp), val); A('v_lshrrev_b32', v(tmp - 1 if False else 31), 2, v(L16))
    A('s_mov_b64', 'exec', 15)
    A('buffer_store_dword', v(tmp), v(31), WS, sFO, mods='offen sc1'); A.vm.pop()
    A('s_mov_b64', 'exec', 1)
    if DBG: tstamp(A, sFO, val, tmp)
    A('s_mov_b64', 'exec', -1)
    A.label(sk)

def local(A, fn):
    fn('sc1')

def local_flag(A, fn):
    sl = A.newlabel('loc_s'); e = A.newlabel('loc_e')
    A('s_cmp_lg_u32', sMODE, 0); A('s_cbranch_scc1', sl)
    n0 = len(A.vm); fn(''); del A.vm[n0:]
    A('s_branch', e)
    A.label(sl)
    fn('sc1')
    A.label(e)

def flag_out_addr(A, kind):
    A('s_mul_i32', sFO, sL, FL_LAYER); A('s_lshl_b32', sT0, sI, 7); A('s_add_u32', sFO, sFO, sT0)
    A('s_lshl_b32', sT0, sW, 2); A('s_add_u32', sFO, sFO, sT0); A('s_add_u32', sFO, sFO, kind)

def load_weights(A, srd, stride, rowpart, sbase, soffs, dst, perm):
    SRC, TR0, TR1 = TM, TM + 1, TM + 2
    t = [TM + 3 + i for i in range(6)]
    A('v_lshrrev_b32', v(t[0]), 5, v(LN_)); A('v_mul_u32_u24', v(t[0]), rowpart, v(t[0]))
    A('v_bfe_u32', v(t[1]), v(LN_), 3, 2); A('v_add_u32', v(t[0]), v(t[0]), v(t[1]))
    A('s_mov_b32', sT0, stride); A('v_mul_lo_u32', v(t[0]), v(t[0]), sT0)
    A('v_bfe_u32', v(t[1]), v(LN_), 4, 1); A('v_lshlrev_b32', v(t[1]), 2, v(t[1])); A('v_and_b32', v(t[2]), 7, v(LN_)); A('v_xor_b32', v(t[1]), v(t[1]), v(t[2]))
    A('v_lshl_add_u32', v(t[0]), v(t[1]), 4, v(t[0])); A('v_add_u32', v(SRC), sbase, v(t[0]))
    A('s_mul_i32', sLB, sW, 40960)
    A('v_lshrrev_b32', v(t[0]), 5, v(LN_)); A('v_lshlrev_b32', v(t[0]), 10, v(t[0]))
    A('v_bfe_u32', v(t[1]), v(LN_), 2, 2); A('v_lshl_add_u32', v(t[0]), v(t[1]), 7, v(t[0]))
    A('v_bfe_u32', v(t[1]), v(LN_), 3, 1); A('v_lshl_add_u32', v(t[0]), v(t[1]), 6, v(t[0]))
    A('v_bfe_u32', v(t[1]), v(LN_), 4, 1); A('v_lshl_add_u32', v(t[0]), v(t[1]), 5, v(t[0]))
    if perm:
        A('v_and_b32', v(t[1]), 1, v(LN_)); A('v_lshl_add_u32', v(t[0]), v(t[1]), 4, v(t[0]))
        A('v_bfe_u32', v(t[1]), v(LN_), 1, 1); A('v_lshl_add_u32', v(t[0]), v(t[1]), 3, v(t[0]))
    else:
        A('v_and_b32', v(t[1]), 3, v(LN_)); A('v_lshl_add_u32', v(t[0]), v(t[1]), 3, v(t[0]))
    if perm: A('s_lshl_b32', sT0, sW, 5); A('v_xor_b32', v(t[0]), sT0, v(t[0]))
    A('v_add_u32', v(TR0), sLB, v(t[0])); A('v_xor_b32', v(TR1), 64, v(TR0))
    n_st = len(soffs); depth = 20
    def dma(n):
        for b in range(2):
            A('s_add_u32', 'm0', sLB, (n % depth) * 2048 + b * 1024)
            A('s_mov_b32', sT0, soffs[n][b])
            A('buffer_load_dwordx4', v(SRC), srd, sT0, mods='offen lds', tag=('W', n))
    for n in range(min(depth, n_st)): dma(n)
    for n in range(n_st):
        A.wait(vm=[('W', n)])
        for T in range(2):
            for hq in range(2):
                A('ds_read_b64_tr_b16', R(dst(n, T) + 2 * hq, 2), v(TR0 if T == 0 else TR1), mods=f'offset:{(n % depth)*2048 + 512*hq}', tag=('T', n))
        if n >= 1 and n - 1 + depth < n_st:
            A.wait(lg=[('T', n - 1)]); dma(n - 1 + depth)
    A.wait(vm=0, lg=0)

def emit_gemm1(A, kind, ready):
    P = f'G1{kind}_'
    A.label(P + 'entry'); A.reset_counts()
    RING, ACC, STG, WR = 64, 128, 160, 192
    AD, SA = 32, 33
    wreg = lambda n, T: WR + (2 * n + T) * 4
    common_setup(A, 2)
    FLR = 34
    A('v_mov_b32', v(FLR), 0)
    if kind != 'f1':
        A('s_cmp_eq_u32', sL, 0); A('s_cselect_b32', sT0, 15, 1); A('v_min_u32', v(FOFF), sT0, v(LN_))
        A('v_lshrrev_b32', v(FLR), 1, v(FOFF)); A('v_lshlrev_b32', v(FOFF), 7, v(FOFF))
    if kind == 'f1':
        A('s_lshl_b32', sT1, sI, 2); A('s_add_u32', sT1, sT1, sW)
        A('s_lshl_b32', sA, sT1, 7)
        A('s_cmp_lt_u32', sT1, 27); A('s_cselect_b32', sA, sA, '0x20000000')
        A('s_mul_i32', sOUT_, sL, LAYER_H); A('s_lshl_b32', sT1, sT1, 12); A('s_add_u32', sOUT_, sOUT_, sT1); A('s_add_u32', sOUT_, sOUT_, HF)
        load_weights(A, SW1, 3456, 4, sA, [(16 * n * 3456, (16 * n + 8) * 3456) for n in range(40)], wreg, False)
        A('s_mul_i32', sIN, sL, LAYER_X); A('s_add_u32', sIN, sIN, XN1)
        A('s_mul_i32', sFI, sL, FL_LAYER); A('s_add_u32', sFI, sFI, FL_LNA)
        flag_out_addr(A, FL_F1); nl = 2; ostep = UH
        A('v_mov_b32', v(SA), v(L16))
    else:
        A('s_mul_i32', sT1, sI, 43); A('s_lshr_b32', sB, sT1, 7)
        A('s_mul_i32', sT1, sB, 3); A('s_sub_u32', sC_, sI, sT1)
        A('s_lshl_b32', sA, sB, 9); A('s_lshl_b32', sT1, sW, 7); A('s_add_u32', sA, sA, sT1)
        soffs = [(16 * n * 8192, (16 * n + 8) * 8192) for n in range(40)]
        if kind == 'v':
            load_weights(A, SV, 8192, 4, sA, soffs, wreg, False)
        else:
            A('s_cmp_eq_u32', sC_, 0)
            A('s_cselect_b32', 's76', 's12', 's16'); A('s_cselect_b32', 's77', 's13', 's17'); A('s_mov_b32', 's78', hex(640 * 4096 * 2)); A('s_mov_b32', 's79', '0x20000')
            load_weights(A, 's[76:79]', 8192, 4, sA, soffs, wreg, False)
        A('s_mul_i32', sOUT_, sL, LAYER_F); A('s_lshl_b32', sT1, sB, 14); A('s_add_u32', sOUT_, sOUT_, sT1)
        A('s_lshr_b32', sT1, sW, 1); A('s_lshl_b32', sT1, sT1, 13); A('s_add_u32', sOUT_, sOUT_, sT1)
        A('s_and_b32', sT1, sW, 1)
        if kind == 'v':
            A('s_lshl_b32', sT1, sT1, 12); A('s_add_u32', sOUT_, sOUT_, sT1); A('s_add_u32', sOUT_, sOUT_, VT)
            A('s_mul_i32', 's74', sL, LAYER_KM); A('s_lshl_b32', sT1, sB, 13); A('s_add_u32', 's74', 's74', sT1)
            A('s_lshl_b32', sT1, sW, 11); A('s_add_u32', 's74', 's74', sT1); A('s_add_u32', 's74', 's74', KM)
            for i in range(4): A('v_mov_b32', v(36 + i), hex(SENT))
        else:
            A('s_lshl_b32', sT1, sT1, 11); A('s_add_u32', sOUT_, sOUT_, sT1)
            A('s_cmp_eq_u32', sC_, 0); A('s_cselect_b32', sT1, QF - KF, 0); A('s_add_u32', sOUT_, sOUT_, sT1); A('s_add_u32', sOUT_, sOUT_, KF)
        A('s_mul_i32', sIN, sL, LAYER_X); A('s_add_u32', sIN, sIN, XN)
        A('s_mul_i32', sFI, sL, FL_LAYER); A('s_add_u32', sFI, sFI, FL_XN)
        flag_out_addr(A, FL_QKV); nl = 16; ostep = 32 * 8192
        A('v_bfe_u32', v(TM), v(LN_), 4, 1); A('v_lshlrev_b32', v(TM), 10 if kind == 'v' else 12, v(TM))
        A('v_lshrrev_b32', v(TM + 1), 5, v(LN_)); A('v_lshl_add_u32', v(TM), v(TM + 1), 8, v(TM))
        A('v_and_b32', v(TM + 1), 15, v(LN_)); A('v_lshl_add_u32', v(SA), v(TM + 1), 4, v(TM))
    A('s_lshl_b32', sT0, sW, 10); A('s_add_u32', sIN, sIN, sT0); A('s_mov_b32', sLB, sT0)
    A('s_mov_b32', sD, 0)
    ready(A)
    A('s_barrier')
    LA = 35
    A('v_mov_b32', v(LA), 2 * UX); A('v_mov_b32', v(3), 0); A('ds_write_b32', v(LA), v(3)); A('s_waitcnt', 'lgkmcnt(0)'); A('s_barrier')
    A('s_mov_b32', 's78', 1)
    def dma1(i):
        if i == 0 and int(os.environ.get('LPOLL', 0)):
            A('v_mov_b32', v(3), 's78'); A('ds_max_u32', v(LA), v(3)); A('s_add_u32', 's78', 's78', 1)
        A('s_add_u32', 'm0', sLB, i * 4096); A('s_add_u32', sT0, sIN, i * 4096)
        A('buffer_load_dwordx4', v(L16), WS, sT0, mods='offen sc1 lds'); A.vm.pop()
        if i == 9:
            A('s_add_u32', sIN, sIN, UX); A('s_mov_b32', sNX, 1)
            A('s_add_u32', sT0, sLB, UX); A('s_sub_u32', sT1, sLB, UX); A('s_cmp_ge_u32', sLB, UX); A('s_cselect_b32', sLB, sT1, sT0)
    def dma_in():
        for i in range(10): dma1(i)
    A.label(P + 'fetch')
    if int(os.environ.get('LPOLL', 0)): poll_lds(A, P + 'p', sU, nl, FLR, LA)
    else: poll(A, P + 'p', sU, lanes=nl, floor=FLR)
    dma_in()
    flag_load(A)
    A.label(P + 'top')
    A.reset_counts()
    NST = 2
    NT0 = 2 if kind != 'v' else 4
    ph_dump(A); ph(A, 0)
    A('s_waitcnt', 'vmcnt(7)')
    A('s_barrier')
    ph(A, 1)
    A('v_add_u32', v(AD), sD, v(L16))
    A('s_xor_b32', sD, sD, UX)
    D = 12
    def rd(f): A('ds_read_b128', v(RING + 4 * (f % 16), 4), v(AD), mods=f'offset:{(f % 40)*1024}')
    for f in range(D): rd(f)
    A('s_mov_b32', sNX, 0)
    A('s_add_u32', sT2, sU, 1); A('s_cmp_lt_u32', sT2, NU); A('s_cselect_b32', 's77', sT2, '0x7fffffff')
    def epi(T, i):
        ac = ACC + 16 * T
        st = STG + 8 * T + 4 * i
        if kind == 'qk':
            for c in range(4): A('v_cvt_pk_bf16_f32', v(st + c), v(ac + 4 * i + c), v(ac + 8 + 4 * i + c))
            off = T * 1024 + i * 512
        elif kind == 'v':
            for hh in range(2):
                for c in range(2): A('v_cvt_pk_bf16_f32', v(st + 2 * hh + c), v(ac + 8 * hh + 4 * i + 2 * c), v(ac + 8 * hh + 4 * i + 2 * c + 1))
            off = T * 2048 + i * 512
        else:
            for c in range(4):
                A('v_cvt_pk_bf16_f32', v(st + c), v(ac + 8 * i + 2 * c), v(ac + 8 * i + 2 * c + 1))
                A('v_pk_max_i16', v(st + c), v(st + c), 0)
            off = T * 2048 + i * 1024
        A('buffer_store_dwordx4', v(st, 4), v(SA), WS, sOUT_, mods=f'offen offset:{off} sc1')
    def step(k, mid=None, end=None):
        T = k // 20
        if k in (2, 6):
            A('s_waitcnt', f'vmcnt({5 if k == 2 else 3}) lgkmcnt({D-2})'); A('s_barrier')
        else:
            if k == 10: A('s_barrier')
            A('s_waitcnt', f'lgkmcnt({min(D - 2, 78 - 2 * k)})')
        for h_ in range(2):
            f = 2 * k + h_
            x = v(RING + 4 * (f % 16), 4); wv = R(wreg(f % 40, T), 4); acc = v(ACC + 16 * T, 16)
            a_, b_ = (x, wv) if kind == 'v' else (wv, x)
            A('v_mfma_f32_32x32x16_bf16', acc, a_, b_, '0' if f % 40 == 0 else acc)
            if f + D < 80: rd(f + D)
            if h_ == 0 and mid: mid()
        if k in (22, 24): epi(0, (k - 22) // 2)
        if kind == 'v' and k in (26, 27):
            A('buffer_store_dwordx4', v(36, 4), v(L16), WS, 's74', mods=f'offen offset:{1024*(k-26)} sc1')
            if k == 27: A('s_add_u32', 's74', 's74', 32 * 4096)
        if end: end()
    CK = [9, 19, 29]
    def chk_mid(k):
        A('s_waitcnt', f'vmcnt({NT0 if k > 27 else 0})')
        A('v_min3_u32', v(FV), v(FV), v(FV + 1), v(FV + 2)); A('v_min_u32', v(FV), v(FV), v(FV + 3)); A('v_max_u32', v(FV), v(FV), v(FLR))
        A('v_cmp_ge_u32', 'vcc', 's77', v(FV))
    def chk_end(k):
        if k == CK[0]:
            s2 = A.newlabel(P + 'nop')
            A('s_cmp_eq_u32', sPEND, 0); A('s_cbranch_scc1', s2)
            publish(A, sU, loc=(kind == 'f1')); A('s_mov_b32', sPEND, 0)
            A.label(s2)
        A('s_cbranch_vccz', P + f'dma{k}')
        flag_load(A)
    for k in range(40):
        if k in CK: step(k, lambda: chk_mid(k), lambda: chk_end(k))
        else: step(k)
    A('s_branch', P + 'epi')
    for c in CK[1:]:
        A.label(P + f'dma{c}')
        for k in range(c + 1, c + 11): step(k, lambda: dma1(k - c - 1))
        A('s_branch', P + (f'rest{c+11}' if c + 11 < 40 else 'epi'))
    c = CK[0]
    A.label(P + f'dma{c}')
    for k in range(c + 1, c + 11): step(k, lambda: dma1(k - c - 1))
    for k in range(c + 11, 40):
        if k - 11 in CK: A.label(P + f'rest{k}')
        step(k)
    A.label(P + 'epi')
    A.reset_counts()
    ph(A, 4)
    epi(1, 0); epi(1, 1)
    A('s_add_u32', sOUT_, sOUT_, ostep)
    A('s_add_u32', sU, sU, 1); A('s_mov_b32', sPEND, 1)
    A('s_cmp_eq_u32', sNX, 0); A('s_cbranch_scc1', P + 'late')
    flag_load(A)
    A('s_branch', P + 'top')
    A.label(P + 'late')
    A('s_mov_b32', sPEND, 0)
    A('s_waitcnt', f'vmcnt({NST})')
    flag_min(A, sPROG, lanes=nl, floor=FLR)
    A('s_min_u32', sPROG, sPROG, NU); A('s_cmp_gt_u32', sPROG, sU); A('s_cbranch_scc0', P + 'idle')
    dma_in()
    A('s_waitcnt', 'vmcnt(10)')
    publish(A, sU, loc=(kind == 'f1'))
    flag_load(A)
    A('s_branch', P + 'top')
    A.label(P + 'idle')
    flag_load(A)
    A('s_waitcnt', 'vmcnt(0)')
    publish(A, sU, loc=(kind == 'f1')); flag_min(A, sPROG, lanes=nl, floor=FLR)
    A('s_cmp_lt_u32', sU, NU); A('s_cbranch_scc1', P + 'fetch')
    A('s_endpgm')

def emit_gemm2(A, kind, ready):
    P = f'G2{kind}_'
    A.label(P + 'entry'); A.reset_counts()
    nk = 32 if kind == 'op' else 27
    RING, ACC, RT = 64, 192, 224
    LW, LR, RES, SA = 32, 33, 36, 34
    wreg = lambda n, T: 256 + (2 * n + T) * 4
    if kind == 'op':
        common_setup(A, 1); nl = 1
        A('s_cmp_ge_u32', sI, 10); A('s_cselect_b32', sB, 1, 0)
        A('s_mul_i32', sT1, sB, 10); A('s_sub_u32', sC_, sI, sT1)
        A('s_lshl_b32', sT1, sB, 2); A('s_add_u32', sT1, sT1, sW)
        A('s_mul_i32', sA, sT1, 4 * 163840); A('s_lshl_b32', sT2, sC_, 7); A('s_add_u32', sA, sA, sT2)
        A('s_mul_i32', sIN, sL, LAYER_F); A('s_lshl_b32', sT2, sT1, 15); A('s_add_u32', sIN, sIN, sT2); A('s_add_u32', sIN, sIN, OF)
        A('s_mul_i32', sFI, sL, FL_LAYER); A('s_lshl_b32', sT2, sT1, 7); A('s_add_u32', sFI, sFI, sT2); A('s_add_u32', sFI, sFI, FL_ATT)
        soffs = [[(128 * (n >> 3) + 32 * ((n & 7) >> 1) + 8 * (n & 1) + 4 * b) * 1280 for b in range(2)] for n in range(32)]
        load_weights(A, SO, 1280, 16, sA, [tuple(x) for x in soffs], wreg, True)
        istep = 32 * 8192
        A('s_mul_i32', sOUT_, sL, LAYER_OP); A('s_mul_i32', sT2, sB, UP); A('s_add_u32', sOUT_, sOUT_, sT2)
        A('s_lshl_b32', sT2, sC_, 12); A('s_add_u32', sOUT_, sOUT_, sT2); A('s_lshl_b32', sT2, sW, 10); A('s_add_u32', sOUT_, sOUT_, sT2)
        A('s_add_u32', sOUT_, sOUT_, OPART)
        flag_out_addr(A, FL_OP); ostep = 2 * UP
    else:
        common_setup(A, 7); nl = 7
        A('s_mul_i32', sA, sW, 27 * 16 * 1280); A('s_lshl_b32', sT2, sI, 7); A('s_add_u32', sA, sA, sT2)
        A('s_mul_i32', sIN, sL, LAYER_H); A('s_mul_i32', sT2, sW, 27 * 1024); A('s_add_u32', sIN, sIN, sT2); A('s_add_u32', sIN, sIN, HF)
        A('s_mul_i32', sFI, sL, FL_LAYER); A('s_add_u32', sFI, sFI, FL_F1)
        load_weights(A, SW2, 1280, 8, sA, [((16 * n) * 1280, (16 * n + 4) * 1280) for n in range(27)], wreg, True)
        istep = UH
        A('s_lshl_b32', sT2, sI, 12); A('s_lshl_b32', sT3, sW, 10); A('s_add_u32', sT2, sT2, sT3)
        A('s_mul_i32', sB, sL, LAYER_X); A('s_add_u32', sB, sB, sT2); A('s_add_u32', sB, sB, XRES)
        A('s_mul_i32', 's74', sL, LAYER_OP); A('s_add_u32', 's74', 's74', sT2); A('s_add_u32', 's74', 's74', OPART)
        A('s_add_u32', sOUT_, sT2, XRES + LAYER_X)
        A('s_lshl_b32', sT2, sI, 7); A('s_lshl_b32', sT3, sW, 5); A('s_add_u32', sC_, sT2, sT3)
        A('v_and_b32', v(TM), 31, v(LN_)); A('v_mul_u32_u24', v(TM), 1280, v(TM)); A('v_lshrrev_b32', v(TM + 1), 5, v(LN_)); A('v_lshl_add_u32', v(SA), v(TM + 1), 4, v(TM))
        flag_out_addr(A, FL_F2); ostep = UX
        if not DBG: A('s_cmp_lg_u32', sL, 0); A('s_cselect_b32', sFO, '0x20000000', sFO)
        A('v_and_b32', v(TM), 31, v(LN_)); A('v_mul_u32_u24', v(TM), 144, v(TM)); A('v_lshl_add_u32', v(TM), v(TM + 1), 4, v(TM))
        A('s_lshl_b32', sT2, sW, 5); A('s_add_u32', sT2, sT2, 65536); A('v_add_u32', v(50), sT2, v(TM))
        A('v_lshrrev_b32', v(TM), 3, v(LN_)); A('v_and_b32', v(TM + 1), 7, v(LN_)); A('v_lshlrev_b32', v(TM + 1), 4, v(TM + 1))
        A('v_mad_u32_u24', v(51), v(TM), 36, 0); A('v_lshl_add_u32', v(51), v(51), 2, v(TM + 1))
        A('s_mul_i32', sT2, sW, 8 * 144); A('s_add_u32', sT2, sT2, 65536); A('v_add_u32', v(51), sT2, v(51))
        A('v_mul_u32_u24', v(TM), 1280, v(TM)); A('v_add_u32', v(52), v(TM), v(TM + 1))
        A('s_lshl_b32', 's75', sI, 7); A('s_mul_i32', sT2, sW, 8 * 1280); A('s_add_u32', 's75', 's75', sT2)
    TL = (nk * 8 + 9) // 10
    A('s_mul_i32', sT2, sC_ if kind == 'op' else sI, TL); A('v_add_u32', v(54), sT2, v(LN_)); A('v_lshlrev_b32', v(53), 7, v(54))
    A('v_mov_b32', v(55), '0x40000000')
    A('v_cmp_gt_u32', 'vcc', TL, v(LN_)); A('v_cndmask_b32', v(53), v(55), v(53), 'vcc')
    A('v_cmp_gt_u32', 'vcc', nk * 8, v(54)); A('v_cndmask_b32', v(53), v(55), v(53), 'vcc')
    for j_ in range(1, 4):
        A('s_xor_b32', sT2, sW, j_); A('s_lshl_b32', sT2, sT2, 13); A('s_add_u32', sT2, sT2, j_ * 2048); A('v_add_u32', v(59 + j_), sT2, v(L16))
    A('s_lshl_b32', sT2, sW, 13); A('v_add_u32', v(LR), sT2, v(L16))
    ready(A)
    A('s_barrier')
    XS = 3 if kind == 'f2' else 0
    def ld(k, base):
        if k == 0 and kind == 'f2':
            A('buffer_load_dwordx4', v(RES, 4), v(L16), WS, sB, mods='offen sc1'); A.vm.pop()
            A('s_add_u32', sB, sB, UX)
            for pp in (1, 2):
                A('buffer_load_dwordx4', v(RES + 4 * pp, 4), v(L16), WS, 's74', mods='offen sc1'); A.vm.pop()
                A('s_add_u32', 's74', 's74', UP)
        if k == 0 and int(os.environ.get('TOUCH', 0)): A('buffer_load_dword', v(54), v(53), WS, base, mods='offen sc1'); A.vm.pop()
        if k % 4 == 0: A('s_add_u32', sT3, base, k * 1024)
        A('buffer_load_dwordx4', v(RING + 4 * k, 4), v(L16), WS, sT3, mods=f'offen offset:{(k%4)*1024} sc1'); A.vm.pop()
    A.label(P + 'fetch')
    poll(A, P + 'p', sU, lanes=nl)
    W = int(os.environ.get('G2W', 10))
    for k in range(W): ld(k, sIN)
    A.label(P + 'top')
    A.reset_counts()
    ph_dump(A); ph(A, 0)
    def mm(k, cnt):
        A('s_waitcnt', f'vmcnt({cnt})')
        x = v(RING + 4 * k, 4)
        for T in range(2):
            acc = v(ACC + 16 * T, 16)
            A('v_mfma_f32_32x32x16_bf16', acc, R(wreg(k, T), 4), x, '0' if k == 0 else acc)
    if W % 4: A('s_add_u32', sT3, sIN, (W // 4) * 4096)
    for k in range(nk - W):
        mm(k, W - 1)
        if k == W:
            sk = A.newlabel(P + 'nop')
            A('s_cmp_eq_u32', sPEND, 0); A('s_cbranch_scc1', sk)
            publish(A, sU, loc=(kind == 'op')); A('s_mov_b32', sPEND, 0)
            A.label(sk)
        if k == 3 and kind == 'f2':
            for i in range(4):
                A('v_lshlrev_b32', v(TM), 16, v(RES + i)); A('v_and_b32', v(TM + 1), '0xffff0000', v(RES + i))
                for pp in (1, 2):
                    A('v_lshlrev_b32', v(TM + 2), 16, v(RES + 4 * pp + i)); A('v_and_b32', v(TM + 3), '0xffff0000', v(RES + 4 * pp + i))
                    A('v_add_f32', v(TM), v(TM), v(TM + 2)); A('v_add_f32', v(TM + 1), v(TM + 1), v(TM + 3))
                A('v_cvt_pk_bf16_f32', v(56 + i), v(TM), v(TM + 1))
        if k == nk - 2 * W: flag_load(A); A.vm.pop()
        ld(k + W, sIN)
    assert nk - W > W
    ph(A, 1)
    mm(nk - W, W - 1)
    flag_min(A, sPROG, lanes=nl)
    A('s_add_u32', sIN, sIN, istep)
    A('s_add_u32', sT2, sU, 1); A('s_cmp_gt_u32', sPROG, sT2); A('s_cselect_b32', sNX, 1, 0)
    A('s_cbranch_scc1', P + 'pf')
    flag_load(A); A.vm.pop()
    for k in range(nk - W + 1, nk): mm(k, nk - k)
    A('s_branch', P + 'red')
    A.label(P + 'pf')
    ld(0, sIN)
    for k in range(nk - W + 1, nk):
        mm(k, W - 1 + XS); ld(k - (nk - W), sIN)
    A.label(P + 'red')
    ph(A, 3)
    for j_ in range(1, 4):
        A('ds_write_b128', v(59 + j_), v(ACC + 8 * j_, 4)); A('ds_write_b128', v(59 + j_), v(ACC + 8 * j_ + 4, 4), mods='offset:1024')
    for j_ in range(1, 4): A('v_xor_b32', v(59 + j_), 32768, v(59 + j_))
    A('s_waitcnt', 'lgkmcnt(0)'); A('s_barrier')
    for j_ in range(1, 4):
        A('ds_read_b128', v(RT + 8 * (j_ - 1), 4), v(LR), mods=f'offset:{j_*2048}'); A('ds_read_b128', v(RT + 8 * (j_ - 1) + 4, 4), v(LR), mods=f'offset:{j_*2048+1024}')
    A('v_xor_b32', v(LR), 32768, v(LR))
    O = RT + 24
    A('s_waitcnt', 'lgkmcnt(4)')
    for i in range(0, 8, 2): A('v_pk_add_f32', v(O + i, 2), v(ACC + i, 2), v(RT + i, 2))
    A('s_waitcnt', 'lgkmcnt(0)')
    for i in range(0, 8, 2): A('v_pk_add_f32', v(RT + 8 + i, 2), v(RT + 8 + i, 2), v(RT + 16 + i, 2))
    for i in range(0, 8, 2): A('v_pk_add_f32', v(O + i, 2), v(O + i, 2), v(RT + 8 + i, 2))
    if kind == 'op':
        for i in range(4): A('v_cvt_pk_bf16_f32', v(RT + i), v(O + 2 * i), v(O + 2 * i + 1))
        A('buffer_store_dwordx4', v(RT, 4), v(L16), WS, sOUT_, mods='offen sc1')
    else:
        for i in range(4):
            A('v_cvt_pk_bf16_f32', v(RT + i), v(O + 2 * i), v(O + 2 * i + 1))
            A('v_lshlrev_b32', v(O + 2 * i), 16, v(RT + i)); A('v_and_b32', v(O + 2 * i + 1), '0xffff0000', v(RT + i))
            A('v_lshlrev_b32', v(RT + 8), 16, v(56 + i)); A('v_and_b32', v(RT + 9), '0xffff0000', v(56 + i))
            A('v_add_f32', v(O + 2 * i), v(O + 2 * i), v(RT + 8)); A('v_add_f32', v(O + 2 * i + 1), v(O + 2 * i + 1), v(RT + 9))
            A('v_cvt_pk_bf16_f32', v(RT + 4 + i), v(O + 2 * i), v(O + 2 * i + 1))
        l1 = A.newlabel(P + 'l1')
        A('s_cmp_lg_u32', sL, 0); A('s_cbranch_scc1', l1)
        local(A, lambda md: A('buffer_store_dwordx4', v(RT + 4, 4), v(L16), WS, sOUT_, mods=f'offen {md}'))
        A('s_branch', l1 + 'e')
        A.label(l1)
        if int(os.environ.get('OUTT', 1)):
            A('ds_write_b128', v(50), v(RT + 4, 4)); A('s_waitcnt', 'lgkmcnt(0)'); A('s_barrier')
            A('ds_read_b128', v(RT + 8, 4), v(51)); A('s_waitcnt', 'lgkmcnt(0)')
            A('buffer_store_dwordx4', v(RT + 8, 4), v(52), SOUT, 's75', mods='offen ' + os.environ.get('OUTMOD', 'nt'))
            A('s_add_u32', 's75', 's75', 32 * 1280)
        else:
            A('buffer_store_dwordx4', v(RT + 4, 4), v(SA), SOUT, sC_, mods='offen ' + os.environ.get('OUTMOD', 'nt'))
            A('s_add_u32', sC_, sC_, 32 * 1280)
        A.label(l1 + 'e')
    ph(A, 4)
    A('s_add_u32', sOUT_, sOUT_, ostep)
    A('s_add_u32', sU, sU, 1); A('s_mov_b32', sPEND, 1)
    A('s_cmp_lg_u32', sNX, 0); A('s_cbranch_scc1', P + 'top')
    A('s_waitcnt', 'vmcnt(1)')
    flag_min(A, sPROG, lanes=nl)
    A('s_cmp_gt_u32', sPROG, sU); A('s_cbranch_scc0', P + 'idle')
    for k in range(W): ld(k, sIN)
    A('s_waitcnt', f"vmcnt({W + XS})")
    publish(A, sU, loc=(kind == 'op')); A('s_mov_b32', sPEND, 0)
    A('s_branch', P + 'top')
    A.label(P + 'idle')
    flag_load(A); A.vm.pop()
    A('s_waitcnt', 'vmcnt(0)')
    publish(A, sU, loc=(kind == 'op')); flag_min(A, sPROG, lanes=nl); A('s_mov_b32', sPEND, 0)
    A('s_cmp_lt_u32', sU, NU); A('s_cbranch_scc1', P + 'fetch')
    A('s_endpgm')

def xlane_sum(A, r, t, rors):
    for sh in rors: A('v_add_f32_dpp', v(r), v(r), v(r), mods=f'row_ror:{sh} row_mask:0xf bank_mask:0xf')
    A('v_mov_b32', v(t), v(r)); A('v_permlane16_swap_b32', v(t), v(r)); A('v_add_f32', v(r), v(r), v(t))
    A('v_mov_b32', v(t), v(r)); A('v_permlane32_swap_b32', v(t), v(r)); A('v_add_f32', v(r), v(r), v(t))

def emit_ln(A, mode, ready, after=None):
    P = mode.upper() + '_'
    A.label(P + 'entry'); A.reset_counts()
    X, P0, P1, X1R, F, O = 44, 64, 104, 144, 164, 204
    VF, VP, LW = 32, 33, 34
    nl = {'ln0': 1, 'ln1': 10, 'lna': 20}[mode]
    step = 8 if mode == 'ln0' else 1
    common_setup(A, nl)
    A('v_lshrrev_b32', v(TM), 4, v(LN_)); A('v_and_b32', v(TM + 1), 15, v(LN_))
    A('v_lshlrev_b32', v(TM + 2), 9, v(TM)); A('v_lshl_add_u32', v(VF), v(TM + 1), 4, v(TM + 2))
    A('s_lshl_b32', sT0, sW, 2); A('v_add_u32', v(LW), sT0, v(L16))
    A('s_and_b32', sT3, sI, 1); A('s_lshl_b32', sT3, sT3, 8)
    A('s_mul_i32', sT2, sW, 20 * 512); A('s_add_u32', sT2, sT2, sT3)
    if mode == 'ln0':
        A('v_mul_u32_u24', v(TM + 2), 1280, v(TM + 1)); A('v_lshl_add_u32', v(VP), v(TM), 4, v(TM + 2))
        A('s_lshr_b32', sU, sI, 1); A('s_mul_i32', sT1, sU, UX); A('s_add_u32', sT2, sT2, sT1)
        A('s_add_u32', sB, sT2, XRES); A('s_add_u32', sOUT_, sT2, XN)
        A('s_mul_i32', sA, sT3, 80); A('s_add_u32', sA, sA, sT1); A('s_mul_i32', sT1, sW, 320); A('s_add_u32', sA, sA, sT1)
        A('s_mov_b32', sPROG, NU); A('s_mov_b32', 's78', sL); A('s_mov_b32', sL, 0)
        flag_out_addr(A, FL_XN); A('s_mov_b32', sL, 's78')
    elif mode == 'ln1':
        A('s_add_u32', sIN, sT2, XRES + LAYER_X); A('s_add_u32', sOUT_, sT2, XN + LAYER_X)
        A('s_mov_b32', sFI, FL_F2); A('s_mov_b32', sL, 1)
        flag_out_addr(A, FL_XN)
    else:
        A('s_mul_i32', sA, sL, LAYER_OP); A('s_add_u32', sA, sA, sT2); A('s_add_u32', sA, sA, OPART)
        A('s_mul_i32', sT1, sL, LAYER_X); A('s_add_u32', sT2, sT2, sT1)
        A('s_add_u32', sIN, sT2, XRES); A('s_add_u32', sOUT_, sT2, XN1); A('s_add_u32', sB, sT2, X1)
        A('s_mul_i32', sFI, sL, FL_LAYER); A('s_add_u32', sFI, sFI, FL_OP)
        flag_out_addr(A, FL_LNA)
    def f5(op, reg, base):
        for i in range(5):
            if i % 2 == 0: A('s_add_u32', sT3, base, i * 2048)
            A(op, v(reg + 4 * i, 4), v(VF), WS, sT3, mods=f'offen offset:{(i%2)*2048} sc1')
    nld = {'ln0': 5, 'ln1': 6, 'lna': 16}[mode]
    def loads():
        if mode == 'ln0':
            for i in range(5): A('buffer_load_dwordx4', v(X + 4 * i, 4), v(VP), SX, sA, mods=f'offen offset:{64*i}')
            A('s_add_u32', sA, sA, 8 * UX)
            return
        f5('buffer_load_dwordx4', X, sIN)
        if mode == 'lna':
            f5('buffer_load_dwordx4', P0, sA); A('s_add_u32', sA, sA, UP)
            f5('buffer_load_dwordx4', P1, sA); A('s_add_u32', sA, sA, UP)
        A('s_add_u32', sIN, sIN, UX)
    a0, a1, tt = TM, TM + 2, TM + 4
    def xsum(region, mid=None):
        xlane_sum(A, a0, tt, [])
        A('ds_write_b32', v(LW), v(a0), mods=f'offset:{region}')
        if mid: mid()
        A('s_waitcnt', 'lgkmcnt(0)'); A('s_barrier')
        A('ds_read_b128', v(a0, 4), v(L16), mods=f'offset:{region}')
        A('s_waitcnt', 'lgkmcnt(0)')
        A('v_pk_add_f32', v(a0, 2), v(a0, 2), v(a0 + 2, 2)); A('v_add_f32', v(a0), v(a0), v(a0 + 1))
    ready(A)
    A.label(P + 'fetch')
    if mode != 'ln0': poll(A, P + 'p', sU, lanes=nl)
    loads()
    A.label(P + 'top')
    ph_dump(A); ph(A, 0)
    n = 20
    def unp(d, x):
        A('v_lshlrev_b32', v(d), 16, v(x)); A('v_and_b32', v(d + 1), '0xffff0000', v(x))
    fl = 0
    if mode == 'lna':
        A('s_waitcnt', 'vmcnt(5)')
        for i in range(n):
            unp(F + 2 * i, X + i); unp(TM + 6, P0 + i)
            A('v_pk_add_f32', v(F + 2 * i, 2), v(F + 2 * i, 2), v(TM + 6, 2))
    for i in range(n):
        if i % 4 == 0: A('s_waitcnt', f'vmcnt({4 - i//4 + fl})')
        if mode == 'lna':
            unp(TM + 6, P1 + i)
            A('v_pk_add_f32', v(F + 2 * i, 2), v(F + 2 * i, 2), v(TM + 6, 2))
            A('v_cvt_pk_bf16_f32', v(X1R + i), v(F + 2 * i), v(F + 2 * i + 1))
            unp(F + 2 * i, X1R + i)
        else:
            unp(F + 2 * i, X + i)
            if mode == 'ln0': A('v_mov_b32', v(X1R + i), v(X + i))
        if i == 1: A('v_pk_add_f32', v(a0, 2), v(F, 2), v(F + 2, 2))
        elif i > 1: A('v_pk_add_f32', v(a0, 2), v(a0, 2), v(F + 2 * i, 2))
    ph(A, 1)
    A('v_add_f32', v(a0), v(a0), v(a0 + 1))
    def pf():
        A('s_add_u32', sU, sU, step)
        if mode != 'ln0': flag_load(A)
        else:
            A('s_cmp_lt_u32', sU, NU); A('s_cselect_b32', 's75', sA, '0x20000000'); A('s_add_u32', sA, sA, 8 * UX)
    pl = []
    if mode == 'ln0':
        for i in range(5): pl.append(lambda i=i: A('buffer_load_dwordx4', v(X + 4 * i, 4), v(VP), SX, 's75', mods=f'offen offset:{64*i}'))
    xsum(0, pf)
    A('v_mul_f32', v(a0), hex(f32bits(-1.0 / 640)), v(a0)); A('v_mov_b32', v(a0 + 1), v(a0))
    def rnd(r):
        A('v_cvt_pk_bf16_f32', v(r), v(r), v(r)); A('v_lshlrev_b32', v(r), 16, v(r))
    dm = TM + 10
    A('v_mov_b32', v(dm), v(a0)); rnd(dm); A('v_sub_f32', v(dm), v(dm), v(a0))
    for i in range(n):
        A('v_pk_add_f32', v(F + 2 * i, 2), v(F + 2 * i, 2), v(a0, 2))
        if i == 0: A('v_pk_mul_f32', v(a1, 2), v(F, 2), v(F, 2))
        else: A('v_pk_fma_f32', v(a1, 2), v(F + 2 * i, 2), v(F + 2 * i, 2), v(a1, 2))
        if i % 4 == 3 and pl: pl.pop(0)()
    A('v_add_f32', v(a0), v(a1), v(a1 + 1))
    def st1():
        if mode == 'ln0':
            f5('buffer_store_dwordx4', X1R, sB); A('s_add_u32', sB, sB, step * UX)
    xsum(1024, st1)
    A('v_mul_f32', v(a1), hex(f32bits(1.0 / 640)), v(a0)); rnd(a1)
    A('v_add_f32', v(a1), hex(f32bits(1e-5)), v(a1)); rnd(a1)
    A('v_sqrt_f32', v(a1), v(a1)); rnd(a1)
    A('v_rcp_f32', v(a0), v(a1)); A('v_mov_b32', v(a0 + 1), v(a0))
    A('v_mul_f32', v(dm), v(dm), v(a0)); A('v_mov_b32', v(dm + 1), v(dm))
    for i in range(n):
        A('v_pk_fma_f32', v(F + 2 * i, 2), v(F + 2 * i, 2), v(a0, 2), v(dm, 2))
        A('v_cvt_pk_bf16_f32', v(O + i), v(F + 2 * i), v(F + 2 * i + 1))
        if i % 4 == 3:
            k = i // 4
            if k % 2 == 0: A('s_add_u32', sT3, sOUT_, k * 2048)
            A('buffer_store_dwordx4', v(O + 4 * k, 4), v(VF), WS, sT3, mods=f'offen offset:{(k%2)*2048} sc1')
    ph(A, 2)
    A('s_add_u32', sOUT_, sOUT_, step * UX)
    if mode == 'ln0':
        A('s_waitcnt', 'vmcnt(0)')
        (publish_wg if int(os.environ.get('WGP', 1)) else publish)(A, sU)
        A('s_cmp_lt_u32', sU, NU); A('s_cbranch_scc1', P + 'top')
    else:
        A('s_waitcnt', 'vmcnt(5)')
        flag_min(A, sPROG, lanes=nl)
        A('s_cmp_gt_u32', sPROG, sU); A('s_cbranch_scc0', P + 'idle')
        loads()
        A('s_waitcnt', f"vmcnt({15 if mode == 'lna' else 5})")
        (publish_wg if int(os.environ.get('WGP', 1)) else publish)(A, sU)
        A('s_branch', P + 'top')
        A.label(P + 'idle')
        flag_load(A)
        A('s_waitcnt', 'vmcnt(0)')
        (publish_wg if int(os.environ.get('WGP', 1)) else publish)(A, sU)
        flag_min(A, sPROG, lanes=nl)
        A('s_cmp_lt_u32', sU, NU); A('s_cbranch_scc1', P + 'fetch')
    A.label(P + 'end')
    if after: after()
    else: A('s_endpgm')

def emit_att(A, ready):
    P = 'ATT_'
    A.label(P + 'entry'); A.reset_counts()
    Q, K, V, KMR, VMR, S, PB, O = 64, 96, 128, 160, 176, 184, 208, 224
    FRK, L8, SA, NEG, ZR = 32, 33, 34, 35, 36
    sCH, sFC, sKMo, sSC = 's74', 's75', 's76', 's77'
    msk = ['s[80:81]', 's[82:83]', 's[84:85]', 's[86:87]']
    common_setup(A, 3)
    g, n = TM, TM + 1
    A('v_lshrrev_b32', v(g), 4, v(LN_)); A('v_and_b32', v(n), 15, v(LN_))
    A('v_and_b32', v(TM + 2), 13, v(n)); A('v_and_b32', v(TM + 3), 1, v(g)); A('v_lshl_or_b32', v(TM + 2), v(TM + 3), 1, v(TM + 2))
    A('v_lshlrev_b32', v(TM + 2), 4, v(TM + 2)); A('v_lshrrev_b32', v(TM + 3), 1, v(g)); A('v_lshl_add_u32', v(FRK), v(TM + 3), 8, v(TM + 2))
    A('v_lshlrev_b32', v(L8), 3, v(LN_))
    A('v_and_b32', v(37), 31, v(LN_)); A('v_lshlrev_b32', v(37), 7, v(37))
    A('v_lshlrev_b32', v(TM + 2), 9, v(g)); A('v_lshl_add_u32', v(SA), v(n), 4, v(TM + 2))
    for r in range(4):
        A('v_lshl_add_u32', v(TM + 2), v(g), 2, r); A('v_cmp_le_u32', msk[r], v(TM + 2), v(n))
    A('v_mov_b32', v(NEG), hex(f32bits(-1e9 * 128 ** 0.5))); A('v_mov_b32', v(ZR), 0)
    A('s_lshl_b32', sT2, sI, 2); A('s_add_u32', sT2, sT2, sW)
    A('s_mul_i32', sT3, sL, LAYER_F); A('s_lshl_b32', sT1, sT2, 13); A('s_add_u32', sT3, sT3, sT1)
    A('s_add_u32', sIN, sT3, KF); A('s_add_u32', sOUT_, sT3, OF)
    A('s_mul_i32', sKMo, sL, LAYER_KM); A('s_lshl_b32', sT1, sT2, 12); A('s_add_u32', sKMo, sKMo, sT1); A('s_add_u32', sKMo, sKMo, KM)
    A('s_mul_i32', sT3, sL, FL_LAYER)
    A('s_lshr_b32', sT1, sT2, 1); A('s_mul_i32', sT1, sT1, 384); A('s_add_u32', sFI, sT3, sT1); A('s_and_b32', sT1, sT2, 1); A('s_lshl_b32', sT1, sT1, 3)
    A('s_add_u32', sFI, sFI, sT1); A('s_add_u32', sFI, sFI, FL_QKV)
    A('s_lshl_b32', sT1, sT2, 7); A('s_add_u32', sFC, sT3, sT1); A('s_add_u32', sFC, sFC, FL_CH)
    A('s_mov_b32', sCH, 0); A('s_mov_b32', sSC, hex(f32bits(128 ** -0.5 * 1.4426950408889634)))
    flag_out_addr(A, FL_ATT)
    ready(A)
    def ld8(reg, base, delta):
        for i in range(8):
            if i % 4 == 0: A('s_add_u32', sT3, base, delta + i * 1024)
            A('buffer_load_dwordx4', v(reg + 4 * i, 4), v(L16), WS, sT3, mods=f'offen offset:{(i%4)*1024} sc1')
    A.label(P + 'fetch')
    poll(A, P + 'p', sU, n=2, lanes=3)
    ld8(Q, sIN, QF - KF); ld8(K, sIN, 0); ld8(V, sIN, VT - KF)
    A.label(P + 'top')
    A('s_waitcnt', 'vmcnt(8)')
    A.reset_counts()
    sreg = {(0, 'm'): S, (0, 0): S + 4, (1, 'm'): S + 8, (1, 0): S + 12, (1, 1): S + 16}
    for kp in range(4):
        for qt, kt in ((0, 0), (1, 0), (1, 1)):
            r = v(sreg[(qt, kt)], 4)
            A('v_mfma_f32_16x16x32_bf16', r, v(K + 16 * kt + 4 * kp, 4), v(Q + 16 * qt + 4 * kp, 4), '0' if kp == 0 else r)
    for base in (sreg[(0, 0)], sreg[(1, 1)]):
        for r in range(4): A('v_cndmask_b32', v(base + r), v(NEG), v(base + r), msk[r])
    A('s_mov_b32', sSPIN, 0)
    A.label(P + 'km')
    for kp in range(4): A('buffer_load_dwordx4', v(KMR + 4 * kp, 4), v(FRK), WS, sKMo, mods=f'offen offset:{1024*kp} sc1', tag=('km', kp))
    for w_ in range(4): A('buffer_load_dwordx2', v(VMR + 2 * w_, 2), v(L8), WS, sKMo, mods=f'offen offset:{1024*w_+512} sc1', tag='vm')
    flag_load(A, n=2)
    regs = [KMR + i for i in range(24)]
    for kp in range(4):
        A.wait(vm=[('km', kp)])
        for qt in range(2):
            r = v(sreg[(qt, 'm')], 4)
            A('v_mfma_f32_16x16x32_bf16', r, v(KMR + 4 * kp, 4), v(Q + 16 * qt + 4 * kp, 4), '0' if kp == 0 else r)
            for i in range(2):
                x = KMR + 4 * kp + 2 * qt + i
                A('v_pk_max_u16', v(TM + 8), v(x), v(x) if x == KMR else v(TM + 8))
    A.wait(vm=0)
    for i in range(8): A('v_pk_max_u16', v(TM + 8), v(VMR + i), v(TM + 8))
    A('v_pk_max_u16', v(TM + 8), v(TM + 8), v(TM + 8), mods='op_sel:[0,1] op_sel_hi:[1,0]')
    A('v_cmp_le_u32', 'vcc', '0xff810000', v(TM + 8))
    A('s_cbranch_vccz', P + 'kmok')
    A('s_cmp_lg_u32', sDEAD, 0); A('s_cbranch_scc1', P + 'kmok')
    if int(os.environ.get('KSL', 2)):
        A('s_cmp_lg_u32', sSPIN, 0); A('s_cbranch_scc1', P + 'kmx')
        A.label(P + 'kmw')
        A('s_sleep', int(os.environ.get('KSL', 2)) - 1)
        A('buffer_load_dword', v(TM + 8), v(37), WS, sKMo, mods='offen sc1'); A('s_waitcnt', 'vmcnt(0)')
        A('s_add_u32', sSPIN, sSPIN, 1)
        A('v_cmp_eq_u32', 'vcc', hex(SENT), v(TM + 8)); A('s_cbranch_vccz', P + 'km')
        A('s_cmp_lt_u32', sSPIN, 4 * SPIN_MAX); A('s_cbranch_scc1', P + 'kmw')
        A.label(P + 'kmx')
    A('v_mov_b32', v(TM + 8), -1)
    for r_ in regs:
        A('v_xor_b32', v(TM + 9), hex(SENT), v(r_)); A('v_pk_min_u16', v(TM + 8), v(TM + 8), v(TM + 9))
    A('v_pk_min_u16', v(TM + 8), v(TM + 8), v(TM + 8), mods='op_sel:[0,1] op_sel_hi:[1,0]')
    A('v_cmp_eq_u32', 'vcc', 0, v(TM + 8))
    A('s_cbranch_vccz', P + 'kmok')
    if int(os.environ.get('KSL2', 0)): A('s_sleep', int(os.environ.get('KSL2', 0)))
    A('s_add_u32', sSPIN, sSPIN, 1); A('s_cmp_lt_u32', sSPIN, 4 * SPIN_MAX); A('s_cbranch_scc1', P + 'km')
    A('s_mov_b32', sDEAD, 1)
    A.label(P + 'kmok')
    A('s_add_u32', sKMo, sKMo, 32 * 4096)
    flag_min(A, sPROG, n=2, lanes=3)
    A('s_add_u32', sT2, sU, 1); A('s_cmp_gt_u32', sPROG, sT2); A('s_cselect_b32', sNX, 1, 0)
    A('s_add_u32', sIN, sIN, 32 * 8192); A('s_cmp_eq_u32', sNX, 0); A('s_cbranch_scc1', P + 'nq')
    ld8(Q, sIN, QF - KF); ld8(K, sIN, 0)
    A.label(P + 'nq')
    for qt in range(2):
        m_ = sreg[(qt, 'm')]
        vals = [m_, m_ + 1] + [sreg[(qt, 0)] + i for i in range(4 + 4 * qt)]
        mx, tm, sm = TM, TM + 1, TM + 2 + qt
        A('v_max3_f32', v(mx), v(vals[0]), v(vals[1]), v(vals[2])); A('v_max3_f32', v(tm), v(vals[3]), v(vals[4]), v(vals[5]))
        if qt:
            A('v_max3_f32', v(mx), v(mx), v(vals[6]), v(vals[7])); A('v_max3_f32', v(tm), v(tm), v(vals[8]), v(vals[9]))
        A('v_max_f32', v(mx), v(mx), v(tm)); A('v_mov_b32', v(tm), v(mx))
        A('v_permlane32_swap_b32', v(tm), v(mx)); A('v_max_f32', v(mx), v(mx), v(tm)); A('v_mov_b32', v(tm), v(mx))
        A('v_permlane16_swap_b32', v(tm), v(mx)); A('v_max_f32', v(mx), v(mx), v(tm))
        for r in vals: A('v_sub_f32', v(r), v(r), v(mx))
        for r in vals: A('v_mul_f32', v(r), sSC, v(r))
        for r in vals: A('v_exp_f32', v(r), v(r))
        pb = PB + 8 * qt
        for i in range(2 + 2 * qt): A('v_cvt_pk_bf16_f32', v(pb + i), v(vals[2 + 2 * i]), v(vals[3 + 2 * i]))
        if qt == 0: A('v_mov_b64', v(pb + 2, 2), 0)
        A('v_cvt_pk_bf16_f32', v(pb + 4), v(m_), v(m_ + 1)); A('v_mov_b32', v(pb + 5), 0); A('v_mov_b32', v(pb + 6), 0); A('v_mov_b32', v(pb + 7), v(pb + 4))
        A('v_add_f32', v(sm), v(vals[0]), v(vals[1]))
        for r in vals[2:]: A('v_add_f32', v(sm), v(sm), v(r))
        xlane_sum(A, sm, tm, [])
        A('v_rcp_f32', v(sm), v(sm))
    for qt in range(2):
        pb = PB + 8 * qt; sm = TM + 2 + qt
        for et in range(8):
            A('v_mfma_f32_16x16x32_bf16', v(O + 4 * et, 4), v(V + 4 * et, 4), v(pb, 4), '0')
        for et in range(8):
            A('v_mfma_f32_16x16x16_bf16', v(O + 4 * et, 4), v(VMR + 2 * (et >> 1), 2), v(pb + 4 + 2 * (et & 1), 2), v(O + 4 * et, 4))
        for p in range(4):
            st = S + 4 * (p & 1) + 8 * qt if False else KMR + 4 * p
            for i in range(8): A('v_mul_f32', v(O + 8 * p + i), v(O + 8 * p + i), v(sm))
            for i in range(4): A('v_cvt_pk_bf16_f32', v(st + i), v(O + 8 * p + 2 * i), v(O + 8 * p + 2 * i + 1))
            if p % 2 == 0: A('s_add_u32', sT3, sOUT_, p * 2048)
            local(A, lambda md: A('buffer_store_dwordx4', v(st, 4), v(SA), WS, sT3, mods=f'offen offset:{(p%2)*2048 + qt*256} {md}'))
    A('s_add_u32', sOUT_, sOUT_, 32 * 8192); A('s_add_u32', sU, sU, 1)
    A('s_cmp_eq_u32', sNX, 0); A('s_cbranch_scc1', P + 'nv')
    ld8(V, sIN, VT - KF)
    A('s_waitcnt', 'vmcnt(8)')
    publish(A, sU, loc=True)
    A('s_branch', P + 'top')
    A.label(P + 'nv')
    A('s_waitcnt', 'vmcnt(0)')
    publish(A, sU, loc=True)
    A('s_cmp_lt_u32', sU, NU); A('s_cbranch_scc1', P + 'fetch')
    A('s_endpgm')
```

```python
from asmgen import *
from layout import *
import os, struct
def env(n, d=0): return int(os.environ.get(n, d))
X_NOADV, X_NOFLAG, X_NOPUB, X_NOPF = env('X_NOADV'), env('X_NOFLAG'), env('X_NOPUB'), env('X_NOPF')
RDELAY, GDELAY = env('RDELAY', 8), env('GDELAY', 50)
PUBAT = env('PUBAT', 9)
RGAP = env('RGAP', 6)
KVMOD = os.environ.get('KVMOD', 'sc1')

WS = 's[8:11]'; SQ = 's[12:15]'; SK = 's[16:19]'; SV = 's[20:23]'; SO = 's[24:27]'; SX = 's[28:31]'; SM0 = 's[32:35]'
SW1 = 's[36:39]'; SW2 = 's[40:43]'; SOUT = 's[44:47]'; SDBG = 's[48:51]'
sW, sH, sC, sS = 's52', 's53', 's54', 's55'
sMEMc, sMEMo, sPST, sPLD, sPLD1, sSTR, sVT, sKF, sKM, sTAG, sFLO, sPROG, sSPIN, sDEAD = ['s%d' % i for i in range(56, 70)]
sT0, sT1, sT2, sT3 = 's70', 's71', 's72', 's73'
sDMEM, sPST1, sPST2, sXX, sFIN, sSCALE = 's74', 's75', 's76', 's77', 's78', 's79'

sPSTS = [sPST, sPST1, sPST2, sXX, 's4']
sSTRS = [sSTR, 's3', 's5', 's6', 's7']
sONES = 's[40:41]'
sPFK, sPFV, sFOV = 's36', 's37', 's38'
L_MEM = 0; L_QB = 10240; L_KB = 12288; L_VM = 14336; L_KX = 16384; L_O = L_KX; L_W = 24576
UNITS = [9, 8, 8, 9]
L_WBASE = [L_W + 4096 * sum(UNITS[:w]) for w in range(4)]
NSTR = [8, 10, 10, 9]
LANE16, IDX, RDEST, KW, PST2, QKW, FR, LDSW = range(8)
AQK = 8; AV = 24; AW = 32; SL = [40, 48, 56, 64, 72]; RES0 = 80
SPIN_MAX = 1 << 16
STAMPS = ['top', 'b1', 0, 'b2', 'sc', 2, 3, 4, 'r1', 5, 'start']
if env('ACKT'): STAMPS = ['top', 'b1', 0, 'b2', 'sc', 2, 3, 4, 'ack', 5, 'start']
if env('STAMPSET') == 1: STAMPS = ['top', 2, 'p1', 'p2', 'p3', 'p4', 3, 'o4', 'o10', 'o16', 'start']
if env('STAMPSET') == 2: STAMPS = ['top', 'q8', 'q16', 'q24', 'q32', 0, 'sc', 's1', 's2', 2, 'start']

def f32bits(x):
    return struct.unpack('<I', struct.pack('<f', x))[0]

def tstamp(A, sfo, val, tmp):
    A('s_memrealtime', 's[90:91]')
    if env('CLK'): A('s_memtime', 's[94:95]')
    A('s_lshr_b32', 's92', sfo, 7); A('s_lshl_b32', 's92', 's92', 2); A('s_bfe_u32', 's93', sfo, 0x20002); A('s_add_u32', 's92', 's92', 's93')
    A('s_lshl_b32', 's92', 's92', 9); A('s_lshl_b32', 's93', val, 2); A('s_add_u32', 's92', 's92', 's93'); A('s_add_u32', 's92', 's92', DBGT + (1 << 20))
    A('s_waitcnt', 'lgkmcnt(0)')
    A('v_mov_b32', v(tmp), 's90')
    if env('CLK'):
        A('s_bitcmp1_b32', val, 0); A('s_cselect_b32', 's90', 's94', 's90'); A('v_mov_b32', v(tmp), 's90')
    A('buffer_store_dword', v(tmp), 'off', WS, 's92'); A.vm.pop()

KOWN = [0, 3, 6, 8]; NOWN = [3, 3, 2, 2]
def korder(w):
    return [(KOWN[w] + j) % 10 for j in range(10)]

def frag_plan(w):
    qk = []
    for j in range(10):
        qk += [('q', j, 0), ('q', j, 1), ('k', j, 0), ('k', j, 1)]
    qk[34:38] = qk[36:38] + qk[34:36]
    oo = []
    for p in range(5):
        oo += [('o', 0, 2 * p), ('o', 0, 2 * p + 1), ('o', 1, 2 * p), ('o', 1, 2 * p + 1)]
    ab, cd, e_ = [([4, 10, 14, 18], 2, 9), ([4, 10, 14, 18], 6, 9), ([6, 10, 14, 18], 4, 9), ([6, 10, 14, 18], 8, 13), ([6, 10, 14, 18], 2, 9), ([4, 10, 14, 18], 0, 7), ([4, 10, 14, 18], 0, 3), ([6, 10, 14, 18], 2, 5), ([6, 10, 14, 18], 0, 3)][env('OVAR', 0)]
    oslot = {cd: 4, cd + 1: 0, e_: 1}
    for x in ab: oslot[x] = 2; oslot[x + 1] = 3
    opre = sorted([ab[0], ab[0] + 1, cd, cd + 1])
    held = [(1, 4), (0, 0), (4, 1)]
    if w in (1, 2):
        upos = [2, 10, 18, 26, 34]
        qslot = {24: 0, 28: 4}
        for x in upos: qslot[x] = 2; qslot[x + 1] = 3
        qfill = [(0, 1, 0, 24), (2, 1, 4, 28)]
        for a_, b_ in zip(upos, upos[1:]): qfill += [(a_ + (2 if a_ == 2 else 0), 1, 2, b_), (a_ + (2 if a_ > 2 else 3), 1, 3, b_ + 1)]
        mids = [24, 28]
        kslots, qslots = (0, 4), (2, 3)
    else:
        upos = [2, 10, 16, 22, 28, 34]
        qslot = {2: 2, 3: 3, 10: 2, 11: 3, 16: 4, 17: 2, 22: 3, 23: 4, 28: 2, 29: 3, 34: 4, 35: 2, 25: 0}
        qfill = [(2, 1, 2, 10), (4, 1, 3, 11), (6, 2, 4, 16), (10, 0, 2, 17), (12, 1, 3, 22), (16, 0, 4, 23), (18, 2, 2, 28), (22, 0, 3, 29), (24, 1, 4, 34), (28, 0, 2, 35), (0, 1, 0, 25)]
        mids = [25]
        kslots, qslots = (0, 3), (2, 4)
        if w == 0: held = held[:2]
    for n, sl_ in held: qslot[n] = sl_
    streams = [qk[n] for n, _ in held] + [qk[n] for n in mids] + [oo[i] for i in opre] + [oo[e_]]
    ldsf = [qk[x + i] for x in upos for i in range(2)] + [oo[x + i] for x in ab[1:] for i in range(2)]
    assert len(streams) == NSTR[w] and len(ldsf) == 2 * UNITS[w]
    return qk, qslot, qfill, oo, oslot, ab, cd, e_, opre, streams, ldsf, held, kslots, qslots

sMODE = 's96'
def emit_chain_wave(A, w, ready, modes=('', 'sc1'), dbg=False, nsteps=64):
    L = lambda nm: f'CH{w}_{nm}'
    KO = korder(w)
    qk, qslot, qfill, oo, oslot, ab, cd, e_, opre, streams, ldsf, held, kslots, qslots = frag_plan(w)
    allf = qk + [('v', j, t) for j in range(10) for t in range(2)] + oo
    res = [f for f in allf if f not in streams and f not in ldsf]
    assert len(res) == (54 if w < 3 else 53), len(res)
    resreg = {f: (RES0 if w < 3 else RES0 + 8) + 8 * i for i, f in enumerate(res)}
    XR = RES0
    strm_idx = {f: i for i, f in enumerate(streams)}
    unit_of = lambda f: (f[0], f[1], f[2] >> 1)
    for i in range(0, len(ldsf), 2):
        assert unit_of(ldsf[i]) == unit_of(ldsf[i + 1]), (ldsf[i], ldsf[i + 1])
    lds_units = [unit_of(ldsf[i]) for i in range(0, len(ldsf), 2)]
    lds_off = {}
    for i, u in enumerate(lds_units):
        for t in range(2):
            lds_off[(u[0], u[1], 2 * u[2] + t)] = i * 4096 + t * 2048
    groups = [[0, 1], [2], [3], [4]][w]
    ng = len(groups)

    def half_fill(slot, f, hf):
        r = SL[slot] + 4 * hf
        tag = ('F', f)
        if f in lds_off:
            A('ds_read_b128', v(r, 4), v(LDSW), mods=f'offset:{lds_off[f] + 1024*hf}', tag=tag)
        else:
            i = strm_idx[f]
            so = sSTRS[i >> 1]
            A('buffer_load_dwordx4', v(r, 4), v(LANE16), WS, so, mods=f'offen offset:{(i&1)*2048 + 1024*hf}', tag=tag)
    def fill(slot, f):
        half_fill(slot, f, 0); half_fill(slot, f, 1)
    def smf(acc, areg, f, slot):
        if slot is None:
            b = R(resreg[f], 8)
        else:
            if f in lds_off: A.wait(lg=[('F', f)])
            else: A.wait(vm=[('F', f)])
            b = v(SL[slot], 8)
        A('v_smfmac_f32_16x16x64_bf16', v(acc, 4), v(areg, 4), b, v(IDX))
    def add2(d, a_, b_):
        A('v_add_f32', v(d), v(a_), v(b_)); A('v_add_f32', v(d + 1), v(a_ + 1), v(b_ + 1))

    A.label(L('entry'))
    A.reset_counts()
    T = [SL[0] + i for i in range(40)]
    ln = T[0]; g = T[1]; c = T[2]
    A('v_and_b32', v(ln), 63, 'v0')
    A('v_lshlrev_b32', v(LANE16), 4, v(ln))
    A('v_lshrrev_b32', v(g), 4, v(ln)); A('v_and_b32', v(c), 15, v(ln))
    A('v_and_b32', v(T[3]), 2, v(ln)); A('v_cmp_ne_u32', 'vcc', 0, v(T[3]))
    A('v_mov_b32', v(T[4]), '0x4444'); A('v_mov_b32', v(T[5]), '0xeeee'); A('v_cndmask_b32', v(IDX), v(T[4]), v(T[5]), 'vcc')
    A('v_and_b32', v(T[3]), 13, v(c)); A('v_and_b32', v(T[4]), 1, v(g)); A('v_lshl_or_b32', v(T[3]), v(T[4]), 1, v(T[3]))
    A('v_lshlrev_b32', v(T[3]), 4, v(T[3])); A('v_lshrrev_b32', v(T[4]), 1, v(g)); A('v_lshl_add_u32', v(FR), v(T[4]), 8, v(T[3]))
    A('v_lshrrev_b32', v(T[3]), 3, v(c)); A('v_lshlrev_b32', v(T[3]), 8, v(T[3]))
    A('v_lshl_add_u32', v(T[3]), v(g), 6, v(T[3]))
    A('v_bfe_u32', v(T[4]), v(c), 2, 1); A('v_lshl_add_u32', v(T[3]), v(T[4]), 5, v(T[3]))
    A('v_and_b32', v(T[4]), 3, v(c)); A('v_lshl_add_u32', v(T[3]), v(T[4]), 2, v(T[3]))
    A('v_add_u32', v(QKW), L_QB + w * 512, v(T[3]))
    A('v_add_u32', v(LDSW), L_WBASE[w], v(LANE16))
    A('v_add_u32', v(KW), L_KB - L_QB, v(QKW))
    A('s_mov_b32', sT0, PIECE)
    A('v_lshrrev_b32', v(T[3]), 3, v(c)); A('v_lshl_add_u32', v(T[3]), v(T[3]), 2, v(g)); A('v_mul_lo_u32', v(T[3]), v(T[3]), sT0)
    A('v_and_b32', v(T[4]), 7, v(c)); A('v_lshl_add_u32', v(PST2), v(T[4]), 3, v(T[3]))
    A('s_mul_i32', sT0, sH, 5); A('s_add_u32', sT0, sT0, groups[0])
    A('v_lshrrev_b32', v(T[3]), 3, v(c)); A('v_add_u32', v(T[3]), sT0, v(T[3]))
    A('v_and_b32', v(T[9]), 3, v(c)); A('v_lshlrev_b32', v(T[9]), 4, v(T[9]))
    A('v_lshl_add_u32', v(T[9]), v(g), 2, v(T[9]))
    A('v_bfe_u32', v(T[8]), v(c), 2, 1); A('v_lshl_add_u32', v(T[9]), v(T[8]), 1, v(T[9]))
    A('v_lshl_add_u32', v(RDEST), v(T[3]), 6, v(T[9]))
    if ng == 1:
        A('v_mov_b32', v(T[6]), '0x40000000'); A('v_cmp_lt_u32', 'vcc', 7, v(c)); A('v_cndmask_b32', v(RDEST), v(RDEST), v(T[6]), 'vcc')
    if w == 3:
        A('v_lshlrev_b32', v(XR + 3), 7, v(ln))
        A('v_mov_b64', v(XR + 6, 2), 0)
        A('v_mov_b32', v(T[6]), '0x40000000'); A('v_cmp_gt_u32', 'vcc', 2, v(ln)); A('v_cndmask_b32', v(XR + 5), v(T[6]), v(XR + 3), 'vcc')
        A('v_cmp_gt_u32', 'vcc', 1, v(ln)); A('v_cndmask_b32', v(XR + 2), v(T[6]), v(XR + 3), 'vcc')
    A('s_mul_i32', sT0, sC, 2 * MEMB_SZ); A('s_add_u32', sMEMc, sT0, MEMB); A('s_add_u32', sMEMo, sMEMc, MEMB_SZ)
    A('s_xor_b32', sDMEM, sMEMc, sMEMo)
    A('s_mul_i32', sT0, sC, PART_SZ); A('s_add_u32', sT0, sT0, PART)
    A('s_lshl_b32', sT1, sH, 6); A('s_add_u32', sPST, sT0, sT1); A('s_add_u32', sPST, sPST, 8 * w * PIECE)
    for p in range(1, 5): A('s_add_u32', sPSTS[p], sPST, 32 * p * PIECE)
    A('s_mul_i32', sT1, sH, 5 * PIECE); A('s_add_u32', sPLD, sT1, sT0); A('s_add_u32', sPLD, sPLD, groups[0] * PIECE)
    A('s_add_u32', sPLD1, sPLD, PIECE)
    A('s_mov_b32', sTAG, 0)
    A('s_lshl_b32', sT0, sC, 5); A('s_add_u32', sT0, sT0, sH)
    A('s_mul_i32', sSTR, sT0, STRM_H); A('s_add_u32', sSTR, sSTR, STRM + 2048 * sum(NSTR[:w]))
    for i in range(1, 5): A('s_add_u32', sSTRS[i], sSTR, 4096 * i)
    A('s_mul_i32', sT0, sC, LAYER_F); A('s_lshl_b32', sT1, sH, 13); A('s_add_u32', sT0, sT0, sT1)
    A('s_add_u32', sVT, sT0, VT + w * 2048); A('s_add_u32', sKF, sT0, KF + w * 2048)
    A('s_mul_i32', sT0, sC, LAYER_KM); A('s_lshl_b32', sT1, sH, 12); A('s_add_u32', sT0, sT0, sT1); A('s_add_u32', sKM, sT0, KM + 1024 * w - 32 * 4096)
    A('s_mul_i32', sT0, sC, FL_LAYER); A('s_lshr_b32', sT1, sH, 1); A('s_mul_i32', sT1, sT1, 3 * 128); A('s_add_u32', sFIN, sT0, sT1); A('s_add_u32', sFIN, sFIN, FL_QKV + 128)
    A('s_and_b32', sT1, sH, 1); A('s_lshl_b32', sT1, sT1, 3); A('s_add_u32', sFIN, sFIN, sT1)
    A('s_lshl_b32', sT1, sH, 7); A('s_add_u32', sFLO, sT0, sT1); A('s_add_u32', sFLO, sFLO, FL_CH)
    A('s_mov_b32', sS, 0); A('s_mov_b32', sPROG, 0); A('s_mov_b32', sDEAD, 0)
    A('s_mov_b32', sSCALE, hex(f32bits(128 ** -0.5 * 1.4426950408889634)))

    SRCQ, SRCO1, SRCO2, TRN, TRO1, TRO2 = AW, AW + 1, AW + 2, AW + 3, AW + 4, AW + 5
    r16 = T[3]; ch = T[4]
    A('v_lshrrev_b32', v(r16), 2, v(ln)); A('v_and_b32', v(ch), 3, v(ln))
    A('v_bfe_u32', v(T[5]), v(r16), 1, 1); A('v_lshlrev_b32', v(T[5]), 3, v(T[5]))
    A('v_bfe_u32', v(T[6]), v(r16), 2, 2); A('v_lshl_add_u32', v(T[5]), v(T[6]), 1, v(T[5]))
    A('v_and_b32', v(T[6]), 1, v(r16)); A('v_add_u32', v(T[5]), v(T[5]), v(T[6]))
    A('v_lshlrev_b32', v(T[5]), 13, v(T[5]))
    A('v_bfe_u32', v(T[6]), v(r16), 3, 1); A('v_lshlrev_b32', v(T[6]), 1, v(T[6])); A('v_xor_b32', v(T[6]), v(ch), v(T[6]))
    A('v_lshl_add_u32', v(T[5]), v(T[6]), 4, v(T[5]))
    A('s_lshl_b32', sT0, sH, 8); A('s_add_u32', sT0, sT0, w * 64); A('v_add_u32', v(SRCQ), sT0, v(T[5]))
    A('v_bfe_u32', v(T[5]), v(r16), 3, 1); A('v_lshlrev_b32', v(T[5]), 4, v(T[5]))
    A('v_bfe_u32', v(T[6]), v(r16), 1, 1); A('v_lshl_add_u32', v(T[5]), v(T[6]), 2, v(T[5]))
    A('v_bfe_u32', v(T[6]), v(r16), 2, 1); A('v_lshl_add_u32', v(T[5]), v(T[6]), 1, v(T[5]))
    A('v_and_b32', v(T[6]), 1, v(r16)); A('v_add_u32', v(T[5]), v(T[5]), v(T[6]))
    A('v_mul_u32_u24', v(T[5]), 1280, v(T[5]))
    A('s_mul_i32', sT0, sH, 163840); A('s_add_u32', sT0, sT0, w * 64); A('v_add_u32', v(T[5]), sT0, v(T[5]))
    A('v_lshl_add_u32', v(SRCO1), v(ch), 5, v(T[5]))
    A('v_lshl_add_u32', v(SRCO2), v(ch), 4, v(T[5]))
    A('v_bfe_u32', v(T[5]), v(ln), 2, 2); A('v_lshl_add_u32', v(T[5]), v(g), 3, v(T[5])); A('v_lshlrev_b32', v(T[5]), 6, v(T[5]))
    A('v_add_u32', v(T[5]), L_WBASE[w], v(T[5]))
    A('v_and_b32', v(T[6]), 1, v(g)); A('v_lshl_add_u32', v(T[6]), v(T[6]), 5, v(T[5])); A('v_lshl_add_u32', v(TRN), v(ch), 3, v(T[6]))
    A('v_xor_b32', v(TRN + 3), 32, v(TRN))
    A('v_lshl_add_u32', v(TRO1), v(ch), 4, v(T[5]))
    A('v_lshrrev_b32', v(T[6]), 1, v(ch)); A('v_lshl_add_u32', v(T[6]), v(T[6]), 5, v(T[5]))
    A('v_and_b32', v(T[7]), 1, v(ch)); A('v_lshl_add_u32', v(TRO2), v(T[7]), 3, v(T[6]))
    CS, CO, CT = AQK, AQK + 1, AQK + 2
    rr = T[5]; ck = T[6]
    A('v_lshlrev_b32', v(ck), 1, v(g)); A('v_xor_b32', v(ck), v(ck), v(c)); A('v_lshlrev_b32', v(ck), 4, v(ck))
    A('v_lshrrev_b32', v(rr), 1, v(g)); A('v_lshlrev_b32', v(rr), 3, v(rr)); A('v_and_b32', v(T[7]), 1, v(g)); A('v_add_u32', v(rr), v(rr), v(T[7]))
    A('v_lshlrev_b32', v(rr), 13, v(rr)); A('s_lshl_b32', sT0, sH, 8); A('v_add3_u32', v(CS), v(rr), v(ck), sT0); A('v_xor_b32', v(CS + 6), 128, v(CS))
    A('v_lshrrev_b32', v(rr), 1, v(g)); A('v_lshlrev_b32', v(rr), 2, v(rr)); A('v_add_u32', v(rr), v(rr), v(T[7]))
    A('v_mul_u32_u24', v(rr), 1280, v(rr)); A('s_mul_i32', sT0, sH, 163840); A('v_add3_u32', v(CO), v(rr), v(ck), sT0); A('v_xor_b32', v(CO + 6), 128, v(CO))
    A('v_bfe_u32', v(rr), v(ln), 2, 2); A('v_lshl_add_u32', v(T[8]), v(T[7]), 2, v(rr)); A('v_lshlrev_b32', v(T[8]), 5, v(T[8]))
    A('v_lshl_add_u32', v(rr), v(g), 3, v(rr)); A('v_lshlrev_b32', v(rr), 8, v(rr)); A('v_add_u32', v(rr), L_W, v(rr))
    for t in range(2):
        A('v_lshl_add_u32', v(T[9]), v(ch), 3, 64 * w + 32 * t) if 64 * w + 32 * t <= 64 else (A('v_lshlrev_b32', v(T[9]), 3, v(ch)), A('v_add_u32', v(T[9]), 64 * w + 32 * t, v(T[9])))
        A('v_xor_b32', v(T[9]), v(T[9]), v(T[8])); A('v_add_u32', v(CT + t), v(T[9]), v(rr))
        A('v_lshrrev_b32', v(T[9]), 1, v(ch)); A('v_lshlrev_b32', v(T[9]), 5, v(T[9])); A('v_and_b32', v(T[10]), 1, v(ch)); A('v_lshl_add_u32', v(T[9]), v(T[10]), 3, v(T[9]))
        A('v_add_u32', v(T[9]), 64 * w + 16 * t, v(T[9]))
        A('v_xor_b32', v(T[9]), v(T[9]), v(T[8])); A('v_add_u32', v(CT + 2 + t), v(T[9]), v(rr))
    for t in range(4): A('v_add_u32', v(CT + 6 + t), 65536, v(CT + t))
    stages = [(X, k, 0) for X in 'qkv' for k in range(10)] + [('o', kp, p) for kp in range(2) for p in range(5)]
    def mine(st, ww):
        X, k, p = st
        return (X, korder(ww).index(k), 0) if X != 'o' else st
    nl_ = {st: sum(1 for ww in range(4) if any(unit_of(f) == mine(st, ww) for f in frag_plan(ww)[10])) for st in stages}
    stages = sorted([st for st in stages if nl_[st] < 4], key=lambda st: nl_[st])
    def cdma(n):
        X, k, p = stages[n]
        for ii in range(4):
            A('s_mov_b32', 'm0', L_W + (n % 8) * 16384 + w * 4096 + ii * 1024)
            if X == 'o':
                A('s_mov_b32', sT0, (64 * k + 32 * (w >> 1) + 8 * (w & 1) + 16 * (ii >> 1) + 2 * (ii & 1)) * 1280 + 256 * p)
                A('buffer_load_dwordx4', v(CO + 6 * (ii >> 1)), SO, sT0, mods='offen lds', tag=('C', n))
            else:
                A('s_mov_b32', sT0, (64 * k + 16 * w + 2 * ii) * 8192)
                A('buffer_load_dwordx4', v(CS + 6 * (ii >> 1)), {'q': SQ, 'k': SK, 'v': SV}[X], sT0, mods='offen lds', tag=('C', n))
    order = list(lds_units)
    pos = {u: i for i, u in enumerate(lds_units)}
    def dma(u):
        X, j, p = u
        for i in range(4):
            A('s_mov_b32', 'm0', L_WBASE[w] + pos[u] * 4096 + i * 1024)
            if X == 'o':
                off = (64 * j + 32 * (i >> 1) + 8 * (i & 1)) * 1280 + 256 * p
                A('s_mov_b32', sT0, off)
                A('buffer_load_dwordx4', v(SRCO2), SO, sT0, mods='offen lds', tag=('U', u))
            else:
                A('s_mov_b32', sT0, (64 * KO[j] + 16 * i) * 8192)
                A('buffer_load_dwordx4', v(SRCQ), {'q': SQ, 'k': SK, 'v': SV}[X], sT0, mods='offen lds', tag=('U', u))
    slot_of = lambda u: (L_WBASE[w] + pos[u] * 4096 - L_W) // 16384
    order = []
    def retire(sl_):
        for u in lds_units:
            if slot_of(u) == sl_: dma(u); order.append(u)
    for n in range(8): cdma(n)
    pend = []
    def flush():
        for f, d in pend:
            i = strm_idx[f]
            A('buffer_store_dwordx4', v(d, 4), v(LANE16), WS, sSTRS[i >> 1], mods=f'offen offset:{(i&1)*2048} sc1', tag='ST')
            A('buffer_store_dwordx4', v(d + 4, 4), v(LANE16), WS, sSTRS[i >> 1], mods=f'offen offset:{(i&1)*2048+1024} sc1', tag='ST')
        pend.clear()
    for n, st in enumerate(stages):
        A.wait(vm=[('C', n)], lg=0)
        A('s_barrier')
        flush()
        if n >= 1 and n + 7 < len(stages): cdma(n + 7)
        if n >= 1 and n + 7 >= len(stages): retire((n - 1) % 8)
        if n + 8 == len(stages): retire(8)
        u = mine(st, w)
        if u in lds_units: continue
        for t in range(2):
            f = (u[0], u[1], 2 * u[2] + t)
            d = resreg[f] if f in resreg else SL[(n & 1) * 2 + t]
            if f in strm_idx: pend.append((f, d))
            ad = CT + t + (2 if u[0] == 'o' else 0) + (6 if (n % 8) >= 4 else 0)
            for q4, ro in enumerate((0, 1024, 8192, 9216)):
                A('ds_read_b64_tr_b16', R(d + 2 * q4, 2), v(ad), mods=f'offset:{(n % 4)*16384 + ro}')
    A.wait(lg=0); A('s_barrier'); flush(); retire((len(stages) - 1) % 8)
    assert len(order) == len(lds_units)
    def consume(u, n):
        X, j, p = u
        A.wait(vm=[('U', u)])
        dst = []
        for t in range(2):
            f = (X, j, 2 * p + t)
            d = resreg[f] if f in resreg else SL[(n & 1) * 2 + t]
            dst.append((f, d))
            if X != 'o': ad, o = (TRN if t == 0 else TRN + 3), 0
            else: ad, o = TRO2, 16 * t
            for q4, ro in enumerate((0, 256, 2048, 2304)):
                A('ds_read_b64_tr_b16', R(d + 2 * q4, 2), v(ad), mods=f'offset:{pos[u]*4096 + ro + o}', tag=('T', u))
        A.wait(lg=0)
        for f, d in dst:
            if f in lds_off:
                A('ds_write_b128', v(LDSW), v(d, 4), mods=f'offset:{lds_off[f]}')
                A('ds_write_b128', v(LDSW), v(d + 4, 4), mods=f'offset:{lds_off[f]+1024}')
            elif f in strm_idx:
                i = strm_idx[f]
                A('s_add_u32', sT1, sSTR, (i >> 1) * 4096)
                A('buffer_store_dwordx4', v(d, 4), v(LANE16), WS, sT1, mods=f'offen offset:{(i&1)*2048}', tag='ST')
                A('buffer_store_dwordx4', v(d + 4, 4), v(LANE16), WS, sT1, mods=f'offen offset:{(i&1)*2048+1024}', tag='ST')
    nd = NOWN[w]
    ownreg = [AW, AW + 4, AV + 4][:nd]
    t0_, t1_, t2_ = AV, AV + 1, AV + 2
    A('v_lshrrev_b32', v(t0_), 4, v(LANE16))
    A('v_bfe_u32', v(t1_), v(t0_), 2, 2); A('v_lshlrev_b32', v(t1_), 1, v(t1_))
    A('v_and_b32', v(t2_), 1, v(t0_)); A('v_add_u32', v(t1_), v(t1_), v(t2_)); A('v_mul_u32_u24', v(t1_), 1280, v(t1_))
    A('v_lshrrev_b32', v(t2_), 4, v(t0_)); A('v_lshl_add_u32', v(t1_), v(t2_), 5, v(t1_))
    A('v_bfe_u32', v(t2_), v(t0_), 1, 1); A('v_lshl_add_u32', v(t1_), v(t2_), 4, v(t1_))
    for j in range(nd): A('buffer_load_dwordx4', v(AQK + 4 + 4 * j, 4), v(t1_), SM0, 0, mods=f'offen offset:{128*KO[j]}')
    A('v_and_b32', v(t2_), 7, v(t0_)); A('v_min_u32', v(AV + 3), 1, v(t2_)); A('v_lshlrev_b32', v(t2_), 2, v(t2_)); A('v_lshl_add_u32', v(t2_), v(AV + 3), 7, v(t2_))
    A('buffer_load_dword', v(AQK), 'off', SDBG, 0, mods='offset:32 sc1')
    A('buffer_load_dword', v(AQK + 1), v(t2_), SDBG, 0, mods='offen sc1')
    A('v_lshlrev_b32', v(t0_), 3, v(LANE16))
    for n, u in enumerate(order):
        consume(u, n)
        if n == len(order) - 2:
            A.wait(vm=['ST'])
            for i in range(3): A('buffer_load_dword', v(AQK + 2), v(t0_), WS, sSTRS[2 * i], mods='offen sc1')
        if n == 0:
            for i in range(2 * ng): A('buffer_load_dwordx4', v(AV + 4, 4), v(LANE16), WS, sPLD if i < 2 else sPLD1, mods=f'offen offset:{(i&1)*1024} sc1')
            A('s_add_u32', sT0, sMEMc, 5120 * w)
            A('buffer_load_dword', v(AQK + 2), v(t0_), WS, sT0, mods='offen sc1')
            if w == 3:
                A('s_sub_u32', sT0, sKF, 3 * 2048); A('buffer_load_dword', v(XR), v(t0_), WS, sT0, mods='offen sc1')
                A('s_add_u32', sT0, sT0, VT - KF); A('buffer_load_dword', v(XR + 1), v(t0_), WS, sT0, mods='offen sc1')
    A.wait(vm=0, lg=0)
    A('v_readfirstlane_b32', sT0, v(AQK)); A('v_cmp_ne_u32', 'vcc', 32 if not env('FORCE_SLOW') else 33, v(AQK + 1))
    A('s_cmp_ge_u32', sT0, 256); A('s_cselect_b32', sT0, 'vcc_lo', 1); A('s_cmp_eq_u32', sT0, 0)
    if not env('DBG'): A('s_cbranch_scc1', L('rdy'))
    ready(A)
    A.label(L('rdy'))
    A('s_mov_b32', 's40', '0x3f803f80'); A('s_mov_b32', 's41', '0x3f803f80')
    for j in range(nd):
        A('ds_write_b128', v(LANE16), v(AQK + 4 + 4 * j, 4), mods=f'offset:{L_MEM + 1024*KO[j]}')
        A('v_mov_b64', v(ownreg[j], 2), v(AQK + 4 + 4 * j, 2)); A('v_mov_b64', v(ownreg[j] + 2, 2), v(AQK + 6 + 4 * j, 2))
    for n in range(5):
        if n in qslot: fill(qslot[n], qk[n])
    A('s_waitcnt', 'lgkmcnt(0)')
    for i in range(0, 16, 2): A('v_mov_b64', v(AQK + i, 2), 0)
    if len(modes) > 1:
        A('s_cmp_lg_u32', sMODE, 0); A('s_cbranch_scc1', f'CHS{w}_start')
    for sc in modes:
        L = lambda nm: f'CH{"S" if sc else "F"}{w}_{nm}'
        A.label(L('start')); A.reset_counts()
        def stamp(i):
            if not dbg or i not in STAMPS: return
            A('s_memtime', s(80 + 2 * STAMPS.index(i), 2))
        def dump():
            A('s_lshl_b32', sT0, sC, 5); A('s_add_u32', sT0, sT0, sH); A('s_lshl_b32', sT0, sT0, 2); A('s_add_u32', sT0, sT0, w)
            A('s_lshl_b32', sT0, sT0, 6); A('s_add_u32', sT0, sT0, DBGT)
            A('s_waitcnt', 'lgkmcnt(0)')
            for i, r_ in enumerate([s(80 + 2 * k) for k in range(11)] + [sDEAD]):
                A('v_mov_b32', v(AV), r_)
                A('buffer_store_dword', v(AV), 'off', WS, sT0, mods=f'offset:{4*i}'); A.vm.pop()
            A('s_waitcnt', 'vmcnt(0)')
        def pub_read(reg, tmp):
            A('v_and_b32', v(tmp), 512, v(LANE16)); A('v_mul_u32_u24', v(tmp), (L_VM - L_KB - 512) // 512, v(tmp)); A('v_add_u32', v(tmp), v(tmp), v(LANE16))
            A('ds_read_b128', v(reg, 4), v(tmp), mods=f'offset:{L_KB + 512*w}', tag='pk')
        def w3upd():
            A('v_min_u32', v(XR), v(XR + 6), v(XR + 7)); A('v_readlane_b32', sT0, v(XR), 0); A('v_readlane_b32', sT3, v(XR), 1)
            A('s_min_u32', sT0, sT0, sT3); A('s_max_u32', sPROG, sPROG, sT0)
        def w3in(need):
            ok = A.newlabel(L('inok')); lp = A.newlabel(L('inlp'))
            A('s_cmp_gt_u32', sPROG, need); A('s_cbranch_scc1', ok)
            A('s_mov_b32', sSPIN, 0)
            A.label(lp)
            A('buffer_load_dwordx2', v(XR + 6, 2), v(XR + 5), WS, sFIN, mods='offen sc1'); A.vm.pop()
            A('s_waitcnt', 'vmcnt(0)')
            w3upd()
            A('s_cmp_gt_u32', sPROG, need); A('s_cbranch_scc1', ok)
            A('s_cmp_lg_u32', sDEAD, 0); A('s_cbranch_scc1', ok)
            A('s_sleep', 2)
            A('s_add_u32', sSPIN, sSPIN, 1); A('s_cmp_lt_u32', sSPIN, SPIN_MAX); A('s_cbranch_scc1', lp)
            A('s_mov_b32', sDEAD, 1)
            A.label(ok)
        def w3prep():
            A('s_add_u32', sFOV, sS, 1)
            if env('SPECPF', 1): A('s_cmp_lt_u32', sFOV, nsteps)
            else: A('s_cmp_gt_u32', sPROG, sFOV)
            A('s_cselect_b32', sT0, 0, (0 if X_NOADV else 32 * 8192)); A('s_sub_u32', sPFK, sKF, sT0); A('s_sub_u32', sPFK, sPFK, 3 * 2048)
            A('s_add_u32', sPFV, sPFK, VT - KF)
            if env('FLSEL', 1): A('s_add_u32', sT0, sS, 2); A('s_cmp_gt_u32', sPROG, sT0); A('s_cselect_b32', sPFV, '0x20000000', sFIN)
            A('s_max_u32', sT0, sS, 1); A('s_sub_u32', sT0, sT0, 1); A('v_mov_b32', v(XR + 4), sT0)
        def kdma():
            A('s_mov_b32', 'm0', L_KX + w * 2048)
            for i in range(2): A('buffer_load_dwordx4', v(LANE16), WS, sKF, mods=f'offen offset:{i*1024} {KVMOD} lds')
            if not X_NOADV: A('s_add_u32', sKF, sKF, 32 * 8192)
        if w == 3: w3in(sS)
        A('s_barrier')
        kdma()
        if w == 3: w3prep()
        A('s_waitcnt', 'vmcnt(0) lgkmcnt(0)')
        A.label(L('loop'))
        A.reset_counts()
        stamp('top')
        accq = {('q', 0): AQK, ('q', 1): AQK + 4, ('k', 0): AQK + 8, ('k', 1): AQK + 12}
        awin = [AW, AW + 4, AV + 4, AW, AW + 4, AV, AV + 4, AV, AW, AW + 4]
        aat = {3: 3, 4: 7, 5: PUBAT + 1, 6: 11, 7: 23, 8: 15, 9: 19}
        def aread(j, reg, tag):
            A('ds_read_b128', v(reg, 4), v(LANE16), mods=f'offset:{L_MEM + 1024*KO[j]}', tag=tag)
        kfr = {}
        def kread(tk, reg):
            t, kp = tk
            kfr[tk] = reg
            if t == 0: A('ds_read_b128', v(reg, 4), v(FR), mods=f'offset:{L_KB + 512*kp}', tag=('K', tk))
            else: A('ds_read_b128', v(reg, 4), v(LANE16), mods=f'offset:{L_KX + ((t-1)*4+kp)*1024}', tag=('K', tk))
        NPRE = 0
        side = {}
        def at(n, fn): side.setdefault(n, []).append(fn)
        for n0, st, s2, fi in qfill:
            at(n0, lambda s2=s2, fi=fi: half_fill(s2, qk[fi], 0)); at(n0 + st, lambda s2=s2, fi=fi: half_fill(s2, qk[fi], 1))
        if dbg:
            def st8():
                sk = A.newlabel(L('st8'))
                A('s_cmp_lg_u32', sS, 8); A('s_cbranch_scc1', sk); A('s_mov_b32', 's100', 's80'); A.label(sk)
            at(20, st8)
        for n0, tk, reg in [(30, (1, 0), SL[kslots[0]]), (31, (2, 0), SL[kslots[0]] + 4), (36, (1, 1), SL[kslots[1]]), (37, (2, 1), SL[kslots[1]] + 4)]:
            at(n0, lambda tk=tk, reg=reg: kread(tk, reg))
        def vxload(hf):
            A('buffer_load_dwordx4', v(SL[1] + 4 * hf, 4), v(LANE16), WS, sVT, mods=f'offen offset:{1024*hf} {KVMOD}', tag='vx')
        if env('LATEPO', 0):
            pr = XR + 2 if w == 3 else SL[0] + 7
            at(0, lambda: A('v_mov_b32', v(pr), hex(SENT)))
            at(1, lambda: A('buffer_store_short', v(pr), v(RDEST), WS, sMEMc, mods=f'offen {sc}'.strip()))
        VXAT = env('VXAT', 6)
        if env('X_KTOP') == 1: at(0, kdma)
        at(VXAT, lambda: vxload(0)); at(VXAT + 2, lambda: vxload(1))
        if w == 3:
            if not X_NOPF:
                at(PUBAT + env('KPAT', 1), lambda: A('buffer_load_dword', v(XR), v(XR + 3), WS, sPFK, mods='offen sc1'))
                if not env('NOVPF', 1): at(PUBAT + 3, lambda: A('buffer_load_dword', v(XR + 1), v(XR + 3), WS, sPFV, mods='offen sc1'))
            if not X_NOFLAG: at(PUBAT + env('FLAT', 5), lambda: A('buffer_load_dwordx2', v(XR + 6, 2), v(XR + 5), WS, sPFV if env('FLSEL', 1) else sFIN, mods='offen sc1'))
            if not X_NOPUB:
                if env('CHFLAG'): at(PUBAT + 6, lambda: A('buffer_store_dword', v(XR + 4), v(XR + 2), WS, sFLO, mods='offen sc1'))
                if env('DBG') == 2: at(PUBAT + 7, lambda: (tstamp(A, sFLO, sS, XR + 4), A.vm.append(None)))
        def pub2():
            if not X_NOPUB and not env('X_NOKM'): A('buffer_store_dwordx4', v(AV, 4), v(LANE16), WS, sKM, mods='offen ' + os.environ.get('PUBMOD', 'sc1'))
        at(PUBAT, pub2)
        at(28, lambda: A('v_mov_b64', v(AV + 4, 2), 0)); at(29, lambda: A('v_mov_b64', v(AV + 6, 2), 0))
        at(32, lambda: A('v_mov_b64', v(AV, 2), 0)); at(33, lambda: A('v_mov_b64', v(AV + 2, 2), 0))
        A('s_barrier'); stamp('b1')
        if nd == 2: aread(2, awin[2], ('A', 2))
        A('v_mov_b32', v(AQK + 15), 0)
        for n in range(NPRE, 40):
            f = qk[n]; j = f[1]
            if (n & 1) == 0: A.wait(lg=[('A', j)] + [('F', qk[m]) for m in (n, n + 1) if qk[m] in lds_off])
            stamp(f'q{n}')
            smf(accq[(f[0], f[2])], awin[j], f, qslot.get(n))
            for j2, n2 in aat.items():
                if n2 == n: aread(j2, awin[j2], ('A', j2))
            for fn in side.get(n, []): fn()
        vj = [9, 8, 0, 1, 2, 3, 4, 5, 6, 7]
        vq = []
        for idx, j in enumerate(vj):
            reg = AW + 4 if idx % 2 == 0 else AW
            vq.append((j, 0, reg, idx)); vq.append((j, 1, reg, idx))
        vstate = {'i': 0, 'p': 0}
        def vpass(cnt):
            for _ in range(cnt):
                if vstate['i'] >= 20: return
                j, t, reg, idx = vq[vstate['i']]; vstate['i'] += 1
                if t == 0 and idx >= 2: A.wait(lg=[('B', idx)])
                smf(AV + 4 * t, reg, ('v', j, t), None)
                if t == 1 and idx + 2 < 10: aread(vj[idx + 2], reg, ('B', idx + 2))
        stamp(0)
        add2(AQK, AQK, AQK + 2); add2(AQK + 4, AQK + 4, AQK + 6)
        A('v_cvt_pk_bf16_f32', v(AQK + 2), v(AQK), v(AQK + 4)); A('v_cvt_pk_bf16_f32', v(AQK + 3), v(AQK + 1), v(AQK + 5))
        A('ds_write2_b32', v(QKW), v(AQK + 2), v(AQK + 3), mods='offset0:0 offset1:4', tag='qw')
        add2(AQK + 8, AQK + 8, AQK + 10); add2(AQK + 12, AQK + 12, AQK + 14)
        A('v_cvt_pk_bf16_f32', v(AQK + 10), v(AQK + 8), v(AQK + 12)); A('v_cvt_pk_bf16_f32', v(AQK + 11), v(AQK + 9), v(AQK + 13))
        A('ds_write2_b32', v(KW), v(AQK + 10), v(AQK + 11), mods='offset0:0 offset1:4', tag='qw')
        vpass(env('VP1', 4))
        A.wait(lg=['qw']); A('s_barrier'); stamp('b2')
        qreg = [SL[qslots[0]], SL[qslots[0]] + 4, SL[qslots[1]], SL[qslots[1]] + 4]
        A('ds_read_b128', v(qreg[0], 4), v(FR), mods=f'offset:{L_QB}', tag=('Q', 0))
        A('ds_read_b128', v(qreg[1], 4), v(FR), mods=f'offset:{L_QB + 512}', tag=('Q', 1))
        kread((0, 0), AQK + 12)
        for kp in range(2, 4): A('ds_read_b128', v(qreg[kp], 4), v(FR), mods=f'offset:{L_QB + 512*kp}', tag=('Q', kp))
        vpass(env('VP2', 4))
        sacc = {0: AQK, 1: AQK + 4, 2: AQK + 8}
        sc_order = [(1, 0), (2, 0), (1, 1), (2, 1), (0, 0), (0, 1), (1, 2), (2, 2), (0, 2), (0, 3), (1, 3), (2, 3)]
        pending = sc_order[5:]
        pf = []
        for n in opre:
            pf.append((oslot[n], oo[n], 0)); pf.append((oslot[n], oo[n], 1))
        def pfill(cnt=1):
            for _ in range(cnt):
                if pf: half_fill(*pf.pop(0))
        for tk in sc_order:
            t, kp = tk
            A.wait(lg=[('K', tk), ('Q', kp)])
            A('v_mfma_f32_16x16x32_bf16', v(sacc[t], 4), v(kfr[tk], 4), v(qreg[kp], 4), '0' if kp == 0 else v(sacc[t], 4))
            if pending: kread(pending.pop(0), kfr[tk])
        stamp('sc')
        vpass(1); pfill(); vpass(1); pfill()
        vals = [AQK, AQK + 1] + [AQK + 4 + i for i in range(8)]
        mx = AQK + 2; tm = AQK + 3
        A('v_max3_f32', v(mx), v(vals[0]), v(vals[1]), v(vals[2])); A('v_max3_f32', v(tm), v(vals[3]), v(vals[4]), v(vals[5]))
        A('v_max3_f32', v(mx), v(mx), v(vals[6]), v(vals[7])); A('v_max3_f32', v(tm), v(tm), v(vals[8]), v(vals[9]))
        A('v_max_f32', v(mx), v(mx), v(tm)); A('v_max_f32', v(tm), v(mx), v(tm))
        vpass(1); pfill()
        A('v_permlane32_swap_b32', v(tm), v(mx)); A('v_max_f32', v(mx), v(mx), v(tm)); A('v_max_f32', v(tm), v(mx), v(tm))
        vpass(1)
        A('v_permlane16_swap_b32', v(tm), v(mx)); A('v_max_f32', v(mx), v(mx), v(tm))
        A('v_mul_f32', v(mx), sSCALE, v(mx))
        stamp('s1')
        order = vals[2:] + vals[:2]
        for i, r_ in enumerate(order):
            A('v_fma_f32', v(r_), v(r_), sSCALE, '-' + v(mx))
            if i >= 1: A('v_exp_f32', v(order[i - 1]), v(order[i - 1]))
            if i < 8: vpass(1)
            if i % 3 == 1: pfill()
            if i in (3, 5, 7, 9): A('v_cvt_pk_bf16_f32', v(AQK + 12 + (i - 3) // 2), v(order[i - 3]), v(order[i - 2]))
            if i == 6: A('v_mov_b64', v(AQK + 4, 2), sONES); A('v_mov_b64', v(AQK + 6, 2), sONES)
        A('v_exp_f32', v(order[9]), v(order[9]))
        stamp('s2')
        vpass(20)
        A('v_mov_b32', v(AQK + 3), 0)
        stamp(2)
        A('v_cvt_pk_bf16_f32', v(AQK + 2), v(AQK), v(AQK + 1))
        A.wait(vm=['vx'])
        A('v_mfma_f32_16x16x32_bf16', v(AQK + 8, 4), v(AQK + 4, 4), v(AQK + 12, 4), '0')
        add2(AV, AV, AV + 2)
        A('v_mfma_f32_16x16x32_bf16', v(AW, 4), v(SL[1], 4), v(AQK + 12, 4), '0')
        add2(AV + 4, AV + 4, AV + 6)
        A('v_mfma_f32_16x16x32_bf16', v(AW + 4, 4), v(SL[1] + 4, 4), v(AQK + 12, 4), '0')
        A('v_cvt_pk_bf16_f32', v(AV + 2), v(AV), v(AV + 1)); A('v_cvt_pk_bf16_f32', v(AV + 3), v(AV + 4), v(AV + 5))
        A('v_mfma_f32_16x16x16_bf16', v(AQK + 8, 4), v(AQK + 4, 2), v(AQK + 2, 2), v(AQK + 8, 4))
        A('v_cvt_pk_bf16_f32', v(AV + 4), v(AV + 4), v(AV + 5)); A('v_mov_b32', v(AV + 5), 0)
        stamp('p1')
        A('v_mfma_f32_16x16x16_bf16', v(AW, 4), v(AV + 2, 2), v(AQK + 2, 2), v(AW, 4))
        pfill(2)
        A('v_mfma_f32_16x16x16_bf16', v(AW + 4, 4), v(AV + 4, 2), v(AQK + 2, 2), v(AW + 4, 4))
        stamp('p2')
        pf.append((oslot[e_], oo[e_], 0)); pf.append((oslot[e_], oo[e_], 1))
        pfill(1)
        sm = AQK
        A('v_lshrrev_b32', v(AV + 6), 1, v(LANE16))
        A('ds_write_b64', v(AV + 6), v(AV + 2, 2), mods=f'offset:{L_VM + 512*w}', tag='ow')
        A('v_rcp_f32', v(sm), v(AQK + 8))
        for i in (4, 6): A('v_mov_b64', v(AQK + i, 2), 0)
        for i in range(4):
            A('v_mul_f32', v(AW + 2 * i), v(AW + 2 * i), v(sm)); A('v_mul_f32', v(AW + 2 * i + 1), v(AW + 2 * i + 1), v(sm))
            A('v_cvt_pk_bf16_f32', v(AQK + 8 + i), v(AW + 2 * i), v(AW + 2 * i + 1))
        A('ds_write_b128', v(FR), v(AQK + 8, 4), mods=f'offset:{L_O + 512*w}', tag='ow')
        stamp('p3')
        pfill(3)
        for i in (0, 2, 12, 14): A('v_mov_b64', v(AQK + i, 2), 0)
        for i in (0, 4): A('v_mov_b64', v(AV + i, 2), 0)
        stamp('p4')
        A.wait(lg=['ow']); A('s_barrier')
        A('ds_read_b128', v(AW, 4), v(LANE16), mods=f'offset:{L_O}', tag='oa0')
        A('ds_read_b128', v(AW + 4, 4), v(LANE16), mods=f'offset:{L_O+1024}', tag='oa1')
        pfill()
        A('s_cmp_eq_u32', sS, nsteps - 1)
        A('s_cbranch_scc1', L('last'))
        if dbg and env('FRZ'):
            A('s_cmp_lg_u32', sS, env('FRZ')); A('s_cbranch_scc1', L('nofrz'))
            A('s_memtime', 's[100:101]'); dump(); A('v_mov_b32', v(AV), 0)
            A.label(L('nofrz'))
        for i in (8, 10): A('v_mov_b64', v(AQK + i, 2), 0)
        for i in (2, 6): A('v_mov_b64', v(AV + i, 2), 0)
        assert not pf
        stamp(3)
        accs = [AQK, AQK + 4, AQK + 8, AQK + 12, AV, AV + 4]
        tacc = {t: t % 6 for t in range(10)}
        def post_ops(t):
            r_ = accs[tacc[t]]; st = accs[tacc[t & ~1]] + (t & 1)
            ops = [lambda: A('v_add_f32', v(r_), v(r_), v(r_ + 2)), lambda: A('v_add_f32', v(r_ + 1), v(r_ + 1), v(r_ + 3)),
                   lambda: A('v_cvt_pk_bf16_f32', v(st), v(r_), v(r_ + 1))]
            if t % 2 == 0: ops.append(lambda: A('v_and_or_b32', v(st), v(st), -2, sTAG))
            else:
                ops.append(lambda: A('buffer_store_dwordx2', v(st - 1, 2), v(PST2), WS, sPSTS[t >> 1], mods=f'offen {sc}'.strip(), tag='ps'))
                if t < 4:
                    for rr in (r_, r_ + 2, st + 1, st - 1): ops.append(lambda rr=rr: A('v_mov_b64', v(rr, 2), 0))
            return ops
        oside = {}
        def oat(n, fn): oside.setdefault(n, []).append(fn)
        for a_, b_ in [(ab[i] + k, ab[i + 1] + k) for i in range(3) for k in range(2)]:
            oat(a_, lambda b_=b_: fill(oslot[b_], oo[b_]))
        for n0, (qi, _) in zip((cd, cd + env('HS', 3), max(e_, cd + 2 * env('HS', 3))), held):
            oat(n0, lambda qi=qi: half_fill(qslot[qi], qk[qi], 0)); oat(n0 + (2 if env('HS', 3) > 2 else 1), lambda qi=qi: half_fill(qslot[qi], qk[qi], 1))
        vq_ = []
        for n, f in enumerate(oo):
            if n % 2 == 0:
                pr = [oo[n], oo[n + 1]]
                A.wait(lg=(['oa0'] if n == 0 else ['oa1'] if n == 2 else []) + [('F', x) for x in pr if x in lds_off], vm=[('F', x) for x in pr if x in strm_idx])
            if f[1] == 0 and f[2] >= 6:
                need = {6: 1, 7: 1, 8: 3, 9: 3}[f[2]]
                while any(t == need for t, _ in vq_): vq_.pop(0)[1]()
            stamp(f'o{n}')
            smf(accs[tacc[f[2]]], AW + 4 * f[1], f, oslot.get(n))
            for fn in oside.get(n, []): fn()
            for t in range(10):
                if 4 * (t >> 1) + 2 + (t & 1) + 3 == n: vq_ += [(t, o_) for o_ in post_ops(t)]
            for _ in range(3):
                if vq_: vq_.pop(0)[1]()
        while vq_: vq_.pop(0)[1]()
        for t in (8, 9):
            for o_ in post_ops(t): o_()
        stamp(4)
        if env('ACKT'): A('s_waitcnt', 'vmcnt(0)'); stamp('ack')
        if w == 3: w3upd(); w3in(sFOV)
        A('s_barrier')
        ra = AV + 4
        setreg = [AQK, AQK + 8 if ng == 1 else SL[2]]
        A('s_mov_b32', sSPIN, 0)
        A('v_bfe_u32', v(ra + 1), v(LANE16), 4, 1); A('v_lshlrev_b32', v(ra + 1), 4, v(ra + 1))
        A('v_mov_b32', v(ra + 2), '0x3f80'); A('v_lshlrev_b32', v(ra + 1), v(ra + 1), v(ra + 2))
        A('v_bfe_u32', v(ra + 2), v(LANE16), 5, 3)
        def rloads(st):
            for i in range(2 * ng):
                A('buffer_load_dwordx4', v(setreg[st] + 4 * i, 4), v(LANE16), WS, sPLD if i < 2 else sPLD1, mods=f'offen offset:{(i&1)*1024} sc1')
        sel = lambda jj: (A('v_cmp_eq_u32', 'vcc', jj, v(ra + 2)), A('v_cndmask_b32', v(AW + jj), 0, v(ra + 1), 'vcc'))
        if env('RSL', 0) >= 0:
            for jj in range(4): sel(jj)
            if env('RSL', 0): A('s_sleep', env('RSL', 0))
            rloads(0)
            for jj in range(4, 4 * ng): sel(jj)
            if ng == 1 or env('RSL2', 3) > 1: A('s_sleep', env('RSL2', 3) - (ng - 1))
        else:
            for jj in range(RDELAY): sel(jj % (4 * ng))
            rloads(0)
            for jj in range(max(RGAP, 4 * ng - RDELAY)): sel((RDELAY + jj) % (4 * ng))
        rloads(1)
        for jj in range(env('RFILL', 0)): sel(jj % (4 * ng))
        A.label(L('rloop'))
        for st in range(2):
            A('s_waitcnt', f'vmcnt({2*ng})')
            stamp('r1')
            for i in range(2 * ng):
                b = setreg[st] + 4 * i
                A('v_mfma_f32_16x16x32_bf16', v(AV, 4), v(b, 4), v(AW + 4 * (i >> 1), 4), '0' if i == 0 else v(AV, 4))
                if i == 0:
                    A('v_and_b32', v(ra + 1), v(b), v(b + 2)); A('v_or_b32', v(ra + 2), v(b), v(b + 2))
                else:
                    A('v_bitop3_b32', v(ra + 1), v(ra + 1), v(b), v(b + 2), mods='bitop3:0x80'); A('v_or3_b32', v(ra + 2), v(ra + 2), v(b), v(b + 2))
            A('v_bitop3_b32', v(ra + 1), v(ra + 1), v(ra + 2), sTAG, mods='bitop3:0x4e')
            A('v_and_b32', v(ra + 1), 1, v(ra + 1))
            A('v_cmp_ne_u32', 'vcc', 0, v(ra + 1))
            A('v_permlane32_swap_b32', v(AV), v(AV + 2)); A('v_permlane32_swap_b32', v(AV + 1), v(AV + 3))
            add2(AV, AV, AV + 2)
            A('s_cbranch_vccnz', L(f'rbad{st}'))
            if st == 1: A.label(L('rok'))
            A('v_permlane16_swap_b32', v(AV), v(AV + 1)); A('v_add_f32', v(AV), v(AV), v(AV + 1))
            A('v_cvt_pk_bf16_f32', v(AV), v(AV), v(AV))
            A('buffer_store_short', v(AV), v(RDEST), WS, sMEMc, mods=f'offen {sc}'.strip())
            A('s_branch', L('rdone'))
            A.label(L(f'rbad{st}'))
            rloads(st)
        A('s_cmp_lg_u32', sDEAD, 0); A('s_cbranch_scc1', L('rok'))
        A('s_add_u32', sSPIN, sSPIN, 1)
        A('s_cmp_lt_u32', sSPIN, SPIN_MAX); A('s_cbranch_scc1', L('rloop'))
        A('s_mov_b32', sDEAD, 1)
        A('s_branch', L('rok'))
        A.label(L('rdone'))
        stamp(5)
        if not env('LATEPO', 0):
            A('v_mov_b32', v(AV + 1), hex(SENT))
            A('buffer_store_short', v(AV + 1), v(RDEST), WS, sMEMo, mods=f'offen {sc}'.strip())
        A.reset_counts()
        xl = 0
        if env('X_KTOP'): xl -= 2
        else: kdma()
        pub_read(AV, AV + 4)
        A('s_add_u32', sT2, sMEMc, 1024 * KOWN[w])
        A('s_xor_b32', sTAG, sTAG, 1); A('s_add_u32', sKM, sKM, 32 * 4096)
        A('s_xor_b32', sMEMc, sMEMc, sDMEM); A('s_xor_b32', sMEMo, sMEMo, sDMEM)
        if not X_NOADV: A('s_add_u32', sVT, sVT, 32 * 8192)
        A('s_add_u32', sS, sS, 1)
        A('s_mov_b32', sSPIN, 0)
        A('s_mov_b32', 'm0', L_MEM + 1024 * KOWN[w])
        def gdma():
            for j in range(nd): A('buffer_load_dwordx4', v(LANE16), WS, sT2, mods=f'offen offset:{1024*j} sc1 lds')
        if w == 3: w3prep()
        if env('GSL', 3) >= 0: A('s_sleep', env('GSL', 3))
        else:
            for i in range(GDELAY - (8 if w == 3 else 0)): A('v_mov_b32', v(AW + (i % 8)), 0)
        gdma()
        A('s_waitcnt', f'vmcnt({(3 if env("LATEPO", 0) else 4) + nd + xl})')
        fill(qslot[2], qk[2]); fill(qslot[3], qk[3])
        for i in range(0, 16, 2): A('v_mov_b64', v(AQK + i, 2), 0)
        if env('GSL', 3) >= 0: A('s_sleep', env('GSL2', 2))
        else:
            for i in range(env('GGAP', 24)): A('v_mov_b32', v(AW + (i % 8)), 0)
        if env('GLATE', 1):
            A.label(L('gloop'))
            gdma()
            A('s_waitcnt', f'vmcnt({nd})')
            for j in range(nd): A('ds_read_b128', v(ownreg[j], 4), v(LANE16), mods=f'offset:{L_MEM + 1024*KO[j]}')
        else:
            gdma()
            A.label(L('gloop'))
            A('s_waitcnt', f'vmcnt({nd})')
            for j in range(nd): A('ds_read_b128', v(ownreg[j], 4), v(LANE16), mods=f'offset:{L_MEM + 1024*KO[j]}')
            gdma()
        gregs = [r_ + i for r_ in ownreg for i in range(4)]
        A('s_waitcnt', f'lgkmcnt({nd-1})')
        m0_ = AQK + 15
        A('v_pk_max_u16', v(m0_), v(gregs[0]), v(gregs[1]))
        for i in range(2, len(gregs)):
            if i % 4 == 0: A('s_waitcnt', f'lgkmcnt({nd-1-i//4})')
            A('v_pk_max_u16', v(m0_), v(m0_), v(gregs[i]))
        emit_check(A, m0_, AQK + 14, gregs, L('gloop'), L('loop'), define=False)
        A('s_branch', L('loop'))
        A.label(L('last'))
        A.reset_counts()
        pub_read(AV, AV + 4); A('s_add_u32', sKM, sKM, 32 * 4096)
        A('s_waitcnt', 'lgkmcnt(0)')
        A('buffer_store_dwordx4', v(AV, 4), v(LANE16), WS, sKM, mods='offen sc1')
        A('s_waitcnt', 'vmcnt(0)')
        A('s_barrier')
        if w == 3:
            A('v_mov_b32', v(XR), nsteps)
            A('s_mov_b64', 'exec', 1)
            A('buffer_store_dword', v(XR), 'off', WS, sFLO, mods='sc1')
            A('s_mov_b64', 'exec', -1)
        if dbg and not env('FRZ'): dump()
        A('s_waitcnt', 'vmcnt(0) lgkmcnt(0)')
        A('s_endpgm')

def emit_check(A, m0, m1, regs, retry, ok, define=True):
    A('v_pk_max_u16', v(m0), v(m0), v(m0), mods='op_sel:[0,1] op_sel_hi:[1,0]')
    A('v_cmp_le_u32', 'vcc', '0xff810000', v(m0))
    A('s_cbranch_vccz', ok)
    A('s_add_u32', sSPIN, sSPIN, 1)
    A('s_cmp_lt_u32', sSPIN, 64); A('s_cbranch_scc1', retry)
    A('s_cmp_lg_u32', sDEAD, 0); A('s_cbranch_scc1', ok)
    A('v_mov_b32', v(m0), -1)
    for r_ in regs:
        A('v_xor_b32', v(m1), hex(SENT), v(r_)); A('v_pk_min_u16', v(m0), v(m0), v(m1))
    A('v_pk_min_u16', v(m0), v(m0), v(m0), mods='op_sel:[0,1] op_sel_hi:[1,0]')
    A('v_mov_b32', v(m1), 0)
    A('v_cmp_eq_u32', 'vcc', 0, v(m0))
    A('s_cbranch_vccz', ok)
    A('s_sleep', 1)
    A('s_cmp_lt_u32', sSPIN, SPIN_MAX); A('s_cbranch_scc1', retry)
    A('s_mov_b32', sDEAD, 1)
    if define: A.label(ok)
```

```python
from asmgen import *
from layout import *
import os, struct
def env(n, d=0): return int(os.environ.get(n, d))
X_NOADV, X_NOFLAG, X_NOPUB, X_NOPF = env('X_NOADV'), env('X_NOFLAG'), env('X_NOPUB'), env('X_NOPF')
RDELAY, GDELAY = env('RDELAY', 8), env('GDELAY', 50)
PUBAT = env('PUBAT', 9)
RGAP = env('RGAP', 6)
KVMOD = os.environ.get('KVMOD', 'sc1')

WS = 's[8:11]'; SQ = 's[12:15]'; SK = 's[16:19]'; SV = 's[20:23]'; SO = 's[24:27]'; SX = 's[28:31]'; SM0 = 's[32:35]'
SW1 = 's[36:39]'; SW2 = 's[40:43]'; SOUT = 's[44:47]'; SDBG = 's[48:51]'
sW, sH, sC, sS = 's52', 's53', 's54', 's55'
sMEMc, sMEMo, sPST, sPLD, sPLD1, sSTR, sVT, sKF, sKM, sTAG, sFLO, sPROG, sSPIN, sDEAD = ['s%d' % i for i in range(56, 70)]
sT0, sT1, sT2, sT3 = 's70', 's71', 's72', 's73'
sDMEM, sPST1, sPST2, sXX, sFIN, sSCALE = 's74', 's75', 's76', 's77', 's78', 's79'

sPSTS = [sPST, sPST1, sPST2, sXX, 's4']
sSTRS = [sSTR, 's3', 's5', 's6', 's7']
sONES = 's[40:41]'
sPFK, sPFV, sFOV = 's36', 's37', 's38'
L_MEM = 0; L_QB = 10240; L_KB = 12288; L_VM = 14336; L_KX = 16384; L_O = L_KX; L_W = 24576
UNITS = [9, 8, 8, 9]
L_WBASE = [L_W + 4096 * sum(UNITS[:w]) for w in range(4)]
NSTR = [8, 10, 10, 9]
LANE16, IDX, RDEST, KW, PST2, QKW, FR, LDSW = range(8)
AQK = 8; AV = 24; AW = 32; SL = [40, 48, 56, 64, 72]; RES0 = 80
SPIN_MAX = 1 << 16
STAMPS = ['top', 'b1', 0, 'b2', 'sc', 2, 3, 4, 'r1', 5, 'start']
if env('ACKT'): STAMPS = ['top', 'b1', 0, 'b2', 'sc', 2, 3, 4, 'ack', 5, 'start']
if env('STAMPSET') == 1: STAMPS = ['top', 2, 'p1', 'p2', 'p3', 'p4', 3, 'o4', 'o10', 'o16', 'start']
if env('STAMPSET') == 2: STAMPS = ['top', 'q8', 'q16', 'q24', 'q32', 0, 'sc', 's1', 's2', 2, 'start']

def f32bits(x):
    return struct.unpack('<I', struct.pack('<f', x))[0]

def tstamp(A, sfo, val, tmp):
    A('s_memrealtime', 's[90:91]')
    if env('CLK'): A('s_memtime', 's[94:95]')
    A('s_lshr_b32', 's92', sfo, 7); A('s_lshl_b32', 's92', 's92', 2); A('s_bfe_u32', 's93', sfo, 0x20002); A('s_add_u32', 's92', 's92', 's93')
    A('s_lshl_b32', 's92', 's92', 9); A('s_lshl_b32', 's93', val, 2); A('s_add_u32', 's92', 's92', 's93'); A('s_add_u32', 's92', 's92', DBGT + (1 << 20))
    A('s_waitcnt', 'lgkmcnt(0)')
    A('v_mov_b32', v(tmp), 's90')
    if env('CLK'):
        A('s_bitcmp1_b32', val, 0); A('s_cselect_b32', 's90', 's94', 's90'); A('v_mov_b32', v(tmp), 's90')
    A('buffer_store_dword', v(tmp), 'off', WS, 's92'); A.vm.pop()

KOWN = [0, 3, 6, 8]; NOWN = [3, 3, 2, 2]
def korder(w):
    return [(KOWN[w] + j) % 10 for j in range(10)]

def frag_plan(w):
    qk = []
    for j in range(10):
        qk += [('q', j, 0), ('q', j, 1), ('k', j, 0), ('k', j, 1)]
    qk[34:38] = qk[36:38] + qk[34:36]
    oo = []
    for p in range(5):
        oo += [('o', 0, 2 * p), ('o', 0, 2 * p + 1), ('o', 1, 2 * p), ('o', 1, 2 * p + 1)]
    ab, cd, e_ = [([4, 10, 14, 18], 2, 9), ([4, 10, 14, 18], 6, 9), ([6, 10, 14, 18], 4, 9), ([6, 10, 14, 18], 8, 13), ([6, 10, 14, 18], 2, 9), ([4, 10, 14, 18], 0, 7), ([4, 10, 14, 18], 0, 3), ([6, 10, 14, 18], 2, 5), ([6, 10, 14, 18], 0, 3)][env('OVAR', 0)]
    oslot = {cd: 4, cd + 1: 0, e_: 1}
    for x in ab: oslot[x] = 2; oslot[x + 1] = 3
    opre = sorted([ab[0], ab[0] + 1, cd, cd + 1])
    held = [(1, 4), (0, 0), (4, 1)]
    if w in (1, 2):
        upos = [2, 10, 18, 26, 34]
        qslot = {24: 0, 28: 4}
        for x in upos: qslot[x] = 2; qslot[x + 1] = 3
        qfill = [(0, 1, 0, 24), (2, 1, 4, 28)]
        for a_, b_ in zip(upos, upos[1:]): qfill += [(a_ + (2 if a_ == 2 else 0), 1, 2, b_), (a_ + (2 if a_ > 2 else 3), 1, 3, b_ + 1)]
        mids = [24, 28]
        kslots, qslots = (0, 4), (2, 3)
    else:
        upos = [2, 10, 16, 22, 28, 34]
        qslot = {2: 2, 3: 3, 10: 2, 11: 3, 16: 4, 17: 2, 22: 3, 23: 4, 28: 2, 29: 3, 34: 4, 35: 2, 25: 0}
        qfill = [(2, 1, 2, 10), (4, 1, 3, 11), (6, 2, 4, 16), (10, 0, 2, 17), (12, 1, 3, 22), (16, 0, 4, 23), (18, 2, 2, 28), (22, 0, 3, 29), (24, 1, 4, 34), (28, 0, 2, 35), (0, 1, 0, 25)]
        mids = [25]
        kslots, qslots = (0, 3), (2, 4)
        if w == 0: held = held[:2]
    for n, sl_ in held: qslot[n] = sl_
    streams = [qk[n] for n, _ in held] + [qk[n] for n in mids] + [oo[i] for i in opre] + [oo[e_]]
    ldsf = [qk[x + i] for x in upos for i in range(2)] + [oo[x + i] for x in ab[1:] for i in range(2)]
    assert len(streams) == NSTR[w] and len(ldsf) == 2 * UNITS[w]
    return qk, qslot, qfill, oo, oslot, ab, cd, e_, opre, streams, ldsf, held, kslots, qslots

sMODE = 's96'
def emit_chain_wave(A, w, ready, modes=('', 'sc1'), dbg=False, nsteps=64):
    L = lambda nm: f'CH{w}_{nm}'
    KO = korder(w)
    qk, qslot, qfill, oo, oslot, ab, cd, e_, opre, streams, ldsf, held, kslots, qslots = frag_plan(w)
    allf = qk + [('v', j, t) for j in range(10) for t in range(2)] + oo
    res = [f for f in allf if f not in streams and f not in ldsf]
    assert len(res) == (54 if w < 3 else 53), len(res)
    resreg = {f: (RES0 if w < 3 else RES0 + 8) + 8 * i for i, f in enumerate(res)}
    XR = RES0
    strm_idx = {f: i for i, f in enumerate(streams)}
    unit_of = lambda f: (f[0], f[1], f[2] >> 1)
    for i in range(0, len(ldsf), 2):
        assert unit_of(ldsf[i]) == unit_of(ldsf[i + 1]), (ldsf[i], ldsf[i + 1])
    lds_units = [unit_of(ldsf[i]) for i in range(0, len(ldsf), 2)]
    lds_off = {}
    for i, u in enumerate(lds_units):
        for t in range(2):
            lds_off[(u[0], u[1], 2 * u[2] + t)] = i * 4096 + t * 2048
    groups = [[0, 1], [2], [3], [4]][w]
    ng = len(groups)

    def half_fill(slot, f, hf):
        r = SL[slot] + 4 * hf
        tag = ('F', f)
        if f in lds_off:
            A('ds_read_b128', v(r, 4), v(LDSW), mods=f'offset:{lds_off[f] + 1024*hf}', tag=tag)
        else:
            i = strm_idx[f]
            so = sSTRS[i >> 1]
            A('buffer_load_dwordx4', v(r, 4), v(LANE16), WS, so, mods=f'offen offset:{(i&1)*2048 + 1024*hf}', tag=tag)
    def fill(slot, f):
        half_fill(slot, f, 0); half_fill(slot, f, 1)
    def smf(acc, areg, f, slot):
        if slot is None:
            b = R(resreg[f], 8)
        else:
            if f in lds_off: A.wait(lg=[('F', f)])
            else: A.wait(vm=[('F', f)])
            b = v(SL[slot], 8)
        A('v_smfmac_f32_16x16x64_bf16', v(acc, 4), v(areg, 4), b, v(IDX))
    def add2(d, a_, b_):
        A('v_add_f32', v(d), v(a_), v(b_)); A('v_add_f32', v(d + 1), v(a_ + 1), v(b_ + 1))

    A.label(L('entry'))
    A.reset_counts()
    T = [SL[0] + i for i in range(40)]
    ln = T[0]; g = T[1]; c = T[2]
    A('v_and_b32', v(ln), 63, 'v0')
    A('v_lshlrev_b32', v(LANE16), 4, v(ln))
    A('v_lshrrev_b32', v(g), 4, v(ln)); A('v_and_b32', v(c), 15, v(ln))
    A('v_and_b32', v(T[3]), 2, v(ln)); A('v_cmp_ne_u32', 'vcc', 0, v(T[3]))
    A('v_mov_b32', v(T[4]), '0x4444'); A('v_mov_b32', v(T[5]), '0xeeee'); A('v_cndmask_b32', v(IDX), v(T[4]), v(T[5]), 'vcc')
    A('v_and_b32', v(T[3]), 13, v(c)); A('v_and_b32', v(T[4]), 1, v(g)); A('v_lshl_or_b32', v(T[3]), v(T[4]), 1, v(T[3]))
    A('v_lshlrev_b32', v(T[3]), 4, v(T[3])); A('v_lshrrev_b32', v(T[4]), 1, v(g)); A('v_lshl_add_u32', v(FR), v(T[4]), 8, v(T[3]))
    A('v_lshrrev_b32', v(T[3]), 3, v(c)); A('v_lshlrev_b32', v(T[3]), 8, v(T[3]))
    A('v_lshl_add_u32', v(T[3]), v(g), 6, v(T[3]))
    A('v_bfe_u32', v(T[4]), v(c), 2, 1); A('v_lshl_add_u32', v(T[3]), v(T[4]), 5, v(T[3]))
    A('v_and_b32', v(T[4]), 3, v(c)); A('v_lshl_add_u32', v(T[3]), v(T[4]), 2, v(T[3]))
    A('v_add_u32', v(QKW), L_QB + w * 512, v(T[3]))
    A('v_add_u32', v(LDSW), L_WBASE[w], v(LANE16))
    A('v_add_u32', v(KW), L_KB - L_QB, v(QKW))
    A('s_mov_b32', sT0, PIECE)
    A('v_lshrrev_b32', v(T[3]), 3, v(c)); A('v_lshl_add_u32', v(T[3]), v(T[3]), 2, v(g)); A('v_mul_lo_u32', v(T[3]), v(T[3]), sT0)
    A('v_and_b32', v(T[4]), 7, v(c)); A('v_lshl_add_u32', v(PST2), v(T[4]), 3, v(T[3]))
    A('s_mul_i32', sT0, sH, 5); A('s_add_u32', sT0, sT0, groups[0])
    A('v_lshrrev_b32', v(T[3]), 3, v(c)); A('v_add_u32', v(T[3]), sT0, v(T[3]))
    A('v_and_b32', v(T[9]), 3, v(c)); A('v_lshlrev_b32', v(T[9]), 4, v(T[9]))
    A('v_lshl_add_u32', v(T[9]), v(g), 2, v(T[9]))
    A('v_bfe_u32', v(T[8]), v(c), 2, 1); A('v_lshl_add_u32', v(T[9]), v(T[8]), 1, v(T[9]))
    A('v_lshl_add_u32', v(RDEST), v(T[3]), 6, v(T[9]))
    if ng == 1:
        A('v_mov_b32', v(T[6]), '0x40000000'); A('v_cmp_lt_u32', 'vcc', 7, v(c)); A('v_cndmask_b32', v(RDEST), v(RDEST), v(T[6]), 'vcc')
    if w == 3:
        A('v_lshlrev_b32', v(XR + 3), 7, v(ln))
        A('v_mov_b64', v(XR + 6, 2), 0)
        A('v_mov_b32', v(T[6]), '0x40000000'); A('v_cmp_gt_u32', 'vcc', 2, v(ln)); A('v_cndmask_b32', v(XR + 5), v(T[6]), v(XR + 3), 'vcc')
        A('v_cmp_gt_u32', 'vcc', 1, v(ln)); A('v_cndmask_b32', v(XR + 2), v(T[6]), v(XR + 3), 'vcc')
    A('s_mul_i32', sT0, sC, 2 * MEMB_SZ); A('s_add_u32', sMEMc, sT0, MEMB); A('s_add_u32', sMEMo, sMEMc, MEMB_SZ)
    A('s_xor_b32', sDMEM, sMEMc, sMEMo)
    A('s_mul_i32', sT0, sC, PART_SZ); A('s_add_u32', sT0, sT0, PART)
    A('s_lshl_b32', sT1, sH, 6); A('s_add_u32', sPST, sT0, sT1); A('s_add_u32', sPST, sPST, 8 * w * PIECE)
    for p in range(1, 5): A('s_add_u32', sPSTS[p], sPST, 32 * p * PIECE)
    A('s_mul_i32', sT1, sH, 5 * PIECE); A('s_add_u32', sPLD, sT1, sT0); A('s_add_u32', sPLD, sPLD, groups[0] * PIECE)
    A('s_add_u32', sPLD1, sPLD, PIECE)
    A('s_mov_b32', sTAG, 0)
    A('s_lshl_b32', sT0, sC, 5); A('s_add_u32', sT0, sT0, sH)
    A('s_mul_i32', sSTR, sT0, STRM_H); A('s_add_u32', sSTR, sSTR, STRM + 2048 * sum(NSTR[:w]))
    for i in range(1, 5): A('s_add_u32', sSTRS[i], sSTR, 4096 * i)
    A('s_mul_i32', sT0, sC, LAYER_F); A('s_lshl_b32', sT1, sH, 13); A('s_add_u32', sT0, sT0, sT1)
    A('s_add_u32', sVT, sT0, VT + w * 2048); A('s_add_u32', sKF, sT0, KF + w * 2048)
    A('s_mul_i32', sT0, sC, LAYER_KM); A('s_lshl_b32', sT1, sH, 12); A('s_add_u32', sT0, sT0, sT1); A('s_add_u32', sKM, sT0, KM + 1024 * w - 32 * 4096)
    A('s_mul_i32', sT0, sC, FL_LAYER); A('s_lshr_b32', sT1, sH, 1); A('s_mul_i32', sT1, sT1, 3 * 128); A('s_add_u32', sFIN, sT0, sT1); A('s_add_u32', sFIN, sFIN, FL_QKV + 128)
    A('s_and_b32', sT1, sH, 1); A('s_lshl_b32', sT1, sT1, 3); A('s_add_u32', sFIN, sFIN, sT1)
    A('s_lshl_b32', sT1, sH, 7); A('s_add_u32', sFLO, sT0, sT1); A('s_add_u32', sFLO, sFLO, FL_CH)
    A('s_mov_b32', sS, 0); A('s_mov_b32', sPROG, 0); A('s_mov_b32', sDEAD, 0)
    A('s_mov_b32', sSCALE, hex(f32bits(128 ** -0.5 * 1.4426950408889634)))

    SRCQ, SRCO1, SRCO2, TRN, TRO1, TRO2 = AW, AW + 1, AW + 2, AW + 3, AW + 4, AW + 5
    r16 = T[3]; ch = T[4]
    A('v_lshrrev_b32', v(r16), 2, v(ln)); A('v_and_b32', v(ch), 3, v(ln))
    A('v_bfe_u32', v(T[5]), v(r16), 1, 1); A('v_lshlrev_b32', v(T[5]), 3, v(T[5]))
    A('v_bfe_u32', v(T[6]), v(r16), 2, 2); A('v_lshl_add_u32', v(T[5]), v(T[6]), 1, v(T[5]))
    A('v_and_b32', v(T[6]), 1, v(r16)); A('v_add_u32', v(T[5]), v(T[5]), v(T[6]))
    A('v_lshlrev_b32', v(T[5]), 13, v(T[5]))
    A('v_bfe_u32', v(T[6]), v(r16), 3, 1); A('v_lshlrev_b32', v(T[6]), 1, v(T[6])); A('v_xor_b32', v(T[6]), v(ch), v(T[6]))
    A('v_lshl_add_u32', v(T[5]), v(T[6]), 4, v(T[5]))
    A('s_lshl_b32', sT0, sH, 8); A('s_add_u32', sT0, sT0, w * 64); A('v_add_u32', v(SRCQ), sT0, v(T[5]))
    A('v_bfe_u32', v(T[5]), v(r16), 3, 1); A('v_lshlrev_b32', v(T[5]), 4, v(T[5]))
    A('v_bfe_u32', v(T[6]), v(r16), 1, 1); A('v_lshl_add_u32', v(T[5]), v(T[6]), 2, v(T[5]))
    A('v_bfe_u32', v(T[6]), v(r16), 2, 1); A('v_lshl_add_u32', v(T[5]), v(T[6]), 1, v(T[5]))
    A('v_and_b32', v(T[6]), 1, v(r16)); A('v_add_u32', v(T[5]), v(T[5]), v(T[6]))
    A('v_mul_u32_u24', v(T[5]), 1280, v(T[5]))
    A('s_mul_i32', sT0, sH, 163840); A('s_add_u32', sT0, sT0, w * 64); A('v_add_u32', v(T[5]), sT0, v(T[5]))
    A('v_lshl_add_u32', v(SRCO1), v(ch), 5, v(T[5]))
    A('v_lshl_add_u32', v(SRCO2), v(ch), 4, v(T[5]))
    A('v_bfe_u32', v(T[5]), v(ln), 2, 2); A('v_lshl_add_u32', v(T[5]), v(g), 3, v(T[5])); A('v_lshlrev_b32', v(T[5]), 6, v(T[5]))
    A('v_add_u32', v(T[5]), L_WBASE[w], v(T[5]))
    A('v_and_b32', v(T[6]), 1, v(g)); A('v_lshl_add_u32', v(T[6]), v(T[6]), 5, v(T[5])); A('v_lshl_add_u32', v(TRN), v(ch), 3, v(T[6]))
    A('v_xor_b32', v(TRN + 3), 32, v(TRN))
    A('v_lshl_add_u32', v(TRO1), v(ch), 4, v(T[5]))
    A('v_lshrrev_b32', v(T[6]), 1, v(ch)); A('v_lshl_add_u32', v(T[6]), v(T[6]), 5, v(T[5]))
    A('v_and_b32', v(T[7]), 1, v(ch)); A('v_lshl_add_u32', v(TRO2), v(T[7]), 3, v(T[6]))
    CS, CO, CT = AQK, AQK + 1, AQK + 2
    rr = T[5]; ck = T[6]
    A('v_lshlrev_b32', v(ck), 1, v(g)); A('v_xor_b32', v(ck), v(ck), v(c)); A('v_lshlrev_b32', v(ck), 4, v(ck))
    A('v_lshrrev_b32', v(rr), 1, v(g)); A('v_lshlrev_b32', v(rr), 3, v(rr)); A('v_and_b32', v(T[7]), 1, v(g)); A('v_add_u32', v(rr), v(rr), v(T[7]))
    A('v_lshlrev_b32', v(rr), 13, v(rr)); A('s_lshl_b32', sT0, sH, 8); A('v_add3_u32', v(CS), v(rr), v(ck), sT0); A('v_xor_b32', v(CS + 6), 128, v(CS))
    A('v_lshrrev_b32', v(rr), 1, v(g)); A('v_lshlrev_b32', v(rr), 2, v(rr)); A('v_add_u32', v(rr), v(rr), v(T[7]))
    A('v_mul_u32_u24', v(rr), 1280, v(rr)); A('s_mul_i32', sT0, sH, 163840); A('v_add3_u32', v(CO), v(rr), v(ck), sT0); A('v_xor_b32', v(CO + 6), 128, v(CO))
    A('v_bfe_u32', v(rr), v(ln), 2, 2); A('v_lshl_add_u32', v(T[8]), v(T[7]), 2, v(rr)); A('v_lshlrev_b32', v(T[8]), 5, v(T[8]))
    A('v_lshl_add_u32', v(rr), v(g), 3, v(rr)); A('v_lshlrev_b32', v(rr), 8, v(rr)); A('v_add_u32', v(rr), L_W, v(rr))
    for t in range(2):
        A('v_lshl_add_u32', v(T[9]), v(ch), 3, 64 * w + 32 * t) if 64 * w + 32 * t <= 64 else (A('v_lshlrev_b32', v(T[9]), 3, v(ch)), A('v_add_u32', v(T[9]), 64 * w + 32 * t, v(T[9])))
        A('v_xor_b32', v(T[9]), v(T[9]), v(T[8])); A('v_add_u32', v(CT + t), v(T[9]), v(rr))
        A('v_lshrrev_b32', v(T[9]), 1, v(ch)); A('v_lshlrev_b32', v(T[9]), 5, v(T[9])); A('v_and_b32', v(T[10]), 1, v(ch)); A('v_lshl_add_u32', v(T[9]), v(T[10]), 3, v(T[9]))
        A('v_add_u32', v(T[9]), 64 * w + 16 * t, v(T[9]))
        A('v_xor_b32', v(T[9]), v(T[9]), v(T[8])); A('v_add_u32', v(CT + 2 + t), v(T[9]), v(rr))
    for t in range(4): A('v_add_u32', v(CT + 6 + t), 65536, v(CT + t))
    stages = [(X, k, 0) for X in 'qkv' for k in range(10)] + [('o', kp, p) for kp in range(2) for p in range(5)]
    def mine(st, ww):
        X, k, p = st
        return (X, korder(ww).index(k), 0) if X != 'o' else st
    nl_ = {st: sum(1 for ww in range(4) if any(unit_of(f) == mine(st, ww) for f in frag_plan(ww)[10])) for st in stages}
    stages = sorted([st for st in stages if nl_[st] < 4], key=lambda st: nl_[st])
    def cdma(n):
        X, k, p = stages[n]
        for ii in range(4):
            A('s_mov_b32', 'm0', L_W + (n % 8) * 16384 + w * 4096 + ii * 1024)
            if X == 'o':
                A('s_mov_b32', sT0, (64 * k + 32 * (w >> 1) + 8 * (w & 1) + 16 * (ii >> 1) + 2 * (ii & 1)) * 1280 + 256 * p)
                A('buffer_load_dwordx4', v(CO + 6 * (ii >> 1)), SO, sT0, mods='offen lds', tag=('C', n))
            else:
                A('s_mov_b32', sT0, (64 * k + 16 * w + 2 * ii) * 8192)
                A('buffer_load_dwordx4', v(CS + 6 * (ii >> 1)), {'q': SQ, 'k': SK, 'v': SV}[X], sT0, mods='offen lds', tag=('C', n))
    order = list(lds_units)
    pos = {u: i for i, u in enumerate(lds_units)}
    def dma(u):
        X, j, p = u
        for i in range(4):
            A('s_mov_b32', 'm0', L_WBASE[w] + pos[u] * 4096 + i * 1024)
            if X == 'o':
                off = (64 * j + 32 * (i >> 1) + 8 * (i & 1)) * 1280 + 256 * p
                A('s_mov_b32', sT0, off)
                A('buffer_load_dwordx4', v(SRCO2), SO, sT0, mods='offen lds', tag=('U', u))
            else:
                A('s_mov_b32', sT0, (64 * KO[j] + 16 * i) * 8192)
                A('buffer_load_dwordx4', v(SRCQ), {'q': SQ, 'k': SK, 'v': SV}[X], sT0, mods='offen lds', tag=('U', u))
    slot_of = lambda u: (L_WBASE[w] + pos[u] * 4096 - L_W) // 16384
    order = []
    def retire(sl_):
        for u in lds_units:
            if slot_of(u) == sl_: dma(u); order.append(u)
    for n in range(8): cdma(n)
    pend = []
    def flush():
        for f, d in pend:
            i = strm_idx[f]
            A('buffer_store_dwordx4', v(d, 4), v(LANE16), WS, sSTRS[i >> 1], mods=f'offen offset:{(i&1)*2048} sc1', tag='ST')
            A('buffer_store_dwordx4', v(d + 4, 4), v(LANE16), WS, sSTRS[i >> 1], mods=f'offen offset:{(i&1)*2048+1024} sc1', tag='ST')
        pend.clear()
    for n, st in enumerate(stages):
        A.wait(vm=[('C', n)], lg=0)
        A('s_barrier')
        flush()
        if n >= 1 and n + 7 < len(stages): cdma(n + 7)
        if n >= 1 and n + 7 >= len(stages): retire((n - 1) % 8)
        if n + 8 == len(stages): retire(8)
        u = mine(st, w)
        if u in lds_units: continue
        for t in range(2):
            f = (u[0], u[1], 2 * u[2] + t)
            d = resreg[f] if f in resreg else SL[(n & 1) * 2 + t]
            if f in strm_idx: pend.append((f, d))
            ad = CT + t + (2 if u[0] == 'o' else 0) + (6 if (n % 8) >= 4 else 0)
            for q4, ro in enumerate((0, 1024, 8192, 9216)):
                A('ds_read_b64_tr_b16', R(d + 2 * q4, 2), v(ad), mods=f'offset:{(n % 4)*16384 + ro}')
    A.wait(lg=0); A('s_barrier'); flush(); retire((len(stages) - 1) % 8)
    assert len(order) == len(lds_units)
    def consume(u, n):
        X, j, p = u
        A.wait(vm=[('U', u)])
        dst = []
        for t in range(2):
            f = (X, j, 2 * p + t)
            d = resreg[f] if f in resreg else SL[(n & 1) * 2 + t]
            dst.append((f, d))
            if X != 'o': ad, o = (TRN if t == 0 else TRN + 3), 0
            else: ad, o = TRO2, 16 * t
            for q4, ro in enumerate((0, 256, 2048, 2304)):
                A('ds_read_b64_tr_b16', R(d + 2 * q4, 2), v(ad), mods=f'offset:{pos[u]*4096 + ro + o}', tag=('T', u))
        A.wait(lg=0)
        for f, d in dst:
            if f in lds_off:
                A('ds_write_b128', v(LDSW), v(d, 4), mods=f'offset:{lds_off[f]}')
                A('ds_write_b128', v(LDSW), v(d + 4, 4), mods=f'offset:{lds_off[f]+1024}')
            elif f in strm_idx:
                i = strm_idx[f]
                A('s_add_u32', sT1, sSTR, (i >> 1) * 4096)
                A('buffer_store_dwordx4', v(d, 4), v(LANE16), WS, sT1, mods=f'offen offset:{(i&1)*2048}', tag='ST')
                A('buffer_store_dwordx4', v(d + 4, 4), v(LANE16), WS, sT1, mods=f'offen offset:{(i&1)*2048+1024}', tag='ST')
    nd = NOWN[w]
    ownreg = [AW, AW + 4, AV + 4][:nd]
    t0_, t1_, t2_ = AV, AV + 1, AV + 2
    A('v_lshrrev_b32', v(t0_), 4, v(LANE16))
    A('v_bfe_u32', v(t1_), v(t0_), 2, 2); A('v_lshlrev_b32', v(t1_), 1, v(t1_))
    A('v_and_b32', v(t2_), 1, v(t0_)); A('v_add_u32', v(t1_), v(t1_), v(t2_)); A('v_mul_u32_u24', v(t1_), 1280, v(t1_))
    A('v_lshrrev_b32', v(t2_), 4, v(t0_)); A('v_lshl_add_u32', v(t1_), v(t2_), 5, v(t1_))
    A('v_bfe_u32', v(t2_), v(t0_), 1, 1); A('v_lshl_add_u32', v(t1_), v(t2_), 4, v(t1_))
    for j in range(nd): A('buffer_load_dwordx4', v(AQK + 4 + 4 * j, 4), v(t1_), SM0, 0, mods=f'offen offset:{128*KO[j]}')
    A('v_and_b32', v(t2_), 7, v(t0_)); A('v_min_u32', v(AV + 3), 1, v(t2_)); A('v_lshlrev_b32', v(t2_), 2, v(t2_)); A('v_lshl_add_u32', v(t2_), v(AV + 3), 7, v(t2_))
    A('buffer_load_dword', v(AQK), 'off', SDBG, 0, mods='offset:32 sc1')
    A('buffer_load_dword', v(AQK + 1), v(t2_), SDBG, 0, mods='offen sc1')
    A('v_lshlrev_b32', v(t0_), 3, v(LANE16))
    for n, u in enumerate(order):
        consume(u, n)
        if n == len(order) - 2:
            A.wait(vm=['ST'])
            for i in range(3): A('buffer_load_dword', v(AQK + 2), v(t0_), WS, sSTRS[2 * i], mods='offen sc1')
        if n == 0:
            for i in range(2 * ng): A('buffer_load_dwordx4', v(AV + 4, 4), v(LANE16), WS, sPLD if i < 2 else sPLD1, mods=f'offen offset:{(i&1)*1024} sc1')
            A('s_add_u32', sT0, sMEMc, 5120 * w)
            A('buffer_load_dword', v(AQK + 2), v(t0_), WS, sT0, mods='offen sc1')
            if w == 3:
                A('s_sub_u32', sT0, sKF, 3 * 2048); A('buffer_load_dword', v(XR), v(t0_), WS, sT0, mods='offen sc1')
                A('s_add_u32', sT0, sT0, VT - KF); A('buffer_load_dword', v(XR + 1), v(t0_), WS, sT0, mods='offen sc1')
    A.wait(vm=0, lg=0)
    A('v_readfirstlane_b32', sT0, v(AQK)); A('v_cmp_ne_u32', 'vcc', 32 if not env('FORCE_SLOW') else 33, v(AQK + 1))
    A('s_cmp_ge_u32', sT0, 256); A('s_cselect_b32', sT0, 'vcc_lo', 1); A('s_cmp_eq_u32', sT0, 0)
    if not env('DBG'): A('s_cbranch_scc1', L('rdy'))
    ready(A)
    A.label(L('rdy'))
    A('s_mov_b32', 's40', '0x3f803f80'); A('s_mov_b32', 's41', '0x3f803f80')
    for j in range(nd):
        A('ds_write_b128', v(LANE16), v(AQK + 4 + 4 * j, 4), mods=f'offset:{L_MEM + 1024*KO[j]}')
        A('v_mov_b64', v(ownreg[j], 2), v(AQK + 4 + 4 * j, 2)); A('v_mov_b64', v(ownreg[j] + 2, 2), v(AQK + 6 + 4 * j, 2))
    for n in range(5):
        if n in qslot: fill(qslot[n], qk[n])
    A('s_waitcnt', 'lgkmcnt(0)')
    for i in range(0, 16, 2): A('v_mov_b64', v(AQK + i, 2), 0)
    if len(modes) > 1:
        A('s_cmp_lg_u32', sMODE, 0); A('s_cbranch_scc1', f'CHS{w}_start')
    for sc in modes:
        L = lambda nm: f'CH{"S" if sc else "F"}{w}_{nm}'
        A.label(L('start')); A.reset_counts()
        def stamp(i):
            if not dbg or i not in STAMPS: return
            A('s_memtime', s(80 + 2 * STAMPS.index(i), 2))
        def dump():
            A('s_lshl_b32', sT0, sC, 5); A('s_add_u32', sT0, sT0, sH); A('s_lshl_b32', sT0, sT0, 2); A('s_add_u32', sT0, sT0, w)
            A('s_lshl_b32', sT0, sT0, 6); A('s_add_u32', sT0, sT0, DBGT)
            A('s_waitcnt', 'lgkmcnt(0)')
            for i, r_ in enumerate([s(80 + 2 * k) for k in range(11)] + [sDEAD]):
                A('v_mov_b32', v(AV), r_)
                A('buffer_store_dword', v(AV), 'off', WS, sT0, mods=f'offset:{4*i}'); A.vm.pop()
            A('s_waitcnt', 'vmcnt(0)')
        def pub_read(reg, tmp):
            A('v_and_b32', v(tmp), 512, v(LANE16)); A('v_mul_u32_u24', v(tmp), (L_VM - L_KB - 512) // 512, v(tmp)); A('v_add_u32', v(tmp), v(tmp), v(LANE16))
            A('ds_read_b128', v(reg, 4), v(tmp), mods=f'offset:{L_KB + 512*w}', tag='pk')
        def w3upd():
            A('v_min_u32', v(XR), v(XR + 6), v(XR + 7)); A('v_readlane_b32', sT0, v(XR), 0); A('v_readlane_b32', sT3, v(XR), 1)
            A('s_min_u32', sT0, sT0, sT3); A('s_max_u32', sPROG, sPROG, sT0)
        def w3in(need):
            ok = A.newlabel(L('inok')); lp = A.newlabel(L('inlp'))
            A('s_cmp_gt_u32', sPROG, need); A('s_cbranch_scc1', ok)
            A('s_mov_b32', sSPIN, 0)
            A.label(lp)
            A('buffer_load_dwordx2', v(XR + 6, 2), v(XR + 5), WS, sFIN, mods='offen sc1'); A.vm.pop()
            A('s_waitcnt', 'vmcnt(0)')
            w3upd()
            A('s_cmp_gt_u32', sPROG, need); A('s_cbranch_scc1', ok)
            A('s_cmp_lg_u32', sDEAD, 0); A('s_cbranch_scc1', ok)
            A('s_sleep', 2)
            A('s_add_u32', sSPIN, sSPIN, 1); A('s_cmp_lt_u32', sSPIN, SPIN_MAX); A('s_cbranch_scc1', lp)
            A('s_mov_b32', sDEAD, 1)
            A.label(ok)
        def w3prep():
            A('s_add_u32', sFOV, sS, 1)
            if env('SPECPF', 1): A('s_cmp_lt_u32', sFOV, nsteps)
            else: A('s_cmp_gt_u32', sPROG, sFOV)
            A('s_cselect_b32', sT0, 0, (0 if X_NOADV else 32 * 8192)); A('s_sub_u32', sPFK, sKF, sT0); A('s_sub_u32', sPFK, sPFK, 3 * 2048)
            A('s_add_u32', sPFV, sPFK, VT - KF)
            if env('FLSEL', 1): A('s_add_u32', sT0, sS, 2); A('s_cmp_gt_u32', sPROG, sT0); A('s_cselect_b32', sPFV, '0x20000000', sFIN)
            A('s_max_u32', sT0, sS, 1); A('s_sub_u32', sT0, sT0, 1); A('v_mov_b32', v(XR + 4), sT0)
        def kdma():
            A('s_mov_b32', 'm0', L_KX + w * 2048)
            for i in range(2): A('buffer_load_dwordx4', v(LANE16), WS, sKF, mods=f'offen offset:{i*1024} {KVMOD} lds')
            if not X_NOADV: A('s_add_u32', sKF, sKF, 32 * 8192)
        if w == 3: w3in(sS)
        A('s_barrier')
        kdma()
        if w == 3: w3prep()
        A('s_waitcnt', 'vmcnt(0) lgkmcnt(0)')
        A.label(L('loop'))
        A.reset_counts()
        stamp('top')
        accq = {('q', 0): AQK, ('q', 1): AQK + 4, ('k', 0): AQK + 8, ('k', 1): AQK + 12}
        awin = [AW, AW + 4, AV + 4, AW, AW + 4, AV, AV + 4, AV, AW, AW + 4]
        aat = {3: 3, 4: 7, 5: PUBAT + 1, 6: 11, 7: 23, 8: 15, 9: 19}
        def aread(j, reg, tag):
            A('ds_read_b128', v(reg, 4), v(LANE16), mods=f'offset:{L_MEM + 1024*KO[j]}', tag=tag)
        kfr = {}
        def kread(tk, reg):
            t, kp = tk
            kfr[tk] = reg
            if t == 0: A('ds_read_b128', v(reg, 4), v(FR), mods=f'offset:{L_KB + 512*kp}', tag=('K', tk))
            else: A('ds_read_b128', v(reg, 4), v(LANE16), mods=f'offset:{L_KX + ((t-1)*4+kp)*1024}', tag=('K', tk))
        NPRE = 0
        side = {}
        def at(n, fn): side.setdefault(n, []).append(fn)
        for n0, st, s2, fi in qfill:
            at(n0, lambda s2=s2, fi=fi: half_fill(s2, qk[fi], 0)); at(n0 + st, lambda s2=s2, fi=fi: half_fill(s2, qk[fi], 1))
        if dbg:
            def st8():
                sk = A.newlabel(L('st8'))
                A('s_cmp_lg_u32', sS, 8); A('s_cbranch_scc1', sk); A('s_mov_b32', 's100', 's80'); A.label(sk)
            at(20, st8)
        for n0, tk, reg in [(30, (1, 0), SL[kslots[0]]), (31, (2, 0), SL[kslots[0]] + 4), (36, (1, 1), SL[kslots[1]]), (37, (2, 1), SL[kslots[1]] + 4)]:
            at(n0, lambda tk=tk, reg=reg: kread(tk, reg))
        def vxload(hf):
            A('buffer_load_dwordx4', v(SL[1] + 4 * hf, 4), v(LANE16), WS, sVT, mods=f'offen offset:{1024*hf} {KVMOD}', tag='vx')
        if env('LATEPO', 0):
            pr = XR + 2 if w == 3 else SL[0] + 7
            at(0, lambda: A('v_mov_b32', v(pr), hex(SENT)))
            at(1, lambda: A('buffer_store_short', v(pr), v(RDEST), WS, sMEMc, mods=f'offen {sc}'.strip()))
        VXAT = env('VXAT', 6)
        if env('X_KTOP') == 1: at(0, kdma)
        at(VXAT, lambda: vxload(0)); at(VXAT + 2, lambda: vxload(1))
        if w == 3:
            if not X_NOPF:
                at(PUBAT + env('KPAT', 1), lambda: A('buffer_load_dword', v(XR), v(XR + 3), WS, sPFK, mods='offen sc1'))
                if not env('NOVPF', 1): at(PUBAT + 3, lambda: A('buffer_load_dword', v(XR + 1), v(XR + 3), WS, sPFV, mods='offen sc1'))
            if not X_NOFLAG: at(PUBAT + env('FLAT', 5), lambda: A('buffer_load_dwordx2', v(XR + 6, 2), v(XR + 5), WS, sPFV if env('FLSEL', 1) else sFIN, mods='offen sc1'))
            if not X_NOPUB:
                if env('CHFLAG'): at(PUBAT + 6, lambda: A('buffer_store_dword', v(XR + 4), v(XR + 2), WS, sFLO, mods='offen sc1'))
                if env('DBG') == 2: at(PUBAT + 7, lambda: (tstamp(A, sFLO, sS, XR + 4), A.vm.append(None)))
        def pub2():
            if not X_NOPUB and not env('X_NOKM'): A('buffer_store_dwordx4', v(AV, 4), v(LANE16), WS, sKM, mods='offen ' + os.environ.get('PUBMOD', 'sc1'))
        at(PUBAT, pub2)
        at(28, lambda: A('v_mov_b64', v(AV + 4, 2), 0)); at(29, lambda: A('v_mov_b64', v(AV + 6, 2), 0))
        at(32, lambda: A('v_mov_b64', v(AV, 2), 0)); at(33, lambda: A('v_mov_b64', v(AV + 2, 2), 0))
        A('s_barrier'); stamp('b1')
        if nd == 2: aread(2, awin[2], ('A', 2))
        A('v_mov_b32', v(AQK + 15), 0)
        for n in range(NPRE, 40):
            f = qk[n]; j = f[1]
            if (n & 1) == 0: A.wait(lg=[('A', j)] + [('F', qk[m]) for m in (n, n + 1) if qk[m] in lds_off])
            stamp(f'q{n}')
            smf(accq[(f[0], f[2])], awin[j], f, qslot.get(n))
            for j2, n2 in aat.items():
                if n2 == n: aread(j2, awin[j2], ('A', j2))
            for fn in side.get(n, []): fn()
        vj = [9, 8, 0, 1, 2, 3, 4, 5, 6, 7]
        vq = []
        for idx, j in enumerate(vj):
            reg = AW + 4 if idx % 2 == 0 else AW
            vq.append((j, 0, reg, idx)); vq.append((j, 1, reg, idx))
        vstate = {'i': 0, 'p': 0}
        def vpass(cnt):
            for _ in range(cnt):
                if vstate['i'] >= 20: return
                j, t, reg, idx = vq[vstate['i']]; vstate['i'] += 1
                if t == 0 and idx >= 2: A.wait(lg=[('B', idx)])
                smf(AV + 4 * t, reg, ('v', j, t), None)
                if t == 1 and idx + 2 < 10: aread(vj[idx + 2], reg, ('B', idx + 2))
        stamp(0)
        add2(AQK, AQK, AQK + 2); add2(AQK + 4, AQK + 4, AQK + 6)
        for r_ in (AQK, AQK + 4, AQK + 1, AQK + 5): A('v_mul_f32', v(r_), sSCALE, v(r_))
        A('v_cvt_pk_bf16_f32', v(AQK + 2), v(AQK), v(AQK + 4)); A('v_cvt_pk_bf16_f32', v(AQK + 3), v(AQK + 1), v(AQK + 5))
        A('ds_write2_b32', v(QKW), v(AQK + 2), v(AQK + 3), mods='offset0:0 offset1:4', tag='qw')
        add2(AQK + 8, AQK + 8, AQK + 10); add2(AQK + 12, AQK + 12, AQK + 14)
        A('v_cvt_pk_bf16_f32', v(AQK + 10), v(AQK + 8), v(AQK + 12)); A('v_cvt_pk_bf16_f32', v(AQK + 11), v(AQK + 9), v(AQK + 13))
        A('ds_write2_b32', v(KW), v(AQK + 10), v(AQK + 11), mods='offset0:0 offset1:4', tag='qw')
        vpass(env('VP1', 4))
        A.wait(lg=['qw']); A('s_barrier'); stamp('b2')
        qreg = [SL[qslots[0]], SL[qslots[0]] + 4, SL[qslots[1]], SL[qslots[1]] + 4]
        A('ds_read_b128', v(qreg[0], 4), v(FR), mods=f'offset:{L_QB}', tag=('Q', 0))
        A('ds_read_b128', v(qreg[1], 4), v(FR), mods=f'offset:{L_QB + 512}', tag=('Q', 1))
        kread((0, 0), AQK + 12)
        for kp in range(2, 4): A('ds_read_b128', v(qreg[kp], 4), v(FR), mods=f'offset:{L_QB + 512*kp}', tag=('Q', kp))
        vpass(env('VP2', 4))
        sacc = {0: AQK, 1: AQK + 4, 2: AQK + 8}
        sc_order = [(1, 0), (2, 0), (1, 1), (2, 1), (0, 0), (0, 1), (1, 2), (2, 2), (0, 2), (0, 3), (1, 3), (2, 3)]
        pending = sc_order[5:]
        pf = []
        for n in opre:
            pf.append((oslot[n], oo[n], 0)); pf.append((oslot[n], oo[n], 1))
        def pfill(cnt=1):
            for _ in range(cnt):
                if pf: half_fill(*pf.pop(0))
        for tk in sc_order:
            t, kp = tk
            A.wait(lg=[('K', tk), ('Q', kp)])
            A('v_mfma_f32_16x16x32_bf16', v(sacc[t], 4), v(kfr[tk], 4), v(qreg[kp], 4), '0' if kp == 0 else v(sacc[t], 4))
            if pending: kread(pending.pop(0), kfr[tk])
        stamp('sc')
        vpass(1); pfill(); vpass(1); pfill()
        vals = [AQK, AQK + 1] + [AQK + 4 + i for i in range(8)]
        mx = AQK + 2; tm = AQK + 3
        A('v_max3_f32', v(mx), v(vals[0]), v(vals[1]), v(vals[2])); A('v_max3_f32', v(tm), v(vals[3]), v(vals[4]), v(vals[5]))
        A('v_max3_f32', v(mx), v(mx), v(vals[6]), v(vals[7])); A('v_max3_f32', v(tm), v(tm), v(vals[8]), v(vals[9]))
        A('v_max_f32', v(mx), v(mx), v(tm)); A('v_max_f32', v(tm), v(mx), v(tm))
        vpass(1); pfill()
        A('v_permlane32_swap_b32', v(tm), v(mx)); A('v_max_f32', v(mx), v(mx), v(tm)); A('v_max_f32', v(tm), v(mx), v(tm))
        vpass(1)
        A('v_permlane16_swap_b32', v(tm), v(mx)); A('v_max_f32', v(mx), v(mx), v(tm))
        stamp('s1')
        order = vals[2:] + vals[:2]
        for i, r_ in enumerate(order):
            A('v_sub_f32', v(r_), v(r_), v(mx))
            if i >= 1: A('v_exp_f32', v(order[i - 1]), v(order[i - 1]))
            if i < 8: vpass(1)
            if i % 3 == 1: pfill()
            if i in (3, 5, 7, 9): A('v_cvt_pk_bf16_f32', v(AQK + 12 + (i - 3) // 2), v(order[i - 3]), v(order[i - 2]))
            if i == 6: A('v_mov_b64', v(AQK + 4, 2), sONES); A('v_mov_b64', v(AQK + 6, 2), sONES)
        A('v_exp_f32', v(order[9]), v(order[9]))
        stamp('s2')
        vpass(20)
        A('v_mov_b32', v(AQK + 3), 0)
        stamp(2)
        A('v_cvt_pk_bf16_f32', v(AQK + 2), v(AQK), v(AQK + 1))
        A.wait(vm=['vx'])
        A('v_mfma_f32_16x16x32_bf16', v(AQK + 8, 4), v(AQK + 4, 4), v(AQK + 12, 4), '0')
        add2(AV, AV, AV + 2)
        A('v_mfma_f32_16x16x32_bf16', v(AW, 4), v(SL[1], 4), v(AQK + 12, 4), '0')
        add2(AV + 4, AV + 4, AV + 6)
        A('v_mfma_f32_16x16x32_bf16', v(AW + 4, 4), v(SL[1] + 4, 4), v(AQK + 12, 4), '0')
        A('v_cvt_pk_bf16_f32', v(AV + 2), v(AV), v(AV + 1)); A('v_cvt_pk_bf16_f32', v(AV + 3), v(AV + 4), v(AV + 5))
        A('v_mfma_f32_16x16x16_bf16', v(AQK + 8, 4), v(AQK + 4, 2), v(AQK + 2, 2), v(AQK + 8, 4))
        A('v_cvt_pk_bf16_f32', v(AV + 4), v(AV + 4), v(AV + 5)); A('v_mov_b32', v(AV + 5), 0)
        stamp('p1')
        A('v_mfma_f32_16x16x16_bf16', v(AW, 4), v(AV + 2, 2), v(AQK + 2, 2), v(AW, 4))
        pfill(2)
        A('v_mfma_f32_16x16x16_bf16', v(AW + 4, 4), v(AV + 4, 2), v(AQK + 2, 2), v(AW + 4, 4))
        stamp('p2')
        pf.append((oslot[e_], oo[e_], 0)); pf.append((oslot[e_], oo[e_], 1))
        pfill(1)
        sm = AQK
        A('v_lshrrev_b32', v(AV + 6), 1, v(LANE16))
        A('ds_write_b64', v(AV + 6), v(AV + 2, 2), mods=f'offset:{L_VM + 512*w}', tag='ow')
        A('v_rcp_f32', v(sm), v(AQK + 8))
        for i in (4, 6): A('v_mov_b64', v(AQK + i, 2), 0)
        for i in range(4):
            A('v_mul_f32', v(AW + 2 * i), v(AW + 2 * i), v(sm)); A('v_mul_f32', v(AW + 2 * i + 1), v(AW + 2 * i + 1), v(sm))
            A('v_cvt_pk_bf16_f32', v(AQK + 8 + i), v(AW + 2 * i), v(AW + 2 * i + 1))
        A('ds_write_b128', v(FR), v(AQK + 8, 4), mods=f'offset:{L_O + 512*w}', tag='ow')
        stamp('p3')
        pfill(3)
        for i in (0, 2, 12, 14): A('v_mov_b64', v(AQK + i, 2), 0)
        for i in (0, 4): A('v_mov_b64', v(AV + i, 2), 0)
        stamp('p4')
        A.wait(lg=['ow']); A('s_barrier')
        A('ds_read_b128', v(AW, 4), v(LANE16), mods=f'offset:{L_O}', tag='oa0')
        A('ds_read_b128', v(AW + 4, 4), v(LANE16), mods=f'offset:{L_O+1024}', tag='oa1')
        pfill()
        A('s_cmp_eq_u32', sS, nsteps - 1)
        A('s_cbranch_scc1', L('last'))
        if dbg and env('FRZ'):
            A('s_cmp_lg_u32', sS, env('FRZ')); A('s_cbranch_scc1', L('nofrz'))
            A('s_memtime', 's[100:101]'); dump(); A('v_mov_b32', v(AV), 0)
            A.label(L('nofrz'))
        for i in (8, 10): A('v_mov_b64', v(AQK + i, 2), 0)
        for i in (2, 6): A('v_mov_b64', v(AV + i, 2), 0)
        assert not pf
        stamp(3)
        accs = [AQK, AQK + 4, AQK + 8, AQK + 12, AV, AV + 4]
        tacc = {t: t % 6 for t in range(10)}
        def post_ops(t):
            r_ = accs[tacc[t]]; st = accs[tacc[t & ~1]] + (t & 1)
            ops = [lambda: A('v_add_f32', v(r_), v(r_), v(r_ + 2)), lambda: A('v_add_f32', v(r_ + 1), v(r_ + 1), v(r_ + 3)),
                   lambda: A('v_cvt_pk_bf16_f32', v(st), v(r_), v(r_ + 1))]
            if t % 2 == 0: ops.append(lambda: A('v_and_or_b32', v(st), v(st), -2, sTAG))
            else:
                ops.append(lambda: A('buffer_store_dwordx2', v(st - 1, 2), v(PST2), WS, sPSTS[t >> 1], mods=f'offen {sc}'.strip(), tag='ps'))
                if t < 4:
                    for rr in (r_, r_ + 2, st + 1, st - 1): ops.append(lambda rr=rr: A('v_mov_b64', v(rr, 2), 0))
            return ops
        oside = {}
        def oat(n, fn): oside.setdefault(n, []).append(fn)
        for a_, b_ in [(ab[i] + k, ab[i + 1] + k) for i in range(3) for k in range(2)]:
            oat(a_, lambda b_=b_: fill(oslot[b_], oo[b_]))
        for n0, (qi, _) in zip((cd, cd + env('HS', 3), max(e_, cd + 2 * env('HS', 3))), held):
            oat(n0, lambda qi=qi: half_fill(qslot[qi], qk[qi], 0)); oat(n0 + (2 if env('HS', 3) > 2 else 1), lambda qi=qi: half_fill(qslot[qi], qk[qi], 1))
        vq_ = []
        for n, f in enumerate(oo):
            if n % 2 == 0:
                pr = [oo[n], oo[n + 1]]
                A.wait(lg=(['oa0'] if n == 0 else ['oa1'] if n == 2 else []) + [('F', x) for x in pr if x in lds_off], vm=[('F', x) for x in pr if x in strm_idx])
            if f[1] == 0 and f[2] >= 6:
                need = {6: 1, 7: 1, 8: 3, 9: 3}[f[2]]
                while any(t == need for t, _ in vq_): vq_.pop(0)[1]()
            stamp(f'o{n}')
            smf(accs[tacc[f[2]]], AW + 4 * f[1], f, oslot.get(n))
            for fn in oside.get(n, []): fn()
            for t in range(10):
                if 4 * (t >> 1) + 2 + (t & 1) + 3 == n: vq_ += [(t, o_) for o_ in post_ops(t)]
            for _ in range(3):
                if vq_: vq_.pop(0)[1]()
        while vq_: vq_.pop(0)[1]()
        for t in (8, 9):
            for o_ in post_ops(t): o_()
        stamp(4)
        if env('ACKT'): A('s_waitcnt', 'vmcnt(0)'); stamp('ack')
        def b4():
            if w == 3: w3upd(); w3in(sFOV); A('s_mov_b32', sSPIN, 0)
            A('s_barrier')
        if not env('B4LATE', 0): b4()
        ra = AV + 4
        setreg = [AQK, AQK + 8 if ng == 1 else SL[2]]
        A('s_mov_b32', sSPIN, 0)
        A('v_bfe_u32', v(ra + 1), v(LANE16), 4, 1); A('v_lshlrev_b32', v(ra + 1), 4, v(ra + 1))
        A('v_mov_b32', v(ra + 2), '0x3f80'); A('v_lshlrev_b32', v(ra + 1), v(ra + 1), v(ra + 2))
        A('v_bfe_u32', v(ra + 2), v(LANE16), 5, 3)
        def rloads(st):
            for i in range(2 * ng):
                A('buffer_load_dwordx4', v(setreg[st] + 4 * i, 4), v(LANE16), WS, sPLD if i < 2 else sPLD1, mods=f'offen offset:{(i&1)*1024} sc1')
        sel = lambda jj: (A('v_cmp_eq_u32', 'vcc', jj, v(ra + 2)), A('v_cndmask_b32', v(AW + jj), 0, v(ra + 1), 'vcc'))
        if env('RSL', 0) >= 0:
            for jj in range(4): sel(jj)
            if env('RSL', 0): A('s_sleep', env('RSL', 0))
            rloads(0)
            for jj in range(4, 4 * ng): sel(jj)
            if env('B4LATE', 0):
                b4()
                if env('RSL3', 2): A('s_sleep', env('RSL3', 2))
            elif ng == 1 or env('RSL2', 3) > 1: A('s_sleep', env('RSL2', 3) - (ng - 1))
        else:
            for jj in range(RDELAY): sel(jj % (4 * ng))
            rloads(0)
            for jj in range(max(RGAP, 4 * ng - RDELAY)): sel((RDELAY + jj) % (4 * ng))
        rloads(1)
        for jj in range(env('RFILL', 0)): sel(jj % (4 * ng))
        A.label(L('rloop'))
        for st in range(2):
            A('s_waitcnt', f'vmcnt({2*ng})')
            stamp('r1')
            for i in range(2 * ng):
                b = setreg[st] + 4 * i
                A('v_mfma_f32_16x16x32_bf16', v(AV, 4), v(b, 4), v(AW + 4 * (i >> 1), 4), '0' if i == 0 else v(AV, 4))
                if i == 0:
                    A('v_and_b32', v(ra + 1), v(b), v(b + 2)); A('v_or_b32', v(ra + 2), v(b), v(b + 2))
                else:
                    A('v_bitop3_b32', v(ra + 1), v(ra + 1), v(b), v(b + 2), mods='bitop3:0x80'); A('v_or3_b32', v(ra + 2), v(ra + 2), v(b), v(b + 2))
            A('v_bitop3_b32', v(ra + 1), v(ra + 1), v(ra + 2), sTAG, mods='bitop3:0x4e')
            A('v_and_b32', v(ra + 1), 1, v(ra + 1))
            A('v_cmp_ne_u32', 'vcc', 0, v(ra + 1))
            A('v_permlane32_swap_b32', v(AV), v(AV + 2)); A('v_permlane32_swap_b32', v(AV + 1), v(AV + 3))
            add2(AV, AV, AV + 2)
            A('s_cbranch_vccnz', L(f'rbad{st}'))
            if st == 1: A.label(L('rok'))
            A('v_permlane16_swap_b32', v(AV), v(AV + 1)); A('v_add_f32', v(AV), v(AV), v(AV + 1))
            A('v_cvt_pk_bf16_f32', v(AV), v(AV), v(AV))
            A('buffer_store_short', v(AV), v(RDEST), WS, sMEMc, mods=f'offen {sc}'.strip())
            A('s_branch', L('rdone'))
            A.label(L(f'rbad{st}'))
            rloads(st)
        A('s_cmp_lg_u32', sDEAD, 0); A('s_cbranch_scc1', L('rok'))
        A('s_add_u32', sSPIN, sSPIN, 1)
        A('s_cmp_lt_u32', sSPIN, SPIN_MAX); A('s_cbranch_scc1', L('rloop'))
        A('s_mov_b32', sDEAD, 1)
        A('s_branch', L('rok'))
        A.label(L('rdone'))
        stamp(5)
        if not env('LATEPO', 0):
            A('v_mov_b32', v(AV + 1), hex(SENT))
            A('buffer_store_short', v(AV + 1), v(RDEST), WS, sMEMo, mods=f'offen {sc}'.strip())
        A.reset_counts()
        xl = 0
        if env('X_KTOP'): xl -= 2
        else: kdma()
        pub_read(AV, AV + 4)
        A('s_add_u32', sT2, sMEMc, 1024 * KOWN[w])
        A('s_xor_b32', sTAG, sTAG, 1); A('s_add_u32', sKM, sKM, 32 * 4096)
        A('s_xor_b32', sMEMc, sMEMc, sDMEM); A('s_xor_b32', sMEMo, sMEMo, sDMEM)
        if not X_NOADV: A('s_add_u32', sVT, sVT, 32 * 8192)
        A('s_add_u32', sS, sS, 1)
        A('s_mov_b32', sSPIN, 0)
        A('s_mov_b32', 'm0', L_MEM + 1024 * KOWN[w])
        def gdma():
            for j in range(nd): A('buffer_load_dwordx4', v(LANE16), WS, sT2, mods=f'offen offset:{1024*j} sc1 lds')
        if w == 3: w3prep()
        if env('GSL', 3) >= 0: A('s_sleep', env('GSL', 3))
        else:
            for i in range(GDELAY - (8 if w == 3 else 0)): A('v_mov_b32', v(AW + (i % 8)), 0)
        gdma()
        A('s_waitcnt', f'vmcnt({(3 if env("LATEPO", 0) else 4) + nd + xl})')
        fill(qslot[2], qk[2]); fill(qslot[3], qk[3])
        for i in range(0, 16, 2): A('v_mov_b64', v(AQK + i, 2), 0)
        if env('GSL', 3) >= 0: A('s_sleep', env('GSL2', 2))
        else:
            for i in range(env('GGAP', 24)): A('v_mov_b32', v(AW + (i % 8)), 0)
        if env('GLATE', 1):
            A.label(L('gloop'))
            gdma()
            A('s_waitcnt', f'vmcnt({nd})')
            for j in range(nd): A('ds_read_b128', v(ownreg[j], 4), v(LANE16), mods=f'offset:{L_MEM + 1024*KO[j]}')
        else:
            gdma()
            A.label(L('gloop'))
            A('s_waitcnt', f'vmcnt({nd})')
            for j in range(nd): A('ds_read_b128', v(ownreg[j], 4), v(LANE16), mods=f'offset:{L_MEM + 1024*KO[j]}')
            gdma()
        gregs = [r_ + i for r_ in ownreg for i in range(4)]
        A('s_waitcnt', f'lgkmcnt({nd-1})')
        m0_ = AQK + 15
        A('v_pk_max_u16', v(m0_), v(gregs[0]), v(gregs[1]))
        for i in range(2, len(gregs)):
            if i % 4 == 0: A('s_waitcnt', f'lgkmcnt({nd-1-i//4})')
            A('v_pk_max_u16', v(m0_), v(m0_), v(gregs[i]))
        emit_check(A, m0_, AQK + 14, gregs, L('gloop'), L('loop'), define=False)
        A('s_branch', L('loop'))
        A.label(L('last'))
        A.reset_counts()
        pub_read(AV, AV + 4); A('s_add_u32', sKM, sKM, 32 * 4096)
        A('s_waitcnt', 'lgkmcnt(0)')
        A('buffer_store_dwordx4', v(AV, 4), v(LANE16), WS, sKM, mods='offen sc1')
        A('s_waitcnt', 'vmcnt(0)')
        A('s_barrier')
        if w == 3:
            A('v_mov_b32', v(XR), nsteps)
            A('s_mov_b64', 'exec', 1)
            A('buffer_store_dword', v(XR), 'off', WS, sFLO, mods='sc1')
            A('s_mov_b64', 'exec', -1)
        if dbg and not env('FRZ'): dump()
        A('s_waitcnt', 'vmcnt(0) lgkmcnt(0)')
        A('s_endpgm')

def emit_check(A, m0, m1, regs, retry, ok, define=True):
    A('v_pk_max_u16', v(m0), v(m0), v(m0), mods='op_sel:[0,1] op_sel_hi:[1,0]')
    A('v_cmp_le_u32', 'vcc', '0xff810000', v(m0))
    A('s_cbranch_vccz', ok)
    A('s_add_u32', sSPIN, sSPIN, 1)
    A('s_cmp_lt_u32', sSPIN, 64); A('s_cbranch_scc1', retry)
    A('s_cmp_lg_u32', sDEAD, 0); A('s_cbranch_scc1', ok)
    A('v_mov_b32', v(m0), -1)
    for r_ in regs:
        A('v_xor_b32', v(m1), hex(SENT), v(r_)); A('v_pk_min_u16', v(m0), v(m0), v(m1))
    A('v_pk_min_u16', v(m0), v(m0), v(m0), mods='op_sel:[0,1] op_sel_hi:[1,0]')
    A('v_mov_b32', v(m1), 0)
    A('v_cmp_eq_u32', 'vcc', 0, v(m0))
    A('s_cbranch_vccz', ok)
    A('s_sleep', 1)
    A('s_cmp_lt_u32', sSPIN, SPIN_MAX); A('s_cbranch_scc1', retry)
    A('s_mov_b32', sDEAD, 1)
    if define: A.label(ok)
```

```python
from asmgen import *
from common import *
from layout import *
import chain, bulk
from chain import SDBG, WS, sMODE
from prologue import emit_srds
import sys, os
NAME = 'interleave_layers__memory_aug_recurrent_mem_tr__dense_activation_relu__prompt'
ROLES = os.environ.get('ROLES', 'chain,qkv,att,op,lna,ln,f1,f2').split(',')
NOINIT = int(os.environ.get('NOINIT', 0))
FORCE_SLOW = int(os.environ.get('FORCE_SLOW', 0))
DBG = int(os.environ.get('DBG', 0))
sW, sI, sL = 's52', 's53', 's54'
sX, sR, sV = 's97', 's98', 's99'
CHDBG = int(os.environ.get('CHDBG', 0))
T0, T1, T2 = 's70', 's71', 's72'

def build():
    A = Asm()
    A('s_cmp_ge_u32', 's2', 256); A('s_cbranch_scc1', 'L_end')
    emit_srds(A)
    if DBG:
        A('s_memrealtime', 's[90:91]'); A('s_waitcnt', 'lgkmcnt(0)'); A('v_mov_b32', 'v1', 's90'); A('s_lshl_b32', T0, 's2', 2); A('s_add_u32', T0, T0, DBGT + (1 << 19))
        A('buffer_store_dword', 'v1', 'off', WS, T0)
    A('s_getreg_b32', sX, 'hwreg(HW_REG_XCC_ID)'); A('s_and_b32', sX, sX, 15)
    A('v_lshrrev_b32', 'v1', 6, 'v0'); A('v_readfirstlane_b32', sW, 'v1')
    A('s_mov_b32', sMODE, 0)
    def init_and_arrive(first):
        t = 'a' if first else 'b'
        A('v_mbcnt_lo_u32_b32', 'v1', -1, 0); A('v_mbcnt_hi_u32_b32', 'v1', -1, 'v1'); A('v_lshlrev_b32', 'v2', 4, 'v1')
        A('s_cmp_lg_u32', sW, 0); A('s_cbranch_scc1', 'L_w123' + t)
        if first:
            A('s_mov_b64', 'exec', 1)
            A('v_mov_b32', 'v8', 1); A('s_lshl_b32', T0, sX, 2); A('s_add_u32', T0, T0, 128); A('s_cmp_eq_u32', sX, 0); A('s_cselect_b32', T0, 0, T0)
            A('buffer_atomic_add', 'v8', 'off', SDBG, T0, mods='sc0')
            A('s_waitcnt', 'vmcnt(0)')
            A('v_mov_b32', 'v3', 0); A('ds_write_b32', 'v3', 'v8')
        A('s_mov_b64', 'exec', '0xffffffff')
        for i in range(4): A('v_mov_b32', v(4 + i), 0)
        A('s_lshl_b32', T0, 's2', 9)
        if first:
            A('s_sub_u32', T1, T0, FL_XN); A('s_cmp_lt_u32', T1, 2048); A('s_cselect_b32', T0, '0x20000000', T0)
        A('buffer_store_dwordx4', 'v[4:7]', 'v2', WS, T0, mods='offen sc1')
        A('s_mov_b64', 'exec', -1)
        A('s_branch', 'L_join' + t)
        A.label('L_w123' + t)
        for i in range(4): A('v_mov_b32', v(4 + i), hex(SENT))
        A('s_mul_i32', T0, 's2', 3072); A('s_lshl_b32', T1, sW, 10); A('s_add_u32', T0, T0, T1); A('s_add_u32', T0, T0, POISON_LO - 1024)
        A('buffer_store_dwordx4', 'v[4:7]', 'v2', WS, T0, mods='offen sc1')
        A.label('L_join' + t)
    init_and_arrive(True)
    A('s_waitcnt', 'lgkmcnt(0)'); A('s_barrier')
    A('v_mov_b32', 'v3', 0); A('ds_read_b32', 'v9', 'v3'); A('s_waitcnt', 'lgkmcnt(0)')
    A('v_readfirstlane_b32', sR, 'v9')
    xm = [int(c) for c in os.environ.get('XMAP', '01234567')]
    A('s_min_u32', T0, sX, 8); A('s_cmp_ge_u32', sX, 8); A('s_cbranch_scc1', 'L_nomap')
    A('s_lshl_b32', T0, sX, 2); A('s_lshr_b32', sX, hex(sum(x << (4 * i) for i, x in enumerate(xm))), T0); A('s_and_b32', sX, sX, 15)
    A.label('L_nomap')
    A('s_lshl_b32', sV, sX, 5); A('s_add_u32', sV, sV, sR)
    A('s_sub_u32', T0, sR, 20); A('s_cmp_lt_u32', T0, 8); A('s_cbranch_scc0', 'L_noown')
    A('s_lshl_b32', T0, T0, 8); A('s_lshl_b32', T1, sW, 2); A('s_add_u32', T0, T0, T1); A('s_add_u32', T0, T0, FL_XN)
    A('s_cmp_eq_u32', sX, 2); A('s_cbranch_scc1', 'L_own')
    A('s_add_u32', T0, T0, 128); A('s_cmp_eq_u32', sX, 5); A('s_cbranch_scc0', 'L_noown')
    A.label('L_own')
    A('buffer_store_dword', 'v3', 'off', WS, T0, mods='sc1')
    A.label('L_noown')
    A('s_waitcnt', 'vmcnt(0)'); A('s_barrier')
    A('s_cmp_lg_u32', sW, 0); A('s_cbranch_scc1', 'L_arr')
    A('s_mov_b64', 'exec', 1); A('v_mov_b32', 'v9', 1)
    A('buffer_atomic_add', 'v9', 'off', SDBG, 0, mods='offset:32')
    A('s_mov_b64', 'exec', -1)
    A.label('L_arr')
    A('s_cmp_ge_u32', sR, 32); A('s_cbranch_scc1', 'L_slow')
    A('s_cmp_ge_u32', sX, 8); A('s_cbranch_scc0', 'L_dispatch')
    A.label('L_slow')
    A('s_waitcnt', 'vmcnt(0) lgkmcnt(0)'); A('s_barrier')
    init_and_arrive(False)
    A('s_waitcnt', 'vmcnt(0)'); A('s_barrier')
    A('s_cmp_lg_u32', sW, 0); A('s_cbranch_scc1', 'L_arr2')
    A('s_mov_b64', 'exec', 1); A('v_mov_b32', 'v9', 1)
    A('buffer_atomic_add', 'v9', 'off', SDBG, 0, mods='offset:36')
    A('s_mov_b64', 'exec', -1)
    A('s_mov_b32', 's68', 0)
    A.label('L_poll2')
    A('buffer_load_dword', 'v9', 'off', SDBG, 0, mods='offset:36 sc1'); A('s_waitcnt', 'vmcnt(0)')
    A('v_readfirstlane_b32', T0, 'v9'); A('s_cmp_ge_u32', T0, 256); A('s_cbranch_scc1', 'L_arr2')
    A('s_sleep', 8)
    A('s_add_u32', 's68', 's68', 1); A('s_cmp_lt_u32', 's68', chain.SPIN_MAX); A('s_cbranch_scc1', 'L_poll2')
    A.label('L_arr2')
    A('s_barrier')
    A('s_mov_b32', sMODE, 1); A('s_mov_b32', sV, 's2')
    A('v_mov_b32', 'v0', 'v1')
    A.label('L_dispatch')
    A('s_lshr_b32', sX, sV, 5); A('s_and_b32', sR, sV, 31)
    if DBG:
        A('s_memrealtime', 's[90:91]'); A('s_waitcnt', 'lgkmcnt(0)'); A('v_mov_b32', 'v1', 's90'); A('s_lshl_b32', T0, sV, 2); A('s_add_u32', T0, T0, DBGT + (1 << 19) + 4096)
        A('buffer_store_dword', 'v1', 'off', WS, T0)
    LATE = os.environ.get('LATE', '')
    if LATE:
        mask = sum(1 << int(c) for c in LATE)
        A('s_lshr_b32', T0, hex(mask), sX); A('s_and_b32', T0, T0, 1); A('s_cmp_eq_u32', T0, 0); A('s_cbranch_scc1', 'L_nolate')
        A('s_sub_u32', T0, sR, 20); A('s_cmp_lt_u32', T0, 8); A('s_cselect_b32', T0, 1, 0); A('s_cmp_eq_u32', sX, 5); A('s_cselect_b32', T0, T0, 0)
        A('s_cmp_lg_u32', T0, 0); A('s_cbranch_scc1', 'L_nolate')
        A('s_mov_b32', 's68', 0)
        A.label('L_latep')
        A('buffer_load_dword', 'v9', 'off', SDBG, 0, mods='offset:40 sc1'); A('s_waitcnt', 'vmcnt(0)')
        A('v_readfirstlane_b32', T0, 'v9'); A('s_cmp_ge_u32', T0, 128); A('s_cbranch_scc1', 'L_nolate')
        A('s_sleep', 32)
        A('s_add_u32', 's68', 's68', 1); A('s_cmp_lt_u32', 's68', 64); A('s_cbranch_scc1', 'L_latep')
        A.label('L_nolate')
    def go(role, label):
        return label if role in ROLES else 'L_end'
    A('s_cmp_ge_u32', sX, 2); A('s_cbranch_scc1', 'L_bulk')
    A('s_mov_b32', sI, sR); A('s_mov_b32', sL, sX)
    for w in range(4):
        A('s_cmp_eq_u32', sW, w); A('s_cbranch_scc1', go('chain', f'CH{w}_entry'))
    A.label('L_bulk')
    A('s_cmp_ge_u32', sX, 5); A('s_cselect_b32', sL, 1, 0)
    A('s_mul_i32', T0, sL, 3); A('s_sub_u32', T0, sX, T0); A('s_sub_u32', T0, T0, 2)
    A('s_mov_b32', sI, sR)
    A('s_cmp_eq_u32', T0, 2); A('s_cbranch_scc1', 'L_qkv')
    A('s_cmp_eq_u32', T0, 1); A('s_cbranch_scc1', 'L_t1')
    A('s_cmp_lt_u32', sR, 20); A('s_cbranch_scc1', go('op', 'G2op_entry'))
    A('s_sub_u32', sI, sR, 20); A('s_lshl_b32', sI, sI, 1); A('s_add_u32', sI, sI, sL); A('s_cmp_lt_u32', sR, 28); A('s_cbranch_scc1', 'LN0_entry')
    A('s_sub_u32', sI, sR, 28); A('s_cmp_lt_u32', sR, 30); A('s_cbranch_scc1', go('lna', 'LNA_entry'))
    A('s_add_u32', sI, sR, 16); A('s_branch', 'L_qkv')
    A.label('L_t1')
    A('s_cmp_lt_u32', sR, 7); A('s_cbranch_scc1', go('f1', 'G1f1_entry'))
    A('s_sub_u32', sI, sR, 7); A('s_cmp_lt_u32', sR, 17); A('s_cbranch_scc1', go('f2', 'G2f2_entry'))
    A('s_add_u32', sI, sR, 14); A('s_cmp_gt_u32', sR, 17); A('s_cbranch_scc1', 'L_qkv')
    A('s_mov_b32', sI, sL); A('s_branch', 'LN1_entry')
    A.label('L_qkv')
    A('s_mul_i32', T0, sI, 43); A('s_lshr_b32', T0, T0, 7); A('s_mul_i32', T0, T0, 3); A('s_sub_u32', T0, sI, T0)
    A('s_cmp_eq_u32', T0, 2); A('s_cbranch_scc1', go('qkv', 'G1v_entry'))
    A('s_branch', go('qkv', 'G1qk_entry'))
    A.label('L_end')
    A('s_endpgm')
    def ready(A):
        ok = A.newlabel('RDY_ok'); lp = A.newlabel('RDY_lp'); al = A.newlabel('RDY_all')
        if LATE:
            sk = A.newlabel('RDY_sk')
            A('s_cmp_lg_u32', sX, 0); A('s_cbranch_scc1', sk)
            A('s_mov_b64', 'exec', 1); A('v_mov_b32', 'v40', 1); A('buffer_atomic_add', 'v40', 'off', SDBG, 0, mods='offset:40'); A('s_mov_b64', 'exec', -1)
            A.label(sk)
        A('s_cmp_lg_u32', sMODE, 0); A('s_cbranch_scc1', ok)
        A('s_mov_b32', 's68', 0)
        A.label(lp)
        A('buffer_load_dword', 'v40', 'off', SDBG, 0, mods='offset:32 sc1'); A('s_waitcnt', 'vmcnt(0)')
        A('v_readfirstlane_b32', T0, 'v40'); A('s_cmp_ge_u32', T0, 256); A('s_cbranch_scc1', al)
        A('s_sleep', 8)
        A('s_add_u32', 's68', 's68', 1); A('s_cmp_lt_u32', 's68', chain.SPIN_MAX); A('s_cbranch_scc1', lp)
        A('s_branch', ok)
        A.label(al)
        A('v_mbcnt_lo_u32_b32', 'v41', -1, 0); A('v_and_b32', 'v41', 7, 'v41'); A('v_min_u32', 'v42', 1, 'v41'); A('v_lshlrev_b32', 'v41', 2, 'v41'); A('v_lshl_add_u32', 'v41', 'v42', 7, 'v41')
        A('buffer_load_dword', 'v40', 'v41', SDBG, 0, mods='offen sc1'); A('s_waitcnt', 'vmcnt(0)')
        A('v_cmp_ne_u32', 'vcc', 32 if not FORCE_SLOW else 33, 'v40')
        A('s_cbranch_vccnz', 'L_slow')
        A.label(ok)
        A.vm.clear()
        if DBG:
            A('s_memrealtime', 's[90:91]'); A('s_waitcnt', 'lgkmcnt(0)'); A('v_mov_b32', 'v40', 's90'); A('s_lshl_b32', T0, sV, 2); A('s_add_u32', T0, T0, sW); A('s_lshl_b32', T0, T0, 2)
            A('s_add_u32', T0, T0, DBGT + (1 << 19) + 8192); A('buffer_store_dword', 'v40', 'off', WS, T0); A('s_waitcnt', 'vmcnt(0)'); A.vm.clear()
    bulk.emit_ln(A, 'ln1', ready); bulk.emit_ln(A, 'lna', ready)
    bulk.emit_ln(A, 'ln0', lambda A: None, after=lambda: A('s_lshr_b32', sI, sI, 1))
    bulk.emit_att(A, ready)
    if 'qkv' in ROLES: bulk.emit_gemm1(A, 'qk', ready); bulk.emit_gemm1(A, 'v', ready)
    if 'f1' in ROLES: bulk.emit_gemm1(A, 'f1', ready)
    if 'op' in ROLES: bulk.emit_gemm2(A, 'op', ready)
    if 'f2' in ROLES: bulk.emit_gemm2(A, 'f2', ready)
    if 'chain' in ROLES:
        for w in range(4): chain.emit_chain_wave(A, w, ready, dbg=bool(CHDBG))
    return A.finalize()

DESC = """; Generated by the author's own Python generator (gen/mega.py, chain.py, bulk.py).
;   chain (2 x 32 CUs): the memory recurrence of each attention layer, one head per CU, weights resident in
"""
if __name__ == '__main__':
    out = sys.argv[1]
    k = NAME + '_kernel'
    hdr = open('cdna_kernels/' + NAME + '.s.ref').read().split('; Override launch geometry')[0]
    txt = hdr + f'; @launch kernel={k} grid=(256,1,1) block=(256,1,1) lds=163840\n' + DESC + TARGET + kernel_header(k) + build() + kernel_desc(k)
    open(out, 'w').write(txt)
```

```python
from asmgen import *
from layout import *
from chain import tstamp, sMODE, WS, SQ, SK, SV, SO, SX, SM0, SW1, SW2, SOUT, SDBG, f32bits, SPIN_MAX
sW, sI, sL, sU = 's52', 's53', 's54', 's55'
sIN, sOUT_, sFI, sFO, sPROG, sPEND, sLB, sNX, sA, sB, sC_, sD = ['s%d' % i for i in range(56, 68)]
sSPIN, sDEAD = 's68', 's69'
sT0, sT1, sT2, sT3 = 's70', 's71', 's72', 's73'
NU = 64
CHK1 = [int(x) for x in __import__('os').environ.get('CHK1', '10,20,30').split(',')]
import os
DBG = int(os.environ.get('DBG', 0))
LN_, L16, FOFF = 0, 1, 2
FV = 4
TM = 8

def common_setup(A, nlines):
    A('v_and_b32', v(LN_), 63, 'v0'); A('v_lshlrev_b32', v(L16), 4, v(LN_))
    A('v_min_u32', v(FOFF), nlines - 1, v(LN_)); A('v_lshlrev_b32', v(FOFF), 7, v(FOFF))
    A('s_mov_b32', sU, 0); A('s_mov_b32', sPROG, 0); A('s_mov_b32', sPEND, 0); A('s_mov_b32', sDEAD, 0)

def ph(A, i):
    if DBG: A('s_memtime', s(2 * i + (4 if i < 2 else 90 - 4), 2)) if False else None
PHR = [4, 6, 88, 94, 100]
def ph(A, i):
    if DBG: A('s_memtime', s(PHR[i], 2))
def ph_dump(A, tmp=3):
    if not DBG: return
    sk = A.newlabel('phd')
    A('s_cmp_lg_u32', sU, 40); A('s_cbranch_scc1', sk)
    A('s_lshr_b32', 's92', sFO, 7); A('s_lshl_b32', 's92', 's92', 2); A('s_bfe_u32', 's93', sFO, 0x20002); A('s_add_u32', 's92', 's92', 's93')
    A('s_lshl_b32', 's92', 's92', 6); A('s_add_u32', 's92', 's92', DBGT + (3 << 20))
    A('s_waitcnt', 'lgkmcnt(0)')
    for i, r in enumerate(PHR):
        A('v_mov_b32', v(tmp), s(r)); A('buffer_store_dword', v(tmp), 'off', WS, 's92', mods=f'offset:{4*i}'); A.vm.pop()
    A.label(sk)

def flag_load(A, soff=sFI, reg=FV, voff=FOFF, n=4):
    op = {1: 'buffer_load_dword', 2: 'buffer_load_dwordx2', 4: 'buffer_load_dwordx4'}[n]
    A(op, v(reg, n), v(voff), WS, soff, mods='offen sc1', tag='fl')

def flag_min(A, dst, reg=FV, n=4, lanes=64, floor=None):
    if n == 4:
        A('v_min3_u32', v(reg), v(reg), v(reg + 1), v(reg + 2)); A('v_min_u32', v(reg), v(reg), v(reg + 3))
    elif n == 2:
        A('v_min_u32', v(reg), v(reg), v(reg + 1))
    if floor is not None: A('v_max_u32', v(reg), v(reg), v(floor))
    if lanes > 1:
        for sh in (1, 2, 4, 8): A('v_min_u32_dpp', v(reg), v(reg), v(reg), mods=f'row_ror:{sh} row_mask:0xf bank_mask:0xf')
    A('v_readlane_b32', sT0, v(reg), 0)
    if lanes > 16:
        assert lanes <= 32
        A('v_readlane_b32', sT1, v(reg), 16); A('s_min_u32', sT0, sT0, sT1)
    A('s_max_u32', dst, dst, sT0)

def poll(A, pre, need, prog=sPROG, soff=sFI, reg=FV, voff=FOFF, n=4, lanes=64, floor=None):
    ok = A.newlabel(pre + '_ok'); lp = A.newlabel(pre + '_lp')
    A('s_cmp_gt_u32', prog, need); A('s_cbranch_scc1', ok)
    A('s_mov_b32', sSPIN, 0)
    A.label(lp)
    flag_load(A, soff, reg, voff, n); A.vm.pop()
    A('s_waitcnt', 'vmcnt(0)')
    flag_min(A, prog, reg, n, lanes, floor)
    A('s_cmp_gt_u32', prog, need); A('s_cbranch_scc1', ok)
    A('s_cmp_lg_u32', sDEAD, 0); A('s_cbranch_scc1', ok)
    A('s_sleep', int(os.environ.get('PSL', 2)))
    A('s_add_u32', sSPIN, sSPIN, 1); A('s_cmp_lt_u32', sSPIN, SPIN_MAX); A('s_cbranch_scc1', lp)
    A('s_mov_b32', sDEAD, 1)
    A.label(ok)

def publish(A, val, tmp=3, loc=False):
    A('v_mov_b32', v(tmp), val)
    A('s_mov_b64', 'exec', 1)
    if loc: local_flag(A, lambda md: A('buffer_store_dword', v(tmp), 'off', WS, sFO, mods=md))
    else: A('buffer_store_dword', v(tmp), 'off', WS, sFO, mods='sc1')
    A.vm.pop()
    if DBG: tstamp(A, sFO, val, tmp)
    A('s_mov_b64', 'exec', -1)

def poll_lds(A, pre, need, lanes, floor, LA):
    ok = A.newlabel(pre + '_ok'); lp = A.newlabel(pre + '_lp'); gl = A.newlabel(pre + '_gl'); nx = A.newlabel(pre + '_nx')
    A('s_cmp_gt_u32', sPROG, need); A('s_cbranch_scc1', ok)
    A('s_mov_b32', sSPIN, 0)
    A.label(lp)
    A('s_cmp_eq_u32', sW, 0); A('s_cbranch_scc1', gl)
    A('s_and_b32', sT0, sSPIN, 31); A('s_cmp_eq_u32', sT0, 31); A('s_cbranch_scc1', gl)
    A('ds_read_b32', v(FV), v(LA)); A('s_waitcnt', 'lgkmcnt(0)')
    A('v_readfirstlane_b32', sT0, v(FV)); A('s_max_u32', sPROG, sPROG, sT0)
    A('s_branch', nx)
    A.label(gl)
    flag_load(A); A.vm.pop()
    A('s_waitcnt', 'vmcnt(0)')
    flag_min(A, sPROG, lanes=lanes, floor=floor)
    A.label(nx)
    A('s_cmp_gt_u32', sPROG, need); A('s_cbranch_scc1', ok)
    A('s_cmp_lg_u32', sDEAD, 0); A('s_cbranch_scc1', ok)
    A('s_sleep', 1)
    A('s_add_u32', sSPIN, sSPIN, 1); A('s_cmp_lt_u32', sSPIN, 8 * SPIN_MAX); A('s_cbranch_scc1', lp)
    A('s_mov_b32', sDEAD, 1)
    A.label(ok)

def publish_wg(A, val, tmp=3):
    sk = A.newlabel('pwg')
    A('s_barrier')
    A('s_cmp_lg_u32', sW, 0); A('s_cbranch_scc1', sk)
    A('v_mov_b32', v(tmp), val); A('v_lshrrev_b32', v(tmp - 1 if False else 31), 2, v(L16))
    A('s_mov_b64', 'exec', 15)
    A('buffer_store_dword', v(tmp), v(31), WS, sFO, mods='offen sc1'); A.vm.pop()
    A('s_mov_b64', 'exec', 1)
    if DBG: tstamp(A, sFO, val, tmp)
    A('s_mov_b64', 'exec', -1)
    A.label(sk)

def local(A, fn):
    fn('sc1')

def local_flag(A, fn):
    sl = A.newlabel('loc_s'); e = A.newlabel('loc_e')
    A('s_cmp_lg_u32', sMODE, 0); A('s_cbranch_scc1', sl)
    n0 = len(A.vm); fn(''); del A.vm[n0:]
    A('s_branch', e)
    A.label(sl)
    fn('sc1')
    A.label(e)

def flag_out_addr(A, kind):
    A('s_mul_i32', sFO, sL, FL_LAYER); A('s_lshl_b32', sT0, sI, 7); A('s_add_u32', sFO, sFO, sT0)
    A('s_lshl_b32', sT0, sW, 2); A('s_add_u32', sFO, sFO, sT0); A('s_add_u32', sFO, sFO, kind)

def load_weights(A, srd, stride, rowpart, sbase, soffs, dst, perm):
    SRC, TR0, TR1 = TM, TM + 1, TM + 2
    t = [TM + 3 + i for i in range(6)]
    A('v_lshrrev_b32', v(t[0]), 5, v(LN_)); A('v_mul_u32_u24', v(t[0]), rowpart, v(t[0]))
    A('v_bfe_u32', v(t[1]), v(LN_), 3, 2); A('v_add_u32', v(t[0]), v(t[0]), v(t[1]))
    A('s_mov_b32', sT0, stride); A('v_mul_lo_u32', v(t[0]), v(t[0]), sT0)
    A('v_bfe_u32', v(t[1]), v(LN_), 4, 1); A('v_lshlrev_b32', v(t[1]), 2, v(t[1])); A('v_and_b32', v(t[2]), 7, v(LN_)); A('v_xor_b32', v(t[1]), v(t[1]), v(t[2]))
    A('v_lshl_add_u32', v(t[0]), v(t[1]), 4, v(t[0])); A('v_add_u32', v(SRC), sbase, v(t[0]))
    A('s_mul_i32', sLB, sW, 40960)
    A('v_lshrrev_b32', v(t[0]), 5, v(LN_)); A('v_lshlrev_b32', v(t[0]), 10, v(t[0]))
    A('v_bfe_u32', v(t[1]), v(LN_), 2, 2); A('v_lshl_add_u32', v(t[0]), v(t[1]), 7, v(t[0]))
    A('v_bfe_u32', v(t[1]), v(LN_), 3, 1); A('v_lshl_add_u32', v(t[0]), v(t[1]), 6, v(t[0]))
    A('v_bfe_u32', v(t[1]), v(LN_), 4, 1); A('v_lshl_add_u32', v(t[0]), v(t[1]), 5, v(t[0]))
    if perm:
        A('v_and_b32', v(t[1]), 1, v(LN_)); A('v_lshl_add_u32', v(t[0]), v(t[1]), 4, v(t[0]))
        A('v_bfe_u32', v(t[1]), v(LN_), 1, 1); A('v_lshl_add_u32', v(t[0]), v(t[1]), 3, v(t[0]))
    else:
        A('v_and_b32', v(t[1]), 3, v(LN_)); A('v_lshl_add_u32', v(t[0]), v(t[1]), 3, v(t[0]))
    if perm: A('s_lshl_b32', sT0, sW, 5); A('v_xor_b32', v(t[0]), sT0, v(t[0]))
    A('v_add_u32', v(TR0), sLB, v(t[0])); A('v_xor_b32', v(TR1), 64, v(TR0))
    n_st = len(soffs); depth = 20
    def dma(n):
        for b in range(2):
            A('s_add_u32', 'm0', sLB, (n % depth) * 2048 + b * 1024)
            A('s_mov_b32', sT0, soffs[n][b])
            A('buffer_load_dwordx4', v(SRC), srd, sT0, mods='offen lds', tag=('W', n))
    for n in range(min(depth, n_st)): dma(n)
    for n in range(n_st):
        A.wait(vm=[('W', n)])
        for T in range(2):
            for hq in range(2):
                A('ds_read_b64_tr_b16', R(dst(n, T) + 2 * hq, 2), v(TR0 if T == 0 else TR1), mods=f'offset:{(n % depth)*2048 + 512*hq}', tag=('T', n))
        if n >= 1 and n - 1 + depth < n_st:
            A.wait(lg=[('T', n - 1)]); dma(n - 1 + depth)
    A.wait(vm=0, lg=0)

def emit_gemm1(A, kind, ready):
    P = f'G1{kind}_'
    A.label(P + 'entry'); A.reset_counts()
    RING, ACC, STG, WR = 64, 128, 160, 192
    AD, SA = 32, 33
    wreg = lambda n, T: WR + (2 * n + T) * 4
    common_setup(A, 2)
    FLR = 34
    A('v_mov_b32', v(FLR), 0)
    if kind != 'f1':
        A('s_cmp_eq_u32', sL, 0); A('s_cselect_b32', sT0, 7, 1); A('v_min_u32', v(FOFF), sT0, v(LN_))
        A('v_lshrrev_b32', v(FLR), 1, v(FOFF)); A('v_lshlrev_b32', v(FOFF), 7, v(FOFF))
    if kind == 'f1':
        A('s_lshl_b32', sT1, sI, 2); A('s_add_u32', sT1, sT1, sW)
        A('s_lshl_b32', sA, sT1, 7)
        A('s_cmp_lt_u32', sT1, 27); A('s_cselect_b32', sA, sA, '0x20000000')
        A('s_mul_i32', sOUT_, sL, LAYER_H); A('s_lshl_b32', sT1, sT1, 12); A('s_add_u32', sOUT_, sOUT_, sT1); A('s_add_u32', sOUT_, sOUT_, HF)
        load_weights(A, SW1, 3456, 4, sA, [(16 * n * 3456, (16 * n + 8) * 3456) for n in range(40)], wreg, False)
        A('s_mul_i32', sIN, sL, LAYER_X); A('s_add_u32', sIN, sIN, XN1)
        A('s_mul_i32', sFI, sL, FL_LAYER); A('s_add_u32', sFI, sFI, FL_LNA)
        flag_out_addr(A, FL_F1); nl = 2; ostep = UH
        A('v_mov_b32', v(SA), v(L16))
    else:
        A('s_mul_i32', sT1, sI, 43); A('s_lshr_b32', sB, sT1, 7)
        A('s_mul_i32', sT1, sB, 3); A('s_sub_u32', sC_, sI, sT1)
        A('s_lshl_b32', sA, sB, 9); A('s_lshl_b32', sT1, sW, 7); A('s_add_u32', sA, sA, sT1)
        soffs = [(16 * n * 8192, (16 * n + 8) * 8192) for n in range(40)]
        if kind == 'v':
            load_weights(A, SV, 8192, 4, sA, soffs, wreg, False)
        else:
            A('s_cmp_eq_u32', sC_, 0)
            A('s_cselect_b32', 's76', 's12', 's16'); A('s_cselect_b32', 's77', 's13', 's17'); A('s_mov_b32', 's78', hex(640 * 4096 * 2)); A('s_mov_b32', 's79', '0x20000')
            load_weights(A, 's[76:79]', 8192, 4, sA, soffs, wreg, False)
        A('s_mul_i32', sOUT_, sL, LAYER_F); A('s_lshl_b32', sT1, sB, 14); A('s_add_u32', sOUT_, sOUT_, sT1)
        A('s_lshr_b32', sT1, sW, 1); A('s_lshl_b32', sT1, sT1, 13); A('s_add_u32', sOUT_, sOUT_, sT1)
        A('s_and_b32', sT1, sW, 1)
        if kind == 'v':
            A('s_lshl_b32', sT1, sT1, 12); A('s_add_u32', sOUT_, sOUT_, sT1); A('s_add_u32', sOUT_, sOUT_, VT)
            A('s_mul_i32', 's74', sL, LAYER_KM); A('s_lshl_b32', sT1, sB, 13); A('s_add_u32', 's74', 's74', sT1)
            A('s_lshl_b32', sT1, sW, 11); A('s_add_u32', 's74', 's74', sT1); A('s_add_u32', 's74', 's74', KM)
            for i in range(4): A('v_mov_b32', v(36 + i), hex(SENT))
        else:
            A('s_lshl_b32', sT1, sT1, 11); A('s_add_u32', sOUT_, sOUT_, sT1)
            A('s_cmp_eq_u32', sC_, 0); A('s_cselect_b32', sT1, QF - KF, 0); A('s_add_u32', sOUT_, sOUT_, sT1); A('s_add_u32', sOUT_, sOUT_, KF)
        A('s_mul_i32', sIN, sL, LAYER_X); A('s_add_u32', sIN, sIN, XN)
        A('s_mul_i32', sFI, sL, FL_LAYER); A('s_add_u32', sFI, sFI, FL_XN)
        flag_out_addr(A, FL_QKV); nl = 16; ostep = 32 * 8192
        A('v_bfe_u32', v(TM), v(LN_), 4, 1); A('v_lshlrev_b32', v(TM), 10 if kind == 'v' else 12, v(TM))
        A('v_lshrrev_b32', v(TM + 1), 5, v(LN_)); A('v_lshl_add_u32', v(TM), v(TM + 1), 8, v(TM))
        A('v_and_b32', v(TM + 1), 15, v(LN_)); A('v_lshl_add_u32', v(SA), v(TM + 1), 4, v(TM))
    A('s_lshl_b32', sT0, sW, 10); A('s_add_u32', sIN, sIN, sT0); A('s_mov_b32', sLB, sT0)
    A('s_mov_b32', sD, 0)
    ready(A)
    if kind == 'f1': A('s_cmp_eq_u32', sI, 6); A('s_cselect_b32', sMODE, 1, sMODE)
    A('s_barrier')
    LA = 35
    A('v_mov_b32', v(LA), 2 * UX); A('v_mov_b32', v(3), 0); A('ds_write_b32', v(LA), v(3)); A('s_waitcnt', 'lgkmcnt(0)'); A('s_barrier')
    A('s_mov_b32', 's78', 1)
    def dma1(i):
        if i == 0 and int(os.environ.get('LPOLL', 0)):
            A('v_mov_b32', v(3), 's78'); A('ds_max_u32', v(LA), v(3)); A('s_add_u32', 's78', 's78', 1)
        A('s_add_u32', 'm0', sLB, i * 4096); A('s_add_u32', sT0, sIN, i * 4096)
        A('buffer_load_dwordx4', v(L16), WS, sT0, mods='offen sc1 lds'); A.vm.pop()
        if i == 9:
            A('s_add_u32', sIN, sIN, UX); A('s_mov_b32', sNX, 1)
            A('s_add_u32', sT0, sLB, UX); A('s_sub_u32', sT1, sLB, UX); A('s_cmp_ge_u32', sLB, UX); A('s_cselect_b32', sLB, sT1, sT0)
    def dma_in():
        for i in range(10): dma1(i)
    A.label(P + 'fetch')
    if int(os.environ.get('LPOLL', 0)): poll_lds(A, P + 'p', sU, nl, FLR, LA)
    else: poll(A, P + 'p', sU, lanes=nl, floor=FLR)
    dma_in()
    flag_load(A)
    A.label(P + 'top')
    A.reset_counts()
    NST = 2
    NT0 = 2 if kind != 'v' else 4
    ph_dump(A); ph(A, 0)
    A('s_waitcnt', 'vmcnt(7)')
    A('s_barrier')
    ph(A, 1)
    A('v_add_u32', v(AD), sD, v(L16))
    A('s_xor_b32', sD, sD, UX)
    D = 12
    def rd(f): A('ds_read_b128', v(RING + 4 * (f % 16), 4), v(AD), mods=f'offset:{(f % 40)*1024}')
    for f in range(D): rd(f)
    A('s_mov_b32', sNX, 0)
    A('s_add_u32', sT2, sU, 1); A('s_cmp_lt_u32', sT2, NU); A('s_cselect_b32', 's77', sT2, '0x7fffffff')
    def epi(T, i):
        ac = ACC + 16 * T
        st = STG + 8 * T + 4 * i
        if kind == 'qk':
            for c in range(4): A('v_cvt_pk_bf16_f32', v(st + c), v(ac + 4 * i + c), v(ac + 8 + 4 * i + c))
            off = T * 1024 + i * 512
        elif kind == 'v':
            for hh in range(2):
                for c in range(2): A('v_cvt_pk_bf16_f32', v(st + 2 * hh + c), v(ac + 8 * hh + 4 * i + 2 * c), v(ac + 8 * hh + 4 * i + 2 * c + 1))
            off = T * 2048 + i * 512
        else:
            for c in range(4):
                A('v_cvt_pk_bf16_f32', v(st + c), v(ac + 8 * i + 2 * c), v(ac + 8 * i + 2 * c + 1))
                A('v_pk_max_i16', v(st + c), v(st + c), 0)
            off = T * 2048 + i * 1024
        A('buffer_store_dwordx4', v(st, 4), v(SA), WS, sOUT_, mods=f'offen offset:{off} sc1')
    def step(k, mid=None, end=None):
        T = k // 20
        if k in (2, 6):
            A('s_waitcnt', f'vmcnt({5 if k == 2 else 3}) lgkmcnt({D-2})'); A('s_barrier')
        else:
            if k == 10: A('s_barrier')
            A('s_waitcnt', f'lgkmcnt({min(D - 2, 78 - 2 * k)})')
        for h_ in range(2):
            f = 2 * k + h_
            x = v(RING + 4 * (f % 16), 4); wv = R(wreg(f % 40, T), 4); acc = v(ACC + 16 * T, 16)
            a_, b_ = (x, wv) if kind == 'v' else (wv, x)
            A('v_mfma_f32_32x32x16_bf16', acc, a_, b_, '0' if f % 40 == 0 else acc)
            if f + D < 80: rd(f + D)
            if h_ == 0 and mid: mid()
        if k in (22, 24): epi(0, (k - 22) // 2)
        if kind == 'v' and k in (26, 27):
            A('buffer_store_dwordx4', v(36, 4), v(L16), WS, 's74', mods=f'offen offset:{1024*(k-26)} sc1')
            if k == 27: A('s_add_u32', 's74', 's74', 32 * 4096)
        if end: end()
    CK = [9, 19, 29]
    def chk_mid(k):
        A('s_waitcnt', f'vmcnt({NT0 if k > 27 else 0})')
        A('v_min3_u32', v(FV), v(FV), v(FV + 1), v(FV + 2)); A('v_min_u32', v(FV), v(FV), v(FV + 3)); A('v_max_u32', v(FV), v(FV), v(FLR))
        A('v_cmp_ge_u32', 'vcc', 's77', v(FV))
    def chk_end(k):
        if k == CK[0]:
            s2 = A.newlabel(P + 'nop')
            A('s_cmp_eq_u32', sPEND, 0); A('s_cbranch_scc1', s2)
            publish(A, sU, loc=(kind == 'f1')); A('s_mov_b32', sPEND, 0)
            A.label(s2)
        A('s_cbranch_vccz', P + f'dma{k}')
        flag_load(A)
    for k in range(40):
        if k in CK: step(k, lambda: chk_mid(k), lambda: chk_end(k))
        else: step(k)
    A('s_branch', P + 'epi')
    for c in CK[1:]:
        A.label(P + f'dma{c}')
        for k in range(c + 1, c + 11): step(k, lambda: dma1(k - c - 1))
        A('s_branch', P + (f'rest{c+11}' if c + 11 < 40 else 'epi'))
    c = CK[0]
    A.label(P + f'dma{c}')
    for k in range(c + 1, c + 11): step(k, lambda: dma1(k - c - 1))
    for k in range(c + 11, 40):
        if k - 11 in CK: A.label(P + f'rest{k}')
        step(k)
    A.label(P + 'epi')
    A.reset_counts()
    ph(A, 4)
    epi(1, 0); epi(1, 1)
    A('s_add_u32', sOUT_, sOUT_, ostep)
    A('s_add_u32', sU, sU, 1); A('s_mov_b32', sPEND, 1)
    A('s_cmp_eq_u32', sNX, 0); A('s_cbranch_scc1', P + 'late')
    flag_load(A)
    A('s_branch', P + 'top')
    A.label(P + 'late')
    A('s_mov_b32', sPEND, 0)
    A('s_waitcnt', f'vmcnt({NST})')
    flag_min(A, sPROG, lanes=nl, floor=FLR)
    A('s_min_u32', sPROG, sPROG, NU); A('s_cmp_gt_u32', sPROG, sU); A('s_cbranch_scc0', P + 'idle')
    dma_in()
    A('s_waitcnt', 'vmcnt(10)')
    publish(A, sU, loc=(kind == 'f1'))
    flag_load(A)
    A('s_branch', P + 'top')
    A.label(P + 'idle')
    flag_load(A)
    A('s_waitcnt', 'vmcnt(0)')
    publish(A, sU, loc=(kind == 'f1')); flag_min(A, sPROG, lanes=nl, floor=FLR)
    A('s_cmp_lt_u32', sU, NU); A('s_cbranch_scc1', P + 'fetch')
    A('s_endpgm')

def emit_gemm2(A, kind, ready):
    P = f'G2{kind}_'
    A.label(P + 'entry'); A.reset_counts()
    nk = 32 if kind == 'op' else 27
    RING, ACC, RT = 64, 192, 224
    LW, LR, RES, SA = 32, 33, 36, 34
    wreg = lambda n, T: 256 + (2 * n + T) * 4
    if kind == 'op':
        common_setup(A, 1); nl = 1
        A('s_cmp_ge_u32', sI, 10); A('s_cselect_b32', sB, 1, 0)
        A('s_mul_i32', sT1, sB, 10); A('s_sub_u32', sC_, sI, sT1)
        A('s_lshl_b32', sT1, sB, 2); A('s_add_u32', sT1, sT1, sW)
        A('s_mul_i32', sA, sT1, 4 * 163840); A('s_lshl_b32', sT2, sC_, 7); A('s_add_u32', sA, sA, sT2)
        A('s_mul_i32', sIN, sL, LAYER_F); A('s_lshl_b32', sT2, sT1, 15); A('s_add_u32', sIN, sIN, sT2); A('s_add_u32', sIN, sIN, OF)
        A('s_mul_i32', sFI, sL, FL_LAYER); A('s_lshl_b32', sT2, sT1, 7); A('s_add_u32', sFI, sFI, sT2); A('s_add_u32', sFI, sFI, FL_ATT)
        soffs = [[(128 * (n >> 3) + 32 * ((n & 7) >> 1) + 8 * (n & 1) + 4 * b) * 1280 for b in range(2)] for n in range(32)]
        load_weights(A, SO, 1280, 16, sA, [tuple(x) for x in soffs], wreg, True)
        istep = 32 * 8192
        A('s_mul_i32', sOUT_, sL, LAYER_OP); A('s_mul_i32', sT2, sB, UP); A('s_add_u32', sOUT_, sOUT_, sT2)
        A('s_lshl_b32', sT2, sC_, 12); A('s_add_u32', sOUT_, sOUT_, sT2); A('s_lshl_b32', sT2, sW, 10); A('s_add_u32', sOUT_, sOUT_, sT2)
        A('s_add_u32', sOUT_, sOUT_, OPART)
        flag_out_addr(A, FL_OP); ostep = 2 * UP
    else:
        common_setup(A, 7); nl = 7
        A('s_mul_i32', sA, sW, 27 * 16 * 1280); A('s_lshl_b32', sT2, sI, 7); A('s_add_u32', sA, sA, sT2)
        A('s_mul_i32', sIN, sL, LAYER_H); A('s_mul_i32', sT2, sW, 27 * 1024); A('s_add_u32', sIN, sIN, sT2); A('s_add_u32', sIN, sIN, HF)
        A('s_mul_i32', sFI, sL, FL_LAYER); A('s_add_u32', sFI, sFI, FL_F1)
        load_weights(A, SW2, 1280, 8, sA, [((16 * n) * 1280, (16 * n + 4) * 1280) for n in range(27)], wreg, True)
        istep = UH
        A('s_lshl_b32', sT2, sI, 12); A('s_lshl_b32', sT3, sW, 10); A('s_add_u32', sT2, sT2, sT3)
        A('s_mul_i32', sB, sL, LAYER_X); A('s_add_u32', sB, sB, sT2); A('s_add_u32', sB, sB, XRES)
        A('s_mul_i32', 's74', sL, LAYER_OP); A('s_add_u32', 's74', 's74', sT2); A('s_add_u32', 's74', 's74', OPART)
        A('s_add_u32', sOUT_, sT2, XRES + LAYER_X)
        A('s_lshl_b32', sT2, sI, 7); A('s_lshl_b32', sT3, sW, 5); A('s_add_u32', sC_, sT2, sT3)
        A('v_and_b32', v(TM), 31, v(LN_)); A('v_mul_u32_u24', v(TM), 1280, v(TM)); A('v_lshrrev_b32', v(TM + 1), 5, v(LN_)); A('v_lshl_add_u32', v(SA), v(TM + 1), 4, v(TM))
        flag_out_addr(A, FL_F2); ostep = UX
        if not DBG: A('s_cmp_lg_u32', sL, 0); A('s_cselect_b32', sFO, '0x20000000', sFO)
        A('v_and_b32', v(TM), 31, v(LN_)); A('v_mul_u32_u24', v(TM), 144, v(TM)); A('v_lshl_add_u32', v(TM), v(TM + 1), 4, v(TM))
        A('s_lshl_b32', sT2, sW, 5); A('s_add_u32', sT2, sT2, 65536); A('v_add_u32', v(50), sT2, v(TM))
        A('v_lshrrev_b32', v(TM), 3, v(LN_)); A('v_and_b32', v(TM + 1), 7, v(LN_)); A('v_lshlrev_b32', v(TM + 1), 4, v(TM + 1))
        A('v_mad_u32_u24', v(51), v(TM), 36, 0); A('v_lshl_add_u32', v(51), v(51), 2, v(TM + 1))
        A('s_mul_i32', sT2, sW, 8 * 144); A('s_add_u32', sT2, sT2, 65536); A('v_add_u32', v(51), sT2, v(51))
        A('v_mul_u32_u24', v(TM), 1280, v(TM)); A('v_add_u32', v(52), v(TM), v(TM + 1))
        A('s_lshl_b32', 's75', sI, 7); A('s_mul_i32', sT2, sW, 8 * 1280); A('s_add_u32', 's75', 's75', sT2)
    TL = (nk * 8 + 9) // 10
    A('s_mul_i32', sT2, sC_ if kind == 'op' else sI, TL); A('v_add_u32', v(54), sT2, v(LN_)); A('v_lshlrev_b32', v(53), 7, v(54))
    A('v_mov_b32', v(55), '0x40000000')
    A('v_cmp_gt_u32', 'vcc', TL, v(LN_)); A('v_cndmask_b32', v(53), v(55), v(53), 'vcc')
    A('v_cmp_gt_u32', 'vcc', nk * 8, v(54)); A('v_cndmask_b32', v(53), v(55), v(53), 'vcc')
    for j_ in range(1, 4):
        A('s_xor_b32', sT2, sW, j_); A('s_lshl_b32', sT2, sT2, 13); A('s_add_u32', sT2, sT2, j_ * 2048); A('v_add_u32', v(59 + j_), sT2, v(L16))
    A('s_lshl_b32', sT2, sW, 13); A('v_add_u32', v(LR), sT2, v(L16))
    ready(A)
    A('s_barrier')
    XS = 3 if kind == 'f2' else 0
    def ld(k, base):
        if k == 0 and kind == 'f2':
            A('buffer_load_dwordx4', v(RES, 4), v(L16), WS, sB, mods='offen sc1'); A.vm.pop()
            A('s_add_u32', sB, sB, UX)
            for pp in (1, 2):
                A('buffer_load_dwordx4', v(RES + 4 * pp, 4), v(L16), WS, 's74', mods='offen sc1'); A.vm.pop()
                A('s_add_u32', 's74', 's74', UP)
        if k == 0 and int(os.environ.get('TOUCH', 0)): A('buffer_load_dword', v(54), v(53), WS, base, mods='offen sc1'); A.vm.pop()
        if k % 4 == 0: A('s_add_u32', sT3, base, k * 1024)
        A('buffer_load_dwordx4', v(RING + 4 * k, 4), v(L16), WS, sT3, mods=f'offen offset:{(k%4)*1024} sc1'); A.vm.pop()
    A.label(P + 'fetch')
    poll(A, P + 'p', sU, lanes=nl)
    W = int(os.environ.get('G2W', 10))
    for k in range(W): ld(k, sIN)
    A.label(P + 'top')
    A.reset_counts()
    ph_dump(A); ph(A, 0)
    def mm(k, cnt):
        A('s_waitcnt', f'vmcnt({cnt})')
        x = v(RING + 4 * k, 4)
        for T in range(2):
            acc = v(ACC + 16 * T, 16)
            A('v_mfma_f32_32x32x16_bf16', acc, R(wreg(k, T), 4), x, '0' if k == 0 else acc)
    if W % 4: A('s_add_u32', sT3, sIN, (W // 4) * 4096)
    for k in range(nk - W):
        mm(k, W - 1)
        if k == W:
            sk = A.newlabel(P + 'nop')
            A('s_cmp_eq_u32', sPEND, 0); A('s_cbranch_scc1', sk)
            publish(A, sU, loc=(kind == 'op')); A('s_mov_b32', sPEND, 0)
            A.label(sk)
        if k == 3 and kind == 'f2':
            for i in range(4):
                A('v_lshlrev_b32', v(TM), 16, v(RES + i)); A('v_and_b32', v(TM + 1), '0xffff0000', v(RES + i))
                for pp in (1, 2):
                    A('v_lshlrev_b32', v(TM + 2), 16, v(RES + 4 * pp + i)); A('v_and_b32', v(TM + 3), '0xffff0000', v(RES + 4 * pp + i))
                    A('v_add_f32', v(TM), v(TM), v(TM + 2)); A('v_add_f32', v(TM + 1), v(TM + 1), v(TM + 3))
                A('v_cvt_pk_bf16_f32', v(56 + i), v(TM), v(TM + 1))
        if k == nk - 2 * W: flag_load(A); A.vm.pop()
        ld(k + W, sIN)
    assert nk - W > W
    ph(A, 1)
    mm(nk - W, W - 1)
    flag_min(A, sPROG, lanes=nl)
    A('s_add_u32', sIN, sIN, istep)
    A('s_add_u32', sT2, sU, 1); A('s_cmp_gt_u32', sPROG, sT2); A('s_cselect_b32', sNX, 1, 0)
    A('s_cbranch_scc1', P + 'pf')
    flag_load(A); A.vm.pop()
    for k in range(nk - W + 1, nk): mm(k, nk - k)
    A('s_branch', P + 'red')
    A.label(P + 'pf')
    ld(0, sIN)
    for k in range(nk - W + 1, nk):
        mm(k, W - 1 + XS); ld(k - (nk - W), sIN)
    A.label(P + 'red')
    ph(A, 3)
    for j_ in range(1, 4):
        A('ds_write_b128', v(59 + j_), v(ACC + 8 * j_, 4)); A('ds_write_b128', v(59 + j_), v(ACC + 8 * j_ + 4, 4), mods='offset:1024')
    for j_ in range(1, 4): A('v_xor_b32', v(59 + j_), 32768, v(59 + j_))
    A('s_waitcnt', 'lgkmcnt(0)'); A('s_barrier')
    for j_ in range(1, 4):
        A('ds_read_b128', v(RT + 8 * (j_ - 1), 4), v(LR), mods=f'offset:{j_*2048}'); A('ds_read_b128', v(RT + 8 * (j_ - 1) + 4, 4), v(LR), mods=f'offset:{j_*2048+1024}')
    A('v_xor_b32', v(LR), 32768, v(LR))
    O = RT + 24
    A('s_waitcnt', 'lgkmcnt(4)')
    for i in range(0, 8, 2): A('v_pk_add_f32', v(O + i, 2), v(ACC + i, 2), v(RT + i, 2))
    A('s_waitcnt', 'lgkmcnt(0)')
    for i in range(0, 8, 2): A('v_pk_add_f32', v(RT + 8 + i, 2), v(RT + 8 + i, 2), v(RT + 16 + i, 2))
    for i in range(0, 8, 2): A('v_pk_add_f32', v(O + i, 2), v(O + i, 2), v(RT + 8 + i, 2))
    if kind == 'op':
        for i in range(4): A('v_cvt_pk_bf16_f32', v(RT + i), v(O + 2 * i), v(O + 2 * i + 1))
        A('buffer_store_dwordx4', v(RT, 4), v(L16), WS, sOUT_, mods='offen sc1')
    else:
        for i in range(4):
            A('v_cvt_pk_bf16_f32', v(RT + i), v(O + 2 * i), v(O + 2 * i + 1))
            A('v_lshlrev_b32', v(O + 2 * i), 16, v(RT + i)); A('v_and_b32', v(O + 2 * i + 1), '0xffff0000', v(RT + i))
            A('v_lshlrev_b32', v(RT + 8), 16, v(56 + i)); A('v_and_b32', v(RT + 9), '0xffff0000', v(56 + i))
            A('v_add_f32', v(O + 2 * i), v(O + 2 * i), v(RT + 8)); A('v_add_f32', v(O + 2 * i + 1), v(O + 2 * i + 1), v(RT + 9))
            A('v_cvt_pk_bf16_f32', v(RT + 4 + i), v(O + 2 * i), v(O + 2 * i + 1))
        l1 = A.newlabel(P + 'l1')
        A('s_cmp_lg_u32', sL, 0); A('s_cbranch_scc1', l1)
        local(A, lambda md: A('buffer_store_dwordx4', v(RT + 4, 4), v(L16), WS, sOUT_, mods=f'offen {md}'))
        A('s_branch', l1 + 'e')
        A.label(l1)
        if int(os.environ.get('OUTT', 1)):
            A('ds_write_b128', v(50), v(RT + 4, 4)); A('s_waitcnt', 'lgkmcnt(0)'); A('s_barrier')
            A('ds_read_b128', v(RT + 8, 4), v(51)); A('s_waitcnt', 'lgkmcnt(0)')
            A('buffer_store_dwordx4', v(RT + 8, 4), v(52), SOUT, 's75', mods='offen ' + os.environ.get('OUTMOD', 'nt'))
            A('s_add_u32', 's75', 's75', 32 * 1280)
        else:
            A('buffer_store_dwordx4', v(RT + 4, 4), v(SA), SOUT, sC_, mods='offen ' + os.environ.get('OUTMOD', 'nt'))
            A('s_add_u32', sC_, sC_, 32 * 1280)
        A.label(l1 + 'e')
    ph(A, 4)
    A('s_add_u32', sOUT_, sOUT_, ostep)
    A('s_add_u32', sU, sU, 1); A('s_mov_b32', sPEND, 1)
    A('s_cmp_lg_u32', sNX, 0); A('s_cbranch_scc1', P + 'top')
    A('s_waitcnt', 'vmcnt(1)')
    flag_min(A, sPROG, lanes=nl)
    A('s_cmp_gt_u32', sPROG, sU); A('s_cbranch_scc0', P + 'idle')
    for k in range(W): ld(k, sIN)
    A('s_waitcnt', f"vmcnt({W + XS})")
    publish(A, sU, loc=(kind == 'op')); A('s_mov_b32', sPEND, 0)
    A('s_branch', P + 'top')
    A.label(P + 'idle')
    flag_load(A); A.vm.pop()
    A('s_waitcnt', 'vmcnt(0)')
    publish(A, sU, loc=(kind == 'op')); flag_min(A, sPROG, lanes=nl); A('s_mov_b32', sPEND, 0)
    A('s_cmp_lt_u32', sU, NU); A('s_cbranch_scc1', P + 'fetch')
    A('s_endpgm')

def xlane_sum(A, r, t, rors):
    for sh in rors: A('v_add_f32_dpp', v(r), v(r), v(r), mods=f'row_ror:{sh} row_mask:0xf bank_mask:0xf')
    A('v_mov_b32', v(t), v(r)); A('v_permlane16_swap_b32', v(t), v(r)); A('v_add_f32', v(r), v(r), v(t))
    A('v_mov_b32', v(t), v(r)); A('v_permlane32_swap_b32', v(t), v(r)); A('v_add_f32', v(r), v(r), v(t))

def emit_ln(A, mode, ready, after=None):
    P = mode.upper() + '_'
    A.label(P + 'entry'); A.reset_counts()
    X, P0, P1, X1R, F, O = 44, 64, 104, 144, 164, 204
    VF, VP, LW = 32, 33, 34
    nl = {'ln0': 1, 'ln1': 10, 'lna': 20}[mode]
    step = 4 if mode == 'ln0' else 1
    common_setup(A, nl)
    A('v_lshrrev_b32', v(TM), 4, v(LN_)); A('v_and_b32', v(TM + 1), 15, v(LN_))
    A('v_lshlrev_b32', v(TM + 2), 9, v(TM)); A('v_lshl_add_u32', v(VF), v(TM + 1), 4, v(TM + 2))
    A('s_lshl_b32', sT0, sW, 2); A('v_add_u32', v(LW), sT0, v(L16))
    A('s_and_b32', sT3, sI, 1); A('s_lshl_b32', sT3, sT3, 8)
    A('s_mul_i32', sT2, sW, 20 * 512); A('s_add_u32', sT2, sT2, sT3)
    if mode == 'ln0':
        A('v_mul_u32_u24', v(TM + 2), 1280, v(TM + 1)); A('v_lshl_add_u32', v(VP), v(TM), 4, v(TM + 2))
        A('s_lshr_b32', sU, sI, 1); A('s_mul_i32', sT1, sU, UX); A('s_add_u32', sT2, sT2, sT1)
        A('s_add_u32', sB, sT2, XRES); A('s_add_u32', sOUT_, sT2, XN)
        A('s_mul_i32', sA, sT3, 80); A('s_add_u32', sA, sA, sT1); A('s_mul_i32', sT1, sW, 320); A('s_add_u32', sA, sA, sT1)
        A('s_mov_b32', sPROG, NU); A('s_mov_b32', 's78', sL); A('s_mov_b32', sL, 0)
        flag_out_addr(A, FL_XN); A('s_mov_b32', sL, 's78')
    elif mode == 'ln1':
        A('s_add_u32', sIN, sT2, XRES + LAYER_X); A('s_add_u32', sOUT_, sT2, XN + LAYER_X)
        A('s_mov_b32', sFI, FL_F2); A('s_mov_b32', sL, 1)
        flag_out_addr(A, FL_XN)
    else:
        A('s_mul_i32', sA, sL, LAYER_OP); A('s_add_u32', sA, sA, sT2); A('s_add_u32', sA, sA, OPART)
        A('s_mul_i32', sT1, sL, LAYER_X); A('s_add_u32', sT2, sT2, sT1)
        A('s_add_u32', sIN, sT2, XRES); A('s_add_u32', sOUT_, sT2, XN1); A('s_add_u32', sB, sT2, X1)
        A('s_mul_i32', sFI, sL, FL_LAYER); A('s_add_u32', sFI, sFI, FL_OP)
        flag_out_addr(A, FL_LNA)
    def f5(op, reg, base):
        for i in range(5):
            if i % 2 == 0: A('s_add_u32', sT3, base, i * 2048)
            A(op, v(reg + 4 * i, 4), v(VF), WS, sT3, mods=f'offen offset:{(i%2)*2048} sc1')
    nld = {'ln0': 5, 'ln1': 6, 'lna': 16}[mode]
    def loads():
        if mode == 'ln0':
            for i in range(5): A('buffer_load_dwordx4', v(X + 4 * i, 4), v(VP), SX, sA, mods=f'offen offset:{64*i}')
            A('s_add_u32', sA, sA, 4 * UX)
            return
        f5('buffer_load_dwordx4', X, sIN)
        if mode == 'lna':
            f5('buffer_load_dwordx4', P0, sA); A('s_add_u32', sA, sA, UP)
            f5('buffer_load_dwordx4', P1, sA); A('s_add_u32', sA, sA, UP)
        A('s_add_u32', sIN, sIN, UX)
    a0, a1, tt = TM, TM + 2, TM + 4
    def xsum(region, mid=None):
        xlane_sum(A, a0, tt, [])
        A('ds_write_b32', v(LW), v(a0), mods=f'offset:{region}')
        if mid: mid()
        A('s_waitcnt', 'lgkmcnt(0)'); A('s_barrier')
        A('ds_read_b128', v(a0, 4), v(L16), mods=f'offset:{region}')
        A('s_waitcnt', 'lgkmcnt(0)')
        A('v_pk_add_f32', v(a0, 2), v(a0, 2), v(a0 + 2, 2)); A('v_add_f32', v(a0), v(a0), v(a0 + 1))
    ready(A)
    A.label(P + 'fetch')
    if mode != 'ln0': poll(A, P + 'p', sU, lanes=nl)
    loads()
    A.label(P + 'top')
    ph_dump(A); ph(A, 0)
    n = 20
    def unp(d, x):
        A('v_lshlrev_b32', v(d), 16, v(x)); A('v_and_b32', v(d + 1), '0xffff0000', v(x))
    fl = 0
    if mode == 'lna':
        A('s_waitcnt', 'vmcnt(5)')
        for i in range(n):
            unp(F + 2 * i, X + i); unp(TM + 6, P0 + i)
            A('v_pk_add_f32', v(F + 2 * i, 2), v(F + 2 * i, 2), v(TM + 6, 2))
    for i in range(n):
        if i % 4 == 0: A('s_waitcnt', f'vmcnt({4 - i//4 + fl})')
        if mode == 'lna':
            unp(TM + 6, P1 + i)
            A('v_pk_add_f32', v(F + 2 * i, 2), v(F + 2 * i, 2), v(TM + 6, 2))
            A('v_cvt_pk_bf16_f32', v(X1R + i), v(F + 2 * i), v(F + 2 * i + 1))
            unp(F + 2 * i, X1R + i)
        else:
            unp(F + 2 * i, X + i)
            if mode == 'ln0': A('v_mov_b32', v(X1R + i), v(X + i))
        if i == 1: A('v_pk_add_f32', v(a0, 2), v(F, 2), v(F + 2, 2))
        elif i > 1: A('v_pk_add_f32', v(a0, 2), v(a0, 2), v(F + 2 * i, 2))
    ph(A, 1)
    A('v_add_f32', v(a0), v(a0), v(a0 + 1))
    def pf():
        A('s_add_u32', sU, sU, step)
        if mode != 'ln0': flag_load(A)
        else:
            A('s_cmp_lt_u32', sU, NU); A('s_cselect_b32', 's75', sA, '0x20000000'); A('s_add_u32', sA, sA, 4 * UX)
    pl = []
    if mode == 'ln0':
        for i in range(5): pl.append(lambda i=i: A('buffer_load_dwordx4', v(X + 4 * i, 4), v(VP), SX, 's75', mods=f'offen offset:{64*i}'))
    xsum(0, pf)
    A('v_mul_f32', v(a0), hex(f32bits(-1.0 / 640)), v(a0)); A('v_mov_b32', v(a0 + 1), v(a0))
    def rnd(r):
        A('v_cvt_pk_bf16_f32', v(r), v(r), v(r)); A('v_lshlrev_b32', v(r), 16, v(r))
    dm = TM + 10
    A('v_mov_b32', v(dm), v(a0)); rnd(dm); A('v_sub_f32', v(dm), v(dm), v(a0))
    for i in range(n):
        A('v_pk_add_f32', v(F + 2 * i, 2), v(F + 2 * i, 2), v(a0, 2))
        if i == 0: A('v_pk_mul_f32', v(a1, 2), v(F, 2), v(F, 2))
        else: A('v_pk_fma_f32', v(a1, 2), v(F + 2 * i, 2), v(F + 2 * i, 2), v(a1, 2))
        if i % 4 == 3 and pl: pl.pop(0)()
    A('v_add_f32', v(a0), v(a1), v(a1 + 1))
    def st1():
        if mode == 'ln0':
            f5('buffer_store_dwordx4', X1R, sB); A('s_add_u32', sB, sB, step * UX)
    xsum(1024, st1)
    A('v_mul_f32', v(a1), hex(f32bits(1.0 / 640)), v(a0)); rnd(a1)
    A('v_add_f32', v(a1), hex(f32bits(1e-5)), v(a1)); rnd(a1)
    A('v_sqrt_f32', v(a1), v(a1)); rnd(a1)
    A('v_rcp_f32', v(a0), v(a1)); A('v_mov_b32', v(a0 + 1), v(a0))
    A('v_mul_f32', v(dm), v(dm), v(a0)); A('v_mov_b32', v(dm + 1), v(dm))
    for i in range(n):
        A('v_pk_fma_f32', v(F + 2 * i, 2), v(F + 2 * i, 2), v(a0, 2), v(dm, 2))
        A('v_cvt_pk_bf16_f32', v(O + i), v(F + 2 * i), v(F + 2 * i + 1))
        if i % 4 == 3:
            k = i // 4
            if k % 2 == 0: A('s_add_u32', sT3, sOUT_, k * 2048)
            A('buffer_store_dwordx4', v(O + 4 * k, 4), v(VF), WS, sT3, mods=f'offen offset:{(k%2)*2048} sc1')
    ph(A, 2)
    A('s_add_u32', sOUT_, sOUT_, step * UX)
    if mode == 'ln0':
        A('s_waitcnt', 'vmcnt(0)')
        (publish_wg if int(os.environ.get('WGP', 1)) else publish)(A, sU)
        A('s_cmp_lt_u32', sU, NU); A('s_cbranch_scc1', P + 'top')
    else:
        A('s_waitcnt', 'vmcnt(5)')
        flag_min(A, sPROG, lanes=nl)
        A('s_cmp_gt_u32', sPROG, sU); A('s_cbranch_scc0', P + 'idle')
        loads()
        A('s_waitcnt', f"vmcnt({15 if mode == 'lna' else 5})")
        (publish_wg if int(os.environ.get('WGP', 1)) else publish)(A, sU)
        A('s_branch', P + 'top')
        A.label(P + 'idle')
        flag_load(A)
        A('s_waitcnt', 'vmcnt(0)')
        (publish_wg if int(os.environ.get('WGP', 1)) else publish)(A, sU)
        flag_min(A, sPROG, lanes=nl)
        A('s_cmp_lt_u32', sU, NU); A('s_cbranch_scc1', P + 'fetch')
    A.label(P + 'end')
    if after: after()
    else: A('s_endpgm')

def emit_att(A, ready):
    P = 'ATT_'
    A.label(P + 'entry'); A.reset_counts()
    Q, K, V, KMR, VMR, S, PB, O = 64, 96, 128, 160, 176, 184, 208, 224
    FRK, L8, SA, NEG, ZR = 32, 33, 34, 35, 36
    sCH, sFC, sKMo, sSC = 's74', 's75', 's76', 's77'
    msk = ['s[80:81]', 's[82:83]', 's[84:85]', 's[86:87]']
    common_setup(A, 3)
    g, n = TM, TM + 1
    A('v_lshrrev_b32', v(g), 4, v(LN_)); A('v_and_b32', v(n), 15, v(LN_))
    A('v_and_b32', v(TM + 2), 13, v(n)); A('v_and_b32', v(TM + 3), 1, v(g)); A('v_lshl_or_b32', v(TM + 2), v(TM + 3), 1, v(TM + 2))
    A('v_lshlrev_b32', v(TM + 2), 4, v(TM + 2)); A('v_lshrrev_b32', v(TM + 3), 1, v(g)); A('v_lshl_add_u32', v(FRK), v(TM + 3), 8, v(TM + 2))
    A('v_lshlrev_b32', v(L8), 3, v(LN_))
    A('v_and_b32', v(37), 31, v(LN_)); A('v_lshlrev_b32', v(37), 7, v(37))
    A('v_lshlrev_b32', v(TM + 2), 9, v(g)); A('v_lshl_add_u32', v(SA), v(n), 4, v(TM + 2))
    for r in range(4):
        A('v_lshl_add_u32', v(TM + 2), v(g), 2, r); A('v_cmp_le_u32', msk[r], v(TM + 2), v(n))
    A('v_mov_b32', v(NEG), hex(f32bits(-1e9 * 128 ** 0.5))); A('v_mov_b32', v(ZR), 0)
    A('s_lshl_b32', sT2, sI, 2); A('s_add_u32', sT2, sT2, sW)
    A('s_mul_i32', sT3, sL, LAYER_F); A('s_lshl_b32', sT1, sT2, 13); A('s_add_u32', sT3, sT3, sT1)
    A('s_add_u32', sIN, sT3, KF); A('s_add_u32', sOUT_, sT3, OF)
    A('s_mul_i32', sKMo, sL, LAYER_KM); A('s_lshl_b32', sT1, sT2, 12); A('s_add_u32', sKMo, sKMo, sT1); A('s_add_u32', sKMo, sKMo, KM)
    A('s_mul_i32', sT3, sL, FL_LAYER)
    A('s_lshr_b32', sT1, sT2, 1); A('s_mul_i32', sT1, sT1, 384); A('s_add_u32', sFI, sT3, sT1); A('s_and_b32', sT1, sT2, 1); A('s_lshl_b32', sT1, sT1, 3)
    A('s_add_u32', sFI, sFI, sT1); A('s_add_u32', sFI, sFI, FL_QKV)
    A('s_lshl_b32', sT1, sT2, 7); A('s_add_u32', sFC, sT3, sT1); A('s_add_u32', sFC, sFC, FL_CH)
    A('s_mov_b32', sCH, 0); A('s_mov_b32', sSC, hex(f32bits(128 ** -0.5 * 1.4426950408889634)))
    flag_out_addr(A, FL_ATT)
    ready(A)
    def ld8(reg, base, delta):
        for i in range(8):
            if i % 4 == 0: A('s_add_u32', sT3, base, delta + i * 1024)
            A('buffer_load_dwordx4', v(reg + 4 * i, 4), v(L16), WS, sT3, mods=f'offen offset:{(i%4)*1024} sc1')
    A.label(P + 'fetch')
    poll(A, P + 'p', sU, n=2, lanes=3)
    ld8(Q, sIN, QF - KF); ld8(K, sIN, 0); ld8(V, sIN, VT - KF)
    A.label(P + 'top')
    A('s_waitcnt', 'vmcnt(8)')
    A.reset_counts()
    sreg = {(0, 'm'): S, (0, 0): S + 4, (1, 'm'): S + 8, (1, 0): S + 12, (1, 1): S + 16}
    for kp in range(4):
        for qt, kt in ((0, 0), (1, 0), (1, 1)):
            r = v(sreg[(qt, kt)], 4)
            A('v_mfma_f32_16x16x32_bf16', r, v(K + 16 * kt + 4 * kp, 4), v(Q + 16 * qt + 4 * kp, 4), '0' if kp == 0 else r)
    for base in (sreg[(0, 0)], sreg[(1, 1)]):
        for r in range(4): A('v_cndmask_b32', v(base + r), v(NEG), v(base + r), msk[r])
    A('s_mov_b32', sSPIN, 0)
    A.label(P + 'km')
    for kp in range(4): A('buffer_load_dwordx4', v(KMR + 4 * kp, 4), v(FRK), WS, sKMo, mods=f'offen offset:{1024*kp} sc1', tag=('km', kp))
    for w_ in range(4): A('buffer_load_dwordx2', v(VMR + 2 * w_, 2), v(L8), WS, sKMo, mods=f'offen offset:{1024*w_+512} sc1', tag='vm')
    flag_load(A, n=2)
    regs = [KMR + i for i in range(24)]
    for kp in range(4):
        A.wait(vm=[('km', kp)])
        for qt in range(2):
            r = v(sreg[(qt, 'm')], 4)
            A('v_mfma_f32_16x16x32_bf16', r, v(KMR + 4 * kp, 4), v(Q + 16 * qt + 4 * kp, 4), '0' if kp == 0 else r)
            for i in range(2):
                x = KMR + 4 * kp + 2 * qt + i
                A('v_pk_max_u16', v(TM + 8), v(x), v(x) if x == KMR else v(TM + 8))
    A.wait(vm=0)
    for i in range(8): A('v_pk_max_u16', v(TM + 8), v(VMR + i), v(TM + 8))
    A('v_pk_max_u16', v(TM + 8), v(TM + 8), v(TM + 8), mods='op_sel:[0,1] op_sel_hi:[1,0]')
    A('v_cmp_le_u32', 'vcc', '0xff810000', v(TM + 8))
    A('s_cbranch_vccz', P + 'kmok')
    A('s_cmp_lg_u32', sDEAD, 0); A('s_cbranch_scc1', P + 'kmok')
    if int(os.environ.get('KSL', 2)):
        A('s_cmp_lg_u32', sSPIN, 0); A('s_cbranch_scc1', P + 'kmx')
        A.label(P + 'kmw')
        A('s_sleep', int(os.environ.get('KSL', 2)) - 1)
        A('buffer_load_dword', v(TM + 8), v(37), WS, sKMo, mods='offen sc1'); A('s_waitcnt', 'vmcnt(0)')
        A('s_add_u32', sSPIN, sSPIN, 1)
        A('v_cmp_eq_u32', 'vcc', hex(SENT), v(TM + 8)); A('s_cbranch_vccz', P + 'km')
        A('s_cmp_lt_u32', sSPIN, 4 * SPIN_MAX); A('s_cbranch_scc1', P + 'kmw')
        A.label(P + 'kmx')
    A('v_mov_b32', v(TM + 8), -1)
    for r_ in regs:
        A('v_xor_b32', v(TM + 9), hex(SENT), v(r_)); A('v_pk_min_u16', v(TM + 8), v(TM + 8), v(TM + 9))
    A('v_pk_min_u16', v(TM + 8), v(TM + 8), v(TM + 8), mods='op_sel:[0,1] op_sel_hi:[1,0]')
    A('v_cmp_eq_u32', 'vcc', 0, v(TM + 8))
    A('s_cbranch_vccz', P + 'kmok')
    if int(os.environ.get('KSL2', 0)): A('s_sleep', int(os.environ.get('KSL2', 0)))
    A('s_add_u32', sSPIN, sSPIN, 1); A('s_cmp_lt_u32', sSPIN, 4 * SPIN_MAX); A('s_cbranch_scc1', P + 'km')
    A('s_mov_b32', sDEAD, 1)
    A.label(P + 'kmok')
    A('s_add_u32', sKMo, sKMo, 32 * 4096)
    flag_min(A, sPROG, n=2, lanes=3)
    A('s_add_u32', sT2, sU, 1); A('s_cmp_gt_u32', sPROG, sT2); A('s_cselect_b32', sNX, 1, 0)
    A('s_add_u32', sIN, sIN, 32 * 8192); A('s_cmp_eq_u32', sNX, 0); A('s_cbranch_scc1', P + 'nq')
    ld8(Q, sIN, QF - KF); ld8(K, sIN, 0)
    A.label(P + 'nq')
    for qt in range(2):
        m_ = sreg[(qt, 'm')]
        vals = [m_, m_ + 1] + [sreg[(qt, 0)] + i for i in range(4 + 4 * qt)]
        mx, tm, sm = TM, TM + 1, TM + 2 + qt
        A('v_max3_f32', v(mx), v(vals[0]), v(vals[1]), v(vals[2])); A('v_max3_f32', v(tm), v(vals[3]), v(vals[4]), v(vals[5]))
        if qt:
            A('v_max3_f32', v(mx), v(mx), v(vals[6]), v(vals[7])); A('v_max3_f32', v(tm), v(tm), v(vals[8]), v(vals[9]))
        A('v_max_f32', v(mx), v(mx), v(tm)); A('v_mov_b32', v(tm), v(mx))
        A('v_permlane32_swap_b32', v(tm), v(mx)); A('v_max_f32', v(mx), v(mx), v(tm)); A('v_mov_b32', v(tm), v(mx))
        A('v_permlane16_swap_b32', v(tm), v(mx)); A('v_max_f32', v(mx), v(mx), v(tm))
        for r in vals: A('v_sub_f32', v(r), v(r), v(mx))
        for r in vals: A('v_mul_f32', v(r), sSC, v(r))
        for r in vals: A('v_exp_f32', v(r), v(r))
        pb = PB + 8 * qt
        for i in range(2 + 2 * qt): A('v_cvt_pk_bf16_f32', v(pb + i), v(vals[2 + 2 * i]), v(vals[3 + 2 * i]))
        if qt == 0: A('v_mov_b64', v(pb + 2, 2), 0)
        A('v_cvt_pk_bf16_f32', v(pb + 4), v(m_), v(m_ + 1)); A('v_mov_b32', v(pb + 5), 0); A('v_mov_b32', v(pb + 6), 0); A('v_mov_b32', v(pb + 7), v(pb + 4))
        A('v_add_f32', v(sm), v(vals[0]), v(vals[1]))
        for r in vals[2:]: A('v_add_f32', v(sm), v(sm), v(r))
        xlane_sum(A, sm, tm, [])
        A('v_rcp_f32', v(sm), v(sm))
    for qt in range(2):
        pb = PB + 8 * qt; sm = TM + 2 + qt
        for et in range(8):
            A('v_mfma_f32_16x16x32_bf16', v(O + 4 * et, 4), v(V + 4 * et, 4), v(pb, 4), '0')
        for et in range(8):
            A('v_mfma_f32_16x16x16_bf16', v(O + 4 * et, 4), v(VMR + 2 * (et >> 1), 2), v(pb + 4 + 2 * (et & 1), 2), v(O + 4 * et, 4))
        for p in range(4):
            st = S + 4 * (p & 1) + 8 * qt if False else KMR + 4 * p
            for i in range(8): A('v_mul_f32', v(O + 8 * p + i), v(O + 8 * p + i), v(sm))
            for i in range(4): A('v_cvt_pk_bf16_f32', v(st + i), v(O + 8 * p + 2 * i), v(O + 8 * p + 2 * i + 1))
            if p % 2 == 0: A('s_add_u32', sT3, sOUT_, p * 2048)
            local(A, lambda md: A('buffer_store_dwordx4', v(st, 4), v(SA), WS, sT3, mods=f'offen offset:{(p%2)*2048 + qt*256} {md}'))
    A('s_add_u32', sOUT_, sOUT_, 32 * 8192); A('s_add_u32', sU, sU, 1)
    A('s_cmp_eq_u32', sNX, 0); A('s_cbranch_scc1', P + 'nv')
    ld8(V, sIN, VT - KF)
    A('s_waitcnt', 'vmcnt(8)')
    publish(A, sU, loc=True)
    A('s_branch', P + 'top')
    A.label(P + 'nv')
    A('s_waitcnt', 'vmcnt(0)')
    publish(A, sU, loc=True)
    A('s_cmp_lt_u32', sU, NU); A('s_cbranch_scc1', P + 'fetch')
    A('s_endpgm')
```

```python
from asmgen import *
from layout import *
import os, struct
def env(n, d=0): return int(os.environ.get(n, d))
X_NOADV, X_NOFLAG, X_NOPUB, X_NOPF = env('X_NOADV'), env('X_NOFLAG'), env('X_NOPUB'), env('X_NOPF')
RDELAY, GDELAY = env('RDELAY', 8), env('GDELAY', 50)
PUBAT = env('PUBAT', 9)
RGAP = env('RGAP', 6)
KVMOD = os.environ.get('KVMOD', 'sc1')

WS = 's[8:11]'; SQ = 's[12:15]'; SK = 's[16:19]'; SV = 's[20:23]'; SO = 's[24:27]'; SX = 's[28:31]'; SM0 = 's[32:35]'
SW1 = 's[36:39]'; SW2 = 's[40:43]'; SOUT = 's[44:47]'; SDBG = 's[48:51]'
sW, sH, sC, sS = 's52', 's53', 's54', 's55'
sMEMc, sMEMo, sPST, sPLD, sPLD1, sSTR, sVT, sKF, sKM, sTAG, sFLO, sPROG, sSPIN, sDEAD = ['s%d' % i for i in range(56, 70)]
sT0, sT1, sT2, sT3 = 's70', 's71', 's72', 's73'
sDMEM, sPST1, sPST2, sXX, sFIN, sSCALE = 's74', 's75', 's76', 's77', 's78', 's79'

sPSTS = [sPST, sPST1, sPST2, sXX, 's4']
sSTRS = [sSTR, 's3', 's5', 's6', 's7']
sONES = 's[40:41]'
sPFK, sPFV, sFOV = 's36', 's37', 's38'
L_MEM = 0; L_QB = 10240; L_KB = 12288; L_VM = 14336; L_KX = 16384; L_O = L_KX; L_W = 24576
UNITS = [9, 8, 8, 9]
L_WBASE = [L_W + 4096 * sum(UNITS[:w]) for w in range(4)]
NSTR = [8, 10, 10, 9]
LANE16, IDX, RDEST, KW, PST2, QKW, FR, LDSW = range(8)
AQK = 8; AV = 24; AW = 32; SL = [40, 48, 56, 64, 72]; RES0 = 80
SPIN_MAX = 1 << 16
STAMPS = ['top', 'b1', 0, 'b2', 'sc', 2, 3, 4, 'r1', 5, 'start']
if env('ACKT'): STAMPS = ['top', 'b1', 0, 'b2', 'sc', 2, 3, 4, 'ack', 5, 'start']
if env('STAMPSET') == 1: STAMPS = ['top', 2, 'p1', 'p2', 'p3', 'p4', 3, 'o4', 'o10', 'o16', 'start']
if env('STAMPSET') == 2: STAMPS = ['top', 'q8', 'q16', 'q24', 'q32', 0, 'sc', 's1', 's2', 2, 'start']

def f32bits(x):
    return struct.unpack('<I', struct.pack('<f', x))[0]

def tstamp(A, sfo, val, tmp):
    A('s_memrealtime', 's[90:91]')
    if env('CLK'): A('s_memtime', 's[94:95]')
    A('s_lshr_b32', 's92', sfo, 7); A('s_lshl_b32', 's92', 's92', 2); A('s_bfe_u32', 's93', sfo, 0x20002); A('s_add_u32', 's92', 's92', 's93')
    A('s_lshl_b32', 's92', 's92', 9); A('s_lshl_b32', 's93', val, 2); A('s_add_u32', 's92', 's92', 's93'); A('s_add_u32', 's92', 's92', DBGT + (1 << 20))
    A('s_waitcnt', 'lgkmcnt(0)')
    A('v_mov_b32', v(tmp), 's90')
    if env('CLK'):
        A('s_bitcmp1_b32', val, 0); A('s_cselect_b32', 's90', 's94', 's90'); A('v_mov_b32', v(tmp), 's90')
    A('buffer_store_dword', v(tmp), 'off', WS, 's92'); A.vm.pop()

KOWN = [0, 3, 6, 8]; NOWN = [3, 3, 2, 2]
def korder(w):
    return [[0, 1, 2, 4, 3, 6, 7, 8, 5, 9], [3, 4, 2, 5, 0, 1, 6, 7, 8, 9], [6, 7, 2, 1, 0, 4, 3, 5, 8, 9], [8, 9, 2, 1, 0, 3, 4, 6, 5, 7]][w]

def frag_plan(w):
    qk = []
    for j in range(10):
        if w in (0, 3) and j in (4, 7): qk += [('k', j, 0), ('k', j, 1), ('q', j, 0), ('q', j, 1)]
        else: qk += [('q', j, 0), ('q', j, 1), ('k', j, 0), ('k', j, 1)]
    oo = []
    for p in range(5):
        oo += [('o', 0, 2 * p), ('o', 0, 2 * p + 1), ('o', 1, 2 * p), ('o', 1, 2 * p + 1)]
    ab, cd, e_ = [([4, 10, 14, 18], 2, 9), ([4, 10, 14, 18], 6, 9), ([6, 10, 14, 18], 4, 9), ([6, 10, 14, 18], 8, 13), ([6, 10, 14, 18], 2, 9), ([4, 10, 14, 18], 0, 7), ([4, 10, 14, 18], 0, 3), ([6, 10, 14, 18], 2, 5), ([6, 10, 14, 18], 0, 3)][env('OVAR', 0)]
    oslot = {cd: 4, cd + 1: 0, e_: 1}
    for x in ab: oslot[x] = 2; oslot[x + 1] = 3
    opre = sorted([ab[0], ab[0] + 1, cd, cd + 1])
    held = [(1, 4), (0, 0), (4, 1)]
    if w in (1, 2):
        upos = [2, 10, 18, 26, 34]
        qslot = {24: 0, 28: 4}
        for x in upos: qslot[x] = 2; qslot[x + 1] = 3
        qfill = [(0, 1, 0, 24), (2, 1, 4, 28)]
        for a_, b_ in zip(upos, upos[1:]): qfill += [(a_ + (2 if a_ == 2 else 0), 1, 2, b_), (a_ + (2 if a_ > 2 else 3), 1, 3, b_ + 1)]
        mids = [24, 28]
        kslots, qslots = (0, 4), (2, 3)
    else:
        upos = [2, 10, 16, 22, 28, 34]
        qslot = {2: 2, 3: 3, 10: 2, 11: 3, 16: 4, 17: 2, 22: 3, 23: 4, 28: 2, 29: 3, 34: 4, 35: 2, 25: 0}
        qfill = [(2, 1, 2, 10), (4, 1, 3, 11), (6, 2, 4, 16), (10, 0, 2, 17), (12, 1, 3, 22), (16, 0, 4, 23), (18, 2, 2, 28), (22, 0, 3, 29), (24, 1, 4, 34), (28, 0, 2, 35), (0, 1, 0, 25)]
        mids = [25]
        kslots, qslots = (0, 3), (2, 4)
        if w == 0: held = held[:2]
    for n, sl_ in held: qslot[n] = sl_
    streams = [qk[n] for n, _ in held] + [qk[n] for n in mids] + [oo[i] for i in opre] + [oo[e_]]
    ldsf = [qk[x + i] for x in upos for i in range(2)] + [oo[x + i] for x in ab[1:] for i in range(2)]
    assert len(streams) == NSTR[w] and len(ldsf) == 2 * UNITS[w]
    return qk, qslot, qfill, oo, oslot, ab, cd, e_, opre, streams, ldsf, held, kslots, qslots

sMODE = 's96'
def emit_chain_wave(A, w, ready, modes=('', 'sc1'), dbg=False, nsteps=64):
    L = lambda nm: f'CH{w}_{nm}'
    KO = korder(w)
    qk, qslot, qfill, oo, oslot, ab, cd, e_, opre, streams, ldsf, held, kslots, qslots = frag_plan(w)
    allf = qk + [('v', j, t) for j in range(10) for t in range(2)] + oo
    res = [f for f in allf if f not in streams and f not in ldsf]
    assert len(res) == (54 if w < 3 else 53), len(res)
    resreg = {f: (RES0 if w < 3 else RES0 + 8) + 8 * i for i, f in enumerate(res)}
    XR = RES0
    strm_idx = {f: i for i, f in enumerate(streams)}
    unit_of = lambda f: (f[0], f[1], f[2] >> 1)
    for i in range(0, len(ldsf), 2):
        assert unit_of(ldsf[i]) == unit_of(ldsf[i + 1]), (ldsf[i], ldsf[i + 1])
    lds_units = [unit_of(ldsf[i]) for i in range(0, len(ldsf), 2)]
    def mine(st, ww):
        X, k, p = st
        return (X, korder(ww).index(k), 0) if X != 'o' else st
    stages = [(X, k, 0) for X in 'qkv' for k in range(10)] + [('o', kp, p) for kp in range(2) for p in range(5)]
    cnt = lambda st, ix: sum(1 for ww in range(4) if any(unit_of(f) == mine(st, ww) for f in frag_plan(ww)[ix]))
    stages = sorted(stages, key=lambda st: (cnt(st, 10) == 4, cnt(st, 9) == 0))
    assert all(cnt(st, 10) == 4 for st in stages[32:]) and cnt(stages[31], 10) < 4
    NSEND = sum(1 for st in stages if cnt(st, 9)) + 1
    lds_off = {}
    for u in lds_units:
        ps = [n % 8 for n in range(32, 40) if mine(stages[n], w) == u]
        for t in range(2):
            lds_off[(u[0], u[1], 2 * u[2] + t)] = (ps[0] if ps else 8) * 4096 + t * 2048
    groups = [[0, 1], [2], [3], [4]][w]
    ng = len(groups)

    def half_fill(slot, f, hf):
        r = SL[slot] + 4 * hf
        tag = ('F', f)
        if f in lds_off:
            A('ds_read_b128', v(r, 4), v(LDSW), mods=f'offset:{lds_off[f] + 1024*hf}', tag=tag)
        else:
            i = strm_idx[f]
            so = sSTRS[i >> 1]
            A('buffer_load_dwordx4', v(r, 4), v(LANE16), WS, so, mods=f'offen offset:{(i&1)*2048 + 1024*hf}', tag=tag)
    def fill(slot, f):
        half_fill(slot, f, 0); half_fill(slot, f, 1)
    def smf(acc, areg, f, slot):
        if slot is None:
            b = R(resreg[f], 8)
        else:
            if f in lds_off: A.wait(lg=[('F', f)])
            else: A.wait(vm=[('F', f)])
            b = v(SL[slot], 8)
        A('v_smfmac_f32_16x16x64_bf16', v(acc, 4), v(areg, 4), b, v(IDX))
    def add2(d, a_, b_):
        A('v_add_f32', v(d), v(a_), v(b_)); A('v_add_f32', v(d + 1), v(a_ + 1), v(b_ + 1))

    A.label(L('entry'))
    A.reset_counts()
    T = [SL[0] + i for i in range(40)]
    ln = T[0]; g = T[1]; c = T[2]
    A('v_and_b32', v(ln), 63, 'v0')
    A('v_lshlrev_b32', v(LANE16), 4, v(ln))
    A('v_lshrrev_b32', v(g), 4, v(ln)); A('v_and_b32', v(c), 15, v(ln))
    A('v_and_b32', v(T[3]), 2, v(ln)); A('v_cmp_ne_u32', 'vcc', 0, v(T[3]))
    A('v_mov_b32', v(T[4]), '0x4444'); A('v_mov_b32', v(T[5]), '0xeeee'); A('v_cndmask_b32', v(IDX), v(T[4]), v(T[5]), 'vcc')
    A('v_and_b32', v(T[3]), 13, v(c)); A('v_and_b32', v(T[4]), 1, v(g)); A('v_lshl_or_b32', v(T[3]), v(T[4]), 1, v(T[3]))
    A('v_lshlrev_b32', v(T[3]), 4, v(T[3])); A('v_lshrrev_b32', v(T[4]), 1, v(g)); A('v_lshl_add_u32', v(FR), v(T[4]), 8, v(T[3]))
    A('v_lshrrev_b32', v(T[3]), 3, v(c)); A('v_lshlrev_b32', v(T[3]), 8, v(T[3]))
    A('v_lshl_add_u32', v(T[3]), v(g), 6, v(T[3]))
    A('v_bfe_u32', v(T[4]), v(c), 2, 1); A('v_lshl_add_u32', v(T[3]), v(T[4]), 5, v(T[3]))
    A('v_and_b32', v(T[4]), 3, v(c)); A('v_lshl_add_u32', v(T[3]), v(T[4]), 2, v(T[3]))
    A('v_add_u32', v(QKW), L_QB + w * 512, v(T[3]))
    A('v_add_u32', v(LDSW), L_WBASE[w], v(LANE16))
    A('v_add_u32', v(KW), L_KB - L_QB, v(QKW))
    A('s_mov_b32', sT0, PIECE)
    A('v_lshrrev_b32', v(T[3]), 3, v(c)); A('v_lshl_add_u32', v(T[3]), v(T[3]), 2, v(g)); A('v_mul_lo_u32', v(T[3]), v(T[3]), sT0)
    A('v_and_b32', v(T[4]), 7, v(c)); A('v_lshl_add_u32', v(PST2), v(T[4]), 3, v(T[3]))
    A('s_mul_i32', sT0, sH, 5); A('s_add_u32', sT0, sT0, groups[0])
    A('v_lshrrev_b32', v(T[3]), 3, v(c)); A('v_add_u32', v(T[3]), sT0, v(T[3]))
    A('v_and_b32', v(T[9]), 3, v(c)); A('v_lshlrev_b32', v(T[9]), 4, v(T[9]))
    A('v_lshl_add_u32', v(T[9]), v(g), 2, v(T[9]))
    A('v_bfe_u32', v(T[8]), v(c), 2, 1); A('v_lshl_add_u32', v(T[9]), v(T[8]), 1, v(T[9]))
    A('v_lshl_add_u32', v(RDEST), v(T[3]), 6, v(T[9]))
    if ng == 1:
        A('v_mov_b32', v(T[6]), '0x40000000'); A('v_cmp_lt_u32', 'vcc', 7, v(c)); A('v_cndmask_b32', v(RDEST), v(RDEST), v(T[6]), 'vcc')
    if w == 3:
        A('v_lshlrev_b32', v(XR + 3), 7, v(ln))
        A('v_mov_b64', v(XR + 6, 2), 0)
        A('v_mov_b32', v(T[6]), '0x40000000'); A('v_cmp_gt_u32', 'vcc', 2, v(ln)); A('v_cndmask_b32', v(XR + 5), v(T[6]), v(XR + 3), 'vcc')
        A('v_cmp_gt_u32', 'vcc', 1, v(ln)); A('v_cndmask_b32', v(XR + 2), v(T[6]), v(XR + 3), 'vcc')
    A('s_mul_i32', sT0, sC, 2 * MEMB_SZ); A('s_add_u32', sMEMc, sT0, MEMB); A('s_add_u32', sMEMo, sMEMc, MEMB_SZ)
    A('s_xor_b32', sDMEM, sMEMc, sMEMo)
    A('s_mul_i32', sT0, sC, PART_SZ); A('s_add_u32', sT0, sT0, PART)
    A('s_lshl_b32', sT1, sH, 6); A('s_add_u32', sPST, sT0, sT1); A('s_add_u32', sPST, sPST, 8 * w * PIECE)
    for p in range(1, 5): A('s_add_u32', sPSTS[p], sPST, 32 * p * PIECE)
    A('s_mul_i32', sT1, sH, 5 * PIECE); A('s_add_u32', sPLD, sT1, sT0); A('s_add_u32', sPLD, sPLD, groups[0] * PIECE)
    A('s_add_u32', sPLD1, sPLD, PIECE)
    A('s_mov_b32', sTAG, 0)
    A('s_mul_i32', sSTR, sH, STRM_H); A('s_add_u32', sSTR, sSTR, STRM + 2048 * sum(NSTR[:w]))
    for i in range(1, 5): A('s_add_u32', sSTRS[i], sSTR, 4096 * i)
    A('s_mul_i32', sT0, sC, LAYER_F); A('s_lshl_b32', sT1, sH, 13); A('s_add_u32', sT0, sT0, sT1)
    A('s_add_u32', sVT, sT0, VT + w * 2048); A('s_add_u32', sKF, sT0, KF + w * 2048)
    A('s_mul_i32', sT0, sC, LAYER_KM); A('s_lshl_b32', sT1, sH, 12); A('s_add_u32', sT0, sT0, sT1); A('s_add_u32', sKM, sT0, KM + 1024 * w - 32 * 4096)
    A('s_mul_i32', sT0, sC, FL_LAYER); A('s_lshr_b32', sT1, sH, 1); A('s_mul_i32', sT1, sT1, 3 * 128); A('s_add_u32', sFIN, sT0, sT1); A('s_add_u32', sFIN, sFIN, FL_QKV + 128)
    A('s_and_b32', sT1, sH, 1); A('s_lshl_b32', sT1, sT1, 3); A('s_add_u32', sFIN, sFIN, sT1)
    A('s_lshl_b32', sT1, sH, 7); A('s_add_u32', sFLO, sT0, sT1); A('s_add_u32', sFLO, sFLO, FL_CH)
    A('s_mov_b32', sS, 0); A('s_mov_b32', sPROG, 0); A('s_mov_b32', sDEAD, 0)
    A('s_mov_b32', sSCALE, hex(f32bits(128 ** -0.5 * 1.4426950408889634)))

    CS, CO, CT = AW, AW + 1, AQK + 8
    ch = T[4]; rr = T[5]; ck = T[6]
    A('v_and_b32', v(ch), 3, v(ln))
    A('v_lshlrev_b32', v(ck), 1, v(g)); A('v_xor_b32', v(ck), v(ck), v(c)); A('v_lshlrev_b32', v(ck), 4, v(ck))
    A('v_lshrrev_b32', v(rr), 1, v(g)); A('v_lshlrev_b32', v(rr), 3, v(rr)); A('v_and_b32', v(T[7]), 1, v(g)); A('v_add_u32', v(rr), v(rr), v(T[7]))
    A('v_lshlrev_b32', v(rr), 13, v(rr)); A('s_lshl_b32', sT0, sH, 8); A('v_add3_u32', v(CS), v(rr), v(ck), sT0); A('v_xor_b32', v(CS + 2), 128, v(CS))
    A('v_lshrrev_b32', v(rr), 1, v(g)); A('v_lshlrev_b32', v(rr), 2, v(rr)); A('v_add_u32', v(rr), v(rr), v(T[7]))
    A('v_mul_u32_u24', v(rr), 1280, v(rr)); A('s_mul_i32', sT0, sH, 163840); A('v_add3_u32', v(CO), v(rr), v(ck), sT0); A('v_xor_b32', v(CO + 2), 128, v(CO))
    A('v_bfe_u32', v(rr), v(ln), 2, 2); A('v_lshl_add_u32', v(T[8]), v(T[7]), 2, v(rr)); A('v_lshlrev_b32', v(T[8]), 5, v(T[8]))
    A('v_lshl_add_u32', v(rr), v(T[7]), 3, v(rr)); A('v_lshlrev_b32', v(rr), 8, v(rr))
    A('v_lshrrev_b32', v(T[11]), 1, v(g))
    A('v_mul_u32_u24', v(T[12]), L_WBASE[1] - L_WBASE[0], v(T[11])); A('v_add_u32', v(T[12]), L_WBASE[0], v(T[12])); A('v_add_u32', v(T[12]), v(T[12]), v(rr))
    A('v_mul_u32_u24', v(T[13]), L_WBASE[3] - L_WBASE[2], v(T[11])); A('v_add_u32', v(T[13]), L_WBASE[2], v(T[13])); A('v_add_u32', v(T[13]), v(T[13]), v(rr))
    for t in range(2):
        A('v_lshlrev_b32', v(T[9]), 3, v(ch)); A('v_add_u32', v(T[9]), 64 * w + 32 * t, v(T[9])); A('v_xor_b32', v(T[9]), v(T[9]), v(T[8]))
        A('v_add_u32', v(CT + t), v(T[9]), v(T[12])); A('v_add_u32', v(CT + 4 + t), v(T[9]), v(T[13]))
        A('v_lshrrev_b32', v(T[9]), 1, v(ch)); A('v_lshlrev_b32', v(T[9]), 5, v(T[9])); A('v_and_b32', v(T[10]), 1, v(ch)); A('v_lshl_add_u32', v(T[9]), v(T[10]), 3, v(T[9]))
        A('v_add_u32', v(T[9]), 64 * w + 16 * t, v(T[9])); A('v_xor_b32', v(T[9]), v(T[9]), v(T[8]))
        A('v_add_u32', v(CT + 2 + t), v(T[9]), v(T[12])); A('v_add_u32', v(CT + 6 + t), v(T[9]), v(T[13]))
    A('s_cmp_eq_u32', sC, 0); A('s_cselect_b32', sT2, '0x20000000', 0)
    def cdma(n):
        X, k, p = stages[n]
        for ii in range(4):
            A('s_mov_b32', 'm0', L_WBASE[w] + (n % 8) * 4096 + ii * 1024)
            if X == 'o':
                off = (64 * k + 32 * (w >> 1) + 8 * (w & 1) + 16 * (ii >> 1) + 2 * (ii & 1)) * 1280 + 256 * p
                if ('o', k, 2 * p) in strm_idx and ('o', k, 2 * p + 1) in strm_idx: A('s_add_u32', sT0, sT2, off)
                else: A('s_mov_b32', sT0, off)
                A('buffer_load_dwordx4', v(CO + 2 * (ii >> 1)), SO, sT0, mods='offen lds', tag=('C', n))
            else:
                A('s_mov_b32', sT0, (64 * k + 16 * w + 2 * ii) * 8192)
                A('buffer_load_dwordx4', v(CS + 2 * (ii >> 1)), {'q': SQ, 'k': SK, 'v': SV}[X], sT0, mods='offen lds', tag=('C', n))
    pend = []
    def flush():
        for f, d in pend:
            if f in lds_off:
                A('ds_write_b128', v(LDSW), v(d, 4), mods=f'offset:{lds_off[f]}'); A('ds_write_b128', v(LDSW), v(d + 4, 4), mods=f'offset:{lds_off[f]+1024}')
            else:
                i = strm_idx[f]
                A('s_add_u32', sT1, sSTRS[i >> 1], sT2)
                A('buffer_store_dwordx4', v(d, 4), v(LANE16), WS, sT1, mods=f'offen offset:{(i&1)*2048} sc1', tag='ST')
                A('buffer_store_dwordx4', v(d + 4, 4), v(LANE16), WS, sT1, mods=f'offen offset:{(i&1)*2048+1024} sc1', tag='ST')
        pend.clear()
    def stage(n):
        A.wait(vm=[('C', n)], lg=0)
        A('s_barrier')
        flush()
        if n >= 1 and n + 7 < 40: cdma(n + 7)
        u = mine(stages[n], w)
        for t in range(2):
            f = (u[0], u[1], 2 * u[2] + t)
            d = resreg[f] if f in resreg else SL[(n & 1) * 2 + t]
            if f not in resreg: pend.append((f, d))
            ad = CT + t + (2 if u[0] == 'o' else 0)
            for q4 in range(4):
                A('ds_read_b64_tr_b16', R(d + 2 * q4, 2), v(ad + 4 * (q4 >> 1)), mods=f'offset:{(n % 8)*4096 + 1024*(q4 & 1)}')
    for n in range(8): cdma(n)
    for n in range(33):
        stage(n)
        if n == NSEND:
            sk = A.newlabel(L('nosend'))
            A('s_cmp_eq_u32', sC, 0); A('s_cbranch_scc1', sk)
            sv = list(A.vm); ready(A, True); A.vm[:] = sv
            A('v_mov_b32', v(AV), 1); A('s_add_u32', sT1, sFLO, 4 * w)
            A('buffer_store_dword', v(AV), 'off', WS, sT1, mods='sc1'); A.vm.pop()
            A.label(sk)
    nd = NOWN[w]
    ownreg = [AW, AW + 4, AV + 4][:nd]
    t0_, t1_, t2_ = AV, AV + 1, AV + 2
    A('v_lshrrev_b32', v(t0_), 4, v(LANE16))
    A('v_bfe_u32', v(t1_), v(t0_), 2, 2); A('v_lshlrev_b32', v(t1_), 1, v(t1_))
    A('v_and_b32', v(t2_), 1, v(t0_)); A('v_add_u32', v(t1_), v(t1_), v(t2_)); A('v_mul_u32_u24', v(t1_), 1280, v(t1_))
    A('v_lshrrev_b32', v(t2_), 4, v(t0_)); A('v_lshl_add_u32', v(t1_), v(t2_), 5, v(t1_))
    A('v_bfe_u32', v(t2_), v(t0_), 1, 1); A('v_lshl_add_u32', v(t1_), v(t2_), 4, v(t1_))
    M0R = [AQK, AQK + 4, AW + 4]
    for j in range(nd): A('buffer_load_dwordx4', v(M0R[j], 4), v(t1_), SM0, 0, mods=f'offen offset:{128*(KOWN[w]+j)}')
    A('v_and_b32', v(t2_), 7, v(t0_)); A('v_min_u32', v(AV + 3), 1, v(t2_)); A('v_lshlrev_b32', v(t2_), 2, v(t2_)); A('v_lshl_add_u32', v(t2_), v(AV + 3), 7, v(t2_))
    RQ = SL[4]
    A('buffer_load_dword', v(RQ), 'off', SDBG, 0, mods='offset:32 sc1')
    A('buffer_load_dword', v(RQ + 1), v(t2_), SDBG, 0, mods='offen sc1')
    A('v_lshlrev_b32', v(t0_), 3, v(LANE16))
    for i in range(2 * ng): A('buffer_load_dwordx4', v(AV + 4, 4), v(LANE16), WS, sPLD if i < 2 else sPLD1, mods=f'offen offset:{(i&1)*1024} sc1')
    A('s_add_u32', sT0, sMEMc, 5120 * w)
    A('buffer_load_dword', v(RQ + 2), v(t0_), WS, sT0, mods='offen sc1')
    if w == 3:
        A('s_sub_u32', sT0, sKF, 3 * 2048); A('buffer_load_dword', v(XR), v(t0_), WS, sT0, mods='offen sc1')
    if env('STOUCH', 0):
        for i in range(3): A('buffer_load_dword', v(RQ + 2), v(t0_), WS, sSTRS[2 * i], mods='offen sc1')
    A.vm.append(A.vm.pop() or 'rq')
    for n in range(33, 40):
        stage(n)
    A.wait(vm=0)
    A('s_lshl_b32', sT1, sH, 7); A('s_add_u32', sT1, sT1, FL_CH + FL_LAYER + 4 * w)
    A('buffer_load_dword', v(RQ + 3), 'off', WS, sT1, mods='sc1')
    if w == 3: A('buffer_load_dwordx2', v(XR + 6, 2), v(XR + 5), WS, sFIN, mods='offen sc1')
    A.wait(lg=0); A('s_barrier'); flush()
    A.wait(vm=0, lg=0)
    A('v_readfirstlane_b32', sT0, v(RQ)); A('v_cmp_ne_u32', 'vcc', 32 if not env('FORCE_SLOW') else 33, v(RQ + 1))
    A('s_cmp_ge_u32', sT0, 256); A('s_cselect_b32', sT0, 'vcc_lo', 1); A('s_cmp_eq_u32', sT0, 0)
    A('s_cbranch_scc1', L('rdy'))
    ready(A)
    A('v_mov_b32', v(RQ + 3), 0)
    if w == 3: A('v_mov_b64', v(XR + 6, 2), 0)
    A.label(L('rdy'))
    if env('ONLYCH'): A('s_endpgm')
    A('s_mov_b32', 's40', '0x3f803f80'); A('s_mov_b32', 's41', '0x3f803f80')
    for j in reversed(range(nd)):
        A('ds_write_b128', v(LANE16), v(M0R[j], 4), mods=f'offset:{L_MEM + 1024*(KOWN[w]+j)}')
        A('v_mov_b64', v(ownreg[j], 2), v(M0R[j], 2)); A('v_mov_b64', v(ownreg[j] + 2, 2), v(M0R[j] + 2, 2))
    A('s_lshl_b32', sT1, sH, 7); A('s_add_u32', sT1, sT1, FL_CH + FL_LAYER + 4 * w); A('s_mov_b32', sSPIN, 0)
    A('v_readfirstlane_b32', sT0, v(RQ + 3)); A('s_cmp_lg_u32', sT0, 0); A('s_cbranch_scc1', L('sok'))
    A.label(L('sw'))
    A('buffer_load_dword', v(RQ), 'off', WS, sT1, mods='sc1'); A('s_waitcnt', 'vmcnt(0)')
    A('v_readfirstlane_b32', sT0, v(RQ)); A('s_cmp_lg_u32', sT0, 0); A('s_cbranch_scc1', L('sok'))
    A('s_sleep', 2); A('s_add_u32', sSPIN, sSPIN, 1); A('s_cmp_lt_u32', sSPIN, SPIN_MAX); A('s_cbranch_scc1', L('sw'))
    A.label(L('sok')); A.reset_counts()
    for n in range(5):
        if n in qslot: fill(qslot[n], qk[n])
    A('s_waitcnt', 'lgkmcnt(0)')
    for i in range(0, 16, 2): A('v_mov_b64', v(AQK + i, 2), 0)
    if len(modes) > 1:
        A('s_cmp_lg_u32', sMODE, 0); A('s_cbranch_scc1', f'CHS{w}_start')
    for sc in modes:
        L = lambda nm: f'CH{"S" if sc else "F"}{w}_{nm}'
        A.label(L('start')); A.reset_counts()
        def stamp(i):
            if not dbg or i not in STAMPS: return
            A('s_memtime', s(80 + 2 * STAMPS.index(i), 2))
        def dump():
            A('s_lshl_b32', sT0, sC, 5); A('s_add_u32', sT0, sT0, sH); A('s_lshl_b32', sT0, sT0, 2); A('s_add_u32', sT0, sT0, w)
            A('s_lshl_b32', sT0, sT0, 6); A('s_add_u32', sT0, sT0, DBGT)
            A('s_waitcnt', 'lgkmcnt(0)')
            for i, r_ in enumerate([s(80 + 2 * k) for k in range(11)] + [sDEAD]):
                A('v_mov_b32', v(AV), r_)
                A('buffer_store_dword', v(AV), 'off', WS, sT0, mods=f'offset:{4*i}'); A.vm.pop()
            A('s_waitcnt', 'vmcnt(0)')
        def pub_read(reg, tmp):
            A('v_and_b32', v(tmp), 512, v(LANE16)); A('v_mul_u32_u24', v(tmp), (L_VM - L_KB - 512) // 512, v(tmp)); A('v_add_u32', v(tmp), v(tmp), v(LANE16))
            A('ds_read_b128', v(reg, 4), v(tmp), mods=f'offset:{L_KB + 512*w}', tag='pk')
        def w3upd():
            A('v_min_u32', v(XR), v(XR + 6), v(XR + 7)); A('v_readlane_b32', sT0, v(XR), 0); A('v_readlane_b32', sT3, v(XR), 1)
            A('s_min_u32', sT0, sT0, sT3); A('s_max_u32', sPROG, sPROG, sT0)
        def w3in(need):
            ok = A.newlabel(L('inok')); lp = A.newlabel(L('inlp'))
            A('s_cmp_gt_u32', sPROG, need); A('s_cbranch_scc1', ok)
            A('s_mov_b32', sSPIN, 0)
            A.label(lp)
            A('buffer_load_dwordx2', v(XR + 6, 2), v(XR + 5), WS, sFIN, mods='offen sc1'); A.vm.pop()
            A('s_waitcnt', 'vmcnt(0)')
            w3upd()
            A('s_cmp_gt_u32', sPROG, need); A('s_cbranch_scc1', ok)
            A('s_cmp_lg_u32', sDEAD, 0); A('s_cbranch_scc1', ok)
            A('s_sleep', 2)
            A('s_add_u32', sSPIN, sSPIN, 1); A('s_cmp_lt_u32', sSPIN, SPIN_MAX); A('s_cbranch_scc1', lp)
            A('s_mov_b32', sDEAD, 1)
            A.label(ok)
        def w3prep():
            A('s_add_u32', sFOV, sS, 1)
            if env('SPECPF', 1): A('s_cmp_lt_u32', sFOV, nsteps)
            else: A('s_cmp_gt_u32', sPROG, sFOV)
            A('s_cselect_b32', sT0, 0, (0 if X_NOADV else 32 * 8192)); A('s_sub_u32', sPFK, sKF, sT0); A('s_sub_u32', sPFK, sPFK, 3 * 2048)
            A('s_add_u32', sPFV, sPFK, VT - KF)
            if env('FLSEL', 1): A('s_add_u32', sT0, sS, 2); A('s_cmp_gt_u32', sPROG, sT0); A('s_cselect_b32', sPFV, '0x20000000', sFIN)
            A('s_max_u32', sT0, sS, 1); A('s_sub_u32', sT0, sT0, 1); A('v_mov_b32', v(XR + 4), sT0)
        def kdma():
            A('s_mov_b32', 'm0', L_KX + w * 2048)
            for i in range(2): A('buffer_load_dwordx4', v(LANE16), WS, sKF, mods=f'offen offset:{i*1024} {KVMOD} lds')
            if not X_NOADV: A('s_add_u32', sKF, sKF, 32 * 8192)
        if w == 3: w3upd(); w3in(sS)
        A('s_barrier')
        kdma()
        if w == 3: w3prep()
        A('s_waitcnt', 'vmcnt(0) lgkmcnt(0)')
        A.label(L('loop'))
        A.reset_counts()
        stamp('top')
        accq = {('q', 0): AQK, ('q', 1): AQK + 4, ('k', 0): AQK + 8, ('k', 1): AQK + 12}
        awin = [AW, AW + 4, AV + 4, AW, AW + 4, AV, AV + 4, AV, AW, AW + 4]
        aat = {3: 3, 4: 7, 5: PUBAT + 1, 6: 11, 7: 23, 8: 15, 9: 19}
        def aread(j, reg, tag):
            A('ds_read_b128', v(reg, 4), v(LANE16), mods=f'offset:{L_MEM + 1024*KO[j]}', tag=tag)
        kfr = {}
        def kread(tk, reg):
            t, kp = tk
            kfr[tk] = reg
            if t == 0: A('ds_read_b128', v(reg, 4), v(FR), mods=f'offset:{L_KB + 512*kp}', tag=('K', tk))
            else: A('ds_read_b128', v(reg, 4), v(LANE16), mods=f'offset:{L_KX + ((t-1)*4+kp)*1024}', tag=('K', tk))
        NPRE = 0
        side = {}
        def at(n, fn): side.setdefault(n, []).append(fn)
        for n0, st, s2, fi in qfill:
            at(n0, lambda s2=s2, fi=fi: half_fill(s2, qk[fi], 0)); at(n0 + st, lambda s2=s2, fi=fi: half_fill(s2, qk[fi], 1))
        if dbg:
            def st8():
                sk = A.newlabel(L('st8'))
                A('s_cmp_lg_u32', sS, 8); A('s_cbranch_scc1', sk); A('s_mov_b32', 's100', 's80'); A.label(sk)
            at(20, st8)
        for n0, tk, reg in [(30, (1, 0), SL[kslots[0]]), (31, (2, 0), SL[kslots[0]] + 4), (36, (1, 1), SL[kslots[1]]), (37, (2, 1), SL[kslots[1]] + 4)]:
            at(n0, lambda tk=tk, reg=reg: kread(tk, reg))
        def vxload(hf):
            A('buffer_load_dwordx4', v(SL[1] + 4 * hf, 4), v(LANE16), WS, sVT, mods=f'offen offset:{1024*hf} {KVMOD}', tag='vx')
        if env('LATEPO', 0):
            pr = XR + 2 if w == 3 else SL[0] + 7
            at(0, lambda: A('v_mov_b32', v(pr), hex(SENT)))
            at(1, lambda: A('buffer_store_short', v(pr), v(RDEST), WS, sMEMc, mods=f'offen {sc}'.strip()))
        VXAT = env('VXAT', 6)
        if env('X_KTOP') == 1: at(0, kdma)
        at(VXAT, lambda: vxload(0)); at(VXAT + 2, lambda: vxload(1))
        if w == 3:
            if not X_NOPF:
                at(PUBAT + env('KPAT', 1), lambda: A('buffer_load_dword', v(XR), v(XR + 3), WS, sPFK, mods='offen sc1'))
                if not env('NOVPF', 1): at(PUBAT + 3, lambda: A('buffer_load_dword', v(XR + 1), v(XR + 3), WS, sPFV, mods='offen sc1'))
            if not X_NOFLAG: at(PUBAT + env('FLAT', 5), lambda: A('buffer_load_dwordx2', v(XR + 6, 2), v(XR + 5), WS, sPFV if env('FLSEL', 1) else sFIN, mods='offen sc1'))
            if not X_NOPUB:
                if env('CHFLAG'): at(PUBAT + 6, lambda: A('buffer_store_dword', v(XR + 4), v(XR + 2), WS, sFLO, mods='offen sc1'))
                if env('DBG') == 2: at(PUBAT + 7, lambda: (tstamp(A, sFLO, sS, XR + 4), A.vm.append(None)))
        def pub2():
            if not X_NOPUB and not env('X_NOKM'): A('buffer_store_dwordx4', v(AV, 4), v(LANE16), WS, sKM, mods='offen ' + os.environ.get('PUBMOD', 'sc1'))
        at(PUBAT, pub2)
        at(28, lambda: A('v_mov_b64', v(AV + 4, 2), 0)); at(29, lambda: A('v_mov_b64', v(AV + 6, 2), 0))
        at(32, lambda: A('v_mov_b64', v(AV, 2), 0)); at(33, lambda: A('v_mov_b64', v(AV + 2, 2), 0))
        A('s_barrier'); stamp('b1')
        if w != 0: aread(2, awin[2], ('A', 2))
        A('v_mov_b32', v(AQK + 15), 0)
        for n in range(NPRE, 40):
            f = qk[n]; j = f[1]
            if (n & 1) == 0: A.wait(lg=[('A', j)] + [('F', qk[m]) for m in (n, n + 1) if qk[m] in lds_off])
            stamp(f'q{n}')
            smf(accq[(f[0], f[2])], awin[j], f, qslot.get(n))
            for j2, n2 in aat.items():
                if n2 == n: aread(j2, awin[j2], ('A', j2))
            for fn in side.get(n, []): fn()
        vj = [9, 8, 0, 1, 2, 3, 4, 5, 6, 7]
        vq = []
        for idx, j in enumerate(vj):
            reg = AW + 4 if idx % 2 == 0 else AW
            vq.append((j, 0, reg, idx)); vq.append((j, 1, reg, idx))
        vstate = {'i': 0, 'p': 0}
        def vpass(cnt):
            for _ in range(cnt):
                if vstate['i'] >= 20: return
                j, t, reg, idx = vq[vstate['i']]; vstate['i'] += 1
                if t == 0 and idx >= 2: A.wait(lg=[('B', idx)])
                smf(AV + 4 * t, reg, ('v', j, t), None)
                if t == 1 and idx + 2 < 10: aread(vj[idx + 2], reg, ('B', idx + 2))
        stamp(0)
        vpass(1)
        add2(AQK, AQK, AQK + 2); add2(AQK + 4, AQK + 4, AQK + 6)
        for r_ in (AQK, AQK + 4, AQK + 1, AQK + 5): A('v_mul_f32', v(r_), sSCALE, v(r_))
        A('v_cvt_pk_bf16_f32', v(AQK + 2), v(AQK), v(AQK + 4)); A('v_cvt_pk_bf16_f32', v(AQK + 3), v(AQK + 1), v(AQK + 5))
        A('ds_write2_b32', v(QKW), v(AQK + 2), v(AQK + 3), mods='offset0:0 offset1:4', tag='qw')
        add2(AQK + 8, AQK + 8, AQK + 10); add2(AQK + 12, AQK + 12, AQK + 14)
        A('v_cvt_pk_bf16_f32', v(AQK + 10), v(AQK + 8), v(AQK + 12)); A('v_cvt_pk_bf16_f32', v(AQK + 11), v(AQK + 9), v(AQK + 13))
        A('ds_write2_b32', v(KW), v(AQK + 10), v(AQK + 11), mods='offset0:0 offset1:4', tag='qw')
        vpass(env('VP1', 3))
        A.wait(lg=['qw']); A('s_barrier'); stamp('b2')
        qreg = [SL[qslots[0]], SL[qslots[0]] + 4, SL[qslots[1]], SL[qslots[1]] + 4]
        A('ds_read_b128', v(qreg[0], 4), v(FR), mods=f'offset:{L_QB}', tag=('Q', 0))
        A('ds_read_b128', v(qreg[1], 4), v(FR), mods=f'offset:{L_QB + 512}', tag=('Q', 1))
        kread((0, 0), AQK + 12)
        for kp in range(2, 4): A('ds_read_b128', v(qreg[kp], 4), v(FR), mods=f'offset:{L_QB + 512*kp}', tag=('Q', kp))
        vpass(env('VP2', 4))
        sacc = {0: AQK, 1: AQK + 4, 2: AQK + 8}
        sc_order = [(1, 0), (2, 0), (1, 1), (2, 1), (0, 0), (0, 1), (1, 2), (2, 2), (0, 2), (0, 3), (1, 3), (2, 3)]
        pending = sc_order[5:]
        pf = []
        for n in opre:
            pf.append((oslot[n], oo[n], 0)); pf.append((oslot[n], oo[n], 1))
        def pfill(cnt=1):
            for _ in range(cnt):
                if pf: half_fill(*pf.pop(0))
        for tk in sc_order:
            t, kp = tk
            A.wait(lg=[('K', tk), ('Q', kp)])
            A('v_mfma_f32_16x16x32_bf16', v(sacc[t], 4), v(kfr[tk], 4), v(qreg[kp], 4), '0' if kp == 0 else v(sacc[t], 4))
            if pending: kread(pending.pop(0), kfr[tk])
        stamp('sc')
        vpass(1); pfill(); vpass(1); pfill()
        vals = [AQK, AQK + 1] + [AQK + 4 + i for i in range(8)]
        mx = AQK + 2; tm = AQK + 3
        A('v_max3_f32', v(mx), v(vals[0]), v(vals[1]), v(vals[2])); A('v_max3_f32', v(tm), v(vals[3]), v(vals[4]), v(vals[5]))
        A('v_max3_f32', v(mx), v(mx), v(vals[6]), v(vals[7])); A('v_max3_f32', v(tm), v(tm), v(vals[8]), v(vals[9]))
        A('v_max_f32', v(mx), v(mx), v(tm)); A('v_max_f32', v(tm), v(mx), v(tm))
        vpass(1); pfill()
        A('v_permlane32_swap_b32', v(tm), v(mx)); A('v_max_f32', v(mx), v(mx), v(tm)); A('v_max_f32', v(tm), v(mx), v(tm))
        vpass(1)
        A('v_permlane16_swap_b32', v(tm), v(mx)); A('v_max_f32', v(mx), v(mx), v(tm))
        stamp('s1')
        order = vals[2:] + vals[:2]
        for i, r_ in enumerate(order):
            A('v_sub_f32', v(r_), v(r_), v(mx))
            if i >= 1: A('v_exp_f32', v(order[i - 1]), v(order[i - 1]))
            if i < 8: vpass(1)
            if i % 3 == 1: pfill()
            if i in (3, 5, 7, 9): A('v_cvt_pk_bf16_f32', v(AQK + 12 + (i - 3) // 2), v(order[i - 3]), v(order[i - 2]))
            if i == 6: A('v_mov_b64', v(AQK + 4, 2), sONES); A('v_mov_b64', v(AQK + 6, 2), sONES)
        A('v_exp_f32', v(order[9]), v(order[9]))
        stamp('s2')
        vpass(20)
        A('v_mov_b32', v(AQK + 3), 0)
        stamp(2)
        A('v_cvt_pk_bf16_f32', v(AQK + 2), v(AQK), v(AQK + 1))
        A.wait(vm=['vx'])
        A('v_mfma_f32_16x16x32_bf16', v(AQK + 8, 4), v(AQK + 4, 4), v(AQK + 12, 4), '0')
        add2(AV, AV, AV + 2)
        A('v_mfma_f32_16x16x32_bf16', v(AW, 4), v(SL[1], 4), v(AQK + 12, 4), '0')
        add2(AV + 4, AV + 4, AV + 6)
        A('v_mfma_f32_16x16x32_bf16', v(AW + 4, 4), v(SL[1] + 4, 4), v(AQK + 12, 4), '0')
        A('v_cvt_pk_bf16_f32', v(AV + 2), v(AV), v(AV + 1)); A('v_cvt_pk_bf16_f32', v(AV + 3), v(AV + 4), v(AV + 5))
        A('v_mfma_f32_16x16x16_bf16', v(AQK + 8, 4), v(AQK + 4, 2), v(AQK + 2, 2), v(AQK + 8, 4))
        A('v_cvt_pk_bf16_f32', v(AV + 4), v(AV + 4), v(AV + 5)); A('v_mov_b32', v(AV + 5), 0)
        stamp('p1')
        A('v_mfma_f32_16x16x16_bf16', v(AW, 4), v(AV + 2, 2), v(AQK + 2, 2), v(AW, 4))
        pfill(2)
        A('v_mfma_f32_16x16x16_bf16', v(AW + 4, 4), v(AV + 4, 2), v(AQK + 2, 2), v(AW + 4, 4))
        stamp('p2')
        pf.append((oslot[e_], oo[e_], 0)); pf.append((oslot[e_], oo[e_], 1))
        pfill(1)
        sm = AQK
        A('v_lshrrev_b32', v(AV + 6), 1, v(LANE16))
        A('ds_write_b64', v(AV + 6), v(AV + 2, 2), mods=f'offset:{L_VM + 512*w}', tag='ow')
        A('v_rcp_f32', v(sm), v(AQK + 8))
        for i in (4, 6): A('v_mov_b64', v(AQK + i, 2), 0)
        for i in range(4):
            A('v_mul_f32', v(AW + 2 * i), v(AW + 2 * i), v(sm)); A('v_mul_f32', v(AW + 2 * i + 1), v(AW + 2 * i + 1), v(sm))
            A('v_cvt_pk_bf16_f32', v(AQK + 8 + i), v(AW + 2 * i), v(AW + 2 * i + 1))
        A('ds_write_b128', v(FR), v(AQK + 8, 4), mods=f'offset:{L_O + 512*w}', tag='ow')
        stamp('p3')
        pfill(3)
        for i in (0, 2, 12, 14): A('v_mov_b64', v(AQK + i, 2), 0)
        for i in (0, 4): A('v_mov_b64', v(AV + i, 2), 0)
        stamp('p4')
        A.wait(lg=['ow']); A('s_barrier')
        A('ds_read_b128', v(AW, 4), v(LANE16), mods=f'offset:{L_O}', tag='oa0')
        A('ds_read_b128', v(AW + 4, 4), v(LANE16), mods=f'offset:{L_O+1024}', tag='oa1')
        pfill()
        A('s_cmp_eq_u32', sS, nsteps - 1)
        A('s_cbranch_scc1', L('last'))
        if dbg and env('FRZ'):
            A('s_cmp_lg_u32', sS, env('FRZ')); A('s_cbranch_scc1', L('nofrz'))
            A('s_memtime', 's[100:101]'); dump(); A('v_mov_b32', v(AV), 0)
            A.label(L('nofrz'))
        for i in (8, 10): A('v_mov_b64', v(AQK + i, 2), 0)
        for i in (2, 6): A('v_mov_b64', v(AV + i, 2), 0)
        assert not pf
        stamp(3)
        accs = [AQK, AQK + 4, AQK + 8, AQK + 12, AV, AV + 4]
        tacc = {t: t % 6 for t in range(10)}
        def post_ops(t):
            r_ = accs[tacc[t]]; st = accs[tacc[t & ~1]] + (t & 1)
            ops = [lambda: A('v_add_f32', v(r_), v(r_), v(r_ + 2)), lambda: A('v_add_f32', v(r_ + 1), v(r_ + 1), v(r_ + 3)),
                   lambda: A('v_cvt_pk_bf16_f32', v(st), v(r_), v(r_ + 1))]
            if t % 2 == 0: ops.append(lambda: A('v_and_or_b32', v(st), v(st), -2, sTAG))
            else:
                ops.append(lambda: A('buffer_store_dwordx2', v(st - 1, 2), v(PST2), WS, sPSTS[t >> 1], mods=f'offen {sc}'.strip(), tag='ps'))
                if t < 4:
                    for rr in (r_, r_ + 2, st + 1, st - 1): ops.append(lambda rr=rr: A('v_mov_b64', v(rr, 2), 0))
            return ops
        oside = {}
        def oat(n, fn): oside.setdefault(n, []).append(fn)
        for a_, b_ in [(ab[i] + k, ab[i + 1] + k) for i in range(3) for k in range(2)]:
            oat(a_, lambda b_=b_: fill(oslot[b_], oo[b_]))
        for n0, (qi, _) in zip((cd, cd + env('HS', 3), max(e_, cd + 2 * env('HS', 3))), held):
            oat(n0, lambda qi=qi: half_fill(qslot[qi], qk[qi], 0)); oat(n0 + (2 if env('HS', 3) > 2 else 1), lambda qi=qi: half_fill(qslot[qi], qk[qi], 1))
        vq_ = []
        for n, f in enumerate(oo):
            if n % 2 == 0:
                pr = [oo[n], oo[n + 1]]
                A.wait(lg=(['oa0'] if n == 0 else ['oa1'] if n == 2 else []) + [('F', x) for x in pr if x in lds_off], vm=[('F', x) for x in pr if x in strm_idx])
            if f[1] == 0 and f[2] >= 6:
                need = {6: 1, 7: 1, 8: 3, 9: 3}[f[2]]
                while any(t == need for t, _ in vq_): vq_.pop(0)[1]()
            stamp(f'o{n}')
            smf(accs[tacc[f[2]]], AW + 4 * f[1], f, oslot.get(n))
            for fn in oside.get(n, []): fn()
            for t in range(10):
                if 4 * (t >> 1) + 2 + (t & 1) + 3 == n: vq_ += [(t, o_) for o_ in post_ops(t)]
            for _ in range(3):
                if vq_: vq_.pop(0)[1]()
        while vq_: vq_.pop(0)[1]()
        for t in (8, 9):
            for o_ in post_ops(t): o_()
        stamp(4)
        if env('ACKT'): A('s_waitcnt', 'vmcnt(0)'); stamp('ack')
        def b4():
            if w == 3: w3upd(); w3in(sFOV); A('s_mov_b32', sSPIN, 0)
            A('s_barrier')
        if not env('B4LATE', 0): b4()
        ra = AV + 4
        setreg = [AQK, AQK + 8 if ng == 1 else SL[2]]
        A('s_mov_b32', sSPIN, 0)
        A('v_bfe_u32', v(ra + 1), v(LANE16), 4, 1); A('v_lshlrev_b32', v(ra + 1), 4, v(ra + 1))
        A('v_mov_b32', v(ra + 2), '0x3f80'); A('v_lshlrev_b32', v(ra + 1), v(ra + 1), v(ra + 2))
        A('v_bfe_u32', v(ra + 2), v(LANE16), 5, 3)
        def rloads(st):
            for i in range(2 * ng):
                A('buffer_load_dwordx4', v(setreg[st] + 4 * i, 4), v(LANE16), WS, sPLD if i < 2 else sPLD1, mods=f'offen offset:{(i&1)*1024} sc1')
        sel = lambda jj: (A('v_cmp_eq_u32', 'vcc', jj, v(ra + 2)), A('v_cndmask_b32', v(AW + jj), 0, v(ra + 1), 'vcc'))
        if env('RSL', 0) >= 0:
            for jj in range(4): sel(jj)
            if env('RSL', 0): A('s_sleep', env('RSL', 0))
            rloads(0)
            for jj in range(4, 4 * ng): sel(jj)
            if env('B4LATE', 0):
                b4()
                if env('RSL3', 2): A('s_sleep', env('RSL3', 2))
            elif ng == 1 or env('RSL2', 3) > 1: A('s_sleep', env('RSL2', 3) - (ng - 1))
        else:
            for jj in range(RDELAY): sel(jj % (4 * ng))
            rloads(0)
            for jj in range(max(RGAP, 4 * ng - RDELAY)): sel((RDELAY + jj) % (4 * ng))
        rloads(1)
        for jj in range(env('RFILL', 0)): sel(jj % (4 * ng))
        A.label(L('rloop'))
        for st in range(2):
            A('s_waitcnt', f'vmcnt({2*ng})')
            stamp('r1')
            for i in range(2 * ng):
                b = setreg[st] + 4 * i
                A('v_mfma_f32_16x16x32_bf16', v(AV, 4), v(b, 4), v(AW + 4 * (i >> 1), 4), '0' if i == 0 else v(AV, 4))
                if i == 0:
                    A('v_and_b32', v(ra + 1), v(b), v(b + 2)); A('v_or_b32', v(ra + 2), v(b), v(b + 2))
                else:
                    A('v_bitop3_b32', v(ra + 1), v(ra + 1), v(b), v(b + 2), mods='bitop3:0x80'); A('v_or3_b32', v(ra + 2), v(ra + 2), v(b), v(b + 2))
            A('v_bitop3_b32', v(ra + 1), v(ra + 1), v(ra + 2), sTAG, mods='bitop3:0x4e')
            A('v_and_b32', v(ra + 1), 1, v(ra + 1))
            A('v_cmp_ne_u32', 'vcc', 0, v(ra + 1))
            A('v_permlane32_swap_b32', v(AV), v(AV + 2)); A('v_permlane32_swap_b32', v(AV + 1), v(AV + 3))
            add2(AV, AV, AV + 2)
            A('s_cbranch_vccnz', L(f'rbad{st}'))
            if st == 1: A.label(L('rok'))
            A('v_permlane16_swap_b32', v(AV), v(AV + 1)); A('v_add_f32', v(AV), v(AV), v(AV + 1))
            A('v_cvt_pk_bf16_f32', v(AV), v(AV), v(AV))
            A('buffer_store_short', v(AV), v(RDEST), WS, sMEMc, mods=f'offen {sc}'.strip())
            A('s_branch', L('rdone'))
            A.label(L(f'rbad{st}'))
            rloads(st)
        A('s_cmp_lg_u32', sDEAD, 0); A('s_cbranch_scc1', L('rok'))
        A('s_add_u32', sSPIN, sSPIN, 1)
        A('s_cmp_lt_u32', sSPIN, SPIN_MAX); A('s_cbranch_scc1', L('rloop'))
        A('s_mov_b32', sDEAD, 1)
        A('s_branch', L('rok'))
        A.label(L('rdone'))
        stamp(5)
        if not env('LATEPO', 0):
            A('v_mov_b32', v(AV + 1), hex(SENT))
            A('buffer_store_short', v(AV + 1), v(RDEST), WS, sMEMo, mods=f'offen {sc}'.strip())
        A.reset_counts()
        xl = 0
        if env('X_KTOP'): xl -= 2
        else: kdma()
        pub_read(AV, AV + 4)
        A('s_add_u32', sT2, sMEMc, 1024 * KOWN[w])
        A('s_xor_b32', sTAG, sTAG, 1); A('s_add_u32', sKM, sKM, 32 * 4096)
        A('s_xor_b32', sMEMc, sMEMc, sDMEM); A('s_xor_b32', sMEMo, sMEMo, sDMEM)
        if not X_NOADV: A('s_add_u32', sVT, sVT, 32 * 8192)
        A('s_add_u32', sS, sS, 1)
        A('s_mov_b32', sSPIN, 0)
        A('s_mov_b32', 'm0', L_MEM + 1024 * KOWN[w])
        def gdma():
            for j in range(nd): A('buffer_load_dwordx4', v(LANE16), WS, sT2, mods=f'offen offset:{1024*j} sc1 lds')
        if w == 3: w3prep()
        if env('GSL', 3) >= 0: A('s_sleep', env('GSL', 3))
        else:
            for i in range(GDELAY - (8 if w == 3 else 0)): A('v_mov_b32', v(AW + (i % 8)), 0)
        gdma()
        A('s_waitcnt', f'vmcnt({(3 if env("LATEPO", 0) else 4) + nd + xl})')
        fill(qslot[2], qk[2]); fill(qslot[3], qk[3])
        for i in range(0, 16, 2): A('v_mov_b64', v(AQK + i, 2), 0)
        if env('GSL', 3) >= 0: A('s_sleep', env('GSL2', 2))
        else:
            for i in range(env('GGAP', 24)): A('v_mov_b32', v(AW + (i % 8)), 0)
        if env('GLATE', 1):
            A.label(L('gloop'))
            gdma()
            A('s_waitcnt', f'vmcnt({nd})')
            for j in range(nd): A('ds_read_b128', v(ownreg[j], 4), v(LANE16), mods=f'offset:{L_MEM + 1024*(KOWN[w]+j)}')
        else:
            gdma()
            A.label(L('gloop'))
            A('s_waitcnt', f'vmcnt({nd})')
            for j in range(nd): A('ds_read_b128', v(ownreg[j], 4), v(LANE16), mods=f'offset:{L_MEM + 1024*(KOWN[w]+j)}')
            gdma()
        gregs = [r_ + i for r_ in ownreg for i in range(4)]
        A('s_waitcnt', f'lgkmcnt({nd-1})')
        m0_ = AQK + 15
        A('v_pk_max_u16', v(m0_), v(gregs[0]), v(gregs[1]))
        for i in range(2, len(gregs)):
            if i % 4 == 0: A('s_waitcnt', f'lgkmcnt({nd-1-i//4})')
            A('v_pk_max_u16', v(m0_), v(m0_), v(gregs[i]))
        emit_check(A, m0_, AQK + 14, gregs, L('gloop'), L('loop'), define=False)
        A('s_branch', L('loop'))
        A.label(L('last'))
        A.reset_counts()
        pub_read(AV, AV + 4); A('s_add_u32', sKM, sKM, 32 * 4096)
        A('s_waitcnt', 'lgkmcnt(0)')
        A('buffer_store_dwordx4', v(AV, 4), v(LANE16), WS, sKM, mods='offen sc1')
        A('s_waitcnt', 'vmcnt(0)')
        A('s_barrier')
        if w == 3:
            A('v_mov_b32', v(XR), nsteps)
            A('s_mov_b64', 'exec', 1)
            A('buffer_store_dword', v(XR), 'off', WS, sFLO, mods='sc1')
            A('s_mov_b64', 'exec', -1)
        if dbg and not env('FRZ'): dump()
        A('s_waitcnt', 'vmcnt(0) lgkmcnt(0)')
        A('s_endpgm')

def emit_check(A, m0, m1, regs, retry, ok, define=True):
    A('v_pk_max_u16', v(m0), v(m0), v(m0), mods='op_sel:[0,1] op_sel_hi:[1,0]')
    A('v_cmp_le_u32', 'vcc', '0xff810000', v(m0))
    A('s_cbranch_vccz', ok)
    A('s_add_u32', sSPIN, sSPIN, 1)
    A('s_cmp_lt_u32', sSPIN, 64); A('s_cbranch_scc1', retry)
    A('s_cmp_lg_u32', sDEAD, 0); A('s_cbranch_scc1', ok)
    A('v_mov_b32', v(m0), -1)
    for r_ in regs:
        A('v_xor_b32', v(m1), hex(SENT), v(r_)); A('v_pk_min_u16', v(m0), v(m0), v(m1))
    A('v_pk_min_u16', v(m0), v(m0), v(m0), mods='op_sel:[0,1] op_sel_hi:[1,0]')
    A('v_mov_b32', v(m1), 0)
    A('v_cmp_eq_u32', 'vcc', 0, v(m0))
    A('s_cbranch_vccz', ok)
    A('s_sleep', 1)
    A('s_cmp_lt_u32', sSPIN, SPIN_MAX); A('s_cbranch_scc1', retry)
    A('s_mov_b32', sDEAD, 1)
    if define: A.label(ok)
```

```python
from asmgen import *
from common import *
from layout import *
import chain, bulk
from chain import SDBG, WS, sMODE
from prologue import emit_srds
import sys, os
NAME = 'interleave_layers__memory_aug_recurrent_mem_tr__dense_activation_relu__prompt'
ROLES = os.environ.get('ROLES', 'chain,qkv,att,op,lna,ln,f1,f2').split(',')
NOINIT = int(os.environ.get('NOINIT', 0))
FORCE_SLOW = int(os.environ.get('FORCE_SLOW', 0))
DBG = int(os.environ.get('DBG', 0))
sW, sI, sL = 's52', 's53', 's54'
sX, sR, sV = 's97', 's98', 's99'
CHDBG = int(os.environ.get('CHDBG', 0))
T0, T1, T2 = 's70', 's71', 's72'

def build():
    A = Asm()
    A('s_cmp_ge_u32', 's2', 256); A('s_cbranch_scc1', 'L_end')
    emit_srds(A)
    if DBG:
        A('s_memrealtime', 's[90:91]'); A('s_waitcnt', 'lgkmcnt(0)'); A('v_mov_b32', 'v1', 's90'); A('s_lshl_b32', T0, 's2', 2); A('s_add_u32', T0, T0, DBGT + (1 << 19))
        A('buffer_store_dword', 'v1', 'off', WS, T0)
    A('s_getreg_b32', sX, 'hwreg(HW_REG_XCC_ID)'); A('s_and_b32', sX, sX, 15)
    A('v_lshrrev_b32', 'v1', 6, 'v0'); A('v_readfirstlane_b32', sW, 'v1')
    A('s_mov_b32', sMODE, 0)
    def init_and_arrive(first):
        t = 'a' if first else 'b'
        A('v_mbcnt_lo_u32_b32', 'v1', -1, 0); A('v_mbcnt_hi_u32_b32', 'v1', -1, 'v1'); A('v_lshlrev_b32', 'v2', 4, 'v1')
        A('s_cmp_lg_u32', sW, 0); A('s_cbranch_scc1', 'L_w123' + t)
        if first:
            A('s_mov_b64', 'exec', 1)
            A('v_mov_b32', 'v8', 1); A('s_lshl_b32', T0, sX, 2); A('s_add_u32', T0, T0, 128); A('s_cmp_eq_u32', sX, 0); A('s_cselect_b32', T0, 0, T0)
            A('buffer_atomic_add', 'v8', 'off', SDBG, T0, mods='sc0')
            A('s_waitcnt', 'vmcnt(0)')
            A('v_mov_b32', 'v3', 0); A('ds_write_b32', 'v3', 'v8')
        A('s_mov_b64', 'exec', '0xffffffff')
        for i in range(4): A('v_mov_b32', v(4 + i), 0)
        A('s_lshl_b32', T0, 's2', 9)
        if first:
            A('s_sub_u32', T1, T0, FL_XN); A('s_cmp_lt_u32', T1, 1024); A('s_cselect_b32', T0, '0x20000000', T0)
        A('buffer_store_dwordx4', 'v[4:7]', 'v2', WS, T0, mods='offen sc1')
        A('s_mov_b64', 'exec', -1)
        A('s_branch', 'L_join' + t)
        A.label('L_w123' + t)
        for i in range(4): A('v_mov_b32', v(4 + i), hex(SENT))
        A('s_mul_i32', T0, 's2', 3072); A('s_lshl_b32', T1, sW, 10); A('s_add_u32', T0, T0, T1); A('s_add_u32', T0, T0, POISON_LO - 1024)
        A('buffer_store_dwordx4', 'v[4:7]', 'v2', WS, T0, mods='offen sc1')
        A.label('L_join' + t)
    init_and_arrive(True)
    A('s_waitcnt', 'lgkmcnt(0)'); A('s_barrier')
    A('v_mov_b32', 'v3', 0); A('ds_read_b32', 'v9', 'v3'); A('s_waitcnt', 'lgkmcnt(0)')
    A('v_readfirstlane_b32', sR, 'v9')
    xm = [int(c) for c in os.environ.get('XMAP', '01234567')]
    A('s_min_u32', T0, sX, 8); A('s_cmp_ge_u32', sX, 8); A('s_cbranch_scc1', 'L_nomap')
    A('s_lshl_b32', T0, sX, 2); A('s_lshr_b32', sX, hex(sum(x << (4 * i) for i, x in enumerate(xm))), T0); A('s_and_b32', sX, sX, 15)
    A.label('L_nomap')
    A('s_lshl_b32', sV, sX, 5); A('s_add_u32', sV, sV, sR)
    A('s_sub_u32', T0, sR, 20); A('s_cmp_lt_u32', T0, 8); A('s_cbranch_scc0', 'L_noown')
    A('s_lshl_b32', T0, T0, 7); A('s_lshl_b32', T1, sW, 2); A('s_add_u32', T0, T0, T1); A('s_add_u32', T0, T0, FL_XN)
    A('s_cmp_eq_u32', sX, 5); A('s_cbranch_scc0', 'L_noown')
    A.label('L_own')
    A('buffer_store_dword', 'v3', 'off', WS, T0, mods='sc1')
    A.label('L_noown')
    A('s_waitcnt', 'vmcnt(0)'); A('s_barrier')
    A('s_cmp_lg_u32', sW, 0); A('s_cbranch_scc1', 'L_arr')
    A('s_mov_b64', 'exec', 1); A('v_mov_b32', 'v9', 1)
    A('buffer_atomic_add', 'v9', 'off', SDBG, 0, mods='offset:32')
    A('s_mov_b64', 'exec', -1)
    A.label('L_arr')
    A('s_cmp_ge_u32', sR, 32); A('s_cbranch_scc1', 'L_slow')
    A('s_cmp_ge_u32', sX, 8); A('s_cbranch_scc0', 'L_dispatch')
    A.label('L_slow')
    A('s_waitcnt', 'vmcnt(0) lgkmcnt(0)'); A('s_barrier')
    init_and_arrive(False)
    A('s_waitcnt', 'vmcnt(0)'); A('s_barrier')
    A('s_cmp_lg_u32', sW, 0); A('s_cbranch_scc1', 'L_arr2')
    A('s_mov_b64', 'exec', 1); A('v_mov_b32', 'v9', 1)
    A('buffer_atomic_add', 'v9', 'off', SDBG, 0, mods='offset:36')
    A('s_mov_b64', 'exec', -1)
    A('s_mov_b32', 's68', 0)
    A.label('L_poll2')
    A('buffer_load_dword', 'v9', 'off', SDBG, 0, mods='offset:36 sc1'); A('s_waitcnt', 'vmcnt(0)')
    A('v_readfirstlane_b32', T0, 'v9'); A('s_cmp_ge_u32', T0, 256); A('s_cbranch_scc1', 'L_arr2')
    A('s_sleep', 8)
    A('s_add_u32', 's68', 's68', 1); A('s_cmp_lt_u32', 's68', chain.SPIN_MAX); A('s_cbranch_scc1', 'L_poll2')
    A.label('L_arr2')
    A('s_barrier')
    A('s_mov_b32', sMODE, 1); A('s_mov_b32', sV, 's2')
    A('v_mov_b32', 'v0', 'v1')
    A.label('L_dispatch')
    A('s_lshr_b32', sX, sV, 5); A('s_and_b32', sR, sV, 31)
    if DBG:
        A('s_memrealtime', 's[90:91]'); A('s_waitcnt', 'lgkmcnt(0)'); A('v_mov_b32', 'v1', 's90'); A('s_lshl_b32', T0, sV, 2); A('s_add_u32', T0, T0, DBGT + (1 << 19) + 4096)
        A('buffer_store_dword', 'v1', 'off', WS, T0)
    LATE = os.environ.get('LATE', '')
    if LATE:
        mask = sum(1 << int(c) for c in LATE)
        A('s_lshr_b32', T0, hex(mask), sX); A('s_and_b32', T0, T0, 1); A('s_cmp_eq_u32', T0, 0); A('s_cbranch_scc1', 'L_nolate')
        A('s_sub_u32', T0, sR, 20); A('s_cmp_lt_u32', T0, 8); A('s_cselect_b32', T0, 1, 0); A('s_cmp_eq_u32', sX, 5); A('s_cselect_b32', T0, T0, 0)
        A('s_cmp_lg_u32', T0, 0); A('s_cbranch_scc1', 'L_nolate')
        A('s_mov_b32', 's68', 0)
        A.label('L_latep')
        A('buffer_load_dword', 'v9', 'off', SDBG, 0, mods='offset:40 sc1'); A('s_waitcnt', 'vmcnt(0)')
        A('v_readfirstlane_b32', T0, 'v9'); A('s_cmp_ge_u32', T0, 128); A('s_cbranch_scc1', 'L_nolate')
        A('s_sleep', 32)
        A('s_add_u32', 's68', 's68', 1); A('s_cmp_lt_u32', 's68', 64); A('s_cbranch_scc1', 'L_latep')
        A.label('L_nolate')
    def go(role, label):
        return label if role in ROLES else 'L_end'
    A('s_cmp_ge_u32', sX, 2); A('s_cbranch_scc1', 'L_bulk')
    A('s_mov_b32', sI, sR); A('s_mov_b32', sL, sX)
    for w in range(4):
        A('s_cmp_eq_u32', sW, w); A('s_cbranch_scc1', go('chain', f'CH{w}_entry'))
    A.label('L_bulk')
    if os.environ.get('ONLYCH'): A('s_branch', 'L_end')
    A('s_cmp_ge_u32', sX, 5); A('s_cselect_b32', sL, 1, 0)
    A('s_mul_i32', T0, sL, 3); A('s_sub_u32', T0, sX, T0); A('s_sub_u32', T0, T0, 2)
    A('s_mov_b32', sI, sR)
    A('s_cmp_eq_u32', T0, 2); A('s_cbranch_scc1', 'L_qkv')
    A('s_cmp_eq_u32', T0, 1); A('s_cbranch_scc1', 'L_t1')
    A('s_cmp_lt_u32', sR, 20); A('s_cbranch_scc1', go('op', 'G2op_entry'))
    A('s_sub_u32', sI, sR, 20); A('s_cmp_ge_u32', sR, 28); A('s_cbranch_scc1', 'L_natt')
    A('s_cmp_eq_u32', sL, 0); A('s_cbranch_scc1', 'ATT_entry'); A('s_branch', 'LN0_entry')
    A.label('L_natt')
    A('s_sub_u32', sI, sR, 28); A('s_cmp_lt_u32', sR, 30); A('s_cbranch_scc1', go('lna', 'LNA_entry'))
    A('s_add_u32', sI, sR, 16); A('s_branch', 'L_qkv')
    A.label('L_t1')
    A('s_cmp_lt_u32', sR, 7); A('s_cbranch_scc1', go('f1', 'G1f1_entry'))
    A('s_sub_u32', sI, sR, 7); A('s_cmp_lt_u32', sR, 17); A('s_cbranch_scc1', go('f2', 'G2f2_entry'))
    A('s_add_u32', sI, sR, 14); A('s_cmp_gt_u32', sR, 17); A('s_cbranch_scc1', 'L_qkv')
    A('s_mov_b32', sI, sL); A('s_branch', 'LN1_entry')
    A.label('L_qkv')
    A('s_mul_i32', T0, sI, 43); A('s_lshr_b32', T0, T0, 7); A('s_mul_i32', T0, T0, 3); A('s_sub_u32', T0, sI, T0)
    A('s_cmp_eq_u32', T0, 2); A('s_cbranch_scc1', go('qkv', 'G1v_entry'))
    A('s_branch', go('qkv', 'G1qk_entry'))
    A.label('L_end')
    A('s_endpgm')
    def ready(A, mid=False):
        VA, VB, VC = ('v24', 'v25', 'v26') if mid else ('v40', 'v41', 'v42')
        if mid: A('s_waitcnt', 'vmcnt(0)')
        ok = A.newlabel('RDY_ok'); lp = A.newlabel('RDY_lp'); al = A.newlabel('RDY_all')
        if LATE:
            sk = A.newlabel('RDY_sk')
            A('s_cmp_lg_u32', sX, 0); A('s_cbranch_scc1', sk)
            A('s_mov_b64', 'exec', 1); A('v_mov_b32', VA, 1); A('buffer_atomic_add', VA, 'off', SDBG, 0, mods='offset:40'); A('s_mov_b64', 'exec', -1)
            A.label(sk)
        A('s_cmp_lg_u32', sMODE, 0); A('s_cbranch_scc1', ok)
        A('s_mov_b32', 's68', 0)
        A.label(lp)
        A('buffer_load_dword', VA, 'off', SDBG, 0, mods='offset:32 sc1'); A('s_waitcnt', 'vmcnt(0)')
        A('v_readfirstlane_b32', T0, VA); A('s_cmp_ge_u32', T0, 256); A('s_cbranch_scc1', al)
        A('s_sleep', 8)
        A('s_add_u32', 's68', 's68', 1); A('s_cmp_lt_u32', 's68', chain.SPIN_MAX); A('s_cbranch_scc1', lp)
        A('s_branch', ok)
        A.label(al)
        A('v_mbcnt_lo_u32_b32', VB, -1, 0); A('v_and_b32', VB, 7, VB); A('v_min_u32', VC, 1, VB); A('v_lshlrev_b32', VB, 2, VB); A('v_lshl_add_u32', VB, VC, 7, VB)
        A('buffer_load_dword', VA, VB, SDBG, 0, mods='offen sc1'); A('s_waitcnt', 'vmcnt(0)')
        A('v_cmp_ne_u32', 'vcc', 32 if not FORCE_SLOW else 33, VA)
        A('s_cbranch_vccnz', 'L_slow')
        A.label(ok)
        A.vm.clear()
        if DBG and not mid:
            A('s_memrealtime', 's[90:91]'); A('s_waitcnt', 'lgkmcnt(0)'); A('v_mov_b32', VA, 's90'); A('s_lshl_b32', T0, sV, 2); A('s_add_u32', T0, T0, sW); A('s_lshl_b32', T0, T0, 2)
            A('s_add_u32', T0, T0, DBGT + (1 << 19) + 8192); A('buffer_store_dword', VA, 'off', WS, T0); A('s_waitcnt', 'vmcnt(0)'); A.vm.clear()
    bulk.emit_ln(A, 'ln1', ready); bulk.emit_ln(A, 'lna', ready)
    bulk.emit_ln(A, 'ln0', lambda A: None, after=lambda: None)
    bulk.emit_att(A, ready)
    if 'qkv' in ROLES: bulk.emit_gemm1(A, 'qk', ready); bulk.emit_gemm1(A, 'v', ready)
    if 'f1' in ROLES: bulk.emit_gemm1(A, 'f1', ready)
    if 'op' in ROLES: bulk.emit_gemm2(A, 'op', ready)
    if 'f2' in ROLES: bulk.emit_gemm2(A, 'f2', ready)
    if 'chain' in ROLES:
        for w in range(4): chain.emit_chain_wave(A, w, ready, dbg=bool(CHDBG))
    return A.finalize()

DESC = """; Generated by the author's own Python generator (gen/mega.py, chain.py, bulk.py).
;   chain (2 x 32 CUs): the memory recurrence of each attention layer, one head per CU, weights resident in
"""
if __name__ == '__main__':
    out = sys.argv[1]
    k = NAME + '_kernel'
    hdr = open('cdna_kernels/' + NAME + '.s.ref').read().split('; Override launch geometry')[0]
    txt = hdr + f'; @launch kernel={k} grid=(256,1,1) block=(256,1,1) lds=163840\n' + DESC + TARGET + kernel_header(k) + build() + kernel_desc(k)
    open(out, 'w').write(txt)
```

```python
from asmgen import *
from common import *
from layout import *
import chain, bulk
from chain import SDBG, WS, sMODE
from prologue import emit_srds
import sys, os
NAME = 'interleave_layers__memory_aug_recurrent_mem_tr__dense_activation_relu__prompt'
ROLES = os.environ.get('ROLES', 'chain,qkv,att,op,lna,ln,f1,f2').split(',')
NOINIT = int(os.environ.get('NOINIT', 0))
FORCE_SLOW = int(os.environ.get('FORCE_SLOW', 0))
DBG = int(os.environ.get('DBG', 0))
sW, sI, sL = 's52', 's53', 's54'
sX, sR, sV = 's97', 's98', 's99'
CHDBG = int(os.environ.get('CHDBG', 0))
T0, T1, T2 = 's70', 's71', 's72'

def build():
    A = Asm()
    A('s_cmp_ge_u32', 's2', 256); A('s_cbranch_scc1', 'L_end')
    emit_srds(A)
    if DBG:
        A('s_memrealtime', 's[90:91]'); A('s_waitcnt', 'lgkmcnt(0)'); A('v_mov_b32', 'v1', 's90'); A('s_lshl_b32', T0, 's2', 2); A('s_add_u32', T0, T0, DBGT + (1 << 19))
        A('buffer_store_dword', 'v1', 'off', WS, T0)
    A('s_getreg_b32', sX, 'hwreg(HW_REG_XCC_ID)'); A('s_and_b32', sX, sX, 15)
    A('v_lshrrev_b32', 'v1', 6, 'v0'); A('v_readfirstlane_b32', sW, 'v1')
    A('s_mov_b32', sMODE, 0)
    def init_and_arrive(first):
        t = 'a' if first else 'b'
        A('v_mbcnt_lo_u32_b32', 'v1', -1, 0); A('v_mbcnt_hi_u32_b32', 'v1', -1, 'v1'); A('v_lshlrev_b32', 'v2', 4, 'v1')
        A('s_cmp_lg_u32', sW, 0); A('s_cbranch_scc1', 'L_w123' + t)
        if first:
            A('s_mov_b64', 'exec', 1)
            A('v_mov_b32', 'v8', 1); A('s_lshl_b32', T0, sX, 2); A('s_add_u32', T0, T0, 128); A('s_cmp_eq_u32', sX, 0); A('s_cselect_b32', T0, 0, T0)
            A('buffer_atomic_add', 'v8', 'off', SDBG, T0, mods='sc0')
            A('s_waitcnt', 'vmcnt(0)')
            A('v_mov_b32', 'v3', 0); A('ds_write_b32', 'v3', 'v8')
        A('s_mov_b64', 'exec', '0xffffffff')
        for i in range(4): A('v_mov_b32', v(4 + i), 0)
        A('s_lshl_b32', T0, 's2', 9)
        if first:
            A('s_sub_u32', T1, T0, FL_XN); A('s_cmp_lt_u32', T1, 1024); A('s_cselect_b32', T0, '0x20000000', T0)
        A('buffer_store_dwordx4', 'v[4:7]', 'v2', WS, T0, mods='offen sc1')
        A('s_mov_b64', 'exec', -1)
        A('s_branch', 'L_join' + t)
        A.label('L_w123' + t)
        for i in range(4): A('v_mov_b32', v(4 + i), hex(SENT))
        A('s_mul_i32', T0, 's2', 3072); A('s_lshl_b32', T1, sW, 10); A('s_add_u32', T0, T0, T1); A('s_add_u32', T0, T0, POISON_LO - 1024)
        A('buffer_store_dwordx4', 'v[4:7]', 'v2', WS, T0, mods='offen sc1')
        A.label('L_join' + t)
    init_and_arrive(True)
    A('s_waitcnt', 'lgkmcnt(0)'); A('s_barrier')
    A('v_mov_b32', 'v3', 0); A('ds_read_b32', 'v9', 'v3'); A('s_waitcnt', 'lgkmcnt(0)')
    A('v_readfirstlane_b32', sR, 'v9')
    xm = [int(c) for c in os.environ.get('XMAP', '01234567')]
    A('s_min_u32', T0, sX, 8); A('s_cmp_ge_u32', sX, 8); A('s_cbranch_scc1', 'L_nomap')
    A('s_lshl_b32', T0, sX, 2); A('s_lshr_b32', sX, hex(sum(x << (4 * i) for i, x in enumerate(xm))), T0); A('s_and_b32', sX, sX, 15)
    A.label('L_nomap')
    A('s_lshl_b32', sV, sX, 5); A('s_add_u32', sV, sV, sR)
    A('s_sub_u32', T0, sR, 20); A('s_cmp_lt_u32', T0, 8); A('s_cbranch_scc0', 'L_noown')
    A('s_lshl_b32', T0, T0, 7); A('s_lshl_b32', T1, sW, 2); A('s_add_u32', T0, T0, T1); A('s_add_u32', T0, T0, FL_XN)
    A('s_cmp_eq_u32', sX, 5); A('s_cbranch_scc0', 'L_noown')
    A.label('L_own')
    A('buffer_store_dword', 'v3', 'off', WS, T0, mods='sc1')
    A.label('L_noown')
    A('s_waitcnt', 'vmcnt(0)'); A('s_barrier')
    A('s_cmp_lg_u32', sW, 0); A('s_cbranch_scc1', 'L_arr')
    A('s_mov_b64', 'exec', 1); A('v_mov_b32', 'v9', 1)
    A('buffer_atomic_add', 'v9', 'off', SDBG, 0, mods='offset:32')
    A('s_mov_b64', 'exec', -1)
    A.label('L_arr')
    A('s_cmp_ge_u32', sR, 32); A('s_cbranch_scc1', 'L_slow')
    A('s_cmp_ge_u32', sX, 8); A('s_cbranch_scc0', 'L_dispatch')
    A.label('L_slow')
    A('s_waitcnt', 'vmcnt(0) lgkmcnt(0)'); A('s_barrier')
    init_and_arrive(False)
    A('s_waitcnt', 'vmcnt(0)'); A('s_barrier')
    A('s_cmp_lg_u32', sW, 0); A('s_cbranch_scc1', 'L_arr2')
    A('s_mov_b64', 'exec', 1); A('v_mov_b32', 'v9', 1)
    A('buffer_atomic_add', 'v9', 'off', SDBG, 0, mods='offset:36')
    A('s_mov_b64', 'exec', -1)
    A('s_mov_b32', 's68', 0)
    A.label('L_poll2')
    A('buffer_load_dword', 'v9', 'off', SDBG, 0, mods='offset:36 sc1'); A('s_waitcnt', 'vmcnt(0)')
    A('v_readfirstlane_b32', T0, 'v9'); A('s_cmp_ge_u32', T0, 256); A('s_cbranch_scc1', 'L_arr2')
    A('s_sleep', 8)
    A('s_add_u32', 's68', 's68', 1); A('s_cmp_lt_u32', 's68', chain.SPIN_MAX); A('s_cbranch_scc1', 'L_poll2')
    A.label('L_arr2')
    A('s_barrier')
    A('s_mov_b32', sMODE, 1); A('s_mov_b32', sV, 's2')
    A('v_mov_b32', 'v0', 'v1')
    A.label('L_dispatch')
    A('s_lshr_b32', sX, sV, 5); A('s_and_b32', sR, sV, 31)
    if DBG:
        A('s_memrealtime', 's[90:91]'); A('s_waitcnt', 'lgkmcnt(0)'); A('v_mov_b32', 'v1', 's90'); A('s_lshl_b32', T0, sV, 2); A('s_add_u32', T0, T0, DBGT + (1 << 19) + 4096)
        A('buffer_store_dword', 'v1', 'off', WS, T0)
    LATE = os.environ.get('LATE', '')
    if LATE:
        mask = sum(1 << int(c) for c in LATE)
        A('s_lshr_b32', T0, hex(mask), sX); A('s_and_b32', T0, T0, 1); A('s_cmp_eq_u32', T0, 0); A('s_cbranch_scc1', 'L_nolate')
        A('s_sub_u32', T0, sR, 20); A('s_cmp_lt_u32', T0, 8); A('s_cselect_b32', T0, 1, 0); A('s_cmp_eq_u32', sX, 5); A('s_cselect_b32', T0, T0, 0)
        A('s_cmp_lg_u32', T0, 0); A('s_cbranch_scc1', 'L_nolate')
        A('s_mov_b32', 's68', 0)
        A.label('L_latep')
        A('buffer_load_dword', 'v9', 'off', SDBG, 0, mods='offset:40 sc1'); A('s_waitcnt', 'vmcnt(0)')
        A('v_readfirstlane_b32', T0, 'v9'); A('s_cmp_ge_u32', T0, 128); A('s_cbranch_scc1', 'L_nolate')
        A('s_sleep', 32)
        A('s_add_u32', 's68', 's68', 1); A('s_cmp_lt_u32', 's68', 64); A('s_cbranch_scc1', 'L_latep')
        A.label('L_nolate')
    def go(role, label):
        return label if role in ROLES else 'L_end'
    A('s_cmp_ge_u32', sX, 2); A('s_cbranch_scc1', 'L_bulk')
    A('s_mov_b32', sI, sR); A('s_mov_b32', sL, sX)
    for w in range(4):
        A('s_cmp_eq_u32', sW, w); A('s_cbranch_scc1', go('chain', f'CH{w}_entry'))
    A.label('L_bulk')
    if os.environ.get('ONLYCH'): A('s_branch', 'L_end')
    A('s_cmp_ge_u32', sX, 5); A('s_cselect_b32', sL, 1, 0)
    A('s_mul_i32', T0, sL, 3); A('s_sub_u32', T0, sX, T0); A('s_sub_u32', T0, T0, 2)
    A('s_mov_b32', sI, sR)
    A('s_cmp_eq_u32', T0, 2); A('s_cbranch_scc1', 'L_qkv')
    A('s_cmp_eq_u32', T0, 1); A('s_cbranch_scc1', 'L_t1')
    A('s_cmp_lt_u32', sR, 20); A('s_cbranch_scc1', 'G2op_entry')
    A('s_sub_u32', sI, sR, 20); A('s_cmp_ge_u32', sR, 28); A('s_cbranch_scc1', 'L_natt')
    A('s_cmp_eq_u32', sL, 0); A('s_cbranch_scc1', 'ATT_entry'); A('s_branch', 'LN0_entry')
    A.label('L_natt')
    A('s_sub_u32', sI, sR, 28); A('s_cmp_lt_u32', sR, 30); A('s_cbranch_scc1', 'LNA_entry')
    A('s_mov_b32', sI, sL); A('s_cmp_eq_u32', sR, 30); A('s_cbranch_scc1', 'LN1_entry')
    A('s_mov_b32', sI, 6); A('s_branch', 'G1f1_entry')
    A.label('L_t1')
    A('s_lshr_b32', sL, sR, 4); A('s_and_b32', T1, sR, 15)
    A('s_add_u32', sI, T1, 32); A('s_cmp_eq_u32', sX, 6); A('s_cbranch_scc1', 'L_qkv')
    A('s_mov_b32', sI, T1); A('s_cmp_lt_u32', T1, 10); A('s_cbranch_scc1', 'G2f2_entry')
    A('s_sub_u32', sI, T1, 10); A('s_branch', 'G1f1_entry')
    A.label('L_qkv')
    A('s_mul_i32', T0, sI, 43); A('s_lshr_b32', T0, T0, 7); A('s_mul_i32', T0, T0, 3); A('s_sub_u32', T0, sI, T0)
    A('s_cmp_eq_u32', T0, 2); A('s_cbranch_scc1', go('qkv', 'G1v_entry'))
    A('s_branch', go('qkv', 'G1qk_entry'))
    A.label('L_end')
    A('s_endpgm')
    def ready(A, mid=False):
        VA, VB, VC = ('v24', 'v25', 'v26') if mid else ('v40', 'v41', 'v42')
        if mid: A('s_waitcnt', 'vmcnt(0)')
        ok = A.newlabel('RDY_ok'); lp = A.newlabel('RDY_lp'); al = A.newlabel('RDY_all')
        if LATE:
            sk = A.newlabel('RDY_sk')
            A('s_cmp_lg_u32', sX, 0); A('s_cbranch_scc1', sk)
            A('s_mov_b64', 'exec', 1); A('v_mov_b32', VA, 1); A('buffer_atomic_add', VA, 'off', SDBG, 0, mods='offset:40'); A('s_mov_b64', 'exec', -1)
            A.label(sk)
        A('s_cmp_lg_u32', sMODE, 0); A('s_cbranch_scc1', ok)
        A('s_mov_b32', 's68', 0)
        A.label(lp)
        A('buffer_load_dword', VA, 'off', SDBG, 0, mods='offset:32 sc1'); A('s_waitcnt', 'vmcnt(0)')
        A('v_readfirstlane_b32', T0, VA); A('s_cmp_ge_u32', T0, 256); A('s_cbranch_scc1', al)
        A('s_sleep', 8)
        A('s_add_u32', 's68', 's68', 1); A('s_cmp_lt_u32', 's68', chain.SPIN_MAX); A('s_cbranch_scc1', lp)
        A('s_branch', ok)
        A.label(al)
        A('v_mbcnt_lo_u32_b32', VB, -1, 0); A('v_and_b32', VB, 7, VB); A('v_min_u32', VC, 1, VB); A('v_lshlrev_b32', VB, 2, VB); A('v_lshl_add_u32', VB, VC, 7, VB)
        A('buffer_load_dword', VA, VB, SDBG, 0, mods='offen sc1'); A('s_waitcnt', 'vmcnt(0)')
        A('v_cmp_ne_u32', 'vcc', 32 if not FORCE_SLOW else 33, VA)
        A('s_cbranch_vccnz', 'L_slow')
        A.label(ok)
        A.vm.clear()
        if DBG and not mid:
            A('s_memrealtime', 's[90:91]'); A('s_waitcnt', 'lgkmcnt(0)'); A('v_mov_b32', VA, 's90'); A('s_lshl_b32', T0, sV, 2); A('s_add_u32', T0, T0, sW); A('s_lshl_b32', T0, T0, 2)
            A('s_add_u32', T0, T0, DBGT + (1 << 19) + 8192); A('buffer_store_dword', VA, 'off', WS, T0); A('s_waitcnt', 'vmcnt(0)'); A.vm.clear()
    bulk.emit_ln(A, 'ln1', ready); bulk.emit_ln(A, 'lna', ready)
    bulk.emit_ln(A, 'ln0', lambda A: None, after=lambda: None)
    bulk.emit_att(A, ready)
    if 'qkv' in ROLES: bulk.emit_gemm1(A, 'qk', ready); bulk.emit_gemm1(A, 'v', ready)
    if 'f1' in ROLES: bulk.emit_gemm1(A, 'f1', ready)
    if 'op' in ROLES: bulk.emit_gemm2(A, 'op', ready)
    if 'f2' in ROLES: bulk.emit_gemm2(A, 'f2', ready)
    if 'chain' in ROLES:
        for w in range(4): chain.emit_chain_wave(A, w, ready, dbg=bool(CHDBG))
    return A.finalize()

DESC = """; Generated by the author's own Python generator (gen/mega.py, chain.py, bulk.py).
;   chain (2 x 32 CUs): the memory recurrence of each attention layer, one head per CU, weights resident in
"""
if __name__ == '__main__':
    out = sys.argv[1]
    k = NAME + '_kernel'
    hdr = open('cdna_kernels/' + NAME + '.s.ref').read().split('; Override launch geometry')[0]
    txt = hdr + f'; @launch kernel={k} grid=(256,1,1) block=(256,1,1) lds=163840\n' + DESC + TARGET + kernel_header(k) + build() + kernel_desc(k)
    open(out, 'w').write(txt)
```
